```python
import torch

def _softmax(x, axis=-1):
    return torch.softmax(x, dim=axis)
def _gelu(x):
    return torch.nn.functional.gelu(x, approximate="tanh")
def _silu(x):
    return torch.nn.functional.silu(x)
def _sigmoid(x):
    return torch.sigmoid(x)
def _layernorm(x, axis=-1, eps=1e-5):
    m = x.mean(dim=axis, keepdim=True)
    v = x.var(dim=axis, keepdim=True, unbiased=False)
    return (x - m) / torch.sqrt(v + eps)
def _scatter_add(tgt, idx, src, axis=0):
    return tgt.clone().index_add_(axis, idx, src)
def _segment_sum(src, seg, n):
    out = torch.zeros((n,) + src.shape[1:], dtype=src.dtype)
    return out.index_add_(0, seg, src)
def _pad(x, pw):
    flat = tuple(v for pair in reversed(pw) for v in pair)
    return torch.nn.functional.pad(x, flat)

kernel_name = 'standalone__dcn_v2_cross__recsys'

def setup_inputs():

    _w = (lambda a: (lambda t: t.to(torch.bfloat16) if t.is_floating_point() else t)(torch.as_tensor(a)))
    B, F, D, L = 1024, 26, 32, 6
    Din = min(F * D, 1024)
    return {
        "x0": _w((lambda *s: torch.randn(*s, dtype=torch.bfloat16) * 0.05)(B, Din)),
        "ws": _w((lambda *s: torch.randn(*s, dtype=torch.bfloat16) * 0.05)(L, Din, Din)),
        "bs": _w((lambda *s: torch.randn(*s, dtype=torch.bfloat16) * 0.05)(L, Din)),
    }

def reference(x0, ws, bs):
    x = x0
    for l in range(ws.shape[0]):
        x = x0 * (x @ ws[l] + bs[l]) + x
    return x
```

```python
class Asm:
    def __init__(self):
        self.lines = []
    def __call__(self, s=""):
        for ln in s.split("\n"):
            self.lines.append(ln)
    def text(self):
        return "\n".join(self.lines) + "\n"

def header(a, name, launch_lines, extra_comment=""):
    for l in launch_lines:
        a("; " + l)
    a('.amdgcn_target "amdgcn-amd-amdhsa--gfx950"')
    a(".text")

def kernel_begin(a, name):
    a(f".globl {name}")
    a(".p2align 8")
    a(f".type {name},@function")
    a(f"{name}:")

def kernel_desc(a, name, vgpr, sgpr=102, accum=None):
    if accum is None:
        accum = min(256, (vgpr + 3) // 4 * 4)
    a('.section .rodata,"a"')
    a(".p2align 6")
    a(f".amdhsa_kernel {name}")
    a(f"  .amdhsa_next_free_vgpr {vgpr}")
    a(f"  .amdhsa_next_free_sgpr {sgpr}")
    a(f"  .amdhsa_accum_offset {accum}")
    a("  .amdhsa_group_segment_fixed_size 0")
    a("  .amdhsa_kernarg_size 48")
    a("  .amdhsa_user_sgpr_count 2")
    a("  .amdhsa_user_sgpr_kernarg_segment_ptr 1")
    a("  .amdhsa_system_sgpr_workgroup_id_x 1")
    a(".end_amdhsa_kernel")
    a(".text")
```

```python
import sys
from asmlib import *

KNAME = "standalone__dcn_v2_cross__recsys_kernel"
B_, DIN, L_ = 1024, 832, 6
ROWB = DIN * 2
WLAYER = DIN * DIN * 2
XLAYER = B_ * DIN * 2
XRB = 64 * ROWB
XMH = 32 * ROWB
FLAGS = 6 * XLAYER
TSOFF = FLAGS + 16 * 256
WS_BYTES = TSOFF + 256 * 8 * 256

class Cfg:
    def __init__(self, **kw):
        self.P = 6
        self.D = 6
        self.PF = 2
        self.nwg = 208
        self.ts = False
        self.force_slow = False
        self.spin_max = 1 << 20
        self.__dict__.update(kw)

def gen(cfg=None, **kw):
    c = cfg or Cfg(**kw)
    P, D, PF = c.P, c.D, c.PF
    assert P <= D and P <= 13 and PF <= P
    KHS = (26 - P) * 2048
    SUF = 0
    PRE = 2 * KHS
    PREPAR = 2 * P * 2048
    RED = PRE + 2 * PREPAR
    BIAS = RED + 16384
    CNT = BIAS + 768
    LDS_BYTES = CNT + 64
    assert LDS_BYTES <= 163840
    sW, sWS, sX0, sOUT, sDBG, sBS = 4, 8, 12, 16, 20, 24
    sRB, sJ, sG2, sWV, sMH, sKH, sL, sXCC, sMODE = 28, 29, 30, 31, 32, 33, 34, 35, 36
    sXA, sXB, sXST = 37, 38, 39
    sWP = 52
    sMP = 53
    sPD = 54
    sOWNV, sOWNF = 55, 56
    sTGT = 57
    sT0, sT1, sT2, sT3 = 58, 59, 60, 61
    sSPIN = 62
    sROT = 63
    sG, sM, sI = 64, 65, 66
    sTSI = 67
    sTM = 68
    vL = 0
    vT0, vT1, vT2, vT3 = 1, 2, 3, 4
    vXO = 6
    vAPK, vAPS, vASK, vASS = 10, 11, 12, 13
    vDMA = 14
    vFA, vBASE, vPOLL = 15, 16, 17
    vRW, vRR = 18, 19
    vBA = 20
    vTS = 21
    vOUT = 22
    vP = 24
    vAK = 32
    vAS = 48
    vPART = 64
    vX0F = 80
    vXR = 96
    vWF = 112
    vXF = 136
    vBP = 240
    NV = 248
    nsets = PF + 1
    assert nsets * 8 <= 24

    a = Asm()
    a(f"; @launch grid=({c.nwg},1,1) block=(320,1,1) lds={LDS_BYTES}")
    a('.amdgcn_target "amdgcn-amd-amdhsa--gfx950"')
    a(".text")
    kernel_begin(a, KNAME)

    def stamp(idx_expr=None):
        if not c.ts: return
        a(f"    s_memtime s[{sTM}:{sTM+1}]")
        a(f"    s_waitcnt lgkmcnt(0)")
        a(f"    v_writelane_b32 v{vTS}, s{sTM}, s{sTSI}")
        a(f"    s_add_u32 s{sTSI}, s{sTSI}, 1")

    def srd(dst, src, nbytes):
        a(f"    s_mov_b32 s{dst}, s{src}")
        a(f"    s_and_b32 s{dst+1}, s{src+1}, 0xffff")
        a(f"    s_mov_b32 s{dst+2}, {nbytes}")
        a(f"    s_mov_b32 s{dst+3}, 0x20000")

    a(f"""
    s_cmp_ge_u32 s2, {c.nwg}
    s_cbranch_scc1 L_end
    s_load_dwordx4 s[40:43], s[0:1], 0
    s_load_dwordx4 s[44:47], s[0:1], 16
    s_load_dwordx4 s[48:51], s[0:1], 32
    s_getreg_b32 s{sXCC}, hwreg(HW_REG_XCC_ID, 0, 4)
    s_add_u32 s{sXCC}, s{sXCC}, 1
    s_and_b32 s{sT0}, s2, 7
    s_lshr_b32 s{sT1}, s2, 3
    s_cmp_ge_u32 s{sT1}, 13
    s_cselect_b32 s{sG2}, 1, 0
    s_mul_i32 s{sT2}, s{sG2}, 13
    s_sub_u32 s{sJ}, s{sT1}, s{sT2}
    s_mul_i32 s{sROT}, s{sG2}, 13
    s_lshl_b32 s{sRB}, s{sT0}, 1
    s_add_u32 s{sRB}, s{sRB}, s{sG2}
    v_lshrrev_b32 v{vT0}, 6, v0
    v_and_b32 v{vL}, 63, v0
    v_readfirstlane_b32 s{sWV}, v{vT0}
    s_mov_b32 s{sTSI}, 0
    v_mov_b32 v{vTS}, 0
    s_and_b32 s{sMH}, s{sWV}, 1
    s_lshr_b32 s{sKH}, s{sWV}, 1
    v_lshrrev_b32 v{vT0}, 3, v{vL}
    v_and_b32 v{vT1}, 7, v{vL}
    v_bfe_u32 v{vT2}, v{vL}, 4, 1
    v_lshlrev_b32 v{vT2}, 2, v{vT2}
    v_xor_b32 v{vT1}, v{vT1}, v{vT2}
    v_lshlrev_b32 v{vT1}, 4, v{vT1}
    v_mul_u32_u24 v{vT0}, {ROWB}, v{vT0}
    v_add_u32 v{vDMA}, v{vT0}, v{vT1}
    s_lshl_b32 s{sT0}, s{sJ}, 7
    v_add_u32 v{vDMA}, s{sT0}, v{vDMA}
    s_waitcnt lgkmcnt(0)
""")
    srd(sX0, 40, XLAYER)
    srd(sW, 42, L_ * WLAYER)
    srd(sBS, 44, L_ * ROWB)
    srd(sOUT, 46, XLAYER)
    srd(sDBG, 48, 256)
    srd(sWS, 50, WS_BYTES)
    if c.ts:
        stamp()
    a(f"""
    s_cmp_eq_u32 s{sWV}, 4
    s_cbranch_scc1 L_loader
""")
    a(f"""
    v_min_u32 v{vT0}, 51, v{vL}
    v_lshlrev_b32 v{vT0}, 2, v{vT0}
    s_lshl_b32 s{sT0}, s{sRB}, 8
    s_add_u32 s{sT0}, s{sT0}, {FLAGS}
    v_add_u32 v{vFA}, s{sT0}, v{vT0}
    buffer_load_dword v{vBASE}, v{vFA}, s[{sWS}:{sWS+3}], 0 offen sc1
    s_lshl_b32 s{sT1}, s{sJ}, 2
    s_add_u32 s{sT1}, s{sT1}, s{sWV}
    s_lshl_b32 s{sOWNF}, s{sT1}, 2
    s_add_u32 s{sOWNF}, s{sOWNF}, s{sT0}
    s_mov_b32 s{sOWNV}, s{sT1}
    s_lshl_b32 s{sT0}, s{sRB}, 6
    s_lshl_b32 s{sT1}, s{sMH}, 5
    s_add_u32 s{sT0}, s{sT0}, s{sT1}
    s_mul_i32 s{sT0}, s{sT0}, {ROWB}
    s_lshl_b32 s{sT1}, s{sJ}, 7
    s_add_u32 s{sT0}, s{sT0}, s{sT1}
    s_lshl_b32 s{sT1}, s{sKH}, 6
    s_add_u32 s{sT0}, s{sT0}, s{sT1}
    v_and_b32 v{vT0}, 31, v{vL}
    v_mul_u32_u24 v{vT0}, {ROWB}, v{vT0}
    v_lshrrev_b32 v{vT1}, 5, v{vL}
    v_add_u32 v{vOUT}, s{sT0}, v{vT0}
    v_lshlrev_b32 v{vT2}, 3, v{vT1}
    v_add_u32 v{vT3}, v{vOUT}, v{vT2}
    v_lshlrev_b32 v{vT2}, 4, v{vT1}
    v_add_u32 v{vOUT}, v{vOUT}, v{vT2}
""")
    for q in range(4):
        a(f"    buffer_load_dwordx2 v[{vP+2*q}:{vP+2*q+1}], v{vT3}, s[{sW-4+12}:{sW-4+15}], 0 offen offset:{16*q}".replace(f"s[{sW-4+12}:{sW-4+15}]", f"s[{sX0}:{sX0+3}]"))
    a(f"""
    s_mul_i32 s{sT0}, s{sKH}, 416
    s_lshl_b32 s{sT1}, s{sROT}, 4
    s_add_u32 s{sT0}, s{sT0}, s{sT1}
    s_lshl_b32 s{sT1}, s{sMH}, 3
    s_add_u32 s{sT0}, s{sT0}, s{sT1}
    s_mul_i32 s{sWP}, s{sT0}, {ROWB}
    s_mul_i32 s{sMP}, s{sKH}, {P*2048}
    s_lshl_b32 s{sT1}, s{sMH}, 10
    s_add_u32 s{sMP}, s{sMP}, s{sT1}
    s_add_u32 s{sMP}, s{sMP}, {PRE}
""")
    for i in range(P):
        a(f"    s_add_u32 m0, s{sMP}, {i*2048}")
        a(f"    s_add_u32 s{sT0}, s{sWP}, {i*26624}")
        a(f"    buffer_load_dwordx4 v{vDMA}, s[{sW}:{sW+3}], s{sT0} offen lds")
    a(f"""
    s_add_u32 s{sWP}, s{sWP}, {WLAYER}
    s_add_u32 s{sMP}, s{sMP}, {PREPAR}        ; parity 1
    s_mov_b32 s{sPD}, {PREPAR}
    v_mov_b32 v{vT0}, 0
    v_mov_b32 v{vT1}, {CNT}
    ds_write_b32 v{vT1}, v{vT0}
    ; ---- x offsets
    v_lshlrev_b32 v{vXO}, 4, v{vL}
    v_add_u32 v{vXO+1}, 0x1000, v{vXO}
    v_add_u32 v{vXO+2}, 0x2000, v{vXO}
    v_add_u32 v{vXO+3}, 0x3000, v{vXO}
    s_mul_i32 s{sT0}, s{sRB}, {XRB}
    s_mul_i32 s{sT1}, s{sMH}, {XMH}
    s_add_u32 s{sT0}, s{sT0}, s{sT1}
    s_mul_i32 s{sT1}, s{sKH}, 26
    s_add_u32 s{sT2}, s{sT1}, s{sROT}
    s_lshl_b32 s{sT2}, s{sT2}, 10
    s_add_u32 s{sXA}, s{sT0}, s{sT2}
    s_add_u32 s{sT2}, s{sT1}, 13
    s_sub_u32 s{sT2}, s{sT2}, s{sROT}
    s_lshl_b32 s{sT2}, s{sT2}, 10
    s_add_u32 s{sXB}, s{sT0}, s{sT2}
    s_lshl_b32 s{sT1}, s{sJ}, 2
    s_lshl_b32 s{sT2}, s{sKH}, 1
    s_add_u32 s{sT1}, s{sT1}, s{sT2}
    s_lshl_b32 s{sT1}, s{sT1}, 10
    s_add_u32 s{sXST}, s{sT0}, s{sT1}
    v_lshrrev_b32 v{vT0}, 5, v{vL}            ; h
    v_lshlrev_b32 v{vT0}, 2, v{vT0}
    v_bfe_u32 v{vT1}, v{vL}, 2, 2             ; r
    v_add_u32 v{vT0}, v{vT0}, v{vT1}
    v_lshlrev_b32 v{vT0}, 7, v{vT0}           ; row*128
    v_bfe_u32 v{vT1}, v{vL}, 4, 1             ; nb
    v_lshlrev_b32 v{vT1}, 1, v{vT1}
    v_bfe_u32 v{vT2}, v{vL}, 1, 1             ; c>>1
    v_add_u32 v{vT1}, v{vT1}, v{vT2}
    v_bfe_u32 v{vT2}, v{vL}, 3, 1             ; (r>>1)&1
    v_lshlrev_b32 v{vT2}, 2, v{vT2}
    v_xor_b32 v{vT1}, v{vT1}, v{vT2}
    v_lshlrev_b32 v{vT1}, 4, v{vT1}
    v_add_u32 v{vT0}, v{vT0}, v{vT1}
    v_and_b32 v{vT1}, 1, v{vL}
    v_lshlrev_b32 v{vT1}, 3, v{vT1}
    v_add_u32 v{vT0}, v{vT0}, v{vT1}
    s_lshl_b32 s{sT0}, s{sKH}, 6
    v_xor_b32 v{vT1}, s{sT0}, v{vT0}          ; keep
    v_xor_b32 v{vT2}, 64, v{vT1}              ; send
    s_mul_i32 s{sT0}, s{sKH}, {P*2048}
    s_add_u32 s{sT0}, s{sT0}, {PRE}
    v_add_u32 v{vAPK}, s{sT0}, v{vT1}
    v_add_u32 v{vAPS}, s{sT0}, v{vT2}
    s_mul_i32 s{sT0}, s{sKH}, {KHS}
    v_add_u32 v{vASK}, s{sT0}, v{vT1}
    v_add_u32 v{vASS}, s{sT0}, v{vT2}
    s_lshl_b32 s{sT0}, s{sWV}, 12
    s_add_u32 s{sT0}, s{sT0}, {RED}
    v_add_u32 v{vRW}, s{sT0}, v{vXO}
    s_xor_b32 s{sT1}, s{sWV}, 2
    s_lshl_b32 s{sT1}, s{sT1}, 12
    s_add_u32 s{sT1}, s{sT1}, {RED}
    v_add_u32 v{vRR}, s{sT1}, v{vXO}
    v_lshrrev_b32 v{vT0}, 5, v{vL}
    v_lshlrev_b32 v{vT0}, 3, v{vT0}
    s_lshl_b32 s{sT0}, s{sKH}, 6
    s_add_u32 s{sT0}, s{sT0}, {BIAS}
    v_add_u32 v{vBA}, s{sT0}, v{vT0}
    s_waitcnt lgkmcnt(0)
    s_barrier                                 ; B_0
    s_waitcnt vmcnt({P})
""")
    if c.ts: stamp()
    a(f"""
    buffer_store_dwordx4 v[{vP}:{vP+3}], v{vXO}, s[{sWS}:{sWS+3}], s{sXST} offen sc1
    buffer_store_dwordx4 v[{vP+4}:{vP+7}], v{vXO}, s[{sWS}:{sWS+3}], s{sXST} offen offset:1024 sc1
    s_add_u32 s{sXST}, s{sXST}, {XLAYER}
    v_readlane_b32 s{sOWNV}, v{vBASE}, s{sOWNV}
""")
    for d in range(8):
        a(f"    v_lshlrev_b32 v{vX0F+2*d}, 16, v{vP+d}")
        a(f"    v_and_b32 v{vX0F+2*d+1}, 0xffff0000, v{vP+d}")
    for r in range(16):
        a(f"    v_mov_b32 v{vXR+r}, v{vX0F+r}")
    a(f"""
    s_waitcnt vmcnt(0)
    v_mov_b32 v{vT0}, 1
    v_mov_b32 v{vT1}, {CNT}
    s_mov_b64 exec, 1
    ds_add_rtn_u32 v{vT2}, v{vT1}, v{vT0}
    s_waitcnt lgkmcnt(0)
    s_mov_b64 exec, -1
    v_readfirstlane_b32 s{sT0}, v{vT2}
    s_lshl_b32 s{sT1}, s{sRB}, 4
    s_cmp_eq_u32 s{sT0}, 3
    s_cbranch_scc0 L_nosig
    s_add_u32 s{sT2}, s{sT1}, s{sJ}
    v_mov_b32 v{vT0}, s{sXCC}
    s_mov_b64 exec, 1
    buffer_store_byte v{vT0}, off, s[{sDBG}:{sDBG+3}], s{sT2} sc1
    s_mov_b64 exec, -1
L_nosig:
    v_min_u32 v{vT0}, 12, v{vL}
    v_add_u32 v{vT0}, s{sT1}, v{vT0}
    s_mov_b32 s{sSPIN}, 0
L_poll0:
    buffer_load_ubyte v{vT1}, v{vT0}, s[{sDBG}:{sDBG+3}], 0 offen sc1
    s_add_u32 s{sSPIN}, s{sSPIN}, 1
    s_cmp_gt_u32 s{sSPIN}, {c.spin_max}
    s_cbranch_scc1 L_end
    s_waitcnt vmcnt(0)
    v_cmp_eq_u32 vcc, 0, v{vT1}
    s_cbranch_vccnz L_poll0
    v_cmp_ne_u32 vcc, s{sXCC}, v{vT1}
    s_mov_b32 s{sMODE}, 1
    s_cbranch_vccz L_modeset
    s_mov_b32 s{sMODE}, 0
L_modeset:
""")
    if c.force_slow:
        a(f"    s_mov_b32 s{sMODE}, 0")
    a(f"    s_mov_b32 s{sL}, 0")
    a("L_layer:")
    if c.ts: stamp()
    a("    s_barrier                                 ; B_a")
    def xload(i):
        seg = sXA if i < 13 else sXB
        ii = i % 13
        a(f"    buffer_load_dwordx4 v[{vXF+4*i}:{vXF+4*i+3}], v{vXO+(ii>>2)}, s[{sWS}:{sWS+3}], s{seg} offen offset:{(ii&3)*1024} sc1")
    def wreads(i):
        st = vWF + 8 * (i % nsets)
        if i < P:
            k, s_, off = vAPK, vAPS, i * 2048
        else:
            k, s_, off = vASK, vASS, (i - P) * 2048
        a(f"    ds_read_b64_tr_b16 v[{st}:{st+1}], v{s_} offset:{off}")
        a(f"    ds_read_b64_tr_b16 v[{st+2}:{st+3}], v{s_} offset:{off+1024}")
        a(f"    ds_read_b64_tr_b16 v[{st+4}:{st+5}], v{k} offset:{off}")
        a(f"    ds_read_b64_tr_b16 v[{st+6}:{st+7}], v{k} offset:{off+1024}")
    for i in range(D):
        xload(i)
    for q in range(4):
        a(f"    ds_read_b64 v[{vBP+2*q}:{vBP+2*q+1}], v{vBA} offset:{16*q}")
    for i in range(PF):
        wreads(i)
    a(f"    v_add_u32 v{vBA}, 128, v{vBA}")
    a(f"    s_waitcnt lgkmcnt({4*PF})")
    for d in range(8):
        a(f"    v_lshlrev_b32 v{vAK+2*d}, 16, v{vBP+d}")
        a(f"    v_and_b32 v{vAK+2*d+1}, 0xffff0000, v{vBP+d}")
    ops = [("x", i) for i in range(D)]
    for i in range(26):
        a(f"    ; ---- step {i}")
        if i + PF == P:
            a("    s_barrier                                 ; B_suf")
        if i + D < 26:
            xload(i + D); ops.append(("x", i + D))
        elif i + D - 26 < P:
            t = i + D - 26
            a(f"    s_add_u32 m0, s{sMP}, {t*2048}")
            a(f"    s_add_u32 s{sT0}, s{sWP}, {t*26624}")
            a(f"    buffer_load_dwordx4 v{vDMA}, s[{sW}:{sW+3}], s{sT0} offen lds")
            ops.append(("w", t))
        nread_after = 0
        if i + PF < 26:
            wreads(i + PF)
        young = sum(4 for t in range(i + 1, min(i + PF, 25) + 1))
        nv = len(ops) - 1 - ops.index(("x", i))
        a(f"    s_waitcnt vmcnt({nv}) lgkmcnt({young})")
        st = vWF + 8 * (i % nsets)
        xf = vXF + 4 * i
        cs = "0" if i == 0 else f"v[{vAS}:{vAS+15}]"
        a(f"    v_mfma_f32_32x32x16_bf16 v[{vAS}:{vAS+15}], v[{st}:{st+3}], v[{xf}:{xf+3}], {cs}")
        a(f"    v_mfma_f32_32x32x16_bf16 v[{vAK}:{vAK+15}], v[{st+4}:{st+7}], v[{xf}:{xf+3}], v[{vAK}:{vAK+15}]")
    if c.ts:
        a("    s_nop 15")
        stamp()
    a("    s_nop 10")
    for q in range(4):
        a(f"    ds_write_b128 v{vRW}, v[{vAS+4*q}:{vAS+4*q+3}] offset:{q*1024}")
    a("    s_waitcnt lgkmcnt(0)")
    a("    s_barrier                                 ; B2")
    for q in range(4):
        a(f"    ds_read_b128 v[{vPART+4*q}:{vPART+4*q+3}], v{vRR} offset:{q*1024}")
    for q in range(4):
        a(f"    s_waitcnt lgkmcnt({3-q})")
        for p in range(2):
            r = 4 * q + 2 * p
            a(f"    v_pk_add_f32 v[{vAK+r}:{vAK+r+1}], v[{vAK+r}:{vAK+r+1}], v[{vPART+r}:{vPART+r+1}]")
        for p in range(2):
            r = 4 * q + 2 * p
            a(f"    v_pk_fma_f32 v[{vAK+r}:{vAK+r+1}], v[{vX0F+r}:{vX0F+r+1}], v[{vAK+r}:{vAK+r+1}], v[{vXR+r}:{vXR+r+1}]")
        for p in range(2):
            r = 4 * q + 2 * p
            a(f"    v_cvt_pk_bf16_f32 v{vP+2*q+p}, v{vAK+r}, v{vAK+r+1}")
    a(f"""
    s_cmp_eq_u32 s{sL}, 5
    s_cbranch_scc1 L_final
    s_cmp_eq_u32 s{sMODE}, 0
    s_cbranch_scc1 L_st_slow
    buffer_store_dwordx4 v[{vP}:{vP+3}], v{vXO}, s[{sWS}:{sWS+3}], s{sXST} offen
    buffer_store_dwordx4 v[{vP+4}:{vP+7}], v{vXO}, s[{sWS}:{sWS+3}], s{sXST} offen offset:1024
    s_add_u32 s{sOWNV}, s{sOWNV}, 1
    v_mov_b32 v{vT0}, s{sOWNV}
    s_waitcnt vmcnt(0)
    buffer_store_dword v{vT0}, off, s[{sWS}:{sWS+3}], s{sOWNF}
    s_branch L_st_done
L_st_slow:
    buffer_store_dwordx4 v[{vP}:{vP+3}], v{vXO}, s[{sWS}:{sWS+3}], s{sXST} offen sc1
    buffer_store_dwordx4 v[{vP+4}:{vP+7}], v{vXO}, s[{sWS}:{sWS+3}], s{sXST} offen offset:1024 sc1
    s_add_u32 s{sOWNV}, s{sOWNV}, 1
    v_mov_b32 v{vT0}, s{sOWNV}
    s_waitcnt vmcnt(0)
    buffer_store_dword v{vT0}, off, s[{sWS}:{sWS+3}], s{sOWNF} sc1
L_st_done:
""")
    if c.ts: stamp()
    for d in range(8):
        a(f"    v_lshlrev_b32 v{vXR+2*d}, 16, v{vP+d}")
        a(f"    v_and_b32 v{vXR+2*d+1}, 0xffff0000, v{vP+d}")
    a(f"""
    s_add_u32 s{sL}, s{sL}, 1
    s_add_u32 s{sXA}, s{sXA}, {XLAYER}
    s_add_u32 s{sXB}, s{sXB}, {XLAYER}
    s_add_u32 s{sXST}, s{sXST}, {XLAYER}
    s_add_u32 s{sWP}, s{sWP}, {WLAYER}
    s_sub_u32 s{sMP}, s{sMP}, s{sPD}
    v_add_u32 v{vAPK}, s{sPD}, v{vAPK}
    v_add_u32 v{vAPS}, s{sPD}, v{vAPS}
    s_sub_u32 s{sPD}, 0, s{sPD}
    s_mov_b32 s{sSPIN}, 0
L_poll:
    buffer_load_dword v{vPOLL}, v{vFA}, s[{sWS}:{sWS+3}], 0 offen sc1
    s_add_u32 s{sSPIN}, s{sSPIN}, 1
    s_cmp_gt_u32 s{sSPIN}, {c.spin_max}
    s_cbranch_scc1 L_end
    s_waitcnt vmcnt(0)
    v_sub_u32 v{vPOLL}, v{vPOLL}, v{vBASE}
    v_cmp_gt_u32 vcc, s{sL}, v{vPOLL}
    s_cbranch_vccnz L_poll
    s_branch L_layer
L_final:
    s_nop 1
    v_permlane32_swap_b32 v{vP}, v{vP+2}
    v_permlane32_swap_b32 v{vP+1}, v{vP+3}
    v_permlane32_swap_b32 v{vP+4}, v{vP+6}
    v_permlane32_swap_b32 v{vP+5}, v{vP+7}
    buffer_store_dwordx4 v[{vP}:{vP+3}], v{vOUT}, s[{sOUT}:{sOUT+3}], 0 offen
    buffer_store_dwordx4 v[{vP+4}:{vP+7}], v{vOUT}, s[{sOUT}:{sOUT+3}], 0 offen offset:32
""")
    if c.ts:
        stamp()
        a(f"""
    s_mul_i32 s{sT0}, s2, 5
    s_add_u32 s{sT0}, s{sT0}, s{sWV}
    s_lshl_b32 s{sT0}, s{sT0}, 8
    s_add_u32 s{sT0}, s{sT0}, {TSOFF}
    v_lshlrev_b32 v{vT0}, 2, v{vL}
    buffer_store_dword v{vTS}, v{vT0}, s[{sWS}:{sWS+3}], s{sT0} offen
""")
    a("    s_endpgm")
    a(f"""
L_loader:
    v_add_u32 v{vXO+1}, {8*ROWB}, v{vDMA}
    v_add_u32 v{vXO+2}, {416*ROWB}, v{vDMA}
    v_add_u32 v{vXO+3}, {424*ROWB}, v{vDMA}
    v_lshrrev_b32 v{vT0}, 5, v{vL}
    v_mul_u32_u24 v{vT0}, {ROWB}, v{vT0}
    v_and_b32 v{vT1}, 31, v{vL}
    v_lshlrev_b32 v{vT1}, 2, v{vT1}
    v_add_u32 v{vT0}, v{vT0}, v{vT1}
    s_lshl_b32 s{sT0}, s{sJ}, 7
    v_add_u32 v{vT0}, s{sT0}, v{vT0}
""")
    for t in range(3):
        a(f"    s_mov_b32 m0, {BIAS + 256*t}")
        a(f"    s_mov_b32 s{sT0}, {2*t*ROWB}")
        a(f"    buffer_load_dword v{vT0}, s[{sW-4+24}:{sW-4+27}], s{sT0} offen lds".replace(f"s[{sW-4+24}:{sW-4+27}]", f"s[{sBS}:{sBS+3}]"))
    a(f"""
    v_mov_b32 v{vT2}, 0
    v_mov_b32 v{vT1}, {CNT}
    ds_write_b32 v{vT1}, v{vT2}
    s_waitcnt lgkmcnt(0)
    s_barrier                                 ; B_0
    s_mov_b32 s{sL}, 0
    s_mov_b32 s{sT3}, 0
L_ld_layer:
    s_add_u32 s{sG}, s{sROT}, {P}
    s_mul_i32 s{sG}, s{sG}, 26624
    s_add_u32 s{sG}, s{sG}, s{sT3}
    s_mov_b32 s{sM}, {SUF}
    s_mov_b32 s{sI}, {P}
L_ld_step:
    s_mov_b32 m0, s{sM}
    s_add_u32 s{sT0}, s{sM}, 1024
    buffer_load_dwordx4 v{vDMA}, s[{sW}:{sW+3}], s{sG} offen lds
    s_mov_b32 m0, s{sT0}
    s_add_u32 s{sT1}, s{sM}, {KHS}
    buffer_load_dwordx4 v{vXO+1}, s[{sW}:{sW+3}], s{sG} offen lds
    s_mov_b32 m0, s{sT1}
    s_add_u32 s{sT0}, s{sM}, {KHS+1024}
    buffer_load_dwordx4 v{vXO+2}, s[{sW}:{sW+3}], s{sG} offen lds
    s_mov_b32 m0, s{sT0}
    s_add_u32 s{sM}, s{sM}, 2048
    buffer_load_dwordx4 v{vXO+3}, s[{sW}:{sW+3}], s{sG} offen lds
    s_add_u32 s{sG}, s{sG}, 26624
    s_add_u32 s{sI}, s{sI}, 1
    s_cmp_eq_u32 s{sI}, 13
    s_cbranch_scc0 L_ld_nowrap
    s_sub_u32 s{sG}, 13, s{sROT}
    s_mul_i32 s{sG}, s{sG}, 26624
    s_add_u32 s{sG}, s{sG}, s{sT3}
    s_waitcnt vmcnt({4*(13-P)})
L_ld_nowrap:
    s_cmp_lt_u32 s{sI}, 26
    s_cbranch_scc1 L_ld_step
""")
    if c.ts: stamp()
    a(f"""
    s_barrier                                 ; B_a
    s_waitcnt vmcnt(0)
""")
    if c.ts: stamp()
    a(f"""
    s_barrier                                 ; B_suf
    s_barrier                                 ; B2
    s_add_u32 s{sL}, s{sL}, 1
    s_add_u32 s{sT3}, s{sT3}, {WLAYER}
    s_cmp_lt_u32 s{sL}, 6
    s_cbranch_scc1 L_ld_layer
""")
    if c.ts:
        a(f"""
    s_mul_i32 s{sT0}, s2, 5
    s_add_u32 s{sT0}, s{sT0}, s{sWV}
    s_lshl_b32 s{sT0}, s{sT0}, 8
    s_add_u32 s{sT0}, s{sT0}, {TSOFF}
    v_lshlrev_b32 v{vT0}, 2, v{vL}
    buffer_store_dword v{vTS}, v{vT0}, s[{sWS}:{sWS+3}], s{sT0} offen
""")
    a("L_end:")
    a("    s_endpgm")
    kernel_desc(a, KNAME, NV, sgpr=96, accum=NV)
    txt = a.text()
    txt = txt.rstrip()
    if txt.endswith(".text"):
        txt = txt[:-5]
    return txt

if __name__ == "__main__":
    import json
    kw = json.loads(sys.argv[2]) if len(sys.argv) > 2 else {}
    open(sys.argv[1], "w").write(gen(**kw))
```

```python
import sys
from asmlib import *

KNAME = "standalone__dcn_v2_cross__recsys_kernel"
B_, DIN, L_ = 1024, 832, 6
ROWB = DIN * 2
WLAYER = DIN * DIN * 2
XLAYER = B_ * DIN * 2
XPAD = int(__import__("os").environ.get("XPAD", "1024"))
XMH = 32 * ROWB + XPAD
XRB = 2 * XMH
XBUF = 16 * XRB
CTRL = 2 * XBUF
TSOFF = CTRL + 16 * 4096
WS_BYTES = TSOFF + 256 * 8 * 256

class Cfg:
    def __init__(self, **kw):
        self.P = 6
        self.D = 6
        self.PF = 2
        self.nwg = 208
        self.ts = False
        self.force_slow = False
        self.scramble = False
        self.spin_max = 1 << 20
        self.xsc = 'sc1'
        self.wstride = WLAYER
        self.prio = 2
        self.helpers = True
        self.lthr = 0
        self.hx_first = True
        self.hp = None
        self.gap = 0
        self.gap2 = 7
        self.no_suf = False
        self.no_pre = False
        self.no_x = False
        self.no_w = False
        self.__dict__.update(kw)

def gen(cfg=None, **kw):
    c = cfg or Cfg(**kw)
    P, D, PF = c.P, c.D, c.PF
    assert P <= 12 and PF <= P
    KHS = (26 - P) * 2048
    PRE0 = 0
    SUF = 2 * P * 2048
    PRE1 = SUF + 2 * KHS
    PREPAR = PRE1 - PRE0
    RED = PRE1 + 2 * P * 2048
    BIAS = RED + 16384
    LDS_BYTES = BIAS + 768
    XS = SUF
    assert XS + 4 * 28672 <= BIAS and LDS_BYTES <= 163840
    sW, sWS, sX0, sOUT, sBS = 4, 8, 12, 16, 24
    sRB, sJ, sG2, sWV, sMH, sKH, sL, sXCC, sMODE = 28, 29, 30, 31, 32, 33, 34, 35, 36
    sXA, sXB, sXST = 37, 38, 39
    sWP, sMP, sPD = 52, 53, 54
    sOWNF = 56
    sT0, sT1, sT2, sT3 = 58, 59, 60, 61
    sSPIN, sROT = 62, 63
    sG, sM, sI = 64, 65, 66
    sTSI = 67
    sTM = 68
    sXD = 70
    sXD2 = 57
    sU = 55
    sCB = 71
    sE = 72
    sTA = 74
    sTB = 76
    sMK = 78
    vL = 0
    vT0, vT1, vT2, vT3 = 1, 2, 3, 4
    vXO = 6
    vAPK, vAPS, vASK, vASS = 10, 11, 12, 13
    vDMA = 14
    vFA = 15
    vPOLL = 16
    vRW, vRR = 20, 21
    vBA = 22
    vTS = 23
    vP = 24
    vAK = 32
    vAS = 48
    vPART = 64
    vX0F = 80
    vXR = 96
    vWF = 112
    vXF = 136
    vBP = 240
    vOUT = 248
    vHA = 249
    vFV = 250
    vDMA0 = 252
    NV = 256
    nsets = PF + 1
    assert nsets * 8 <= 24

    a = Asm()
    a(f"; @launch grid=({256 if c.helpers else 208},1,1) block=(512,1,1) lds={LDS_BYTES}")
    a('.amdgcn_target "amdgcn-amd-amdhsa--gfx950"')
    a(".text")
    kernel_begin(a, KNAME)

    def stamp(level=2):
        if not c.ts or (int(c.ts) < level) or (int(c.ts) == 4 and level > 1): return
        a(f"    s_memtime s[{sTM}:{sTM+1}]")
        a(f"    s_waitcnt lgkmcnt(0)")
        a(f"    s_mov_b32 m0, s{sTSI}")
        a(f"    s_nop 0")
        a(f"    v_writelane_b32 v{vTS}, s{sTM}, m0")
        a(f"    s_add_u32 s{sTSI}, s{sTSI}, 1")
    def dump_ts():
        if not c.ts: return
        a(f"""
    s_lshl_b32 s{sT0}, s2, 3
    s_add_u32 s{sT0}, s{sT0}, s{sWV}
    s_lshl_b32 s{sT0}, s{sT0}, 8
    s_add_u32 s{sT0}, s{sT0}, {TSOFF}
    v_lshlrev_b32 v{vT0}, 2, v{vL}
    buffer_store_dword v{vTS}, v{vT0}, s[{sWS}:{sWS+3}], s{sT0} offen
""")
    def srd(dst, src, nbytes):
        a(f"    s_mov_b32 s{dst}, s{src}")
        a(f"    s_and_b32 s{dst+1}, s{src+1}, 0xffff")
        a(f"    s_mov_b32 s{dst+2}, {nbytes}")
        a(f"    s_mov_b32 s{dst+3}, 0x20000")

    a(f"""
    s_cmp_ge_u32 s2, {256 if c.helpers else 208}
    s_cbranch_scc1 L_end
    s_load_dwordx4 s[40:43], s[0:1], 0
    s_load_dwordx4 s[44:47], s[0:1], 16
    s_load_dwordx2 s[50:51], s[0:1], 40
    s_getreg_b32 s{sXCC}, hwreg(HW_REG_XCC_ID, 0, 4)
""")
    if c.scramble:
        a(f"""
    s_mul_hi_u32 s{sRB}, s2, 0x13B13B14
    s_mul_i32 s{sT0}, s{sRB}, 13
    s_sub_u32 s{sJ}, s2, s{sT0}
    s_and_b32 s{sG2}, s{sRB}, 1
    s_mul_i32 s{sROT}, s{sG2}, 13""")
    else:
        a(f"""
    s_and_b32 s{sT0}, s2, 7
    s_lshr_b32 s{sT1}, s2, 3
    s_cmp_ge_u32 s{sT1}, 13
    s_cselect_b32 s{sG2}, 1, 0
    s_mul_i32 s{sROT}, s{sG2}, 13
    s_sub_u32 s{sJ}, s{sT1}, s{sROT}
    s_lshl_b32 s{sRB}, s{sT0}, 1
    s_add_u32 s{sRB}, s{sRB}, s{sG2}""")
    a(f"""
    v_lshrrev_b32 v{vT0}, 6, v0
    v_and_b32 v{vL}, 63, v0
    v_readfirstlane_b32 s{sWV}, v{vT0}
    s_mov_b32 s{sTSI}, 0
    v_mov_b32 v{vTS}, 0
    s_lshl_b32 s{sCB}, s{sRB}, 12
    s_add_u32 s{sCB}, s{sCB}, {CTRL}
    s_and_b32 s{sMH}, s{sWV}, 1
    s_bfe_u32 s{sKH}, s{sWV}, 0x10001
    v_lshrrev_b32 v{vT0}, 3, v{vL}            ; row8
    v_and_b32 v{vT1}, 7, v{vL}
    v_bfe_u32 v{vT2}, v{vL}, 4, 1
    v_lshlrev_b32 v{vT2}, 2, v{vT2}
    v_xor_b32 v{vT1}, v{vT1}, v{vT2}
    v_lshlrev_b32 v{vT1}, 4, v{vT1}
    s_lshl_b32 s{sT0}, s{sJ}, 7
    v_add_u32 v{vT1}, s{sT0}, v{vT1}
    v_mul_u32_u24 v{vT2}, {ROWB}, v{vT0}
    v_add_u32 v{vDMA}, v{vT2}, v{vT1}
    v_and_b32 v{vT2}, 3, v{vT0}
    v_lshrrev_b32 v{vT0}, 2, v{vT0}
    v_lshl_add_u32 v{vT0}, v{vT0}, 3, v{vT2}
    v_mul_u32_u24 v{vT0}, {ROWB}, v{vT0}
    v_add_u32 v{vDMA0}, v{vT0}, v{vT1}
    s_waitcnt lgkmcnt(0)
""")
    srd(sX0, 40, XLAYER)
    srd(sW, 42, L_ * WLAYER)
    srd(sBS, 44, L_ * ROWB)
    srd(sOUT, 46, XLAYER)
    srd(sWS, 50, WS_BYTES)
    stamp(1)
    if c.helpers:
        a(f"""
    s_cmp_ge_u32 s2, 208
    s_cbranch_scc1 L_helper
""")
    a(f"""
    s_cmp_ge_u32 s{sWV}, 4
    s_cbranch_scc1 L_loader
""")
    def bias_init():
        for q in range(4):
            a(f"    ds_read_b64 v[{vBP+2*q}:{vBP+2*q+1}], v{vBA} offset:{16*q}")
        a(f"    v_add_u32 v{vBA}, 128, v{vBA}")
        a(f"    s_waitcnt lgkmcnt(0)")
        for d in range(8):
            a(f"    v_lshlrev_b32 v{vAK+2*d}, 16, v{vBP+d}")
            a(f"    v_and_b32 v{vAK+2*d+1}, 0xffff0000, v{vBP+d}")
    a(f"""
    s_load_dwordx2 s[{sE}:{sE+1}], s[50:51], s{sCB}
    s_setprio {c.prio}
    s_lshl_b32 s{sT0}, s{sRB}, 6
    s_lshl_b32 s{sT1}, s{sMH}, 5
    s_add_u32 s{sT0}, s{sT0}, s{sT1}
    s_mul_i32 s{sT0}, s{sT0}, {ROWB}
    s_lshl_b32 s{sT1}, s{sJ}, 7
    s_add_u32 s{sT0}, s{sT0}, s{sT1}
    s_lshl_b32 s{sT1}, s{sKH}, 6
    s_add_u32 s{sT0}, s{sT0}, s{sT1}
    v_and_b32 v{vT0}, 31, v{vL}
    v_mul_u32_u24 v{vT0}, {ROWB}, v{vT0}
    v_lshrrev_b32 v{vT1}, 5, v{vL}
    v_add_u32 v{vOUT}, s{sT0}, v{vT0}
    v_lshlrev_b32 v{vT2}, 3, v{vT1}
    v_add_u32 v{vT3}, v{vOUT}, v{vT2}
    v_lshlrev_b32 v{vT2}, 4, v{vT1}
    v_add_u32 v{vOUT}, v{vOUT}, v{vT2}
""")
    for q in range(4):
        a(f"    buffer_load_dwordx2 v[{vP+2*q}:{vP+2*q+1}], v{vT3}, s[{sX0}:{sX0+3}], 0 offen offset:{16*q}")
    a(f"""
    v_lshlrev_b32 v{vXO}, 4, v{vL}
    v_add_u32 v{vXO+1}, 0x1000, v{vXO}
    v_add_u32 v{vXO+2}, 0x2000, v{vXO}
    v_add_u32 v{vXO+3}, 0x3000, v{vXO}
    s_mul_i32 s{sT0}, s{sRB}, {XRB}
    s_mul_i32 s{sT1}, s{sMH}, {XMH}
    s_add_u32 s{sT0}, s{sT0}, s{sT1}
    s_lshl_b32 s{sT1}, s{sJ}, 2
    s_lshl_b32 s{sT2}, s{sKH}, 1
    s_add_u32 s{sT1}, s{sT1}, s{sT2}
    s_lshl_b32 s{sT1}, s{sT1}, 10
    s_add_u32 s{sXST}, s{sT0}, s{sT1}
""")
    if not c.helpers:
        a(f"""
    v_and_b32 v{vT1}, 15, v{vL}
    v_lshlrev_b32 v{vT1}, 7, v{vT1}
    v_bfe_u32 v{vT2}, v{vL}, 4, 1
    v_mul_u32_u24 v{vT2}, {XBUF >> 8}, v{vT2}
    v_lshl_add_u32 v{vT1}, v{vT2}, 8, v{vT1}
    buffer_load_dword v5, v{vT1}, s[{sWS}:{sWS+3}], s{sXST} offen sc1
""")
    NT = 0 if c.helpers else 1
    a(f"""
    s_add_u32 s{sXST}, s{sXST}, {XBUF}
    s_add_u32 s{sT0}, s{sT0}, {XBUF}
    s_mul_i32 s{sT1}, s{sKH}, 26
    s_add_u32 s{sT2}, s{sT1}, s{sROT}
    s_lshl_b32 s{sT2}, s{sT2}, 10
    s_add_u32 s{sXA}, s{sT0}, s{sT2}
    s_add_u32 s{sT2}, s{sT1}, 13
    s_sub_u32 s{sT2}, s{sT2}, s{sROT}
    s_lshl_b32 s{sT2}, s{sT2}, 10
    s_add_u32 s{sXB}, s{sT0}, s{sT2}
    s_mov_b32 s{sXD}, {-XBUF & 0xffffffff}
    s_mov_b32 s{sXD2}, {-XBUF & 0xffffffff}
    s_mul_i32 s{sT0}, s{sKH}, 416
    s_lshl_b32 s{sT1}, s{sROT}, 4
    s_add_u32 s{sT0}, s{sT0}, s{sT1}
    s_lshl_b32 s{sT1}, s{sMH}, 2
    s_add_u32 s{sT2}, s{sT0}, s{sT1}
    s_mul_i32 s{sT2}, s{sT2}, {ROWB}
    s_lshl_b32 s{sT1}, s{sMH}, 3
    s_add_u32 s{sT0}, s{sT0}, s{sT1}
    s_mul_i32 s{sWP}, s{sT0}, {ROWB}
    s_mul_i32 s{sMP}, s{sKH}, {P*2048}
    s_lshl_b32 s{sT1}, s{sMH}, 10
    s_add_u32 s{sMP}, s{sMP}, s{sT1}
""")
    for i in range(P):
        a(f"    s_add_u32 m0, s{sMP}, {PRE0 + i*2048}")
        a(f"    s_add_u32 s{sT0}, s{sT2}, {i*26624}")
        a(f"    buffer_load_dwordx4 v{vDMA0}, s[{sW}:{sW+3}], s{sT0} offen lds")
    a(f"""
    s_add_u32 s{sWP}, s{sWP}, {c.wstride}
    s_add_u32 s{sMP}, s{sMP}, {PRE1}          ; parity 1
    s_mov_b32 s{sPD}, {PREPAR}
    v_min_u32 v{vT0}, 51, v{vL}
    v_lshlrev_b32 v{vT0}, 3, v{vT0}
    s_add_u32 s{sT0}, s{sCB}, 2048
    v_add_u32 v{vFA}, s{sT0}, v{vT0}
    s_lshl_b32 s{sT1}, s{sJ}, 2
    s_add_u32 s{sT1}, s{sT1}, s{sWV}
    s_lshl_b32 s{sT1}, s{sT1}, 3
    s_add_u32 s{sOWNF}, s{sT0}, s{sT1}
    v_min_u32 v{vT0}, 12, v{vL}
    v_lshlrev_b32 v{vT0}, 7, v{vT0}
    s_add_u32 s{sT0}, s{sCB}, 128
    v_add_u32 v{vHA}, s{sT0}, v{vT0}
    v_lshrrev_b32 v{vT0}, 5, v{vL}            ; h
    v_lshlrev_b32 v{vT0}, 2, v{vT0}
    v_bfe_u32 v{vT1}, v{vL}, 2, 2             ; r
    v_add_u32 v{vT0}, v{vT0}, v{vT1}
    v_lshlrev_b32 v{vT0}, 7, v{vT0}           ; row*128
    v_bfe_u32 v{vT1}, v{vL}, 4, 1             ; nb
    v_lshlrev_b32 v{vT1}, 1, v{vT1}
    v_bfe_u32 v{vT2}, v{vL}, 1, 1             ; c>>1
    v_add_u32 v{vT1}, v{vT1}, v{vT2}
    v_bfe_u32 v{vT2}, v{vL}, 3, 1             ; (r>>1)&1
    v_lshlrev_b32 v{vT2}, 2, v{vT2}
    v_xor_b32 v{vT1}, v{vT1}, v{vT2}
    v_lshlrev_b32 v{vT1}, 4, v{vT1}
    v_add_u32 v{vT0}, v{vT0}, v{vT1}
    v_and_b32 v{vT1}, 1, v{vL}
    v_lshlrev_b32 v{vT1}, 3, v{vT1}
    v_add_u32 v{vT0}, v{vT0}, v{vT1}
    s_lshl_b32 s{sT0}, s{sKH}, 6
    v_xor_b32 v{vT1}, s{sT0}, v{vT0}          ; keep
    v_xor_b32 v{vT2}, 64, v{vT1}              ; send
    s_mul_i32 s{sT0}, s{sKH}, {P*2048}
    v_add_u32 v{vAPK}, s{sT0}, v{vT1}
    v_add_u32 v{vAPS}, s{sT0}, v{vT2}
    s_mul_i32 s{sT0}, s{sKH}, {KHS}
    s_add_u32 s{sT0}, s{sT0}, {SUF}
    v_add_u32 v{vASK}, s{sT0}, v{vT1}
    v_add_u32 v{vASS}, s{sT0}, v{vT2}
    s_lshl_b32 s{sT0}, s{sWV}, 12
    s_add_u32 s{sT0}, s{sT0}, {RED}
    v_add_u32 v{vRW}, s{sT0}, v{vXO}
    s_xor_b32 s{sT1}, s{sWV}, 2
    s_lshl_b32 s{sT1}, s{sT1}, 12
    s_add_u32 s{sT1}, s{sT1}, {RED}
    v_add_u32 v{vRR}, s{sT1}, v{vXO}
    v_lshrrev_b32 v{vT0}, 5, v{vL}
    v_lshlrev_b32 v{vT0}, 3, v{vT0}
    s_lshl_b32 s{sT0}, s{sKH}, 6
    s_add_u32 s{sT0}, s{sT0}, {BIAS}
    v_add_u32 v{vBA}, s{sT0}, v{vT0}
    v_and_b32 v{vT0}, 31, v{vL}               ; m
    v_lshrrev_b32 v{vT1}, 3, v{vT0}
    v_lshlrev_b32 v{vT1}, 10, v{vT1}          ; rg*1024
    v_and_b32 v{vT2}, 7, v{vT0}
    v_lshl_add_u32 v{vT1}, v{vT2}, 7, v{vT1}  ; + row8*128
    v_bfe_u32 v{vT2}, v{vT0}, 1, 3            ; f(m)
    v_lshrrev_b32 v{vT0}, 5, v{vL}
    v_xor_b32 v{vT2}, v{vT2}, v{vT0}          ; f(m) ^ h
    s_mul_i32 s{sT3}, s{sWV}, 28672
    s_add_u32 s{sT3}, s{sT3}, {XS}
    s_mul_i32 s{sI}, s{sKH}, 26
""")
    for seg in range(2):
        if seg == 0:
            a(f"    s_add_u32 s{sG}, s{sI}, s{sROT}")
        else:
            a(f"    s_add_u32 s{sG}, s{sI}, 13")
            a(f"    s_sub_u32 s{sG}, s{sG}, s{sROT}")
        for x in range(4):
            r = vPART + seg * 4 + x
            a(f"    s_add_u32 s{sT0}, s{sG}, {x}")
            a(f"    s_and_b32 s{sT1}, s{sT0}, 3")
            a(f"    s_lshl_b32 s{sT1}, s{sT1}, 1")
            a(f"    s_lshr_b32 s{sT0}, s{sT0}, 2")
            a(f"    s_mul_i32 s{sM}, s{sKH}, 6")
            a(f"    s_sub_u32 s{sT0}, s{sT0}, s{sM}")
            a(f"    s_lshl_b32 s{sT0}, s{sT0}, 12")
            a(f"    s_add_u32 s{sT0}, s{sT0}, s{sT3}")
            a(f"    v_xor_b32 v{r}, s{sT1}, v{vT2}")
            a(f"    v_lshl_add_u32 v{r}, v{r}, 4, v{vT1}")
            a(f"    v_add_u32 v{r}, s{sT0}, v{r}")
    a(f"""
    s_waitcnt lgkmcnt(0)
    s_add_u32 s{sTA}, s{sE}, 1
    s_addc_u32 s{sTA+1}, s{sE+1}, 0
    s_add_u32 s{sTB}, s{sE}, 2
    s_addc_u32 s{sTB+1}, s{sE+1}, 0
    s_cmp_eq_u32 s{sWV}, 0
    s_cbranch_scc0 L_nohello
    s_add_u32 s{sT0}, s{sE}, 8
    s_addc_u32 s{sT1}, s{sE+1}, 0
    v_mov_b32 v{vPOLL}, s{sT0}
    v_mov_b32 v{vPOLL+1}, s{sT1}
    v_mov_b32 v{vPOLL+2}, s{sXCC}
    v_mov_b32 v{vPOLL+3}, 0
    s_lshl_b32 s{sT2}, s{sJ}, 7
    s_add_u32 s{sT2}, s{sT2}, s{sCB}
    s_add_u32 s{sT2}, s{sT2}, 128
    s_mov_b64 exec, 1
    buffer_store_dwordx4 v[{vPOLL}:{vPOLL+3}], off, s[{sWS}:{sWS+3}], s{sT2} sc1
    s_mov_b64 exec, -1
L_nohello:
    s_waitcnt vmcnt({P+NT})
""")
    for d in range(8):
        a(f"    v_lshlrev_b32 v{vX0F+2*d}, 16, v{vP+d}")
        a(f"    v_and_b32 v{vX0F+2*d+1}, 0xffff0000, v{vP+d}")
    for r in range(16):
        a(f"    v_mov_b32 v{vXR+r}, v{vX0F+r}")
    a(f"""
    s_cmp_eq_u32 s{sWV}, 0
    s_cbranch_scc1 L_w0wait
    s_waitcnt vmcnt(0)
L_w0wait:
    s_waitcnt vmcnt(1)
""")
    stamp()
    a("    s_barrier")
    stamp()
    for i in range(26):
        seg, ii = (0, i) if i < 13 else (1, i - 13)
        a(f"    ds_read_b128 v[{vXF+4*i}:{vXF+4*i+3}], v{vPART + seg*4 + (ii & 3)} offset:{(ii >> 2) * 4096}")
        if i in (12, 20):
            a("    s_waitcnt lgkmcnt(5)")
    bias_init()
    a("    s_barrier")
    a(f"    s_mov_b32 s{sL}, 0")
    stamp()

    def xload(i):
        if c.no_x:
            a("    s_nop 0"); return
        seg = sXA if i < 13 else sXB
        ii = i % 13
        a(f"    buffer_load_dwordx4 v[{vXF+4*i}:{vXF+4*i+3}], v{vXO+(ii>>2)}, s[{sWS}:{sWS+3}], s{seg} offen offset:{(ii&3)*1024} {c.xsc}")
    def wreads(i):
        st = vWF + 8 * (i % nsets)
        if i < P:
            k, s_, off = vAPK, vAPS, i * 2048
        else:
            k, s_, off = vASK, vASS, (i - P) * 2048
        a(f"    ds_read_b64_tr_b16 v[{st}:{st+1}], v{s_} offset:{off}")
        a(f"    ds_read_b64_tr_b16 v[{st+2}:{st+3}], v{s_} offset:{off+1024}")
        a(f"    ds_read_b64_tr_b16 v[{st+4}:{st+5}], v{k} offset:{off}")
        a(f"    ds_read_b64_tr_b16 v[{st+6}:{st+7}], v{k} offset:{off+1024}")
    def pref_sched(i):
        k = i - (26 - D)
        per = -(-P // D)
        return [t for t in range(k * per, min(P, (k + 1) * per))]
    def kloop(first):
        ops = []
        if first:
            for i in range(PF):
                wreads(i)
        else:
            xload(0); ops.append(("x", 0))
            for i in range(PF):
                wreads(i)
                if i + 1 < D:
                    a(f"    s_nop {c.gap}")
                    xload(i + 1); ops.append(("x", i + 1))
            for i in range(PF + 1, D):
                a(f"    s_nop {c.gap2}")
                xload(i); ops.append(("x", i))
        bars = [P, 13, 20] if first else [P]
        def rd(i, which):
            if c.no_w: return
            st = vWF + 8 * (i % nsets)
            if i < P: k, s_, off = vAPK, vAPS, i * 2048
            else: k, s_, off = vASK, vASS, (i - P) * 2048
            if which == "s":
                a(f"    ds_read_b64_tr_b16 v[{st}:{st+1}], v{s_} offset:{off}")
                a(f"    ds_read_b64_tr_b16 v[{st+2}:{st+3}], v{s_} offset:{off+1024}")
            else:
                a(f"    ds_read_b64_tr_b16 v[{st+4}:{st+5}], v{k} offset:{off}")
                a(f"    ds_read_b64_tr_b16 v[{st+6}:{st+7}], v{k} offset:{off+1024}")
        marks = [0, 1, 2, 4, 8, 12, 16, 20, 25]
        for i in range(26):
            a(f"    ; ---- step {i}")
            if c.ts and int(c.ts) == 4 and not first and i in marks:
                a(f"    s_memtime s[{80 + 2*marks.index(i)}:{81 + 2*marks.index(i)}]")
            young = sum(4 for t in range(i + 1, min(i + PF - 1, 25) + 1))
            if first:
                a(f"    s_waitcnt lgkmcnt({young})")
            else:
                nv = len(ops) - 1 - ops.index(("x", i))
                a(f"    s_waitcnt vmcnt({nv}) lgkmcnt({young})")
            st = vWF + 8 * (i % nsets)
            xf = vXF + 4 * i
            cs = "0" if i == 0 else f"v[{vAS}:{vAS+15}]"
            a(f"    v_mfma_f32_32x32x16_bf16 v[{vAS}:{vAS+15}], v[{st}:{st+3}], v[{xf}:{xf+3}], {cs}")
            if i + PF in bars:
                a("    s_barrier")
            if first and i == 8:
                a(f"    buffer_load_dwordx4 v[{vPOLL}:{vPOLL+3}], v{vHA}, s[{sWS}:{sWS+3}], 0 offen sc1")
            if not first and i + D < 26:
                xload(i + D); ops.append(("x", i + D))
            elif i + D >= 26:
                for t in ([] if c.no_pre else pref_sched(i)):
                    a(f"    s_add_u32 m0, s{sMP}, {t*2048}")
                    a(f"    s_add_u32 s{sT0}, s{sWP}, {t*26624}")
                    a(f"    buffer_load_dwordx4 v{vDMA}, s[{sW}:{sW+3}], s{sT0} offen lds")
                    ops.append(("w", t))
            if i + PF < 26: rd(i + PF, "s")
            a(f"    v_mfma_f32_32x32x16_bf16 v[{vAK}:{vAK+15}], v[{st+4}:{st+7}], v[{xf}:{xf+3}], v[{vAK}:{vAK+15}]")
            if i + PF < 26: rd(i + PF, "k")
    kloop(True)
    a(f"""
    s_add_u32 s{sT0}, s{sE}, 8
    s_addc_u32 s{sT1}, s{sE+1}, 0
    s_mov_b32 s{sSPIN}, 0
    s_waitcnt vmcnt({P})
L_hello:
    v_cmp_eq_u64 vcc, s[{sT0}:{sT1}], v[{vPOLL}:{vPOLL+1}]
    s_cmp_eq_u64 vcc, -1
    s_cbranch_scc1 L_hello_ok
    s_add_u32 s{sSPIN}, s{sSPIN}, 1
    s_cmp_gt_u32 s{sSPIN}, {c.spin_max}
    s_cbranch_scc1 L_end
    buffer_load_dwordx4 v[{vPOLL}:{vPOLL+3}], v{vHA}, s[{sWS}:{sWS+3}], 0 offen sc1
    s_waitcnt vmcnt(0)
    s_branch L_hello
L_hello_ok:
    v_cmp_eq_u32 vcc, s{sXCC}, v{vPOLL+2}
    s_cmp_eq_u64 vcc, -1
    s_cselect_b32 s{sMODE}, {0 if c.force_slow else 1}, 0
    s_branch L_tail
""")
    assert sT1 == sT0 + 1 and sT0 % 2 == 0
    a("L_layer:")
    stamp(1)
    a("    s_barrier                                 ; B_a")
    stamp()
    kloop(False)
    if c.ts and int(c.ts) == 4:
        a("    s_memtime s[98:99]")
        a("    s_waitcnt lgkmcnt(0)")
        for k in range(10):
            a(f"    s_mov_b32 m0, s{sTSI}")
            a(f"    s_nop 0")
            a(f"    v_writelane_b32 v{vTS}, s{80+2*k}, m0")
            a(f"    s_add_u32 s{sTSI}, s{sTSI}, 1")
    a("L_tail:")
    if c.ts and int(c.ts) in (2, 3):
        a("    s_nop 15")
        stamp()
    a("    s_nop 10")
    for q in range(4):
        a(f"    ds_write_b128 v{vRW}, v[{vAS+4*q}:{vAS+4*q+3}] offset:{q*1024}")
    a("    s_waitcnt lgkmcnt(0)")
    a("    s_barrier                                 ; B2")
    stamp(3)
    for q in range(4):
        a(f"    ds_read_b128 v[{vPART+4*q}:{vPART+4*q+3}], v{vRR} offset:{q*1024}")
    a(f"    v_mov_b32 v{vFV}, s{sTA}")
    a(f"    v_mov_b32 v{vFV+1}, s{sTA+1}")
    for q in range(4):
        a(f"    s_waitcnt lgkmcnt({3-q})")
        for p in range(2):
            r = 4 * q + 2 * p
            a(f"    v_pk_add_f32 v[{vAK+r}:{vAK+r+1}], v[{vAK+r}:{vAK+r+1}], v[{vPART+r}:{vPART+r+1}]")
        for p in range(2):
            r = 4 * q + 2 * p
            a(f"    v_pk_fma_f32 v[{vAK+r}:{vAK+r+1}], v[{vX0F+r}:{vX0F+r+1}], v[{vAK+r}:{vAK+r+1}], v[{vXR+r}:{vXR+r+1}]")
        for p in range(2):
            r = 4 * q + 2 * p
            a(f"    v_cvt_pk_bf16_f32 v{vP+2*q+p}, v{vAK+r}, v{vAK+r+1}")
    stamp(3)
    a(f"""
    s_cmp_eq_u32 s{sL}, 5
    s_cbranch_scc1 L_final
    s_cmp_eq_u32 s{sMODE}, 0
    s_cbranch_scc1 L_st_slow
    buffer_store_dwordx4 v[{vP}:{vP+3}], v{vXO}, s[{sWS}:{sWS+3}], s{sXST} offen
    buffer_store_dwordx4 v[{vP+4}:{vP+7}], v{vXO}, s[{sWS}:{sWS+3}], s{sXST} offen offset:1024
    s_waitcnt vmcnt(0)
    buffer_store_dwordx2 v[{vFV}:{vFV+1}], off, s[{sWS}:{sWS+3}], s{sOWNF}
    s_branch L_st_done
L_st_slow:
    buffer_store_dwordx4 v[{vP}:{vP+3}], v{vXO}, s[{sWS}:{sWS+3}], s{sXST} offen sc1
    buffer_store_dwordx4 v[{vP+4}:{vP+7}], v{vXO}, s[{sWS}:{sWS+3}], s{sXST} offen offset:1024 sc1
    s_waitcnt vmcnt(0)
    buffer_store_dwordx2 v[{vFV}:{vFV+1}], off, s[{sWS}:{sWS+3}], s{sOWNF} sc1
L_st_done:
""")
    stamp()
    a(f"    buffer_load_dwordx2 v[{vPOLL}:{vPOLL+1}], v{vFA}, s[{sWS}:{sWS+3}], 0 offen sc1")
    for d in range(8):
        a(f"    v_lshlrev_b32 v{vXR+2*d}, 16, v{vP+d}")
        a(f"    v_and_b32 v{vXR+2*d+1}, 0xffff0000, v{vP+d}")
    bias_init()
    a(f"""
    s_add_u32 s{sL}, s{sL}, 1
    s_cmp_eq_u32 s{sL}, 1
    s_cbranch_scc1 L_keep_xa
    s_add_u32 s{sXA}, s{sXA}, s{sXD}
    s_add_u32 s{sXB}, s{sXB}, s{sXD}
    s_sub_u32 s{sXD}, 0, s{sXD}
L_keep_xa:
    s_add_u32 s{sXST}, s{sXST}, s{sXD2}
    s_sub_u32 s{sXD2}, 0, s{sXD2}
    s_add_u32 s{sWP}, s{sWP}, {c.wstride}
    s_sub_u32 s{sMP}, s{sMP}, s{sPD}
    v_add_u32 v{vAPK}, s{sPD}, v{vAPK}
    v_add_u32 v{vAPS}, s{sPD}, v{vAPS}
    s_sub_u32 s{sPD}, 0, s{sPD}
    s_mov_b32 s{sSPIN}, 0
L_poll:
    s_waitcnt vmcnt(0)
    v_cmp_eq_u64 vcc, s[{sTA}:{sTA+1}], v[{vPOLL}:{vPOLL+1}]
    v_cmp_eq_u64 s[{sMK}:{sMK+1}], s[{sTB}:{sTB+1}], v[{vPOLL}:{vPOLL+1}]
    s_or_b64 vcc, vcc, s[{sMK}:{sMK+1}]
    s_cmp_eq_u64 vcc, -1
    s_cbranch_scc1 L_ready
    buffer_load_dwordx2 v[{vPOLL}:{vPOLL+1}], v{vFA}, s[{sWS}:{sWS+3}], 0 offen sc1
    s_add_u32 s{sSPIN}, s{sSPIN}, 1
    s_cmp_gt_u32 s{sSPIN}, {c.spin_max}
    s_cbranch_scc0 L_poll
    s_endpgm
L_ready:
    s_add_u32 s{sTA}, s{sTA}, 1
    s_addc_u32 s{sTA+1}, s{sTA+1}, 0
    s_add_u32 s{sTB}, s{sTB}, 1
    s_addc_u32 s{sTB+1}, s{sTB+1}, 0
    s_branch L_layer
L_final:
    s_nop 1
    v_permlane32_swap_b32 v{vP}, v{vP+2}
    v_permlane32_swap_b32 v{vP+1}, v{vP+3}
    v_permlane32_swap_b32 v{vP+4}, v{vP+6}
    v_permlane32_swap_b32 v{vP+5}, v{vP+7}
    buffer_store_dwordx4 v[{vP}:{vP+3}], v{vOUT}, s[{sOUT}:{sOUT+3}], 0 offen
    buffer_store_dwordx4 v[{vP+4}:{vP+7}], v{vOUT}, s[{sOUT}:{sOUT+3}], 0 offen offset:32
    s_or_b32 s{sT0}, s{sJ}, s{sWV}
    s_cmp_eq_u32 s{sT0}, 0
    s_cbranch_scc0 L_noepoch
    s_add_u32 s{sT0}, s{sE}, 16
    s_addc_u32 s{sT1}, s{sE+1}, 0
    v_mov_b32 v{vFV}, s{sT0}
    v_mov_b32 v{vFV+1}, s{sT1}
    s_mov_b64 exec, 1
    buffer_store_dwordx2 v[{vFV}:{vFV+1}], off, s[{sWS}:{sWS+3}], s{sCB} sc1
    s_mov_b64 exec, -1
L_noepoch:
""")
    stamp(1); dump_ts()
    a("    s_endpgm")
    vS0, vS1 = vXO, vXO + 1
    a(f"""
L_loader:
    s_sub_u32 s{sU}, s{sWV}, 4
    s_cmp_eq_u32 s{sU}, 0
    s_cbranch_scc0 L_nobias
    v_lshrrev_b32 v{vT0}, 5, v{vL}
    v_mul_u32_u24 v{vT0}, {ROWB}, v{vT0}
    v_and_b32 v{vT1}, 31, v{vL}
    v_lshlrev_b32 v{vT1}, 2, v{vT1}
    v_add_u32 v{vT0}, v{vT0}, v{vT1}
    s_lshl_b32 s{sT0}, s{sJ}, 7
    v_add_u32 v{vT0}, s{sT0}, v{vT0}
""")
    for t in range(3):
        a(f"    s_mov_b32 m0, {BIAS + 256*t}")
        a(f"    s_mov_b32 s{sT0}, {2*t*ROWB}")
        a(f"    buffer_load_dword v{vT0}, s[{sBS}:{sBS+3}], s{sT0} offen lds")
    a(f"""
L_nobias:
    v_lshrrev_b32 v{vT0}, 3, v{vL}            ; row8
    v_and_b32 v{vT1}, 7, v{vL}
    v_lshrrev_b32 v{vT2}, 1, v{vT0}
    v_xor_b32 v{vT1}, v{vT1}, v{vT2}          ; c' ^ (row8>>1)
    v_xor_b32 v{vT2}, 4, v{vT1}
    v_mul_u32_u24 v{vT0}, {ROWB}, v{vT0}
    v_lshl_add_u32 v{vS0}, v{vT1}, 4, v{vT0}
    v_lshl_add_u32 v{vS1}, v{vT2}, 4, v{vT0}
    s_lshl_b32 s{sT0}, s{sRB}, 6
    s_lshl_b32 s{sT1}, s{sMH}, 5
    s_add_u32 s{sT0}, s{sT0}, s{sT1}
    s_mul_i32 s{sG}, s{sT0}, {ROWB}
    s_mul_i32 s{sT1}, s{sKH}, {6*128}
    s_add_u32 s{sG}, s{sG}, s{sT1}
    s_mul_i32 s{sM}, s{sU}, 28672
    s_add_u32 s{sM}, s{sM}, {XS}
    s_cmp_ge_u32 s{sJ}, 7
    s_cselect_b32 s{sT3}, 7, 0
    s_sub_u32 s{sT3}, s{sJ}, s{sT3}
    s_mov_b32 s{sI}, 0
L_xs:
    s_lshl_b32 s{sT0}, s{sT3}, 12
    s_add_u32 s{sT0}, s{sT0}, s{sM}
    s_lshl_b32 s{sT1}, s{sT3}, 7
    s_add_u32 s{sT1}, s{sT1}, s{sG}
""")
    for rg in range(4):
        a(f"    s_add_u32 m0, s{sT0}, {rg*1024}")
        a(f"    s_add_u32 s{sT2}, s{sT1}, {rg*8*ROWB}")
        a(f"    buffer_load_dwordx4 v{vS0 if rg % 2 == 0 else vS1}, s[{sX0}:{sX0+3}], s{sT2} offen lds")
    a(f"""
    s_add_u32 s{sT3}, s{sT3}, 1
    s_cmp_eq_u32 s{sT3}, 7
    s_cselect_b32 s{sT3}, 0, s{sT3}
    s_add_u32 s{sI}, s{sI}, 1
    s_cmp_lt_u32 s{sI}, 7
    s_cbranch_scc1 L_xs
    s_mul_i32 s{sT0}, s{sKH}, 416
    s_lshl_b32 s{sT1}, s{sMH}, 2
    s_add_u32 s{sT1}, s{sT1}, s{sT0}
    s_mul_i32 s{sT1}, s{sT1}, {ROWB}
    v_add_u32 v{vDMA0}, s{sT1}, v{vDMA0}
    s_lshl_b32 s{sT1}, s{sMH}, 3
    s_add_u32 s{sT1}, s{sT1}, s{sT0}
    s_mul_i32 s{sT1}, s{sT1}, {ROWB}
    v_add_u32 v{vDMA}, s{sT1}, v{vDMA}
    s_mul_i32 s{sT2}, s{sKH}, {KHS}
    s_lshl_b32 s{sT1}, s{sMH}, 10
    s_add_u32 s{sT2}, s{sT2}, s{sT1}
    s_add_u32 s{sMP}, s{sT2}, {SUF}
    s_waitcnt vmcnt(0)
""")
    stamp()
    a(f"""
    s_barrier                                 ; B_x
    s_barrier                                 ; B_y
""")
    def suffix(vreg, lay, thr=True):
        a(f"    s_mul_i32 s{sG}, s{sROT}, 26624")
        a(f"    s_add_u32 s{sG}, s{sG}, {lay}")
        a(f"    s_sub_u32 s{sM}, 13, s{sROT}")
        a(f"    s_mul_i32 s{sM}, s{sM}, 26624")
        a(f"    s_add_u32 s{sM}, s{sM}, {lay}")
        for i in range(P, 26):
            a(f"    s_add_u32 m0, s{sMP}, {(i-P)*2048}")
            a(f"    s_add_u32 s{sI}, s{sG if i < 13 else sM}, {(i % 13) * 26624}")
            a(f"    buffer_load_dwordx4 v{vreg}, s[{sW}:{sW+3}], s{sI} offen lds")
            if c.lthr and thr:
                a(f"    s_waitcnt vmcnt({c.lthr - 1})")
    suffix(vDMA0, "0", False)
    n = 26 - P
    a(f"    s_waitcnt vmcnt({n - (13 - P)})")
    stamp()
    a("    s_barrier                                 ; chunk [P,13)")
    a(f"    s_waitcnt vmcnt({26 - 20})")
    a("    s_barrier                                 ; chunk [13,20)")
    a("    s_waitcnt vmcnt(0)")
    stamp()
    a("    s_barrier                                 ; chunk [20,26)")
    a(f"""
    s_barrier
    s_mov_b32 s{sL}, 1
    s_mov_b32 s{sT3}, {c.wstride}
L_ld_layer:
""")
    if not c.no_suf: suffix(vDMA, f"s{sT3}")
    stamp()
    a(f"""
    s_barrier                                 ; B_a
    s_waitcnt vmcnt(0)
""")
    stamp()
    a(f"""
    s_barrier
    s_barrier                                 ; B2
    s_add_u32 s{sL}, s{sL}, 1
    s_add_u32 s{sT3}, s{sT3}, {c.wstride}
    s_cmp_lt_u32 s{sL}, 6
    s_cbranch_scc1 L_ld_layer
""")
    dump_ts()
    if c.helpers:
        a("    s_endpgm")
        HP = P if c.hp is None else c.hp
        nrow = (13 - HP) * 16
        nline = nrow * 13
        tot = 4 * nline
        nins = (tot + 63) // 64
        cdelta = HP * 16 * ROWB
        a(f"""
L_helper:
    s_sub_u32 s{sT0}, s2, 208
    s_and_b32 s{sT1}, s{sT0}, 7
    s_lshr_b32 s{sT0}, s{sT0}, 3
    s_lshl_b32 s{sT0}, s{sT0}, 3
    s_add_u32 s{sT0}, s{sT0}, s{sWV}          ; g = 0..47
    s_mul_i32 s{sT2}, s{sT1}, {nins // 8}
""")
        NK = -(-nins // 48)
        for k in range(NK):
            a(f"""
    s_add_u32 s{sT3}, s{sT0}, {48*k}
    s_add_u32 s{sI}, s{sT3}, s{sT2}
    s_cmp_ge_u32 s{sI}, {nins}
    s_cselect_b32 s{sG}, {nins}, 0
    s_sub_u32 s{sI}, s{sI}, s{sG}
    s_cmp_ge_u32 s{sT3}, {nins}
    s_cselect_b32 s{sI}, {nins + 8}, s{sI}
    s_lshl_b32 s{sI}, s{sI}, 6
    v_add_u32 v{vT0}, s{sI}, v{vL}
    v_mov_b32 v{vT1}, {cdelta}
    v_cmp_le_u32 vcc, {nline}, v{vT0}
    v_mov_b32 v{vT2}, 0
    v_mov_b32 v{vT3}, {cdelta}
    v_cndmask_b32 v{vT2}, v{vT2}, v{vT3}, vcc
    v_add_u32 v{vT1}, v{vT1}, v{vT2}
    v_cmp_le_u32 vcc, {2*nline}, v{vT0}
    v_mov_b32 v{vT2}, 0
    s_nop 0
    v_cndmask_b32 v{vT2}, v{vT2}, v{vT3}, vcc
    v_add_u32 v{vT1}, v{vT1}, v{vT2}
    v_cmp_le_u32 vcc, {3*nline}, v{vT0}
    v_mov_b32 v{vT2}, 0
    s_nop 0
    v_cndmask_b32 v{vT2}, v{vT2}, v{vT3}, vcc
    v_add_u32 v{vT1}, v{vT1}, v{vT2}
    v_lshl_add_u32 v{10+k}, v{vT0}, 7, v{vT1}
    v_cmp_le_u32 vcc, {tot}, v{vT0}
    v_mov_b32 v{vT2}, 0x7ffffff0
    s_nop 0
    v_cndmask_b32 v{10+k}, v{10+k}, v{vT2}, vcc
""")
        a(f"""
    s_mul_i32 s{sG}, s{sT1}, {2*XRB}
    s_lshl_b32 s{sI}, s{sT0}, 13
    s_add_u32 s{sG}, s{sG}, s{sI}
    v_lshlrev_b32 v19, 7, v{vL}
    v_add_u32 v19, s{sG}, v19
    s_cmp_lt_u32 s{sT0}, {-(-2*XRB // 8192)}
    s_cselect_b32 s{sM}, 1, 0
    s_mov_b32 s{sT3}, 0
""")
        r = 30
        def xtouch(buf, lab):
            nonlocal r
            a(f"    s_cmp_eq_u32 s{sM}, 1")
            a(f"    s_cbranch_scc0 {lab}")
            a(f"    s_mov_b32 s{sI}, {buf * XBUF}")
            a(f"    buffer_load_dword v{r}, v19, s[{sWS}:{sWS+3}], s{sI} offen sc1")
            a(f"{lab}:")
            r += 1
        if c.hx_first:
            xtouch(1, "L_hx1")
        for l in range(6):
            a(f"    s_mov_b32 s{sI}, {l * c.wstride}")
            for k in range(NK):
                a(f"    buffer_load_dword v{r}, v{10+k}, s[{sW}:{sW+3}], s{sI} offen"); r += 1
            if l == 0:
                if not c.hx_first: xtouch(1, "L_hx1")
                xtouch(0, "L_hx0")
            a(f"    s_waitcnt vmcnt({NK})")
            stamp(1)
        a("    s_waitcnt vmcnt(0)")
        stamp(1)
        dump_ts()
    a("L_end:")
    a("    s_endpgm")
    kernel_desc(a, KNAME, NV, sgpr=102, accum=NV)
    txt = a.text().rstrip()
    if txt.endswith(".text"):
        txt = txt[:-5]
    return txt

if __name__ == "__main__":
    import json
    kw = json.loads(sys.argv[2]) if len(sys.argv) > 2 else {}
    open(sys.argv[1], "w").write(gen(**kw))
```

```python
import sys, os
from asmlib import *

KNAME = "standalone__dcn_v2_cross__recsys_kernel"
B_, DIN, L_ = 1024, 832, 6
ROWB = DIN * 2
WLAYER = DIN * DIN * 2
XLAYER = B_ * DIN * 2
XMH = 32 * ROWB
XRB = 2 * XMH
XBUF = 16 * XRB
CTRL = 2 * XBUF
TSOFF = CTRL + 16 * 4096
WS_BYTES = TSOFF + 256 * 8 * 256

class Cfg:
    def __init__(self, **kw):
        self.P = 6
        self.D = 5
        self.PF = 2
        self.SV = 3
        self.sp = True
        self.hp = None
        self.helpers = True
        self.hpace = True
        self.hdepth = 1
        self.lthr = 0
        self.ts = 0
        self.force_slow = False
        self.scramble = False
        self.spin_max = 1 << 20
        self.wstride = WLAYER
        self.prio = 2
        self.poll2 = True
        self.n1 = 4
        self.n2 = 4
        self.onepoll = True
        self.no_suf = self.no_pre = self.no_x = self.no_w = False
        self.__dict__.update(kw)

def gen(cfg=None, **kw):
    c = cfg or Cfg(**kw)
    P, D, PF = c.P, c.D, c.PF
    TS = int(c.ts)
    assert P <= 12 and PF <= P and D >= PF + 1
    KHS = (26 - P) * 2048
    PRE0 = 0
    SUF = 2 * P * 2048
    PRE1 = SUF + 2 * KHS
    PREPAR = PRE1 - PRE0
    RED = PRE1 + 2 * P * 2048
    BIAS = RED + 16384
    LDS_BYTES = BIAS + 768
    XS = SUF
    assert XS + 4 * 28672 <= BIAS and LDS_BYTES <= 163840
    sW, sWS, sX0, sOUT, sBS = 4, 8, 12, 16, 24
    sRB, sJ, sG2, sWV, sMH, sKH, sL, sXCC, sMODE = 28, 29, 30, 31, 32, 33, 34, 35, 36
    sXA, sXB, sXST = 37, 38, 39
    sWP, sMP, sPD = 52, 53, 54
    sU, sOWNF, sXD2 = 55, 56, 57
    sT0, sT1, sT2, sT3 = 58, 59, 60, 61
    sSPIN, sROT = 62, 63
    sG, sM, sI = 64, 65, 66
    sTSI, sTM = 67, 68
    sXD, sCB = 70, 71
    sE, sTA, sTB, sMK = 72, 74, 76, 78
    vL = 0
    vT0, vT1, vT2, vT3 = 1, 2, 3, 4
    vDUM = 5
    vXO = 6
    vAPK, vAPS, vASK, vASS = 10, 11, 12, 13
    vDMA, vFA = 14, 15
    vPOLL = 16
    vRW, vRR, vBA, vTS = 20, 21, 22, 23
    vP = 24
    vAK, vAS, vPART, vX0F, vXR = 32, 48, 64, 80, 96
    vWF = 112
    vXF = 136
    vBP = 240
    vOUT, vHA, vFV, vDMA0 = 248, 249, 250, 252
    vPOL2 = 254
    NV = 256
    nsets = PF + 1
    assert nsets * 8 <= 24

    a = Asm()
    a(f"; @launch grid=({256 if c.helpers else 208},1,1) block=(512,1,1) lds={LDS_BYTES}")
    a('.amdgcn_target "amdgcn-amd-amdhsa--gfx950"')
    a(".text")
    kernel_begin(a, KNAME)
    if TS == 5:
        a("    s_memrealtime s[90:91]")
        a("    s_memtime s[92:93]")

    def stamp(level=2):
        if not TS or TS < level or (TS == 4 and level > 1) or TS == 5: return
        a(f"    s_memtime s[{sTM}:{sTM+1}]")
        a(f"    s_waitcnt lgkmcnt(0)")
        a(f"    s_mov_b32 m0, s{sTSI}")
        a(f"    s_nop 0")
        a(f"    v_writelane_b32 v{vTS}, s{sTM}, m0")
        a(f"    s_add_u32 s{sTSI}, s{sTSI}, 1")
    def dump_ts():
        if not TS: return
        if TS == 5:
            a("    s_memrealtime s[94:95]")
            a("    s_memtime s[96:97]")
            a("    s_waitcnt lgkmcnt(0)")
            a(f"    v_writelane_b32 v{vTS}, s90, 0")
            a(f"    v_writelane_b32 v{vTS}, s94, 1")
            a(f"    v_writelane_b32 v{vTS}, s92, 2")
            a(f"    v_writelane_b32 v{vTS}, s96, 3")
        a(f"""
    s_lshl_b32 s{sT0}, s2, 3
    s_add_u32 s{sT0}, s{sT0}, s{sWV}
    s_lshl_b32 s{sT0}, s{sT0}, 8
    s_add_u32 s{sT0}, s{sT0}, {TSOFF}
    v_lshlrev_b32 v{vT0}, 2, v{vL}
    buffer_store_dword v{vTS}, v{vT0}, s[{sWS}:{sWS+3}], s{sT0} offen
""")
    def srd(dst, src, nbytes):
        a(f"    s_mov_b32 s{dst}, s{src}")
        a(f"    s_and_b32 s{dst+1}, s{src+1}, 0xffff")
        a(f"    s_mov_b32 s{dst+2}, {nbytes}")
        a(f"    s_mov_b32 s{dst+3}, 0x20000")

    a(f"""
    s_cmp_ge_u32 s2, {256 if c.helpers else 208}
    s_cbranch_scc1 L_end
    s_load_dwordx4 s[40:43], s[0:1], 0
    s_load_dwordx4 s[44:47], s[0:1], 16
    s_load_dwordx2 s[50:51], s[0:1], 40
    s_getreg_b32 s{sXCC}, hwreg(HW_REG_XCC_ID, 0, 4)
""")
    if c.scramble:
        a(f"""
    s_mul_hi_u32 s{sRB}, s2, 0x13B13B14
    s_mul_i32 s{sT0}, s{sRB}, 13
    s_sub_u32 s{sJ}, s2, s{sT0}
    s_and_b32 s{sG2}, s{sRB}, 1
    s_mul_i32 s{sROT}, s{sG2}, 13""")
    else:
        a(f"""
    s_and_b32 s{sT0}, s2, 7
    s_lshr_b32 s{sT1}, s2, 3
    s_cmp_ge_u32 s{sT1}, 13
    s_cselect_b32 s{sG2}, 1, 0
    s_mul_i32 s{sROT}, s{sG2}, 13
    s_sub_u32 s{sJ}, s{sT1}, s{sROT}
    s_lshl_b32 s{sRB}, s{sT0}, 1
    s_add_u32 s{sRB}, s{sRB}, s{sG2}""")
    a(f"""
    v_lshrrev_b32 v{vT0}, 6, v0
    v_and_b32 v{vL}, 63, v0
    v_readfirstlane_b32 s{sWV}, v{vT0}
    s_mov_b32 s{sTSI}, 0
    v_mov_b32 v{vTS}, 0
    s_lshl_b32 s{sCB}, s{sRB}, 12
    s_add_u32 s{sCB}, s{sCB}, {CTRL}
    s_and_b32 s{sMH}, s{sWV}, 1
    s_bfe_u32 s{sKH}, s{sWV}, 0x10001
    v_lshrrev_b32 v{vT0}, 3, v{vL}            ; row8
    v_and_b32 v{vT1}, 7, v{vL}
    v_bfe_u32 v{vT2}, v{vL}, 4, 1
    v_lshlrev_b32 v{vT2}, 2, v{vT2}
    v_xor_b32 v{vT1}, v{vT1}, v{vT2}
    v_lshlrev_b32 v{vT1}, 4, v{vT1}
    s_lshl_b32 s{sT0}, s{sJ}, 7
    v_add_u32 v{vT1}, s{sT0}, v{vT1}
    v_mul_u32_u24 v{vT2}, {ROWB}, v{vT0}
    v_add_u32 v{vDMA}, v{vT2}, v{vT1}
    v_and_b32 v{vT2}, 3, v{vT0}
    v_lshrrev_b32 v{vT0}, 2, v{vT0}
    v_lshl_add_u32 v{vT0}, v{vT0}, 3, v{vT2}
    v_mul_u32_u24 v{vT0}, {ROWB}, v{vT0}
    v_add_u32 v{vDMA0}, v{vT0}, v{vT1}
    s_waitcnt lgkmcnt(0)
""")
    srd(sX0, 40, XLAYER)
    srd(sW, 42, L_ * WLAYER)
    srd(sWS, 50, WS_BYTES)
    stamp(1)
    if c.helpers:
        a(f"""
    s_cmp_ge_u32 s2, 208
    s_cbranch_scc1 L_helper
""")
    a(f"""
    s_cmp_lt_u32 s{sWV}, 4
    s_cbranch_scc1 L_compute
""")
    vS0, vS1 = vXO, vXO + 1
    sSB = 40
    srows = [(i, r) for i in range(c.SV, P) for r in range(8)]
    per = -(-len(srows) // 4) if srows else 0
    assert 2 * per <= 14
    def sbatch(k, nextlayer=False):
        if not c.sp: return
        for n_, (i, r) in enumerate(srows[k*per:(k+1)*per]):
            off = (i * 16 + r) * ROWB + 60
            b = sSB + 2 if nextlayer else sSB
            a(f"    s_load_dwordx2 s[{76+2*n_}:{77+2*n_}], s[{b}:{b+1}], {off}")
    a(f"""
    s_sub_u32 s{sU}, s{sWV}, 4
    s_cmp_eq_u32 s{sU}, 0
    s_cbranch_scc0 L_notouch
    s_lshl_b32 s{sT0}, s{sRB}, 6
    s_mul_i32 s{sT0}, s{sT0}, {ROWB}
    s_lshl_b32 s{sT1}, s{sJ}, 7
    s_add_u32 s{sT0}, s{sT0}, s{sT1}
    v_mul_u32_u24 v{vT0}, {ROWB}, v{vL}
    buffer_load_dword v{vDUM}, v{vT0}, s[{sX0}:{sX0+3}], s{sT0} offen
L_notouch:
    s_cmp_eq_u32 s{sU}, 0
    s_cbranch_scc0 L_nobias
""")
    srd(sBS, 44, L_ * ROWB)
    a(f"""
    v_lshrrev_b32 v{vT0}, 5, v{vL}
    v_mul_u32_u24 v{vT0}, {ROWB}, v{vT0}
    v_and_b32 v{vT1}, 31, v{vL}
    v_lshlrev_b32 v{vT1}, 2, v{vT1}
    v_add_u32 v{vT0}, v{vT0}, v{vT1}
    s_lshl_b32 s{sT0}, s{sJ}, 7
    v_add_u32 v{vT0}, s{sT0}, v{vT0}
""")
    for t in range(3):
        a(f"    s_mov_b32 m0, {BIAS + 256*t}")
        a(f"    s_mov_b32 s{sT0}, {2*t*ROWB}")
        a(f"    buffer_load_dword v{vT0}, s[{sBS}:{sBS+3}], s{sT0} offen lds")
    a(f"""
L_nobias:
    s_mul_i32 s{sT0}, s{sKH}, 416
    s_lshl_b32 s{sT1}, s{sMH}, 2
    s_add_u32 s{sT1}, s{sT1}, s{sT0}
    s_mul_i32 s{sT1}, s{sT1}, {ROWB}
    v_add_u32 v{vDMA0}, s{sT1}, v{vDMA0}
    s_lshl_b32 s{sT1}, s{sMH}, 3
    s_add_u32 s{sT1}, s{sT1}, s{sT0}
    s_mul_i32 s{sT1}, s{sT1}, {ROWB}
    v_add_u32 v{vDMA}, s{sT1}, v{vDMA}
    s_mul_i32 s{sG}, s{sROT}, 26624
    s_mul_i32 s{sM}, s{sKH}, {P*2048}
    s_lshl_b32 s{sT1}, s{sMH}, 10
    s_add_u32 s{sM}, s{sM}, s{sT1}
""")
    for i in range(P):
        a(f"    s_add_u32 m0, s{sM}, {PRE0 + i*2048}")
        a(f"    s_add_u32 s{sT0}, s{sG}, {i*26624}")
        a(f"    buffer_load_dwordx4 v{vDMA0}, s[{sW}:{sW+3}], s{sT0} offen lds")
    a(f"""
    v_lshrrev_b32 v{vT0}, 3, v{vL}            ; row8
    v_and_b32 v{vT1}, 7, v{vL}
    v_lshrrev_b32 v{vT2}, 1, v{vT0}
    v_xor_b32 v{vT1}, v{vT1}, v{vT2}          ; c' ^ (row8>>1)
    v_xor_b32 v{vT2}, 4, v{vT1}
    v_mul_u32_u24 v{vT0}, {ROWB}, v{vT0}
    v_lshl_add_u32 v{vS0}, v{vT1}, 4, v{vT0}
    v_lshl_add_u32 v{vS1}, v{vT2}, 4, v{vT0}
    s_lshl_b32 s{sT0}, s{sRB}, 6
    s_lshl_b32 s{sT1}, s{sMH}, 5
    s_add_u32 s{sT0}, s{sT0}, s{sT1}
    s_mul_i32 s{sG}, s{sT0}, {ROWB}
    s_mul_i32 s{sT1}, s{sKH}, {6*128}
    s_add_u32 s{sG}, s{sG}, s{sT1}
    s_mul_i32 s{sM}, s{sU}, 28672
    s_add_u32 s{sM}, s{sM}, {XS}
    s_cmp_ge_u32 s{sJ}, 7
    s_cselect_b32 s{sT3}, 7, 0
    s_sub_u32 s{sT3}, s{sJ}, s{sT3}
    s_mov_b32 s{sI}, 0
L_xs:
    s_lshl_b32 s{sT0}, s{sT3}, 12
    s_add_u32 s{sT0}, s{sT0}, s{sM}
    s_lshl_b32 s{sT1}, s{sT3}, 7
    s_add_u32 s{sT1}, s{sT1}, s{sG}
""")
    for rg in range(4):
        a(f"    s_add_u32 m0, s{sT0}, {rg*1024}")
        a(f"    s_add_u32 s{sT2}, s{sT1}, {rg*8*ROWB}")
        a(f"    buffer_load_dwordx4 v{vS0 if rg % 2 == 0 else vS1}, s[{sX0}:{sX0+3}], s{sT2} offen lds")
    a(f"""
    s_add_u32 s{sT3}, s{sT3}, 1
    s_cmp_eq_u32 s{sT3}, 7
    s_cselect_b32 s{sT3}, 0, s{sT3}
    s_add_u32 s{sI}, s{sI}, 1
    s_cmp_lt_u32 s{sI}, 7
    s_cbranch_scc1 L_xs
    s_mul_i32 s{sT2}, s{sKH}, {KHS}
    s_lshl_b32 s{sT1}, s{sMH}, 10
    s_add_u32 s{sT2}, s{sT2}, s{sT1}
    s_add_u32 s{sMP}, s{sT2}, {SUF}
    s_mul_i32 s{sT0}, s{sKH}, 416
    s_lshl_b32 s{sT1}, s{sROT}, 4
    s_add_u32 s{sT0}, s{sT0}, s{sT1}
    s_lshl_b32 s{sT1}, s{sMH}, 3
    s_add_u32 s{sT0}, s{sT0}, s{sT1}
    s_mul_i32 s{sT0}, s{sT0}, {ROWB}
    s_lshl_b32 s{sT1}, s{sJ}, 7
    s_add_u32 s{sT0}, s{sT0}, s{sT1}
    s_add_u32 s{sT0}, s{sT0}, {c.wstride}
    s_add_u32 s40, s42, s{sT0}
    s_addc_u32 s41, s43, 0
    s_add_u32 s42, s40, {c.wstride}
    s_addc_u32 s43, s41, 0
""")
    sbatch(0)
    a("    s_waitcnt vmcnt(0)")
    stamp()
    a(f"""
    s_barrier                                 ; B_x
    s_barrier                                 ; B_y
""")
    def suffix(vreg, lay, thr=True, phased=False):
        a(f"    s_mul_i32 s{sG}, s{sROT}, 26624")
        a(f"    s_add_u32 s{sG}, s{sG}, {lay}")
        a(f"    s_sub_u32 s{sM}, 13, s{sROT}")
        a(f"    s_mul_i32 s{sM}, s{sM}, 26624")
        a(f"    s_add_u32 s{sM}, s{sM}, {lay}")
        for n_, i in enumerate(range(P, 26)):
            if phased and n_ == c.n1: a("    s_barrier")
            if phased and n_ == c.n1 + c.n2: a("    s_barrier")
            a(f"    s_add_u32 m0, s{sMP}, {(i-P)*2048}")
            a(f"    s_add_u32 s{sI}, s{sG if i < 13 else sM}, {(i % 13) * 26624}")
            a(f"    buffer_load_dwordx4 v{vreg}, s[{sW}:{sW+3}], s{sI} offen lds")
            if c.lthr and thr and n_ >= c.n1 + c.n2:
                a(f"    s_waitcnt vmcnt({c.lthr - 1})")
    def advance_sb():
        a(f"""    s_add_u32 s40, s40, {c.wstride}
    s_addc_u32 s41, s41, 0
    s_add_u32 s42, s42, {c.wstride}
    s_addc_u32 s43, s43, 0""")
    suffix(vDMA0, "0", False)
    n = 26 - P
    if c.sp: a("    s_waitcnt lgkmcnt(0)")
    sbatch(1)
    a(f"    s_waitcnt vmcnt({n - (13 - P)})")
    stamp()
    a("    s_barrier                                 ; chunk [P,13)")
    a(f"    s_waitcnt vmcnt({26 - 20})")
    a("    s_barrier                                 ; chunk [13,20)")
    a("    s_waitcnt vmcnt(0)")
    stamp()
    a("    s_barrier                                 ; chunk [20,26)")
    if c.sp:
        a("    s_waitcnt lgkmcnt(0)"); sbatch(2)
        a("    s_waitcnt lgkmcnt(0)"); sbatch(3)
        a("    s_waitcnt lgkmcnt(0)"); sbatch(0, True)
    advance_sb()
    a(f"""
    s_barrier
    s_mov_b32 s{sL}, 1
    s_mov_b32 s{sT3}, {c.wstride}
L_ld_layer:
    s_cmp_lt_u32 s{sL}, 5
    s_cselect_b32 s{sU}, 1, 0
""")
    def guarded(fn, lab):
        if not c.sp: return
        a(f"    s_cmp_eq_u32 s{sU}, 1")
        a(f"    s_cbranch_scc0 {lab}")
        fn()
        a(f"{lab}:")
    guarded(lambda: sbatch(1), "L_sA")
    if not c.no_suf: suffix(vDMA, f"s{sT3}", True, c.n1 > 0)
    elif c.n1 > 0:
        a("    s_barrier"); a("    s_barrier")
    stamp()
    guarded(lambda: (a("    s_waitcnt lgkmcnt(0)"), sbatch(2)), "L_sB")
    a(f"""
    s_barrier                                 ; B_a
    s_waitcnt vmcnt(0)
""")
    stamp()
    a("    s_barrier")
    guarded(lambda: (a("    s_waitcnt lgkmcnt(0)"), sbatch(3)), "L_sC")
    a(f"    s_cmp_lt_u32 s{sL}, 4")
    a(f"    s_cselect_b32 s{sU}, 1, 0")
    guarded(lambda: (a("    s_waitcnt lgkmcnt(0)"), sbatch(0, True)), "L_sD")
    advance_sb()
    a(f"""
    s_barrier                                 ; B2
    s_add_u32 s{sL}, s{sL}, 1
    s_add_u32 s{sT3}, s{sT3}, {c.wstride}
    s_cmp_lt_u32 s{sL}, 6
    s_cbranch_scc1 L_ld_layer
""")
    dump_ts()
    a("    s_endpgm")

    def bias_read():
        for q in range(4):
            a(f"    ds_read_b64 v[{vBP+2*q}:{vBP+2*q+1}], v{vBA} offset:{16*q}")
        a(f"    v_add_u32 v{vBA}, 128, v{vBA}")
    def bias_unpack(lo=0, hi=8):
        for d in range(lo, hi):
            a(f"    v_lshlrev_b32 v{vAK+2*d}, 16, v{vBP+d}")
            a(f"    v_and_b32 v{vAK+2*d+1}, 0xffff0000, v{vBP+d}")
    a(f"""
L_compute:
    s_load_dwordx2 s[{sE}:{sE+1}], s[50:51], s{sCB}
    s_setprio {c.prio}
    v_min_u32 v{vT0}, 51, v{vL}
    v_lshlrev_b32 v{vT0}, 3, v{vT0}
    s_add_u32 s{sT0}, s{sCB}, 2048
    v_add_u32 v{vFA}, s{sT0}, v{vT0}
    s_cmp_eq_u32 s{sWV}, 0
    s_cbranch_scc0 L_noft
    buffer_load_dword v{vDUM}, v{vFA}, s[{sWS}:{sWS+3}], 0 offen sc1
L_noft:
    s_lshl_b32 s{sT1}, s{sJ}, 2
    s_add_u32 s{sT1}, s{sT1}, s{sWV}
    s_lshl_b32 s{sT1}, s{sT1}, 3
    s_add_u32 s{sOWNF}, s{sT0}, s{sT1}
    v_min_u32 v{vT0}, 12, v{vL}
    v_lshlrev_b32 v{vT0}, 7, v{vT0}
    s_add_u32 s{sT0}, s{sCB}, 128
    v_add_u32 v{vHA}, s{sT0}, v{vT0}
""")
    srd(sOUT, 46, XLAYER)
    a(f"""
    s_lshl_b32 s{sT0}, s{sRB}, 6
    s_lshl_b32 s{sT1}, s{sMH}, 5
    s_add_u32 s{sT0}, s{sT0}, s{sT1}
    s_mul_i32 s{sT0}, s{sT0}, {ROWB}
    s_lshl_b32 s{sT1}, s{sJ}, 7
    s_add_u32 s{sT0}, s{sT0}, s{sT1}
    s_lshl_b32 s{sT1}, s{sKH}, 6
    s_add_u32 s{sT0}, s{sT0}, s{sT1}
    v_and_b32 v{vT0}, 31, v{vL}
    v_mul_u32_u24 v{vT0}, {ROWB}, v{vT0}
    v_lshrrev_b32 v{vT1}, 5, v{vL}
    v_lshl_add_u32 v{vT0}, v{vT1}, 4, v{vT0}
    v_add_u32 v{vOUT}, s{sT0}, v{vT0}
    v_lshlrev_b32 v{vXO}, 4, v{vL}
    v_add_u32 v{vXO+1}, 0x1000, v{vXO}
    v_add_u32 v{vXO+2}, 0x2000, v{vXO}
    v_add_u32 v{vXO+3}, 0x3000, v{vXO}
    s_mul_i32 s{sT0}, s{sRB}, {XRB}
    s_mul_i32 s{sT1}, s{sMH}, {XMH}
    s_add_u32 s{sT0}, s{sT0}, s{sT1}
    s_add_u32 s{sT0}, s{sT0}, {XBUF}
    s_lshl_b32 s{sT1}, s{sJ}, 2
    s_lshl_b32 s{sT2}, s{sKH}, 1
    s_add_u32 s{sT1}, s{sT1}, s{sT2}
    s_lshl_b32 s{sT1}, s{sT1}, 10
    s_add_u32 s{sXST}, s{sT0}, s{sT1}
""")
    if not c.helpers:
        a(f"""
    v_and_b32 v{vT1}, 15, v{vL}
    v_lshlrev_b32 v{vT1}, 7, v{vT1}
    v_bfe_u32 v{vT2}, v{vL}, 4, 1
    v_mul_u32_u24 v{vT2}, {XBUF >> 8}, v{vT2}
    v_lshl_add_u32 v{vT1}, v{vT2}, 8, v{vT1}
    s_sub_u32 s{sT3}, s{sXST}, {XBUF}
    buffer_load_dword v{vDUM}, v{vT1}, s[{sWS}:{sWS+3}], s{sT3} offen sc1
""")
    a(f"""
    s_mul_i32 s{sT1}, s{sKH}, 26
    s_add_u32 s{sT2}, s{sT1}, s{sROT}
    s_lshl_b32 s{sT2}, s{sT2}, 10
    s_add_u32 s{sXA}, s{sT0}, s{sT2}
    s_add_u32 s{sT2}, s{sT1}, 13
    s_sub_u32 s{sT2}, s{sT2}, s{sROT}
    s_lshl_b32 s{sT2}, s{sT2}, 10
    s_add_u32 s{sXB}, s{sT0}, s{sT2}
    s_mov_b32 s{sXD}, {-XBUF & 0xffffffff}
    s_mov_b32 s{sXD2}, {-XBUF & 0xffffffff}
    s_mul_i32 s{sT0}, s{sKH}, 416
    s_lshl_b32 s{sT1}, s{sROT}, 4
    s_add_u32 s{sT0}, s{sT0}, s{sT1}
    s_lshl_b32 s{sT1}, s{sMH}, 3
    s_add_u32 s{sT0}, s{sT0}, s{sT1}
    s_mul_i32 s{sWP}, s{sT0}, {ROWB}
    s_add_u32 s{sWP}, s{sWP}, {c.wstride}
    s_mul_i32 s{sMP}, s{sKH}, {P*2048}
    s_lshl_b32 s{sT1}, s{sMH}, 10
    s_add_u32 s{sMP}, s{sMP}, s{sT1}
    s_add_u32 s{sMP}, s{sMP}, {PRE1}
    s_mov_b32 s{sPD}, {PREPAR}
    v_lshrrev_b32 v{vT0}, 5, v{vL}            ; h
    v_lshlrev_b32 v{vT0}, 2, v{vT0}
    v_bfe_u32 v{vT1}, v{vL}, 2, 2             ; r
    v_add_u32 v{vT0}, v{vT0}, v{vT1}
    v_lshlrev_b32 v{vT0}, 7, v{vT0}           ; row*128
    v_bfe_u32 v{vT1}, v{vL}, 4, 1             ; nb
    v_lshlrev_b32 v{vT1}, 1, v{vT1}
    v_bfe_u32 v{vT2}, v{vL}, 1, 1             ; c>>1
    v_add_u32 v{vT1}, v{vT1}, v{vT2}
    v_bfe_u32 v{vT2}, v{vL}, 3, 1             ; (r>>1)&1
    v_lshlrev_b32 v{vT2}, 2, v{vT2}
    v_xor_b32 v{vT1}, v{vT1}, v{vT2}
    v_lshlrev_b32 v{vT1}, 4, v{vT1}
    v_add_u32 v{vT0}, v{vT0}, v{vT1}
    v_and_b32 v{vT1}, 1, v{vL}
    v_lshlrev_b32 v{vT1}, 3, v{vT1}
    v_add_u32 v{vT0}, v{vT0}, v{vT1}
    s_lshl_b32 s{sT0}, s{sKH}, 6
    v_xor_b32 v{vT1}, s{sT0}, v{vT0}          ; keep
    v_xor_b32 v{vT2}, 64, v{vT1}              ; send
    s_mul_i32 s{sT0}, s{sKH}, {P*2048}
    v_add_u32 v{vAPK}, s{sT0}, v{vT1}
    v_add_u32 v{vAPS}, s{sT0}, v{vT2}
    s_mul_i32 s{sT0}, s{sKH}, {KHS}
    s_add_u32 s{sT0}, s{sT0}, {SUF}
    v_add_u32 v{vASK}, s{sT0}, v{vT1}
    v_add_u32 v{vASS}, s{sT0}, v{vT2}
    s_lshl_b32 s{sT0}, s{sWV}, 12
    s_add_u32 s{sT0}, s{sT0}, {RED}
    v_add_u32 v{vRW}, s{sT0}, v{vXO}
    s_xor_b32 s{sT1}, s{sWV}, 2
    s_lshl_b32 s{sT1}, s{sT1}, 12
    s_add_u32 s{sT1}, s{sT1}, {RED}
    v_add_u32 v{vRR}, s{sT1}, v{vXO}
    v_lshrrev_b32 v{vT0}, 5, v{vL}
    v_lshlrev_b32 v{vT3}, 3, v{vT0}           ; h*8
    s_lshl_b32 s{sT0}, s{sKH}, 6
    s_add_u32 s{sT0}, s{sT0}, {BIAS}
    v_add_u32 v{vBA}, s{sT0}, v{vT3}
    v_and_b32 v{vT0}, 31, v{vL}               ; m
    v_lshrrev_b32 v{vT1}, 3, v{vT0}
    v_lshlrev_b32 v{vT1}, 10, v{vT1}          ; rg*1024
    v_and_b32 v{vT2}, 7, v{vT0}
    v_lshl_add_u32 v{vT1}, v{vT2}, 7, v{vT1}  ; + row8*128
    v_bfe_u32 v{vT2}, v{vT0}, 1, 3            ; f(m)
    s_cmp_ge_u32 s{sJ}, 7
    s_cselect_b32 s{sT0}, 1, 0
    s_mul_i32 s{sT1}, s{sT0}, 6
    s_sub_u32 s{sT1}, s{sJ}, s{sT1}
    s_lshl_b32 s{sT1}, s{sT1}, 12
    s_lshl_b32 s{sT0}, s{sT0}, 1
    s_add_u32 s{sT0}, s{sT0}, s{sMH}
    s_mul_i32 s{sT0}, s{sT0}, 28672
    s_add_u32 s{sT0}, s{sT0}, s{sT1}
    s_add_u32 s{sT0}, s{sT0}, {XS}
    s_lshl_b32 s{sT1}, s{sKH}, 2
    v_add3_u32 v{vT3}, v{vT3}, v{vT1}, s{sT0}
    v_xor_b32 v{vT0}, s{sT1}, v{vT2}          ; (4*nh) ^ f(m)
""")
    for q in range(4):
        a(f"    v_xor_b32 v{vPART+8+q}, {q}, v{vT0}")
        a(f"    v_lshl_add_u32 v{vPART+8+q}, v{vPART+8+q}, 4, v{vT3}")
    a(f"""
    v_lshrrev_b32 v{vT0}, 5, v{vL}
    v_xor_b32 v{vT2}, v{vT2}, v{vT0}          ; f(m) ^ h
    s_mul_i32 s{sT3}, s{sWV}, 28672
    s_add_u32 s{sT3}, s{sT3}, {XS}
    s_mul_i32 s{sI}, s{sKH}, 26
    s_mul_i32 s{sM}, s{sKH}, 6
""")
    for seg in range(2):
        if seg == 0:
            a(f"    s_add_u32 s{sG}, s{sI}, s{sROT}")
        else:
            a(f"    s_add_u32 s{sG}, s{sI}, 13")
            a(f"    s_sub_u32 s{sG}, s{sG}, s{sROT}")
        for x in range(4):
            r = vPART + seg * 4 + x
            a(f"    s_add_u32 s{sT0}, s{sG}, {x}")
            a(f"    s_and_b32 s{sT1}, s{sT0}, 3")
            a(f"    s_lshl_b32 s{sT1}, s{sT1}, 1")
            a(f"    s_lshr_b32 s{sT0}, s{sT0}, 2")
            a(f"    s_sub_u32 s{sT0}, s{sT0}, s{sM}")
            a(f"    s_lshl_b32 s{sT0}, s{sT0}, 12")
            a(f"    s_add_u32 s{sT0}, s{sT0}, s{sT3}")
            a(f"    v_xor_b32 v{r}, s{sT1}, v{vT2}")
            a(f"    v_lshl_add_u32 v{r}, v{r}, 4, v{vT1}")
            a(f"    v_add_u32 v{r}, s{sT0}, v{r}")
    a(f"""
    s_waitcnt lgkmcnt(0)
    s_add_u32 s{sTA}, s{sE}, 1
    s_addc_u32 s{sTA+1}, s{sE+1}, 0
    s_add_u32 s{sTB}, s{sE}, 2
    s_addc_u32 s{sTB+1}, s{sE+1}, 0
    s_cmp_eq_u32 s{sWV}, 0
    s_cbranch_scc0 L_nohello
    s_add_u32 s{sT0}, s{sE}, 8
    s_addc_u32 s{sT1}, s{sE+1}, 0
    v_mov_b32 v{vPOLL}, s{sT0}
    v_mov_b32 v{vPOLL+1}, s{sT1}
    v_mov_b32 v{vPOLL+2}, s{sXCC}
    v_mov_b32 v{vPOLL+3}, 0
    s_lshl_b32 s{sT2}, s{sJ}, 7
    s_add_u32 s{sT2}, s{sT2}, s{sCB}
    s_add_u32 s{sT2}, s{sT2}, 128
    s_mov_b64 exec, 1
    buffer_store_dwordx4 v[{vPOLL}:{vPOLL+3}], off, s[{sWS}:{sWS+3}], s{sT2} sc1
    s_mov_b64 exec, -1
L_nohello:
""")
    stamp()
    a("    s_barrier")
    stamp()
    for q in range(4):
        a(f"    ds_read_b64 v[{vP+2*q}:{vP+2*q+1}], v{vPART+8+q}")
    bias_read()
    for i in range(26):
        seg, ii = (0, i) if i < 13 else (1, i - 13)
        a(f"    ds_read_b128 v[{vXF+4*i}:{vXF+4*i+3}], v{vPART + seg*4 + (ii & 3)} offset:{(ii >> 2) * 4096}")
        if i == 5:
            a("    s_waitcnt lgkmcnt(6)")
            for d in range(8):
                a(f"    v_lshlrev_b32 v{vX0F+2*d}, 16, v{vP+d}")
                a(f"    v_and_b32 v{vX0F+2*d+1}, 0xffff0000, v{vP+d}")
        if i == 13:
            a("    s_waitcnt lgkmcnt(6)")
            bias_unpack()
        if i == 21:
            a("    s_waitcnt lgkmcnt(6)")
            for r in range(16):
                a(f"    v_mov_b32 v{vXR+r}, v{vX0F+r}")
    a("    s_waitcnt lgkmcnt(0)")
    a("    s_barrier")
    a(f"    s_mov_b32 s{sL}, 0")
    stamp()

    def xload(i):
        if c.no_x:
            a("    s_nop 0"); return
        seg = sXA if i < 13 else sXB
        ii = i % 13
        a(f"    buffer_load_dwordx4 v[{vXF+4*i}:{vXF+4*i+3}], v{vXO+(ii>>2)}, s[{sWS}:{sWS+3}], s{seg} offen offset:{(ii&3)*1024} sc1")
    def rd(i, which):
        if c.no_w: return
        st = vWF + 8 * (i % nsets)
        if i < P: k, s_, off = vAPK, vAPS, i * 2048
        else: k, s_, off = vASK, vASS, (i - P) * 2048
        if which == "s":
            a(f"    ds_read_b64_tr_b16 v[{st}:{st+1}], v{s_} offset:{off}")
            a(f"    ds_read_b64_tr_b16 v[{st+2}:{st+3}], v{s_} offset:{off+1024}")
        else:
            a(f"    ds_read_b64_tr_b16 v[{st+4}:{st+5}], v{k} offset:{off}")
            a(f"    ds_read_b64_tr_b16 v[{st+6}:{st+7}], v{k} offset:{off+1024}")
    def pref_sched(i):
        k = i - (26 - D)
        per_ = -(-P // D)
        return [t for t in range(k * per_, min(P, (k + 1) * per_))]
    def kloop(first):
        ops = []
        if first:
            for i in range(PF):
                rd(i, "s"); rd(i, "k")
        else:
            xload(0); ops.append(("x", 0))
            rd(0, "s"); rd(0, "k")
            xload(1); ops.append(("x", 1))
            rd(1, "s"); rd(1, "k")
            nrest = D - 2
            cuts = [8 * k // nrest for k in range(nrest + 1)]
            for k in range(nrest):
                bias_unpack(cuts[k], cuts[k + 1])
                xload(2 + k); ops.append(("x", 2 + k))
        bars = [P, 13, 20] if first else [P]
        marks = [0, 1, 2, 4, 8, 12, 16, 20, 25]
        for i in range(26):
            a(f"    ; ---- step {i}")
            if TS == 4 and not first and i in marks:
                a(f"    s_memtime s[{80 + 2*marks.index(i)}:{81 + 2*marks.index(i)}]")
            young = sum(4 for t in range(i + 1, min(i + PF - 1, 25) + 1))
            if first:
                a(f"    s_waitcnt lgkmcnt({young})")
            else:
                nv = len(ops) - 1 - ops.index(("x", i))
                a(f"    s_waitcnt vmcnt({nv}) lgkmcnt({young})")
            st = vWF + 8 * (i % nsets)
            xf = vXF + 4 * i
            cs = "0" if i == 0 else f"v[{vAS}:{vAS+15}]"
            a(f"    v_mfma_f32_32x32x16_bf16 v[{vAS}:{vAS+15}], v[{st}:{st+3}], v[{xf}:{xf+3}], {cs}")
            if i + PF in bars:
                a("    s_barrier")
            if first and i == 10:
                a(f"    buffer_load_dwordx4 v[{vPOLL}:{vPOLL+3}], v{vHA}, s[{sWS}:{sWS+3}], 0 offen sc1")
            if not first and i + D < 26:
                xload(i + D); ops.append(("x", i + D))
            elif i + D >= 26:
                for t in ([] if c.no_pre else pref_sched(i)):
                    a(f"    s_add_u32 m0, s{sMP}, {t*2048}")
                    a(f"    s_add_u32 s{sT0}, s{sWP}, {t*26624}")
                    a(f"    buffer_load_dwordx4 v{vDMA}, s[{sW}:{sW+3}], s{sT0} offen lds")
                    ops.append(("w", t))
            if i + PF < 26: rd(i + PF, "s")
            a(f"    v_mfma_f32_32x32x16_bf16 v[{vAK}:{vAK+15}], v[{st+4}:{st+7}], v[{xf}:{xf+3}], v[{vAK}:{vAK+15}]")
            if i + PF < 26: rd(i + PF, "k")
        return len([o for o in ops if o[0] == "w"])
    npre = kloop(True)
    a(f"""
    s_add_u32 s{sT0}, s{sE}, 8
    s_addc_u32 s{sT1}, s{sE+1}, 0
    s_mov_b32 s{sSPIN}, 0
    s_waitcnt vmcnt({npre})
L_hello:
    v_cmp_eq_u64 vcc, s[{sT0}:{sT1}], v[{vPOLL}:{vPOLL+1}]
    s_cmp_eq_u64 vcc, -1
    s_cbranch_scc1 L_hello_ok
    s_add_u32 s{sSPIN}, s{sSPIN}, 1
    s_cmp_gt_u32 s{sSPIN}, {c.spin_max}
    s_cbranch_scc1 L_end
    buffer_load_dwordx4 v[{vPOLL}:{vPOLL+3}], v{vHA}, s[{sWS}:{sWS+3}], 0 offen sc1
    s_waitcnt vmcnt(0)
    s_branch L_hello
L_hello_ok:
    v_cmp_eq_u32 vcc, s{sXCC}, v{vPOLL+2}
    s_cmp_eq_u64 vcc, -1
    s_cselect_b32 s{sMODE}, {0 if c.force_slow else 1}, 0
    s_branch L_tail
""")
    assert sT1 == sT0 + 1 and sT0 % 2 == 0
    a("L_layer:")
    stamp(1)
    a("    s_barrier                                 ; B_a")
    stamp()
    kloop(False)
    if TS == 4:
        a("    s_memtime s[98:99]")
        a("    s_waitcnt lgkmcnt(0)")
        for k in range(10):
            a(f"    s_mov_b32 m0, s{sTSI}")
            a(f"    s_nop 0")
            a(f"    v_writelane_b32 v{vTS}, s{80+2*k}, m0")
            a(f"    s_add_u32 s{sTSI}, s{sTSI}, 1")
    a("L_tail:")
    if TS in (2, 3):
        a("    s_nop 15")
        stamp()
    a(f"    v_mov_b32 v{vFV}, s{sTA}")
    a(f"    v_mov_b32 v{vFV+1}, s{sTA+1}")
    a("    s_nop 8")
    for q in range(4):
        a(f"    ds_write_b128 v{vRW}, v[{vAS+4*q}:{vAS+4*q+3}] offset:{q*1024}")
    a("    s_waitcnt lgkmcnt(0)")
    a("    s_barrier                                 ; B2")
    stamp(3)
    for q in range(4):
        a(f"    ds_read_b128 v[{vPART+4*q}:{vPART+4*q+3}], v{vRR} offset:{q*1024}")
    def epi(q):
        a(f"    s_waitcnt lgkmcnt({3-q})")
        for p in range(2):
            r = 4 * q + 2 * p
            a(f"    v_pk_add_f32 v[{vAK+r}:{vAK+r+1}], v[{vAK+r}:{vAK+r+1}], v[{vPART+r}:{vPART+r+1}]")
        for p in range(2):
            r = 4 * q + 2 * p
            a(f"    v_pk_fma_f32 v[{vAK+r}:{vAK+r+1}], v[{vX0F+r}:{vX0F+r+1}], v[{vAK+r}:{vAK+r+1}], v[{vXR+r}:{vXR+r+1}]")
        for p in range(2):
            r = 4 * q + 2 * p
            a(f"    v_cvt_pk_bf16_f32 v{vP+2*q+p}, v{vAK+r}, v{vAK+r+1}")
    a(f"""
    s_cmp_eq_u32 s{sL}, 5
    s_cbranch_scc1 L_final
    s_cmp_eq_u32 s{sMODE}, 0
    s_cbranch_scc1 L_st_slow
""")
    epi(0); epi(1)
    a(f"    buffer_store_dwordx4 v[{vP}:{vP+3}], v{vXO}, s[{sWS}:{sWS+3}], s{sXST} offen")
    epi(2); epi(3)
    a(f"    buffer_store_dwordx4 v[{vP+4}:{vP+7}], v{vXO}, s[{sWS}:{sWS+3}], s{sXST} offen offset:1024")
    if c.n1 > 0: a("    s_barrier                                 ; B_s")
    stamp(3)
    def unpack_res():
        for d in range(8):
            a(f"    v_lshlrev_b32 v{vXR+2*d}, 16, v{vP+d}")
            a(f"    v_and_b32 v{vXR+2*d+1}, 0xffff0000, v{vP+d}")
    bias_read()
    unpack_res()
    a(f"""
    s_waitcnt vmcnt(0)
    buffer_store_dwordx2 v[{vFV}:{vFV+1}], off, s[{sWS}:{sWS+3}], s{sOWNF}
    s_branch L_st_done
L_st_slow:
""")
    epi(0); epi(1); epi(2); epi(3)
    a(f"""
    buffer_store_dwordx4 v[{vP}:{vP+3}], v{vXO}, s[{sWS}:{sWS+3}], s{sXST} offen sc1
    buffer_store_dwordx4 v[{vP+4}:{vP+7}], v{vXO}, s[{sWS}:{sWS+3}], s{sXST} offen offset:1024 sc1
""")
    if c.n1 > 0: a("    s_barrier                                 ; B_s")
    stamp(3)
    bias_read()
    unpack_res()
    a(f"""
    s_waitcnt vmcnt(0)
    buffer_store_dwordx2 v[{vFV}:{vFV+1}], off, s[{sWS}:{sWS+3}], s{sOWNF} sc1
L_st_done:
""")
    stamp()
    if c.onepoll:
        a(f"""
    s_cmp_eq_u32 s{sWV}, 0
    s_cbranch_scc0 L_nopoll1""")
    a(f"""
    buffer_load_dwordx2 v[{vPOLL}:{vPOLL+1}], v{vFA}, s[{sWS}:{sWS+3}], 0 offen sc1
L_nopoll1:
    {"s_barrier                                 ; B_f" if c.n1 > 0 else ""}
    s_or_b32 s{sT0}, s{sJ}, s{sWV}
    s_cmp_eq_u32 s{sT0}, 0
    s_cbranch_scc0 L_noprog
    s_add_u32 s{sT0}, s{sCB}, 3072
    buffer_store_dwordx2 v[{vFV}:{vFV+1}], off, s[{sWS}:{sWS+3}], s{sT0}
L_noprog:
    s_add_u32 s{sL}, s{sL}, 1
    s_cmp_eq_u32 s{sL}, 1
    s_cbranch_scc1 L_keep_xa
    s_add_u32 s{sXA}, s{sXA}, s{sXD}
    s_add_u32 s{sXB}, s{sXB}, s{sXD}
    s_sub_u32 s{sXD}, 0, s{sXD}
L_keep_xa:
    s_add_u32 s{sXST}, s{sXST}, s{sXD2}
    s_sub_u32 s{sXD2}, 0, s{sXD2}
    s_add_u32 s{sWP}, s{sWP}, {c.wstride}
    s_sub_u32 s{sMP}, s{sMP}, s{sPD}
    v_add_u32 v{vAPK}, s{sPD}, v{vAPK}
    v_add_u32 v{vAPS}, s{sPD}, v{vAPS}
    s_sub_u32 s{sPD}, 0, s{sPD}
    s_mov_b32 s{sSPIN}, 0
""")
    if c.onepoll:
        a(f"""
    s_cmp_eq_u32 s{sWV}, 0
    s_cbranch_scc0 L_ready""")
    if c.poll2:
        a(f"""L_poll:
    buffer_load_dwordx2 v[{vPOL2}:{vPOL2+1}], v{vFA}, s[{sWS}:{sWS+3}], 0 offen sc1
    s_waitcnt vmcnt(1)
    v_cmp_eq_u64 vcc, s[{sTA}:{sTA+1}], v[{vPOLL}:{vPOLL+1}]
    v_cmp_eq_u64 s[{sMK}:{sMK+1}], s[{sTB}:{sTB+1}], v[{vPOLL}:{vPOLL+1}]
    s_or_b64 vcc, vcc, s[{sMK}:{sMK+1}]
    s_cmp_eq_u64 vcc, -1
    s_cbranch_scc1 L_ready
    buffer_load_dwordx2 v[{vPOLL}:{vPOLL+1}], v{vFA}, s[{sWS}:{sWS+3}], 0 offen sc1
    s_waitcnt vmcnt(1)
    v_cmp_eq_u64 vcc, s[{sTA}:{sTA+1}], v[{vPOL2}:{vPOL2+1}]
    v_cmp_eq_u64 s[{sMK}:{sMK+1}], s[{sTB}:{sTB+1}], v[{vPOL2}:{vPOL2+1}]
    s_or_b64 vcc, vcc, s[{sMK}:{sMK+1}]
    s_cmp_eq_u64 vcc, -1
    s_cbranch_scc1 L_ready
    s_add_u32 s{sSPIN}, s{sSPIN}, 1
    s_cmp_gt_u32 s{sSPIN}, {c.spin_max}
    s_cbranch_scc0 L_poll
    s_endpgm
""")
    else:
        a(f"""L_poll:
    s_waitcnt vmcnt(0)
    v_cmp_eq_u64 vcc, s[{sTA}:{sTA+1}], v[{vPOLL}:{vPOLL+1}]
    v_cmp_eq_u64 s[{sMK}:{sMK+1}], s[{sTB}:{sTB+1}], v[{vPOLL}:{vPOLL+1}]
    s_or_b64 vcc, vcc, s[{sMK}:{sMK+1}]
    s_cmp_eq_u64 vcc, -1
    s_cbranch_scc1 L_ready
    buffer_load_dwordx2 v[{vPOLL}:{vPOLL+1}], v{vFA}, s[{sWS}:{sWS+3}], 0 offen sc1
    s_add_u32 s{sSPIN}, s{sSPIN}, 1
    s_cmp_gt_u32 s{sSPIN}, {c.spin_max}
    s_cbranch_scc0 L_poll
    s_endpgm
""")
    a(f"""L_ready:
    s_add_u32 s{sTA}, s{sTA}, 1
    s_addc_u32 s{sTA+1}, s{sTA+1}, 0
    s_add_u32 s{sTB}, s{sTB}, 1
    s_addc_u32 s{sTB+1}, s{sTB+1}, 0
    s_waitcnt lgkmcnt(0)
    s_branch L_layer
L_final:
""")
    epi(0); epi(1); epi(2); epi(3)
    a(f"""
    s_nop 1
    v_permlane32_swap_b32 v{vP}, v{vP+2}
    v_permlane32_swap_b32 v{vP+1}, v{vP+3}
    v_permlane32_swap_b32 v{vP+4}, v{vP+6}
    v_permlane32_swap_b32 v{vP+5}, v{vP+7}
    buffer_store_dwordx4 v[{vP}:{vP+3}], v{vOUT}, s[{sOUT}:{sOUT+3}], 0 offen
    buffer_store_dwordx4 v[{vP+4}:{vP+7}], v{vOUT}, s[{sOUT}:{sOUT+3}], 0 offen offset:32
    s_or_b32 s{sT0}, s{sJ}, s{sWV}
    s_cmp_eq_u32 s{sT0}, 0
    s_cbranch_scc0 L_noepoch
    s_add_u32 s{sT0}, s{sE}, 16
    s_addc_u32 s{sT1}, s{sE+1}, 0
    v_mov_b32 v{vFV}, s{sT0}
    v_mov_b32 v{vFV+1}, s{sT1}
    s_mov_b64 exec, 1
    buffer_store_dwordx2 v[{vFV}:{vFV+1}], off, s[{sWS}:{sWS+3}], s{sCB} sc1
    s_mov_b64 exec, -1
L_noepoch:
""")
    stamp(1); dump_ts()
    a("    s_endpgm")

    if c.helpers:
        HP = P if c.hp is None else c.hp
        nrow = (13 - HP) * 16
        nline = nrow * 13
        tot = 4 * nline
        nins = (tot + 63) // 64
        cdelta = HP * 16 * ROWB
        NK = -(-nins // 48)
        a(f"""
L_helper:
    s_sub_u32 s{sT0}, s2, 208
    s_and_b32 s{sT1}, s{sT0}, 7
    s_lshr_b32 s{sT0}, s{sT0}, 3
    s_lshl_b32 s{sT0}, s{sT0}, 3
    s_add_u32 s{sT0}, s{sT0}, s{sWV}          ; g = 0..47
    s_lshl_b32 s{sCB}, s{sT1}, 13
    s_add_u32 s{sCB}, s{sCB}, {CTRL}
    s_load_dwordx2 s[{sE}:{sE+1}], s[50:51], s{sCB}
    s_add_u32 s{sOWNF}, s{sCB}, 3072
    s_mul_i32 s{sG}, s{sT1}, {2*XRB}
    s_lshl_b32 s{sI}, s{sT0}, 13
    s_add_u32 s{sG}, s{sG}, s{sI}
    v_lshlrev_b32 v19, 7, v{vL}
    v_add_u32 v19, s{sG}, v19
    s_cmp_lt_u32 s{sT0}, {-(-2*XRB // 8192)}
    s_cselect_b32 s{sM}, 1, 0
    s_cbranch_scc0 L_hx1
    s_mov_b32 s{sI}, {XBUF}
    buffer_load_dword v30, v19, s[{sWS}:{sWS+3}], s{sI} offen sc1
L_hx1:
    s_mul_i32 s{sT2}, s{sT1}, {nins // 8}
""")
        for k in range(NK):
            a(f"""
    s_add_u32 s{sT3}, s{sT0}, {48*k}
    s_add_u32 s{sI}, s{sT3}, s{sT2}
    s_cmp_ge_u32 s{sI}, {nins}
    s_cselect_b32 s{sG}, {nins}, 0
    s_sub_u32 s{sI}, s{sI}, s{sG}
    s_cmp_ge_u32 s{sT3}, {nins}
    s_cselect_b32 s{sI}, {nins + 8}, s{sI}
    s_lshl_b32 s{sI}, s{sI}, 6
    v_add_u32 v{vT0}, s{sI}, v{vL}
    v_mov_b32 v{vT1}, {cdelta}
    v_cmp_le_u32 vcc, {nline}, v{vT0}
    v_mov_b32 v{vT2}, 0
    v_mov_b32 v{vT3}, {cdelta}
    v_cndmask_b32 v{vT2}, v{vT2}, v{vT3}, vcc
    v_add_u32 v{vT1}, v{vT1}, v{vT2}
    v_cmp_le_u32 vcc, {2*nline}, v{vT0}
    v_mov_b32 v{vT2}, 0
    s_nop 0
    v_cndmask_b32 v{vT2}, v{vT2}, v{vT3}, vcc
    v_add_u32 v{vT1}, v{vT1}, v{vT2}
    v_cmp_le_u32 vcc, {3*nline}, v{vT0}
    v_mov_b32 v{vT2}, 0
    s_nop 0
    v_cndmask_b32 v{vT2}, v{vT2}, v{vT3}, vcc
    v_add_u32 v{vT1}, v{vT1}, v{vT2}
    v_lshl_add_u32 v{10+k}, v{vT0}, 7, v{vT1}
    v_cmp_le_u32 vcc, {tot}, v{vT0}
    v_mov_b32 v{vT2}, 0x7ffffff0
    s_nop 0
    v_cndmask_b32 v{10+k}, v{10+k}, v{vT2}, vcc
""")
        a(f"""
    v_mov_b32 v20, 0
    s_mov_b32 s{sL}, 1
    s_mov_b32 s{sT3}, {c.wstride}
    s_waitcnt lgkmcnt(0)
L_h_layer:
""")
        if c.hpace:
            a(f"""
    s_cmp_lt_u32 s{sL}, 2
    s_cbranch_scc1 L_h_go
    s_cmp_eq_u32 s{sWV}, 0
    s_cbranch_scc0 L_h_bar
    s_mov_b32 s{sSPIN}, 0
L_h_poll:
    buffer_load_dwordx2 v[16:17], v20, s[{sWS}:{sWS+3}], s{sOWNF} offen sc1
    s_waitcnt vmcnt(0)
    v_readfirstlane_b32 s{sTA}, v16
    v_readfirstlane_b32 s{sTA+1}, v17
    s_sub_u32 s{sTA}, s{sTA}, s{sE}
    s_subb_u32 s{sTA+1}, s{sTA+1}, s{sE+1}
    s_cmp_eq_u32 s{sTA+1}, 0
    s_cselect_b32 s{sTA}, s{sTA}, 0
    s_cmp_gt_u32 s{sTA}, 6
    s_cselect_b32 s{sTA}, 0, s{sTA}
    s_add_u32 s{sTA}, s{sTA}, 1
    s_cmp_ge_u32 s{sTA}, s{sL}
    s_cbranch_scc1 L_h_bar
    s_add_u32 s{sSPIN}, s{sSPIN}, 1
    s_cmp_lt_u32 s{sSPIN}, 32
    s_cbranch_scc1 L_h_poll
L_h_bar:
    s_barrier
L_h_go:
""")
        for k in range(NK):
            a(f"    buffer_load_dword v{31+k}, v{10+k}, s[{sW}:{sW+3}], s{sT3} offen")
            a(f"    s_waitcnt vmcnt({c.hdepth})")
            a(f"    s_barrier")
        a(f"""
    s_cmp_eq_u32 s{sL}, 1
    s_cbranch_scc0 L_hx0
    s_cmp_eq_u32 s{sM}, 1
    s_cbranch_scc0 L_hx0
    s_mov_b32 s{sI}, 0
    buffer_load_dword v30, v19, s[{sWS}:{sWS+3}], s{sI} offen sc1
L_hx0:
""")
        stamp(1)
        a(f"""
    s_add_u32 s{sL}, s{sL}, 1
    s_add_u32 s{sT3}, s{sT3}, {c.wstride}
    s_cmp_lt_u32 s{sL}, 6
    s_cbranch_scc1 L_h_layer
""")
        a("    s_waitcnt vmcnt(0)")
        stamp(1)
        dump_ts()
    a("L_end:")
    a("    s_endpgm")
    kernel_desc(a, KNAME, NV, sgpr=102, accum=NV)
    txt = a.text().rstrip()
    if txt.endswith(".text"):
        txt = txt[:-5]
    return txt

if __name__ == "__main__":
    import json
    kw = json.loads(sys.argv[2]) if len(sys.argv) > 2 else {}
    open(sys.argv[1], "w").write(gen(**kw))
```

```python
import sys, os
from asmlib import *

KNAME = "standalone__dcn_v2_cross__recsys_kernel"
B_, DIN, L_ = 1024, 832, 6
ROWB = DIN * 2
WLAYER = DIN * DIN * 2
XLAYER = B_ * DIN * 2
XMH = 32 * ROWB
XRB = 2 * XMH
XBUF = 16 * XRB
CTRL = 2 * XBUF
TSOFF = CTRL + 16 * 4096
WS_BYTES = TSOFF + 256 * 8 * 256

class Cfg:
    def __init__(self, **kw):
        self.P = 6
        self.D = 5
        self.PF = 2
        self.SV = 3
        self.SB = 7
        self.NS = 3
        self.sp = True
        self.hp = None
        self.helpers = True
        self.hfirst = 0
        self.hlook = 2
        self.hpace = True
        self.hdepth = 1
        self.lthr = 0
        self.lthr_all = True
        self.sD_late = True
        self.ts = 0
        self.force_slow = False
        self.scramble = False
        self.spin_max = 1 << 20
        self.wstride = WLAYER
        self.prio = 2
        self.hello_step = 19
        self.l0b1 = True
        self.hello_by = 'loader'
        self.pre_first = False
        self.swarm = False
        self.horder = 'linear'
        self.hwarm = True
        self.prog_step = 22
        self.prog_at = 'end'
        self.vwarm = True
        self.pre_by = 'loader'
        self.mid_step = 21
        self.presched = 'pack'
        self.h0 = 'middle'
        self.xtouch = False
        self.w0assist = False
        self.bias_by = 'loader'
        self.exp_delay = 0
        self.exp_rt = 0
        self.poll2 = True
        self.phased = True
        self.n1 = 4
        self.n2 = 4
        self.onepoll = True
        self.no_suf = self.no_pre = self.no_x = self.no_w = False
        self.__dict__.update(kw)

def gen(cfg=None, **kw):
    c = cfg or Cfg(**kw)
    P, D, PF = c.P, c.D, c.PF
    TS = int(c.ts)
    assert P <= 12 and PF <= P and D >= PF + 1
    KHS = (26 - P) * 2048
    PRE0 = 0
    SUF = 2 * P * 2048
    PRE1 = SUF + 2 * KHS
    PREPAR = PRE1 - PRE0
    RED = PRE1 + 2 * P * 2048
    BIAS = RED + 16384
    MODEW = BIAS
    LDS_BYTES = BIAS + 64
    XS = SUF
    assert XS + 4 * 28672 <= BIAS and LDS_BYTES <= 163840
    sW, sWS, sX0, sOUT, sBS = 4, 8, 12, 16, 24
    sRB, sJ, sG2, sWV, sMH, sKH, sL, sXCC, sMODE = 28, 29, 30, 31, 32, 33, 34, 35, 36
    sXA, sXB, sXST = 37, 38, 39
    sWP, sMP, sPD = 52, 53, 54
    sU, sOWNF, sXD2 = 55, 56, 57
    sT0, sT1, sT2, sT3 = 58, 59, 60, 61
    sSPIN, sROT = 62, 63
    sG, sM, sI = 64, 65, 66
    sTSI, sTM = 67, 68
    sXD, sCB = 70, 71
    sE, sTA, sTB, sMK = 72, 74, 76, 78
    sBP_ = 48
    vL = 0
    vT0, vT1, vT2, vT3 = 1, 2, 3, 4
    vDUM = 5
    vXO = 6
    vAPK, vAPS, vASK, vASS = 10, 11, 12, 13
    vDMA, vFA = 14, 15
    vPOLL = 16
    vRW, vRR, vBA, vTS = 20, 21, 22, 23
    vP = 24
    vAK, vAS, vPART, vX0F, vXR = 32, 48, 64, 80, 96
    vWF = 112
    vXF = 136
    vBP = 240
    vOUT, vHA, vFV, vDMA0 = 248, 249, 250, 252
    vPOL2 = 254
    NV = 256
    nsets = PF + 1
    assert nsets * 8 <= 24

    a = Asm()
    a("; 208 worker workgroups = 16 row blocks (64 rows) x 13 column slices (64 columns); waves 0-3 MFMA, waves 4-7 W loaders;")
    a(f"; @launch grid=({256 if c.helpers else 208},1,1) block=(512,1,1) lds={LDS_BYTES}")
    a('.amdgcn_target "amdgcn-amd-amdhsa--gfx950"')
    a(".text")
    kernel_begin(a, KNAME)
    if TS == 5:
        a("    s_memrealtime s[26:27]")
        a("    s_memtime s[100:101]")

    def stamp(level=2):
        if not TS or TS < level or (TS == 4 and level > 1) or TS == 5: return
        a(f"    s_memtime s[{sTM}:{sTM+1}]")
        a(f"    s_waitcnt lgkmcnt(0)")
        a(f"    s_mov_b32 m0, s{sTSI}")
        a(f"    s_nop 0")
        a(f"    v_writelane_b32 v{vTS}, s{sTM}, m0")
        a(f"    s_add_u32 s{sTSI}, s{sTSI}, 1")
    def dump_ts():
        if not TS: return
        if TS == 5:
            a("    s_memrealtime s[80:81]")
            a("    s_memtime s[82:83]")
            a("    s_waitcnt lgkmcnt(0)")
            a(f"    v_writelane_b32 v{vTS}, s26, 0")
            a(f"    v_writelane_b32 v{vTS}, s80, 1")
            a(f"    v_writelane_b32 v{vTS}, s100, 2")
            a(f"    v_writelane_b32 v{vTS}, s82, 3")
        a(f"""
    s_lshl_b32 s{sT0}, s2, 3
    s_add_u32 s{sT0}, s{sT0}, s{sWV}
    s_lshl_b32 s{sT0}, s{sT0}, 8
    s_add_u32 s{sT0}, s{sT0}, {TSOFF}
    v_lshlrev_b32 v{vT0}, 2, v{vL}
    buffer_store_dword v{vTS}, v{vT0}, s[{sWS}:{sWS+3}], s{sT0} offen
""")
    def srd(dst, src, nbytes):
        a(f"    s_mov_b32 s{dst}, s{src}")
        a(f"    s_and_b32 s{dst+1}, s{src+1}, 0xffff")
        a(f"    s_mov_b32 s{dst+2}, {nbytes}")
        a(f"    s_mov_b32 s{dst+3}, 0x20000")

    a(f"""
    s_cmp_ge_u32 s2, {256 if c.helpers else 208}
    s_cbranch_scc1 L_end
    s_load_dwordx4 s[40:43], s[0:1], 0
    s_load_dwordx4 s[44:47], s[0:1], 16
    s_load_dwordx2 s[50:51], s[0:1], 40
    s_getreg_b32 s{sXCC}, hwreg(HW_REG_XCC_ID, 0, 4)
""")
    if c.scramble:
        a(f"""
    s_mul_hi_u32 s{sRB}, s2, 0x13B13B14
    s_mul_i32 s{sT0}, s{sRB}, 13
    s_sub_u32 s{sJ}, s2, s{sT0}
    s_and_b32 s{sG2}, s{sRB}, 1
    s_mul_i32 s{sROT}, s{sG2}, 13""")
    else:
        a(f"""
    s_and_b32 s{sT0}, s2, 7
    s_lshr_b32 s{sT1}, s2, 3
    s_cmp_ge_u32 s{sT1}, 13
    s_cselect_b32 s{sG2}, 1, 0
    s_mul_i32 s{sROT}, s{sG2}, 13
    s_sub_u32 s{sJ}, s{sT1}, s{sROT}
    s_lshl_b32 s{sRB}, s{sT0}, 1
    s_add_u32 s{sRB}, s{sRB}, s{sG2}""")
    a(f"""
    v_lshrrev_b32 v{vT0}, 6, v0
    v_and_b32 v{vL}, 63, v0
    v_readfirstlane_b32 s{sWV}, v{vT0}
    s_mov_b32 s{sTSI}, 0
    v_mov_b32 v{vTS}, 0
    s_lshl_b32 s{sCB}, s{sRB}, 12
    s_add_u32 s{sCB}, s{sCB}, {CTRL}
    s_and_b32 s{sMH}, s{sWV}, 1
    s_bfe_u32 s{sKH}, s{sWV}, 0x10001
    v_lshrrev_b32 v{vT0}, 3, v{vL}            ; row8
    v_and_b32 v{vT1}, 7, v{vL}
    v_bfe_u32 v{vT2}, v{vL}, 4, 1
    v_lshlrev_b32 v{vT2}, 2, v{vT2}
    v_xor_b32 v{vT1}, v{vT1}, v{vT2}
    v_lshlrev_b32 v{vT1}, 4, v{vT1}
    s_lshl_b32 s{sT0}, s{sJ}, 7
    v_add_u32 v{vT1}, s{sT0}, v{vT1}
    v_mul_u32_u24 v{vT2}, {ROWB}, v{vT0}
    v_add_u32 v{vDMA}, v{vT2}, v{vT1}
    v_and_b32 v{vT2}, 3, v{vT0}
    v_lshrrev_b32 v{vT0}, 2, v{vT0}
    v_lshl_add_u32 v{vT0}, v{vT0}, 3, v{vT2}
    v_mul_u32_u24 v{vT0}, {ROWB}, v{vT0}
    v_add_u32 v{vDMA0}, v{vT0}, v{vT1}
    s_waitcnt lgkmcnt(0)
""")
    srd(sX0, 40, XLAYER)
    srd(sW, 42, L_ * WLAYER)
    srd(sWS, 50, WS_BYTES)
    stamp(1)
    if c.helpers:
        a(f"""
    s_cmp_ge_u32 s2, 208
    s_cbranch_scc1 L_helper
""")
    a(f"""
    s_cmp_lt_u32 s{sWV}, 4
    s_cbranch_scc1 L_compute
""")
    def bias_dma(sreg, val, lab):
        a(f"    s_cmp_eq_u32 s{sreg}, {val}")
        a(f"    s_cbranch_scc0 {lab}")
        srd(sBS, 44, L_ * ROWB)
        a(f"""    v_lshrrev_b32 v{vT0}, 5, v{vL}
    v_mul_u32_u24 v{vT0}, {ROWB}, v{vT0}
    v_and_b32 v{vT1}, 31, v{vL}
    v_lshlrev_b32 v{vT1}, 2, v{vT1}
    v_add_u32 v{vT0}, v{vT0}, v{vT1}
    s_lshl_b32 s{sT0}, s{sJ}, 7
    v_add_u32 v{vT0}, s{sT0}, v{vT0}""")
        for t in range(3):
            a(f"    s_mov_b32 m0, {BIAS + 256*t}")
            a(f"    s_mov_b32 s{sT1}, {2*t*ROWB}")
            a(f"    buffer_load_dword v{vT0}, s[{sBS}:{sBS+3}], s{sT1} offen lds")
        a(f"{lab}:")
    vS0, vS1 = vXO, vXO + 1
    sSB = 40
    sWP0 = 98
    SB = c.SB
    NSR = 3 * SB
    def sbatch(k, nextlayer=False):
        if not c.sp: return
        b = sSB + 2 if nextlayer else sSB
        for n_ in range(SB):
            a(f"    s_load_dwordx2 s[{76+2*n_}:{77+2*n_}], s[{b}:{b+1}], {(k * SB + n_) * ROWB + 60}")
    a(f"""
    s_sub_u32 s{sU}, s{sWV}, 4
""")
    if c.xtouch:
        a(f"""
    s_cmp_eq_u32 s{sU}, 0
    s_cbranch_scc0 L_notouch
    s_lshl_b32 s{sT0}, s{sRB}, 6
    s_mul_i32 s{sT0}, s{sT0}, {ROWB}
    s_lshl_b32 s{sT1}, s{sJ}, 7
    s_add_u32 s{sT0}, s{sT0}, s{sT1}
    v_mul_u32_u24 v20, {ROWB}, v{vL}
    s_mov_b32 s20, s{sT0}
    buffer_load_dword v{vDUM}, v20, s[{sX0}:{sX0+3}], s20 offen""")
    a(f"""
L_notouch:
""")
    a(f"""
    s_mul_i32 s{sT0}, s{sKH}, 416
    s_lshl_b32 s{sT1}, s{sMH}, 2
    s_add_u32 s{sT1}, s{sT1}, s{sT0}
    s_mul_i32 s{sT1}, s{sT1}, {ROWB}
    v_add_u32 v{vDMA0}, s{sT1}, v{vDMA0}
    s_lshl_b32 s{sT1}, s{sMH}, 3
    s_add_u32 s{sT1}, s{sT1}, s{sT0}
    s_mul_i32 s{sT1}, s{sT1}, {ROWB}
    v_add_u32 v{vDMA}, s{sT1}, v{vDMA}
    v_lshrrev_b32 v{vT0}, 3, v{vL}            ; row8
    v_and_b32 v{vT1}, 7, v{vL}
    v_lshrrev_b32 v{vT2}, 1, v{vT0}
    v_xor_b32 v{vT1}, v{vT1}, v{vT2}          ; c' ^ (row8>>1)
    v_xor_b32 v{vT2}, 4, v{vT1}
    v_mul_u32_u24 v{vT0}, {ROWB}, v{vT0}
    v_lshl_add_u32 v{vS0}, v{vT1}, 4, v{vT0}
    v_lshl_add_u32 v{vS1}, v{vT2}, 4, v{vT0}
    s_lshl_b32 s{sT0}, s{sRB}, 6
    s_lshl_b32 s{sT1}, s{sMH}, 5
    s_add_u32 s{sT0}, s{sT0}, s{sT1}
    s_mul_i32 s{sG}, s{sT0}, {ROWB}
    s_mul_i32 s{sT1}, s{sKH}, {6*128}
    s_add_u32 s{sG}, s{sG}, s{sT1}
    s_mul_i32 s{sM}, s{sU}, 28672
    s_add_u32 s{sM}, s{sM}, {XS}
    s_cmp_ge_u32 s{sJ}, 7
    s_cselect_b32 s{sT3}, 7, 0
    s_sub_u32 s{sT3}, s{sJ}, s{sT3}
    s_mov_b32 s{sI}, 0
L_xs:
    s_lshl_b32 s{sT0}, s{sT3}, 12
    s_add_u32 s{sT0}, s{sT0}, s{sM}
    s_lshl_b32 s{sT1}, s{sT3}, 7
    s_add_u32 s{sT1}, s{sT1}, s{sG}
""")
    for rg in range(4):
        a(f"    s_add_u32 m0, s{sT0}, {rg*1024}")
        a(f"    s_add_u32 s{sT2}, s{sT1}, {rg*8*ROWB}")
        a(f"    buffer_load_dwordx4 v{vS0 if rg % 2 == 0 else vS1}, s[{sX0}:{sX0+3}], s{sT2} offen lds")
    a(f"""
    s_add_u32 s{sT3}, s{sT3}, 1
    s_cmp_eq_u32 s{sT3}, 7
    s_cselect_b32 s{sT3}, 0, s{sT3}
    s_add_u32 s{sI}, s{sI}, 1
    s_cmp_lt_u32 s{sI}, 7
    s_cbranch_scc1 L_xs
    ; ---- W prefix of layer 0
    s_mul_i32 s{sG}, s{sROT}, 26624
    s_mul_i32 s{sM}, s{sKH}, {P*2048}
    s_lshl_b32 s{sT1}, s{sMH}, 10
    s_add_u32 s{sM}, s{sM}, s{sT1}
""")
    for i in range(P):
        a(f"    s_add_u32 m0, s{sM}, {PRE0 + i*2048}")
        a(f"    s_add_u32 s{sT0}, s{sG}, {i*26624}")
        a(f"    buffer_load_dwordx4 v{vDMA0}, s[{sW}:{sW+3}], s{sT0} offen lds")
    a(f"""
""")
    if c.w0assist:
        a(f"""
    s_cmp_eq_u32 s{sU}, 3
    s_cbranch_scc0 L_now0t
    v_lshrrev_b32 v21, 5, v{vL}               ; K half
    v_mul_u32_u24 v21, 416, v21
    v_and_b32 v22, 31, v{vL}
    v_add_u32 v21, v21, v22
    v_mul_u32_u24 v21, {ROWB}, v21
    s_lshl_b32 s20, s{sROT}, 4
    s_add_u32 s20, s20, {P * 16 + 28}
    s_mul_i32 s20, s20, {ROWB}
    s_lshl_b32 s21, s{sJ}, 7
    s_add_u32 s20, s20, s21
    buffer_load_dword v{vDUM}, v21, s[{sW}:{sW+3}], s20 offen
L_now0t:""")
    a(f"""
""")
    if c.hello_by == "loader":
        a(f"""
    s_load_dwordx2 s[{sE}:{sE+1}], s[50:51], s{sCB}
    s_add_u32 s{sT0}, s{sCB}, 128
    s_add_u32 s46, s50, s{sT0}
    s_addc_u32 s47, s51, 0""")
    a(f"""
    s_mul_i32 s{sT2}, s{sKH}, {KHS}
    s_lshl_b32 s{sT1}, s{sMH}, 10
    s_add_u32 s{sT2}, s{sT2}, s{sT1}
    s_add_u32 s{sMP}, s{sT2}, {SUF}
    s_mul_i32 s70, s{sKH}, {P*2048}
    s_add_u32 s70, s70, s{sT1}
    s_add_u32 s70, s70, {PRE1}                ; prefix of layer 1 goes to parity 1
    s_mov_b32 s71, {PREPAR}
    s_mul_i32 s{sT0}, s{sKH}, 416
    s_lshl_b32 s{sT1}, s{sROT}, 4
    s_add_u32 s{sT0}, s{sT0}, s{sT1}
    s_mul_i32 s{sT1}, s{sMH}, {NSR}
    s_add_u32 s{sT0}, s{sT0}, s{sT1}
    s_add_u32 s{sT0}, s{sT0}, {c.SV * 16}
    s_mul_i32 s{sT0}, s{sT0}, {ROWB}
    s_lshl_b32 s{sT1}, s{sJ}, 7
    s_add_u32 s{sT0}, s{sT0}, s{sT1}
    s_add_u32 s{sT0}, s{sT0}, {c.wstride}
    s_mov_b32 s98, s42
    s_mov_b32 s99, s43
    s_add_u32 s40, s42, s{sT0}
    s_addc_u32 s41, s43, 0
    s_add_u32 s42, s40, {c.wstride}
    s_addc_u32 s43, s41, 0
""")
    def swarm(k):
        if not (c.swarm and c.sp): return
        lst = [(l, r) for l in range(2, 6) for r in range(3)]
        lst = lst[:7] if k == 0 else lst[7:]
        cur = None
        for n_, (l, r) in enumerate(lst):
            if cur != l:
                a(f"    s_add_u32 s46, s44, {l * c.wstride}")
                a(f"    s_addc_u32 s47, s45, 0")
                cur = l
            a(f"    s_load_dwordx2 s[{76+2*n_}:{77+2*n_}], s[46:47], {r*ROWB + 60}")
    if c.swarm and c.sp:
        per_range = 2 * NSR // 3
        a(f"""
    ; share of the S rows for the warm-up: q = rb*4 + u, range = q / {per_range}, rows 3*(q % {per_range}) ...
    s_lshl_b32 s{sT0}, s{sRB}, 2
    s_add_u32 s{sT0}, s{sT0}, s{sWV}
    s_sub_u32 s{sT0}, s{sT0}, 4
    s_min_u32 s{sT0}, s{sT0}, {4 * per_range - 1}
    s_mul_i32 s{sT1}, s{sT0}, {-(-65536 // per_range)}
    s_lshr_b32 s{sT1}, s{sT1}, 16             ; range
    s_mul_i32 s{sT2}, s{sT1}, {per_range}
    s_sub_u32 s{sT0}, s{sT0}, s{sT2}
    s_mul_i32 s{sT0}, s{sT0}, 3
    s_mul_i32 s{sT1}, s{sT1}, 208
    s_add_u32 s{sT0}, s{sT0}, s{sT1}
    s_add_u32 s{sT0}, s{sT0}, {c.SV * 16}
    s_mul_i32 s{sT0}, s{sT0}, {ROWB}
    s_lshl_b32 s{sT1}, s{sJ}, 7
    s_add_u32 s{sT0}, s{sT0}, s{sT1}
    s_add_u32 s44, s{sWP0}, s{sT0}
    s_addc_u32 s45, s{sWP0+1}, 0
""")
        swarm(0)
    if c.w0assist:
        a(f"""    s_cmp_eq_u32 s{sU}, 3
    s_cbranch_scc0 L_bxw
    s_waitcnt vmcnt({P + 1})
    s_branch L_bxw2
L_bxw:
    s_waitcnt vmcnt({P})
L_bxw2:""")
    else:
        a(f"    s_waitcnt vmcnt({P})")
    stamp()
    a(f"""
    s_barrier                                 ; B_x
    s_barrier                                 ; B_y
""")
    if c.swarm and c.sp: a("    s_waitcnt lgkmcnt(0)")
    if c.hello_by != "loader": sbatch(0)
    def suffix(vreg, lay, thr=True, phased=False, bp=None):
        a(f"    s_mul_i32 s{sG}, s{sROT}, 26624")
        a(f"    s_add_u32 s{sG}, s{sG}, {lay}")
        a(f"    s_sub_u32 s{sM}, 13, s{sROT}")
        a(f"    s_mul_i32 s{sM}, s{sM}, 26624")
        a(f"    s_add_u32 s{sM}, s{sM}, {lay}")
        for n_, i in enumerate(range(P, 26)):
            if bp is not None and n_ == bp:
                a(f"    s_waitcnt vmcnt({bp})")
                a("    s_barrier                                 ; B_p: prefix of layer 0 has landed")
                if c.hello_by == "loader":
                    a(f"""    s_cmp_eq_u32 s{sWV}, 6
    s_cbranch_scc0 L_b0
    s_waitcnt lgkmcnt(0)
    s_load_dwordx16 s[76:91], s[46:47], 0 glc
    s_load_dwordx8 s[92:99], s[46:47], 64 glc
    s_load_dwordx2 s[20:21], s[46:47], 96 glc
    s_branch L_b0d
L_b0:""")
                    sbatch(0)
                    a("L_b0d:")
            if phased and n_ == c.n1: a("    s_barrier")
            if phased and n_ == c.n1 + c.n2: a("    s_barrier")
            a(f"    s_add_u32 m0, s{sMP}, {(i-P)*2048}")
            a(f"    s_add_u32 s{sI}, s{sG if i < 13 else sM}, {(i % 13) * 26624}")
            a(f"    buffer_load_dwordx4 v{vreg}, s[{sW}:{sW+3}], s{sI} offen lds")
            if c.lthr and thr and (c.lthr_all or n_ >= c.n1 + c.n2):
                a(f"    s_waitcnt vmcnt({c.lthr - 1})")
    sPP, sPDL = 70, 71
    def prefix_next(lay_next):
        a(f"    s_mul_i32 s{sG}, s{sROT}, 26624")
        a(f"    s_add_u32 s{sG}, s{sG}, s{lay_next}")
        for t in range(P):
            a(f"    s_add_u32 m0, s{sPP}, {t*2048}")
            a(f"    s_add_u32 s{sI}, s{sG}, {t*26624}")
            a(f"    buffer_load_dwordx4 v{vDMA}, s[{sW}:{sW+3}], s{sI} offen lds")
            if c.lthr and c.lthr_all and t + 1 < P:
                a(f"    s_waitcnt vmcnt({c.lthr - 1})")
        a(f"    s_sub_u32 s{sPP}, s{sPP}, s{sPDL}")
        a(f"    s_sub_u32 s{sPDL}, 0, s{sPDL}")
    def advance_sb():
        a(f"""    s_add_u32 s40, s40, {c.wstride}
    s_addc_u32 s41, s41, 0
    s_add_u32 s42, s42, {c.wstride}
    s_addc_u32 s43, s43, 0""")
    suffix(vDMA0, "0", False, False, bp=13 - P)
    n = 26 - P
    if c.hello_by != "loader":
        if c.sp: a("    s_waitcnt lgkmcnt(0)")
        sbatch(1)
    a(f"    s_waitcnt vmcnt({n - (13 - P)})")
    stamp()
    a("    s_barrier                                 ; chunk [P,13)")
    if c.hello_by == "loader" and c.sp and c.l0b1:
        a(f"    s_cmp_eq_u32 s{sWV}, 6")
        a(f"    s_cbranch_scc1 L_nob1")
        a("    s_waitcnt lgkmcnt(0)"); sbatch(1)
        a("L_nob1:")
    if c.swarm and c.sp:
        a("    s_waitcnt lgkmcnt(0)"); swarm(1)
    a(f"    s_waitcnt vmcnt({26 - 20})")
    a("    s_barrier                                 ; chunk [13,20)")
    if c.hello_by == "loader":
        a(f"""    s_cmp_eq_u32 s{sWV}, 6
    s_cbranch_scc0 L_nohe
    s_add_u32 s{sT0}, s{sE}, 8
    s_addc_u32 s{sT1}, s{sE+1}, 0
    s_and_b32 s{sT2}, s{sT1}, 0x0fffffff
    s_lshl_b32 s22, s{sXCC}, 28
    s_xor_b32 s{sT1}, s{sT1}, s22
    s_mov_b32 s22, 1
    s_mov_b32 s23, 1
    s_waitcnt lgkmcnt(0)""")
        for m_ in range(13):
            lo = 76 + 2 * m_ if m_ < 12 else 20
            a(f"""    s_cmp_eq_u32 s{lo}, s{sT0}
    s_cselect_b32 s23, s23, 0
    s_cmp_eq_u32 s{lo+1}, s{sT1}
    s_cselect_b32 s22, s22, 0
    s_and_b32 s{lo+1}, s{lo+1}, 0x0fffffff
    s_cmp_eq_u32 s{lo+1}, s{sT2}
    s_cselect_b32 s23, s23, 0""")
        a(f"""    s_sub_u32 s22, 2, s22
    s_mul_i32 s22, s22, s23
    v_mov_b32 v25, s22
    v_mov_b32 v26, {MODEW}
    ds_write_b32 v26, v25
    s_waitcnt lgkmcnt(0)
""")
        sbatch(0)
        a("L_nohe:")
    a("    s_waitcnt vmcnt(0)")
    stamp()
    a("    s_barrier                                 ; chunk [20,26)")
    if c.pre_by == "loader":
        a("    s_barrier                                 ; B_mid")
        a(f"    s_mov_b32 s{sT3}, {c.wstride}")
        if not c.no_pre: prefix_next(sT3)
    advance_sb()
    a(f"""
    s_barrier
    s_mov_b32 s{sL}, 1
    s_mov_b32 s{sT3}, {c.wstride}
L_ld_layer:
    s_cmp_lt_u32 s{sL}, 5
    s_cselect_b32 s{sU}, 1, 0
""")
    def guarded(fn, lab):
        if not c.sp: return
        a(f"    s_cmp_eq_u32 s{sU}, 1")
        a(f"    s_cbranch_scc0 {lab}")
        fn()
        a(f"{lab}:")
    guarded(lambda: sbatch(1), "L_sA")
    if not c.no_suf: suffix(vDMA, f"s{sT3}", True, c.phased)
    elif c.phased:
        a("    s_barrier"); a("    s_barrier")
    stamp()
    guarded(lambda: (a("    s_waitcnt lgkmcnt(0)"), sbatch(2)), "L_sB")
    if c.pre_by == "loader": a(f"    s_waitcnt vmcnt({26 - P})                 ; the prefix has landed")
    a(f"""
    s_barrier                                 ; B_a
    s_waitcnt vmcnt(0)
""")
    stamp()
    a("    s_barrier")
    a(f"    s_cmp_lt_u32 s{sL}, 4")
    a(f"    s_cselect_b32 s{sU}, 1, 0")
    guarded(lambda: (a("    s_waitcnt lgkmcnt(0)"), sbatch(0, True)), "L_sC")
    if c.pre_by == "loader":
        a("    s_barrier                                 ; B_mid")
        stamp(3)
        a(f"    s_cmp_lt_u32 s{sL}, 5")
        a(f"    s_cbranch_scc0 L_nopre")
        a(f"    s_add_u32 s{sU}, s{sT3}, {c.wstride}")
        if not c.no_pre: prefix_next(sU)
        a("L_nopre:")
        stamp(3)
    advance_sb()
    a(f"""
    s_barrier                                 ; B2
    s_add_u32 s{sL}, s{sL}, 1
    s_add_u32 s{sT3}, s{sT3}, {c.wstride}
    s_cmp_lt_u32 s{sL}, 6
    s_cbranch_scc1 L_ld_layer
""")
    dump_ts()
    a("    s_endpgm")

    sBI = 84
    sBP = 48
    def bias_load():
        a(f"    s_load_dwordx16 s[{sBI}:{sBI+15}], s[{sBP}:{sBP+1}], 0")
        a(f"    s_add_u32 s{sBP}, s{sBP}, {ROWB}")
        a(f"    s_addc_u32 s{sBP+1}, s{sBP+1}, 0")
    def bias_spread():
        a("    s_mov_b32 exec_hi, 0")
        for q in range(4):
            for d in range(2):
                a(f"    v_mov_b32 v{vBP+2*q+d}, s{sBI+4*q+d}")
        a("    s_mov_b32 exec_lo, 0")
        a("    s_mov_b32 exec_hi, -1")
        for q in range(4):
            for d in range(2):
                a(f"    v_mov_b32 v{vBP+2*q+d}, s{sBI+4*q+2+d}")
        a("    s_mov_b64 exec, -1")
    def bias_unpack(lo=0, hi=8):
        for d in range(lo, hi):
            a(f"    v_lshlrev_b32 v{vAK+2*d}, 16, v{vBP+d}")
            a(f"    v_and_b32 v{vAK+2*d+1}, 0xffff0000, v{vBP+d}")
    a(f"""
L_compute:
    s_load_dwordx2 s[{sE}:{sE+1}], s[50:51], s{sCB}
    s_lshl_b32 s{sT0}, s{sJ}, 7
    s_lshl_b32 s{sT1}, s{sKH}, 6
    s_add_u32 s{sT0}, s{sT0}, s{sT1}
    s_add_u32 s{sBP_}, s44, s{sT0}
    s_addc_u32 s{sBP_+1}, s45, 0
    s_load_dwordx16 s[84:99], s[{sBP_}:{sBP_+1}], 0
    s_load_dword s20, s[{sBP_}:{sBP_+1}], {ROWB}
    s_load_dword s21, s[{sBP_}:{sBP_+1}], {2*ROWB}
    s_load_dword s22, s[{sBP_}:{sBP_+1}], {3*ROWB}
    s_load_dword s23, s[{sBP_}:{sBP_+1}], {4*ROWB}
    s_load_dword s24, s[{sBP_}:{sBP_+1}], {5*ROWB}
    s_add_u32 s{sBP_}, s{sBP_}, {ROWB}
    s_addc_u32 s{sBP_+1}, s{sBP_+1}, 0
    s_setprio {c.prio}
    v_min_u32 v{vT0}, 51, v{vL}
    v_lshlrev_b32 v{vT0}, 3, v{vT0}
    s_add_u32 s{sT0}, s{sCB}, 2048
    v_add_u32 v{vFA}, s{sT0}, v{vT0}
    s_cmp_eq_u32 s{sWV}, 0
    s_cbranch_scc0 L_noft
    buffer_load_dword v{vDUM}, v{vFA}, s[{sWS}:{sWS+3}], 0 offen sc1
L_noft:
    s_lshl_b32 s{sT1}, s{sJ}, 2
    s_add_u32 s{sT1}, s{sT1}, s{sWV}
    s_lshl_b32 s{sT1}, s{sT1}, 3
    s_add_u32 s{sOWNF}, s{sT0}, s{sT1}
    v_min_u32 v{vT0}, 12, v{vL}
    v_lshlrev_b32 v{vT0}, 3, v{vT0}
    s_add_u32 s{sT0}, s{sCB}, 128
    v_add_u32 v{vHA}, s{sT0}, v{vT0}
""")
    srd(sOUT, 46, XLAYER)
    a(f"""
    s_lshl_b32 s{sT0}, s{sRB}, 6
    s_lshl_b32 s{sT1}, s{sMH}, 5
    s_add_u32 s{sT0}, s{sT0}, s{sT1}
    s_mul_i32 s{sT0}, s{sT0}, {ROWB}
    s_lshl_b32 s{sT1}, s{sJ}, 7
    s_add_u32 s{sT0}, s{sT0}, s{sT1}
    s_lshl_b32 s{sT1}, s{sKH}, 6
    s_add_u32 s{sT0}, s{sT0}, s{sT1}
    v_and_b32 v{vT0}, 31, v{vL}
    v_mul_u32_u24 v{vT0}, {ROWB}, v{vT0}
    v_lshrrev_b32 v{vT1}, 5, v{vL}
    v_lshl_add_u32 v{vT0}, v{vT1}, 4, v{vT0}
    v_add_u32 v{vOUT}, s{sT0}, v{vT0}
    v_lshlrev_b32 v{vXO}, 4, v{vL}
    v_add_u32 v{vXO+1}, 0x1000, v{vXO}
    v_add_u32 v{vXO+2}, 0x2000, v{vXO}
    v_add_u32 v{vXO+3}, 0x3000, v{vXO}
    s_mul_i32 s{sT0}, s{sRB}, {XRB}
    s_mul_i32 s{sT1}, s{sMH}, {XMH}
    s_add_u32 s{sT0}, s{sT0}, s{sT1}
    s_add_u32 s{sT0}, s{sT0}, {XBUF}
    s_lshl_b32 s{sT1}, s{sJ}, 2
    s_lshl_b32 s{sT2}, s{sKH}, 1
    s_add_u32 s{sT1}, s{sT1}, s{sT2}
    s_lshl_b32 s{sT1}, s{sT1}, 10
    s_add_u32 s{sXST}, s{sT0}, s{sT1}
""")
    if not c.helpers:
        a(f"""
    v_and_b32 v{vT1}, 15, v{vL}
    v_lshlrev_b32 v{vT1}, 7, v{vT1}
    v_bfe_u32 v{vT2}, v{vL}, 4, 1
    v_mul_u32_u24 v{vT2}, {XBUF >> 8}, v{vT2}
    v_lshl_add_u32 v{vT1}, v{vT2}, 8, v{vT1}
    s_sub_u32 s{sT3}, s{sXST}, {XBUF}
    buffer_load_dword v{vDUM}, v{vT1}, s[{sWS}:{sWS+3}], s{sT3} offen sc1
""")
    a(f"""
    s_mul_i32 s{sT1}, s{sKH}, 26
    s_add_u32 s{sT2}, s{sT1}, s{sROT}
    s_lshl_b32 s{sT2}, s{sT2}, 10
    s_add_u32 s{sXA}, s{sT0}, s{sT2}
    s_add_u32 s{sT2}, s{sT1}, 13
    s_sub_u32 s{sT2}, s{sT2}, s{sROT}
    s_lshl_b32 s{sT2}, s{sT2}, 10
    s_add_u32 s{sXB}, s{sT0}, s{sT2}
    s_mov_b32 s{sXD}, {-XBUF & 0xffffffff}
    s_mov_b32 s{sXD2}, {-XBUF & 0xffffffff}
    ; ---- W prefix bookkeeping for layer 1 (loaded at the end of layer 0)
    s_mul_i32 s{sT0}, s{sKH}, 416
    s_lshl_b32 s{sT1}, s{sROT}, 4
    s_add_u32 s{sT0}, s{sT0}, s{sT1}
    s_lshl_b32 s{sT1}, s{sMH}, 3
    s_add_u32 s{sT0}, s{sT0}, s{sT1}
    s_mul_i32 s{sWP}, s{sT0}, {ROWB}
    s_add_u32 s{sWP}, s{sWP}, {c.wstride}
    s_mul_i32 s{sMP}, s{sKH}, {P*2048}
    s_lshl_b32 s{sT1}, s{sMH}, 10
    s_add_u32 s{sMP}, s{sMP}, s{sT1}
    s_add_u32 s{sMP}, s{sMP}, {PRE1}
    s_mov_b32 s{sPD}, {PREPAR}
    v_lshrrev_b32 v{vT0}, 5, v{vL}            ; h
    v_lshlrev_b32 v{vT0}, 2, v{vT0}
    v_bfe_u32 v{vT1}, v{vL}, 2, 2             ; r
    v_add_u32 v{vT0}, v{vT0}, v{vT1}
    v_lshlrev_b32 v{vT0}, 7, v{vT0}           ; row*128
    v_bfe_u32 v{vT1}, v{vL}, 4, 1             ; nb
    v_lshlrev_b32 v{vT1}, 1, v{vT1}
    v_bfe_u32 v{vT2}, v{vL}, 1, 1             ; c>>1
    v_add_u32 v{vT1}, v{vT1}, v{vT2}
    v_bfe_u32 v{vT2}, v{vL}, 3, 1             ; (r>>1)&1
    v_lshlrev_b32 v{vT2}, 2, v{vT2}
    v_xor_b32 v{vT1}, v{vT1}, v{vT2}
    v_lshlrev_b32 v{vT1}, 4, v{vT1}
    v_add_u32 v{vT0}, v{vT0}, v{vT1}
    v_and_b32 v{vT1}, 1, v{vL}
    v_lshlrev_b32 v{vT1}, 3, v{vT1}
    v_add_u32 v{vT0}, v{vT0}, v{vT1}
    s_lshl_b32 s{sT0}, s{sKH}, 6
    v_xor_b32 v{vT1}, s{sT0}, v{vT0}          ; keep
    v_xor_b32 v{vT2}, 64, v{vT1}              ; send
    s_mul_i32 s{sT0}, s{sKH}, {P*2048}
    v_add_u32 v{vAPK}, s{sT0}, v{vT1}
    v_add_u32 v{vAPS}, s{sT0}, v{vT2}
    s_mul_i32 s{sT0}, s{sKH}, {KHS}
    s_add_u32 s{sT0}, s{sT0}, {SUF}
    v_add_u32 v{vASK}, s{sT0}, v{vT1}
    v_add_u32 v{vASS}, s{sT0}, v{vT2}
    s_lshl_b32 s{sT0}, s{sWV}, 12
    s_add_u32 s{sT0}, s{sT0}, {RED}
    v_add_u32 v{vRW}, s{sT0}, v{vXO}
    s_xor_b32 s{sT1}, s{sWV}, 2
    s_lshl_b32 s{sT1}, s{sT1}, 12
    s_add_u32 s{sT1}, s{sT1}, {RED}
    v_add_u32 v{vRR}, s{sT1}, v{vXO}
    v_lshrrev_b32 v{vT0}, 5, v{vL}
    v_lshlrev_b32 v{vT3}, 3, v{vT0}           ; h*8
    v_and_b32 v{vT0}, 31, v{vL}               ; m
    v_lshrrev_b32 v{vT1}, 3, v{vT0}
    v_lshlrev_b32 v{vT1}, 10, v{vT1}          ; rg*1024
    v_and_b32 v{vT2}, 7, v{vT0}
    v_lshl_add_u32 v{vT1}, v{vT2}, 7, v{vT1}  ; + row8*128
    v_bfe_u32 v{vT2}, v{vT0}, 1, 3            ; f(m)
    s_cmp_ge_u32 s{sJ}, 7
    s_cselect_b32 s{sT0}, 1, 0
    s_mul_i32 s{sT1}, s{sT0}, 6
    s_sub_u32 s{sT1}, s{sJ}, s{sT1}
    s_lshl_b32 s{sT1}, s{sT1}, 12
    s_lshl_b32 s{sT0}, s{sT0}, 1
    s_add_u32 s{sT0}, s{sT0}, s{sMH}
    s_mul_i32 s{sT0}, s{sT0}, 28672
    s_add_u32 s{sT0}, s{sT0}, s{sT1}
    s_add_u32 s{sT0}, s{sT0}, {XS}
    s_lshl_b32 s{sT1}, s{sKH}, 2
    v_add3_u32 v{vT3}, v{vT3}, v{vT1}, s{sT0}
    v_xor_b32 v{vT0}, s{sT1}, v{vT2}          ; (4*nh) ^ f(m)
""")
    for q in range(4):
        a(f"    v_xor_b32 v{vPART+8+q}, {q}, v{vT0}")
        a(f"    v_lshl_add_u32 v{vPART+8+q}, v{vPART+8+q}, 4, v{vT3}")
    a(f"""
    v_lshrrev_b32 v{vT0}, 5, v{vL}
    v_xor_b32 v{vT2}, v{vT2}, v{vT0}          ; f(m) ^ h
    s_mul_i32 s{sT3}, s{sWV}, 28672
    s_add_u32 s{sT3}, s{sT3}, {XS}
    s_mul_i32 s{sI}, s{sKH}, 26
    s_mul_i32 s{sM}, s{sKH}, 6
""")
    for seg in range(2):
        if seg == 0:
            a(f"    s_add_u32 s{sG}, s{sI}, s{sROT}")
        else:
            a(f"    s_add_u32 s{sG}, s{sI}, 13")
            a(f"    s_sub_u32 s{sG}, s{sG}, s{sROT}")
        for x in range(4):
            r = vPART + seg * 4 + x
            a(f"    s_add_u32 s{sT0}, s{sG}, {x}")
            a(f"    s_and_b32 s{sT1}, s{sT0}, 3")
            a(f"    s_lshl_b32 s{sT1}, s{sT1}, 1")
            a(f"    s_lshr_b32 s{sT0}, s{sT0}, 2")
            a(f"    s_sub_u32 s{sT0}, s{sT0}, s{sM}")
            a(f"    s_lshl_b32 s{sT0}, s{sT0}, 12")
            a(f"    s_add_u32 s{sT0}, s{sT0}, s{sT3}")
            a(f"    v_xor_b32 v{r}, s{sT1}, v{vT2}")
            a(f"    v_lshl_add_u32 v{r}, v{r}, 4, v{vT1}")
            a(f"    v_add_u32 v{r}, s{sT0}, v{r}")
    a(f"""
    s_waitcnt lgkmcnt(0)
    s_add_u32 s{sTA}, s{sE}, 1
    s_addc_u32 s{sTA+1}, s{sE+1}, 0
    s_add_u32 s{sTB}, s{sE}, 2
    s_addc_u32 s{sTB+1}, s{sE+1}, 0
    s_cmp_eq_u32 s{sWV}, 0
    s_cbranch_scc0 L_nohello
    s_add_u32 s{sT0}, s{sE}, 8
    s_addc_u32 s{sT1}, s{sE+1}, 0
    s_lshl_b32 s{sT2}, s{sXCC}, 28
    s_xor_b32 s{sT1}, s{sT1}, s{sT2}
    v_mov_b32 v{vPOLL}, s{sT0}
    v_mov_b32 v{vPOLL+1}, s{sT1}
    s_lshl_b32 s{sT2}, s{sJ}, 3
    s_add_u32 s{sT2}, s{sT2}, s{sCB}
    s_add_u32 s{sT2}, s{sT2}, 128
    s_mov_b64 exec, 1
    buffer_store_dwordx2 v[{vPOLL}:{vPOLL+1}], off, s[{sWS}:{sWS+3}], s{sT2} sc1
    s_mov_b64 exec, -1
L_nohello:
""")
    if c.w0assist:
        a(f"""
    s_mul_i32 s{sT0}, s{sKH}, 416
    s_lshl_b32 s{sT1}, s{sROT}, 4
    s_add_u32 s{sT0}, s{sT0}, s{sT1}
    s_mul_i32 s{sT1}, s{sMH}, 14
    s_add_u32 s{sT0}, s{sT0}, s{sT1}
    s_add_u32 s{sT0}, s{sT0}, {P * 16}
    s_mul_i32 s{sT0}, s{sT0}, {ROWB}
    s_lshl_b32 s{sT1}, s{sJ}, 7
    s_add_u32 s{sT0}, s{sT0}, s{sT1}
    s_add_u32 s44, s42, s{sT0}
    s_addc_u32 s45, s43, 0
""")
        for n_ in range(14):
            if n_ == 7: a("    s_waitcnt lgkmcnt(0)")
            a(f"    s_load_dwordx2 s[{20+2*(n_%2)}:{21+2*(n_%2)}], s[44:45], {n_*ROWB + 60}")
    elif c.vwarm:
        nrows = c.SV * 16
        per_rb = nrows // 4
        a(f"""
    s_lshr_b32 s{sT0}, s{sRB}, 2
    s_mul_i32 s{sT0}, s{sT0}, 208
    s_and_b32 s{sT1}, s{sRB}, 3
    s_mul_i32 s{sT1}, s{sT1}, {per_rb}
    s_add_u32 s{sT0}, s{sT0}, s{sT1}
    s_mul_i32 s{sT1}, s{sWV}, {per_rb // 4}
    s_add_u32 s{sT0}, s{sT0}, s{sT1}
    s_mul_i32 s{sT0}, s{sT0}, {ROWB}
    s_lshl_b32 s{sT1}, s{sJ}, 7
    s_add_u32 s{sT0}, s{sT0}, s{sT1}
    s_add_u32 s{sT0}, s{sT0}, {c.wstride}
    s_add_u32 s44, s42, s{sT0}
    s_addc_u32 s45, s43, 0
""")
        nper = per_rb // 4
        vw = [(l, r) for l in range(1, 6) for r in range(nper)][:14]
        def vwarm_batch(k):
            cur = None
            for n_, (l, r) in enumerate(vw[7*k:7*k+7]):
                if cur != l:
                    a(f"    s_add_u32 s46, s44, {(l-1) * c.wstride}")
                    a(f"    s_addc_u32 s47, s45, 0")
                    cur = l
                a(f"    s_load_dwordx2 s[{20+2*(n_%2)}:{21+2*(n_%2)}], s[46:47], {r*ROWB + 60}")
        vwarm_batch(0)
    stamp()
    a("    s_barrier                                 ; B_x: staged x0, prefix(0) and biases have landed")
    stamp()
    for q in range(4):
        a(f"    ds_read_b64 v[{vP+2*q}:{vP+2*q+1}], v{vPART+8+q}")
    for i in range(26):
        seg, ii = (0, i) if i < 13 else (1, i - 13)
        a(f"    ds_read_b128 v[{vXF+4*i}:{vXF+4*i+3}], v{vPART + seg*4 + (ii & 3)} offset:{(ii >> 2) * 4096}")
        if i in (9, 17):
            a("    s_waitcnt lgkmcnt(6)")
    a("    s_waitcnt lgkmcnt(0)")
    a("    s_barrier")
    if c.vwarm and not c.w0assist: vwarm_batch(1)
    stamp()
    for d in range(8):
        a(f"    v_lshlrev_b32 v{vX0F+2*d}, 16, v{vP+d}")
        a(f"    v_and_b32 v{vX0F+2*d+1}, 0xffff0000, v{vP+d}")
    bias_spread()
    bias_unpack()
    for r in range(16):
        a(f"    v_mov_b32 v{vXR+r}, v{vX0F+r}")
    a(f"    s_mov_b32 s{sL}, 0")
    a("    s_barrier                                 ; B_p: prefix of layer 0 has landed")
    stamp()

    def xload(i):
        if c.no_x:
            a("    s_nop 0"); return
        seg = sXA if i < 13 else sXB
        ii = i % 13
        a(f"    buffer_load_dwordx4 v[{vXF+4*i}:{vXF+4*i+3}], v{vXO+(ii>>2)}, s[{sWS}:{sWS+3}], s{seg} offen offset:{(ii&3)*1024} sc1")
    def rd(i, which):
        if c.no_w: return
        st = vWF + 8 * (i % nsets)
        if i < P: k, s_, off = vAPK, vAPS, i * 2048
        else: k, s_, off = vASK, vASS, (i - P) * 2048
        if which == "s":
            a(f"    ds_read_b64_tr_b16 v[{st}:{st+1}], v{s_} offset:{off}")
            a(f"    ds_read_b64_tr_b16 v[{st+2}:{st+3}], v{s_} offset:{off+1024}")
        else:
            a(f"    ds_read_b64_tr_b16 v[{st+4}:{st+5}], v{k} offset:{off}")
            a(f"    ds_read_b64_tr_b16 v[{st+6}:{st+7}], v{k} offset:{off+1024}")
    def pref_sched(i):
        if c.presched == "spread":
            t = i - (26 - P)
            return [t] if 0 <= t < P else []
        k = i - (26 - D)
        if k < 0: return []
        per_ = -(-P // D)
        return [t for t in range(k * per_, min(P, (k + 1) * per_))]
    def kloop(first):
        ops = []
        if first:
            for i in range(PF):
                rd(i, "s"); rd(i, "k")
        else:
            xload(0); ops.append(("x", 0))
            rd(0, "s"); rd(0, "k")
            xload(1); ops.append(("x", 1))
            rd(1, "s"); rd(1, "k")
            nrest = D - 2
            cuts = [8 * k // nrest for k in range(nrest + 1)]
            for k in range(nrest):
                bias_unpack(cuts[k], cuts[k + 1])
                xload(2 + k); ops.append(("x", 2 + k))
        bars = [P, 13, 20] if first else [P]
        assert P < 13
        marks = [0, 1, 2, 4, 8, 12, 16, 20, 25]
        for i in range(26):
            a(f"    ; ---- step {i}")
            if TS == 4 and not first and i in marks:
                a(f"    s_memtime s[{80 + 2*marks.index(i)}:{81 + 2*marks.index(i)}]")
            young = sum(4 for t in range(i + 1, min(i + PF - 1, 25) + 1))
            if first:
                a(f"    s_waitcnt lgkmcnt({young})")
            else:
                nv = len(ops) - 1 - ops.index(("x", i))
                a(f"    s_waitcnt vmcnt({nv}) lgkmcnt({young})")
            st = vWF + 8 * (i % nsets)
            xf = vXF + 4 * i
            cs = "0" if i == 0 else f"v[{vAS}:{vAS+15}]"
            a(f"    v_mfma_f32_32x32x16_bf16 v[{vAS}:{vAS+15}], v[{st}:{st+3}], v[{xf}:{xf+3}], {cs}")
            if i + PF in bars:
                a("    s_barrier")
            if first and i == c.hello_step and c.hello_by != 'loader':
                a(f"    buffer_load_dwordx2 v[{vPOLL}:{vPOLL+1}], v{vHA}, s[{sWS}:{sWS+3}], 0 offen sc1")
            if not first and i + D < 26:
                xload(i + D); ops.append(("x", i + D))
            if c.pre_by == "loader":
                if i == c.mid_step: a("    s_barrier                                 ; B_mid: the x loads are all issued")
                if i == c.prog_step and c.prog_at == "mid":
                    lab = "L_noprogA" if first else "L_noprogB"
                    a(f"""    s_or_b32 s{sT0}, s{sJ}, s{sWV}
    s_cmp_eq_u32 s{sT0}, 0
    s_cbranch_scc0 {lab}
    v_mov_b32 v{vPOL2}, s{sTA}
    v_mov_b32 v{vPOL2+1}, s{sTA+1}
    s_add_u32 s{sT0}, s{sCB}, 3072
    buffer_store_dwordx2 v[{vPOL2}:{vPOL2+1}], off, s[{sWS}:{sWS+3}], s{sT0}
{lab}:""")
            else:
                for t in ([] if c.no_pre else pref_sched(i)):
                    a(f"    s_add_u32 m0, s{sMP}, {t*2048}")
                    a(f"    s_add_u32 s{sT0}, s{sWP}, {t*26624}")
                    a(f"    buffer_load_dwordx4 v{vDMA}, s[{sW}:{sW+3}], s{sT0} offen lds")
                    ops.append(("w", t))
            if i + PF < 26: rd(i + PF, "s")
            a(f"    v_mfma_f32_32x32x16_bf16 v[{vAK}:{vAK+15}], v[{st+4}:{st+7}], v[{xf}:{xf+3}], v[{vAK}:{vAK+15}]")
            if i + PF < 26: rd(i + PF, "k")
        return len([o for o in ops if o[0] == "w"])
    npre = kloop(True)
    if c.hello_by == "loader":
        a(f"""    v_mov_b32 v{vT0}, {MODEW}
    ds_read_b32 v{vT1}, v{vT0}
    s_waitcnt lgkmcnt(0)
    v_readfirstlane_b32 s{sMODE}, v{vT1}""")
        a(f"""
    s_cmp_eq_u32 s{sMODE}, 0
    s_cbranch_scc1 L_hello_slow
    s_and_b32 s{sMODE}, s{sMODE}, {0 if c.force_slow else 1}
    s_branch L_tail
L_hello_slow:
    buffer_load_dwordx2 v[{vPOLL}:{vPOLL+1}], v{vHA}, s[{sWS}:{sWS+3}], 0 offen sc1""")
    a(f"""
    s_add_u32 s{sT0}, s{sE}, 8
    s_addc_u32 s{sT1}, s{sE+1}, 0
    s_mov_b32 s{sSPIN}, 0
    s_waitcnt vmcnt({0 if c.hello_by == "loader" else npre})
    s_and_b32 s{sT2}, s{sT1}, 0x0fffffff
    s_lshl_b32 s{sT3}, s{sXCC}, 28
    s_xor_b32 s{sT3}, s{sT1}, s{sT3}
L_hello:
    v_and_b32 v{vT0}, 0x0fffffff, v{vPOLL+1}
    v_cmp_eq_u32 vcc, s{sT0}, v{vPOLL}
    v_cmp_eq_u32 s[{sMK}:{sMK+1}], s{sT2}, v{vT0}
    s_and_b64 vcc, vcc, s[{sMK}:{sMK+1}]
    s_cmp_eq_u64 vcc, -1
    s_cbranch_scc1 L_hello_ok
    s_add_u32 s{sSPIN}, s{sSPIN}, 1
    s_cmp_gt_u32 s{sSPIN}, {c.spin_max}
    s_cbranch_scc1 L_end
    buffer_load_dwordx2 v[{vPOLL}:{vPOLL+1}], v{vHA}, s[{sWS}:{sWS+3}], 0 offen sc1
    s_waitcnt vmcnt(0)
    s_branch L_hello
L_hello_ok:
    v_cmp_eq_u32 vcc, s{sT3}, v{vPOLL+1}
    s_cmp_eq_u64 vcc, -1
    s_cselect_b32 s{sMODE}, {0 if c.force_slow else 1}, 0
    s_branch L_tail
""")
    assert sT1 == sT0 + 1 and sT0 % 2 == 0
    a("L_layer:")
    stamp(1)
    a("    s_barrier                                 ; B_a")
    stamp()
    kloop(False)
    if TS == 4:
        a("    s_memtime s[98:99]")
        a("    s_waitcnt lgkmcnt(0)")
        for k in range(10):
            a(f"    s_mov_b32 m0, s{sTSI}")
            a(f"    s_nop 0")
            a(f"    v_writelane_b32 v{vTS}, s{80+2*k}, m0")
            a(f"    s_add_u32 s{sTSI}, s{sTSI}, 1")
    a("L_tail:")
    if TS in (2, 3):
        a("    s_nop 15")
        stamp()
    a(f"    v_mov_b32 v{vFV}, s{sTA}")
    a(f"    v_mov_b32 v{vFV+1}, s{sTA+1}")
    a("    s_nop 8")
    for q in range(4):
        a(f"    ds_write_b128 v{vRW}, v[{vAS+4*q}:{vAS+4*q+3}] offset:{q*1024}")
    a("    s_waitcnt lgkmcnt(0)")
    a("    s_barrier                                 ; B2")
    stamp(3)
    for q in range(4):
        a(f"    ds_read_b128 v[{vPART+4*q}:{vPART+4*q+3}], v{vRR} offset:{q*1024}")
    def epi(q):
        a(f"    s_waitcnt lgkmcnt({3-q})")
        for p in range(2):
            r = 4 * q + 2 * p
            a(f"    v_pk_add_f32 v[{vAK+r}:{vAK+r+1}], v[{vAK+r}:{vAK+r+1}], v[{vPART+r}:{vPART+r+1}]")
        for p in range(2):
            r = 4 * q + 2 * p
            a(f"    v_pk_fma_f32 v[{vAK+r}:{vAK+r+1}], v[{vX0F+r}:{vX0F+r+1}], v[{vAK+r}:{vAK+r+1}], v[{vXR+r}:{vXR+r+1}]")
        for p in range(2):
            r = 4 * q + 2 * p
            a(f"    v_cvt_pk_bf16_f32 v{vP+2*q+p}, v{vAK+r}, v{vAK+r+1}")
    a(f"""
    s_cmp_eq_u32 s{sL}, 5
    s_cbranch_scc1 L_final
    s_cmp_eq_u32 s{sMODE}, 0
    s_cbranch_scc1 L_st_slow
""")
    epi(0); epi(1)
    a(f"    buffer_store_dwordx4 v[{vP}:{vP+3}], v{vXO}, s[{sWS}:{sWS+3}], s{sXST} offen")
    epi(2); epi(3)
    a(f"    buffer_store_dwordx4 v[{vP+4}:{vP+7}], v{vXO}, s[{sWS}:{sWS+3}], s{sXST} offen offset:1024")
    if c.phased: a("    s_barrier                                 ; B_s")
    stamp(3)
    def unpack_res():
        for d in range(8):
            a(f"    v_lshlrev_b32 v{vXR+2*d}, 16, v{vP+d}")
            a(f"    v_and_b32 v{vXR+2*d+1}, 0xffff0000, v{vP+d}")
    bias_load()
    unpack_res()
    a(f"""
    s_waitcnt vmcnt(0)
    buffer_store_dwordx2 v[{vFV}:{vFV+1}], off, s[{sWS}:{sWS+3}], s{sOWNF}
    s_branch L_st_done
L_st_slow:
""")
    epi(0); epi(1); epi(2); epi(3)
    a(f"""
    buffer_store_dwordx4 v[{vP}:{vP+3}], v{vXO}, s[{sWS}:{sWS+3}], s{sXST} offen sc1
    buffer_store_dwordx4 v[{vP+4}:{vP+7}], v{vXO}, s[{sWS}:{sWS+3}], s{sXST} offen offset:1024 sc1
""")
    if c.phased: a("    s_barrier                                 ; B_s")
    stamp(3)
    bias_load()
    unpack_res()
    a(f"""
    s_waitcnt vmcnt(0)
    buffer_store_dwordx2 v[{vFV}:{vFV+1}], off, s[{sWS}:{sWS+3}], s{sOWNF} sc1
L_st_done:
""")
    stamp()
    if c.onepoll:
        a(f"""
    s_cmp_eq_u32 s{sWV}, 0
    s_cbranch_scc0 L_nopoll1""")
    a(f"""
    buffer_load_dwordx2 v[{vPOLL}:{vPOLL+1}], v{vFA}, s[{sWS}:{sWS+3}], 0 offen sc1
L_nopoll1:
    {"s_barrier                                 ; B_f" if c.phased else ""}
""")
    def progress(lab):
        a(f"""    s_or_b32 s{sT0}, s{sJ}, s{sWV}
    s_cmp_eq_u32 s{sT0}, 0
    s_cbranch_scc0 {lab}
    s_add_u32 s{sT0}, s{sCB}, 3072
    buffer_store_dwordx2 v[{vFV}:{vFV+1}], off, s[{sWS}:{sWS+3}], s{sT0}
{lab}:""")
    if c.prog_at == "end": progress("L_noprog")
    a(f"""
    s_add_u32 s{sL}, s{sL}, 1
    s_cmp_eq_u32 s{sL}, 1
    s_cbranch_scc1 L_keep_xa
    s_add_u32 s{sXA}, s{sXA}, s{sXD}
    s_add_u32 s{sXB}, s{sXB}, s{sXD}
    s_sub_u32 s{sXD}, 0, s{sXD}
L_keep_xa:
    s_add_u32 s{sXST}, s{sXST}, s{sXD2}
    s_sub_u32 s{sXD2}, 0, s{sXD2}
    s_add_u32 s{sWP}, s{sWP}, {c.wstride}
    s_sub_u32 s{sMP}, s{sMP}, s{sPD}
    v_add_u32 v{vAPK}, s{sPD}, v{vAPK}
    v_add_u32 v{vAPS}, s{sPD}, v{vAPS}
    s_sub_u32 s{sPD}, 0, s{sPD}
    s_mov_b32 s{sSPIN}, 0
""")
    a("    s_waitcnt lgkmcnt(0)")
    bias_spread()
    if c.onepoll:
        a(f"""
    s_cmp_eq_u32 s{sWV}, 0
    s_cbranch_scc0 L_ready""")
    if c.poll2:
        a(f"""L_poll:
    buffer_load_dwordx2 v[{vPOL2}:{vPOL2+1}], v{vFA}, s[{sWS}:{sWS+3}], 0 offen sc1
    s_waitcnt vmcnt(1)
    v_cmp_eq_u64 vcc, s[{sTA}:{sTA+1}], v[{vPOLL}:{vPOLL+1}]
    v_cmp_eq_u64 s[{sMK}:{sMK+1}], s[{sTB}:{sTB+1}], v[{vPOLL}:{vPOLL+1}]
    s_or_b64 vcc, vcc, s[{sMK}:{sMK+1}]
    s_cmp_eq_u64 vcc, -1
    s_cbranch_scc1 L_ready
    buffer_load_dwordx2 v[{vPOLL}:{vPOLL+1}], v{vFA}, s[{sWS}:{sWS+3}], 0 offen sc1
    s_waitcnt vmcnt(1)
    v_cmp_eq_u64 vcc, s[{sTA}:{sTA+1}], v[{vPOL2}:{vPOL2+1}]
    v_cmp_eq_u64 s[{sMK}:{sMK+1}], s[{sTB}:{sTB+1}], v[{vPOL2}:{vPOL2+1}]
    s_or_b64 vcc, vcc, s[{sMK}:{sMK+1}]
    s_cmp_eq_u64 vcc, -1
    s_cbranch_scc1 L_ready
    s_add_u32 s{sSPIN}, s{sSPIN}, 1
    s_cmp_gt_u32 s{sSPIN}, {c.spin_max}
    s_cbranch_scc0 L_poll
    s_endpgm
""")
    else:
        a(f"""L_poll:
    s_waitcnt vmcnt(0)
    v_cmp_eq_u64 vcc, s[{sTA}:{sTA+1}], v[{vPOLL}:{vPOLL+1}]
    v_cmp_eq_u64 s[{sMK}:{sMK+1}], s[{sTB}:{sTB+1}], v[{vPOLL}:{vPOLL+1}]
    s_or_b64 vcc, vcc, s[{sMK}:{sMK+1}]
    s_cmp_eq_u64 vcc, -1
    s_cbranch_scc1 L_ready
    buffer_load_dwordx2 v[{vPOLL}:{vPOLL+1}], v{vFA}, s[{sWS}:{sWS+3}], 0 offen sc1
    s_add_u32 s{sSPIN}, s{sSPIN}, 1
    s_cmp_gt_u32 s{sSPIN}, {c.spin_max}
    s_cbranch_scc0 L_poll
    s_endpgm
""")
    a(f"""L_ready:
    s_add_u32 s{sTA}, s{sTA}, 1
    s_addc_u32 s{sTA+1}, s{sTA+1}, 0
    s_add_u32 s{sTB}, s{sTB}, 1
    s_addc_u32 s{sTB+1}, s{sTB+1}, 0
    s_branch L_layer
L_final:
""")
    epi(0); epi(1); epi(2); epi(3)
    a(f"""
    s_nop 1
    v_permlane32_swap_b32 v{vP}, v{vP+2}
    v_permlane32_swap_b32 v{vP+1}, v{vP+3}
    v_permlane32_swap_b32 v{vP+4}, v{vP+6}
    v_permlane32_swap_b32 v{vP+5}, v{vP+7}
    buffer_store_dwordx4 v[{vP}:{vP+3}], v{vOUT}, s[{sOUT}:{sOUT+3}], 0 offen
    buffer_store_dwordx4 v[{vP+4}:{vP+7}], v{vOUT}, s[{sOUT}:{sOUT+3}], 0 offen offset:32
    s_or_b32 s{sT0}, s{sJ}, s{sWV}
    s_cmp_eq_u32 s{sT0}, 0
    s_cbranch_scc0 L_noepoch
    s_add_u32 s{sT0}, s{sE}, 16
    s_addc_u32 s{sT1}, s{sE+1}, 0
    v_mov_b32 v{vFV}, s{sT0}
    v_mov_b32 v{vFV+1}, s{sT1}
    s_mov_b64 exec, 1
    buffer_store_dwordx2 v[{vFV}:{vFV+1}], off, s[{sWS}:{sWS+3}], s{sCB} sc1
    s_mov_b64 exec, -1
L_noepoch:
""")
    if c.exp_delay or c.exp_rt:
        ins = "s_memtime" if c.exp_delay else "s_memrealtime"
        a(f"""
    {ins} s[80:81]
    s_waitcnt lgkmcnt(0)
L_expd:
    {ins} s[82:83]
    s_waitcnt lgkmcnt(0)
    s_sub_u32 s82, s82, s80
    s_cmp_lt_u32 s82, {c.exp_delay or c.exp_rt}
    s_cbranch_scc1 L_expd
""")
    stamp(1); dump_ts()
    a("    s_endpgm")

    if c.helpers:
        HPR = (c.SV * 16 + (2 * NSR if c.sp else 0)) if c.hp is None else c.hp * 16
        HP = HPR // 16
        nrow = 208 - HPR
        nline = nrow * 13
        tot = 4 * nline
        nins = (tot + 63) // 64
        cdelta = HPR * ROWB
        NK = -(-nins // 48)
        HF = 1 if ((c.h0 == 'prefix' or c.w0assist) and c.hfirst == 0) else c.hfirst
        a(f"""
L_helper:
    s_sub_u32 s{sT0}, s2, 208
    s_and_b32 s{sT1}, s{sT0}, 7
    s_lshr_b32 s{sT0}, s{sT0}, 3
    s_lshl_b32 s{sT0}, s{sT0}, 3
    s_add_u32 s{sT0}, s{sT0}, s{sWV}          ; g = 0..47
    s_lshl_b32 s{sCB}, s{sT1}, 13
    s_add_u32 s{sCB}, s{sCB}, {CTRL}
    s_load_dwordx2 s[{sE}:{sE+1}], s[50:51], s{sCB}
    s_add_u32 s{sOWNF}, s{sCB}, 3072
    s_mul_i32 s{sG}, s{sT1}, {2*XRB}
    s_lshl_b32 s{sI}, s{sT0}, 13
    s_add_u32 s{sG}, s{sG}, s{sI}
    v_lshlrev_b32 v19, 7, v{vL}
    v_add_u32 v19, s{sG}, v19
    s_cmp_lt_u32 s{sT0}, {-(-2*XRB // 8192)}
    s_cselect_b32 s{sM}, 1, 0
""")
        def lane_addr(vdst, nline_, base0, delta):
            tot_ = 4 * nline_
            a(f"""
    s_lshl_b32 s{sI}, s{sI}, 6
    v_add_u32 v{vT0}, s{sI}, v{vL}
    v_mov_b32 v{vT1}, {base0}
    v_cmp_le_u32 vcc, {nline_}, v{vT0}
    v_mov_b32 v{vT2}, 0
    v_mov_b32 v{vT3}, {delta}
    v_cndmask_b32 v{vT2}, v{vT2}, v{vT3}, vcc
    v_add_u32 v{vT1}, v{vT1}, v{vT2}
    v_cmp_le_u32 vcc, {2*nline_}, v{vT0}
    v_mov_b32 v{vT2}, 0
    s_nop 0
    v_cndmask_b32 v{vT2}, v{vT2}, v{vT3}, vcc
    v_add_u32 v{vT1}, v{vT1}, v{vT2}
    v_cmp_le_u32 vcc, {3*nline_}, v{vT0}
    v_mov_b32 v{vT2}, 0
    s_nop 0
    v_cndmask_b32 v{vT2}, v{vT2}, v{vT3}, vcc
    v_add_u32 v{vT1}, v{vT1}, v{vT2}
    v_lshl_add_u32 v{vdst}, v{vT0}, 7, v{vT1}
    v_cmp_le_u32 vcc, {tot_}, v{vT0}
    v_mov_b32 v{vT2}, 0x7ffffff0
    s_nop 0
    v_cndmask_b32 v{vdst}, v{vdst}, v{vT2}, vcc""")
        def need_set(vbase, skip_rows, nrows):
            tot_ = nrows * 52
            nins_ = (tot_ + 63) // 64
            nk = -(-nins_ // 48)
            for k in range(nk):
                a(f"""
    s_add_u32 s{sI}, s{sT0}, {48*k}
    s_lshl_b32 s{sI}, s{sI}, 6
    v_add_u32 v{vT0}, s{sI}, v{vL}
    v_mul_u32_u24 v{vT1}, 80660, v{vT0}
    v_lshrrev_b32 v{vT1}, 22, v{vT1}
    v_mul_u32_u24 v{vT2}, 52, v{vT1}
    v_sub_u32 v{vT2}, v{vT0}, v{vT2}          ; rem
    v_mul_u32_u24 v{vT3}, 5042, v{vT2}
    v_lshrrev_b32 v{vT3}, 16, v{vT3}
    v_mul_u32_u24 v{vbase+k}, 13, v{vT3}
    v_sub_u32 v{vT2}, v{vT2}, v{vbase+k}
    v_mul_u32_u24 v{vT3}, 208, v{vT3}
    v_add_u32 v{vT1}, v{vT1}, v{vT3}
    v_add_u32 v{vT1}, {skip_rows}, v{vT1}     ; row
    v_mul_u32_u24 v{vT1}, {ROWB}, v{vT1}
    v_lshl_add_u32 v{vbase+k}, v{vT2}, 7, v{vT1}
    v_cmp_le_u32 vcc, {tot_}, v{vT0}
    v_mov_b32 v{vT2}, 0x7ffffff0
    s_nop 0
    v_cndmask_b32 v{vbase+k}, v{vbase+k}, v{vT2}, vcc""")
            return nk
        def addr_set(vbase, nline_, base0, delta, tag):
            tot_ = 4 * nline_
            nins_ = (tot_ + 63) // 64
            nk = -(-nins_ // 48)
            a(f"    s_mul_i32 s{sT2}, s{sT1}, {nins_ // 8}")
            for k in range(nk):
                a(f"""
    s_add_u32 s{sT3}, s{sT0}, {48*k}
    s_add_u32 s{sI}, s{sT3}, s{sT2}
    s_cmp_ge_u32 s{sI}, {nins_}
    s_cselect_b32 s{sG}, {nins_}, 0
    s_sub_u32 s{sI}, s{sI}, s{sG}
    s_cmp_ge_u32 s{sT3}, {nins_}
    s_cselect_b32 s{sI}, {nins_ + 8}, s{sI}   ; no k-th instruction -> past the end""")
                lane_addr(vbase + k, nline_, base0, delta)
            return nk
        NK0 = 0
        if c.w0assist and c.hfirst == 0:
            skip0 = P * 16 + 60
            NK0 = addr_set(40, (208 - skip0) * 13, skip0 * ROWB, skip0 * ROWB, "p")
            for k in range(NK0):
                a(f"    buffer_load_dword v{50+k}, v{40+k}, s[{sW}:{sW+3}], 0 offen")
        elif c.h0 == "prefix" and c.hfirst == 0:
            NK0 = addr_set(40, HP * 16 * 13, 0, (13 - HP) * 26624, "p")
            for k in range(NK0):
                a(f"    buffer_load_dword v{50+k}, v{40+k}, s[{sW}:{sW+3}], 0 offen")
        if c.horder == "need": need_set(10, HPR, nrow)
        else: addr_set(10, nline, cdelta, cdelta, "h")
        nshare_l = tot // 8
        NW_ = 14
        if c.hwarm:
            a(f"""
    s_mul_i32 s{sI}, s{sT1}, {nshare_l}
    s_mul_i32 s{sG}, s{sT0}, {NW_}
    s_add_u32 s{sI}, s{sI}, s{sG}
    s_mov_b32 s{sG}, {cdelta}
    s_cmp_ge_u32 s{sI}, {nline}
    s_cselect_b32 s{sT3}, {cdelta}, 0
    s_add_u32 s{sG}, s{sG}, s{sT3}
    s_cmp_ge_u32 s{sI}, {2*nline}
    s_cselect_b32 s{sT3}, {cdelta}, 0
    s_add_u32 s{sG}, s{sG}, s{sT3}
    s_cmp_ge_u32 s{sI}, {3*nline}
    s_cselect_b32 s{sT3}, {cdelta}, 0
    s_add_u32 s{sG}, s{sG}, s{sT3}
    s_lshl_b32 s{sI}, s{sI}, 7
    s_add_u32 s{sI}, s{sI}, s{sG}
    s_add_u32 s{sI}, s{sI}, {c.wstride}
    s_add_u32 s44, s42, s{sI}                 ; layer 1
    s_addc_u32 s45, s43, 0""")
        if NK0 and c.hwarm:
            a("    s_waitcnt lgkmcnt(0)")
            for half in range(2):
                if half: a("    s_waitcnt lgkmcnt(0)")
                for n_ in range(7 * half, 7 * half + 7):
                    a(f"    s_load_dwordx2 s[{76+2*(n_%7)}:{77+2*(n_%7)}], s[44:45], {n_*128 + 60}")
            a(f"    s_add_u32 s44, s44, {c.wstride}")
            a(f"    s_addc_u32 s45, s45, 0")
        if NK0:
            a(f"""
    s_waitcnt vmcnt(0)
    s_barrier
    s_cmp_eq_u32 s{sM}, 1
    s_cbranch_scc0 L_hx1
    s_mov_b32 s{sI}, {XBUF}
    buffer_load_dword v30, v19, s[{sWS}:{sWS+3}], s{sI} offen sc1
L_hx1:
""")
        a(f"""
    v_mov_b32 v20, 0
    s_mov_b32 s{sL}, {HF}
    s_mov_b32 s{sT3}, {HF * c.wstride}
    s_waitcnt lgkmcnt(0)
L_h_layer:
""")
        if c.hpace:
            a(f"""
    s_cmp_lt_u32 s{sL}, {c.hlook}
    s_cbranch_scc1 L_h_go
    s_cmp_eq_u32 s{sWV}, 0
    s_cbranch_scc0 L_h_bar
    s_mov_b32 s{sSPIN}, 0
L_h_poll:
    buffer_load_dwordx2 v[16:17], v20, s[{sWS}:{sWS+3}], s{sOWNF} offen sc1
    s_waitcnt vmcnt(0)
    v_readfirstlane_b32 s{sTA}, v16
    v_readfirstlane_b32 s{sTA+1}, v17
    s_sub_u32 s{sTA}, s{sTA}, s{sE}
    s_subb_u32 s{sTA+1}, s{sTA+1}, s{sE+1}
    s_cmp_eq_u32 s{sTA+1}, 0
    s_cselect_b32 s{sTA}, s{sTA}, 0
    s_cmp_gt_u32 s{sTA}, 6
    s_cselect_b32 s{sTA}, 0, s{sTA}
    s_add_u32 s{sTA}, s{sTA}, {c.hlook - 1}
    s_cmp_ge_u32 s{sTA}, s{sL}
    s_cbranch_scc1 L_h_bar
    s_add_u32 s{sSPIN}, s{sSPIN}, 1
    s_cmp_lt_u32 s{sSPIN}, 32
    s_cbranch_scc1 L_h_poll
L_h_bar:
    s_barrier
L_h_go:
""")
        def hw_batch(k, lab):
            if not c.hwarm: return
            a(f"    s_cmp_lt_u32 s{sL}, 5")
            a(f"    s_cbranch_scc0 {lab}")
            a("    s_waitcnt lgkmcnt(0)")
            for n_ in range(7 * k, 7 * k + 7):
                a(f"    s_load_dwordx2 s[{76+2*(n_%7)}:{77+2*(n_%7)}], s[44:45], {n_*128 + 60}")
            a(f"{lab}:")
        for k in range(NK):
            a(f"    buffer_load_dword v{31+k}, v{10+k}, s[{sW}:{sW+3}], s{sT3} offen")
            if k < 2: hw_batch(k, f"L_hw{k}")
            a(f"    s_waitcnt vmcnt({c.hdepth})")
            a(f"    s_barrier")
        if c.hwarm:
            a(f"    s_add_u32 s44, s44, {c.wstride}")
            a(f"    s_addc_u32 s45, s45, 0")
        a(f"""
    s_sub_u32 s{sI}, s{sL}, {HF}
    s_add_u32 s{sI}, s{sI}, {1 if HF != c.hfirst else 0}
    s_cmp_lt_u32 s{sI}, 2
    s_cbranch_scc0 L_hx0
    s_cmp_eq_u32 s{sM}, 1
    s_cbranch_scc0 L_hx0
    s_cmp_eq_u32 s{sI}, 0
    s_cselect_b32 s{sI}, {XBUF}, 0
    buffer_load_dword v30, v19, s[{sWS}:{sWS+3}], s{sI} offen sc1
L_hx0:
""")
        stamp(1)
        a(f"""
    s_add_u32 s{sL}, s{sL}, 1
    s_add_u32 s{sT3}, s{sT3}, {c.wstride}
    s_cmp_lt_u32 s{sL}, 6
    s_cbranch_scc1 L_h_layer
""")
        a("    s_waitcnt vmcnt(0)")
        stamp(1)
        dump_ts()
    a("L_end:")
    a("    s_endpgm")
    kernel_desc(a, KNAME, NV, sgpr=102, accum=NV)
    txt = a.text().rstrip()
    if txt.endswith(".text"):
        txt = txt[:-5]
    return txt

if __name__ == "__main__":
    import json
    kw = json.loads(sys.argv[2]) if len(sys.argv) > 2 else {}
    open(sys.argv[1], "w").write(gen(**kw))
```

```python
import sys, os
from asmlib import *

KNAME = "standalone__dcn_v2_cross__recsys_kernel"
B_, DIN, L_ = 1024, 832, 6
ROWB = DIN * 2
WLAYER = DIN * DIN * 2
XLAYER = B_ * DIN * 2
XMH = 32 * ROWB
XRB = 2 * XMH
XBUF = 16 * XRB
CTRL = 2 * XBUF
TSOFF = CTRL + 16 * 4096
WS_BYTES = TSOFF + 256 * 8 * 256

class Cfg:
    def __init__(self, **kw):
        self.P = 6
        self.D = 5
        self.PF = 2
        self.SV = 3
        self.SB = 7
        self.NS = 3
        self.sp = True
        self.hp = None
        self.helpers = True
        self.hfirst = 0
        self.hlook = 2
        self.hpace = True
        self.hdepth = 1
        self.lthr = 0
        self.lthr_all = True
        self.sD_late = True
        self.ts = 0
        self.force_slow = False
        self.scramble = False
        self.spin_max = 1 << 20
        self.wstride = WLAYER
        self.prio = 2
        self.hello_step = 19
        self.tlbwarm = True
        self.l0b1 = True
        self.hello_by = 'compute'
        self.pre_first = False
        self.swarm = False
        self.horder = 'linear'
        self.hwarm = True
        self.prog_step = 22
        self.prog_at = 'end'
        self.vwarm = True
        self.pre_by = 'loader'
        self.mid_step = 21
        self.presched = 'pack'
        self.h0 = 'middle'
        self.xtouch = False
        self.w0assist = False
        self.bias_by = 'loader'
        self.exp_delay = 0
        self.exp_rt = 0
        self.poll2 = True
        self.phased = True
        self.n1 = 4
        self.n2 = 4
        self.onepoll = True
        self.no_suf = self.no_pre = self.no_x = self.no_w = False
        self.__dict__.update(kw)

def gen(cfg=None, **kw):
    c = cfg or Cfg(**kw)
    P, D, PF = c.P, c.D, c.PF
    TS = int(c.ts)
    assert P <= 12 and PF <= P and D >= PF + 1
    KHS = (26 - P) * 2048
    PRE0 = 0
    SUF = 2 * P * 2048
    PRE1 = SUF + 2 * KHS
    PREPAR = PRE1 - PRE0
    RED = PRE1 + 2 * P * 2048
    BIAS = RED + 16384
    MODEW = BIAS
    LDS_BYTES = BIAS + 64
    XS = SUF
    assert XS + 4 * 28672 <= BIAS and LDS_BYTES <= 163840
    sW, sWS, sX0, sOUT, sBS = 4, 8, 12, 16, 24
    sRB, sJ, sG2, sWV, sMH, sKH, sL, sXCC, sMODE = 28, 29, 30, 31, 32, 33, 34, 35, 36
    sXA, sXB, sXST = 37, 38, 39
    sWP, sMP, sPD = 52, 53, 54
    sU, sOWNF, sXD2 = 55, 56, 57
    sT0, sT1, sT2, sT3 = 58, 59, 60, 61
    sSPIN, sROT = 62, 63
    sG, sM, sI = 64, 65, 66
    sTSI, sTM = 67, 68
    sXD, sCB = 70, 71
    sE, sTA, sTB, sMK = 72, 74, 76, 78
    sBP_ = 48
    vL = 0
    vT0, vT1, vT2, vT3 = 1, 2, 3, 4
    vDUM = 5
    vXO = 6
    vAPK, vAPS, vASK, vASS = 10, 11, 12, 13
    vDMA, vFA = 14, 15
    vPOLL = 16
    vRW, vRR, vBA, vTS = 20, 21, 22, 23
    vP = 24
    vAK, vAS, vPART, vX0F, vXR = 32, 48, 64, 80, 96
    vWF = 112
    vXF = 136
    vBP = 240
    vOUT, vHA, vFV, vDMA0 = 248, 249, 250, 252
    vPOL2 = 254
    NV = 256
    nsets = PF + 1
    assert nsets * 8 <= 24

    a = Asm()
    a("; 208 worker workgroups = 16 row blocks (64 rows) x 13 column slices (64 columns); waves 0-3 MFMA, waves 4-7 W loaders;")
    a(f"; @launch grid=({256 if c.helpers else 208},1,1) block=(512,1,1) lds={LDS_BYTES}")
    a('.amdgcn_target "amdgcn-amd-amdhsa--gfx950"')
    a(".text")
    kernel_begin(a, KNAME)
    if TS == 5:
        a("    s_memrealtime s[26:27]")
        a("    s_memtime s[100:101]")

    def stamp(level=2):
        if not TS or TS < level or (TS == 4 and level > 1) or TS == 5: return
        a(f"    s_memtime s[{sTM}:{sTM+1}]")
        a(f"    s_waitcnt lgkmcnt(0)")
        a(f"    s_mov_b32 m0, s{sTSI}")
        a(f"    s_nop 0")
        a(f"    v_writelane_b32 v{vTS}, s{sTM}, m0")
        a(f"    s_add_u32 s{sTSI}, s{sTSI}, 1")
    def dump_ts():
        if not TS: return
        if TS == 5:
            a("    s_memrealtime s[80:81]")
            a("    s_memtime s[82:83]")
            a("    s_waitcnt lgkmcnt(0)")
            a(f"    v_writelane_b32 v{vTS}, s26, 0")
            a(f"    v_writelane_b32 v{vTS}, s80, 1")
            a(f"    v_writelane_b32 v{vTS}, s100, 2")
            a(f"    v_writelane_b32 v{vTS}, s82, 3")
        a(f"""
    s_lshl_b32 s{sT0}, s2, 3
    s_add_u32 s{sT0}, s{sT0}, s{sWV}
    s_lshl_b32 s{sT0}, s{sT0}, 8
    s_add_u32 s{sT0}, s{sT0}, {TSOFF}
    v_lshlrev_b32 v{vT0}, 2, v{vL}
    buffer_store_dword v{vTS}, v{vT0}, s[{sWS}:{sWS+3}], s{sT0} offen
""")
    def srd(dst, src, nbytes):
        a(f"    s_mov_b32 s{dst}, s{src}")
        a(f"    s_and_b32 s{dst+1}, s{src+1}, 0xffff")
        a(f"    s_mov_b32 s{dst+2}, {nbytes}")
        a(f"    s_mov_b32 s{dst+3}, 0x20000")

    a(f"""
    s_cmp_ge_u32 s2, {256 if c.helpers else 208}
    s_cbranch_scc1 L_end
    s_load_dwordx4 s[40:43], s[0:1], 0
    s_load_dwordx4 s[44:47], s[0:1], 16
    s_load_dwordx2 s[50:51], s[0:1], 40
    s_getreg_b32 s{sXCC}, hwreg(HW_REG_XCC_ID, 0, 4)
""")
    if c.scramble:
        a(f"""
    s_mul_hi_u32 s{sRB}, s2, 0x13B13B14
    s_mul_i32 s{sT0}, s{sRB}, 13
    s_sub_u32 s{sJ}, s2, s{sT0}
    s_and_b32 s{sG2}, s{sRB}, 1
    s_mul_i32 s{sROT}, s{sG2}, 13""")
    else:
        a(f"""
    s_and_b32 s{sT0}, s2, 7
    s_lshr_b32 s{sT1}, s2, 3
    s_cmp_ge_u32 s{sT1}, 13
    s_cselect_b32 s{sG2}, 1, 0
    s_mul_i32 s{sROT}, s{sG2}, 13
    s_sub_u32 s{sJ}, s{sT1}, s{sROT}
    s_lshl_b32 s{sRB}, s{sT0}, 1
    s_add_u32 s{sRB}, s{sRB}, s{sG2}""")
    a(f"""
    v_lshrrev_b32 v{vT0}, 6, v0
    v_and_b32 v{vL}, 63, v0
    v_readfirstlane_b32 s{sWV}, v{vT0}
    s_mov_b32 s{sTSI}, 0
    v_mov_b32 v{vTS}, 0
    s_lshl_b32 s{sCB}, s{sRB}, 12
    s_add_u32 s{sCB}, s{sCB}, {CTRL}
    s_and_b32 s{sMH}, s{sWV}, 1
    s_bfe_u32 s{sKH}, s{sWV}, 0x10001
    v_lshrrev_b32 v{vT0}, 3, v{vL}            ; row8
    v_and_b32 v{vT1}, 7, v{vL}
    v_bfe_u32 v{vT2}, v{vL}, 4, 1
    v_lshlrev_b32 v{vT2}, 2, v{vT2}
    v_xor_b32 v{vT1}, v{vT1}, v{vT2}
    v_lshlrev_b32 v{vT1}, 4, v{vT1}
    s_lshl_b32 s{sT0}, s{sJ}, 7
    v_add_u32 v{vT1}, s{sT0}, v{vT1}
    v_mul_u32_u24 v{vT2}, {ROWB}, v{vT0}
    v_add_u32 v{vDMA}, v{vT2}, v{vT1}
    v_and_b32 v{vT2}, 3, v{vT0}
    v_lshrrev_b32 v{vT0}, 2, v{vT0}
    v_lshl_add_u32 v{vT0}, v{vT0}, 3, v{vT2}
    v_mul_u32_u24 v{vT0}, {ROWB}, v{vT0}
    v_add_u32 v{vDMA0}, v{vT0}, v{vT1}
    s_waitcnt lgkmcnt(0)
""")
    srd(sX0, 40, XLAYER)
    srd(sW, 42, L_ * WLAYER)
    srd(sWS, 50, WS_BYTES)
    stamp(1)
    if c.helpers:
        a(f"""
    s_cmp_ge_u32 s2, 208
    s_cbranch_scc1 L_helper
""")
    a(f"""
    s_cmp_lt_u32 s{sWV}, 4
    s_cbranch_scc1 L_compute
""")
    def bias_dma(sreg, val, lab):
        a(f"    s_cmp_eq_u32 s{sreg}, {val}")
        a(f"    s_cbranch_scc0 {lab}")
        srd(sBS, 44, L_ * ROWB)
        a(f"""    v_lshrrev_b32 v{vT0}, 5, v{vL}
    v_mul_u32_u24 v{vT0}, {ROWB}, v{vT0}
    v_and_b32 v{vT1}, 31, v{vL}
    v_lshlrev_b32 v{vT1}, 2, v{vT1}
    v_add_u32 v{vT0}, v{vT0}, v{vT1}
    s_lshl_b32 s{sT0}, s{sJ}, 7
    v_add_u32 v{vT0}, s{sT0}, v{vT0}""")
        for t in range(3):
            a(f"    s_mov_b32 m0, {BIAS + 256*t}")
            a(f"    s_mov_b32 s{sT1}, {2*t*ROWB}")
            a(f"    buffer_load_dword v{vT0}, s[{sBS}:{sBS+3}], s{sT1} offen lds")
        a(f"{lab}:")
    vS0, vS1 = vXO, vXO + 1
    sSB = 40
    sWP0 = 98
    SB = c.SB
    NSR = 3 * SB
    def sbatch(k, nextlayer=False):
        if not c.sp: return
        b = sSB + 2 if nextlayer else sSB
        for n_ in range(SB):
            a(f"    s_load_dwordx2 s[{76+2*n_}:{77+2*n_}], s[{b}:{b+1}], {(k * SB + n_) * ROWB + 60}")
    a(f"""
    s_sub_u32 s{sU}, s{sWV}, 4
""")
    if c.xtouch:
        a(f"""
    s_cmp_eq_u32 s{sU}, 0
    s_cbranch_scc0 L_notouch
    s_lshl_b32 s{sT0}, s{sRB}, 6
    s_mul_i32 s{sT0}, s{sT0}, {ROWB}
    s_lshl_b32 s{sT1}, s{sJ}, 7
    s_add_u32 s{sT0}, s{sT0}, s{sT1}
    v_mul_u32_u24 v20, {ROWB}, v{vL}
    s_mov_b32 s20, s{sT0}
    buffer_load_dword v{vDUM}, v20, s[{sX0}:{sX0+3}], s20 offen""")
    a(f"""
L_notouch:
""")
    a(f"""
    s_mul_i32 s{sT0}, s{sKH}, 416
    s_lshl_b32 s{sT1}, s{sMH}, 2
    s_add_u32 s{sT1}, s{sT1}, s{sT0}
    s_mul_i32 s{sT1}, s{sT1}, {ROWB}
    v_add_u32 v{vDMA0}, s{sT1}, v{vDMA0}
    s_lshl_b32 s{sT1}, s{sMH}, 3
    s_add_u32 s{sT1}, s{sT1}, s{sT0}
    s_mul_i32 s{sT1}, s{sT1}, {ROWB}
    v_add_u32 v{vDMA}, s{sT1}, v{vDMA}
    v_lshrrev_b32 v{vT0}, 3, v{vL}            ; row8
    v_and_b32 v{vT1}, 7, v{vL}
    v_lshrrev_b32 v{vT2}, 1, v{vT0}
    v_xor_b32 v{vT1}, v{vT1}, v{vT2}          ; c' ^ (row8>>1)
    v_xor_b32 v{vT2}, 4, v{vT1}
    v_mul_u32_u24 v{vT0}, {ROWB}, v{vT0}
    v_lshl_add_u32 v{vS0}, v{vT1}, 4, v{vT0}
    v_lshl_add_u32 v{vS1}, v{vT2}, 4, v{vT0}
    s_lshl_b32 s{sT0}, s{sRB}, 6
    s_lshl_b32 s{sT1}, s{sMH}, 5
    s_add_u32 s{sT0}, s{sT0}, s{sT1}
    s_mul_i32 s{sG}, s{sT0}, {ROWB}
    s_mul_i32 s{sT1}, s{sKH}, {6*128}
    s_add_u32 s{sG}, s{sG}, s{sT1}
    s_mul_i32 s{sM}, s{sU}, 28672
    s_add_u32 s{sM}, s{sM}, {XS}
    s_cmp_ge_u32 s{sJ}, 7
    s_cselect_b32 s{sT3}, 7, 0
    s_sub_u32 s{sT3}, s{sJ}, s{sT3}
    s_mov_b32 s{sI}, 0
L_xs:
    s_lshl_b32 s{sT0}, s{sT3}, 12
    s_add_u32 s{sT0}, s{sT0}, s{sM}
    s_lshl_b32 s{sT1}, s{sT3}, 7
    s_add_u32 s{sT1}, s{sT1}, s{sG}
""")
    for rg in range(4):
        a(f"    s_add_u32 m0, s{sT0}, {rg*1024}")
        a(f"    s_add_u32 s{sT2}, s{sT1}, {rg*8*ROWB}")
        a(f"    buffer_load_dwordx4 v{vS0 if rg % 2 == 0 else vS1}, s[{sX0}:{sX0+3}], s{sT2} offen lds")
    a(f"""
    s_add_u32 s{sT3}, s{sT3}, 1
    s_cmp_eq_u32 s{sT3}, 7
    s_cselect_b32 s{sT3}, 0, s{sT3}
    s_add_u32 s{sI}, s{sI}, 1
    s_cmp_lt_u32 s{sI}, 7
    s_cbranch_scc1 L_xs
    ; ---- W prefix of layer 0
    s_mul_i32 s{sG}, s{sROT}, 26624
    s_mul_i32 s{sM}, s{sKH}, {P*2048}
    s_lshl_b32 s{sT1}, s{sMH}, 10
    s_add_u32 s{sM}, s{sM}, s{sT1}
""")
    for i in range(P):
        a(f"    s_add_u32 m0, s{sM}, {PRE0 + i*2048}")
        a(f"    s_add_u32 s{sT0}, s{sG}, {i*26624}")
        a(f"    buffer_load_dwordx4 v{vDMA0}, s[{sW}:{sW+3}], s{sT0} offen lds")
    a(f"""
""")
    if c.w0assist:
        a(f"""
    s_cmp_eq_u32 s{sU}, 3
    s_cbranch_scc0 L_now0t
    v_lshrrev_b32 v21, 5, v{vL}               ; K half
    v_mul_u32_u24 v21, 416, v21
    v_and_b32 v22, 31, v{vL}
    v_add_u32 v21, v21, v22
    v_mul_u32_u24 v21, {ROWB}, v21
    s_lshl_b32 s20, s{sROT}, 4
    s_add_u32 s20, s20, {P * 16 + 28}
    s_mul_i32 s20, s20, {ROWB}
    s_lshl_b32 s21, s{sJ}, 7
    s_add_u32 s20, s20, s21
    buffer_load_dword v{vDUM}, v21, s[{sW}:{sW+3}], s20 offen
L_now0t:""")
    a(f"""
""")
    if c.hello_by == "loader":
        a(f"""
    s_load_dwordx2 s[{sE}:{sE+1}], s[50:51], s{sCB}
    s_add_u32 s{sT0}, s{sCB}, 128
    s_add_u32 s46, s50, s{sT0}
    s_addc_u32 s47, s51, 0""")
    a(f"""
    s_mul_i32 s{sT2}, s{sKH}, {KHS}
    s_lshl_b32 s{sT1}, s{sMH}, 10
    s_add_u32 s{sT2}, s{sT2}, s{sT1}
    s_add_u32 s{sMP}, s{sT2}, {SUF}
    s_mul_i32 s70, s{sKH}, {P*2048}
    s_add_u32 s70, s70, s{sT1}
    s_add_u32 s70, s70, {PRE1}                ; prefix of layer 1 goes to parity 1
    s_mov_b32 s71, {PREPAR}
    s_mul_i32 s{sT0}, s{sKH}, 416
    s_lshl_b32 s{sT1}, s{sROT}, 4
    s_add_u32 s{sT0}, s{sT0}, s{sT1}
    s_mul_i32 s{sT1}, s{sMH}, {NSR}
    s_add_u32 s{sT0}, s{sT0}, s{sT1}
    s_add_u32 s{sT0}, s{sT0}, {c.SV * 16}
    s_mul_i32 s{sT0}, s{sT0}, {ROWB}
    s_lshl_b32 s{sT1}, s{sJ}, 7
    s_add_u32 s{sT0}, s{sT0}, s{sT1}
    s_add_u32 s{sT0}, s{sT0}, {c.wstride}
    s_mov_b32 s98, s42
    s_mov_b32 s99, s43
    s_add_u32 s40, s42, s{sT0}
    s_addc_u32 s41, s43, 0
    s_add_u32 s42, s40, {c.wstride}
    s_addc_u32 s43, s41, 0
""")
    def swarm(k):
        if not (c.swarm and c.sp): return
        lst = [(l, r) for l in range(2, 6) for r in range(3)]
        lst = lst[:7] if k == 0 else lst[7:]
        cur = None
        for n_, (l, r) in enumerate(lst):
            if cur != l:
                a(f"    s_add_u32 s46, s44, {l * c.wstride}")
                a(f"    s_addc_u32 s47, s45, 0")
                cur = l
            a(f"    s_load_dwordx2 s[{76+2*n_}:{77+2*n_}], s[46:47], {r*ROWB + 60}")
    if c.swarm and c.sp:
        per_range = 2 * NSR // 3
        a(f"""
    ; share of the S rows for the warm-up: q = rb*4 + u, range = q / {per_range}, rows 3*(q % {per_range}) ...
    s_lshl_b32 s{sT0}, s{sRB}, 2
    s_add_u32 s{sT0}, s{sT0}, s{sWV}
    s_sub_u32 s{sT0}, s{sT0}, 4
    s_min_u32 s{sT0}, s{sT0}, {4 * per_range - 1}
    s_mul_i32 s{sT1}, s{sT0}, {-(-65536 // per_range)}
    s_lshr_b32 s{sT1}, s{sT1}, 16             ; range
    s_mul_i32 s{sT2}, s{sT1}, {per_range}
    s_sub_u32 s{sT0}, s{sT0}, s{sT2}
    s_mul_i32 s{sT0}, s{sT0}, 3
    s_mul_i32 s{sT1}, s{sT1}, 208
    s_add_u32 s{sT0}, s{sT0}, s{sT1}
    s_add_u32 s{sT0}, s{sT0}, {c.SV * 16}
    s_mul_i32 s{sT0}, s{sT0}, {ROWB}
    s_lshl_b32 s{sT1}, s{sJ}, 7
    s_add_u32 s{sT0}, s{sT0}, s{sT1}
    s_add_u32 s44, s{sWP0}, s{sT0}
    s_addc_u32 s45, s{sWP0+1}, 0
""")
        swarm(0)
    if c.w0assist:
        a(f"""    s_cmp_eq_u32 s{sU}, 3
    s_cbranch_scc0 L_bxw
    s_waitcnt vmcnt({P + 1})
    s_branch L_bxw2
L_bxw:
    s_waitcnt vmcnt({P})
L_bxw2:""")
    else:
        a(f"    s_waitcnt vmcnt({P})")
    stamp()
    a(f"""
    s_barrier                                 ; B_x
    s_barrier                                 ; B_y
""")
    if c.swarm and c.sp: a("    s_waitcnt lgkmcnt(0)")
    if c.hello_by != "loader": sbatch(0)
    def suffix(vreg, lay, thr=True, phased=False, bp=None):
        a(f"    s_mul_i32 s{sG}, s{sROT}, 26624")
        a(f"    s_add_u32 s{sG}, s{sG}, {lay}")
        a(f"    s_sub_u32 s{sM}, 13, s{sROT}")
        a(f"    s_mul_i32 s{sM}, s{sM}, 26624")
        a(f"    s_add_u32 s{sM}, s{sM}, {lay}")
        for n_, i in enumerate(range(P, 26)):
            if bp is not None and n_ == bp:
                a(f"    s_waitcnt vmcnt({bp})")
                a("    s_barrier                                 ; B_p: prefix of layer 0 has landed")
                if c.hello_by == "loader":
                    a(f"""    s_cmp_eq_u32 s{sWV}, 6
    s_cbranch_scc0 L_b0
    s_waitcnt lgkmcnt(0)
    s_load_dwordx16 s[76:91], s[46:47], 0 glc
    s_load_dwordx8 s[92:99], s[46:47], 64 glc
    s_load_dwordx2 s[20:21], s[46:47], 96 glc
    s_branch L_b0d
L_b0:""")
                    sbatch(0)
                    a("L_b0d:")
            if phased and n_ == c.n1: a("    s_barrier")
            if phased and n_ == c.n1 + c.n2: a("    s_barrier")
            a(f"    s_add_u32 m0, s{sMP}, {(i-P)*2048}")
            a(f"    s_add_u32 s{sI}, s{sG if i < 13 else sM}, {(i % 13) * 26624}")
            a(f"    buffer_load_dwordx4 v{vreg}, s[{sW}:{sW+3}], s{sI} offen lds")
            if c.lthr and thr and (c.lthr_all or n_ >= c.n1 + c.n2):
                a(f"    s_waitcnt vmcnt({c.lthr - 1})")
    sPP, sPDL = 70, 71
    def prefix_next(lay_next):
        a(f"    s_mul_i32 s{sG}, s{sROT}, 26624")
        a(f"    s_add_u32 s{sG}, s{sG}, s{lay_next}")
        for t in range(P):
            a(f"    s_add_u32 m0, s{sPP}, {t*2048}")
            a(f"    s_add_u32 s{sI}, s{sG}, {t*26624}")
            a(f"    buffer_load_dwordx4 v{vDMA}, s[{sW}:{sW+3}], s{sI} offen lds")
            if c.lthr and c.lthr_all and t + 1 < P:
                a(f"    s_waitcnt vmcnt({c.lthr - 1})")
        a(f"    s_sub_u32 s{sPP}, s{sPP}, s{sPDL}")
        a(f"    s_sub_u32 s{sPDL}, 0, s{sPDL}")
    def advance_sb():
        a(f"""    s_add_u32 s40, s40, {c.wstride}
    s_addc_u32 s41, s41, 0
    s_add_u32 s42, s42, {c.wstride}
    s_addc_u32 s43, s43, 0""")
    suffix(vDMA0, "0", False, False, bp=13 - P)
    n = 26 - P
    if c.hello_by != "loader":
        if c.sp: a("    s_waitcnt lgkmcnt(0)")
        sbatch(1)
    a(f"    s_waitcnt vmcnt({n - (13 - P)})")
    stamp()
    a("    s_barrier                                 ; chunk [P,13)")
    if c.hello_by == "loader" and c.sp and c.l0b1:
        a(f"    s_cmp_eq_u32 s{sWV}, 6")
        a(f"    s_cbranch_scc1 L_nob1")
        a("    s_waitcnt lgkmcnt(0)"); sbatch(1)
        a("L_nob1:")
    if c.swarm and c.sp:
        a("    s_waitcnt lgkmcnt(0)"); swarm(1)
    a(f"    s_waitcnt vmcnt({26 - 20})")
    a("    s_barrier                                 ; chunk [13,20)")
    if c.hello_by == "loader":
        a(f"""    s_cmp_eq_u32 s{sWV}, 6
    s_cbranch_scc0 L_nohe
    s_add_u32 s{sT0}, s{sE}, 8
    s_addc_u32 s{sT1}, s{sE+1}, 0
    s_and_b32 s{sT2}, s{sT1}, 0x0fffffff
    s_lshl_b32 s22, s{sXCC}, 28
    s_xor_b32 s{sT1}, s{sT1}, s22
    s_mov_b32 s22, 1
    s_mov_b32 s23, 1
    s_waitcnt lgkmcnt(0)""")
        for m_ in range(13):
            lo = 76 + 2 * m_ if m_ < 12 else 20
            a(f"""    s_cmp_eq_u32 s{lo}, s{sT0}
    s_cselect_b32 s23, s23, 0
    s_cmp_eq_u32 s{lo+1}, s{sT1}
    s_cselect_b32 s22, s22, 0
    s_and_b32 s{lo+1}, s{lo+1}, 0x0fffffff
    s_cmp_eq_u32 s{lo+1}, s{sT2}
    s_cselect_b32 s23, s23, 0""")
        a(f"""    s_sub_u32 s22, 2, s22
    s_mul_i32 s22, s22, s23
    v_mov_b32 v25, s22
    v_mov_b32 v26, {MODEW}
    ds_write_b32 v26, v25
    s_waitcnt lgkmcnt(0)
""")
        sbatch(0)
        a("L_nohe:")
    a("    s_waitcnt vmcnt(0)")
    stamp()
    a("    s_barrier                                 ; chunk [20,26)")
    if c.pre_by == "loader":
        a("    s_barrier                                 ; B_mid")
        a(f"    s_mov_b32 s{sT3}, {c.wstride}")
        if not c.no_pre: prefix_next(sT3)
    advance_sb()
    a(f"""
    s_barrier
    s_mov_b32 s{sL}, 1
    s_mov_b32 s{sT3}, {c.wstride}
L_ld_layer:
    s_cmp_lt_u32 s{sL}, 5
    s_cselect_b32 s{sU}, 1, 0
""")
    def guarded(fn, lab):
        if not c.sp: return
        a(f"    s_cmp_eq_u32 s{sU}, 1")
        a(f"    s_cbranch_scc0 {lab}")
        fn()
        a(f"{lab}:")
    guarded(lambda: sbatch(1), "L_sA")
    if not c.no_suf: suffix(vDMA, f"s{sT3}", True, c.phased)
    elif c.phased:
        a("    s_barrier"); a("    s_barrier")
    stamp()
    guarded(lambda: (a("    s_waitcnt lgkmcnt(0)"), sbatch(2)), "L_sB")
    if c.pre_by == "loader": a(f"    s_waitcnt vmcnt({26 - P})                 ; the prefix has landed")
    a(f"""
    s_barrier                                 ; B_a
    s_waitcnt vmcnt(0)
""")
    stamp()
    a("    s_barrier")
    a(f"    s_cmp_lt_u32 s{sL}, 4")
    a(f"    s_cselect_b32 s{sU}, 1, 0")
    guarded(lambda: (a("    s_waitcnt lgkmcnt(0)"), sbatch(0, True)), "L_sC")
    if c.pre_by == "loader":
        a("    s_barrier                                 ; B_mid")
        stamp(3)
        a(f"    s_cmp_lt_u32 s{sL}, 5")
        a(f"    s_cbranch_scc0 L_nopre")
        a(f"    s_add_u32 s{sU}, s{sT3}, {c.wstride}")
        if not c.no_pre: prefix_next(sU)
        a("L_nopre:")
        stamp(3)
    advance_sb()
    a(f"""
    s_barrier                                 ; B2
    s_add_u32 s{sL}, s{sL}, 1
    s_add_u32 s{sT3}, s{sT3}, {c.wstride}
    s_cmp_lt_u32 s{sL}, 6
    s_cbranch_scc1 L_ld_layer
""")
    dump_ts()
    a("    s_endpgm")

    sBI = 84
    sBP = 48
    def bias_load():
        a(f"    s_load_dwordx16 s[{sBI}:{sBI+15}], s[{sBP}:{sBP+1}], 0")
        a(f"    s_add_u32 s{sBP}, s{sBP}, {ROWB}")
        a(f"    s_addc_u32 s{sBP+1}, s{sBP+1}, 0")
    def bias_spread():
        a("    s_mov_b32 exec_hi, 0")
        for q in range(4):
            for d in range(2):
                a(f"    v_mov_b32 v{vBP+2*q+d}, s{sBI+4*q+d}")
        a("    s_mov_b32 exec_lo, 0")
        a("    s_mov_b32 exec_hi, -1")
        for q in range(4):
            for d in range(2):
                a(f"    v_mov_b32 v{vBP+2*q+d}, s{sBI+4*q+2+d}")
        a("    s_mov_b64 exec, -1")
    def bias_unpack(lo=0, hi=8):
        for d in range(lo, hi):
            a(f"    v_lshlrev_b32 v{vAK+2*d}, 16, v{vBP+d}")
            a(f"    v_and_b32 v{vAK+2*d+1}, 0xffff0000, v{vBP+d}")
    a(f"""
L_compute:
    s_load_dwordx2 s[{sE}:{sE+1}], s[50:51], s{sCB}
    s_lshl_b32 s{sT0}, s{sJ}, 7
    s_lshl_b32 s{sT1}, s{sKH}, 6
    s_add_u32 s{sT0}, s{sT0}, s{sT1}
    s_add_u32 s{sBP_}, s44, s{sT0}
    s_addc_u32 s{sBP_+1}, s45, 0
    s_load_dwordx16 s[84:99], s[{sBP_}:{sBP_+1}], 0
    s_load_dword s20, s[{sBP_}:{sBP_+1}], {ROWB}
    s_load_dword s21, s[{sBP_}:{sBP_+1}], {2*ROWB}
    s_load_dword s22, s[{sBP_}:{sBP_+1}], {3*ROWB}
    s_load_dword s23, s[{sBP_}:{sBP_+1}], {4*ROWB}
    s_load_dword s24, s[{sBP_}:{sBP_+1}], {5*ROWB}
    s_add_u32 s{sBP_}, s{sBP_}, {ROWB}
    s_addc_u32 s{sBP_+1}, s{sBP_+1}, 0
    s_setprio {c.prio}
    v_min_u32 v{vT0}, 51, v{vL}
    v_lshlrev_b32 v{vT0}, 3, v{vT0}
    s_add_u32 s{sT0}, s{sCB}, 2048
    v_add_u32 v{vFA}, s{sT0}, v{vT0}
    s_cmp_eq_u32 s{sWV}, 0
    s_cbranch_scc0 L_noft
    buffer_load_dword v{vDUM}, v{vFA}, s[{sWS}:{sWS+3}], 0 offen sc1
L_noft:
    s_lshl_b32 s{sT1}, s{sJ}, 2
    s_add_u32 s{sT1}, s{sT1}, s{sWV}
    s_lshl_b32 s{sT1}, s{sT1}, 3
    s_add_u32 s{sOWNF}, s{sT0}, s{sT1}
    v_min_u32 v{vT0}, 12, v{vL}
    v_lshlrev_b32 v{vT0}, 3, v{vT0}
    s_add_u32 s{sT0}, s{sCB}, 128
    v_add_u32 v{vHA}, s{sT0}, v{vT0}
""")
    srd(sOUT, 46, XLAYER)
    a(f"""
    s_lshl_b32 s{sT0}, s{sRB}, 6
    s_lshl_b32 s{sT1}, s{sMH}, 5
    s_add_u32 s{sT0}, s{sT0}, s{sT1}
    s_mul_i32 s{sT0}, s{sT0}, {ROWB}
    s_lshl_b32 s{sT1}, s{sJ}, 7
    s_add_u32 s{sT0}, s{sT0}, s{sT1}
    s_lshl_b32 s{sT1}, s{sKH}, 6
    s_add_u32 s{sT0}, s{sT0}, s{sT1}
    v_and_b32 v{vT0}, 31, v{vL}
    v_mul_u32_u24 v{vT0}, {ROWB}, v{vT0}
    v_lshrrev_b32 v{vT1}, 5, v{vL}
    v_lshl_add_u32 v{vT0}, v{vT1}, 4, v{vT0}
    v_add_u32 v{vOUT}, s{sT0}, v{vT0}
    v_lshlrev_b32 v{vXO}, 4, v{vL}
    v_add_u32 v{vXO+1}, 0x1000, v{vXO}
    v_add_u32 v{vXO+2}, 0x2000, v{vXO}
    v_add_u32 v{vXO+3}, 0x3000, v{vXO}
    s_mul_i32 s{sT0}, s{sRB}, {XRB}
    s_mul_i32 s{sT1}, s{sMH}, {XMH}
    s_add_u32 s{sT0}, s{sT0}, s{sT1}
    s_add_u32 s{sT0}, s{sT0}, {XBUF}
    s_lshl_b32 s{sT1}, s{sJ}, 2
    s_lshl_b32 s{sT2}, s{sKH}, 1
    s_add_u32 s{sT1}, s{sT1}, s{sT2}
    s_lshl_b32 s{sT1}, s{sT1}, 10
    s_add_u32 s{sXST}, s{sT0}, s{sT1}
""")
    if not c.helpers:
        a(f"""
    v_and_b32 v{vT1}, 15, v{vL}
    v_lshlrev_b32 v{vT1}, 7, v{vT1}
    v_bfe_u32 v{vT2}, v{vL}, 4, 1
    v_mul_u32_u24 v{vT2}, {XBUF >> 8}, v{vT2}
    v_lshl_add_u32 v{vT1}, v{vT2}, 8, v{vT1}
    s_sub_u32 s{sT3}, s{sXST}, {XBUF}
    buffer_load_dword v{vDUM}, v{vT1}, s[{sWS}:{sWS+3}], s{sT3} offen sc1
""")
    a(f"""
    s_mul_i32 s{sT1}, s{sKH}, 26
    s_add_u32 s{sT2}, s{sT1}, s{sROT}
    s_lshl_b32 s{sT2}, s{sT2}, 10
    s_add_u32 s{sXA}, s{sT0}, s{sT2}
    s_add_u32 s{sT2}, s{sT1}, 13
    s_sub_u32 s{sT2}, s{sT2}, s{sROT}
    s_lshl_b32 s{sT2}, s{sT2}, 10
    s_add_u32 s{sXB}, s{sT0}, s{sT2}
    s_mov_b32 s{sXD}, {-XBUF & 0xffffffff}
    s_mov_b32 s{sXD2}, {-XBUF & 0xffffffff}
    ; ---- W prefix bookkeeping for layer 1 (loaded at the end of layer 0)
    s_mul_i32 s{sT0}, s{sKH}, 416
    s_lshl_b32 s{sT1}, s{sROT}, 4
    s_add_u32 s{sT0}, s{sT0}, s{sT1}
    s_lshl_b32 s{sT1}, s{sMH}, 3
    s_add_u32 s{sT0}, s{sT0}, s{sT1}
    s_mul_i32 s{sWP}, s{sT0}, {ROWB}
    s_add_u32 s{sWP}, s{sWP}, {c.wstride}
    s_mul_i32 s{sMP}, s{sKH}, {P*2048}
    s_lshl_b32 s{sT1}, s{sMH}, 10
    s_add_u32 s{sMP}, s{sMP}, s{sT1}
    s_add_u32 s{sMP}, s{sMP}, {PRE1}
    s_mov_b32 s{sPD}, {PREPAR}
    v_lshrrev_b32 v{vT0}, 5, v{vL}            ; h
    v_lshlrev_b32 v{vT0}, 2, v{vT0}
    v_bfe_u32 v{vT1}, v{vL}, 2, 2             ; r
    v_add_u32 v{vT0}, v{vT0}, v{vT1}
    v_lshlrev_b32 v{vT0}, 7, v{vT0}           ; row*128
    v_bfe_u32 v{vT1}, v{vL}, 4, 1             ; nb
    v_lshlrev_b32 v{vT1}, 1, v{vT1}
    v_bfe_u32 v{vT2}, v{vL}, 1, 1             ; c>>1
    v_add_u32 v{vT1}, v{vT1}, v{vT2}
    v_bfe_u32 v{vT2}, v{vL}, 3, 1             ; (r>>1)&1
    v_lshlrev_b32 v{vT2}, 2, v{vT2}
    v_xor_b32 v{vT1}, v{vT1}, v{vT2}
    v_lshlrev_b32 v{vT1}, 4, v{vT1}
    v_add_u32 v{vT0}, v{vT0}, v{vT1}
    v_and_b32 v{vT1}, 1, v{vL}
    v_lshlrev_b32 v{vT1}, 3, v{vT1}
    v_add_u32 v{vT0}, v{vT0}, v{vT1}
    s_lshl_b32 s{sT0}, s{sKH}, 6
    v_xor_b32 v{vT1}, s{sT0}, v{vT0}          ; keep
    v_xor_b32 v{vT2}, 64, v{vT1}              ; send
    s_mul_i32 s{sT0}, s{sKH}, {P*2048}
    v_add_u32 v{vAPK}, s{sT0}, v{vT1}
    v_add_u32 v{vAPS}, s{sT0}, v{vT2}
    s_mul_i32 s{sT0}, s{sKH}, {KHS}
    s_add_u32 s{sT0}, s{sT0}, {SUF}
    v_add_u32 v{vASK}, s{sT0}, v{vT1}
    v_add_u32 v{vASS}, s{sT0}, v{vT2}
    s_lshl_b32 s{sT0}, s{sWV}, 12
    s_add_u32 s{sT0}, s{sT0}, {RED}
    v_add_u32 v{vRW}, s{sT0}, v{vXO}
    s_xor_b32 s{sT1}, s{sWV}, 2
    s_lshl_b32 s{sT1}, s{sT1}, 12
    s_add_u32 s{sT1}, s{sT1}, {RED}
    v_add_u32 v{vRR}, s{sT1}, v{vXO}
    v_lshrrev_b32 v{vT0}, 5, v{vL}
    v_lshlrev_b32 v{vT3}, 3, v{vT0}           ; h*8
    v_and_b32 v{vT0}, 31, v{vL}               ; m
    v_lshrrev_b32 v{vT1}, 3, v{vT0}
    v_lshlrev_b32 v{vT1}, 10, v{vT1}          ; rg*1024
    v_and_b32 v{vT2}, 7, v{vT0}
    v_lshl_add_u32 v{vT1}, v{vT2}, 7, v{vT1}  ; + row8*128
    v_bfe_u32 v{vT2}, v{vT0}, 1, 3            ; f(m)
    s_cmp_ge_u32 s{sJ}, 7
    s_cselect_b32 s{sT0}, 1, 0
    s_mul_i32 s{sT1}, s{sT0}, 6
    s_sub_u32 s{sT1}, s{sJ}, s{sT1}
    s_lshl_b32 s{sT1}, s{sT1}, 12
    s_lshl_b32 s{sT0}, s{sT0}, 1
    s_add_u32 s{sT0}, s{sT0}, s{sMH}
    s_mul_i32 s{sT0}, s{sT0}, 28672
    s_add_u32 s{sT0}, s{sT0}, s{sT1}
    s_add_u32 s{sT0}, s{sT0}, {XS}
    s_lshl_b32 s{sT1}, s{sKH}, 2
    v_add3_u32 v{vT3}, v{vT3}, v{vT1}, s{sT0}
    v_xor_b32 v{vT0}, s{sT1}, v{vT2}          ; (4*nh) ^ f(m)
""")
    for q in range(4):
        a(f"    v_xor_b32 v{vPART+8+q}, {q}, v{vT0}")
        a(f"    v_lshl_add_u32 v{vPART+8+q}, v{vPART+8+q}, 4, v{vT3}")
    a(f"""
    v_lshrrev_b32 v{vT0}, 5, v{vL}
    v_xor_b32 v{vT2}, v{vT2}, v{vT0}          ; f(m) ^ h
    s_mul_i32 s{sT3}, s{sWV}, 28672
    s_add_u32 s{sT3}, s{sT3}, {XS}
    s_mul_i32 s{sI}, s{sKH}, 26
    s_mul_i32 s{sM}, s{sKH}, 6
""")
    for seg in range(2):
        if seg == 0:
            a(f"    s_add_u32 s{sG}, s{sI}, s{sROT}")
        else:
            a(f"    s_add_u32 s{sG}, s{sI}, 13")
            a(f"    s_sub_u32 s{sG}, s{sG}, s{sROT}")
        for x in range(4):
            r = vPART + seg * 4 + x
            a(f"    s_add_u32 s{sT0}, s{sG}, {x}")
            a(f"    s_and_b32 s{sT1}, s{sT0}, 3")
            a(f"    s_lshl_b32 s{sT1}, s{sT1}, 1")
            a(f"    s_lshr_b32 s{sT0}, s{sT0}, 2")
            a(f"    s_sub_u32 s{sT0}, s{sT0}, s{sM}")
            a(f"    s_lshl_b32 s{sT0}, s{sT0}, 12")
            a(f"    s_add_u32 s{sT0}, s{sT0}, s{sT3}")
            a(f"    v_xor_b32 v{r}, s{sT1}, v{vT2}")
            a(f"    v_lshl_add_u32 v{r}, v{r}, 4, v{vT1}")
            a(f"    v_add_u32 v{r}, s{sT0}, v{r}")
    a(f"""
    s_waitcnt lgkmcnt(0)
    s_add_u32 s{sTA}, s{sE}, 1
    s_addc_u32 s{sTA+1}, s{sE+1}, 0
    s_add_u32 s{sTB}, s{sE}, 2
    s_addc_u32 s{sTB+1}, s{sE+1}, 0
    s_cmp_eq_u32 s{sWV}, 0
    s_cbranch_scc0 L_nohello
    s_add_u32 s{sT0}, s{sE}, 8
    s_addc_u32 s{sT1}, s{sE+1}, 0
    s_lshl_b32 s{sT2}, s{sXCC}, 28
    s_xor_b32 s{sT1}, s{sT1}, s{sT2}
    v_mov_b32 v{vPOLL}, s{sT0}
    v_mov_b32 v{vPOLL+1}, s{sT1}
    s_lshl_b32 s{sT2}, s{sJ}, 3
    s_add_u32 s{sT2}, s{sT2}, s{sCB}
    s_add_u32 s{sT2}, s{sT2}, 128
    s_mov_b64 exec, 1
    buffer_store_dwordx2 v[{vPOLL}:{vPOLL+1}], off, s[{sWS}:{sWS+3}], s{sT2} sc1
    s_mov_b64 exec, -1
L_nohello:
""")
    if c.w0assist:
        a(f"""
    s_mul_i32 s{sT0}, s{sKH}, 416
    s_lshl_b32 s{sT1}, s{sROT}, 4
    s_add_u32 s{sT0}, s{sT0}, s{sT1}
    s_mul_i32 s{sT1}, s{sMH}, 14
    s_add_u32 s{sT0}, s{sT0}, s{sT1}
    s_add_u32 s{sT0}, s{sT0}, {P * 16}
    s_mul_i32 s{sT0}, s{sT0}, {ROWB}
    s_lshl_b32 s{sT1}, s{sJ}, 7
    s_add_u32 s{sT0}, s{sT0}, s{sT1}
    s_add_u32 s44, s42, s{sT0}
    s_addc_u32 s45, s43, 0
""")
        for n_ in range(14):
            if n_ == 7: a("    s_waitcnt lgkmcnt(0)")
            a(f"    s_load_dwordx2 s[{20+2*(n_%2)}:{21+2*(n_%2)}], s[44:45], {n_*ROWB + 60}")
    elif c.vwarm:
        nrows = c.SV * 16
        per_rb = nrows // 4
        a(f"""
    s_lshr_b32 s{sT0}, s{sRB}, 2
    s_mul_i32 s{sT0}, s{sT0}, 208
    s_and_b32 s{sT1}, s{sRB}, 3
    s_mul_i32 s{sT1}, s{sT1}, {per_rb}
    s_add_u32 s{sT0}, s{sT0}, s{sT1}
    s_mul_i32 s{sT1}, s{sWV}, {per_rb // 4}
    s_add_u32 s{sT0}, s{sT0}, s{sT1}
    s_mul_i32 s{sT0}, s{sT0}, {ROWB}
    s_lshl_b32 s{sT1}, s{sJ}, 7
    s_add_u32 s{sT0}, s{sT0}, s{sT1}
    s_add_u32 s{sT0}, s{sT0}, {c.wstride}
    s_add_u32 s44, s42, s{sT0}
    s_addc_u32 s45, s43, 0
""")
        nper = per_rb // 4
        vw = [(l, r) for l in range(1, 6) for r in range(nper)][:14]
        def vwarm_batch(k):
            cur = None
            for n_, (l, r) in enumerate(vw[7*k:7*k+7]):
                if cur != l:
                    a(f"    s_add_u32 s46, s44, {(l-1) * c.wstride}")
                    a(f"    s_addc_u32 s47, s45, 0")
                    cur = l
                a(f"    s_load_dwordx2 s[{20+2*(n_%2)}:{21+2*(n_%2)}], s[46:47], {r*ROWB + 60}")
        vwarm_batch(0)
    stamp()
    a("    s_barrier                                 ; B_x: staged x0, prefix(0) and biases have landed")
    stamp()
    for q in range(4):
        a(f"    ds_read_b64 v[{vP+2*q}:{vP+2*q+1}], v{vPART+8+q}")
    for i in range(26):
        seg, ii = (0, i) if i < 13 else (1, i - 13)
        a(f"    ds_read_b128 v[{vXF+4*i}:{vXF+4*i+3}], v{vPART + seg*4 + (ii & 3)} offset:{(ii >> 2) * 4096}")
        if i in (9, 17):
            a("    s_waitcnt lgkmcnt(6)")
    a("    s_waitcnt lgkmcnt(0)")
    a("    s_barrier")
    if c.vwarm and not c.w0assist: vwarm_batch(1)
    stamp()
    for d in range(8):
        a(f"    v_lshlrev_b32 v{vX0F+2*d}, 16, v{vP+d}")
        a(f"    v_and_b32 v{vX0F+2*d+1}, 0xffff0000, v{vP+d}")
    bias_spread()
    bias_unpack()
    for r in range(16):
        a(f"    v_mov_b32 v{vXR+r}, v{vX0F+r}")
    a(f"    s_mov_b32 s{sL}, 0")
    a("    s_barrier                                 ; B_p: prefix of layer 0 has landed")
    stamp()

    def xload(i):
        if c.no_x:
            a("    s_nop 0"); return
        seg = sXA if i < 13 else sXB
        ii = i % 13
        a(f"    buffer_load_dwordx4 v[{vXF+4*i}:{vXF+4*i+3}], v{vXO+(ii>>2)}, s[{sWS}:{sWS+3}], s{seg} offen offset:{(ii&3)*1024} sc1")
    def rd(i, which):
        if c.no_w: return
        st = vWF + 8 * (i % nsets)
        if i < P: k, s_, off = vAPK, vAPS, i * 2048
        else: k, s_, off = vASK, vASS, (i - P) * 2048
        if which == "s":
            a(f"    ds_read_b64_tr_b16 v[{st}:{st+1}], v{s_} offset:{off}")
            a(f"    ds_read_b64_tr_b16 v[{st+2}:{st+3}], v{s_} offset:{off+1024}")
        else:
            a(f"    ds_read_b64_tr_b16 v[{st+4}:{st+5}], v{k} offset:{off}")
            a(f"    ds_read_b64_tr_b16 v[{st+6}:{st+7}], v{k} offset:{off+1024}")
    def pref_sched(i):
        if c.presched == "spread":
            t = i - (26 - P)
            return [t] if 0 <= t < P else []
        k = i - (26 - D)
        if k < 0: return []
        per_ = -(-P // D)
        return [t for t in range(k * per_, min(P, (k + 1) * per_))]
    def kloop(first):
        ops = []
        if first:
            for i in range(PF):
                rd(i, "s"); rd(i, "k")
        else:
            xload(0); ops.append(("x", 0))
            rd(0, "s"); rd(0, "k")
            xload(1); ops.append(("x", 1))
            rd(1, "s"); rd(1, "k")
            nrest = D - 2
            cuts = [8 * k // nrest for k in range(nrest + 1)]
            for k in range(nrest):
                bias_unpack(cuts[k], cuts[k + 1])
                xload(2 + k); ops.append(("x", 2 + k))
        bars = [P, 13, 20] if first else [P]
        assert P < 13
        marks = [0, 1, 2, 4, 8, 12, 16, 20, 25]
        for i in range(26):
            a(f"    ; ---- step {i}")
            if TS == 4 and not first and i in marks:
                a(f"    s_memtime s[{80 + 2*marks.index(i)}:{81 + 2*marks.index(i)}]")
            young = sum(4 for t in range(i + 1, min(i + PF - 1, 25) + 1))
            if first:
                a(f"    s_waitcnt lgkmcnt({young})")
            else:
                nv = len(ops) - 1 - ops.index(("x", i))
                a(f"    s_waitcnt vmcnt({nv}) lgkmcnt({young})")
            st = vWF + 8 * (i % nsets)
            xf = vXF + 4 * i
            cs = "0" if i == 0 else f"v[{vAS}:{vAS+15}]"
            a(f"    v_mfma_f32_32x32x16_bf16 v[{vAS}:{vAS+15}], v[{st}:{st+3}], v[{xf}:{xf+3}], {cs}")
            if i + PF in bars:
                a("    s_barrier")
            if first and i == c.hello_step and c.hello_by != 'loader':
                a(f"    buffer_load_dwordx2 v[{vPOLL}:{vPOLL+1}], v{vHA}, s[{sWS}:{sWS+3}], 0 offen sc1")
            if not first and i + D < 26:
                xload(i + D); ops.append(("x", i + D))
            if c.pre_by == "loader":
                if i == c.mid_step: a("    s_barrier                                 ; B_mid: the x loads are all issued")
                if i == c.prog_step and c.prog_at == "mid":
                    lab = "L_noprogA" if first else "L_noprogB"
                    a(f"""    s_or_b32 s{sT0}, s{sJ}, s{sWV}
    s_cmp_eq_u32 s{sT0}, 0
    s_cbranch_scc0 {lab}
    v_mov_b32 v{vPOL2}, s{sTA}
    v_mov_b32 v{vPOL2+1}, s{sTA+1}
    s_add_u32 s{sT0}, s{sCB}, 3072
    buffer_store_dwordx2 v[{vPOL2}:{vPOL2+1}], off, s[{sWS}:{sWS+3}], s{sT0}
{lab}:""")
            else:
                for t in ([] if c.no_pre else pref_sched(i)):
                    a(f"    s_add_u32 m0, s{sMP}, {t*2048}")
                    a(f"    s_add_u32 s{sT0}, s{sWP}, {t*26624}")
                    a(f"    buffer_load_dwordx4 v{vDMA}, s[{sW}:{sW+3}], s{sT0} offen lds")
                    ops.append(("w", t))
            if i + PF < 26: rd(i + PF, "s")
            a(f"    v_mfma_f32_32x32x16_bf16 v[{vAK}:{vAK+15}], v[{st+4}:{st+7}], v[{xf}:{xf+3}], v[{vAK}:{vAK+15}]")
            if i + PF < 26: rd(i + PF, "k")
        return len([o for o in ops if o[0] == "w"])
    npre = kloop(True)
    if c.hello_by == "loader":
        a(f"""    v_mov_b32 v{vT0}, {MODEW}
    ds_read_b32 v{vT1}, v{vT0}
    s_waitcnt lgkmcnt(0)
    v_readfirstlane_b32 s{sMODE}, v{vT1}""")
        a(f"""
    s_cmp_eq_u32 s{sMODE}, 0
    s_cbranch_scc1 L_hello_slow
    s_and_b32 s{sMODE}, s{sMODE}, {0 if c.force_slow else 1}
    s_branch L_tail
L_hello_slow:
    buffer_load_dwordx2 v[{vPOLL}:{vPOLL+1}], v{vHA}, s[{sWS}:{sWS+3}], 0 offen sc1""")
    a(f"""
    s_add_u32 s{sT0}, s{sE}, 8
    s_addc_u32 s{sT1}, s{sE+1}, 0
    s_mov_b32 s{sSPIN}, 0
    s_waitcnt vmcnt({0 if c.hello_by == "loader" else npre})
    s_and_b32 s{sT2}, s{sT1}, 0x0fffffff
    s_lshl_b32 s{sT3}, s{sXCC}, 28
    s_xor_b32 s{sT3}, s{sT1}, s{sT3}
L_hello:
    v_and_b32 v{vT0}, 0x0fffffff, v{vPOLL+1}
    v_cmp_eq_u32 vcc, s{sT0}, v{vPOLL}
    v_cmp_eq_u32 s[{sMK}:{sMK+1}], s{sT2}, v{vT0}
    s_and_b64 vcc, vcc, s[{sMK}:{sMK+1}]
    s_cmp_eq_u64 vcc, -1
    s_cbranch_scc1 L_hello_ok
    s_add_u32 s{sSPIN}, s{sSPIN}, 1
    s_cmp_gt_u32 s{sSPIN}, {c.spin_max}
    s_cbranch_scc1 L_end
    buffer_load_dwordx2 v[{vPOLL}:{vPOLL+1}], v{vHA}, s[{sWS}:{sWS+3}], 0 offen sc1
    s_waitcnt vmcnt(0)
    s_branch L_hello
L_hello_ok:
    v_cmp_eq_u32 vcc, s{sT3}, v{vPOLL+1}
    s_cmp_eq_u64 vcc, -1
    s_cselect_b32 s{sMODE}, {0 if c.force_slow else 1}, 0
    s_branch L_tail
""")
    assert sT1 == sT0 + 1 and sT0 % 2 == 0
    a("L_layer:")
    stamp(1)
    a("    s_barrier                                 ; B_a")
    stamp()
    kloop(False)
    if TS == 4:
        a("    s_memtime s[98:99]")
        a("    s_waitcnt lgkmcnt(0)")
        for k in range(10):
            a(f"    s_mov_b32 m0, s{sTSI}")
            a(f"    s_nop 0")
            a(f"    v_writelane_b32 v{vTS}, s{80+2*k}, m0")
            a(f"    s_add_u32 s{sTSI}, s{sTSI}, 1")
    a("L_tail:")
    if TS in (2, 3):
        a("    s_nop 15")
        stamp()
    a(f"    v_mov_b32 v{vFV}, s{sTA}")
    a(f"    v_mov_b32 v{vFV+1}, s{sTA+1}")
    a("    s_nop 8")
    for q in range(4):
        a(f"    ds_write_b128 v{vRW}, v[{vAS+4*q}:{vAS+4*q+3}] offset:{q*1024}")
    a("    s_waitcnt lgkmcnt(0)")
    a("    s_barrier                                 ; B2")
    stamp(3)
    for q in range(4):
        a(f"    ds_read_b128 v[{vPART+4*q}:{vPART+4*q+3}], v{vRR} offset:{q*1024}")
    def epi(q):
        a(f"    s_waitcnt lgkmcnt({3-q})")
        for p in range(2):
            r = 4 * q + 2 * p
            a(f"    v_pk_add_f32 v[{vAK+r}:{vAK+r+1}], v[{vAK+r}:{vAK+r+1}], v[{vPART+r}:{vPART+r+1}]")
        for p in range(2):
            r = 4 * q + 2 * p
            a(f"    v_pk_fma_f32 v[{vAK+r}:{vAK+r+1}], v[{vX0F+r}:{vX0F+r+1}], v[{vAK+r}:{vAK+r+1}], v[{vXR+r}:{vXR+r+1}]")
        for p in range(2):
            r = 4 * q + 2 * p
            a(f"    v_cvt_pk_bf16_f32 v{vP+2*q+p}, v{vAK+r}, v{vAK+r+1}")
    a(f"""
    s_cmp_eq_u32 s{sL}, 5
    s_cbranch_scc1 L_final
    s_cmp_eq_u32 s{sMODE}, 0
    s_cbranch_scc1 L_st_slow
""")
    epi(0); epi(1)
    a(f"    buffer_store_dwordx4 v[{vP}:{vP+3}], v{vXO}, s[{sWS}:{sWS+3}], s{sXST} offen")
    epi(2); epi(3)
    a(f"    buffer_store_dwordx4 v[{vP+4}:{vP+7}], v{vXO}, s[{sWS}:{sWS+3}], s{sXST} offen offset:1024")
    if c.phased: a("    s_barrier                                 ; B_s")
    stamp(3)
    def unpack_res():
        for d in range(8):
            a(f"    v_lshlrev_b32 v{vXR+2*d}, 16, v{vP+d}")
            a(f"    v_and_b32 v{vXR+2*d+1}, 0xffff0000, v{vP+d}")
    bias_load()
    unpack_res()
    a(f"""
    s_waitcnt vmcnt(0)
    buffer_store_dwordx2 v[{vFV}:{vFV+1}], off, s[{sWS}:{sWS+3}], s{sOWNF}
    s_branch L_st_done
L_st_slow:
""")
    epi(0); epi(1); epi(2); epi(3)
    a(f"""
    buffer_store_dwordx4 v[{vP}:{vP+3}], v{vXO}, s[{sWS}:{sWS+3}], s{sXST} offen sc1
    buffer_store_dwordx4 v[{vP+4}:{vP+7}], v{vXO}, s[{sWS}:{sWS+3}], s{sXST} offen offset:1024 sc1
""")
    if c.phased: a("    s_barrier                                 ; B_s")
    stamp(3)
    bias_load()
    unpack_res()
    a(f"""
    s_waitcnt vmcnt(0)
    buffer_store_dwordx2 v[{vFV}:{vFV+1}], off, s[{sWS}:{sWS+3}], s{sOWNF} sc1
L_st_done:
""")
    stamp()
    if c.onepoll:
        a(f"""
    s_cmp_eq_u32 s{sWV}, 0
    s_cbranch_scc0 L_nopoll1""")
    a(f"""
    buffer_load_dwordx2 v[{vPOLL}:{vPOLL+1}], v{vFA}, s[{sWS}:{sWS+3}], 0 offen sc1
L_nopoll1:
    {"s_barrier                                 ; B_f" if c.phased else ""}
""")
    def progress(lab):
        a(f"""    s_or_b32 s{sT0}, s{sJ}, s{sWV}
    s_cmp_eq_u32 s{sT0}, 0
    s_cbranch_scc0 {lab}
    s_add_u32 s{sT0}, s{sCB}, 3072
    buffer_store_dwordx2 v[{vFV}:{vFV+1}], off, s[{sWS}:{sWS+3}], s{sT0}
{lab}:""")
    if c.prog_at == "end": progress("L_noprog")
    a(f"""
    s_add_u32 s{sL}, s{sL}, 1
    s_cmp_eq_u32 s{sL}, 1
    s_cbranch_scc1 L_keep_xa
    s_add_u32 s{sXA}, s{sXA}, s{sXD}
    s_add_u32 s{sXB}, s{sXB}, s{sXD}
    s_sub_u32 s{sXD}, 0, s{sXD}
L_keep_xa:
    s_add_u32 s{sXST}, s{sXST}, s{sXD2}
    s_sub_u32 s{sXD2}, 0, s{sXD2}
    s_add_u32 s{sWP}, s{sWP}, {c.wstride}
    s_sub_u32 s{sMP}, s{sMP}, s{sPD}
    v_add_u32 v{vAPK}, s{sPD}, v{vAPK}
    v_add_u32 v{vAPS}, s{sPD}, v{vAPS}
    s_sub_u32 s{sPD}, 0, s{sPD}
    s_mov_b32 s{sSPIN}, 0
""")
    a("    s_waitcnt lgkmcnt(0)")
    bias_spread()
    if c.onepoll:
        a(f"""
    s_cmp_eq_u32 s{sWV}, 0
    s_cbranch_scc0 L_ready""")
    if c.poll2:
        a(f"""L_poll:
    buffer_load_dwordx2 v[{vPOL2}:{vPOL2+1}], v{vFA}, s[{sWS}:{sWS+3}], 0 offen sc1
    s_waitcnt vmcnt(1)
    v_cmp_eq_u64 vcc, s[{sTA}:{sTA+1}], v[{vPOLL}:{vPOLL+1}]
    v_cmp_eq_u64 s[{sMK}:{sMK+1}], s[{sTB}:{sTB+1}], v[{vPOLL}:{vPOLL+1}]
    s_or_b64 vcc, vcc, s[{sMK}:{sMK+1}]
    s_cmp_eq_u64 vcc, -1
    s_cbranch_scc1 L_ready
    buffer_load_dwordx2 v[{vPOLL}:{vPOLL+1}], v{vFA}, s[{sWS}:{sWS+3}], 0 offen sc1
    s_waitcnt vmcnt(1)
    v_cmp_eq_u64 vcc, s[{sTA}:{sTA+1}], v[{vPOL2}:{vPOL2+1}]
    v_cmp_eq_u64 s[{sMK}:{sMK+1}], s[{sTB}:{sTB+1}], v[{vPOL2}:{vPOL2+1}]
    s_or_b64 vcc, vcc, s[{sMK}:{sMK+1}]
    s_cmp_eq_u64 vcc, -1
    s_cbranch_scc1 L_ready
    s_add_u32 s{sSPIN}, s{sSPIN}, 1
    s_cmp_gt_u32 s{sSPIN}, {c.spin_max}
    s_cbranch_scc0 L_poll
    s_endpgm
""")
    else:
        a(f"""L_poll:
    s_waitcnt vmcnt(0)
    v_cmp_eq_u64 vcc, s[{sTA}:{sTA+1}], v[{vPOLL}:{vPOLL+1}]
    v_cmp_eq_u64 s[{sMK}:{sMK+1}], s[{sTB}:{sTB+1}], v[{vPOLL}:{vPOLL+1}]
    s_or_b64 vcc, vcc, s[{sMK}:{sMK+1}]
    s_cmp_eq_u64 vcc, -1
    s_cbranch_scc1 L_ready
    buffer_load_dwordx2 v[{vPOLL}:{vPOLL+1}], v{vFA}, s[{sWS}:{sWS+3}], 0 offen sc1
    s_add_u32 s{sSPIN}, s{sSPIN}, 1
    s_cmp_gt_u32 s{sSPIN}, {c.spin_max}
    s_cbranch_scc0 L_poll
    s_endpgm
""")
    a(f"""L_ready:
    s_add_u32 s{sTA}, s{sTA}, 1
    s_addc_u32 s{sTA+1}, s{sTA+1}, 0
    s_add_u32 s{sTB}, s{sTB}, 1
    s_addc_u32 s{sTB+1}, s{sTB+1}, 0
    s_branch L_layer
L_final:
""")
    epi(0); epi(1); epi(2); epi(3)
    a(f"""
    s_nop 1
    v_permlane32_swap_b32 v{vP}, v{vP+2}
    v_permlane32_swap_b32 v{vP+1}, v{vP+3}
    v_permlane32_swap_b32 v{vP+4}, v{vP+6}
    v_permlane32_swap_b32 v{vP+5}, v{vP+7}
    buffer_store_dwordx4 v[{vP}:{vP+3}], v{vOUT}, s[{sOUT}:{sOUT+3}], 0 offen
    buffer_store_dwordx4 v[{vP+4}:{vP+7}], v{vOUT}, s[{sOUT}:{sOUT+3}], 0 offen offset:32
    s_or_b32 s{sT0}, s{sJ}, s{sWV}
    s_cmp_eq_u32 s{sT0}, 0
    s_cbranch_scc0 L_noepoch
    s_add_u32 s{sT0}, s{sE}, 16
    s_addc_u32 s{sT1}, s{sE+1}, 0
    v_mov_b32 v{vFV}, s{sT0}
    v_mov_b32 v{vFV+1}, s{sT1}
    s_mov_b64 exec, 1
    buffer_store_dwordx2 v[{vFV}:{vFV+1}], off, s[{sWS}:{sWS+3}], s{sCB} sc1
    s_mov_b64 exec, -1
L_noepoch:
""")
    if c.exp_delay or c.exp_rt:
        ins = "s_memtime" if c.exp_delay else "s_memrealtime"
        a(f"""
    {ins} s[80:81]
    s_waitcnt lgkmcnt(0)
L_expd:
    {ins} s[82:83]
    s_waitcnt lgkmcnt(0)
    s_sub_u32 s82, s82, s80
    s_cmp_lt_u32 s82, {c.exp_delay or c.exp_rt}
    s_cbranch_scc1 L_expd
""")
    stamp(1); dump_ts()
    a("    s_endpgm")

    if c.helpers:
        HPR = (c.SV * 16 + (2 * NSR if c.sp else 0)) if c.hp is None else c.hp * 16
        HP = HPR // 16
        nrow = 208 - HPR
        nline = nrow * 13
        tot = 4 * nline
        nins = (tot + 63) // 64
        cdelta = HPR * ROWB
        NK = -(-nins // 48)
        HF = 1 if ((c.h0 == 'prefix' or c.w0assist) and c.hfirst == 0) else c.hfirst
        a(f"""
L_helper:
    s_sub_u32 s{sT0}, s2, 208
    s_and_b32 s{sT1}, s{sT0}, 7
    s_lshr_b32 s{sT0}, s{sT0}, 3
    s_lshl_b32 s{sT0}, s{sT0}, 3
    s_add_u32 s{sT0}, s{sT0}, s{sWV}          ; g = 0..47
    s_lshl_b32 s{sCB}, s{sT1}, 13
    s_add_u32 s{sCB}, s{sCB}, {CTRL}
    s_load_dwordx2 s[{sE}:{sE+1}], s[50:51], s{sCB}
    s_add_u32 s{sOWNF}, s{sCB}, 3072
""")
        if c.tlbwarm:
            a(f"""
    s_cmp_eq_u32 s{sWV}, 7
    s_cbranch_scc0 L_notlb
""")
            k_ = 0
            for base, offs in ((46, [0, XLAYER - 64]), (50, [0, XBUF - 64, XBUF + (1 << 20), 2 * XBUF - 64, 2 * XBUF + 65536 - 64]),
                               (42, [1 << 21, 2 << 21, 3 << 21, L_ * WLAYER - 64])):
                for off in offs:
                    a(f"""    s_add_u32 s24, s{base}, {off}
    s_addc_u32 s25, s{base+1}, 0
    s_load_dword s{76+k_}, s[24:25], 0""")
                    k_ += 1
            a("L_notlb:")
        a(f"""
    s_mul_i32 s{sG}, s{sT1}, {2*XRB}
    s_lshl_b32 s{sI}, s{sT0}, 13
    s_add_u32 s{sG}, s{sG}, s{sI}
    v_lshlrev_b32 v19, 7, v{vL}
    v_add_u32 v19, s{sG}, v19
    s_cmp_lt_u32 s{sT0}, {-(-2*XRB // 8192)}
    s_cselect_b32 s{sM}, 1, 0
""")
        def lane_addr(vdst, nline_, base0, delta):
            tot_ = 4 * nline_
            a(f"""
    s_lshl_b32 s{sI}, s{sI}, 6
    v_add_u32 v{vT0}, s{sI}, v{vL}
    v_mov_b32 v{vT1}, {base0}
    v_cmp_le_u32 vcc, {nline_}, v{vT0}
    v_mov_b32 v{vT2}, 0
    v_mov_b32 v{vT3}, {delta}
    v_cndmask_b32 v{vT2}, v{vT2}, v{vT3}, vcc
    v_add_u32 v{vT1}, v{vT1}, v{vT2}
    v_cmp_le_u32 vcc, {2*nline_}, v{vT0}
    v_mov_b32 v{vT2}, 0
    s_nop 0
    v_cndmask_b32 v{vT2}, v{vT2}, v{vT3}, vcc
    v_add_u32 v{vT1}, v{vT1}, v{vT2}
    v_cmp_le_u32 vcc, {3*nline_}, v{vT0}
    v_mov_b32 v{vT2}, 0
    s_nop 0
    v_cndmask_b32 v{vT2}, v{vT2}, v{vT3}, vcc
    v_add_u32 v{vT1}, v{vT1}, v{vT2}
    v_lshl_add_u32 v{vdst}, v{vT0}, 7, v{vT1}
    v_cmp_le_u32 vcc, {tot_}, v{vT0}
    v_mov_b32 v{vT2}, 0x7ffffff0
    s_nop 0
    v_cndmask_b32 v{vdst}, v{vdst}, v{vT2}, vcc""")
        def need_set(vbase, skip_rows, nrows):
            tot_ = nrows * 52
            nins_ = (tot_ + 63) // 64
            nk = -(-nins_ // 48)
            for k in range(nk):
                a(f"""
    s_add_u32 s{sI}, s{sT0}, {48*k}
    s_lshl_b32 s{sI}, s{sI}, 6
    v_add_u32 v{vT0}, s{sI}, v{vL}
    v_mul_u32_u24 v{vT1}, 80660, v{vT0}
    v_lshrrev_b32 v{vT1}, 22, v{vT1}
    v_mul_u32_u24 v{vT2}, 52, v{vT1}
    v_sub_u32 v{vT2}, v{vT0}, v{vT2}          ; rem
    v_mul_u32_u24 v{vT3}, 5042, v{vT2}
    v_lshrrev_b32 v{vT3}, 16, v{vT3}
    v_mul_u32_u24 v{vbase+k}, 13, v{vT3}
    v_sub_u32 v{vT2}, v{vT2}, v{vbase+k}
    v_mul_u32_u24 v{vT3}, 208, v{vT3}
    v_add_u32 v{vT1}, v{vT1}, v{vT3}
    v_add_u32 v{vT1}, {skip_rows}, v{vT1}     ; row
    v_mul_u32_u24 v{vT1}, {ROWB}, v{vT1}
    v_lshl_add_u32 v{vbase+k}, v{vT2}, 7, v{vT1}
    v_cmp_le_u32 vcc, {tot_}, v{vT0}
    v_mov_b32 v{vT2}, 0x7ffffff0
    s_nop 0
    v_cndmask_b32 v{vbase+k}, v{vbase+k}, v{vT2}, vcc""")
            return nk
        def addr_set(vbase, nline_, base0, delta, tag):
            tot_ = 4 * nline_
            nins_ = (tot_ + 63) // 64
            nk = -(-nins_ // 48)
            a(f"    s_mul_i32 s{sT2}, s{sT1}, {nins_ // 8}")
            for k in range(nk):
                a(f"""
    s_add_u32 s{sT3}, s{sT0}, {48*k}
    s_add_u32 s{sI}, s{sT3}, s{sT2}
    s_cmp_ge_u32 s{sI}, {nins_}
    s_cselect_b32 s{sG}, {nins_}, 0
    s_sub_u32 s{sI}, s{sI}, s{sG}
    s_cmp_ge_u32 s{sT3}, {nins_}
    s_cselect_b32 s{sI}, {nins_ + 8}, s{sI}   ; no k-th instruction -> past the end""")
                lane_addr(vbase + k, nline_, base0, delta)
            return nk
        NK0 = 0
        if c.w0assist and c.hfirst == 0:
            skip0 = P * 16 + 60
            NK0 = addr_set(40, (208 - skip0) * 13, skip0 * ROWB, skip0 * ROWB, "p")
            for k in range(NK0):
                a(f"    buffer_load_dword v{50+k}, v{40+k}, s[{sW}:{sW+3}], 0 offen")
        elif c.h0 == "prefix" and c.hfirst == 0:
            NK0 = addr_set(40, HP * 16 * 13, 0, (13 - HP) * 26624, "p")
            for k in range(NK0):
                a(f"    buffer_load_dword v{50+k}, v{40+k}, s[{sW}:{sW+3}], 0 offen")
        if c.horder == "need": need_set(10, HPR, nrow)
        else: addr_set(10, nline, cdelta, cdelta, "h")
        nshare_l = tot // 8
        NW_ = 14
        if c.hwarm:
            a(f"""
    s_mul_i32 s{sI}, s{sT1}, {nshare_l}
    s_mul_i32 s{sG}, s{sT0}, {NW_}
    s_add_u32 s{sI}, s{sI}, s{sG}
    s_mov_b32 s{sG}, {cdelta}
    s_cmp_ge_u32 s{sI}, {nline}
    s_cselect_b32 s{sT3}, {cdelta}, 0
    s_add_u32 s{sG}, s{sG}, s{sT3}
    s_cmp_ge_u32 s{sI}, {2*nline}
    s_cselect_b32 s{sT3}, {cdelta}, 0
    s_add_u32 s{sG}, s{sG}, s{sT3}
    s_cmp_ge_u32 s{sI}, {3*nline}
    s_cselect_b32 s{sT3}, {cdelta}, 0
    s_add_u32 s{sG}, s{sG}, s{sT3}
    s_lshl_b32 s{sI}, s{sI}, 7
    s_add_u32 s{sI}, s{sI}, s{sG}
    s_add_u32 s{sI}, s{sI}, {c.wstride}
    s_add_u32 s44, s42, s{sI}                 ; layer 1
    s_addc_u32 s45, s43, 0""")
        if NK0 and c.hwarm:
            a("    s_waitcnt lgkmcnt(0)")
            for half in range(2):
                if half: a("    s_waitcnt lgkmcnt(0)")
                for n_ in range(7 * half, 7 * half + 7):
                    a(f"    s_load_dwordx2 s[{76+2*(n_%7)}:{77+2*(n_%7)}], s[44:45], {n_*128 + 60}")
            a(f"    s_add_u32 s44, s44, {c.wstride}")
            a(f"    s_addc_u32 s45, s45, 0")
        if NK0:
            a(f"""
    s_waitcnt vmcnt(0)
    s_barrier
    s_cmp_eq_u32 s{sM}, 1
    s_cbranch_scc0 L_hx1
    s_mov_b32 s{sI}, {XBUF}
    buffer_load_dword v30, v19, s[{sWS}:{sWS+3}], s{sI} offen sc1
L_hx1:
""")
        a(f"""
    v_mov_b32 v20, 0
    s_mov_b32 s{sL}, {HF}
    s_mov_b32 s{sT3}, {HF * c.wstride}
    s_waitcnt lgkmcnt(0)
L_h_layer:
""")
        if c.hpace:
            a(f"""
    s_cmp_lt_u32 s{sL}, {c.hlook}
    s_cbranch_scc1 L_h_go
    s_cmp_eq_u32 s{sWV}, 0
    s_cbranch_scc0 L_h_bar
    s_mov_b32 s{sSPIN}, 0
L_h_poll:
    buffer_load_dwordx2 v[16:17], v20, s[{sWS}:{sWS+3}], s{sOWNF} offen sc1
    s_waitcnt vmcnt(0)
    v_readfirstlane_b32 s{sTA}, v16
    v_readfirstlane_b32 s{sTA+1}, v17
    s_sub_u32 s{sTA}, s{sTA}, s{sE}
    s_subb_u32 s{sTA+1}, s{sTA+1}, s{sE+1}
    s_cmp_eq_u32 s{sTA+1}, 0
    s_cselect_b32 s{sTA}, s{sTA}, 0
    s_cmp_gt_u32 s{sTA}, 6
    s_cselect_b32 s{sTA}, 0, s{sTA}
    s_add_u32 s{sTA}, s{sTA}, {c.hlook - 1}
    s_cmp_ge_u32 s{sTA}, s{sL}
    s_cbranch_scc1 L_h_bar
    s_add_u32 s{sSPIN}, s{sSPIN}, 1
    s_cmp_lt_u32 s{sSPIN}, 32
    s_cbranch_scc1 L_h_poll
L_h_bar:
    s_barrier
L_h_go:
""")
        def hw_batch(k, lab):
            if not c.hwarm: return
            a(f"    s_cmp_lt_u32 s{sL}, 5")
            a(f"    s_cbranch_scc0 {lab}")
            a("    s_waitcnt lgkmcnt(0)")
            for n_ in range(7 * k, 7 * k + 7):
                a(f"    s_load_dwordx2 s[{76+2*(n_%7)}:{77+2*(n_%7)}], s[44:45], {n_*128 + 60}")
            a(f"{lab}:")
        for k in range(NK):
            a(f"    buffer_load_dword v{31+k}, v{10+k}, s[{sW}:{sW+3}], s{sT3} offen")
            if k < 2: hw_batch(k, f"L_hw{k}")
            a(f"    s_waitcnt vmcnt({c.hdepth})")
            a(f"    s_barrier")
        if c.hwarm:
            a(f"    s_add_u32 s44, s44, {c.wstride}")
            a(f"    s_addc_u32 s45, s45, 0")
        a(f"""
    s_sub_u32 s{sI}, s{sL}, {HF}
    s_add_u32 s{sI}, s{sI}, {1 if HF != c.hfirst else 0}
    s_cmp_lt_u32 s{sI}, 2
    s_cbranch_scc0 L_hx0
    s_cmp_eq_u32 s{sM}, 1
    s_cbranch_scc0 L_hx0
    s_cmp_eq_u32 s{sI}, 0
    s_cselect_b32 s{sI}, {XBUF}, 0
    buffer_load_dword v30, v19, s[{sWS}:{sWS+3}], s{sI} offen sc1
L_hx0:
""")
        stamp(1)
        a(f"""
    s_add_u32 s{sL}, s{sL}, 1
    s_add_u32 s{sT3}, s{sT3}, {c.wstride}
    s_cmp_lt_u32 s{sL}, 6
    s_cbranch_scc1 L_h_layer
""")
        a("    s_waitcnt vmcnt(0)")
        stamp(1)
        dump_ts()
    a("L_end:")
    a("    s_endpgm")
    kernel_desc(a, KNAME, NV, sgpr=102, accum=NV)
    txt = a.text().rstrip()
    if txt.endswith(".text"):
        txt = txt[:-5]
    return txt

if __name__ == "__main__":
    import json
    kw = json.loads(sys.argv[2]) if len(sys.argv) > 2 else {}
    open(sys.argv[1], "w").write(gen(**kw))
```

```python
import sys, os
from asmlib import *

KNAME = "standalone__dcn_v2_cross__recsys_kernel"
B_, DIN, L_ = 1024, 832, 6
ROWB = DIN * 2
WLAYER = DIN * DIN * 2
XLAYER = B_ * DIN * 2
XMH = 32 * ROWB
XRB = 2 * XMH
XBUF = 16 * XRB
CTRL = 2 * XBUF
TSOFF = CTRL + 16 * 4096
WS_BYTES = TSOFF + 256 * 8 * 256

class Cfg:
    def __init__(self, **kw):
        self.P = 6
        self.D = 5
        self.PF = 2
        self.SV = 3
        self.SB = 7
        self.ssched = 'two'
        self.NS = 3
        self.sp = True
        self.hp = None
        self.helpers = True
        self.hfirst = 0
        self.hlook = 2
        self.hpace = True
        self.hdepth = 1
        self.lthr = 0
        self.lthr_all = True
        self.sD_late = True
        self.ts = 0
        self.force_slow = False
        self.scramble = False
        self.spin_max = 1 << 20
        self.wstride = WLAYER
        self.prio = 2
        self.hello_step = 19
        self.codepf = True
        self.wwarm = 2
        self.xt_by = 'worker'
        self.hvec_warm = True
        self.hvw_ahead = 2
        self.hvw_pos = 'after'
        self.tlbwarm = True
        self.l0b1 = False
        self.hvwarm = False
        self.hw0 = False
        self.hello_by = 'compute'
        self.pre_first = False
        self.swarm = False
        self.horder = 'linear'
        self.hwarm = False
        self.prog_step = 22
        self.prog_at = 'end'
        self.vwarm = False
        self.pre_by = 'loader'
        self.mid_step = 21
        self.presched = 'pack'
        self.h0 = 'middle'
        self.xtouch = False
        self.w0assist = False
        self.bias_by = 'loader'
        self.exp_delay = 0
        self.exp_rt = 0
        self.poll2 = True
        self.phased = True
        self.n1 = 4
        self.n2 = 4
        self.onepoll = True
        self.no_suf = self.no_pre = self.no_x = self.no_w = False
        self.__dict__.update(kw)

def gen(cfg=None, **kw):
    c = cfg or Cfg(**kw)
    P, D, PF = c.P, c.D, c.PF
    TS = int(c.ts)
    assert P <= 12 and PF <= P and D >= PF + 1
    KHS = (26 - P) * 2048
    PRE0 = 0
    SUF = 2 * P * 2048
    PRE1 = SUF + 2 * KHS
    PREPAR = PRE1 - PRE0
    RED = PRE1 + 2 * P * 2048
    BIAS = RED + 16384
    MODEW = BIAS
    LDS_BYTES = BIAS + 64
    XS = SUF
    assert XS + 4 * 28672 <= BIAS and LDS_BYTES <= 163840
    sW, sWS, sX0, sOUT, sBS = 4, 8, 12, 16, 24
    sRB, sJ, sG2, sWV, sMH, sKH, sL, sXCC, sMODE = 28, 29, 30, 31, 32, 33, 34, 35, 36
    sXA, sXB, sXST = 37, 38, 39
    sWP, sMP, sPD = 52, 53, 54
    sU, sOWNF, sXD2 = 55, 56, 57
    sT0, sT1, sT2, sT3 = 58, 59, 60, 61
    sSPIN, sROT = 62, 63
    sG, sM, sI = 64, 65, 66
    sTSI, sTM = 67, 68
    sXD, sCB = 70, 71
    sE, sTA, sTB, sMK = 72, 74, 76, 78
    sBP_ = 48
    sWG = 30
    vL = 0
    vT0, vT1, vT2, vT3 = 1, 2, 3, 4
    vDUM = 5
    vXO = 6
    vAPK, vAPS, vASK, vASS = 10, 11, 12, 13
    vDMA, vFA = 14, 15
    vPOLL = 16
    vRW, vRR, vBA, vTS = 20, 21, 22, 23
    vP = 24
    vAK, vAS, vPART, vX0F, vXR = 32, 48, 64, 80, 96
    vWF = 112
    vXF = 136
    vBP = 240
    vOUT, vHA, vFV, vDMA0 = 248, 249, 250, 252
    vPOL2 = 254
    NV = 256
    nsets = PF + 1
    assert nsets * 8 <= 24

    a = Asm()
    a("; Fused DCN-v2 cross network: 6 layers of x = x0 * (x @ W[l] + b[l]) + x, 1024 x 832, bf16 in/out, f32 accumulate.")
    a("; 208 worker workgroups = 16 row blocks (64 rows) x 13 column slices (64 columns); waves 0-3 MFMA, waves 4-7 W loaders;")
    a(f"; @launch grid=({256 if c.helpers else 208},1,1) block=(512,1,1) lds={LDS_BYTES}")
    a('.amdgcn_target "amdgcn-amd-amdhsa--gfx950"')
    a(".text")
    kernel_begin(a, KNAME)
    if TS == 5:
        a("    s_memrealtime s[26:27]")
        a("    s_memtime s[100:101]")

    def stamp(level=2):
        if not TS or TS < level or (TS == 4 and level > 1) or TS == 5: return
        a(f"    s_memtime s[{sTM}:{sTM+1}]")
        a(f"    s_waitcnt lgkmcnt(0)")
        a(f"    s_mov_b32 m0, s{sTSI}")
        a(f"    s_nop 0")
        a(f"    v_writelane_b32 v{vTS}, s{sTM}, m0")
        a(f"    s_add_u32 s{sTSI}, s{sTSI}, 1")
    def dump_ts():
        if not TS: return
        if TS == 5:
            a("    s_memrealtime s[80:81]")
            a("    s_memtime s[82:83]")
            a("    s_waitcnt lgkmcnt(0)")
            a(f"    v_writelane_b32 v{vTS}, s26, 0")
            a(f"    v_writelane_b32 v{vTS}, s80, 1")
            a(f"    v_writelane_b32 v{vTS}, s100, 2")
            a(f"    v_writelane_b32 v{vTS}, s82, 3")
        a(f"""
    s_lshl_b32 s{sT0}, s2, 3
    s_add_u32 s{sT0}, s{sT0}, s{sWV}
    s_lshl_b32 s{sT0}, s{sT0}, 8
    s_add_u32 s{sT0}, s{sT0}, {TSOFF}
    v_lshlrev_b32 v{vT0}, 2, v{vL}
    buffer_store_dword v{vTS}, v{vT0}, s[{sWS}:{sWS+3}], s{sT0} offen
""")
    def srd(dst, src, nbytes):
        a(f"    s_mov_b32 s{dst}, s{src}")
        a(f"    s_and_b32 s{dst+1}, s{src+1}, 0xffff")
        a(f"    s_mov_b32 s{dst+2}, {nbytes}")
        a(f"    s_mov_b32 s{dst+3}, 0x20000")

    a(f"""
    s_cmp_ge_u32 s2, {256 if c.helpers else 208}
    s_cbranch_scc1 L_end
    s_load_dwordx4 s[40:43], s[0:1], 0
    s_load_dwordx4 s[44:47], s[0:1], 16
    s_load_dwordx2 s[50:51], s[0:1], 40
    s_getreg_b32 s{sXCC}, hwreg(HW_REG_XCC_ID, 0, 4)
""")
    if c.scramble:
        a(f"""
    s_mul_hi_u32 s{sRB}, s2, 0x13B13B14
    s_mul_i32 s{sT0}, s{sRB}, 13
    s_sub_u32 s{sJ}, s2, s{sT0}
    s_and_b32 s{sG2}, s{sRB}, 1
    s_mul_i32 s{sROT}, s{sG2}, 13""")
    else:
        a(f"""
    s_and_b32 s{sT0}, s2, 7
    s_lshr_b32 s{sT1}, s2, 3
    s_cmp_ge_u32 s{sT1}, 13
    s_cselect_b32 s{sG2}, 1, 0
    s_mul_i32 s{sROT}, s{sG2}, 13
    s_sub_u32 s{sJ}, s{sT1}, s{sROT}
    s_lshl_b32 s{sRB}, s{sT0}, 1
    s_add_u32 s{sRB}, s{sRB}, s{sG2}""")
    a(f"""
    v_lshrrev_b32 v{vT0}, 6, v0
    v_and_b32 v{vL}, 63, v0
    v_readfirstlane_b32 s{sWV}, v{vT0}
    s_mov_b32 s{sTSI}, 0
    v_mov_b32 v{vTS}, 0
    s_lshl_b32 s{sCB}, s{sRB}, 12
    s_add_u32 s{sCB}, s{sCB}, {CTRL}
    s_and_b32 s{sMH}, s{sWV}, 1
    s_bfe_u32 s{sKH}, s{sWV}, 0x10001
    v_lshrrev_b32 v{vT0}, 3, v{vL}            ; row8
    v_and_b32 v{vT1}, 7, v{vL}
    v_bfe_u32 v{vT2}, v{vL}, 4, 1
    v_lshlrev_b32 v{vT2}, 2, v{vT2}
    v_xor_b32 v{vT1}, v{vT1}, v{vT2}
    v_lshlrev_b32 v{vT1}, 4, v{vT1}
    s_lshl_b32 s{sT0}, s{sJ}, 7
    v_add_u32 v{vT1}, s{sT0}, v{vT1}
    v_mul_u32_u24 v{vT2}, {ROWB}, v{vT0}
    v_add_u32 v{vDMA}, v{vT2}, v{vT1}
    v_and_b32 v{vT2}, 3, v{vT0}
    v_lshrrev_b32 v{vT0}, 2, v{vT0}
    v_lshl_add_u32 v{vT0}, v{vT0}, 3, v{vT2}
    v_mul_u32_u24 v{vT0}, {ROWB}, v{vT0}
    v_add_u32 v{vDMA0}, v{vT0}, v{vT1}
    s_waitcnt lgkmcnt(0)
""")
    srd(sX0, 40, XLAYER)
    srd(sW, 42, L_ * WLAYER)
    srd(sWS, 50, WS_BYTES)
    if c.codepf:
        a(f"""    ; instruction prefetch into L2: wave (id/8)*8 + w reads line number (that index) of this kernel's code
    s_getpc_b64 s[20:21]
L_pc:
    s_lshr_b32 s22, s2, 3
    s_lshl_b32 s22, s22, 3
    s_add_u32 s22, s22, s{sWV}
    s_lshl_b32 s22, s22, 6
    s_min_u32 s22, s22, L_end - L_pc
    s_load_dword s3, s[20:21], s22""")
    stamp(1)
    if c.helpers:
        a(f"""
    s_cmp_ge_u32 s2, 208
    s_cbranch_scc1 L_helper
""")
    a(f"""
    s_cmp_lt_u32 s{sWV}, 4
    s_cbranch_scc1 L_compute
""")
    def bias_dma(sreg, val, lab):
        a(f"    s_cmp_eq_u32 s{sreg}, {val}")
        a(f"    s_cbranch_scc0 {lab}")
        srd(sBS, 44, L_ * ROWB)
        a(f"""    v_lshrrev_b32 v{vT0}, 5, v{vL}
    v_mul_u32_u24 v{vT0}, {ROWB}, v{vT0}
    v_and_b32 v{vT1}, 31, v{vL}
    v_lshlrev_b32 v{vT1}, 2, v{vT1}
    v_add_u32 v{vT0}, v{vT0}, v{vT1}
    s_lshl_b32 s{sT0}, s{sJ}, 7
    v_add_u32 v{vT0}, s{sT0}, v{vT0}""")
        for t in range(3):
            a(f"    s_mov_b32 m0, {BIAS + 256*t}")
            a(f"    s_mov_b32 s{sT1}, {2*t*ROWB}")
            a(f"    buffer_load_dword v{vT0}, s[{sBS}:{sBS+3}], s{sT1} offen lds")
        a(f"{lab}:")
    vS0, vS1 = vXO, vXO + 1
    sSB = 40
    sWP0 = 98
    SB = c.SB
    NSR = (2 if c.ssched == 'two' else 3) * SB
    def sbatch(k, nextlayer=False):
        if not c.sp: return
        b = sSB + 2 if nextlayer else sSB
        for n_ in range(SB):
            a(f"    s_load_dwordx2 s[{76+2*n_}:{77+2*n_}], s[{b}:{b+1}], {(k * SB + n_) * ROWB + 60}")
    a(f"""
    s_sub_u32 s{sU}, s{sWV}, 4
""")
    if c.xtouch:
        a(f"""
    s_cmp_eq_u32 s{sU}, 0
    s_cbranch_scc0 L_notouch
    s_lshl_b32 s{sT0}, s{sRB}, 6
    s_mul_i32 s{sT0}, s{sT0}, {ROWB}
    s_lshl_b32 s{sT1}, s{sJ}, 7
    s_add_u32 s{sT0}, s{sT0}, s{sT1}
    v_mul_u32_u24 v20, {ROWB}, v{vL}
    s_mov_b32 s20, s{sT0}
    buffer_load_dword v{vDUM}, v20, s[{sX0}:{sX0+3}], s20 offen""")
    a(f"""
L_notouch:
""")
    a(f"""
    s_mul_i32 s{sT0}, s{sKH}, 416
    s_lshl_b32 s{sT1}, s{sMH}, 2
    s_add_u32 s{sT1}, s{sT1}, s{sT0}
    s_mul_i32 s{sT1}, s{sT1}, {ROWB}
    v_add_u32 v{vDMA0}, s{sT1}, v{vDMA0}
    s_lshl_b32 s{sT1}, s{sMH}, 3
    s_add_u32 s{sT1}, s{sT1}, s{sT0}
    s_mul_i32 s{sT1}, s{sT1}, {ROWB}
    v_add_u32 v{vDMA}, s{sT1}, v{vDMA}
    v_lshrrev_b32 v{vT0}, 3, v{vL}            ; row8
    v_and_b32 v{vT1}, 7, v{vL}
    v_lshrrev_b32 v{vT2}, 1, v{vT0}
    v_xor_b32 v{vT1}, v{vT1}, v{vT2}          ; c' ^ (row8>>1)
    v_xor_b32 v{vT2}, 4, v{vT1}
    v_mul_u32_u24 v{vT0}, {ROWB}, v{vT0}
    v_lshl_add_u32 v{vS0}, v{vT1}, 4, v{vT0}
    v_lshl_add_u32 v{vS1}, v{vT2}, 4, v{vT0}
    s_lshl_b32 s{sT0}, s{sRB}, 6
    s_lshl_b32 s{sT1}, s{sMH}, 5
    s_add_u32 s{sT0}, s{sT0}, s{sT1}
    s_mul_i32 s{sG}, s{sT0}, {ROWB}
    s_mul_i32 s{sT1}, s{sKH}, {6*128}
    s_add_u32 s{sG}, s{sG}, s{sT1}
    s_mul_i32 s{sM}, s{sU}, 28672
    s_add_u32 s{sM}, s{sM}, {XS}
    s_cmp_ge_u32 s{sJ}, 7
    s_cselect_b32 s{sT3}, 7, 0
    s_sub_u32 s{sT3}, s{sJ}, s{sT3}
    s_mov_b32 s{sI}, 0
L_xs:
    s_lshl_b32 s{sT0}, s{sT3}, 12
    s_add_u32 s{sT0}, s{sT0}, s{sM}
    s_lshl_b32 s{sT1}, s{sT3}, 7
    s_add_u32 s{sT1}, s{sT1}, s{sG}
""")
    for rg in range(4):
        a(f"    s_add_u32 m0, s{sT0}, {rg*1024}")
        a(f"    s_add_u32 s{sT2}, s{sT1}, {rg*8*ROWB}")
        a(f"    buffer_load_dwordx4 v{vS0 if rg % 2 == 0 else vS1}, s[{sX0}:{sX0+3}], s{sT2} offen lds")
    a(f"""
    s_add_u32 s{sT3}, s{sT3}, 1
    s_cmp_eq_u32 s{sT3}, 7
    s_cselect_b32 s{sT3}, 0, s{sT3}
    s_add_u32 s{sI}, s{sI}, 1
    s_cmp_lt_u32 s{sI}, 7
    s_cbranch_scc1 L_xs
    ; ---- W prefix of layer 0
    s_mul_i32 s{sG}, s{sROT}, 26624
    s_mul_i32 s{sM}, s{sKH}, {P*2048}
    s_lshl_b32 s{sT1}, s{sMH}, 10
    s_add_u32 s{sM}, s{sM}, s{sT1}
""")
    for i in range(P):
        a(f"    s_add_u32 m0, s{sM}, {PRE0 + i*2048}")
        a(f"    s_add_u32 s{sT0}, s{sG}, {i*26624}")
        a(f"    buffer_load_dwordx4 v{vDMA0}, s[{sW}:{sW+3}], s{sT0} offen lds")
    a(f"""
""")
    if c.w0assist:
        a(f"""
    s_cmp_eq_u32 s{sU}, 3
    s_cbranch_scc0 L_now0t
    v_lshrrev_b32 v21, 5, v{vL}               ; K half
    v_mul_u32_u24 v21, 416, v21
    v_and_b32 v22, 31, v{vL}
    v_add_u32 v21, v21, v22
    v_mul_u32_u24 v21, {ROWB}, v21
    s_lshl_b32 s20, s{sROT}, 4
    s_add_u32 s20, s20, {P * 16 + 28}
    s_mul_i32 s20, s20, {ROWB}
    s_lshl_b32 s21, s{sJ}, 7
    s_add_u32 s20, s20, s21
    buffer_load_dword v{vDUM}, v21, s[{sW}:{sW+3}], s20 offen
L_now0t:""")
    a(f"""
""")
    if c.xt_by == "worker":
        a(f"""
    v_lshrrev_b32 v21, 5, v{vL}
    v_mul_u32_u24 v21, {XMH}, v21
    v_and_b32 v22, 31, v{vL}
    v_lshl_add_u32 v21, v22, 7, v21
    s_mul_i32 s22, s{sRB}, {XRB}
    s_lshl_b32 s23, s{sJ}, 12
    s_add_u32 s22, s22, s23                   ; buffer 0
    s_add_u32 s23, s22, {XBUF}                ; buffer 1
    s_cmp_eq_u32 s{sU}, 1
    s_cbranch_scc0 L_noxt1
    buffer_load_dword v{vDUM}, v21, s[{sWS}:{sWS+3}], s23 offen sc1
L_noxt1:""")
    if c.hello_by == "loader":
        a(f"""
    s_load_dwordx2 s[{sE}:{sE+1}], s[50:51], s{sCB}
    s_add_u32 s{sT0}, s{sCB}, 128
    s_add_u32 s46, s50, s{sT0}
    s_addc_u32 s47, s51, 0""")
    a(f"""
    s_mul_i32 s{sT2}, s{sKH}, {KHS}
    s_lshl_b32 s{sT1}, s{sMH}, 10
    s_add_u32 s{sT2}, s{sT2}, s{sT1}
    s_add_u32 s{sMP}, s{sT2}, {SUF}
    s_mul_i32 s70, s{sKH}, {P*2048}
    s_add_u32 s70, s70, s{sT1}
    s_add_u32 s70, s70, {PRE1}                ; prefix of layer 1 goes to parity 1
    s_mov_b32 s71, {PREPAR}
    s_mul_i32 s{sT0}, s{sKH}, 416
    s_lshl_b32 s{sT1}, s{sROT}, 4
    s_add_u32 s{sT0}, s{sT0}, s{sT1}
    s_mul_i32 s{sT1}, s{sMH}, {NSR}
    s_add_u32 s{sT0}, s{sT0}, s{sT1}
    s_add_u32 s{sT0}, s{sT0}, {c.SV * 16}
    s_mul_i32 s{sT0}, s{sT0}, {ROWB}
    s_lshl_b32 s{sT1}, s{sJ}, 7
    s_add_u32 s{sT0}, s{sT0}, s{sT1}
    s_add_u32 s{sT0}, s{sT0}, {c.wstride}
    s_mov_b32 s98, s42
    s_mov_b32 s99, s43
    s_add_u32 s40, s42, s{sT0}
    s_addc_u32 s41, s43, 0
    s_add_u32 s42, s40, {c.wstride}
    s_addc_u32 s43, s41, 0
""")
    def swarm(k):
        if not (c.swarm and c.sp): return
        lst = [(l, r) for l in range(2, 6) for r in range(3)]
        lst = lst[:7] if k == 0 else lst[7:]
        cur = None
        for n_, (l, r) in enumerate(lst):
            if cur != l:
                a(f"    s_add_u32 s46, s44, {l * c.wstride}")
                a(f"    s_addc_u32 s47, s45, 0")
                cur = l
            a(f"    s_load_dwordx2 s[{76+2*n_}:{77+2*n_}], s[46:47], {r*ROWB + 60}")
    if c.swarm and c.sp:
        per_range = 2 * NSR // 3
        a(f"""
    ; share of the S rows for the warm-up: q = rb*4 + u, range = q / {per_range}, rows 3*(q % {per_range}) ...
    s_lshl_b32 s{sT0}, s{sRB}, 2
    s_add_u32 s{sT0}, s{sT0}, s{sWV}
    s_sub_u32 s{sT0}, s{sT0}, 4
    s_min_u32 s{sT0}, s{sT0}, {4 * per_range - 1}
    s_mul_i32 s{sT1}, s{sT0}, {-(-65536 // per_range)}
    s_lshr_b32 s{sT1}, s{sT1}, 16             ; range
    s_mul_i32 s{sT2}, s{sT1}, {per_range}
    s_sub_u32 s{sT0}, s{sT0}, s{sT2}
    s_mul_i32 s{sT0}, s{sT0}, 3
    s_mul_i32 s{sT1}, s{sT1}, 208
    s_add_u32 s{sT0}, s{sT0}, s{sT1}
    s_add_u32 s{sT0}, s{sT0}, {c.SV * 16}
    s_mul_i32 s{sT0}, s{sT0}, {ROWB}
    s_lshl_b32 s{sT1}, s{sJ}, 7
    s_add_u32 s{sT0}, s{sT0}, s{sT1}
    s_add_u32 s44, s{sWP0}, s{sT0}
    s_addc_u32 s45, s{sWP0+1}, 0
""")
        swarm(0)
    if c.w0assist:
        a(f"""    s_cmp_eq_u32 s{sU}, 3
    s_cbranch_scc0 L_bxw
    s_waitcnt vmcnt({P + 1})
    s_branch L_bxw2
L_bxw:
    s_waitcnt vmcnt({P})
L_bxw2:""")
    elif c.xt_by == "worker":
        a(f"""    s_cmp_eq_u32 s{sU}, 1
    s_cbranch_scc0 L_bxw
    s_waitcnt vmcnt({P + 1})
    s_branch L_bxw2
L_bxw:
    s_waitcnt vmcnt({P})
L_bxw2:""")
    else:
        a(f"    s_waitcnt vmcnt({P})")
    stamp()
    a(f"""
    s_barrier                                 ; B_x
    s_barrier                                 ; B_y
""")
    if c.swarm and c.sp: a("    s_waitcnt lgkmcnt(0)")
    if c.hello_by != "loader" and c.ssched != "two": sbatch(0)
    def suffix(vreg, lay, thr=True, phased=False, bp=None):
        a(f"    s_mul_i32 s{sG}, s{sROT}, 26624")
        a(f"    s_add_u32 s{sG}, s{sG}, {lay}")
        a(f"    s_sub_u32 s{sM}, 13, s{sROT}")
        a(f"    s_mul_i32 s{sM}, s{sM}, 26624")
        a(f"    s_add_u32 s{sM}, s{sM}, {lay}")
        for n_, i in enumerate(range(P, 26)):
            if bp is not None and n_ == bp:
                a(f"    s_waitcnt vmcnt({bp})")
                a("    s_barrier                                 ; B_p: prefix of layer 0 has landed")
                if c.hello_by == "loader":
                    a(f"""    s_cmp_eq_u32 s{sWV}, 6
    s_cbranch_scc0 L_b0
    s_waitcnt lgkmcnt(0)
    s_load_dwordx16 s[76:91], s[46:47], 0 glc
    s_load_dwordx8 s[92:99], s[46:47], 64 glc
    s_load_dwordx2 s[20:21], s[46:47], 96 glc
    s_branch L_b0d
L_b0:""")
                    sbatch(0)
                    a("L_b0d:")
            if phased and n_ == c.n1: a("    s_barrier")
            if phased and n_ == c.n1 + c.n2: a("    s_barrier")
            a(f"    s_add_u32 m0, s{sMP}, {(i-P)*2048}")
            a(f"    s_add_u32 s{sI}, s{sG if i < 13 else sM}, {(i % 13) * 26624}")
            a(f"    buffer_load_dwordx4 v{vreg}, s[{sW}:{sW+3}], s{sI} offen lds")
            if c.lthr and thr and (c.lthr_all or n_ >= c.n1 + c.n2):
                a(f"    s_waitcnt vmcnt({c.lthr - 1})")
    sPP, sPDL = 70, 71
    def prefix_next(lay_next):
        a(f"    s_mul_i32 s{sG}, s{sROT}, 26624")
        a(f"    s_add_u32 s{sG}, s{sG}, s{lay_next}")
        for t in range(P):
            a(f"    s_add_u32 m0, s{sPP}, {t*2048}")
            a(f"    s_add_u32 s{sI}, s{sG}, {t*26624}")
            a(f"    buffer_load_dwordx4 v{vDMA}, s[{sW}:{sW+3}], s{sI} offen lds")
            if c.lthr and c.lthr_all and t + 1 < P:
                a(f"    s_waitcnt vmcnt({c.lthr - 1})")
        a(f"    s_sub_u32 s{sPP}, s{sPP}, s{sPDL}")
        a(f"    s_sub_u32 s{sPDL}, 0, s{sPDL}")
    def advance_sb():
        a(f"""    s_add_u32 s40, s40, {c.wstride}
    s_addc_u32 s41, s41, 0
    s_add_u32 s42, s42, {c.wstride}
    s_addc_u32 s43, s43, 0""")
    suffix(vDMA0, "0", False, False, bp=13 - P)
    n = 26 - P
    if c.hello_by != "loader":
        if c.sp and c.ssched != "two": a("    s_waitcnt lgkmcnt(0)")
        sbatch(1)
    a(f"    s_waitcnt vmcnt({n - (13 - P)})")
    stamp()
    a("    s_barrier                                 ; chunk [P,13)")
    if c.hello_by == "loader" and c.sp and c.l0b1:
        a(f"    s_cmp_eq_u32 s{sWV}, 6")
        a(f"    s_cbranch_scc1 L_nob1")
        a("    s_waitcnt lgkmcnt(0)"); sbatch(1)
        a("L_nob1:")
    if c.swarm and c.sp:
        a("    s_waitcnt lgkmcnt(0)"); swarm(1)
    a(f"    s_waitcnt vmcnt({26 - 20})")
    a("    s_barrier                                 ; chunk [13,20)")
    if c.hello_by == "loader":
        a(f"""    s_cmp_eq_u32 s{sWV}, 6
    s_cbranch_scc0 L_nohe
    s_add_u32 s{sT0}, s{sE}, 8
    s_addc_u32 s{sT1}, s{sE+1}, 0
    s_and_b32 s{sT2}, s{sT1}, 0x0fffffff
    s_lshl_b32 s22, s{sXCC}, 28
    s_xor_b32 s{sT1}, s{sT1}, s22
    s_mov_b32 s22, 1
    s_mov_b32 s23, 1
    s_waitcnt lgkmcnt(0)""")
        for m_ in range(13):
            lo = 76 + 2 * m_ if m_ < 12 else 20
            a(f"""    s_cmp_eq_u32 s{lo}, s{sT0}
    s_cselect_b32 s23, s23, 0
    s_cmp_eq_u32 s{lo+1}, s{sT1}
    s_cselect_b32 s22, s22, 0
    s_and_b32 s{lo+1}, s{lo+1}, 0x0fffffff
    s_cmp_eq_u32 s{lo+1}, s{sT2}
    s_cselect_b32 s23, s23, 0""")
        a(f"""    s_sub_u32 s22, 2, s22
    s_mul_i32 s22, s22, s23
    v_mov_b32 v25, s22
    v_mov_b32 v26, {MODEW}
    ds_write_b32 v26, v25
    s_waitcnt lgkmcnt(0)
""")
        sbatch(0)
        a("L_nohe:")
    a("    s_waitcnt vmcnt(0)")
    stamp()
    a("    s_barrier                                 ; chunk [20,26)")
    if c.pre_by == "loader":
        a("    s_barrier                                 ; B_mid")
        a(f"    s_mov_b32 s{sT3}, {c.wstride}")
        if not c.no_pre: prefix_next(sT3)
        if c.xt_by == "worker":
            a(f"""    s_cmp_eq_u32 s{sWV}, 5
    s_cbranch_scc0 L_noxt0
    buffer_load_dword v{vDUM}, v21, s[{sWS}:{sWS+3}], s22 offen sc1
L_noxt0:""")
    advance_sb()
    a(f"""
    s_barrier
    s_mov_b32 s{sL}, 1
    s_mov_b32 s{sT3}, {c.wstride}
L_ld_layer:
    s_cmp_lt_u32 s{sL}, 5
    s_cselect_b32 s{sU}, 1, 0
""")
    def guarded(fn, lab):
        if not c.sp: return
        a(f"    s_cmp_eq_u32 s{sU}, 1")
        a(f"    s_cbranch_scc0 {lab}")
        fn()
        a(f"{lab}:")
    if c.ssched != "two":
        guarded(lambda: sbatch(1), "L_sA")
    if not c.no_suf: suffix(vDMA, f"s{sT3}", True, c.phased)
    elif c.phased:
        a("    s_barrier"); a("    s_barrier")
    stamp()
    if c.ssched != "two":
        guarded(lambda: (a("    s_waitcnt lgkmcnt(0)"), sbatch(2)), "L_sB")
    if c.pre_by == "loader": a(f"    s_waitcnt vmcnt({26 - P})                 ; the prefix has landed")
    a("    s_barrier                                 ; B_a")
    if c.ssched == "two":
        guarded(lambda: sbatch(1), "L_sB")
    a("    s_waitcnt vmcnt(0)")
    stamp()
    a("    s_barrier")
    a(f"    s_cmp_lt_u32 s{sL}, 4")
    a(f"    s_cselect_b32 s{sU}, 1, 0")
    guarded(lambda: (a("    s_waitcnt lgkmcnt(0)"), sbatch(0, True)), "L_sC")
    if c.pre_by == "loader":
        a("    s_barrier                                 ; B_mid")
        stamp(3)
        a(f"    s_cmp_lt_u32 s{sL}, 5")
        a(f"    s_cbranch_scc0 L_nopre")
        a(f"    s_add_u32 s{sU}, s{sT3}, {c.wstride}")
        if not c.no_pre: prefix_next(sU)
        a("L_nopre:")
        stamp(3)
    advance_sb()
    a(f"""
    s_barrier                                 ; B2
    s_add_u32 s{sL}, s{sL}, 1
    s_add_u32 s{sT3}, s{sT3}, {c.wstride}
    s_cmp_lt_u32 s{sL}, 6
    s_cbranch_scc1 L_ld_layer
""")
    dump_ts()
    a("    s_endpgm")

    sBI = 84
    sBP = 48
    def bias_load():
        a(f"    s_load_dwordx16 s[{sBI}:{sBI+15}], s[{sBP}:{sBP+1}], 0")
        a(f"    s_add_u32 s{sBP}, s{sBP}, {ROWB}")
        a(f"    s_addc_u32 s{sBP+1}, s{sBP+1}, 0")
    def bias_spread():
        a("    s_mov_b32 exec_hi, 0")
        for q in range(4):
            for d in range(2):
                a(f"    v_mov_b32 v{vBP+2*q+d}, s{sBI+4*q+d}")
        a("    s_mov_b32 exec_lo, 0")
        a("    s_mov_b32 exec_hi, -1")
        for q in range(4):
            for d in range(2):
                a(f"    v_mov_b32 v{vBP+2*q+d}, s{sBI+4*q+2+d}")
        a("    s_mov_b64 exec, -1")
    def bias_unpack(lo=0, hi=8):
        for d in range(lo, hi):
            a(f"    v_lshlrev_b32 v{vAK+2*d}, 16, v{vBP+d}")
            a(f"    v_and_b32 v{vAK+2*d+1}, 0xffff0000, v{vBP+d}")
    a(f"""
L_compute:
    s_load_dwordx2 s[{sE}:{sE+1}], s[50:51], s{sCB}
    s_lshl_b32 s{sT0}, s{sJ}, 7
    s_lshl_b32 s{sT1}, s{sKH}, 6
    s_add_u32 s{sT0}, s{sT0}, s{sT1}
    s_add_u32 s{sBP_}, s44, s{sT0}
    s_addc_u32 s{sBP_+1}, s45, 0
    s_load_dwordx16 s[84:99], s[{sBP_}:{sBP_+1}], 0
    s_load_dword s20, s[{sBP_}:{sBP_+1}], {ROWB}
    s_load_dword s21, s[{sBP_}:{sBP_+1}], {2*ROWB}
    s_load_dword s22, s[{sBP_}:{sBP_+1}], {3*ROWB}
    s_load_dword s23, s[{sBP_}:{sBP_+1}], {4*ROWB}
    s_load_dword s24, s[{sBP_}:{sBP_+1}], {5*ROWB}
    s_add_u32 s{sBP_}, s{sBP_}, {ROWB}
    s_addc_u32 s{sBP_+1}, s{sBP_+1}, 0
    s_setprio {c.prio}
""")
    if c.wwarm:
        a(f"""
    s_sub_u32 s{sT0}, s{sWV}, 1
    s_cmp_lt_u32 s{sT0}, {c.wwarm}
    s_cbranch_scc0 L_noww
    s_mul_i32 s{sT0}, s{sRB}, 13
    s_add_u32 s{sT0}, s{sT0}, s{sJ}
    s_mul_i32 s{sT0}, s{sT0}, {52 * 128}
    s_mul_i32 s{sT1}, s{sWV}, {c.wstride}
    s_add_u32 s20, s{sT0}, s{sT1}
    v_min_u32 v20, 51, v{vL}
    v_lshlrev_b32 v20, 7, v20
    buffer_load_dword v{vDUM}, v20, s[{sW}:{sW+3}], s20 offen
L_noww:""")
    a(f"""
    v_min_u32 v{vT0}, 51, v{vL}
    v_lshlrev_b32 v{vT0}, 3, v{vT0}
    s_add_u32 s{sT0}, s{sCB}, 2048
    v_add_u32 v{vFA}, s{sT0}, v{vT0}
    s_cmp_eq_u32 s{sWV}, 0
    s_cbranch_scc0 L_noft
    buffer_load_dword v{vDUM}, v{vFA}, s[{sWS}:{sWS+3}], 0 offen sc1
L_noft:
    s_lshl_b32 s{sT1}, s{sJ}, 2
    s_add_u32 s{sT1}, s{sT1}, s{sWV}
    s_lshl_b32 s{sT1}, s{sT1}, 3
    s_add_u32 s{sOWNF}, s{sT0}, s{sT1}
    v_min_u32 v{vT0}, 12, v{vL}
    v_lshlrev_b32 v{vT0}, 3, v{vT0}
    s_add_u32 s{sT0}, s{sCB}, 128
    v_add_u32 v{vHA}, s{sT0}, v{vT0}
""")
    srd(sOUT, 46, XLAYER)
    a(f"""
    s_lshl_b32 s{sT0}, s{sRB}, 6
    s_lshl_b32 s{sT1}, s{sMH}, 5
    s_add_u32 s{sT0}, s{sT0}, s{sT1}
    s_mul_i32 s{sT0}, s{sT0}, {ROWB}
    s_lshl_b32 s{sT1}, s{sJ}, 7
    s_add_u32 s{sT0}, s{sT0}, s{sT1}
    s_lshl_b32 s{sT1}, s{sKH}, 6
    s_add_u32 s{sT0}, s{sT0}, s{sT1}
    v_and_b32 v{vT0}, 31, v{vL}
    v_mul_u32_u24 v{vT0}, {ROWB}, v{vT0}
    v_lshrrev_b32 v{vT1}, 5, v{vL}
    v_lshl_add_u32 v{vT0}, v{vT1}, 4, v{vT0}
    v_add_u32 v{vOUT}, s{sT0}, v{vT0}
    v_lshlrev_b32 v{vXO}, 4, v{vL}
    v_add_u32 v{vXO+1}, 0x1000, v{vXO}
    v_add_u32 v{vXO+2}, 0x2000, v{vXO}
    v_add_u32 v{vXO+3}, 0x3000, v{vXO}
    s_mul_i32 s{sT0}, s{sRB}, {XRB}
    s_mul_i32 s{sT1}, s{sMH}, {XMH}
    s_add_u32 s{sT0}, s{sT0}, s{sT1}
    s_add_u32 s{sT0}, s{sT0}, {XBUF}
    s_lshl_b32 s{sT1}, s{sJ}, 2
    s_lshl_b32 s{sT2}, s{sKH}, 1
    s_add_u32 s{sT1}, s{sT1}, s{sT2}
    s_lshl_b32 s{sT1}, s{sT1}, 10
    s_add_u32 s{sXST}, s{sT0}, s{sT1}
""")
    if not c.helpers:
        a(f"""
    v_and_b32 v{vT1}, 15, v{vL}
    v_lshlrev_b32 v{vT1}, 7, v{vT1}
    v_bfe_u32 v{vT2}, v{vL}, 4, 1
    v_mul_u32_u24 v{vT2}, {XBUF >> 8}, v{vT2}
    v_lshl_add_u32 v{vT1}, v{vT2}, 8, v{vT1}
    s_sub_u32 s{sT3}, s{sXST}, {XBUF}
    buffer_load_dword v{vDUM}, v{vT1}, s[{sWS}:{sWS+3}], s{sT3} offen sc1
""")
    a(f"""
    s_mul_i32 s{sT1}, s{sKH}, 26
    s_add_u32 s{sT2}, s{sT1}, s{sROT}
    s_lshl_b32 s{sT2}, s{sT2}, 10
    s_add_u32 s{sXA}, s{sT0}, s{sT2}
    s_add_u32 s{sT2}, s{sT1}, 13
    s_sub_u32 s{sT2}, s{sT2}, s{sROT}
    s_lshl_b32 s{sT2}, s{sT2}, 10
    s_add_u32 s{sXB}, s{sT0}, s{sT2}
    s_mov_b32 s{sXD}, {-XBUF & 0xffffffff}
    s_mov_b32 s{sXD2}, {-XBUF & 0xffffffff}
    ; ---- W prefix bookkeeping for layer 1 (loaded at the end of layer 0)
    s_mul_i32 s{sT0}, s{sKH}, 416
    s_lshl_b32 s{sT1}, s{sROT}, 4
    s_add_u32 s{sT0}, s{sT0}, s{sT1}
    s_lshl_b32 s{sT1}, s{sMH}, 3
    s_add_u32 s{sT0}, s{sT0}, s{sT1}
    s_mul_i32 s{sWP}, s{sT0}, {ROWB}
    s_add_u32 s{sWP}, s{sWP}, {c.wstride}
    s_mul_i32 s{sMP}, s{sKH}, {P*2048}
    s_lshl_b32 s{sT1}, s{sMH}, 10
    s_add_u32 s{sMP}, s{sMP}, s{sT1}
    s_add_u32 s{sMP}, s{sMP}, {PRE1}
    s_mov_b32 s{sPD}, {PREPAR}
    v_lshrrev_b32 v{vT0}, 5, v{vL}            ; h
    v_lshlrev_b32 v{vT0}, 2, v{vT0}
    v_bfe_u32 v{vT1}, v{vL}, 2, 2             ; r
    v_add_u32 v{vT0}, v{vT0}, v{vT1}
    v_lshlrev_b32 v{vT0}, 7, v{vT0}           ; row*128
    v_bfe_u32 v{vT1}, v{vL}, 4, 1             ; nb
    v_lshlrev_b32 v{vT1}, 1, v{vT1}
    v_bfe_u32 v{vT2}, v{vL}, 1, 1             ; c>>1
    v_add_u32 v{vT1}, v{vT1}, v{vT2}
    v_bfe_u32 v{vT2}, v{vL}, 3, 1             ; (r>>1)&1
    v_lshlrev_b32 v{vT2}, 2, v{vT2}
    v_xor_b32 v{vT1}, v{vT1}, v{vT2}
    v_lshlrev_b32 v{vT1}, 4, v{vT1}
    v_add_u32 v{vT0}, v{vT0}, v{vT1}
    v_and_b32 v{vT1}, 1, v{vL}
    v_lshlrev_b32 v{vT1}, 3, v{vT1}
    v_add_u32 v{vT0}, v{vT0}, v{vT1}
    s_lshl_b32 s{sT0}, s{sKH}, 6
    v_xor_b32 v{vT1}, s{sT0}, v{vT0}          ; keep
    v_xor_b32 v{vT2}, 64, v{vT1}              ; send
    s_mul_i32 s{sT0}, s{sKH}, {P*2048}
    v_add_u32 v{vAPK}, s{sT0}, v{vT1}
    v_add_u32 v{vAPS}, s{sT0}, v{vT2}
    s_mul_i32 s{sT0}, s{sKH}, {KHS}
    s_add_u32 s{sT0}, s{sT0}, {SUF}
    v_add_u32 v{vASK}, s{sT0}, v{vT1}
    v_add_u32 v{vASS}, s{sT0}, v{vT2}
    s_lshl_b32 s{sT0}, s{sWV}, 12
    s_add_u32 s{sT0}, s{sT0}, {RED}
    v_add_u32 v{vRW}, s{sT0}, v{vXO}
    s_xor_b32 s{sT1}, s{sWV}, 2
    s_lshl_b32 s{sT1}, s{sT1}, 12
    s_add_u32 s{sT1}, s{sT1}, {RED}
    v_add_u32 v{vRR}, s{sT1}, v{vXO}
    v_lshrrev_b32 v{vT0}, 5, v{vL}
    v_lshlrev_b32 v{vT3}, 3, v{vT0}           ; h*8
    v_and_b32 v{vT0}, 31, v{vL}               ; m
    v_lshrrev_b32 v{vT1}, 3, v{vT0}
    v_lshlrev_b32 v{vT1}, 10, v{vT1}          ; rg*1024
    v_and_b32 v{vT2}, 7, v{vT0}
    v_lshl_add_u32 v{vT1}, v{vT2}, 7, v{vT1}  ; + row8*128
    v_bfe_u32 v{vT2}, v{vT0}, 1, 3            ; f(m)
    s_cmp_ge_u32 s{sJ}, 7
    s_cselect_b32 s{sT0}, 1, 0
    s_mul_i32 s{sT1}, s{sT0}, 6
    s_sub_u32 s{sT1}, s{sJ}, s{sT1}
    s_lshl_b32 s{sT1}, s{sT1}, 12
    s_lshl_b32 s{sT0}, s{sT0}, 1
    s_add_u32 s{sT0}, s{sT0}, s{sMH}
    s_mul_i32 s{sT0}, s{sT0}, 28672
    s_add_u32 s{sT0}, s{sT0}, s{sT1}
    s_add_u32 s{sT0}, s{sT0}, {XS}
    s_lshl_b32 s{sT1}, s{sKH}, 2
    v_add3_u32 v{vT3}, v{vT3}, v{vT1}, s{sT0}
    v_xor_b32 v{vT0}, s{sT1}, v{vT2}          ; (4*nh) ^ f(m)
""")
    for q in range(4):
        a(f"    v_xor_b32 v{vPART+8+q}, {q}, v{vT0}")
        a(f"    v_lshl_add_u32 v{vPART+8+q}, v{vPART+8+q}, 4, v{vT3}")
    a(f"""
    v_lshrrev_b32 v{vT0}, 5, v{vL}
    v_xor_b32 v{vT2}, v{vT2}, v{vT0}          ; f(m) ^ h
    s_mul_i32 s{sT3}, s{sWV}, 28672
    s_add_u32 s{sT3}, s{sT3}, {XS}
    s_mul_i32 s{sI}, s{sKH}, 26
    s_mul_i32 s{sM}, s{sKH}, 6
""")
    for seg in range(2):
        if seg == 0:
            a(f"    s_add_u32 s{sG}, s{sI}, s{sROT}")
        else:
            a(f"    s_add_u32 s{sG}, s{sI}, 13")
            a(f"    s_sub_u32 s{sG}, s{sG}, s{sROT}")
        for x in range(4):
            r = vPART + seg * 4 + x
            a(f"    s_add_u32 s{sT0}, s{sG}, {x}")
            a(f"    s_and_b32 s{sT1}, s{sT0}, 3")
            a(f"    s_lshl_b32 s{sT1}, s{sT1}, 1")
            a(f"    s_lshr_b32 s{sT0}, s{sT0}, 2")
            a(f"    s_sub_u32 s{sT0}, s{sT0}, s{sM}")
            a(f"    s_lshl_b32 s{sT0}, s{sT0}, 12")
            a(f"    s_add_u32 s{sT0}, s{sT0}, s{sT3}")
            a(f"    v_xor_b32 v{r}, s{sT1}, v{vT2}")
            a(f"    v_lshl_add_u32 v{r}, v{r}, 4, v{vT1}")
            a(f"    v_add_u32 v{r}, s{sT0}, v{r}")
    a(f"""
    s_waitcnt lgkmcnt(0)
    s_add_u32 s{sTA}, s{sE}, 1
    s_addc_u32 s{sTA+1}, s{sE+1}, 0
    s_add_u32 s{sTB}, s{sE}, 2
    s_addc_u32 s{sTB+1}, s{sE+1}, 0
    s_cmp_eq_u32 s{sWV}, 0
    s_cbranch_scc0 L_nohello
    s_add_u32 s{sT0}, s{sE}, 8
    s_addc_u32 s{sT1}, s{sE+1}, 0
    s_lshl_b32 s{sT2}, s{sXCC}, 28
    s_xor_b32 s{sT1}, s{sT1}, s{sT2}
    v_mov_b32 v{vPOLL}, s{sT0}
    v_mov_b32 v{vPOLL+1}, s{sT1}
    s_lshl_b32 s{sT2}, s{sJ}, 3
    s_add_u32 s{sT2}, s{sT2}, s{sCB}
    s_add_u32 s{sT2}, s{sT2}, 128
    s_mov_b64 exec, 1
    buffer_store_dwordx2 v[{vPOLL}:{vPOLL+1}], off, s[{sWS}:{sWS+3}], s{sT2} sc1
    s_mov_b64 exec, -1
L_nohello:
""")
    if c.w0assist:
        a(f"""
    s_mul_i32 s{sT0}, s{sKH}, 416
    s_lshl_b32 s{sT1}, s{sROT}, 4
    s_add_u32 s{sT0}, s{sT0}, s{sT1}
    s_mul_i32 s{sT1}, s{sMH}, 14
    s_add_u32 s{sT0}, s{sT0}, s{sT1}
    s_add_u32 s{sT0}, s{sT0}, {P * 16}
    s_mul_i32 s{sT0}, s{sT0}, {ROWB}
    s_lshl_b32 s{sT1}, s{sJ}, 7
    s_add_u32 s{sT0}, s{sT0}, s{sT1}
    s_add_u32 s44, s42, s{sT0}
    s_addc_u32 s45, s43, 0
""")
        for n_ in range(14):
            if n_ == 7: a("    s_waitcnt lgkmcnt(0)")
            a(f"    s_load_dwordx2 s[{20+2*(n_%2)}:{21+2*(n_%2)}], s[44:45], {n_*ROWB + 60}")
    elif c.vwarm:
        nrows = c.SV * 16
        per_rb = nrows // 4
        a(f"""
    s_lshr_b32 s{sT0}, s{sRB}, 2
    s_mul_i32 s{sT0}, s{sT0}, 208
    s_and_b32 s{sT1}, s{sRB}, 3
    s_mul_i32 s{sT1}, s{sT1}, {per_rb}
    s_add_u32 s{sT0}, s{sT0}, s{sT1}
    s_mul_i32 s{sT1}, s{sWV}, {per_rb // 4}
    s_add_u32 s{sT0}, s{sT0}, s{sT1}
    s_mul_i32 s{sT0}, s{sT0}, {ROWB}
    s_lshl_b32 s{sT1}, s{sJ}, 7
    s_add_u32 s{sT0}, s{sT0}, s{sT1}
    s_add_u32 s{sT0}, s{sT0}, {c.wstride}
    s_add_u32 s44, s42, s{sT0}
    s_addc_u32 s45, s43, 0
""")
        nper = per_rb // 4
        vw = [(l, r) for l in range(1, 6) for r in range(nper)][:14]
        def vwarm_batch(k):
            cur = None
            for n_, (l, r) in enumerate(vw[7*k:7*k+7]):
                if cur != l:
                    a(f"    s_add_u32 s46, s44, {(l-1) * c.wstride}")
                    a(f"    s_addc_u32 s47, s45, 0")
                    cur = l
                a(f"    s_load_dwordx2 s[{20+2*(n_%2)}:{21+2*(n_%2)}], s[46:47], {r*ROWB + 60}")
        vwarm_batch(0)
    stamp()
    a("    s_barrier                                 ; B_x: staged x0, prefix(0) and biases have landed")
    stamp()
    for q in range(4):
        a(f"    ds_read_b64 v[{vP+2*q}:{vP+2*q+1}], v{vPART+8+q}")
    for i in range(26):
        seg, ii = (0, i) if i < 13 else (1, i - 13)
        a(f"    ds_read_b128 v[{vXF+4*i}:{vXF+4*i+3}], v{vPART + seg*4 + (ii & 3)} offset:{(ii >> 2) * 4096}")
        if i in (9, 17):
            a("    s_waitcnt lgkmcnt(6)")
    a("    s_waitcnt lgkmcnt(0)")
    a("    s_barrier")
    if c.vwarm and not c.w0assist: vwarm_batch(1)
    stamp()
    for d in range(8):
        a(f"    v_lshlrev_b32 v{vX0F+2*d}, 16, v{vP+d}")
        a(f"    v_and_b32 v{vX0F+2*d+1}, 0xffff0000, v{vP+d}")
    bias_spread()
    bias_unpack()
    for r in range(16):
        a(f"    v_mov_b32 v{vXR+r}, v{vX0F+r}")
    a(f"    s_mov_b32 s{sL}, 0")
    a("    s_barrier                                 ; B_p: prefix of layer 0 has landed")
    stamp()

    def xload(i):
        if c.no_x:
            a("    s_nop 0"); return
        seg = sXA if i < 13 else sXB
        ii = i % 13
        a(f"    buffer_load_dwordx4 v[{vXF+4*i}:{vXF+4*i+3}], v{vXO+(ii>>2)}, s[{sWS}:{sWS+3}], s{seg} offen offset:{(ii&3)*1024} sc1")
    def rd(i, which):
        if c.no_w: return
        st = vWF + 8 * (i % nsets)
        if i < P: k, s_, off = vAPK, vAPS, i * 2048
        else: k, s_, off = vASK, vASS, (i - P) * 2048
        if which == "s":
            a(f"    ds_read_b64_tr_b16 v[{st}:{st+1}], v{s_} offset:{off}")
            a(f"    ds_read_b64_tr_b16 v[{st+2}:{st+3}], v{s_} offset:{off+1024}")
        else:
            a(f"    ds_read_b64_tr_b16 v[{st+4}:{st+5}], v{k} offset:{off}")
            a(f"    ds_read_b64_tr_b16 v[{st+6}:{st+7}], v{k} offset:{off+1024}")
    def pref_sched(i):
        if c.presched == "spread":
            t = i - (26 - P)
            return [t] if 0 <= t < P else []
        k = i - (26 - D)
        if k < 0: return []
        per_ = -(-P // D)
        return [t for t in range(k * per_, min(P, (k + 1) * per_))]
    def kloop(first):
        ops = []
        if first:
            for i in range(PF):
                rd(i, "s"); rd(i, "k")
        else:
            xload(0); ops.append(("x", 0))
            rd(0, "s"); rd(0, "k")
            xload(1); ops.append(("x", 1))
            rd(1, "s"); rd(1, "k")
            nrest = D - 2
            cuts = [8 * k // nrest for k in range(nrest + 1)]
            for k in range(nrest):
                bias_unpack(cuts[k], cuts[k + 1])
                xload(2 + k); ops.append(("x", 2 + k))
        bars = [P, 13, 20] if first else [P]
        assert P < 13
        marks = [0, 1, 2, 4, 8, 12, 16, 20, 25]
        for i in range(26):
            a(f"    ; ---- step {i}")
            if TS == 4 and not first and i in marks:
                a(f"    s_memtime s[{80 + 2*marks.index(i)}:{81 + 2*marks.index(i)}]")
            young = sum(4 for t in range(i + 1, min(i + PF - 1, 25) + 1))
            if first:
                a(f"    s_waitcnt lgkmcnt({young})")
            else:
                nv = len(ops) - 1 - ops.index(("x", i))
                a(f"    s_waitcnt vmcnt({nv}) lgkmcnt({young})")
            st = vWF + 8 * (i % nsets)
            xf = vXF + 4 * i
            cs = "0" if i == 0 else f"v[{vAS}:{vAS+15}]"
            a(f"    v_mfma_f32_32x32x16_bf16 v[{vAS}:{vAS+15}], v[{st}:{st+3}], v[{xf}:{xf+3}], {cs}")
            if i + PF in bars:
                a("    s_barrier")
            if first and i == c.hello_step and c.hello_by != 'loader':
                a(f"    buffer_load_dwordx2 v[{vPOLL}:{vPOLL+1}], v{vHA}, s[{sWS}:{sWS+3}], 0 offen sc1")
            if not first and i + D < 26:
                xload(i + D); ops.append(("x", i + D))
            if c.pre_by == "loader":
                if i == c.mid_step: a("    s_barrier                                 ; B_mid: the x loads are all issued")
                if i == c.prog_step and c.prog_at == "mid":
                    lab = "L_noprogA" if first else "L_noprogB"
                    a(f"""    s_or_b32 s{sT0}, s{sJ}, s{sWV}
    s_cmp_eq_u32 s{sT0}, 0
    s_cbranch_scc0 {lab}
    v_mov_b32 v{vPOL2}, s{sTA}
    v_mov_b32 v{vPOL2+1}, s{sTA+1}
    s_add_u32 s{sT0}, s{sCB}, 3072
    buffer_store_dwordx2 v[{vPOL2}:{vPOL2+1}], off, s[{sWS}:{sWS+3}], s{sT0}
{lab}:""")
            else:
                for t in ([] if c.no_pre else pref_sched(i)):
                    a(f"    s_add_u32 m0, s{sMP}, {t*2048}")
                    a(f"    s_add_u32 s{sT0}, s{sWP}, {t*26624}")
                    a(f"    buffer_load_dwordx4 v{vDMA}, s[{sW}:{sW+3}], s{sT0} offen lds")
                    ops.append(("w", t))
            if i + PF < 26: rd(i + PF, "s")
            a(f"    v_mfma_f32_32x32x16_bf16 v[{vAK}:{vAK+15}], v[{st+4}:{st+7}], v[{xf}:{xf+3}], v[{vAK}:{vAK+15}]")
            if i + PF < 26: rd(i + PF, "k")
        return len([o for o in ops if o[0] == "w"])
    npre = kloop(True)
    if c.hello_by == "loader":
        a(f"""    v_mov_b32 v{vT0}, {MODEW}
    ds_read_b32 v{vT1}, v{vT0}
    s_waitcnt lgkmcnt(0)
    v_readfirstlane_b32 s{sMODE}, v{vT1}""")
        a(f"""
    s_cmp_eq_u32 s{sMODE}, 0
    s_cbranch_scc1 L_hello_slow
    s_and_b32 s{sMODE}, s{sMODE}, {0 if c.force_slow else 1}
    s_branch L_tail
L_hello_slow:
    buffer_load_dwordx2 v[{vPOLL}:{vPOLL+1}], v{vHA}, s[{sWS}:{sWS+3}], 0 offen sc1""")
    a(f"""
    s_add_u32 s{sT0}, s{sE}, 8
    s_addc_u32 s{sT1}, s{sE+1}, 0
    s_mov_b32 s{sSPIN}, 0
    s_waitcnt vmcnt({0 if c.hello_by == "loader" else npre})
    s_and_b32 s{sT2}, s{sT1}, 0x0fffffff
    s_lshl_b32 s{sT3}, s{sXCC}, 28
    s_xor_b32 s{sT3}, s{sT1}, s{sT3}
L_hello:
    v_and_b32 v{vT0}, 0x0fffffff, v{vPOLL+1}
    v_cmp_eq_u32 vcc, s{sT0}, v{vPOLL}
    v_cmp_eq_u32 s[{sMK}:{sMK+1}], s{sT2}, v{vT0}
    s_and_b64 vcc, vcc, s[{sMK}:{sMK+1}]
    s_cmp_eq_u64 vcc, -1
    s_cbranch_scc1 L_hello_ok
    s_add_u32 s{sSPIN}, s{sSPIN}, 1
    s_cmp_gt_u32 s{sSPIN}, {c.spin_max}
    s_cbranch_scc1 L_end
    buffer_load_dwordx2 v[{vPOLL}:{vPOLL+1}], v{vHA}, s[{sWS}:{sWS+3}], 0 offen sc1
    s_waitcnt vmcnt(0)
    s_branch L_hello
L_hello_ok:
    v_cmp_eq_u32 vcc, s{sT3}, v{vPOLL+1}
    s_cmp_eq_u64 vcc, -1
    s_cselect_b32 s{sMODE}, {0 if c.force_slow else 1}, 0
    s_branch L_tail
""")
    assert sT1 == sT0 + 1 and sT0 % 2 == 0
    a("L_layer:")
    stamp(1)
    a("    s_barrier                                 ; B_a")
    stamp()
    kloop(False)
    if TS == 4:
        a("    s_memtime s[98:99]")
        a("    s_waitcnt lgkmcnt(0)")
        for k in range(10):
            a(f"    s_mov_b32 m0, s{sTSI}")
            a(f"    s_nop 0")
            a(f"    v_writelane_b32 v{vTS}, s{80+2*k}, m0")
            a(f"    s_add_u32 s{sTSI}, s{sTSI}, 1")
    a("L_tail:")
    if TS in (2, 3):
        a("    s_nop 15")
        stamp()
    a(f"    v_mov_b32 v{vFV}, s{sTA}")
    a(f"    v_mov_b32 v{vFV+1}, s{sTA+1}")
    a("    s_nop 8")
    for q in range(4):
        a(f"    ds_write_b128 v{vRW}, v[{vAS+4*q}:{vAS+4*q+3}] offset:{q*1024}")
    a("    s_waitcnt lgkmcnt(0)")
    a("    s_barrier                                 ; B2")
    stamp(3)
    for q in range(4):
        a(f"    ds_read_b128 v[{vPART+4*q}:{vPART+4*q+3}], v{vRR} offset:{q*1024}")
    def epi(q):
        a(f"    s_waitcnt lgkmcnt({3-q})")
        for p in range(2):
            r = 4 * q + 2 * p
            a(f"    v_pk_add_f32 v[{vAK+r}:{vAK+r+1}], v[{vAK+r}:{vAK+r+1}], v[{vPART+r}:{vPART+r+1}]")
        for p in range(2):
            r = 4 * q + 2 * p
            a(f"    v_pk_fma_f32 v[{vAK+r}:{vAK+r+1}], v[{vX0F+r}:{vX0F+r+1}], v[{vAK+r}:{vAK+r+1}], v[{vXR+r}:{vXR+r+1}]")
        for p in range(2):
            r = 4 * q + 2 * p
            a(f"    v_cvt_pk_bf16_f32 v{vP+2*q+p}, v{vAK+r}, v{vAK+r+1}")
    a(f"""
    s_cmp_eq_u32 s{sL}, 5
    s_cbranch_scc1 L_final
    s_cmp_eq_u32 s{sMODE}, 0
    s_cbranch_scc1 L_st_slow
""")
    epi(0); epi(1)
    a(f"    buffer_store_dwordx4 v[{vP}:{vP+3}], v{vXO}, s[{sWS}:{sWS+3}], s{sXST} offen")
    epi(2); epi(3)
    a(f"    buffer_store_dwordx4 v[{vP+4}:{vP+7}], v{vXO}, s[{sWS}:{sWS+3}], s{sXST} offen offset:1024")
    if c.phased: a("    s_barrier                                 ; B_s")
    stamp(3)
    def unpack_res():
        for d in range(8):
            a(f"    v_lshlrev_b32 v{vXR+2*d}, 16, v{vP+d}")
            a(f"    v_and_b32 v{vXR+2*d+1}, 0xffff0000, v{vP+d}")
    bias_load()
    unpack_res()
    a(f"""
    s_waitcnt vmcnt(0)
    buffer_store_dwordx2 v[{vFV}:{vFV+1}], off, s[{sWS}:{sWS+3}], s{sOWNF}
    s_branch L_st_done
L_st_slow:
""")
    epi(0); epi(1); epi(2); epi(3)
    a(f"""
    buffer_store_dwordx4 v[{vP}:{vP+3}], v{vXO}, s[{sWS}:{sWS+3}], s{sXST} offen sc1
    buffer_store_dwordx4 v[{vP+4}:{vP+7}], v{vXO}, s[{sWS}:{sWS+3}], s{sXST} offen offset:1024 sc1
""")
    if c.phased: a("    s_barrier                                 ; B_s")
    stamp(3)
    bias_load()
    unpack_res()
    a(f"""
    s_waitcnt vmcnt(0)
    buffer_store_dwordx2 v[{vFV}:{vFV+1}], off, s[{sWS}:{sWS+3}], s{sOWNF} sc1
L_st_done:
""")
    stamp()
    if c.onepoll:
        a(f"""
    s_cmp_eq_u32 s{sWV}, 0
    s_cbranch_scc0 L_nopoll1""")
    a(f"""
    buffer_load_dwordx2 v[{vPOLL}:{vPOLL+1}], v{vFA}, s[{sWS}:{sWS+3}], 0 offen sc1
L_nopoll1:
    {"s_barrier                                 ; B_f" if c.phased else ""}
""")
    def progress(lab):
        a(f"""    s_or_b32 s{sT0}, s{sJ}, s{sWV}
    s_cmp_eq_u32 s{sT0}, 0
    s_cbranch_scc0 {lab}
    s_add_u32 s{sT0}, s{sCB}, 3072
    buffer_store_dwordx2 v[{vFV}:{vFV+1}], off, s[{sWS}:{sWS+3}], s{sT0}
{lab}:""")
    if c.prog_at == "end": progress("L_noprog")
    a(f"""
    s_add_u32 s{sL}, s{sL}, 1
    s_cmp_eq_u32 s{sL}, 1
    s_cbranch_scc1 L_keep_xa
    s_add_u32 s{sXA}, s{sXA}, s{sXD}
    s_add_u32 s{sXB}, s{sXB}, s{sXD}
    s_sub_u32 s{sXD}, 0, s{sXD}
L_keep_xa:
    s_add_u32 s{sXST}, s{sXST}, s{sXD2}
    s_sub_u32 s{sXD2}, 0, s{sXD2}
    s_add_u32 s{sWP}, s{sWP}, {c.wstride}
    s_sub_u32 s{sMP}, s{sMP}, s{sPD}
    v_add_u32 v{vAPK}, s{sPD}, v{vAPK}
    v_add_u32 v{vAPS}, s{sPD}, v{vAPS}
    s_sub_u32 s{sPD}, 0, s{sPD}
    s_mov_b32 s{sSPIN}, 0
""")
    a("    s_waitcnt lgkmcnt(0)")
    bias_spread()
    if c.onepoll:
        a(f"""
    s_cmp_eq_u32 s{sWV}, 0
    s_cbranch_scc0 L_ready""")
    if c.poll2:
        a(f"""L_poll:
    buffer_load_dwordx2 v[{vPOL2}:{vPOL2+1}], v{vFA}, s[{sWS}:{sWS+3}], 0 offen sc1
    s_waitcnt vmcnt(1)
    v_cmp_eq_u64 vcc, s[{sTA}:{sTA+1}], v[{vPOLL}:{vPOLL+1}]
    v_cmp_eq_u64 s[{sMK}:{sMK+1}], s[{sTB}:{sTB+1}], v[{vPOLL}:{vPOLL+1}]
    s_or_b64 vcc, vcc, s[{sMK}:{sMK+1}]
    s_cmp_eq_u64 vcc, -1
    s_cbranch_scc1 L_ready
    buffer_load_dwordx2 v[{vPOLL}:{vPOLL+1}], v{vFA}, s[{sWS}:{sWS+3}], 0 offen sc1
    s_waitcnt vmcnt(1)
    v_cmp_eq_u64 vcc, s[{sTA}:{sTA+1}], v[{vPOL2}:{vPOL2+1}]
    v_cmp_eq_u64 s[{sMK}:{sMK+1}], s[{sTB}:{sTB+1}], v[{vPOL2}:{vPOL2+1}]
    s_or_b64 vcc, vcc, s[{sMK}:{sMK+1}]
    s_cmp_eq_u64 vcc, -1
    s_cbranch_scc1 L_ready
    s_add_u32 s{sSPIN}, s{sSPIN}, 1
    s_cmp_gt_u32 s{sSPIN}, {c.spin_max}
    s_cbranch_scc0 L_poll
    s_endpgm
""")
    else:
        a(f"""L_poll:
    s_waitcnt vmcnt(0)
    v_cmp_eq_u64 vcc, s[{sTA}:{sTA+1}], v[{vPOLL}:{vPOLL+1}]
    v_cmp_eq_u64 s[{sMK}:{sMK+1}], s[{sTB}:{sTB+1}], v[{vPOLL}:{vPOLL+1}]
    s_or_b64 vcc, vcc, s[{sMK}:{sMK+1}]
    s_cmp_eq_u64 vcc, -1
    s_cbranch_scc1 L_ready
    buffer_load_dwordx2 v[{vPOLL}:{vPOLL+1}], v{vFA}, s[{sWS}:{sWS+3}], 0 offen sc1
    s_add_u32 s{sSPIN}, s{sSPIN}, 1
    s_cmp_gt_u32 s{sSPIN}, {c.spin_max}
    s_cbranch_scc0 L_poll
    s_endpgm
""")
    a(f"""L_ready:
    s_add_u32 s{sTA}, s{sTA}, 1
    s_addc_u32 s{sTA+1}, s{sTA+1}, 0
    s_add_u32 s{sTB}, s{sTB}, 1
    s_addc_u32 s{sTB+1}, s{sTB+1}, 0
    s_branch L_layer
L_final:
""")
    epi(0); epi(1); epi(2); epi(3)
    a(f"""
    s_nop 1
    v_permlane32_swap_b32 v{vP}, v{vP+2}
    v_permlane32_swap_b32 v{vP+1}, v{vP+3}
    v_permlane32_swap_b32 v{vP+4}, v{vP+6}
    v_permlane32_swap_b32 v{vP+5}, v{vP+7}
    buffer_store_dwordx4 v[{vP}:{vP+3}], v{vOUT}, s[{sOUT}:{sOUT+3}], 0 offen
    buffer_store_dwordx4 v[{vP+4}:{vP+7}], v{vOUT}, s[{sOUT}:{sOUT+3}], 0 offen offset:32
    s_or_b32 s{sT0}, s{sJ}, s{sWV}
    s_cmp_eq_u32 s{sT0}, 0
    s_cbranch_scc0 L_noepoch
    s_add_u32 s{sT0}, s{sE}, 16
    s_addc_u32 s{sT1}, s{sE+1}, 0
    v_mov_b32 v{vFV}, s{sT0}
    v_mov_b32 v{vFV+1}, s{sT1}
    s_mov_b64 exec, 1
    buffer_store_dwordx2 v[{vFV}:{vFV+1}], off, s[{sWS}:{sWS+3}], s{sCB} sc1
    s_mov_b64 exec, -1
L_noepoch:
""")
    if c.exp_delay or c.exp_rt:
        ins = "s_memtime" if c.exp_delay else "s_memrealtime"
        a(f"""
    {ins} s[80:81]
    s_waitcnt lgkmcnt(0)
L_expd:
    {ins} s[82:83]
    s_waitcnt lgkmcnt(0)
    s_sub_u32 s82, s82, s80
    s_cmp_lt_u32 s82, {c.exp_delay or c.exp_rt}
    s_cbranch_scc1 L_expd
""")
    stamp(1); dump_ts()
    a("    s_endpgm")

    if c.helpers:
        HPR = (c.SV * 16 + (2 * NSR if c.sp else 0)) if c.hp is None else c.hp * 16
        HP = HPR // 16
        nrow = 208 - HPR
        nline = nrow * 13
        tot = 4 * nline
        nins = (tot + 63) // 64
        cdelta = HPR * ROWB
        NK = -(-nins // 48)
        HF = 1 if ((c.h0 == 'prefix' or c.w0assist) and c.hfirst == 0) else c.hfirst
        a(f"""
L_helper:
    ; L2 prefetch for the workers of this die (placement assumed for speed only): one dword per 128-byte line
    s_sub_u32 s{sT0}, s2, 208
    s_and_b32 s{sT1}, s{sT0}, 7
    s_lshr_b32 s{sT0}, s{sT0}, 3
    s_lshl_b32 s{sT0}, s{sT0}, 3
    s_add_u32 s{sT0}, s{sT0}, s{sWV}          ; g = 0..47
    s_lshl_b32 s{sCB}, s{sT1}, 13
    s_add_u32 s{sCB}, s{sCB}, {CTRL}
    s_load_dwordx2 s[{sE}:{sE+1}], s[50:51], s{sCB}
    s_add_u32 s{sOWNF}, s{sCB}, 3072
""")
        if c.tlbwarm:
            a(f"""
    s_cmp_eq_u32 s{sWV}, 7
    s_cbranch_scc0 L_notlb
""")
            k_ = 0
            for base, offs in ((46, [0, XLAYER - 64]), (50, [0, XBUF - 64, XBUF + (1 << 20), 2 * XBUF - 64, 2 * XBUF + 65536 - 64]),
                               (42, [1 << 21, 2 << 21, 3 << 21, L_ * WLAYER - 64])):
                for off in offs:
                    a(f"""    s_add_u32 s24, s{base}, {off}
    s_addc_u32 s25, s{base+1}, 0
    s_load_dword s{76+k_}, s[24:25], 0""")
                    k_ += 1
            a("L_notlb:")
        a(f"""
    ; exchange-buffer lines of the die's two row blocks: {2*XRB//128} lines
    s_mul_i32 s{sG}, s{sT1}, {2*XRB}
    s_lshl_b32 s{sI}, s{sT0}, 13
    s_add_u32 s{sG}, s{sG}, s{sI}
    v_lshlrev_b32 v19, 7, v{vL}
    v_add_u32 v19, s{sG}, v19
    s_cmp_lt_u32 s{sT0}, {-(-2*XRB // 8192)}
    s_cselect_b32 s{sM}, 1, 0
""")
        def lane_addr(vdst, nline_, base0, delta):
            tot_ = 4 * nline_
            a(f"""
    s_lshl_b32 s{sI}, s{sI}, 6
    v_add_u32 v{vT0}, s{sI}, v{vL}
    v_mov_b32 v{vT1}, {base0}
    v_cmp_le_u32 vcc, {nline_}, v{vT0}
    v_mov_b32 v{vT2}, 0
    v_mov_b32 v{vT3}, {delta}
    v_cndmask_b32 v{vT2}, v{vT2}, v{vT3}, vcc
    v_add_u32 v{vT1}, v{vT1}, v{vT2}
    v_cmp_le_u32 vcc, {2*nline_}, v{vT0}
    v_mov_b32 v{vT2}, 0
    s_nop 0
    v_cndmask_b32 v{vT2}, v{vT2}, v{vT3}, vcc
    v_add_u32 v{vT1}, v{vT1}, v{vT2}
    v_cmp_le_u32 vcc, {3*nline_}, v{vT0}
    v_mov_b32 v{vT2}, 0
    s_nop 0
    v_cndmask_b32 v{vT2}, v{vT2}, v{vT3}, vcc
    v_add_u32 v{vT1}, v{vT1}, v{vT2}
    v_lshl_add_u32 v{vdst}, v{vT0}, 7, v{vT1}
    v_cmp_le_u32 vcc, {tot_}, v{vT0}
    v_mov_b32 v{vT2}, 0x7ffffff0
    s_nop 0
    v_cndmask_b32 v{vdst}, v{vdst}, v{vT2}, vcc""")
        def need_set(vbase, skip_rows, nrows):
            tot_ = nrows * 52
            nins_ = (tot_ + 63) // 64
            nk = -(-nins_ // 48)
            for k in range(nk):
                a(f"""
    s_add_u32 s{sI}, s{sT0}, {48*k}
    s_lshl_b32 s{sI}, s{sI}, 6
    v_add_u32 v{vT0}, s{sI}, v{vL}
    v_mul_u32_u24 v{vT1}, 80660, v{vT0}
    v_lshrrev_b32 v{vT1}, 22, v{vT1}
    v_mul_u32_u24 v{vT2}, 52, v{vT1}
    v_sub_u32 v{vT2}, v{vT0}, v{vT2}          ; rem
    v_mul_u32_u24 v{vT3}, 5042, v{vT2}
    v_lshrrev_b32 v{vT3}, 16, v{vT3}
    v_mul_u32_u24 v{vbase+k}, 13, v{vT3}
    v_sub_u32 v{vT2}, v{vT2}, v{vbase+k}
    v_mul_u32_u24 v{vT3}, 208, v{vT3}
    v_add_u32 v{vT1}, v{vT1}, v{vT3}
    v_add_u32 v{vT1}, {skip_rows}, v{vT1}     ; row
    v_mul_u32_u24 v{vT1}, {ROWB}, v{vT1}
    v_lshl_add_u32 v{vbase+k}, v{vT2}, 7, v{vT1}
    v_cmp_le_u32 vcc, {tot_}, v{vT0}
    v_mov_b32 v{vT2}, 0x7ffffff0
    s_nop 0
    v_cndmask_b32 v{vbase+k}, v{vbase+k}, v{vT2}, vcc""")
            return nk
        def addr_set(vbase, nline_, base0, delta, tag):
            tot_ = 4 * nline_
            nins_ = (tot_ + 63) // 64
            nk = -(-nins_ // 48)
            a(f"    s_mul_i32 s{sT2}, s{sT1}, {nins_ // 8}")
            for k in range(nk):
                a(f"""
    s_add_u32 s{sT3}, s{sT0}, {48*k}
    s_add_u32 s{sI}, s{sT3}, s{sT2}
    s_cmp_ge_u32 s{sI}, {nins_}
    s_cselect_b32 s{sG}, {nins_}, 0
    s_sub_u32 s{sI}, s{sI}, s{sG}
    s_cmp_ge_u32 s{sT3}, {nins_}
    s_cselect_b32 s{sI}, {nins_ + 8}, s{sI}   ; no k-th instruction -> past the end""")
                lane_addr(vbase + k, nline_, base0, delta)
            return nk
        NK0 = 0
        if c.w0assist and c.hfirst == 0:
            skip0 = P * 16 + 60
            NK0 = addr_set(40, (208 - skip0) * 13, skip0 * ROWB, skip0 * ROWB, "p")
            for k in range(NK0):
                a(f"    buffer_load_dword v{50+k}, v{40+k}, s[{sW}:{sW+3}], 0 offen")
        elif c.h0 == "prefix" and c.hfirst == 0:
            NK0 = addr_set(40, HP * 16 * 13, 0, (13 - HP) * 26624, "p")
            for k in range(NK0):
                a(f"    buffer_load_dword v{50+k}, v{40+k}, s[{sW}:{sW+3}], 0 offen")
        if c.horder == "need": need_set(10, HPR, nrow)
        else: addr_set(10, nline, cdelta, cdelta, "h")
        nshare_l = tot // 8
        NW_ = 14
        if c.hwarm:
            a(f"""
    s_mul_i32 s{sI}, s{sT1}, {nshare_l}
    s_mul_i32 s{sG}, s{sT0}, {NW_}
    s_add_u32 s{sI}, s{sI}, s{sG}
    s_mov_b32 s{sG}, {cdelta}
    s_cmp_ge_u32 s{sI}, {nline}
    s_cselect_b32 s{sT3}, {cdelta}, 0
    s_add_u32 s{sG}, s{sG}, s{sT3}
    s_cmp_ge_u32 s{sI}, {2*nline}
    s_cselect_b32 s{sT3}, {cdelta}, 0
    s_add_u32 s{sG}, s{sG}, s{sT3}
    s_cmp_ge_u32 s{sI}, {3*nline}
    s_cselect_b32 s{sT3}, {cdelta}, 0
    s_add_u32 s{sG}, s{sG}, s{sT3}
    s_lshl_b32 s{sI}, s{sI}, 7
    s_add_u32 s{sI}, s{sI}, s{sG}
    s_add_u32 s{sI}, s{sI}, {c.wstride}
    s_add_u32 s44, s42, s{sI}                 ; layer 1
    s_addc_u32 s45, s43, 0""")
        if c.hvec_warm:
            a(f"""
    s_cmp_ge_u32 s{sT0}, 22
    s_cselect_b32 s{sG}, 22, 0
    s_cselect_b32 s{sWG}, 1, 0
    s_sub_u32 s{sG}, s{sT0}, s{sG}
    s_lshl_b32 s{sG}, s{sG}, 6
    s_mul_i32 s{sI}, s{sT1}, 1352
    s_add_u32 s{sI}, s{sI}, s{sG}
    v_add_u32 v{vT0}, s{sI}, v{vL}
    v_lshlrev_b32 v18, 7, v{vT0}
    v_add_u32 v{vT1}, s{sG}, v{vL}
    v_cmp_le_u32 vcc, 1352, v{vT1}
    v_mov_b32 v{vT2}, 0x7ffffff0
    s_nop 0
    v_cndmask_b32 v18, v18, v{vT2}, vcc""")
        nv_l = c.SV * 16 * 52 // 8
        if c.hvwarm:
            a(f"""
    s_mul_i32 s{sI}, s{sT1}, {nv_l}
    s_mul_i32 s{sG}, s{sT0}, 7
    s_min_u32 s{sG}, s{sG}, {nv_l - 7}
    s_add_u32 s{sI}, s{sI}, s{sG}
    s_mov_b32 s{sG}, 0
    s_cmp_ge_u32 s{sI}, {c.SV * 16 * 13}
    s_cselect_b32 s{sT3}, {(208 - c.SV * 16) * ROWB}, 0
    s_add_u32 s{sG}, s{sG}, s{sT3}
    s_cmp_ge_u32 s{sI}, {2 * c.SV * 16 * 13}
    s_cselect_b32 s{sT3}, {(208 - c.SV * 16) * ROWB}, 0
    s_add_u32 s{sG}, s{sG}, s{sT3}
    s_cmp_ge_u32 s{sI}, {3 * c.SV * 16 * 13}
    s_cselect_b32 s{sT3}, {(208 - c.SV * 16) * ROWB}, 0
    s_add_u32 s{sG}, s{sG}, s{sT3}
    s_lshl_b32 s{sI}, s{sI}, 7
    s_add_u32 s{sI}, s{sI}, s{sG}
    s_add_u32 s{sI}, s{sI}, {c.wstride}
    s_add_u32 s46, s42, s{sI}                 ; layer 1
    s_addc_u32 s47, s43, 0""")
        if NK0 and c.hwarm:
            a("    s_waitcnt lgkmcnt(0)")
            for half in range(2):
                if half: a("    s_waitcnt lgkmcnt(0)")
                for n_ in range(7 * half, 7 * half + 7):
                    a(f"    s_load_dwordx2 s[{76+2*(n_%7)}:{77+2*(n_%7)}], s[44:45], {n_*128 + 60}")
            a(f"    s_add_u32 s44, s44, {c.wstride}")
            a(f"    s_addc_u32 s45, s45, 0")
        if NK0:
            a(f"""
    s_waitcnt vmcnt(0)
    s_barrier
    s_cmp_eq_u32 s{sM}, 1
    s_cbranch_scc0 L_hx1
    s_mov_b32 s{sI}, {XBUF}
    buffer_load_dword v30, v19, s[{sWS}:{sWS+3}], s{sI} offen sc1
L_hx1:
""")
        a(f"""
    v_mov_b32 v20, 0
    s_mov_b32 s{sL}, {HF}
    s_mov_b32 s{sT3}, {HF * c.wstride}
    s_waitcnt lgkmcnt(0)
L_h_layer:
""")
        if c.hpace:
            a(f"""
    ; before layer m wait (bounded) until the workers have finished layer m-{c.hlook}
    s_cmp_lt_u32 s{sL}, {c.hlook}
    s_cbranch_scc1 L_h_go
    s_cmp_eq_u32 s{sWV}, 0
    s_cbranch_scc0 L_h_bar
    s_mov_b32 s{sSPIN}, 0
L_h_poll:
    buffer_load_dwordx2 v[16:17], v20, s[{sWS}:{sWS+3}], s{sOWNF} offen sc1
    s_waitcnt vmcnt(0)
    v_readfirstlane_b32 s{sTA}, v16
    v_readfirstlane_b32 s{sTA+1}, v17
    s_sub_u32 s{sTA}, s{sTA}, s{sE}
    s_subb_u32 s{sTA+1}, s{sTA+1}, s{sE+1}
    s_cmp_eq_u32 s{sTA+1}, 0
    s_cselect_b32 s{sTA}, s{sTA}, 0
    s_cmp_gt_u32 s{sTA}, 6
    s_cselect_b32 s{sTA}, 0, s{sTA}
    s_add_u32 s{sTA}, s{sTA}, {c.hlook - 1}
    s_cmp_ge_u32 s{sTA}, s{sL}
    s_cbranch_scc1 L_h_bar
    s_add_u32 s{sSPIN}, s{sSPIN}, 1
    s_cmp_lt_u32 s{sSPIN}, 32
    s_cbranch_scc1 L_h_poll
L_h_bar:
    s_barrier
L_h_go:
""")
        def hw_batch(k, lab):
            if not c.hwarm: return
            a(f"    s_cmp_lt_u32 s{sL}, 5")
            a(f"    s_cbranch_scc0 {lab}")
            if not c.hw0:
                a(f"    s_cmp_eq_u32 s{sL}, 0")
                a(f"    s_cbranch_scc1 {lab}")
            a("    s_waitcnt lgkmcnt(0)")
            for n_ in range(7 * k, 7 * k + 7):
                a(f"    s_load_dwordx2 s[{76+2*(n_%7)}:{77+2*(n_%7)}], s[44:45], {n_*128 + 60}")
            a(f"{lab}:")
        def vec_warm(lab):
            A_ = c.hvw_ahead
            a(f"    s_cmp_eq_u32 s{sWG}, 1")
            a(f"    s_cbranch_scc1 {lab}_b")
            a(f"    s_add_u32 s{sI}, s{sL}, {A_}")
            a(f"    s_cmp_le_u32 s{sI}, 5")
            a(f"    s_cbranch_scc0 {lab}")
            if c.wwarm:
                a(f"    s_cmp_gt_u32 s{sI}, {c.wwarm}")
                a(f"    s_cbranch_scc0 {lab}")
            a(f"    s_add_u32 s{sI}, s{sT3}, {A_ * c.wstride}")
            a(f"    buffer_load_dword v29, v18, s[{sW}:{sW+3}], s{sI} offen")
            a(f"    s_branch {lab}")
            a(f"{lab}_b:")
            if A_ == 2 and c.wwarm < 1:
                a(f"    s_cmp_eq_u32 s{sL}, {HF}")
                a(f"    s_cbranch_scc0 {lab}")
                a(f"    s_add_u32 s{sI}, s{sT3}, {c.wstride}")
                a(f"    buffer_load_dword v29, v18, s[{sW}:{sW+3}], s{sI} offen")
            a(f"{lab}:")
        if c.hvec_warm and c.hvw_pos == "before": vec_warm("L_hvw")
        for k in range(NK):
            a(f"    buffer_load_dword v{31+k}, v{10+k}, s[{sW}:{sW+3}], s{sT3} offen")
            if k < 2: hw_batch(k, f"L_hw{k}")
            a(f"    s_waitcnt vmcnt({c.hdepth})")
            a(f"    s_barrier")
        if c.hvec_warm and c.hvw_pos == "after": vec_warm("L_hvw")
        if c.hvwarm:
            a(f"    s_cmp_lt_u32 s{sL}, 5")
            a(f"    s_cbranch_scc0 L_hnv")
            a("    s_waitcnt lgkmcnt(0)")
            for n_ in range(7):
                a(f"    s_load_dwordx2 s[{76+2*n_}:{77+2*n_}], s[46:47], {n_*128 + 60}")
            a(f"    s_add_u32 s46, s46, {c.wstride}")
            a(f"    s_addc_u32 s47, s47, 0")
            a("L_hnv:")
        if c.hwarm:
            a(f"    s_add_u32 s44, s44, {c.wstride}")
            a(f"    s_addc_u32 s45, s45, 0")
        if c.xt_by != 'worker':
            a(f"""
    s_sub_u32 s{sI}, s{sL}, {HF}
    s_add_u32 s{sI}, s{sI}, {1 if HF != c.hfirst else 0}
    s_cmp_lt_u32 s{sI}, 2
    s_cbranch_scc0 L_hx0
    s_cmp_eq_u32 s{sM}, 1
    s_cbranch_scc0 L_hx0
    s_cmp_eq_u32 s{sI}, 0
    s_cselect_b32 s{sI}, {XBUF}, 0
    buffer_load_dword v30, v19, s[{sWS}:{sWS+3}], s{sI} offen sc1
L_hx0:
""")
        stamp(1)
        a(f"""
    s_add_u32 s{sL}, s{sL}, 1
    s_add_u32 s{sT3}, s{sT3}, {c.wstride}
    s_cmp_lt_u32 s{sL}, 6
    s_cbranch_scc1 L_h_layer
""")
        a("    s_waitcnt vmcnt(0)")
        stamp(1)
        dump_ts()
    a("L_end:")
    a("    s_endpgm")
    kernel_desc(a, KNAME, NV, sgpr=102, accum=NV)
    txt = a.text().rstrip()
    if txt.endswith(".text"):
        txt = txt[:-5]
    return txt

if __name__ == "__main__":
    import json
    kw = json.loads(sys.argv[2]) if len(sys.argv) > 2 else {}
    open(sys.argv[1], "w").write(gen(**kw))
```

```python
import sys, os
from asmlib import *

KNAME = "standalone__dcn_v2_cross__recsys_kernel"
B_, DIN, L_ = 1024, 832, 6
ROWB = DIN * 2
WLAYER = DIN * DIN * 2
XLAYER = B_ * DIN * 2
XMH = 32 * ROWB
XRB = 2 * XMH
XBUF = 16 * XRB
CTRL = 2 * XBUF
TSOFF = CTRL + 16 * 4096
WS_BYTES = TSOFF + 256 * 8 * 256

class Cfg:
    def __init__(self, **kw):
        self.P = 6
        self.D = 5
        self.PF = 2
        self.SV = 3
        self.SB = 7
        self.ssched = 'two'
        self.NS = 3
        self.sp = True
        self.hp = None
        self.helpers = True
        self.hfirst = 0
        self.hlook = 2
        self.hpace = True
        self.hdepth = 1
        self.lthr = 0
        self.lthr_all = True
        self.sD_late = True
        self.ts = 0
        self.force_slow = False
        self.scramble = False
        self.spin_max = 1 << 20
        self.wstride = WLAYER
        self.prio = 2
        self.hello_step = 19
        self.probe = 0
        self.probe_off = 5 * WLAYER + 700 * ROWB
        self.codepf = True
        self.wwarm = 2
        self.xt_by = 'worker'
        self.hvec_warm = True
        self.hvw_ahead = 2
        self.hvw_pos = 'after'
        self.tlbwarm = True
        self.l0b1 = False
        self.hvwarm = False
        self.hw0 = False
        self.hello_by = 'compute'
        self.pre_first = False
        self.swarm = False
        self.horder = 'linear'
        self.hwarm = False
        self.prog_step = 22
        self.prog_at = 'end'
        self.vwarm = False
        self.pre_by = 'loader'
        self.mid_step = 21
        self.presched = 'pack'
        self.h0 = 'middle'
        self.xtouch = False
        self.w0assist = False
        self.bias_by = 'loader'
        self.exp_delay = 0
        self.exp_rt = 0
        self.poll2 = True
        self.phased = True
        self.n1 = 4
        self.n2 = 4
        self.onepoll = True
        self.no_suf = self.no_pre = self.no_x = self.no_w = False
        self.__dict__.update(kw)

def gen(cfg=None, **kw):
    c = cfg or Cfg(**kw)
    P, D, PF = c.P, c.D, c.PF
    TS = int(c.ts)
    assert P <= 12 and PF <= P and D >= PF + 1
    KHS = (26 - P) * 2048
    PRE0 = 0
    SUF = 2 * P * 2048
    PRE1 = SUF + 2 * KHS
    PREPAR = PRE1 - PRE0
    RED = PRE1 + 2 * P * 2048
    BIAS = RED + 16384
    MODEW = BIAS
    LDS_BYTES = BIAS + 64
    XS = SUF
    assert XS + 4 * 28672 <= BIAS and LDS_BYTES <= 163840
    sW, sWS, sX0, sOUT, sBS = 4, 8, 12, 16, 24
    sRB, sJ, sG2, sWV, sMH, sKH, sL, sXCC, sMODE = 28, 29, 30, 31, 32, 33, 34, 35, 36
    sXA, sXB, sXST = 37, 38, 39
    sWP, sMP, sPD = 52, 53, 54
    sU, sOWNF, sXD2 = 55, 56, 57
    sT0, sT1, sT2, sT3 = 58, 59, 60, 61
    sSPIN, sROT = 62, 63
    sG, sM, sI = 64, 65, 66
    sTSI, sTM = 67, 68
    sXD, sCB = 70, 71
    sE, sTA, sTB, sMK = 72, 74, 76, 78
    sBP_ = 48
    sWG = 30
    vL = 0
    vT0, vT1, vT2, vT3 = 1, 2, 3, 4
    vDUM = 5
    vXO = 6
    vAPK, vAPS, vASK, vASS = 10, 11, 12, 13
    vDMA, vFA = 14, 15
    vPOLL = 16
    vRW, vRR, vBA, vTS = 20, 21, 22, 23
    vP = 24
    vAK, vAS, vPART, vX0F, vXR = 32, 48, 64, 80, 96
    vWF = 112
    vXF = 136
    vBP = 240
    vOUT, vHA, vFV, vDMA0 = 248, 249, 250, 252
    vPOL2 = 254
    NV = 256
    nsets = PF + 1
    assert nsets * 8 <= 24

    a = Asm()
    a("; Fused DCN-v2 cross network: 6 layers of x = x0 * (x @ W[l] + b[l]) + x, 1024 x 832, bf16 in/out, f32 accumulate.")
    a("; 208 worker workgroups = 16 row blocks (64 rows) x 13 column slices (64 columns); waves 0-3 MFMA, waves 4-7 W loaders;")
    a(f"; @launch grid=({256 if c.helpers else 208},1,1) block=(512,1,1) lds={LDS_BYTES}")
    a('.amdgcn_target "amdgcn-amd-amdhsa--gfx950"')
    a(".text")
    kernel_begin(a, KNAME)
    if TS == 5:
        a("    s_memrealtime s[26:27]")
        a("    s_memtime s[100:101]")

    def stamp(level=2):
        if not TS or TS < level or (TS == 4 and level > 1) or TS == 5: return
        a(f"    s_memtime s[{sTM}:{sTM+1}]")
        a(f"    s_waitcnt lgkmcnt(0)")
        a(f"    s_mov_b32 m0, s{sTSI}")
        a(f"    s_nop 0")
        a(f"    v_writelane_b32 v{vTS}, s{sTM}, m0")
        a(f"    s_add_u32 s{sTSI}, s{sTSI}, 1")
    def dump_ts():
        if not TS: return
        if TS == 5:
            a("    s_memrealtime s[80:81]")
            a("    s_memtime s[82:83]")
            a("    s_waitcnt lgkmcnt(0)")
            a(f"    v_writelane_b32 v{vTS}, s26, 0")
            a(f"    v_writelane_b32 v{vTS}, s80, 1")
            a(f"    v_writelane_b32 v{vTS}, s100, 2")
            a(f"    v_writelane_b32 v{vTS}, s82, 3")
        a(f"""
    s_lshl_b32 s{sT0}, s2, 3
    s_add_u32 s{sT0}, s{sT0}, s{sWV}
    s_lshl_b32 s{sT0}, s{sT0}, 8
    s_add_u32 s{sT0}, s{sT0}, {TSOFF}
    v_lshlrev_b32 v{vT0}, 2, v{vL}
    buffer_store_dword v{vTS}, v{vT0}, s[{sWS}:{sWS+3}], s{sT0} offen
""")
    def srd(dst, src, nbytes):
        a(f"    s_mov_b32 s{dst}, s{src}")
        a(f"    s_and_b32 s{dst+1}, s{src+1}, 0xffff")
        a(f"    s_mov_b32 s{dst+2}, {nbytes}")
        a(f"    s_mov_b32 s{dst+3}, 0x20000")

    a(f"""
    s_cmp_ge_u32 s2, {256 if c.helpers else 208}
    s_cbranch_scc1 L_end
    s_load_dwordx4 s[40:43], s[0:1], 0
    s_load_dwordx4 s[44:47], s[0:1], 16
    s_load_dwordx2 s[50:51], s[0:1], 40
    s_getreg_b32 s{sXCC}, hwreg(HW_REG_XCC_ID, 0, 4)
""")
    if c.scramble:
        a(f"""
    s_mul_hi_u32 s{sRB}, s2, 0x13B13B14
    s_mul_i32 s{sT0}, s{sRB}, 13
    s_sub_u32 s{sJ}, s2, s{sT0}
    s_and_b32 s{sG2}, s{sRB}, 1
    s_mul_i32 s{sROT}, s{sG2}, 13""")
    else:
        a(f"""
    s_and_b32 s{sT0}, s2, 7
    s_lshr_b32 s{sT1}, s2, 3
    s_cmp_ge_u32 s{sT1}, 13
    s_cselect_b32 s{sG2}, 1, 0
    s_mul_i32 s{sROT}, s{sG2}, 13
    s_sub_u32 s{sJ}, s{sT1}, s{sROT}
    s_lshl_b32 s{sRB}, s{sT0}, 1
    s_add_u32 s{sRB}, s{sRB}, s{sG2}""")
    a(f"""
    v_lshrrev_b32 v{vT0}, 6, v0
    v_and_b32 v{vL}, 63, v0
    v_readfirstlane_b32 s{sWV}, v{vT0}
    s_mov_b32 s{sTSI}, 0
    v_mov_b32 v{vTS}, 0
    s_lshl_b32 s{sCB}, s{sRB}, 12
    s_add_u32 s{sCB}, s{sCB}, {CTRL}
    s_and_b32 s{sMH}, s{sWV}, 1
    s_bfe_u32 s{sKH}, s{sWV}, 0x10001
    v_lshrrev_b32 v{vT0}, 3, v{vL}            ; row8
    v_and_b32 v{vT1}, 7, v{vL}
    v_bfe_u32 v{vT2}, v{vL}, 4, 1
    v_lshlrev_b32 v{vT2}, 2, v{vT2}
    v_xor_b32 v{vT1}, v{vT1}, v{vT2}
    v_lshlrev_b32 v{vT1}, 4, v{vT1}
    s_lshl_b32 s{sT0}, s{sJ}, 7
    v_add_u32 v{vT1}, s{sT0}, v{vT1}
    v_mul_u32_u24 v{vT2}, {ROWB}, v{vT0}
    v_add_u32 v{vDMA}, v{vT2}, v{vT1}
    v_and_b32 v{vT2}, 3, v{vT0}
    v_lshrrev_b32 v{vT0}, 2, v{vT0}
    v_lshl_add_u32 v{vT0}, v{vT0}, 3, v{vT2}
    v_mul_u32_u24 v{vT0}, {ROWB}, v{vT0}
    v_add_u32 v{vDMA0}, v{vT0}, v{vT1}
    s_waitcnt lgkmcnt(0)
""")
    srd(sX0, 40, XLAYER)
    srd(sW, 42, L_ * WLAYER)
    srd(sWS, 50, WS_BYTES)
    if c.codepf:
        a(f"""    ; instruction prefetch into L2: wave (id/8)*8 + w reads line number (that index) of this kernel's code
    s_getpc_b64 s[20:21]
L_pc:
    s_lshr_b32 s22, s2, 3
    s_lshl_b32 s22, s22, 3
    s_add_u32 s22, s22, s{sWV}
    s_lshl_b32 s22, s22, 6
    s_min_u32 s22, s22, L_end - L_pc
    s_load_dword s3, s[20:21], s22""")
    stamp(1)
    if c.helpers:
        a(f"""
    s_cmp_ge_u32 s2, 208
    s_cbranch_scc1 L_helper
""")
    a(f"""
    s_cmp_lt_u32 s{sWV}, 4
    s_cbranch_scc1 L_compute
""")
    def bias_dma(sreg, val, lab):
        a(f"    s_cmp_eq_u32 s{sreg}, {val}")
        a(f"    s_cbranch_scc0 {lab}")
        srd(sBS, 44, L_ * ROWB)
        a(f"""    v_lshrrev_b32 v{vT0}, 5, v{vL}
    v_mul_u32_u24 v{vT0}, {ROWB}, v{vT0}
    v_and_b32 v{vT1}, 31, v{vL}
    v_lshlrev_b32 v{vT1}, 2, v{vT1}
    v_add_u32 v{vT0}, v{vT0}, v{vT1}
    s_lshl_b32 s{sT0}, s{sJ}, 7
    v_add_u32 v{vT0}, s{sT0}, v{vT0}""")
        for t in range(3):
            a(f"    s_mov_b32 m0, {BIAS + 256*t}")
            a(f"    s_mov_b32 s{sT1}, {2*t*ROWB}")
            a(f"    buffer_load_dword v{vT0}, s[{sBS}:{sBS+3}], s{sT1} offen lds")
        a(f"{lab}:")
    vS0, vS1 = vXO, vXO + 1
    sSB = 40
    sWP0 = 98
    SB = c.SB
    NSR = (2 if c.ssched == 'two' else 3) * SB
    def sbatch(k, nextlayer=False):
        if not c.sp: return
        b = sSB + 2 if nextlayer else sSB
        for n_ in range(SB):
            a(f"    s_load_dwordx2 s[{76+2*n_}:{77+2*n_}], s[{b}:{b+1}], {(k * SB + n_) * ROWB + 60}")
    a(f"""
    s_sub_u32 s{sU}, s{sWV}, 4
""")
    if c.xtouch:
        a(f"""
    s_cmp_eq_u32 s{sU}, 0
    s_cbranch_scc0 L_notouch
    s_lshl_b32 s{sT0}, s{sRB}, 6
    s_mul_i32 s{sT0}, s{sT0}, {ROWB}
    s_lshl_b32 s{sT1}, s{sJ}, 7
    s_add_u32 s{sT0}, s{sT0}, s{sT1}
    v_mul_u32_u24 v20, {ROWB}, v{vL}
    s_mov_b32 s20, s{sT0}
    buffer_load_dword v{vDUM}, v20, s[{sX0}:{sX0+3}], s20 offen""")
    a(f"""
L_notouch:
""")
    a(f"""
    s_mul_i32 s{sT0}, s{sKH}, 416
    s_lshl_b32 s{sT1}, s{sMH}, 2
    s_add_u32 s{sT1}, s{sT1}, s{sT0}
    s_mul_i32 s{sT1}, s{sT1}, {ROWB}
    v_add_u32 v{vDMA0}, s{sT1}, v{vDMA0}
    s_lshl_b32 s{sT1}, s{sMH}, 3
    s_add_u32 s{sT1}, s{sT1}, s{sT0}
    s_mul_i32 s{sT1}, s{sT1}, {ROWB}
    v_add_u32 v{vDMA}, s{sT1}, v{vDMA}
    v_lshrrev_b32 v{vT0}, 3, v{vL}            ; row8
    v_and_b32 v{vT1}, 7, v{vL}
    v_lshrrev_b32 v{vT2}, 1, v{vT0}
    v_xor_b32 v{vT1}, v{vT1}, v{vT2}          ; c' ^ (row8>>1)
    v_xor_b32 v{vT2}, 4, v{vT1}
    v_mul_u32_u24 v{vT0}, {ROWB}, v{vT0}
    v_lshl_add_u32 v{vS0}, v{vT1}, 4, v{vT0}
    v_lshl_add_u32 v{vS1}, v{vT2}, 4, v{vT0}
    s_lshl_b32 s{sT0}, s{sRB}, 6
    s_lshl_b32 s{sT1}, s{sMH}, 5
    s_add_u32 s{sT0}, s{sT0}, s{sT1}
    s_mul_i32 s{sG}, s{sT0}, {ROWB}
    s_mul_i32 s{sT1}, s{sKH}, {6*128}
    s_add_u32 s{sG}, s{sG}, s{sT1}
    s_mul_i32 s{sM}, s{sU}, 28672
    s_add_u32 s{sM}, s{sM}, {XS}
    s_cmp_ge_u32 s{sJ}, 7
    s_cselect_b32 s{sT3}, 7, 0
    s_sub_u32 s{sT3}, s{sJ}, s{sT3}
    s_mov_b32 s{sI}, 0
L_xs:
    s_lshl_b32 s{sT0}, s{sT3}, 12
    s_add_u32 s{sT0}, s{sT0}, s{sM}
    s_lshl_b32 s{sT1}, s{sT3}, 7
    s_add_u32 s{sT1}, s{sT1}, s{sG}
""")
    for rg in range(4):
        a(f"    s_add_u32 m0, s{sT0}, {rg*1024}")
        a(f"    s_add_u32 s{sT2}, s{sT1}, {rg*8*ROWB}")
        a(f"    buffer_load_dwordx4 v{vS0 if rg % 2 == 0 else vS1}, s[{sX0}:{sX0+3}], s{sT2} offen lds")
    a(f"""
    s_add_u32 s{sT3}, s{sT3}, 1
    s_cmp_eq_u32 s{sT3}, 7
    s_cselect_b32 s{sT3}, 0, s{sT3}
    s_add_u32 s{sI}, s{sI}, 1
    s_cmp_lt_u32 s{sI}, 7
    s_cbranch_scc1 L_xs
    ; ---- W prefix of layer 0
    s_mul_i32 s{sG}, s{sROT}, 26624
    s_mul_i32 s{sM}, s{sKH}, {P*2048}
    s_lshl_b32 s{sT1}, s{sMH}, 10
    s_add_u32 s{sM}, s{sM}, s{sT1}
""")
    for i in range(P):
        a(f"    s_add_u32 m0, s{sM}, {PRE0 + i*2048}")
        a(f"    s_add_u32 s{sT0}, s{sG}, {i*26624}")
        a(f"    buffer_load_dwordx4 v{vDMA0}, s[{sW}:{sW+3}], s{sT0} offen lds")
    a(f"""
""")
    if c.w0assist:
        a(f"""
    s_cmp_eq_u32 s{sU}, 3
    s_cbranch_scc0 L_now0t
    v_lshrrev_b32 v21, 5, v{vL}               ; K half
    v_mul_u32_u24 v21, 416, v21
    v_and_b32 v22, 31, v{vL}
    v_add_u32 v21, v21, v22
    v_mul_u32_u24 v21, {ROWB}, v21
    s_lshl_b32 s20, s{sROT}, 4
    s_add_u32 s20, s20, {P * 16 + 28}
    s_mul_i32 s20, s20, {ROWB}
    s_lshl_b32 s21, s{sJ}, 7
    s_add_u32 s20, s20, s21
    buffer_load_dword v{vDUM}, v21, s[{sW}:{sW+3}], s20 offen
L_now0t:""")
    a(f"""
""")
    if c.xt_by == "worker":
        a(f"""
    v_lshrrev_b32 v21, 5, v{vL}
    v_mul_u32_u24 v21, {XMH}, v21
    v_and_b32 v22, 31, v{vL}
    v_lshl_add_u32 v21, v22, 7, v21
    s_mul_i32 s22, s{sRB}, {XRB}
    s_lshl_b32 s23, s{sJ}, 12
    s_add_u32 s22, s22, s23                   ; buffer 0
    s_add_u32 s23, s22, {XBUF}                ; buffer 1
    s_cmp_eq_u32 s{sU}, 1
    s_cbranch_scc0 L_noxt1
    buffer_load_dword v{vDUM}, v21, s[{sWS}:{sWS+3}], s23 offen sc1
L_noxt1:""")
    if c.hello_by == "loader":
        a(f"""
    s_load_dwordx2 s[{sE}:{sE+1}], s[50:51], s{sCB}
    s_add_u32 s{sT0}, s{sCB}, 128
    s_add_u32 s46, s50, s{sT0}
    s_addc_u32 s47, s51, 0""")
    a(f"""
    s_mul_i32 s{sT2}, s{sKH}, {KHS}
    s_lshl_b32 s{sT1}, s{sMH}, 10
    s_add_u32 s{sT2}, s{sT2}, s{sT1}
    s_add_u32 s{sMP}, s{sT2}, {SUF}
    s_mul_i32 s70, s{sKH}, {P*2048}
    s_add_u32 s70, s70, s{sT1}
    s_add_u32 s70, s70, {PRE1}                ; prefix of layer 1 goes to parity 1
    s_mov_b32 s71, {PREPAR}
    s_mul_i32 s{sT0}, s{sKH}, 416
    s_lshl_b32 s{sT1}, s{sROT}, 4
    s_add_u32 s{sT0}, s{sT0}, s{sT1}
    s_mul_i32 s{sT1}, s{sMH}, {NSR}
    s_add_u32 s{sT0}, s{sT0}, s{sT1}
    s_add_u32 s{sT0}, s{sT0}, {c.SV * 16}
    s_mul_i32 s{sT0}, s{sT0}, {ROWB}
    s_lshl_b32 s{sT1}, s{sJ}, 7
    s_add_u32 s{sT0}, s{sT0}, s{sT1}
    s_add_u32 s{sT0}, s{sT0}, {c.wstride}
    s_mov_b32 s98, s42
    s_mov_b32 s99, s43
    s_add_u32 s40, s42, s{sT0}
    s_addc_u32 s41, s43, 0
    s_add_u32 s42, s40, {c.wstride}
    s_addc_u32 s43, s41, 0
""")
    def swarm(k):
        if not (c.swarm and c.sp): return
        lst = [(l, r) for l in range(2, 6) for r in range(3)]
        lst = lst[:7] if k == 0 else lst[7:]
        cur = None
        for n_, (l, r) in enumerate(lst):
            if cur != l:
                a(f"    s_add_u32 s46, s44, {l * c.wstride}")
                a(f"    s_addc_u32 s47, s45, 0")
                cur = l
            a(f"    s_load_dwordx2 s[{76+2*n_}:{77+2*n_}], s[46:47], {r*ROWB + 60}")
    if c.swarm and c.sp:
        per_range = 2 * NSR // 3
        a(f"""
    ; share of the S rows for the warm-up: q = rb*4 + u, range = q / {per_range}, rows 3*(q % {per_range}) ...
    s_lshl_b32 s{sT0}, s{sRB}, 2
    s_add_u32 s{sT0}, s{sT0}, s{sWV}
    s_sub_u32 s{sT0}, s{sT0}, 4
    s_min_u32 s{sT0}, s{sT0}, {4 * per_range - 1}
    s_mul_i32 s{sT1}, s{sT0}, {-(-65536 // per_range)}
    s_lshr_b32 s{sT1}, s{sT1}, 16             ; range
    s_mul_i32 s{sT2}, s{sT1}, {per_range}
    s_sub_u32 s{sT0}, s{sT0}, s{sT2}
    s_mul_i32 s{sT0}, s{sT0}, 3
    s_mul_i32 s{sT1}, s{sT1}, 208
    s_add_u32 s{sT0}, s{sT0}, s{sT1}
    s_add_u32 s{sT0}, s{sT0}, {c.SV * 16}
    s_mul_i32 s{sT0}, s{sT0}, {ROWB}
    s_lshl_b32 s{sT1}, s{sJ}, 7
    s_add_u32 s{sT0}, s{sT0}, s{sT1}
    s_add_u32 s44, s{sWP0}, s{sT0}
    s_addc_u32 s45, s{sWP0+1}, 0
""")
        swarm(0)
    if c.w0assist:
        a(f"""    s_cmp_eq_u32 s{sU}, 3
    s_cbranch_scc0 L_bxw
    s_waitcnt vmcnt({P + 1})
    s_branch L_bxw2
L_bxw:
    s_waitcnt vmcnt({P})
L_bxw2:""")
    elif c.xt_by == "worker":
        a(f"""    s_cmp_eq_u32 s{sU}, 1
    s_cbranch_scc0 L_bxw
    s_waitcnt vmcnt({P + 1})
    s_branch L_bxw2
L_bxw:
    s_waitcnt vmcnt({P})
L_bxw2:""")
    else:
        a(f"    s_waitcnt vmcnt({P})")
    stamp()
    a(f"""
    s_barrier                                 ; B_x
    s_barrier                                 ; B_y
""")
    if c.swarm and c.sp: a("    s_waitcnt lgkmcnt(0)")
    if c.hello_by != "loader" and c.ssched != "two": sbatch(0)
    def suffix(vreg, lay, thr=True, phased=False, bp=None):
        a(f"    s_mul_i32 s{sG}, s{sROT}, 26624")
        a(f"    s_add_u32 s{sG}, s{sG}, {lay}")
        a(f"    s_sub_u32 s{sM}, 13, s{sROT}")
        a(f"    s_mul_i32 s{sM}, s{sM}, 26624")
        a(f"    s_add_u32 s{sM}, s{sM}, {lay}")
        for n_, i in enumerate(range(P, 26)):
            if bp is not None and n_ == bp:
                a(f"    s_waitcnt vmcnt({bp})")
                a("    s_barrier                                 ; B_p: prefix of layer 0 has landed")
                if c.hello_by == "loader":
                    a(f"""    s_cmp_eq_u32 s{sWV}, 6
    s_cbranch_scc0 L_b0
    s_waitcnt lgkmcnt(0)
    s_load_dwordx16 s[76:91], s[46:47], 0 glc
    s_load_dwordx8 s[92:99], s[46:47], 64 glc
    s_load_dwordx2 s[20:21], s[46:47], 96 glc
    s_branch L_b0d
L_b0:""")
                    sbatch(0)
                    a("L_b0d:")
            if phased and n_ == c.n1: a("    s_barrier")
            if phased and n_ == c.n1 + c.n2: a("    s_barrier")
            a(f"    s_add_u32 m0, s{sMP}, {(i-P)*2048}")
            a(f"    s_add_u32 s{sI}, s{sG if i < 13 else sM}, {(i % 13) * 26624}")
            a(f"    buffer_load_dwordx4 v{vreg}, s[{sW}:{sW+3}], s{sI} offen lds")
            if c.lthr and thr and (c.lthr_all or n_ >= c.n1 + c.n2):
                a(f"    s_waitcnt vmcnt({c.lthr - 1})")
    sPP, sPDL = 70, 71
    def prefix_next(lay_next):
        a(f"    s_mul_i32 s{sG}, s{sROT}, 26624")
        a(f"    s_add_u32 s{sG}, s{sG}, s{lay_next}")
        for t in range(P):
            a(f"    s_add_u32 m0, s{sPP}, {t*2048}")
            a(f"    s_add_u32 s{sI}, s{sG}, {t*26624}")
            a(f"    buffer_load_dwordx4 v{vDMA}, s[{sW}:{sW+3}], s{sI} offen lds")
            if c.lthr and c.lthr_all and t + 1 < P:
                a(f"    s_waitcnt vmcnt({c.lthr - 1})")
        a(f"    s_sub_u32 s{sPP}, s{sPP}, s{sPDL}")
        a(f"    s_sub_u32 s{sPDL}, 0, s{sPDL}")
    def advance_sb():
        a(f"""    s_add_u32 s40, s40, {c.wstride}
    s_addc_u32 s41, s41, 0
    s_add_u32 s42, s42, {c.wstride}
    s_addc_u32 s43, s43, 0""")
    suffix(vDMA0, "0", False, False, bp=13 - P)
    n = 26 - P
    if c.hello_by != "loader":
        if c.sp and c.ssched != "two": a("    s_waitcnt lgkmcnt(0)")
        sbatch(1)
    a(f"    s_waitcnt vmcnt({n - (13 - P)})")
    stamp()
    a("    s_barrier                                 ; chunk [P,13)")
    if c.hello_by == "loader" and c.sp and c.l0b1:
        a(f"    s_cmp_eq_u32 s{sWV}, 6")
        a(f"    s_cbranch_scc1 L_nob1")
        a("    s_waitcnt lgkmcnt(0)"); sbatch(1)
        a("L_nob1:")
    if c.swarm and c.sp:
        a("    s_waitcnt lgkmcnt(0)"); swarm(1)
    a(f"    s_waitcnt vmcnt({26 - 20})")
    a("    s_barrier                                 ; chunk [13,20)")
    if c.hello_by == "loader":
        a(f"""    s_cmp_eq_u32 s{sWV}, 6
    s_cbranch_scc0 L_nohe
    s_add_u32 s{sT0}, s{sE}, 8
    s_addc_u32 s{sT1}, s{sE+1}, 0
    s_and_b32 s{sT2}, s{sT1}, 0x0fffffff
    s_lshl_b32 s22, s{sXCC}, 28
    s_xor_b32 s{sT1}, s{sT1}, s22
    s_mov_b32 s22, 1
    s_mov_b32 s23, 1
    s_waitcnt lgkmcnt(0)""")
        for m_ in range(13):
            lo = 76 + 2 * m_ if m_ < 12 else 20
            a(f"""    s_cmp_eq_u32 s{lo}, s{sT0}
    s_cselect_b32 s23, s23, 0
    s_cmp_eq_u32 s{lo+1}, s{sT1}
    s_cselect_b32 s22, s22, 0
    s_and_b32 s{lo+1}, s{lo+1}, 0x0fffffff
    s_cmp_eq_u32 s{lo+1}, s{sT2}
    s_cselect_b32 s23, s23, 0""")
        a(f"""    s_sub_u32 s22, 2, s22
    s_mul_i32 s22, s22, s23
    v_mov_b32 v25, s22
    v_mov_b32 v26, {MODEW}
    ds_write_b32 v26, v25
    s_waitcnt lgkmcnt(0)
""")
        sbatch(0)
        a("L_nohe:")
    a("    s_waitcnt vmcnt(0)")
    stamp()
    a("    s_barrier                                 ; chunk [20,26)")
    if c.pre_by == "loader":
        a("    s_barrier                                 ; B_mid")
        a(f"    s_mov_b32 s{sT3}, {c.wstride}")
        if not c.no_pre: prefix_next(sT3)
        if c.xt_by == "worker":
            a(f"""    s_cmp_eq_u32 s{sWV}, 5
    s_cbranch_scc0 L_noxt0
    buffer_load_dword v{vDUM}, v21, s[{sWS}:{sWS+3}], s22 offen sc1
L_noxt0:""")
    advance_sb()
    a(f"""
    s_barrier
    s_mov_b32 s{sL}, 1
    s_mov_b32 s{sT3}, {c.wstride}
L_ld_layer:
    s_cmp_lt_u32 s{sL}, 5
    s_cselect_b32 s{sU}, 1, 0
""")
    def guarded(fn, lab):
        if not c.sp: return
        a(f"    s_cmp_eq_u32 s{sU}, 1")
        a(f"    s_cbranch_scc0 {lab}")
        fn()
        a(f"{lab}:")
    if c.ssched != "two":
        guarded(lambda: sbatch(1), "L_sA")
    if not c.no_suf: suffix(vDMA, f"s{sT3}", True, c.phased)
    elif c.phased:
        a("    s_barrier"); a("    s_barrier")
    stamp()
    if c.ssched != "two":
        guarded(lambda: (a("    s_waitcnt lgkmcnt(0)"), sbatch(2)), "L_sB")
    if c.pre_by == "loader": a(f"    s_waitcnt vmcnt({26 - P})                 ; the prefix has landed")
    a("    s_barrier                                 ; B_a")
    if c.ssched == "two":
        guarded(lambda: sbatch(1), "L_sB")
    a("    s_waitcnt vmcnt(0)")
    stamp()
    a("    s_barrier")
    a(f"    s_cmp_lt_u32 s{sL}, 4")
    a(f"    s_cselect_b32 s{sU}, 1, 0")
    guarded(lambda: (a("    s_waitcnt lgkmcnt(0)"), sbatch(0, True)), "L_sC")
    if c.pre_by == "loader":
        a("    s_barrier                                 ; B_mid")
        stamp(3)
        a(f"    s_cmp_lt_u32 s{sL}, 5")
        a(f"    s_cbranch_scc0 L_nopre")
        a(f"    s_add_u32 s{sU}, s{sT3}, {c.wstride}")
        if not c.no_pre: prefix_next(sU)
        a("L_nopre:")
        stamp(3)
    advance_sb()
    a(f"""
    s_barrier                                 ; B2
    s_add_u32 s{sL}, s{sL}, 1
    s_add_u32 s{sT3}, s{sT3}, {c.wstride}
    s_cmp_lt_u32 s{sL}, 6
    s_cbranch_scc1 L_ld_layer
""")
    dump_ts()
    a("    s_endpgm")

    sBI = 84
    sBP = 48
    def bias_load():
        a(f"    s_load_dwordx16 s[{sBI}:{sBI+15}], s[{sBP}:{sBP+1}], 0")
        a(f"    s_add_u32 s{sBP}, s{sBP}, {ROWB}")
        a(f"    s_addc_u32 s{sBP+1}, s{sBP+1}, 0")
    def bias_spread():
        a("    s_mov_b32 exec_hi, 0")
        for q in range(4):
            for d in range(2):
                a(f"    v_mov_b32 v{vBP+2*q+d}, s{sBI+4*q+d}")
        a("    s_mov_b32 exec_lo, 0")
        a("    s_mov_b32 exec_hi, -1")
        for q in range(4):
            for d in range(2):
                a(f"    v_mov_b32 v{vBP+2*q+d}, s{sBI+4*q+2+d}")
        a("    s_mov_b64 exec, -1")
    def bias_unpack(lo=0, hi=8):
        for d in range(lo, hi):
            a(f"    v_lshlrev_b32 v{vAK+2*d}, 16, v{vBP+d}")
            a(f"    v_and_b32 v{vAK+2*d+1}, 0xffff0000, v{vBP+d}")
    a(f"""
L_compute:
    s_load_dwordx2 s[{sE}:{sE+1}], s[50:51], s{sCB}
    s_lshl_b32 s{sT0}, s{sJ}, 7
    s_lshl_b32 s{sT1}, s{sKH}, 6
    s_add_u32 s{sT0}, s{sT0}, s{sT1}
    s_add_u32 s{sBP_}, s44, s{sT0}
    s_addc_u32 s{sBP_+1}, s45, 0
    s_load_dwordx16 s[84:99], s[{sBP_}:{sBP_+1}], 0
    s_load_dword s20, s[{sBP_}:{sBP_+1}], {ROWB}
    s_load_dword s21, s[{sBP_}:{sBP_+1}], {2*ROWB}
    s_load_dword s22, s[{sBP_}:{sBP_+1}], {3*ROWB}
    s_load_dword s23, s[{sBP_}:{sBP_+1}], {4*ROWB}
    s_load_dword s24, s[{sBP_}:{sBP_+1}], {5*ROWB}
    s_add_u32 s{sBP_}, s{sBP_}, {ROWB}
    s_addc_u32 s{sBP_+1}, s{sBP_+1}, 0
    s_setprio {c.prio}
""")
    if c.wwarm:
        a(f"""
    s_sub_u32 s{sT0}, s{sWV}, 1
    s_cmp_lt_u32 s{sT0}, {c.wwarm}
    s_cbranch_scc0 L_noww
    s_mul_i32 s{sT0}, s{sRB}, 13
    s_add_u32 s{sT0}, s{sT0}, s{sJ}
    s_mul_i32 s{sT0}, s{sT0}, {52 * 128}
    s_mul_i32 s{sT1}, s{sWV}, {c.wstride}
    s_add_u32 s20, s{sT0}, s{sT1}
    v_min_u32 v20, 51, v{vL}
    v_lshlrev_b32 v20, 7, v20
    buffer_load_dword v{vDUM}, v20, s[{sW}:{sW+3}], s20 offen
L_noww:""")
    a(f"""
    v_min_u32 v{vT0}, 51, v{vL}
    v_lshlrev_b32 v{vT0}, 3, v{vT0}
    s_add_u32 s{sT0}, s{sCB}, 2048
    v_add_u32 v{vFA}, s{sT0}, v{vT0}
    s_cmp_eq_u32 s{sWV}, 0
    s_cbranch_scc0 L_noft
    buffer_load_dword v{vDUM}, v{vFA}, s[{sWS}:{sWS+3}], 0 offen sc1
L_noft:
    s_lshl_b32 s{sT1}, s{sJ}, 2
    s_add_u32 s{sT1}, s{sT1}, s{sWV}
    s_lshl_b32 s{sT1}, s{sT1}, 3
    s_add_u32 s{sOWNF}, s{sT0}, s{sT1}
    v_min_u32 v{vT0}, 12, v{vL}
    v_lshlrev_b32 v{vT0}, 3, v{vT0}
    s_add_u32 s{sT0}, s{sCB}, 128
    v_add_u32 v{vHA}, s{sT0}, v{vT0}
""")
    srd(sOUT, 46, XLAYER)
    a(f"""
    s_lshl_b32 s{sT0}, s{sRB}, 6
    s_lshl_b32 s{sT1}, s{sMH}, 5
    s_add_u32 s{sT0}, s{sT0}, s{sT1}
    s_mul_i32 s{sT0}, s{sT0}, {ROWB}
    s_lshl_b32 s{sT1}, s{sJ}, 7
    s_add_u32 s{sT0}, s{sT0}, s{sT1}
    s_lshl_b32 s{sT1}, s{sKH}, 6
    s_add_u32 s{sT0}, s{sT0}, s{sT1}
    v_and_b32 v{vT0}, 31, v{vL}
    v_mul_u32_u24 v{vT0}, {ROWB}, v{vT0}
    v_lshrrev_b32 v{vT1}, 5, v{vL}
    v_lshl_add_u32 v{vT0}, v{vT1}, 4, v{vT0}
    v_add_u32 v{vOUT}, s{sT0}, v{vT0}
    v_lshlrev_b32 v{vXO}, 4, v{vL}
    v_add_u32 v{vXO+1}, 0x1000, v{vXO}
    v_add_u32 v{vXO+2}, 0x2000, v{vXO}
    v_add_u32 v{vXO+3}, 0x3000, v{vXO}
    s_mul_i32 s{sT0}, s{sRB}, {XRB}
    s_mul_i32 s{sT1}, s{sMH}, {XMH}
    s_add_u32 s{sT0}, s{sT0}, s{sT1}
    s_add_u32 s{sT0}, s{sT0}, {XBUF}
    s_lshl_b32 s{sT1}, s{sJ}, 2
    s_lshl_b32 s{sT2}, s{sKH}, 1
    s_add_u32 s{sT1}, s{sT1}, s{sT2}
    s_lshl_b32 s{sT1}, s{sT1}, 10
    s_add_u32 s{sXST}, s{sT0}, s{sT1}
""")
    if not c.helpers:
        a(f"""
    v_and_b32 v{vT1}, 15, v{vL}
    v_lshlrev_b32 v{vT1}, 7, v{vT1}
    v_bfe_u32 v{vT2}, v{vL}, 4, 1
    v_mul_u32_u24 v{vT2}, {XBUF >> 8}, v{vT2}
    v_lshl_add_u32 v{vT1}, v{vT2}, 8, v{vT1}
    s_sub_u32 s{sT3}, s{sXST}, {XBUF}
    buffer_load_dword v{vDUM}, v{vT1}, s[{sWS}:{sWS+3}], s{sT3} offen sc1
""")
    a(f"""
    s_mul_i32 s{sT1}, s{sKH}, 26
    s_add_u32 s{sT2}, s{sT1}, s{sROT}
    s_lshl_b32 s{sT2}, s{sT2}, 10
    s_add_u32 s{sXA}, s{sT0}, s{sT2}
    s_add_u32 s{sT2}, s{sT1}, 13
    s_sub_u32 s{sT2}, s{sT2}, s{sROT}
    s_lshl_b32 s{sT2}, s{sT2}, 10
    s_add_u32 s{sXB}, s{sT0}, s{sT2}
    s_mov_b32 s{sXD}, {-XBUF & 0xffffffff}
    s_mov_b32 s{sXD2}, {-XBUF & 0xffffffff}
    ; ---- W prefix bookkeeping for layer 1 (loaded at the end of layer 0)
    s_mul_i32 s{sT0}, s{sKH}, 416
    s_lshl_b32 s{sT1}, s{sROT}, 4
    s_add_u32 s{sT0}, s{sT0}, s{sT1}
    s_lshl_b32 s{sT1}, s{sMH}, 3
    s_add_u32 s{sT0}, s{sT0}, s{sT1}
    s_mul_i32 s{sWP}, s{sT0}, {ROWB}
    s_add_u32 s{sWP}, s{sWP}, {c.wstride}
    s_mul_i32 s{sMP}, s{sKH}, {P*2048}
    s_lshl_b32 s{sT1}, s{sMH}, 10
    s_add_u32 s{sMP}, s{sMP}, s{sT1}
    s_add_u32 s{sMP}, s{sMP}, {PRE1}
    s_mov_b32 s{sPD}, {PREPAR}
    v_lshrrev_b32 v{vT0}, 5, v{vL}            ; h
    v_lshlrev_b32 v{vT0}, 2, v{vT0}
    v_bfe_u32 v{vT1}, v{vL}, 2, 2             ; r
    v_add_u32 v{vT0}, v{vT0}, v{vT1}
    v_lshlrev_b32 v{vT0}, 7, v{vT0}           ; row*128
    v_bfe_u32 v{vT1}, v{vL}, 4, 1             ; nb
    v_lshlrev_b32 v{vT1}, 1, v{vT1}
    v_bfe_u32 v{vT2}, v{vL}, 1, 1             ; c>>1
    v_add_u32 v{vT1}, v{vT1}, v{vT2}
    v_bfe_u32 v{vT2}, v{vL}, 3, 1             ; (r>>1)&1
    v_lshlrev_b32 v{vT2}, 2, v{vT2}
    v_xor_b32 v{vT1}, v{vT1}, v{vT2}
    v_lshlrev_b32 v{vT1}, 4, v{vT1}
    v_add_u32 v{vT0}, v{vT0}, v{vT1}
    v_and_b32 v{vT1}, 1, v{vL}
    v_lshlrev_b32 v{vT1}, 3, v{vT1}
    v_add_u32 v{vT0}, v{vT0}, v{vT1}
    s_lshl_b32 s{sT0}, s{sKH}, 6
    v_xor_b32 v{vT1}, s{sT0}, v{vT0}          ; keep
    v_xor_b32 v{vT2}, 64, v{vT1}              ; send
    s_mul_i32 s{sT0}, s{sKH}, {P*2048}
    v_add_u32 v{vAPK}, s{sT0}, v{vT1}
    v_add_u32 v{vAPS}, s{sT0}, v{vT2}
    s_mul_i32 s{sT0}, s{sKH}, {KHS}
    s_add_u32 s{sT0}, s{sT0}, {SUF}
    v_add_u32 v{vASK}, s{sT0}, v{vT1}
    v_add_u32 v{vASS}, s{sT0}, v{vT2}
    s_lshl_b32 s{sT0}, s{sWV}, 12
    s_add_u32 s{sT0}, s{sT0}, {RED}
    v_add_u32 v{vRW}, s{sT0}, v{vXO}
    s_xor_b32 s{sT1}, s{sWV}, 2
    s_lshl_b32 s{sT1}, s{sT1}, 12
    s_add_u32 s{sT1}, s{sT1}, {RED}
    v_add_u32 v{vRR}, s{sT1}, v{vXO}
    v_lshrrev_b32 v{vT0}, 5, v{vL}
    v_lshlrev_b32 v{vT3}, 3, v{vT0}           ; h*8
    v_and_b32 v{vT0}, 31, v{vL}               ; m
    v_lshrrev_b32 v{vT1}, 3, v{vT0}
    v_lshlrev_b32 v{vT1}, 10, v{vT1}          ; rg*1024
    v_and_b32 v{vT2}, 7, v{vT0}
    v_lshl_add_u32 v{vT1}, v{vT2}, 7, v{vT1}  ; + row8*128
    v_bfe_u32 v{vT2}, v{vT0}, 1, 3            ; f(m)
    s_cmp_ge_u32 s{sJ}, 7
    s_cselect_b32 s{sT0}, 1, 0
    s_mul_i32 s{sT1}, s{sT0}, 6
    s_sub_u32 s{sT1}, s{sJ}, s{sT1}
    s_lshl_b32 s{sT1}, s{sT1}, 12
    s_lshl_b32 s{sT0}, s{sT0}, 1
    s_add_u32 s{sT0}, s{sT0}, s{sMH}
    s_mul_i32 s{sT0}, s{sT0}, 28672
    s_add_u32 s{sT0}, s{sT0}, s{sT1}
    s_add_u32 s{sT0}, s{sT0}, {XS}
    s_lshl_b32 s{sT1}, s{sKH}, 2
    v_add3_u32 v{vT3}, v{vT3}, v{vT1}, s{sT0}
    v_xor_b32 v{vT0}, s{sT1}, v{vT2}          ; (4*nh) ^ f(m)
""")
    for q in range(4):
        a(f"    v_xor_b32 v{vPART+8+q}, {q}, v{vT0}")
        a(f"    v_lshl_add_u32 v{vPART+8+q}, v{vPART+8+q}, 4, v{vT3}")
    a(f"""
    v_lshrrev_b32 v{vT0}, 5, v{vL}
    v_xor_b32 v{vT2}, v{vT2}, v{vT0}          ; f(m) ^ h
    s_mul_i32 s{sT3}, s{sWV}, 28672
    s_add_u32 s{sT3}, s{sT3}, {XS}
    s_mul_i32 s{sI}, s{sKH}, 26
    s_mul_i32 s{sM}, s{sKH}, 6
""")
    for seg in range(2):
        if seg == 0:
            a(f"    s_add_u32 s{sG}, s{sI}, s{sROT}")
        else:
            a(f"    s_add_u32 s{sG}, s{sI}, 13")
            a(f"    s_sub_u32 s{sG}, s{sG}, s{sROT}")
        for x in range(4):
            r = vPART + seg * 4 + x
            a(f"    s_add_u32 s{sT0}, s{sG}, {x}")
            a(f"    s_and_b32 s{sT1}, s{sT0}, 3")
            a(f"    s_lshl_b32 s{sT1}, s{sT1}, 1")
            a(f"    s_lshr_b32 s{sT0}, s{sT0}, 2")
            a(f"    s_sub_u32 s{sT0}, s{sT0}, s{sM}")
            a(f"    s_lshl_b32 s{sT0}, s{sT0}, 12")
            a(f"    s_add_u32 s{sT0}, s{sT0}, s{sT3}")
            a(f"    v_xor_b32 v{r}, s{sT1}, v{vT2}")
            a(f"    v_lshl_add_u32 v{r}, v{r}, 4, v{vT1}")
            a(f"    v_add_u32 v{r}, s{sT0}, v{r}")
    a(f"""
    s_waitcnt lgkmcnt(0)
    s_add_u32 s{sTA}, s{sE}, 1
    s_addc_u32 s{sTA+1}, s{sE+1}, 0
    s_add_u32 s{sTB}, s{sE}, 2
    s_addc_u32 s{sTB+1}, s{sE+1}, 0
    s_cmp_eq_u32 s{sWV}, 0
    s_cbranch_scc0 L_nohello
    s_add_u32 s{sT0}, s{sE}, 8
    s_addc_u32 s{sT1}, s{sE+1}, 0
    s_lshl_b32 s{sT2}, s{sXCC}, 28
    s_xor_b32 s{sT1}, s{sT1}, s{sT2}
    v_mov_b32 v{vPOLL}, s{sT0}
    v_mov_b32 v{vPOLL+1}, s{sT1}
    s_lshl_b32 s{sT2}, s{sJ}, 3
    s_add_u32 s{sT2}, s{sT2}, s{sCB}
    s_add_u32 s{sT2}, s{sT2}, 128
    s_mov_b64 exec, 1
    buffer_store_dwordx2 v[{vPOLL}:{vPOLL+1}], off, s[{sWS}:{sWS+3}], s{sT2} sc1
    s_mov_b64 exec, -1
L_nohello:
""")
    if c.w0assist:
        a(f"""
    s_mul_i32 s{sT0}, s{sKH}, 416
    s_lshl_b32 s{sT1}, s{sROT}, 4
    s_add_u32 s{sT0}, s{sT0}, s{sT1}
    s_mul_i32 s{sT1}, s{sMH}, 14
    s_add_u32 s{sT0}, s{sT0}, s{sT1}
    s_add_u32 s{sT0}, s{sT0}, {P * 16}
    s_mul_i32 s{sT0}, s{sT0}, {ROWB}
    s_lshl_b32 s{sT1}, s{sJ}, 7
    s_add_u32 s{sT0}, s{sT0}, s{sT1}
    s_add_u32 s44, s42, s{sT0}
    s_addc_u32 s45, s43, 0
""")
        for n_ in range(14):
            if n_ == 7: a("    s_waitcnt lgkmcnt(0)")
            a(f"    s_load_dwordx2 s[{20+2*(n_%2)}:{21+2*(n_%2)}], s[44:45], {n_*ROWB + 60}")
    elif c.vwarm:
        nrows = c.SV * 16
        per_rb = nrows // 4
        a(f"""
    s_lshr_b32 s{sT0}, s{sRB}, 2
    s_mul_i32 s{sT0}, s{sT0}, 208
    s_and_b32 s{sT1}, s{sRB}, 3
    s_mul_i32 s{sT1}, s{sT1}, {per_rb}
    s_add_u32 s{sT0}, s{sT0}, s{sT1}
    s_mul_i32 s{sT1}, s{sWV}, {per_rb // 4}
    s_add_u32 s{sT0}, s{sT0}, s{sT1}
    s_mul_i32 s{sT0}, s{sT0}, {ROWB}
    s_lshl_b32 s{sT1}, s{sJ}, 7
    s_add_u32 s{sT0}, s{sT0}, s{sT1}
    s_add_u32 s{sT0}, s{sT0}, {c.wstride}
    s_add_u32 s44, s42, s{sT0}
    s_addc_u32 s45, s43, 0
""")
        nper = per_rb // 4
        vw = [(l, r) for l in range(1, 6) for r in range(nper)][:14]
        def vwarm_batch(k):
            cur = None
            for n_, (l, r) in enumerate(vw[7*k:7*k+7]):
                if cur != l:
                    a(f"    s_add_u32 s46, s44, {(l-1) * c.wstride}")
                    a(f"    s_addc_u32 s47, s45, 0")
                    cur = l
                a(f"    s_load_dwordx2 s[{20+2*(n_%2)}:{21+2*(n_%2)}], s[46:47], {r*ROWB + 60}")
        vwarm_batch(0)
    stamp()
    a("    s_barrier                                 ; B_x: staged x0, prefix(0) and biases have landed")
    stamp()
    for q in range(4):
        a(f"    ds_read_b64 v[{vP+2*q}:{vP+2*q+1}], v{vPART+8+q}")
    for i in range(26):
        seg, ii = (0, i) if i < 13 else (1, i - 13)
        a(f"    ds_read_b128 v[{vXF+4*i}:{vXF+4*i+3}], v{vPART + seg*4 + (ii & 3)} offset:{(ii >> 2) * 4096}")
        if i in (9, 17):
            a("    s_waitcnt lgkmcnt(6)")
    a("    s_waitcnt lgkmcnt(0)")
    a("    s_barrier")
    if c.vwarm and not c.w0assist: vwarm_batch(1)
    stamp()
    for d in range(8):
        a(f"    v_lshlrev_b32 v{vX0F+2*d}, 16, v{vP+d}")
        a(f"    v_and_b32 v{vX0F+2*d+1}, 0xffff0000, v{vP+d}")
    bias_spread()
    bias_unpack()
    for r in range(16):
        a(f"    v_mov_b32 v{vXR+r}, v{vX0F+r}")
    a(f"    s_mov_b32 s{sL}, 0")
    a("    s_barrier                                 ; B_p: prefix of layer 0 has landed")
    stamp()

    def xload(i):
        if c.no_x:
            a("    s_nop 0"); return
        seg = sXA if i < 13 else sXB
        ii = i % 13
        a(f"    buffer_load_dwordx4 v[{vXF+4*i}:{vXF+4*i+3}], v{vXO+(ii>>2)}, s[{sWS}:{sWS+3}], s{seg} offen offset:{(ii&3)*1024} sc1")
    def rd(i, which):
        if c.no_w: return
        st = vWF + 8 * (i % nsets)
        if i < P: k, s_, off = vAPK, vAPS, i * 2048
        else: k, s_, off = vASK, vASS, (i - P) * 2048
        if which == "s":
            a(f"    ds_read_b64_tr_b16 v[{st}:{st+1}], v{s_} offset:{off}")
            a(f"    ds_read_b64_tr_b16 v[{st+2}:{st+3}], v{s_} offset:{off+1024}")
        else:
            a(f"    ds_read_b64_tr_b16 v[{st+4}:{st+5}], v{k} offset:{off}")
            a(f"    ds_read_b64_tr_b16 v[{st+6}:{st+7}], v{k} offset:{off+1024}")
    def pref_sched(i):
        if c.presched == "spread":
            t = i - (26 - P)
            return [t] if 0 <= t < P else []
        k = i - (26 - D)
        if k < 0: return []
        per_ = -(-P // D)
        return [t for t in range(k * per_, min(P, (k + 1) * per_))]
    def kloop(first):
        ops = []
        if first:
            for i in range(PF):
                rd(i, "s"); rd(i, "k")
        else:
            xload(0); ops.append(("x", 0))
            rd(0, "s"); rd(0, "k")
            xload(1); ops.append(("x", 1))
            rd(1, "s"); rd(1, "k")
            nrest = D - 2
            cuts = [8 * k // nrest for k in range(nrest + 1)]
            for k in range(nrest):
                bias_unpack(cuts[k], cuts[k + 1])
                xload(2 + k); ops.append(("x", 2 + k))
        bars = [P, 13, 20] if first else [P]
        assert P < 13
        marks = [0, 1, 2, 4, 8, 12, 16, 20, 25]
        for i in range(26):
            a(f"    ; ---- step {i}")
            if TS == 4 and not first and i in marks:
                a(f"    s_memtime s[{80 + 2*marks.index(i)}:{81 + 2*marks.index(i)}]")
            young = sum(4 for t in range(i + 1, min(i + PF - 1, 25) + 1))
            if first:
                a(f"    s_waitcnt lgkmcnt({young})")
            else:
                nv = len(ops) - 1 - ops.index(("x", i))
                a(f"    s_waitcnt vmcnt({nv}) lgkmcnt({young})")
            st = vWF + 8 * (i % nsets)
            xf = vXF + 4 * i
            cs = "0" if i == 0 else f"v[{vAS}:{vAS+15}]"
            a(f"    v_mfma_f32_32x32x16_bf16 v[{vAS}:{vAS+15}], v[{st}:{st+3}], v[{xf}:{xf+3}], {cs}")
            if i + PF in bars:
                a("    s_barrier")
            if first and i == c.hello_step and c.hello_by != 'loader':
                a(f"    buffer_load_dwordx2 v[{vPOLL}:{vPOLL+1}], v{vHA}, s[{sWS}:{sWS+3}], 0 offen sc1")
            if not first and i + D < 26:
                xload(i + D); ops.append(("x", i + D))
            if c.pre_by == "loader":
                if i == c.mid_step: a("    s_barrier                                 ; B_mid: the x loads are all issued")
                if i == c.prog_step and c.prog_at == "mid":
                    lab = "L_noprogA" if first else "L_noprogB"
                    a(f"""    s_or_b32 s{sT0}, s{sJ}, s{sWV}
    s_cmp_eq_u32 s{sT0}, 0
    s_cbranch_scc0 {lab}
    v_mov_b32 v{vPOL2}, s{sTA}
    v_mov_b32 v{vPOL2+1}, s{sTA+1}
    s_add_u32 s{sT0}, s{sCB}, 3072
    buffer_store_dwordx2 v[{vPOL2}:{vPOL2+1}], off, s[{sWS}:{sWS+3}], s{sT0}
{lab}:""")
            else:
                for t in ([] if c.no_pre else pref_sched(i)):
                    a(f"    s_add_u32 m0, s{sMP}, {t*2048}")
                    a(f"    s_add_u32 s{sT0}, s{sWP}, {t*26624}")
                    a(f"    buffer_load_dwordx4 v{vDMA}, s[{sW}:{sW+3}], s{sT0} offen lds")
                    ops.append(("w", t))
            if i + PF < 26: rd(i + PF, "s")
            a(f"    v_mfma_f32_32x32x16_bf16 v[{vAK}:{vAK+15}], v[{st+4}:{st+7}], v[{xf}:{xf+3}], v[{vAK}:{vAK+15}]")
            if i + PF < 26: rd(i + PF, "k")
        return len([o for o in ops if o[0] == "w"])
    npre = kloop(True)
    if c.hello_by == "loader":
        a(f"""    v_mov_b32 v{vT0}, {MODEW}
    ds_read_b32 v{vT1}, v{vT0}
    s_waitcnt lgkmcnt(0)
    v_readfirstlane_b32 s{sMODE}, v{vT1}""")
        a(f"""
    s_cmp_eq_u32 s{sMODE}, 0
    s_cbranch_scc1 L_hello_slow
    s_and_b32 s{sMODE}, s{sMODE}, {0 if c.force_slow else 1}
    s_branch L_tail
L_hello_slow:
    buffer_load_dwordx2 v[{vPOLL}:{vPOLL+1}], v{vHA}, s[{sWS}:{sWS+3}], 0 offen sc1""")
    a(f"""
    s_add_u32 s{sT0}, s{sE}, 8
    s_addc_u32 s{sT1}, s{sE+1}, 0
    s_mov_b32 s{sSPIN}, 0
    s_waitcnt vmcnt({0 if c.hello_by == "loader" else npre})
    s_and_b32 s{sT2}, s{sT1}, 0x0fffffff
    s_lshl_b32 s{sT3}, s{sXCC}, 28
    s_xor_b32 s{sT3}, s{sT1}, s{sT3}
L_hello:
    v_and_b32 v{vT0}, 0x0fffffff, v{vPOLL+1}
    v_cmp_eq_u32 vcc, s{sT0}, v{vPOLL}
    v_cmp_eq_u32 s[{sMK}:{sMK+1}], s{sT2}, v{vT0}
    s_and_b64 vcc, vcc, s[{sMK}:{sMK+1}]
    s_cmp_eq_u64 vcc, -1
    s_cbranch_scc1 L_hello_ok
    s_add_u32 s{sSPIN}, s{sSPIN}, 1
    s_cmp_gt_u32 s{sSPIN}, {c.spin_max}
    s_cbranch_scc1 L_end
    buffer_load_dwordx2 v[{vPOLL}:{vPOLL+1}], v{vHA}, s[{sWS}:{sWS+3}], 0 offen sc1
    s_waitcnt vmcnt(0)
    s_branch L_hello
L_hello_ok:
    v_cmp_eq_u32 vcc, s{sT3}, v{vPOLL+1}
    s_cmp_eq_u64 vcc, -1
    s_cselect_b32 s{sMODE}, {0 if c.force_slow else 1}, 0
    s_branch L_tail
""")
    assert sT1 == sT0 + 1 and sT0 % 2 == 0
    a("L_layer:")
    stamp(1)
    a("    s_barrier                                 ; B_a")
    stamp()
    kloop(False)
    if TS == 4:
        a("    s_memtime s[98:99]")
        a("    s_waitcnt lgkmcnt(0)")
        for k in range(10):
            a(f"    s_mov_b32 m0, s{sTSI}")
            a(f"    s_nop 0")
            a(f"    v_writelane_b32 v{vTS}, s{80+2*k}, m0")
            a(f"    s_add_u32 s{sTSI}, s{sTSI}, 1")
    a("L_tail:")
    if TS in (2, 3):
        a("    s_nop 15")
        stamp()
    a(f"    v_mov_b32 v{vFV}, s{sTA}")
    a(f"    v_mov_b32 v{vFV+1}, s{sTA+1}")
    a("    s_nop 8")
    for q in range(4):
        a(f"    ds_write_b128 v{vRW}, v[{vAS+4*q}:{vAS+4*q+3}] offset:{q*1024}")
    a("    s_waitcnt lgkmcnt(0)")
    a("    s_barrier                                 ; B2")
    stamp(3)
    for q in range(4):
        a(f"    ds_read_b128 v[{vPART+4*q}:{vPART+4*q+3}], v{vRR} offset:{q*1024}")
    def epi(q):
        a(f"    s_waitcnt lgkmcnt({3-q})")
        for p in range(2):
            r = 4 * q + 2 * p
            a(f"    v_pk_add_f32 v[{vAK+r}:{vAK+r+1}], v[{vAK+r}:{vAK+r+1}], v[{vPART+r}:{vPART+r+1}]")
        for p in range(2):
            r = 4 * q + 2 * p
            a(f"    v_pk_fma_f32 v[{vAK+r}:{vAK+r+1}], v[{vX0F+r}:{vX0F+r+1}], v[{vAK+r}:{vAK+r+1}], v[{vXR+r}:{vXR+r+1}]")
        for p in range(2):
            r = 4 * q + 2 * p
            a(f"    v_cvt_pk_bf16_f32 v{vP+2*q+p}, v{vAK+r}, v{vAK+r+1}")
    a(f"""
    s_cmp_eq_u32 s{sL}, 5
    s_cbranch_scc1 L_final
    s_cmp_eq_u32 s{sMODE}, 0
    s_cbranch_scc1 L_st_slow
""")
    epi(0); epi(1)
    a(f"    buffer_store_dwordx4 v[{vP}:{vP+3}], v{vXO}, s[{sWS}:{sWS+3}], s{sXST} offen")
    epi(2); epi(3)
    a(f"    buffer_store_dwordx4 v[{vP+4}:{vP+7}], v{vXO}, s[{sWS}:{sWS+3}], s{sXST} offen offset:1024")
    if c.phased: a("    s_barrier                                 ; B_s")
    stamp(3)
    def unpack_res():
        for d in range(8):
            a(f"    v_lshlrev_b32 v{vXR+2*d}, 16, v{vP+d}")
            a(f"    v_and_b32 v{vXR+2*d+1}, 0xffff0000, v{vP+d}")
    bias_load()
    unpack_res()
    a(f"""
    s_waitcnt vmcnt(0)
    buffer_store_dwordx2 v[{vFV}:{vFV+1}], off, s[{sWS}:{sWS+3}], s{sOWNF}
    s_branch L_st_done
L_st_slow:
""")
    epi(0); epi(1); epi(2); epi(3)
    a(f"""
    buffer_store_dwordx4 v[{vP}:{vP+3}], v{vXO}, s[{sWS}:{sWS+3}], s{sXST} offen sc1
    buffer_store_dwordx4 v[{vP+4}:{vP+7}], v{vXO}, s[{sWS}:{sWS+3}], s{sXST} offen offset:1024 sc1
""")
    if c.phased: a("    s_barrier                                 ; B_s")
    stamp(3)
    bias_load()
    unpack_res()
    a(f"""
    s_waitcnt vmcnt(0)
    buffer_store_dwordx2 v[{vFV}:{vFV+1}], off, s[{sWS}:{sWS+3}], s{sOWNF} sc1
L_st_done:
""")
    stamp()
    if c.onepoll:
        a(f"""
    s_cmp_eq_u32 s{sWV}, 0
    s_cbranch_scc0 L_nopoll1""")
    a(f"""
    buffer_load_dwordx2 v[{vPOLL}:{vPOLL+1}], v{vFA}, s[{sWS}:{sWS+3}], 0 offen sc1
L_nopoll1:
    {"s_barrier                                 ; B_f" if c.phased else ""}
""")
    def progress(lab):
        a(f"""    s_or_b32 s{sT0}, s{sJ}, s{sWV}
    s_cmp_eq_u32 s{sT0}, 0
    s_cbranch_scc0 {lab}
    s_add_u32 s{sT0}, s{sCB}, 3072
    buffer_store_dwordx2 v[{vFV}:{vFV+1}], off, s[{sWS}:{sWS+3}], s{sT0}
{lab}:""")
    if c.prog_at == "end": progress("L_noprog")
    a(f"""
    s_add_u32 s{sL}, s{sL}, 1
    s_cmp_eq_u32 s{sL}, 1
    s_cbranch_scc1 L_keep_xa
    s_add_u32 s{sXA}, s{sXA}, s{sXD}
    s_add_u32 s{sXB}, s{sXB}, s{sXD}
    s_sub_u32 s{sXD}, 0, s{sXD}
L_keep_xa:
    s_add_u32 s{sXST}, s{sXST}, s{sXD2}
    s_sub_u32 s{sXD2}, 0, s{sXD2}
    s_add_u32 s{sWP}, s{sWP}, {c.wstride}
    s_sub_u32 s{sMP}, s{sMP}, s{sPD}
    v_add_u32 v{vAPK}, s{sPD}, v{vAPK}
    v_add_u32 v{vAPS}, s{sPD}, v{vAPS}
    s_sub_u32 s{sPD}, 0, s{sPD}
    s_mov_b32 s{sSPIN}, 0
""")
    a("    s_waitcnt lgkmcnt(0)")
    bias_spread()
    if c.onepoll:
        a(f"""
    s_cmp_eq_u32 s{sWV}, 0
    s_cbranch_scc0 L_ready""")
    if c.poll2:
        a(f"""L_poll:
    buffer_load_dwordx2 v[{vPOL2}:{vPOL2+1}], v{vFA}, s[{sWS}:{sWS+3}], 0 offen sc1
    s_waitcnt vmcnt(1)
    v_cmp_eq_u64 vcc, s[{sTA}:{sTA+1}], v[{vPOLL}:{vPOLL+1}]
    v_cmp_eq_u64 s[{sMK}:{sMK+1}], s[{sTB}:{sTB+1}], v[{vPOLL}:{vPOLL+1}]
    s_or_b64 vcc, vcc, s[{sMK}:{sMK+1}]
    s_cmp_eq_u64 vcc, -1
    s_cbranch_scc1 L_ready
    buffer_load_dwordx2 v[{vPOLL}:{vPOLL+1}], v{vFA}, s[{sWS}:{sWS+3}], 0 offen sc1
    s_waitcnt vmcnt(1)
    v_cmp_eq_u64 vcc, s[{sTA}:{sTA+1}], v[{vPOL2}:{vPOL2+1}]
    v_cmp_eq_u64 s[{sMK}:{sMK+1}], s[{sTB}:{sTB+1}], v[{vPOL2}:{vPOL2+1}]
    s_or_b64 vcc, vcc, s[{sMK}:{sMK+1}]
    s_cmp_eq_u64 vcc, -1
    s_cbranch_scc1 L_ready
    s_add_u32 s{sSPIN}, s{sSPIN}, 1
    s_cmp_gt_u32 s{sSPIN}, {c.spin_max}
    s_cbranch_scc0 L_poll
    s_endpgm
""")
    else:
        a(f"""L_poll:
    s_waitcnt vmcnt(0)
    v_cmp_eq_u64 vcc, s[{sTA}:{sTA+1}], v[{vPOLL}:{vPOLL+1}]
    v_cmp_eq_u64 s[{sMK}:{sMK+1}], s[{sTB}:{sTB+1}], v[{vPOLL}:{vPOLL+1}]
    s_or_b64 vcc, vcc, s[{sMK}:{sMK+1}]
    s_cmp_eq_u64 vcc, -1
    s_cbranch_scc1 L_ready
    buffer_load_dwordx2 v[{vPOLL}:{vPOLL+1}], v{vFA}, s[{sWS}:{sWS+3}], 0 offen sc1
    s_add_u32 s{sSPIN}, s{sSPIN}, 1
    s_cmp_gt_u32 s{sSPIN}, {c.spin_max}
    s_cbranch_scc0 L_poll
    s_endpgm
""")
    a(f"""L_ready:
    s_add_u32 s{sTA}, s{sTA}, 1
    s_addc_u32 s{sTA+1}, s{sTA+1}, 0
    s_add_u32 s{sTB}, s{sTB}, 1
    s_addc_u32 s{sTB+1}, s{sTB+1}, 0
    s_branch L_layer
L_final:
""")
    epi(0); epi(1); epi(2); epi(3)
    a(f"""
    s_nop 1
    v_permlane32_swap_b32 v{vP}, v{vP+2}
    v_permlane32_swap_b32 v{vP+1}, v{vP+3}
    v_permlane32_swap_b32 v{vP+4}, v{vP+6}
    v_permlane32_swap_b32 v{vP+5}, v{vP+7}
    buffer_store_dwordx4 v[{vP}:{vP+3}], v{vOUT}, s[{sOUT}:{sOUT+3}], 0 offen
    buffer_store_dwordx4 v[{vP+4}:{vP+7}], v{vOUT}, s[{sOUT}:{sOUT+3}], 0 offen offset:32
    s_or_b32 s{sT0}, s{sJ}, s{sWV}
    s_cmp_eq_u32 s{sT0}, 0
    s_cbranch_scc0 L_noepoch
    s_add_u32 s{sT0}, s{sE}, 16
    s_addc_u32 s{sT1}, s{sE+1}, 0
    v_mov_b32 v{vFV}, s{sT0}
    v_mov_b32 v{vFV+1}, s{sT1}
    s_mov_b64 exec, 1
    buffer_store_dwordx2 v[{vFV}:{vFV+1}], off, s[{sWS}:{sWS+3}], s{sCB} sc1
    s_mov_b64 exec, -1
L_noepoch:
""")
    if c.exp_delay or c.exp_rt:
        ins = "s_memtime" if c.exp_delay else "s_memrealtime"
        a(f"""
    {ins} s[80:81]
    s_waitcnt lgkmcnt(0)
L_expd:
    {ins} s[82:83]
    s_waitcnt lgkmcnt(0)
    s_sub_u32 s82, s82, s80
    s_cmp_lt_u32 s82, {c.exp_delay or c.exp_rt}
    s_cbranch_scc1 L_expd
""")
    stamp(1); dump_ts()
    a("    s_endpgm")

    if c.helpers:
        HPR = (c.SV * 16 + (2 * NSR if c.sp else 0)) if c.hp is None else c.hp * 16
        HP = HPR // 16
        nrow = 208 - HPR
        nline = nrow * 13
        tot = 4 * nline
        nins = (tot + 63) // 64
        cdelta = HPR * ROWB
        NK = -(-nins // 48)
        HF = 1 if ((c.h0 == 'prefix' or c.w0assist) and c.hfirst == 0) else c.hfirst
        a(f"""
L_helper:
""")
        if c.probe:
            a(f"""
    s_cmp_eq_u32 s2, 208
    s_cbranch_scc0 L_noprobe
    s_cmp_eq_u32 s{sWV}, 0
    s_cbranch_scc0 L_noprobe
    s_mov_b32 s20, {c.probe_off + 16384}
    buffer_load_dword v30, off, s[{sW}:{sW+3}], s20
    s_waitcnt vmcnt(0)
    s_mov_b32 s20, {c.probe_off}
    s_memtime s[22:23]
    s_waitcnt lgkmcnt(0)
    buffer_load_dword v30, off, s[{sW}:{sW+3}], s20
    s_waitcnt vmcnt(0)
    s_memtime s[24:25]
    s_waitcnt lgkmcnt(0)
    s_sub_u32 s24, s24, s22
    s_mul_i32 s24, s24, {c.probe}
L_pspin:
    s_memtime s[26:27]
    s_waitcnt lgkmcnt(0)
    s_sub_u32 s26, s26, s22
    s_cmp_lt_u32 s26, s24
    s_cbranch_scc1 L_pspin
    s_endpgm
L_noprobe:""")
        a(f"""
    ; L2 prefetch for the workers of this die (placement assumed for speed only): one dword per 128-byte line
    s_sub_u32 s{sT0}, s2, 208
    s_and_b32 s{sT1}, s{sT0}, 7
    s_lshr_b32 s{sT0}, s{sT0}, 3
    s_lshl_b32 s{sT0}, s{sT0}, 3
    s_add_u32 s{sT0}, s{sT0}, s{sWV}          ; g = 0..47
    s_lshl_b32 s{sCB}, s{sT1}, 13
    s_add_u32 s{sCB}, s{sCB}, {CTRL}
    s_load_dwordx2 s[{sE}:{sE+1}], s[50:51], s{sCB}
    s_add_u32 s{sOWNF}, s{sCB}, 3072
""")
        if c.tlbwarm:
            a(f"""
    s_cmp_eq_u32 s{sWV}, 7
    s_cbranch_scc0 L_notlb
""")
            k_ = 0
            for base, offs in ((46, [0, XLAYER - 64]), (50, [0, XBUF - 64, XBUF + (1 << 20), 2 * XBUF - 64, 2 * XBUF + 65536 - 64]),
                               (42, [1 << 21, 2 << 21, 3 << 21, L_ * WLAYER - 64])):
                for off in offs:
                    a(f"""    s_add_u32 s24, s{base}, {off}
    s_addc_u32 s25, s{base+1}, 0
    s_load_dword s{76+k_}, s[24:25], 0""")
                    k_ += 1
            a("L_notlb:")
        a(f"""
    ; exchange-buffer lines of the die's two row blocks: {2*XRB//128} lines
    s_mul_i32 s{sG}, s{sT1}, {2*XRB}
    s_lshl_b32 s{sI}, s{sT0}, 13
    s_add_u32 s{sG}, s{sG}, s{sI}
    v_lshlrev_b32 v19, 7, v{vL}
    v_add_u32 v19, s{sG}, v19
    s_cmp_lt_u32 s{sT0}, {-(-2*XRB // 8192)}
    s_cselect_b32 s{sM}, 1, 0
""")
        def lane_addr(vdst, nline_, base0, delta):
            tot_ = 4 * nline_
            a(f"""
    s_lshl_b32 s{sI}, s{sI}, 6
    v_add_u32 v{vT0}, s{sI}, v{vL}
    v_mov_b32 v{vT1}, {base0}
    v_cmp_le_u32 vcc, {nline_}, v{vT0}
    v_mov_b32 v{vT2}, 0
    v_mov_b32 v{vT3}, {delta}
    v_cndmask_b32 v{vT2}, v{vT2}, v{vT3}, vcc
    v_add_u32 v{vT1}, v{vT1}, v{vT2}
    v_cmp_le_u32 vcc, {2*nline_}, v{vT0}
    v_mov_b32 v{vT2}, 0
    s_nop 0
    v_cndmask_b32 v{vT2}, v{vT2}, v{vT3}, vcc
    v_add_u32 v{vT1}, v{vT1}, v{vT2}
    v_cmp_le_u32 vcc, {3*nline_}, v{vT0}
    v_mov_b32 v{vT2}, 0
    s_nop 0
    v_cndmask_b32 v{vT2}, v{vT2}, v{vT3}, vcc
    v_add_u32 v{vT1}, v{vT1}, v{vT2}
    v_lshl_add_u32 v{vdst}, v{vT0}, 7, v{vT1}
    v_cmp_le_u32 vcc, {tot_}, v{vT0}
    v_mov_b32 v{vT2}, 0x7ffffff0
    s_nop 0
    v_cndmask_b32 v{vdst}, v{vdst}, v{vT2}, vcc""")
        def need_set(vbase, skip_rows, nrows):
            tot_ = nrows * 52
            nins_ = (tot_ + 63) // 64
            nk = -(-nins_ // 48)
            for k in range(nk):
                a(f"""
    s_add_u32 s{sI}, s{sT0}, {48*k}
    s_lshl_b32 s{sI}, s{sI}, 6
    v_add_u32 v{vT0}, s{sI}, v{vL}
    v_mul_u32_u24 v{vT1}, 80660, v{vT0}
    v_lshrrev_b32 v{vT1}, 22, v{vT1}
    v_mul_u32_u24 v{vT2}, 52, v{vT1}
    v_sub_u32 v{vT2}, v{vT0}, v{vT2}          ; rem
    v_mul_u32_u24 v{vT3}, 5042, v{vT2}
    v_lshrrev_b32 v{vT3}, 16, v{vT3}
    v_mul_u32_u24 v{vbase+k}, 13, v{vT3}
    v_sub_u32 v{vT2}, v{vT2}, v{vbase+k}
    v_mul_u32_u24 v{vT3}, 208, v{vT3}
    v_add_u32 v{vT1}, v{vT1}, v{vT3}
    v_add_u32 v{vT1}, {skip_rows}, v{vT1}     ; row
    v_mul_u32_u24 v{vT1}, {ROWB}, v{vT1}
    v_lshl_add_u32 v{vbase+k}, v{vT2}, 7, v{vT1}
    v_cmp_le_u32 vcc, {tot_}, v{vT0}
    v_mov_b32 v{vT2}, 0x7ffffff0
    s_nop 0
    v_cndmask_b32 v{vbase+k}, v{vbase+k}, v{vT2}, vcc""")
            return nk
        def addr_set(vbase, nline_, base0, delta, tag):
            tot_ = 4 * nline_
            nins_ = (tot_ + 63) // 64
            nk = -(-nins_ // 48)
            a(f"    s_mul_i32 s{sT2}, s{sT1}, {nins_ // 8}")
            for k in range(nk):
                a(f"""
    s_add_u32 s{sT3}, s{sT0}, {48*k}
    s_add_u32 s{sI}, s{sT3}, s{sT2}
    s_cmp_ge_u32 s{sI}, {nins_}
    s_cselect_b32 s{sG}, {nins_}, 0
    s_sub_u32 s{sI}, s{sI}, s{sG}
    s_cmp_ge_u32 s{sT3}, {nins_}
    s_cselect_b32 s{sI}, {nins_ + 8}, s{sI}   ; no k-th instruction -> past the end""")
                lane_addr(vbase + k, nline_, base0, delta)
            return nk
        NK0 = 0
        if c.w0assist and c.hfirst == 0:
            skip0 = P * 16 + 60
            NK0 = addr_set(40, (208 - skip0) * 13, skip0 * ROWB, skip0 * ROWB, "p")
            for k in range(NK0):
                a(f"    buffer_load_dword v{50+k}, v{40+k}, s[{sW}:{sW+3}], 0 offen")
        elif c.h0 == "prefix" and c.hfirst == 0:
            NK0 = addr_set(40, HP * 16 * 13, 0, (13 - HP) * 26624, "p")
            for k in range(NK0):
                a(f"    buffer_load_dword v{50+k}, v{40+k}, s[{sW}:{sW+3}], 0 offen")
        if c.horder == "need": need_set(10, HPR, nrow)
        else: addr_set(10, nline, cdelta, cdelta, "h")
        nshare_l = tot // 8
        NW_ = 14
        if c.hwarm:
            a(f"""
    s_mul_i32 s{sI}, s{sT1}, {nshare_l}
    s_mul_i32 s{sG}, s{sT0}, {NW_}
    s_add_u32 s{sI}, s{sI}, s{sG}
    s_mov_b32 s{sG}, {cdelta}
    s_cmp_ge_u32 s{sI}, {nline}
    s_cselect_b32 s{sT3}, {cdelta}, 0
    s_add_u32 s{sG}, s{sG}, s{sT3}
    s_cmp_ge_u32 s{sI}, {2*nline}
    s_cselect_b32 s{sT3}, {cdelta}, 0
    s_add_u32 s{sG}, s{sG}, s{sT3}
    s_cmp_ge_u32 s{sI}, {3*nline}
    s_cselect_b32 s{sT3}, {cdelta}, 0
    s_add_u32 s{sG}, s{sG}, s{sT3}
    s_lshl_b32 s{sI}, s{sI}, 7
    s_add_u32 s{sI}, s{sI}, s{sG}
    s_add_u32 s{sI}, s{sI}, {c.wstride}
    s_add_u32 s44, s42, s{sI}                 ; layer 1
    s_addc_u32 s45, s43, 0""")
        if c.hvec_warm:
            a(f"""
    s_cmp_ge_u32 s{sT0}, 22
    s_cselect_b32 s{sG}, 22, 0
    s_cselect_b32 s{sWG}, 1, 0
    s_sub_u32 s{sG}, s{sT0}, s{sG}
    s_lshl_b32 s{sG}, s{sG}, 6
    s_mul_i32 s{sI}, s{sT1}, 1352
    s_add_u32 s{sI}, s{sI}, s{sG}
    v_add_u32 v{vT0}, s{sI}, v{vL}
    v_lshlrev_b32 v18, 7, v{vT0}
    v_add_u32 v{vT1}, s{sG}, v{vL}
    v_cmp_le_u32 vcc, 1352, v{vT1}
    v_mov_b32 v{vT2}, 0x7ffffff0
    s_nop 0
    v_cndmask_b32 v18, v18, v{vT2}, vcc""")
        nv_l = c.SV * 16 * 52 // 8
        if c.hvwarm:
            a(f"""
    s_mul_i32 s{sI}, s{sT1}, {nv_l}
    s_mul_i32 s{sG}, s{sT0}, 7
    s_min_u32 s{sG}, s{sG}, {nv_l - 7}
    s_add_u32 s{sI}, s{sI}, s{sG}
    s_mov_b32 s{sG}, 0
    s_cmp_ge_u32 s{sI}, {c.SV * 16 * 13}
    s_cselect_b32 s{sT3}, {(208 - c.SV * 16) * ROWB}, 0
    s_add_u32 s{sG}, s{sG}, s{sT3}
    s_cmp_ge_u32 s{sI}, {2 * c.SV * 16 * 13}
    s_cselect_b32 s{sT3}, {(208 - c.SV * 16) * ROWB}, 0
    s_add_u32 s{sG}, s{sG}, s{sT3}
    s_cmp_ge_u32 s{sI}, {3 * c.SV * 16 * 13}
    s_cselect_b32 s{sT3}, {(208 - c.SV * 16) * ROWB}, 0
    s_add_u32 s{sG}, s{sG}, s{sT3}
    s_lshl_b32 s{sI}, s{sI}, 7
    s_add_u32 s{sI}, s{sI}, s{sG}
    s_add_u32 s{sI}, s{sI}, {c.wstride}
    s_add_u32 s46, s42, s{sI}                 ; layer 1
    s_addc_u32 s47, s43, 0""")
        if NK0 and c.hwarm:
            a("    s_waitcnt lgkmcnt(0)")
            for half in range(2):
                if half: a("    s_waitcnt lgkmcnt(0)")
                for n_ in range(7 * half, 7 * half + 7):
                    a(f"    s_load_dwordx2 s[{76+2*(n_%7)}:{77+2*(n_%7)}], s[44:45], {n_*128 + 60}")
            a(f"    s_add_u32 s44, s44, {c.wstride}")
            a(f"    s_addc_u32 s45, s45, 0")
        if NK0:
            a(f"""
    s_waitcnt vmcnt(0)
    s_barrier
    s_cmp_eq_u32 s{sM}, 1
    s_cbranch_scc0 L_hx1
    s_mov_b32 s{sI}, {XBUF}
    buffer_load_dword v30, v19, s[{sWS}:{sWS+3}], s{sI} offen sc1
L_hx1:
""")
        a(f"""
    v_mov_b32 v20, 0
    s_mov_b32 s{sL}, {HF}
    s_mov_b32 s{sT3}, {HF * c.wstride}
    s_waitcnt lgkmcnt(0)
L_h_layer:
""")
        if c.hpace:
            a(f"""
    ; before layer m wait (bounded) until the workers have finished layer m-{c.hlook}
    s_cmp_lt_u32 s{sL}, {c.hlook}
    s_cbranch_scc1 L_h_go
    s_cmp_eq_u32 s{sWV}, 0
    s_cbranch_scc0 L_h_bar
    s_mov_b32 s{sSPIN}, 0
L_h_poll:
    buffer_load_dwordx2 v[16:17], v20, s[{sWS}:{sWS+3}], s{sOWNF} offen sc1
    s_waitcnt vmcnt(0)
    v_readfirstlane_b32 s{sTA}, v16
    v_readfirstlane_b32 s{sTA+1}, v17
    s_sub_u32 s{sTA}, s{sTA}, s{sE}
    s_subb_u32 s{sTA+1}, s{sTA+1}, s{sE+1}
    s_cmp_eq_u32 s{sTA+1}, 0
    s_cselect_b32 s{sTA}, s{sTA}, 0
    s_cmp_gt_u32 s{sTA}, 6
    s_cselect_b32 s{sTA}, 0, s{sTA}
    s_add_u32 s{sTA}, s{sTA}, {c.hlook - 1}
    s_cmp_ge_u32 s{sTA}, s{sL}
    s_cbranch_scc1 L_h_bar
    s_add_u32 s{sSPIN}, s{sSPIN}, 1
    s_cmp_lt_u32 s{sSPIN}, 32
    s_cbranch_scc1 L_h_poll
L_h_bar:
    s_barrier
L_h_go:
""")
        def hw_batch(k, lab):
            if not c.hwarm: return
            a(f"    s_cmp_lt_u32 s{sL}, 5")
            a(f"    s_cbranch_scc0 {lab}")
            if not c.hw0:
                a(f"    s_cmp_eq_u32 s{sL}, 0")
                a(f"    s_cbranch_scc1 {lab}")
            a("    s_waitcnt lgkmcnt(0)")
            for n_ in range(7 * k, 7 * k + 7):
                a(f"    s_load_dwordx2 s[{76+2*(n_%7)}:{77+2*(n_%7)}], s[44:45], {n_*128 + 60}")
            a(f"{lab}:")
        def vec_warm(lab):
            A_ = c.hvw_ahead
            a(f"    s_cmp_eq_u32 s{sWG}, 1")
            a(f"    s_cbranch_scc1 {lab}_b")
            a(f"    s_add_u32 s{sI}, s{sL}, {A_}")
            a(f"    s_cmp_le_u32 s{sI}, 5")
            a(f"    s_cbranch_scc0 {lab}")
            if c.wwarm:
                a(f"    s_cmp_gt_u32 s{sI}, {c.wwarm}")
                a(f"    s_cbranch_scc0 {lab}")
            a(f"    s_add_u32 s{sI}, s{sT3}, {A_ * c.wstride}")
            a(f"    buffer_load_dword v29, v18, s[{sW}:{sW+3}], s{sI} offen")
            a(f"    s_branch {lab}")
            a(f"{lab}_b:")
            if A_ == 2 and c.wwarm < 1:
                a(f"    s_cmp_eq_u32 s{sL}, {HF}")
                a(f"    s_cbranch_scc0 {lab}")
                a(f"    s_add_u32 s{sI}, s{sT3}, {c.wstride}")
                a(f"    buffer_load_dword v29, v18, s[{sW}:{sW+3}], s{sI} offen")
            a(f"{lab}:")
        if c.hvec_warm and c.hvw_pos == "before": vec_warm("L_hvw")
        for k in range(NK):
            a(f"    buffer_load_dword v{31+k}, v{10+k}, s[{sW}:{sW+3}], s{sT3} offen")
            if k < 2: hw_batch(k, f"L_hw{k}")
            a(f"    s_waitcnt vmcnt({c.hdepth})")
            a(f"    s_barrier")
        if c.hvec_warm and c.hvw_pos == "after": vec_warm("L_hvw")
        if c.hvwarm:
            a(f"    s_cmp_lt_u32 s{sL}, 5")
            a(f"    s_cbranch_scc0 L_hnv")
            a("    s_waitcnt lgkmcnt(0)")
            for n_ in range(7):
                a(f"    s_load_dwordx2 s[{76+2*n_}:{77+2*n_}], s[46:47], {n_*128 + 60}")
            a(f"    s_add_u32 s46, s46, {c.wstride}")
            a(f"    s_addc_u32 s47, s47, 0")
            a("L_hnv:")
        if c.hwarm:
            a(f"    s_add_u32 s44, s44, {c.wstride}")
            a(f"    s_addc_u32 s45, s45, 0")
        if c.xt_by != 'worker':
            a(f"""
    s_sub_u32 s{sI}, s{sL}, {HF}
    s_add_u32 s{sI}, s{sI}, {1 if HF != c.hfirst else 0}
    s_cmp_lt_u32 s{sI}, 2
    s_cbranch_scc0 L_hx0
    s_cmp_eq_u32 s{sM}, 1
    s_cbranch_scc0 L_hx0
    s_cmp_eq_u32 s{sI}, 0
    s_cselect_b32 s{sI}, {XBUF}, 0
    buffer_load_dword v30, v19, s[{sWS}:{sWS+3}], s{sI} offen sc1
L_hx0:
""")
        stamp(1)
        a(f"""
    s_add_u32 s{sL}, s{sL}, 1
    s_add_u32 s{sT3}, s{sT3}, {c.wstride}
    s_cmp_lt_u32 s{sL}, 6
    s_cbranch_scc1 L_h_layer
""")
        a("    s_waitcnt vmcnt(0)")
        stamp(1)
        dump_ts()
    a("L_end:")
    a("    s_endpgm")
    kernel_desc(a, KNAME, NV, sgpr=102, accum=NV)
    txt = a.text().rstrip()
    if txt.endswith(".text"):
        txt = txt[:-5]
    return txt

if __name__ == "__main__":
    import json
    kw = json.loads(sys.argv[2]) if len(sys.argv) > 2 else {}
    open(sys.argv[1], "w").write(gen(**kw))
```

```python
import sys, os
from asmlib import *

KNAME = "standalone__dcn_v2_cross__recsys_kernel"
B_, DIN, L_ = 1024, 832, 6
ROWB = DIN * 2
WLAYER = DIN * DIN * 2
XLAYER = B_ * DIN * 2
XMH = 32 * ROWB
XRB = 2 * XMH
XBUF = 16 * XRB
CTRL = 2 * XBUF
TSOFF = CTRL + 16 * 4096
WS_BYTES = TSOFF + 256 * 8 * 256

class Cfg:
    def __init__(self, **kw):
        self.P = 6
        self.D = 5
        self.PF = 2
        self.SV = 3
        self.SB = 7
        self.ssched = 'two'
        self.NS = 3
        self.sp = True
        self.hp = None
        self.helpers = True
        self.hfirst = 0
        self.hlook = 2
        self.hpace = True
        self.hdepth = 1
        self.lthr = 0
        self.lthr_all = True
        self.sD_late = True
        self.ts = 0
        self.force_slow = False
        self.scramble = False
        self.spin_max = 1 << 20
        self.wstride = WLAYER
        self.prio = 2
        self.hello_step = 19
        self.hwb = False
        self.probe = 0
        self.probe_off = 5 * WLAYER + 700 * ROWB
        self.codepf = True
        self.wwarm = 0
        self.xt_by = 'worker'
        self.hvec_warm = True
        self.hvw_ahead = 2
        self.hvw_pos = 'after'
        self.tlbwarm = True
        self.l0b1 = False
        self.hvwarm = False
        self.hw0 = False
        self.hello_by = 'compute'
        self.pre_first = False
        self.swarm = False
        self.horder = 'linear'
        self.hwarm = False
        self.prog_step = 22
        self.prog_at = 'end'
        self.vwarm = False
        self.pre_by = 'loader'
        self.mid_step = 21
        self.presched = 'pack'
        self.h0 = 'middle'
        self.xtouch = False
        self.w0assist = False
        self.bias_by = 'loader'
        self.exp_delay = 0
        self.exp_rt = 0
        self.poll2 = True
        self.phased = True
        self.n1 = 4
        self.n2 = 4
        self.onepoll = True
        self.no_suf = self.no_pre = self.no_x = self.no_w = False
        self.__dict__.update(kw)

def gen(cfg=None, **kw):
    c = cfg or Cfg(**kw)
    P, D, PF = c.P, c.D, c.PF
    TS = int(c.ts)
    assert P <= 12 and PF <= P and D >= PF + 1
    KHS = (26 - P) * 2048
    PRE0 = 0
    SUF = 2 * P * 2048
    PRE1 = SUF + 2 * KHS
    PREPAR = PRE1 - PRE0
    RED = PRE1 + 2 * P * 2048
    BIAS = RED + 16384
    MODEW = BIAS
    LDS_BYTES = BIAS + 64
    XS = SUF
    assert XS + 4 * 28672 <= BIAS and LDS_BYTES <= 163840
    sW, sWS, sX0, sOUT, sBS = 4, 8, 12, 16, 24
    sRB, sJ, sG2, sWV, sMH, sKH, sL, sXCC, sMODE = 28, 29, 30, 31, 32, 33, 34, 35, 36
    sXA, sXB, sXST = 37, 38, 39
    sWP, sMP, sPD = 52, 53, 54
    sU, sOWNF, sXD2 = 55, 56, 57
    sT0, sT1, sT2, sT3 = 58, 59, 60, 61
    sSPIN, sROT = 62, 63
    sG, sM, sI = 64, 65, 66
    sTSI, sTM = 67, 68
    sXD, sCB = 70, 71
    sE, sTA, sTB, sMK = 72, 74, 76, 78
    sBP_ = 48
    sWG = 30
    vL = 0
    vT0, vT1, vT2, vT3 = 1, 2, 3, 4
    vDUM = 5
    vXO = 6
    vAPK, vAPS, vASK, vASS = 10, 11, 12, 13
    vDMA, vFA = 14, 15
    vPOLL = 16
    vRW, vRR, vBA, vTS = 20, 21, 22, 23
    vP = 24
    vAK, vAS, vPART, vX0F, vXR = 32, 48, 64, 80, 96
    vWF = 112
    vXF = 136
    vBP = 240
    vOUT, vHA, vFV, vDMA0 = 248, 249, 250, 252
    vPOL2 = 254
    NV = 256
    nsets = PF + 1
    assert nsets * 8 <= 24

    a = Asm()
    a("; Fused DCN-v2 cross network: 6 layers of x = x0 * (x @ W[l] + b[l]) + x, 1024 x 832, bf16 in/out, f32 accumulate.")
    a("; 208 worker workgroups = 16 row blocks (64 rows) x 13 column slices (64 columns); waves 0-3 MFMA, waves 4-7 W loaders;")
    a(f"; @launch grid=({256 if c.helpers else 208},1,1) block=(512,1,1) lds={LDS_BYTES}")
    a('.amdgcn_target "amdgcn-amd-amdhsa--gfx950"')
    a(".text")
    kernel_begin(a, KNAME)
    if TS == 5:
        a("    s_memrealtime s[26:27]")
        a("    s_memtime s[100:101]")

    def stamp(level=2):
        if not TS or TS < level or (TS == 4 and level > 1) or TS == 5: return
        a(f"    s_memtime s[{sTM}:{sTM+1}]")
        a(f"    s_waitcnt lgkmcnt(0)")
        a(f"    s_mov_b32 m0, s{sTSI}")
        a(f"    s_nop 0")
        a(f"    v_writelane_b32 v{vTS}, s{sTM}, m0")
        a(f"    s_add_u32 s{sTSI}, s{sTSI}, 1")
    def dump_ts():
        if not TS: return
        if TS == 5:
            a("    s_memrealtime s[80:81]")
            a("    s_memtime s[82:83]")
            a("    s_waitcnt lgkmcnt(0)")
            a(f"    v_writelane_b32 v{vTS}, s26, 0")
            a(f"    v_writelane_b32 v{vTS}, s80, 1")
            a(f"    v_writelane_b32 v{vTS}, s100, 2")
            a(f"    v_writelane_b32 v{vTS}, s82, 3")
        a(f"""
    s_lshl_b32 s{sT0}, s2, 3
    s_add_u32 s{sT0}, s{sT0}, s{sWV}
    s_lshl_b32 s{sT0}, s{sT0}, 8
    s_add_u32 s{sT0}, s{sT0}, {TSOFF}
    v_lshlrev_b32 v{vT0}, 2, v{vL}
    buffer_store_dword v{vTS}, v{vT0}, s[{sWS}:{sWS+3}], s{sT0} offen
""")
    def srd(dst, src, nbytes):
        a(f"    s_mov_b32 s{dst}, s{src}")
        a(f"    s_and_b32 s{dst+1}, s{src+1}, 0xffff")
        a(f"    s_mov_b32 s{dst+2}, {nbytes}")
        a(f"    s_mov_b32 s{dst+3}, 0x20000")

    a(f"""
    s_cmp_ge_u32 s2, {256 if c.helpers else 208}
    s_cbranch_scc1 L_end
    s_load_dwordx4 s[40:43], s[0:1], 0
    s_load_dwordx4 s[44:47], s[0:1], 16
    s_load_dwordx2 s[50:51], s[0:1], 40
    s_getreg_b32 s{sXCC}, hwreg(HW_REG_XCC_ID, 0, 4)
""")
    if c.scramble:
        a(f"""
    s_mul_hi_u32 s{sRB}, s2, 0x13B13B14
    s_mul_i32 s{sT0}, s{sRB}, 13
    s_sub_u32 s{sJ}, s2, s{sT0}
    s_and_b32 s{sG2}, s{sRB}, 1
    s_mul_i32 s{sROT}, s{sG2}, 13""")
    else:
        a(f"""
    s_and_b32 s{sT0}, s2, 7
    s_lshr_b32 s{sT1}, s2, 3
    s_cmp_ge_u32 s{sT1}, 13
    s_cselect_b32 s{sG2}, 1, 0
    s_mul_i32 s{sROT}, s{sG2}, 13
    s_sub_u32 s{sJ}, s{sT1}, s{sROT}
    s_lshl_b32 s{sRB}, s{sT0}, 1
    s_add_u32 s{sRB}, s{sRB}, s{sG2}""")
    a(f"""
    v_lshrrev_b32 v{vT0}, 6, v0
    v_and_b32 v{vL}, 63, v0
    v_readfirstlane_b32 s{sWV}, v{vT0}
    s_mov_b32 s{sTSI}, 0
    v_mov_b32 v{vTS}, 0
    s_lshl_b32 s{sCB}, s{sRB}, 12
    s_add_u32 s{sCB}, s{sCB}, {CTRL}
    s_and_b32 s{sMH}, s{sWV}, 1
    s_bfe_u32 s{sKH}, s{sWV}, 0x10001
    v_lshrrev_b32 v{vT0}, 3, v{vL}            ; row8
    v_and_b32 v{vT1}, 7, v{vL}
    v_bfe_u32 v{vT2}, v{vL}, 4, 1
    v_lshlrev_b32 v{vT2}, 2, v{vT2}
    v_xor_b32 v{vT1}, v{vT1}, v{vT2}
    v_lshlrev_b32 v{vT1}, 4, v{vT1}
    s_lshl_b32 s{sT0}, s{sJ}, 7
    v_add_u32 v{vT1}, s{sT0}, v{vT1}
    v_mul_u32_u24 v{vT2}, {ROWB}, v{vT0}
    v_add_u32 v{vDMA}, v{vT2}, v{vT1}
    v_and_b32 v{vT2}, 3, v{vT0}
    v_lshrrev_b32 v{vT0}, 2, v{vT0}
    v_lshl_add_u32 v{vT0}, v{vT0}, 3, v{vT2}
    v_mul_u32_u24 v{vT0}, {ROWB}, v{vT0}
    v_add_u32 v{vDMA0}, v{vT0}, v{vT1}
    s_waitcnt lgkmcnt(0)
""")
    srd(sX0, 40, XLAYER)
    srd(sW, 42, L_ * WLAYER)
    srd(sWS, 50, WS_BYTES)
    if c.codepf:
        a(f"""    ; instruction prefetch into L2: wave (id/8)*8 + w reads line number (that index) of this kernel's code
    s_getpc_b64 s[20:21]
L_pc:
    s_lshr_b32 s22, s2, 3
    s_lshl_b32 s22, s22, 3
    s_add_u32 s22, s22, s{sWV}
    s_lshl_b32 s22, s22, 6
    s_min_u32 s22, s22, L_end - L_pc
    s_load_dword s3, s[20:21], s22""")
    stamp(1)
    if c.helpers:
        a(f"""
    s_cmp_ge_u32 s2, 208
    s_cbranch_scc1 L_helper
""")
    a(f"""
    s_cmp_lt_u32 s{sWV}, 4
    s_cbranch_scc1 L_compute
""")
    def bias_dma(sreg, val, lab):
        a(f"    s_cmp_eq_u32 s{sreg}, {val}")
        a(f"    s_cbranch_scc0 {lab}")
        srd(sBS, 44, L_ * ROWB)
        a(f"""    v_lshrrev_b32 v{vT0}, 5, v{vL}
    v_mul_u32_u24 v{vT0}, {ROWB}, v{vT0}
    v_and_b32 v{vT1}, 31, v{vL}
    v_lshlrev_b32 v{vT1}, 2, v{vT1}
    v_add_u32 v{vT0}, v{vT0}, v{vT1}
    s_lshl_b32 s{sT0}, s{sJ}, 7
    v_add_u32 v{vT0}, s{sT0}, v{vT0}""")
        for t in range(3):
            a(f"    s_mov_b32 m0, {BIAS + 256*t}")
            a(f"    s_mov_b32 s{sT1}, {2*t*ROWB}")
            a(f"    buffer_load_dword v{vT0}, s[{sBS}:{sBS+3}], s{sT1} offen lds")
        a(f"{lab}:")
    vS0, vS1 = vXO, vXO + 1
    sSB = 40
    sWP0 = 98
    SB = c.SB
    NSR = (2 if c.ssched == 'two' else 3) * SB
    def sbatch(k, nextlayer=False):
        if not c.sp: return
        b = sSB + 2 if nextlayer else sSB
        for n_ in range(SB):
            a(f"    s_load_dwordx2 s[{76+2*n_}:{77+2*n_}], s[{b}:{b+1}], {(k * SB + n_) * ROWB + 60}")
    a(f"""
    s_sub_u32 s{sU}, s{sWV}, 4
""")
    if c.xtouch:
        a(f"""
    s_cmp_eq_u32 s{sU}, 0
    s_cbranch_scc0 L_notouch
    s_lshl_b32 s{sT0}, s{sRB}, 6
    s_mul_i32 s{sT0}, s{sT0}, {ROWB}
    s_lshl_b32 s{sT1}, s{sJ}, 7
    s_add_u32 s{sT0}, s{sT0}, s{sT1}
    v_mul_u32_u24 v20, {ROWB}, v{vL}
    s_mov_b32 s20, s{sT0}
    buffer_load_dword v{vDUM}, v20, s[{sX0}:{sX0+3}], s20 offen""")
    a(f"""
L_notouch:
""")
    a(f"""
    s_mul_i32 s{sT0}, s{sKH}, 416
    s_lshl_b32 s{sT1}, s{sMH}, 2
    s_add_u32 s{sT1}, s{sT1}, s{sT0}
    s_mul_i32 s{sT1}, s{sT1}, {ROWB}
    v_add_u32 v{vDMA0}, s{sT1}, v{vDMA0}
    s_lshl_b32 s{sT1}, s{sMH}, 3
    s_add_u32 s{sT1}, s{sT1}, s{sT0}
    s_mul_i32 s{sT1}, s{sT1}, {ROWB}
    v_add_u32 v{vDMA}, s{sT1}, v{vDMA}
    v_lshrrev_b32 v{vT0}, 3, v{vL}            ; row8
    v_and_b32 v{vT1}, 7, v{vL}
    v_lshrrev_b32 v{vT2}, 1, v{vT0}
    v_xor_b32 v{vT1}, v{vT1}, v{vT2}          ; c' ^ (row8>>1)
    v_xor_b32 v{vT2}, 4, v{vT1}
    v_mul_u32_u24 v{vT0}, {ROWB}, v{vT0}
    v_lshl_add_u32 v{vS0}, v{vT1}, 4, v{vT0}
    v_lshl_add_u32 v{vS1}, v{vT2}, 4, v{vT0}
    s_lshl_b32 s{sT0}, s{sRB}, 6
    s_lshl_b32 s{sT1}, s{sMH}, 5
    s_add_u32 s{sT0}, s{sT0}, s{sT1}
    s_mul_i32 s{sG}, s{sT0}, {ROWB}
    s_mul_i32 s{sT1}, s{sKH}, {6*128}
    s_add_u32 s{sG}, s{sG}, s{sT1}
    s_mul_i32 s{sM}, s{sU}, 28672
    s_add_u32 s{sM}, s{sM}, {XS}
    s_cmp_ge_u32 s{sJ}, 7
    s_cselect_b32 s{sT3}, 7, 0
    s_sub_u32 s{sT3}, s{sJ}, s{sT3}
    s_mov_b32 s{sI}, 0
L_xs:
    s_lshl_b32 s{sT0}, s{sT3}, 12
    s_add_u32 s{sT0}, s{sT0}, s{sM}
    s_lshl_b32 s{sT1}, s{sT3}, 7
    s_add_u32 s{sT1}, s{sT1}, s{sG}
""")
    for rg in range(4):
        a(f"    s_add_u32 m0, s{sT0}, {rg*1024}")
        a(f"    s_add_u32 s{sT2}, s{sT1}, {rg*8*ROWB}")
        a(f"    buffer_load_dwordx4 v{vS0 if rg % 2 == 0 else vS1}, s[{sX0}:{sX0+3}], s{sT2} offen lds")
    a(f"""
    s_add_u32 s{sT3}, s{sT3}, 1
    s_cmp_eq_u32 s{sT3}, 7
    s_cselect_b32 s{sT3}, 0, s{sT3}
    s_add_u32 s{sI}, s{sI}, 1
    s_cmp_lt_u32 s{sI}, 7
    s_cbranch_scc1 L_xs
    ; ---- W prefix of layer 0
    s_mul_i32 s{sG}, s{sROT}, 26624
    s_mul_i32 s{sM}, s{sKH}, {P*2048}
    s_lshl_b32 s{sT1}, s{sMH}, 10
    s_add_u32 s{sM}, s{sM}, s{sT1}
""")
    for i in range(P):
        a(f"    s_add_u32 m0, s{sM}, {PRE0 + i*2048}")
        a(f"    s_add_u32 s{sT0}, s{sG}, {i*26624}")
        a(f"    buffer_load_dwordx4 v{vDMA0}, s[{sW}:{sW+3}], s{sT0} offen lds")
    a(f"""
""")
    if c.w0assist:
        a(f"""
    s_cmp_eq_u32 s{sU}, 3
    s_cbranch_scc0 L_now0t
    v_lshrrev_b32 v21, 5, v{vL}               ; K half
    v_mul_u32_u24 v21, 416, v21
    v_and_b32 v22, 31, v{vL}
    v_add_u32 v21, v21, v22
    v_mul_u32_u24 v21, {ROWB}, v21
    s_lshl_b32 s20, s{sROT}, 4
    s_add_u32 s20, s20, {P * 16 + 28}
    s_mul_i32 s20, s20, {ROWB}
    s_lshl_b32 s21, s{sJ}, 7
    s_add_u32 s20, s20, s21
    buffer_load_dword v{vDUM}, v21, s[{sW}:{sW+3}], s20 offen
L_now0t:""")
    a(f"""
""")
    if c.xt_by == "worker":
        a(f"""
    v_lshrrev_b32 v21, 5, v{vL}
    v_mul_u32_u24 v21, {XMH}, v21
    v_and_b32 v22, 31, v{vL}
    v_lshl_add_u32 v21, v22, 7, v21
    s_mul_i32 s22, s{sRB}, {XRB}
    s_lshl_b32 s23, s{sJ}, 12
    s_add_u32 s22, s22, s23                   ; buffer 0
    s_add_u32 s23, s22, {XBUF}                ; buffer 1
    s_cmp_eq_u32 s{sU}, 1
    s_cbranch_scc0 L_noxt1
    buffer_load_dword v{vDUM}, v21, s[{sWS}:{sWS+3}], s23 offen sc1
L_noxt1:""")
    if c.hello_by == "loader":
        a(f"""
    s_load_dwordx2 s[{sE}:{sE+1}], s[50:51], s{sCB}
    s_add_u32 s{sT0}, s{sCB}, 128
    s_add_u32 s46, s50, s{sT0}
    s_addc_u32 s47, s51, 0""")
    a(f"""
    s_mul_i32 s{sT2}, s{sKH}, {KHS}
    s_lshl_b32 s{sT1}, s{sMH}, 10
    s_add_u32 s{sT2}, s{sT2}, s{sT1}
    s_add_u32 s{sMP}, s{sT2}, {SUF}
    s_mul_i32 s70, s{sKH}, {P*2048}
    s_add_u32 s70, s70, s{sT1}
    s_add_u32 s70, s70, {PRE1}                ; prefix of layer 1 goes to parity 1
    s_mov_b32 s71, {PREPAR}
    s_mul_i32 s{sT0}, s{sKH}, 416
    s_lshl_b32 s{sT1}, s{sROT}, 4
    s_add_u32 s{sT0}, s{sT0}, s{sT1}
    s_mul_i32 s{sT1}, s{sMH}, {NSR}
    s_add_u32 s{sT0}, s{sT0}, s{sT1}
    s_add_u32 s{sT0}, s{sT0}, {c.SV * 16}
    s_mul_i32 s{sT0}, s{sT0}, {ROWB}
    s_lshl_b32 s{sT1}, s{sJ}, 7
    s_add_u32 s{sT0}, s{sT0}, s{sT1}
    s_add_u32 s{sT0}, s{sT0}, {c.wstride}
    s_mov_b32 s98, s42
    s_mov_b32 s99, s43
    s_add_u32 s40, s42, s{sT0}
    s_addc_u32 s41, s43, 0
    s_add_u32 s42, s40, {c.wstride}
    s_addc_u32 s43, s41, 0
""")
    def swarm(k):
        if not (c.swarm and c.sp): return
        lst = [(l, r) for l in range(2, 6) for r in range(3)]
        lst = lst[:7] if k == 0 else lst[7:]
        cur = None
        for n_, (l, r) in enumerate(lst):
            if cur != l:
                a(f"    s_add_u32 s46, s44, {l * c.wstride}")
                a(f"    s_addc_u32 s47, s45, 0")
                cur = l
            a(f"    s_load_dwordx2 s[{76+2*n_}:{77+2*n_}], s[46:47], {r*ROWB + 60}")
    if c.swarm and c.sp:
        per_range = 2 * NSR // 3
        a(f"""
    ; share of the S rows for the warm-up: q = rb*4 + u, range = q / {per_range}, rows 3*(q % {per_range}) ...
    s_lshl_b32 s{sT0}, s{sRB}, 2
    s_add_u32 s{sT0}, s{sT0}, s{sWV}
    s_sub_u32 s{sT0}, s{sT0}, 4
    s_min_u32 s{sT0}, s{sT0}, {4 * per_range - 1}
    s_mul_i32 s{sT1}, s{sT0}, {-(-65536 // per_range)}
    s_lshr_b32 s{sT1}, s{sT1}, 16             ; range
    s_mul_i32 s{sT2}, s{sT1}, {per_range}
    s_sub_u32 s{sT0}, s{sT0}, s{sT2}
    s_mul_i32 s{sT0}, s{sT0}, 3
    s_mul_i32 s{sT1}, s{sT1}, 208
    s_add_u32 s{sT0}, s{sT0}, s{sT1}
    s_add_u32 s{sT0}, s{sT0}, {c.SV * 16}
    s_mul_i32 s{sT0}, s{sT0}, {ROWB}
    s_lshl_b32 s{sT1}, s{sJ}, 7
    s_add_u32 s{sT0}, s{sT0}, s{sT1}
    s_add_u32 s44, s{sWP0}, s{sT0}
    s_addc_u32 s45, s{sWP0+1}, 0
""")
        swarm(0)
    if c.w0assist:
        a(f"""    s_cmp_eq_u32 s{sU}, 3
    s_cbranch_scc0 L_bxw
    s_waitcnt vmcnt({P + 1})
    s_branch L_bxw2
L_bxw:
    s_waitcnt vmcnt({P})
L_bxw2:""")
    elif c.xt_by == "worker":
        a(f"""    s_cmp_eq_u32 s{sU}, 1
    s_cbranch_scc0 L_bxw
    s_waitcnt vmcnt({P + 1})
    s_branch L_bxw2
L_bxw:
    s_waitcnt vmcnt({P})
L_bxw2:""")
    else:
        a(f"    s_waitcnt vmcnt({P})")
    stamp()
    a(f"""
    s_barrier                                 ; B_x
    s_barrier                                 ; B_y
""")
    if c.swarm and c.sp: a("    s_waitcnt lgkmcnt(0)")
    if c.hello_by != "loader" and c.ssched != "two": sbatch(0)
    def suffix(vreg, lay, thr=True, phased=False, bp=None):
        a(f"    s_mul_i32 s{sG}, s{sROT}, 26624")
        a(f"    s_add_u32 s{sG}, s{sG}, {lay}")
        a(f"    s_sub_u32 s{sM}, 13, s{sROT}")
        a(f"    s_mul_i32 s{sM}, s{sM}, 26624")
        a(f"    s_add_u32 s{sM}, s{sM}, {lay}")
        for n_, i in enumerate(range(P, 26)):
            if bp is not None and n_ == bp:
                a(f"    s_waitcnt vmcnt({bp})")
                a("    s_barrier                                 ; B_p: prefix of layer 0 has landed")
                if c.hello_by == "loader":
                    a(f"""    s_cmp_eq_u32 s{sWV}, 6
    s_cbranch_scc0 L_b0
    s_waitcnt lgkmcnt(0)
    s_load_dwordx16 s[76:91], s[46:47], 0 glc
    s_load_dwordx8 s[92:99], s[46:47], 64 glc
    s_load_dwordx2 s[20:21], s[46:47], 96 glc
    s_branch L_b0d
L_b0:""")
                    sbatch(0)
                    a("L_b0d:")
            if phased and n_ == c.n1: a("    s_barrier")
            if phased and n_ == c.n1 + c.n2: a("    s_barrier")
            a(f"    s_add_u32 m0, s{sMP}, {(i-P)*2048}")
            a(f"    s_add_u32 s{sI}, s{sG if i < 13 else sM}, {(i % 13) * 26624}")
            a(f"    buffer_load_dwordx4 v{vreg}, s[{sW}:{sW+3}], s{sI} offen lds")
            if c.lthr and thr and (c.lthr_all or n_ >= c.n1 + c.n2):
                a(f"    s_waitcnt vmcnt({c.lthr - 1})")
    sPP, sPDL = 70, 71
    def prefix_next(lay_next):
        a(f"    s_mul_i32 s{sG}, s{sROT}, 26624")
        a(f"    s_add_u32 s{sG}, s{sG}, s{lay_next}")
        for t in range(P):
            a(f"    s_add_u32 m0, s{sPP}, {t*2048}")
            a(f"    s_add_u32 s{sI}, s{sG}, {t*26624}")
            a(f"    buffer_load_dwordx4 v{vDMA}, s[{sW}:{sW+3}], s{sI} offen lds")
            if c.lthr and c.lthr_all and t + 1 < P:
                a(f"    s_waitcnt vmcnt({c.lthr - 1})")
        a(f"    s_sub_u32 s{sPP}, s{sPP}, s{sPDL}")
        a(f"    s_sub_u32 s{sPDL}, 0, s{sPDL}")
    def advance_sb():
        a(f"""    s_add_u32 s40, s40, {c.wstride}
    s_addc_u32 s41, s41, 0
    s_add_u32 s42, s42, {c.wstride}
    s_addc_u32 s43, s43, 0""")
    suffix(vDMA0, "0", False, False, bp=13 - P)
    n = 26 - P
    if c.hello_by != "loader":
        if c.sp and c.ssched != "two": a("    s_waitcnt lgkmcnt(0)")
        sbatch(1)
    a(f"    s_waitcnt vmcnt({n - (13 - P)})")
    stamp()
    a("    s_barrier                                 ; chunk [P,13)")
    if c.hello_by == "loader" and c.sp and c.l0b1:
        a(f"    s_cmp_eq_u32 s{sWV}, 6")
        a(f"    s_cbranch_scc1 L_nob1")
        a("    s_waitcnt lgkmcnt(0)"); sbatch(1)
        a("L_nob1:")
    if c.swarm and c.sp:
        a("    s_waitcnt lgkmcnt(0)"); swarm(1)
    a(f"    s_waitcnt vmcnt({26 - 20})")
    a("    s_barrier                                 ; chunk [13,20)")
    if c.hello_by == "loader":
        a(f"""    s_cmp_eq_u32 s{sWV}, 6
    s_cbranch_scc0 L_nohe
    s_add_u32 s{sT0}, s{sE}, 8
    s_addc_u32 s{sT1}, s{sE+1}, 0
    s_and_b32 s{sT2}, s{sT1}, 0x0fffffff
    s_lshl_b32 s22, s{sXCC}, 28
    s_xor_b32 s{sT1}, s{sT1}, s22
    s_mov_b32 s22, 1
    s_mov_b32 s23, 1
    s_waitcnt lgkmcnt(0)""")
        for m_ in range(13):
            lo = 76 + 2 * m_ if m_ < 12 else 20
            a(f"""    s_cmp_eq_u32 s{lo}, s{sT0}
    s_cselect_b32 s23, s23, 0
    s_cmp_eq_u32 s{lo+1}, s{sT1}
    s_cselect_b32 s22, s22, 0
    s_and_b32 s{lo+1}, s{lo+1}, 0x0fffffff
    s_cmp_eq_u32 s{lo+1}, s{sT2}
    s_cselect_b32 s23, s23, 0""")
        a(f"""    s_sub_u32 s22, 2, s22
    s_mul_i32 s22, s22, s23
    v_mov_b32 v25, s22
    v_mov_b32 v26, {MODEW}
    ds_write_b32 v26, v25
    s_waitcnt lgkmcnt(0)
""")
        sbatch(0)
        a("L_nohe:")
    a("    s_waitcnt vmcnt(0)")
    stamp()
    a("    s_barrier                                 ; chunk [20,26)")
    if c.pre_by == "loader":
        a("    s_barrier                                 ; B_mid")
        a(f"    s_mov_b32 s{sT3}, {c.wstride}")
        if not c.no_pre: prefix_next(sT3)
        if c.xt_by == "worker":
            a(f"""    s_cmp_eq_u32 s{sWV}, 5
    s_cbranch_scc0 L_noxt0
    buffer_load_dword v{vDUM}, v21, s[{sWS}:{sWS+3}], s22 offen sc1
L_noxt0:""")
    advance_sb()
    a(f"""
    s_barrier
    s_mov_b32 s{sL}, 1
    s_mov_b32 s{sT3}, {c.wstride}
L_ld_layer:
    s_cmp_lt_u32 s{sL}, 5
    s_cselect_b32 s{sU}, 1, 0
""")
    def guarded(fn, lab):
        if not c.sp: return
        a(f"    s_cmp_eq_u32 s{sU}, 1")
        a(f"    s_cbranch_scc0 {lab}")
        fn()
        a(f"{lab}:")
    if c.ssched != "two":
        guarded(lambda: sbatch(1), "L_sA")
    if not c.no_suf: suffix(vDMA, f"s{sT3}", True, c.phased)
    elif c.phased:
        a("    s_barrier"); a("    s_barrier")
    stamp()
    if c.ssched != "two":
        guarded(lambda: (a("    s_waitcnt lgkmcnt(0)"), sbatch(2)), "L_sB")
    if c.pre_by == "loader": a(f"    s_waitcnt vmcnt({26 - P})                 ; the prefix has landed")
    a("    s_barrier                                 ; B_a")
    if c.ssched == "two":
        guarded(lambda: sbatch(1), "L_sB")
    a("    s_waitcnt vmcnt(0)")
    stamp()
    a("    s_barrier")
    a(f"    s_cmp_lt_u32 s{sL}, 4")
    a(f"    s_cselect_b32 s{sU}, 1, 0")
    guarded(lambda: (a("    s_waitcnt lgkmcnt(0)"), sbatch(0, True)), "L_sC")
    if c.pre_by == "loader":
        a("    s_barrier                                 ; B_mid")
        stamp(3)
        a(f"    s_cmp_lt_u32 s{sL}, 5")
        a(f"    s_cbranch_scc0 L_nopre")
        a(f"    s_add_u32 s{sU}, s{sT3}, {c.wstride}")
        if not c.no_pre: prefix_next(sU)
        a("L_nopre:")
        stamp(3)
    advance_sb()
    a(f"""
    s_barrier                                 ; B2
    s_add_u32 s{sL}, s{sL}, 1
    s_add_u32 s{sT3}, s{sT3}, {c.wstride}
    s_cmp_lt_u32 s{sL}, 6
    s_cbranch_scc1 L_ld_layer
""")
    dump_ts()
    a("    s_endpgm")

    sBI = 84
    sBP = 48
    def bias_load():
        a(f"    s_load_dwordx16 s[{sBI}:{sBI+15}], s[{sBP}:{sBP+1}], 0")
        a(f"    s_add_u32 s{sBP}, s{sBP}, {ROWB}")
        a(f"    s_addc_u32 s{sBP+1}, s{sBP+1}, 0")
    def bias_spread():
        a("    s_mov_b32 exec_hi, 0")
        for q in range(4):
            for d in range(2):
                a(f"    v_mov_b32 v{vBP+2*q+d}, s{sBI+4*q+d}")
        a("    s_mov_b32 exec_lo, 0")
        a("    s_mov_b32 exec_hi, -1")
        for q in range(4):
            for d in range(2):
                a(f"    v_mov_b32 v{vBP+2*q+d}, s{sBI+4*q+2+d}")
        a("    s_mov_b64 exec, -1")
    def bias_unpack(lo=0, hi=8):
        for d in range(lo, hi):
            a(f"    v_lshlrev_b32 v{vAK+2*d}, 16, v{vBP+d}")
            a(f"    v_and_b32 v{vAK+2*d+1}, 0xffff0000, v{vBP+d}")
    a(f"""
L_compute:
    s_load_dwordx2 s[{sE}:{sE+1}], s[50:51], s{sCB}
    s_lshl_b32 s{sT0}, s{sJ}, 7
    s_lshl_b32 s{sT1}, s{sKH}, 6
    s_add_u32 s{sT0}, s{sT0}, s{sT1}
    s_add_u32 s{sBP_}, s44, s{sT0}
    s_addc_u32 s{sBP_+1}, s45, 0
    s_load_dwordx16 s[84:99], s[{sBP_}:{sBP_+1}], 0
    s_load_dword s20, s[{sBP_}:{sBP_+1}], {ROWB}
    s_load_dword s21, s[{sBP_}:{sBP_+1}], {2*ROWB}
    s_load_dword s22, s[{sBP_}:{sBP_+1}], {3*ROWB}
    s_load_dword s23, s[{sBP_}:{sBP_+1}], {4*ROWB}
    s_load_dword s24, s[{sBP_}:{sBP_+1}], {5*ROWB}
    s_add_u32 s{sBP_}, s{sBP_}, {ROWB}
    s_addc_u32 s{sBP_+1}, s{sBP_+1}, 0
    s_setprio {c.prio}
""")
    if c.wwarm:
        a(f"""
    s_sub_u32 s{sT0}, s{sWV}, 1
    s_cmp_lt_u32 s{sT0}, {c.wwarm}
    s_cbranch_scc0 L_noww
    s_mul_i32 s{sT0}, s{sRB}, 13
    s_add_u32 s{sT0}, s{sT0}, s{sJ}
    s_mul_i32 s{sT0}, s{sT0}, {52 * 128}
    s_mul_i32 s{sT1}, s{sWV}, {c.wstride}
    s_add_u32 s20, s{sT0}, s{sT1}
    v_min_u32 v20, 51, v{vL}
    v_lshlrev_b32 v20, 7, v20
    buffer_load_dword v{vDUM}, v20, s[{sW}:{sW+3}], s20 offen
L_noww:""")
    a(f"""
    v_min_u32 v{vT0}, 51, v{vL}
    v_lshlrev_b32 v{vT0}, 3, v{vT0}
    s_add_u32 s{sT0}, s{sCB}, 2048
    v_add_u32 v{vFA}, s{sT0}, v{vT0}
    s_cmp_eq_u32 s{sWV}, 0
    s_cbranch_scc0 L_noft
    buffer_load_dword v{vDUM}, v{vFA}, s[{sWS}:{sWS+3}], 0 offen sc1
L_noft:
    s_lshl_b32 s{sT1}, s{sJ}, 2
    s_add_u32 s{sT1}, s{sT1}, s{sWV}
    s_lshl_b32 s{sT1}, s{sT1}, 3
    s_add_u32 s{sOWNF}, s{sT0}, s{sT1}
    v_min_u32 v{vT0}, 12, v{vL}
    v_lshlrev_b32 v{vT0}, 3, v{vT0}
    s_add_u32 s{sT0}, s{sCB}, 128
    v_add_u32 v{vHA}, s{sT0}, v{vT0}
""")
    srd(sOUT, 46, XLAYER)
    a(f"""
    s_lshl_b32 s{sT0}, s{sRB}, 6
    s_lshl_b32 s{sT1}, s{sMH}, 5
    s_add_u32 s{sT0}, s{sT0}, s{sT1}
    s_mul_i32 s{sT0}, s{sT0}, {ROWB}
    s_lshl_b32 s{sT1}, s{sJ}, 7
    s_add_u32 s{sT0}, s{sT0}, s{sT1}
    s_lshl_b32 s{sT1}, s{sKH}, 6
    s_add_u32 s{sT0}, s{sT0}, s{sT1}
    v_and_b32 v{vT0}, 31, v{vL}
    v_mul_u32_u24 v{vT0}, {ROWB}, v{vT0}
    v_lshrrev_b32 v{vT1}, 5, v{vL}
    v_lshl_add_u32 v{vT0}, v{vT1}, 4, v{vT0}
    v_add_u32 v{vOUT}, s{sT0}, v{vT0}
    v_lshlrev_b32 v{vXO}, 4, v{vL}
    v_add_u32 v{vXO+1}, 0x1000, v{vXO}
    v_add_u32 v{vXO+2}, 0x2000, v{vXO}
    v_add_u32 v{vXO+3}, 0x3000, v{vXO}
    s_mul_i32 s{sT0}, s{sRB}, {XRB}
    s_mul_i32 s{sT1}, s{sMH}, {XMH}
    s_add_u32 s{sT0}, s{sT0}, s{sT1}
    s_add_u32 s{sT0}, s{sT0}, {XBUF}
    s_lshl_b32 s{sT1}, s{sJ}, 2
    s_lshl_b32 s{sT2}, s{sKH}, 1
    s_add_u32 s{sT1}, s{sT1}, s{sT2}
    s_lshl_b32 s{sT1}, s{sT1}, 10
    s_add_u32 s{sXST}, s{sT0}, s{sT1}
""")
    if not c.helpers:
        a(f"""
    v_and_b32 v{vT1}, 15, v{vL}
    v_lshlrev_b32 v{vT1}, 7, v{vT1}
    v_bfe_u32 v{vT2}, v{vL}, 4, 1
    v_mul_u32_u24 v{vT2}, {XBUF >> 8}, v{vT2}
    v_lshl_add_u32 v{vT1}, v{vT2}, 8, v{vT1}
    s_sub_u32 s{sT3}, s{sXST}, {XBUF}
    buffer_load_dword v{vDUM}, v{vT1}, s[{sWS}:{sWS+3}], s{sT3} offen sc1
""")
    a(f"""
    s_mul_i32 s{sT1}, s{sKH}, 26
    s_add_u32 s{sT2}, s{sT1}, s{sROT}
    s_lshl_b32 s{sT2}, s{sT2}, 10
    s_add_u32 s{sXA}, s{sT0}, s{sT2}
    s_add_u32 s{sT2}, s{sT1}, 13
    s_sub_u32 s{sT2}, s{sT2}, s{sROT}
    s_lshl_b32 s{sT2}, s{sT2}, 10
    s_add_u32 s{sXB}, s{sT0}, s{sT2}
    s_mov_b32 s{sXD}, {-XBUF & 0xffffffff}
    s_mov_b32 s{sXD2}, {-XBUF & 0xffffffff}
    ; ---- W prefix bookkeeping for layer 1 (loaded at the end of layer 0)
    s_mul_i32 s{sT0}, s{sKH}, 416
    s_lshl_b32 s{sT1}, s{sROT}, 4
    s_add_u32 s{sT0}, s{sT0}, s{sT1}
    s_lshl_b32 s{sT1}, s{sMH}, 3
    s_add_u32 s{sT0}, s{sT0}, s{sT1}
    s_mul_i32 s{sWP}, s{sT0}, {ROWB}
    s_add_u32 s{sWP}, s{sWP}, {c.wstride}
    s_mul_i32 s{sMP}, s{sKH}, {P*2048}
    s_lshl_b32 s{sT1}, s{sMH}, 10
    s_add_u32 s{sMP}, s{sMP}, s{sT1}
    s_add_u32 s{sMP}, s{sMP}, {PRE1}
    s_mov_b32 s{sPD}, {PREPAR}
    v_lshrrev_b32 v{vT0}, 5, v{vL}            ; h
    v_lshlrev_b32 v{vT0}, 2, v{vT0}
    v_bfe_u32 v{vT1}, v{vL}, 2, 2             ; r
    v_add_u32 v{vT0}, v{vT0}, v{vT1}
    v_lshlrev_b32 v{vT0}, 7, v{vT0}           ; row*128
    v_bfe_u32 v{vT1}, v{vL}, 4, 1             ; nb
    v_lshlrev_b32 v{vT1}, 1, v{vT1}
    v_bfe_u32 v{vT2}, v{vL}, 1, 1             ; c>>1
    v_add_u32 v{vT1}, v{vT1}, v{vT2}
    v_bfe_u32 v{vT2}, v{vL}, 3, 1             ; (r>>1)&1
    v_lshlrev_b32 v{vT2}, 2, v{vT2}
    v_xor_b32 v{vT1}, v{vT1}, v{vT2}
    v_lshlrev_b32 v{vT1}, 4, v{vT1}
    v_add_u32 v{vT0}, v{vT0}, v{vT1}
    v_and_b32 v{vT1}, 1, v{vL}
    v_lshlrev_b32 v{vT1}, 3, v{vT1}
    v_add_u32 v{vT0}, v{vT0}, v{vT1}
    s_lshl_b32 s{sT0}, s{sKH}, 6
    v_xor_b32 v{vT1}, s{sT0}, v{vT0}          ; keep
    v_xor_b32 v{vT2}, 64, v{vT1}              ; send
    s_mul_i32 s{sT0}, s{sKH}, {P*2048}
    v_add_u32 v{vAPK}, s{sT0}, v{vT1}
    v_add_u32 v{vAPS}, s{sT0}, v{vT2}
    s_mul_i32 s{sT0}, s{sKH}, {KHS}
    s_add_u32 s{sT0}, s{sT0}, {SUF}
    v_add_u32 v{vASK}, s{sT0}, v{vT1}
    v_add_u32 v{vASS}, s{sT0}, v{vT2}
    s_lshl_b32 s{sT0}, s{sWV}, 12
    s_add_u32 s{sT0}, s{sT0}, {RED}
    v_add_u32 v{vRW}, s{sT0}, v{vXO}
    s_xor_b32 s{sT1}, s{sWV}, 2
    s_lshl_b32 s{sT1}, s{sT1}, 12
    s_add_u32 s{sT1}, s{sT1}, {RED}
    v_add_u32 v{vRR}, s{sT1}, v{vXO}
    v_lshrrev_b32 v{vT0}, 5, v{vL}
    v_lshlrev_b32 v{vT3}, 3, v{vT0}           ; h*8
    v_and_b32 v{vT0}, 31, v{vL}               ; m
    v_lshrrev_b32 v{vT1}, 3, v{vT0}
    v_lshlrev_b32 v{vT1}, 10, v{vT1}          ; rg*1024
    v_and_b32 v{vT2}, 7, v{vT0}
    v_lshl_add_u32 v{vT1}, v{vT2}, 7, v{vT1}  ; + row8*128
    v_bfe_u32 v{vT2}, v{vT0}, 1, 3            ; f(m)
    s_cmp_ge_u32 s{sJ}, 7
    s_cselect_b32 s{sT0}, 1, 0
    s_mul_i32 s{sT1}, s{sT0}, 6
    s_sub_u32 s{sT1}, s{sJ}, s{sT1}
    s_lshl_b32 s{sT1}, s{sT1}, 12
    s_lshl_b32 s{sT0}, s{sT0}, 1
    s_add_u32 s{sT0}, s{sT0}, s{sMH}
    s_mul_i32 s{sT0}, s{sT0}, 28672
    s_add_u32 s{sT0}, s{sT0}, s{sT1}
    s_add_u32 s{sT0}, s{sT0}, {XS}
    s_lshl_b32 s{sT1}, s{sKH}, 2
    v_add3_u32 v{vT3}, v{vT3}, v{vT1}, s{sT0}
    v_xor_b32 v{vT0}, s{sT1}, v{vT2}          ; (4*nh) ^ f(m)
""")
    for q in range(4):
        a(f"    v_xor_b32 v{vPART+8+q}, {q}, v{vT0}")
        a(f"    v_lshl_add_u32 v{vPART+8+q}, v{vPART+8+q}, 4, v{vT3}")
    a(f"""
    v_lshrrev_b32 v{vT0}, 5, v{vL}
    v_xor_b32 v{vT2}, v{vT2}, v{vT0}          ; f(m) ^ h
    s_mul_i32 s{sT3}, s{sWV}, 28672
    s_add_u32 s{sT3}, s{sT3}, {XS}
    s_mul_i32 s{sI}, s{sKH}, 26
    s_mul_i32 s{sM}, s{sKH}, 6
""")
    for seg in range(2):
        if seg == 0:
            a(f"    s_add_u32 s{sG}, s{sI}, s{sROT}")
        else:
            a(f"    s_add_u32 s{sG}, s{sI}, 13")
            a(f"    s_sub_u32 s{sG}, s{sG}, s{sROT}")
        for x in range(4):
            r = vPART + seg * 4 + x
            a(f"    s_add_u32 s{sT0}, s{sG}, {x}")
            a(f"    s_and_b32 s{sT1}, s{sT0}, 3")
            a(f"    s_lshl_b32 s{sT1}, s{sT1}, 1")
            a(f"    s_lshr_b32 s{sT0}, s{sT0}, 2")
            a(f"    s_sub_u32 s{sT0}, s{sT0}, s{sM}")
            a(f"    s_lshl_b32 s{sT0}, s{sT0}, 12")
            a(f"    s_add_u32 s{sT0}, s{sT0}, s{sT3}")
            a(f"    v_xor_b32 v{r}, s{sT1}, v{vT2}")
            a(f"    v_lshl_add_u32 v{r}, v{r}, 4, v{vT1}")
            a(f"    v_add_u32 v{r}, s{sT0}, v{r}")
    a(f"""
    s_waitcnt lgkmcnt(0)
    s_add_u32 s{sTA}, s{sE}, 1
    s_addc_u32 s{sTA+1}, s{sE+1}, 0
    s_add_u32 s{sTB}, s{sE}, 2
    s_addc_u32 s{sTB+1}, s{sE+1}, 0
    s_cmp_eq_u32 s{sWV}, 0
    s_cbranch_scc0 L_nohello
    s_add_u32 s{sT0}, s{sE}, 8
    s_addc_u32 s{sT1}, s{sE+1}, 0
    s_lshl_b32 s{sT2}, s{sXCC}, 28
    s_xor_b32 s{sT1}, s{sT1}, s{sT2}
    v_mov_b32 v{vPOLL}, s{sT0}
    v_mov_b32 v{vPOLL+1}, s{sT1}
    s_lshl_b32 s{sT2}, s{sJ}, 3
    s_add_u32 s{sT2}, s{sT2}, s{sCB}
    s_add_u32 s{sT2}, s{sT2}, 128
    s_mov_b64 exec, 1
    buffer_store_dwordx2 v[{vPOLL}:{vPOLL+1}], off, s[{sWS}:{sWS+3}], s{sT2} sc1
    s_mov_b64 exec, -1
L_nohello:
""")
    if c.w0assist:
        a(f"""
    s_mul_i32 s{sT0}, s{sKH}, 416
    s_lshl_b32 s{sT1}, s{sROT}, 4
    s_add_u32 s{sT0}, s{sT0}, s{sT1}
    s_mul_i32 s{sT1}, s{sMH}, 14
    s_add_u32 s{sT0}, s{sT0}, s{sT1}
    s_add_u32 s{sT0}, s{sT0}, {P * 16}
    s_mul_i32 s{sT0}, s{sT0}, {ROWB}
    s_lshl_b32 s{sT1}, s{sJ}, 7
    s_add_u32 s{sT0}, s{sT0}, s{sT1}
    s_add_u32 s44, s42, s{sT0}
    s_addc_u32 s45, s43, 0
""")
        for n_ in range(14):
            if n_ == 7: a("    s_waitcnt lgkmcnt(0)")
            a(f"    s_load_dwordx2 s[{20+2*(n_%2)}:{21+2*(n_%2)}], s[44:45], {n_*ROWB + 60}")
    elif c.vwarm:
        nrows = c.SV * 16
        per_rb = nrows // 4
        a(f"""
    s_lshr_b32 s{sT0}, s{sRB}, 2
    s_mul_i32 s{sT0}, s{sT0}, 208
    s_and_b32 s{sT1}, s{sRB}, 3
    s_mul_i32 s{sT1}, s{sT1}, {per_rb}
    s_add_u32 s{sT0}, s{sT0}, s{sT1}
    s_mul_i32 s{sT1}, s{sWV}, {per_rb // 4}
    s_add_u32 s{sT0}, s{sT0}, s{sT1}
    s_mul_i32 s{sT0}, s{sT0}, {ROWB}
    s_lshl_b32 s{sT1}, s{sJ}, 7
    s_add_u32 s{sT0}, s{sT0}, s{sT1}
    s_add_u32 s{sT0}, s{sT0}, {c.wstride}
    s_add_u32 s44, s42, s{sT0}
    s_addc_u32 s45, s43, 0
""")
        nper = per_rb // 4
        vw = [(l, r) for l in range(1, 6) for r in range(nper)][:14]
        def vwarm_batch(k):
            cur = None
            for n_, (l, r) in enumerate(vw[7*k:7*k+7]):
                if cur != l:
                    a(f"    s_add_u32 s46, s44, {(l-1) * c.wstride}")
                    a(f"    s_addc_u32 s47, s45, 0")
                    cur = l
                a(f"    s_load_dwordx2 s[{20+2*(n_%2)}:{21+2*(n_%2)}], s[46:47], {r*ROWB + 60}")
        vwarm_batch(0)
    stamp()
    a("    s_barrier                                 ; B_x: staged x0, prefix(0) and biases have landed")
    stamp()
    for q in range(4):
        a(f"    ds_read_b64 v[{vP+2*q}:{vP+2*q+1}], v{vPART+8+q}")
    for i in range(26):
        seg, ii = (0, i) if i < 13 else (1, i - 13)
        a(f"    ds_read_b128 v[{vXF+4*i}:{vXF+4*i+3}], v{vPART + seg*4 + (ii & 3)} offset:{(ii >> 2) * 4096}")
        if i in (9, 17):
            a("    s_waitcnt lgkmcnt(6)")
    a("    s_waitcnt lgkmcnt(0)")
    a("    s_barrier")
    if c.vwarm and not c.w0assist: vwarm_batch(1)
    stamp()
    for d in range(8):
        a(f"    v_lshlrev_b32 v{vX0F+2*d}, 16, v{vP+d}")
        a(f"    v_and_b32 v{vX0F+2*d+1}, 0xffff0000, v{vP+d}")
    bias_spread()
    bias_unpack()
    for r in range(16):
        a(f"    v_mov_b32 v{vXR+r}, v{vX0F+r}")
    a(f"    s_mov_b32 s{sL}, 0")
    a("    s_barrier                                 ; B_p: prefix of layer 0 has landed")
    stamp()

    def xload(i):
        if c.no_x:
            a("    s_nop 0"); return
        seg = sXA if i < 13 else sXB
        ii = i % 13
        a(f"    buffer_load_dwordx4 v[{vXF+4*i}:{vXF+4*i+3}], v{vXO+(ii>>2)}, s[{sWS}:{sWS+3}], s{seg} offen offset:{(ii&3)*1024} sc1")
    def rd(i, which):
        if c.no_w: return
        st = vWF + 8 * (i % nsets)
        if i < P: k, s_, off = vAPK, vAPS, i * 2048
        else: k, s_, off = vASK, vASS, (i - P) * 2048
        if which == "s":
            a(f"    ds_read_b64_tr_b16 v[{st}:{st+1}], v{s_} offset:{off}")
            a(f"    ds_read_b64_tr_b16 v[{st+2}:{st+3}], v{s_} offset:{off+1024}")
        else:
            a(f"    ds_read_b64_tr_b16 v[{st+4}:{st+5}], v{k} offset:{off}")
            a(f"    ds_read_b64_tr_b16 v[{st+6}:{st+7}], v{k} offset:{off+1024}")
    def pref_sched(i):
        if c.presched == "spread":
            t = i - (26 - P)
            return [t] if 0 <= t < P else []
        k = i - (26 - D)
        if k < 0: return []
        per_ = -(-P // D)
        return [t for t in range(k * per_, min(P, (k + 1) * per_))]
    def kloop(first):
        ops = []
        if first:
            for i in range(PF):
                rd(i, "s"); rd(i, "k")
        else:
            xload(0); ops.append(("x", 0))
            rd(0, "s"); rd(0, "k")
            xload(1); ops.append(("x", 1))
            rd(1, "s"); rd(1, "k")
            nrest = D - 2
            cuts = [8 * k // nrest for k in range(nrest + 1)]
            for k in range(nrest):
                bias_unpack(cuts[k], cuts[k + 1])
                xload(2 + k); ops.append(("x", 2 + k))
        bars = [P, 13, 20] if first else [P]
        assert P < 13
        marks = [0, 1, 2, 4, 8, 12, 16, 20, 25]
        for i in range(26):
            a(f"    ; ---- step {i}")
            if TS == 4 and not first and i in marks:
                a(f"    s_memtime s[{80 + 2*marks.index(i)}:{81 + 2*marks.index(i)}]")
            young = sum(4 for t in range(i + 1, min(i + PF - 1, 25) + 1))
            if first:
                a(f"    s_waitcnt lgkmcnt({young})")
            else:
                nv = len(ops) - 1 - ops.index(("x", i))
                a(f"    s_waitcnt vmcnt({nv}) lgkmcnt({young})")
            st = vWF + 8 * (i % nsets)
            xf = vXF + 4 * i
            cs = "0" if i == 0 else f"v[{vAS}:{vAS+15}]"
            a(f"    v_mfma_f32_32x32x16_bf16 v[{vAS}:{vAS+15}], v[{st}:{st+3}], v[{xf}:{xf+3}], {cs}")
            if i + PF in bars:
                a("    s_barrier")
            if first and i == c.hello_step and c.hello_by != 'loader':
                a(f"    buffer_load_dwordx2 v[{vPOLL}:{vPOLL+1}], v{vHA}, s[{sWS}:{sWS+3}], 0 offen sc1")
            if not first and i + D < 26:
                xload(i + D); ops.append(("x", i + D))
            if c.pre_by == "loader":
                if i == c.mid_step: a("    s_barrier                                 ; B_mid: the x loads are all issued")
                if i == c.prog_step and c.prog_at == "mid":
                    lab = "L_noprogA" if first else "L_noprogB"
                    a(f"""    s_or_b32 s{sT0}, s{sJ}, s{sWV}
    s_cmp_eq_u32 s{sT0}, 0
    s_cbranch_scc0 {lab}
    v_mov_b32 v{vPOL2}, s{sTA}
    v_mov_b32 v{vPOL2+1}, s{sTA+1}
    s_add_u32 s{sT0}, s{sCB}, 3072
    buffer_store_dwordx2 v[{vPOL2}:{vPOL2+1}], off, s[{sWS}:{sWS+3}], s{sT0}
{lab}:""")
            else:
                for t in ([] if c.no_pre else pref_sched(i)):
                    a(f"    s_add_u32 m0, s{sMP}, {t*2048}")
                    a(f"    s_add_u32 s{sT0}, s{sWP}, {t*26624}")
                    a(f"    buffer_load_dwordx4 v{vDMA}, s[{sW}:{sW+3}], s{sT0} offen lds")
                    ops.append(("w", t))
            if i + PF < 26: rd(i + PF, "s")
            a(f"    v_mfma_f32_32x32x16_bf16 v[{vAK}:{vAK+15}], v[{st+4}:{st+7}], v[{xf}:{xf+3}], v[{vAK}:{vAK+15}]")
            if i + PF < 26: rd(i + PF, "k")
        return len([o for o in ops if o[0] == "w"])
    npre = kloop(True)
    if c.hello_by == "loader":
        a(f"""    v_mov_b32 v{vT0}, {MODEW}
    ds_read_b32 v{vT1}, v{vT0}
    s_waitcnt lgkmcnt(0)
    v_readfirstlane_b32 s{sMODE}, v{vT1}""")
        a(f"""
    s_cmp_eq_u32 s{sMODE}, 0
    s_cbranch_scc1 L_hello_slow
    s_and_b32 s{sMODE}, s{sMODE}, {0 if c.force_slow else 1}
    s_branch L_tail
L_hello_slow:
    buffer_load_dwordx2 v[{vPOLL}:{vPOLL+1}], v{vHA}, s[{sWS}:{sWS+3}], 0 offen sc1""")
    a(f"""
    s_add_u32 s{sT0}, s{sE}, 8
    s_addc_u32 s{sT1}, s{sE+1}, 0
    s_mov_b32 s{sSPIN}, 0
    s_waitcnt vmcnt({0 if c.hello_by == "loader" else npre})
    s_and_b32 s{sT2}, s{sT1}, 0x0fffffff
    s_lshl_b32 s{sT3}, s{sXCC}, 28
    s_xor_b32 s{sT3}, s{sT1}, s{sT3}
L_hello:
    v_and_b32 v{vT0}, 0x0fffffff, v{vPOLL+1}
    v_cmp_eq_u32 vcc, s{sT0}, v{vPOLL}
    v_cmp_eq_u32 s[{sMK}:{sMK+1}], s{sT2}, v{vT0}
    s_and_b64 vcc, vcc, s[{sMK}:{sMK+1}]
    s_cmp_eq_u64 vcc, -1
    s_cbranch_scc1 L_hello_ok
    s_add_u32 s{sSPIN}, s{sSPIN}, 1
    s_cmp_gt_u32 s{sSPIN}, {c.spin_max}
    s_cbranch_scc1 L_end
    buffer_load_dwordx2 v[{vPOLL}:{vPOLL+1}], v{vHA}, s[{sWS}:{sWS+3}], 0 offen sc1
    s_waitcnt vmcnt(0)
    s_branch L_hello
L_hello_ok:
    v_cmp_eq_u32 vcc, s{sT3}, v{vPOLL+1}
    s_cmp_eq_u64 vcc, -1
    s_cselect_b32 s{sMODE}, {0 if c.force_slow else 1}, 0
    s_branch L_tail
""")
    assert sT1 == sT0 + 1 and sT0 % 2 == 0
    a("L_layer:")
    stamp(1)
    a("    s_barrier                                 ; B_a")
    stamp()
    kloop(False)
    if TS == 4:
        a("    s_memtime s[98:99]")
        a("    s_waitcnt lgkmcnt(0)")
        for k in range(10):
            a(f"    s_mov_b32 m0, s{sTSI}")
            a(f"    s_nop 0")
            a(f"    v_writelane_b32 v{vTS}, s{80+2*k}, m0")
            a(f"    s_add_u32 s{sTSI}, s{sTSI}, 1")
    a("L_tail:")
    if TS in (2, 3):
        a("    s_nop 15")
        stamp()
    a(f"    v_mov_b32 v{vFV}, s{sTA}")
    a(f"    v_mov_b32 v{vFV+1}, s{sTA+1}")
    a("    s_nop 8")
    for q in range(4):
        a(f"    ds_write_b128 v{vRW}, v[{vAS+4*q}:{vAS+4*q+3}] offset:{q*1024}")
    a("    s_waitcnt lgkmcnt(0)")
    a("    s_barrier                                 ; B2")
    stamp(3)
    for q in range(4):
        a(f"    ds_read_b128 v[{vPART+4*q}:{vPART+4*q+3}], v{vRR} offset:{q*1024}")
    def epi(q):
        a(f"    s_waitcnt lgkmcnt({3-q})")
        for p in range(2):
            r = 4 * q + 2 * p
            a(f"    v_pk_add_f32 v[{vAK+r}:{vAK+r+1}], v[{vAK+r}:{vAK+r+1}], v[{vPART+r}:{vPART+r+1}]")
        for p in range(2):
            r = 4 * q + 2 * p
            a(f"    v_pk_fma_f32 v[{vAK+r}:{vAK+r+1}], v[{vX0F+r}:{vX0F+r+1}], v[{vAK+r}:{vAK+r+1}], v[{vXR+r}:{vXR+r+1}]")
        for p in range(2):
            r = 4 * q + 2 * p
            a(f"    v_cvt_pk_bf16_f32 v{vP+2*q+p}, v{vAK+r}, v{vAK+r+1}")
    a(f"""
    s_cmp_eq_u32 s{sL}, 5
    s_cbranch_scc1 L_final
    s_cmp_eq_u32 s{sMODE}, 0
    s_cbranch_scc1 L_st_slow
""")
    epi(0); epi(1)
    a(f"    buffer_store_dwordx4 v[{vP}:{vP+3}], v{vXO}, s[{sWS}:{sWS+3}], s{sXST} offen")
    epi(2); epi(3)
    a(f"    buffer_store_dwordx4 v[{vP+4}:{vP+7}], v{vXO}, s[{sWS}:{sWS+3}], s{sXST} offen offset:1024")
    if c.phased: a("    s_barrier                                 ; B_s")
    stamp(3)
    def unpack_res():
        for d in range(8):
            a(f"    v_lshlrev_b32 v{vXR+2*d}, 16, v{vP+d}")
            a(f"    v_and_b32 v{vXR+2*d+1}, 0xffff0000, v{vP+d}")
    bias_load()
    unpack_res()
    a(f"""
    s_waitcnt vmcnt(0)
    buffer_store_dwordx2 v[{vFV}:{vFV+1}], off, s[{sWS}:{sWS+3}], s{sOWNF}
    s_branch L_st_done
L_st_slow:
""")
    epi(0); epi(1); epi(2); epi(3)
    a(f"""
    buffer_store_dwordx4 v[{vP}:{vP+3}], v{vXO}, s[{sWS}:{sWS+3}], s{sXST} offen sc1
    buffer_store_dwordx4 v[{vP+4}:{vP+7}], v{vXO}, s[{sWS}:{sWS+3}], s{sXST} offen offset:1024 sc1
""")
    if c.phased: a("    s_barrier                                 ; B_s")
    stamp(3)
    bias_load()
    unpack_res()
    a(f"""
    s_waitcnt vmcnt(0)
    buffer_store_dwordx2 v[{vFV}:{vFV+1}], off, s[{sWS}:{sWS+3}], s{sOWNF} sc1
L_st_done:
""")
    stamp()
    if c.onepoll:
        a(f"""
    s_cmp_eq_u32 s{sWV}, 0
    s_cbranch_scc0 L_nopoll1""")
    a(f"""
    buffer_load_dwordx2 v[{vPOLL}:{vPOLL+1}], v{vFA}, s[{sWS}:{sWS+3}], 0 offen sc1
L_nopoll1:
    {"s_barrier                                 ; B_f" if c.phased else ""}
""")
    def progress(lab):
        a(f"""    s_or_b32 s{sT0}, s{sJ}, s{sWV}
    s_cmp_eq_u32 s{sT0}, 0
    s_cbranch_scc0 {lab}
    s_add_u32 s{sT0}, s{sCB}, 3072
    buffer_store_dwordx2 v[{vFV}:{vFV+1}], off, s[{sWS}:{sWS+3}], s{sT0}
{lab}:""")
    if c.prog_at == "end": progress("L_noprog")
    a(f"""
    s_add_u32 s{sL}, s{sL}, 1
    s_cmp_eq_u32 s{sL}, 1
    s_cbranch_scc1 L_keep_xa
    s_add_u32 s{sXA}, s{sXA}, s{sXD}
    s_add_u32 s{sXB}, s{sXB}, s{sXD}
    s_sub_u32 s{sXD}, 0, s{sXD}
L_keep_xa:
    s_add_u32 s{sXST}, s{sXST}, s{sXD2}
    s_sub_u32 s{sXD2}, 0, s{sXD2}
    s_add_u32 s{sWP}, s{sWP}, {c.wstride}
    s_sub_u32 s{sMP}, s{sMP}, s{sPD}
    v_add_u32 v{vAPK}, s{sPD}, v{vAPK}
    v_add_u32 v{vAPS}, s{sPD}, v{vAPS}
    s_sub_u32 s{sPD}, 0, s{sPD}
    s_mov_b32 s{sSPIN}, 0
""")
    a("    s_waitcnt lgkmcnt(0)")
    bias_spread()
    if c.onepoll:
        a(f"""
    s_cmp_eq_u32 s{sWV}, 0
    s_cbranch_scc0 L_ready""")
    if c.poll2:
        a(f"""L_poll:
    buffer_load_dwordx2 v[{vPOL2}:{vPOL2+1}], v{vFA}, s[{sWS}:{sWS+3}], 0 offen sc1
    s_waitcnt vmcnt(1)
    v_cmp_eq_u64 vcc, s[{sTA}:{sTA+1}], v[{vPOLL}:{vPOLL+1}]
    v_cmp_eq_u64 s[{sMK}:{sMK+1}], s[{sTB}:{sTB+1}], v[{vPOLL}:{vPOLL+1}]
    s_or_b64 vcc, vcc, s[{sMK}:{sMK+1}]
    s_cmp_eq_u64 vcc, -1
    s_cbranch_scc1 L_ready
    buffer_load_dwordx2 v[{vPOLL}:{vPOLL+1}], v{vFA}, s[{sWS}:{sWS+3}], 0 offen sc1
    s_waitcnt vmcnt(1)
    v_cmp_eq_u64 vcc, s[{sTA}:{sTA+1}], v[{vPOL2}:{vPOL2+1}]
    v_cmp_eq_u64 s[{sMK}:{sMK+1}], s[{sTB}:{sTB+1}], v[{vPOL2}:{vPOL2+1}]
    s_or_b64 vcc, vcc, s[{sMK}:{sMK+1}]
    s_cmp_eq_u64 vcc, -1
    s_cbranch_scc1 L_ready
    s_add_u32 s{sSPIN}, s{sSPIN}, 1
    s_cmp_gt_u32 s{sSPIN}, {c.spin_max}
    s_cbranch_scc0 L_poll
    s_endpgm
""")
    else:
        a(f"""L_poll:
    s_waitcnt vmcnt(0)
    v_cmp_eq_u64 vcc, s[{sTA}:{sTA+1}], v[{vPOLL}:{vPOLL+1}]
    v_cmp_eq_u64 s[{sMK}:{sMK+1}], s[{sTB}:{sTB+1}], v[{vPOLL}:{vPOLL+1}]
    s_or_b64 vcc, vcc, s[{sMK}:{sMK+1}]
    s_cmp_eq_u64 vcc, -1
    s_cbranch_scc1 L_ready
    buffer_load_dwordx2 v[{vPOLL}:{vPOLL+1}], v{vFA}, s[{sWS}:{sWS+3}], 0 offen sc1
    s_add_u32 s{sSPIN}, s{sSPIN}, 1
    s_cmp_gt_u32 s{sSPIN}, {c.spin_max}
    s_cbranch_scc0 L_poll
    s_endpgm
""")
    a(f"""L_ready:
    s_add_u32 s{sTA}, s{sTA}, 1
    s_addc_u32 s{sTA+1}, s{sTA+1}, 0
    s_add_u32 s{sTB}, s{sTB}, 1
    s_addc_u32 s{sTB+1}, s{sTB+1}, 0
    s_branch L_layer
L_final:
""")
    epi(0); epi(1); epi(2); epi(3)
    a(f"""
    s_nop 1
    v_permlane32_swap_b32 v{vP}, v{vP+2}
    v_permlane32_swap_b32 v{vP+1}, v{vP+3}
    v_permlane32_swap_b32 v{vP+4}, v{vP+6}
    v_permlane32_swap_b32 v{vP+5}, v{vP+7}
    buffer_store_dwordx4 v[{vP}:{vP+3}], v{vOUT}, s[{sOUT}:{sOUT+3}], 0 offen
    buffer_store_dwordx4 v[{vP+4}:{vP+7}], v{vOUT}, s[{sOUT}:{sOUT+3}], 0 offen offset:32
    s_or_b32 s{sT0}, s{sJ}, s{sWV}
    s_cmp_eq_u32 s{sT0}, 0
    s_cbranch_scc0 L_noepoch
    s_add_u32 s{sT0}, s{sE}, 16
    s_addc_u32 s{sT1}, s{sE+1}, 0
    v_mov_b32 v{vFV}, s{sT0}
    v_mov_b32 v{vFV+1}, s{sT1}
    s_mov_b64 exec, 1
    buffer_store_dwordx2 v[{vFV}:{vFV+1}], off, s[{sWS}:{sWS+3}], s{sCB} sc1
    s_mov_b64 exec, -1
L_noepoch:
""")
    if c.exp_delay or c.exp_rt:
        ins = "s_memtime" if c.exp_delay else "s_memrealtime"
        a(f"""
    {ins} s[80:81]
    s_waitcnt lgkmcnt(0)
L_expd:
    {ins} s[82:83]
    s_waitcnt lgkmcnt(0)
    s_sub_u32 s82, s82, s80
    s_cmp_lt_u32 s82, {c.exp_delay or c.exp_rt}
    s_cbranch_scc1 L_expd
""")
    stamp(1); dump_ts()
    a("    s_endpgm")

    if c.helpers:
        HPR = (c.SV * 16 + (2 * NSR if c.sp else 0)) if c.hp is None else c.hp * 16
        HP = HPR // 16
        nrow = 208 - HPR
        nline = nrow * 13
        tot = 4 * nline
        nins = (tot + 63) // 64
        cdelta = HPR * ROWB
        NK = -(-nins // 48)
        HF = 1 if ((c.h0 == 'prefix' or c.w0assist) and c.hfirst == 0) else c.hfirst
        a(f"""
L_helper:
""")
        if c.probe:
            a(f"""
    s_cmp_eq_u32 s2, 208
    s_cbranch_scc0 L_noprobe
    s_cmp_eq_u32 s{sWV}, 0
    s_cbranch_scc0 L_noprobe
    s_mov_b32 s20, {c.probe_off + 16384}
    buffer_load_dword v30, off, s[{sW}:{sW+3}], s20
    s_waitcnt vmcnt(0)
    s_mov_b32 s20, {c.probe_off}
    s_memtime s[22:23]
    s_waitcnt lgkmcnt(0)
    buffer_load_dword v30, off, s[{sW}:{sW+3}], s20
    s_waitcnt vmcnt(0)
    s_memtime s[24:25]
    s_waitcnt lgkmcnt(0)
    s_sub_u32 s24, s24, s22
    s_mul_i32 s24, s24, {c.probe}
L_pspin:
    s_memtime s[26:27]
    s_waitcnt lgkmcnt(0)
    s_sub_u32 s26, s26, s22
    s_cmp_lt_u32 s26, s24
    s_cbranch_scc1 L_pspin
    s_endpgm
L_noprobe:""")
        a(f"""
    ; L2 prefetch for the workers of this die (placement assumed for speed only): one dword per 128-byte line
    s_sub_u32 s{sT0}, s2, 208
    s_and_b32 s{sT1}, s{sT0}, 7
    s_lshr_b32 s{sT0}, s{sT0}, 3
    s_lshl_b32 s{sT0}, s{sT0}, 3
    s_add_u32 s{sT0}, s{sT0}, s{sWV}          ; g = 0..47
    s_lshl_b32 s{sCB}, s{sT1}, 13
    s_add_u32 s{sCB}, s{sCB}, {CTRL}
    s_load_dwordx2 s[{sE}:{sE+1}], s[50:51], s{sCB}
    s_add_u32 s{sOWNF}, s{sCB}, 3072
""")
        if c.tlbwarm:
            a(f"""
    s_cmp_eq_u32 s{sWV}, 7
    s_cbranch_scc0 L_notlb
""")
            k_ = 0
            for base, offs in ((46, [0, XLAYER - 64]), (50, [0, XBUF - 64, XBUF + (1 << 20), 2 * XBUF - 64, 2 * XBUF + 65536 - 64]),
                               (42, [1 << 21, 2 << 21, 3 << 21, L_ * WLAYER - 64])):
                for off in offs:
                    a(f"""    s_add_u32 s24, s{base}, {off}
    s_addc_u32 s25, s{base+1}, 0
    s_load_dword s{76+k_}, s[24:25], 0""")
                    k_ += 1
            a("L_notlb:")
        a(f"""
    ; exchange-buffer lines of the die's two row blocks: {2*XRB//128} lines
    s_mul_i32 s{sG}, s{sT1}, {2*XRB}
    s_lshl_b32 s{sI}, s{sT0}, 13
    s_add_u32 s{sG}, s{sG}, s{sI}
    v_lshlrev_b32 v19, 7, v{vL}
    v_add_u32 v19, s{sG}, v19
    s_cmp_lt_u32 s{sT0}, {-(-2*XRB // 8192)}
    s_cselect_b32 s{sM}, 1, 0
""")
        def lane_addr(vdst, nline_, base0, delta):
            tot_ = 4 * nline_
            a(f"""
    s_lshl_b32 s{sI}, s{sI}, 6
    v_add_u32 v{vT0}, s{sI}, v{vL}
    v_mov_b32 v{vT1}, {base0}
    v_cmp_le_u32 vcc, {nline_}, v{vT0}
    v_mov_b32 v{vT2}, 0
    v_mov_b32 v{vT3}, {delta}
    v_cndmask_b32 v{vT2}, v{vT2}, v{vT3}, vcc
    v_add_u32 v{vT1}, v{vT1}, v{vT2}
    v_cmp_le_u32 vcc, {2*nline_}, v{vT0}
    v_mov_b32 v{vT2}, 0
    s_nop 0
    v_cndmask_b32 v{vT2}, v{vT2}, v{vT3}, vcc
    v_add_u32 v{vT1}, v{vT1}, v{vT2}
    v_cmp_le_u32 vcc, {3*nline_}, v{vT0}
    v_mov_b32 v{vT2}, 0
    s_nop 0
    v_cndmask_b32 v{vT2}, v{vT2}, v{vT3}, vcc
    v_add_u32 v{vT1}, v{vT1}, v{vT2}
    v_lshl_add_u32 v{vdst}, v{vT0}, 7, v{vT1}
    v_cmp_le_u32 vcc, {tot_}, v{vT0}
    v_mov_b32 v{vT2}, 0x7ffffff0
    s_nop 0
    v_cndmask_b32 v{vdst}, v{vdst}, v{vT2}, vcc""")
        def need_set(vbase, skip_rows, nrows):
            tot_ = nrows * 52
            nins_ = (tot_ + 63) // 64
            nk = -(-nins_ // 48)
            for k in range(nk):
                a(f"""
    s_add_u32 s{sI}, s{sT0}, {48*k}
    s_lshl_b32 s{sI}, s{sI}, 6
    v_add_u32 v{vT0}, s{sI}, v{vL}
    v_mul_u32_u24 v{vT1}, 80660, v{vT0}
    v_lshrrev_b32 v{vT1}, 22, v{vT1}
    v_mul_u32_u24 v{vT2}, 52, v{vT1}
    v_sub_u32 v{vT2}, v{vT0}, v{vT2}          ; rem
    v_mul_u32_u24 v{vT3}, 5042, v{vT2}
    v_lshrrev_b32 v{vT3}, 16, v{vT3}
    v_mul_u32_u24 v{vbase+k}, 13, v{vT3}
    v_sub_u32 v{vT2}, v{vT2}, v{vbase+k}
    v_mul_u32_u24 v{vT3}, 208, v{vT3}
    v_add_u32 v{vT1}, v{vT1}, v{vT3}
    v_add_u32 v{vT1}, {skip_rows}, v{vT1}     ; row
    v_mul_u32_u24 v{vT1}, {ROWB}, v{vT1}
    v_lshl_add_u32 v{vbase+k}, v{vT2}, 7, v{vT1}
    v_cmp_le_u32 vcc, {tot_}, v{vT0}
    v_mov_b32 v{vT2}, 0x7ffffff0
    s_nop 0
    v_cndmask_b32 v{vbase+k}, v{vbase+k}, v{vT2}, vcc""")
            return nk
        def addr_set(vbase, nline_, base0, delta, tag):
            tot_ = 4 * nline_
            nins_ = (tot_ + 63) // 64
            nk = -(-nins_ // 48)
            a(f"    s_mul_i32 s{sT2}, s{sT1}, {nins_ // 8}")
            for k in range(nk):
                a(f"""
    s_add_u32 s{sT3}, s{sT0}, {48*k}
    s_add_u32 s{sI}, s{sT3}, s{sT2}
    s_cmp_ge_u32 s{sI}, {nins_}
    s_cselect_b32 s{sG}, {nins_}, 0
    s_sub_u32 s{sI}, s{sI}, s{sG}
    s_cmp_ge_u32 s{sT3}, {nins_}
    s_cselect_b32 s{sI}, {nins_ + 8}, s{sI}   ; no k-th instruction -> past the end""")
                lane_addr(vbase + k, nline_, base0, delta)
            return nk
        NK0 = 0
        if c.w0assist and c.hfirst == 0:
            skip0 = P * 16 + 60
            NK0 = addr_set(40, (208 - skip0) * 13, skip0 * ROWB, skip0 * ROWB, "p")
            for k in range(NK0):
                a(f"    buffer_load_dword v{50+k}, v{40+k}, s[{sW}:{sW+3}], 0 offen")
        elif c.h0 == "prefix" and c.hfirst == 0:
            NK0 = addr_set(40, HP * 16 * 13, 0, (13 - HP) * 26624, "p")
            for k in range(NK0):
                a(f"    buffer_load_dword v{50+k}, v{40+k}, s[{sW}:{sW+3}], 0 offen")
        if c.horder == "need": need_set(10, HPR, nrow)
        else: addr_set(10, nline, cdelta, cdelta, "h")
        nshare_l = tot // 8
        NW_ = 14
        if c.hwarm:
            a(f"""
    s_mul_i32 s{sI}, s{sT1}, {nshare_l}
    s_mul_i32 s{sG}, s{sT0}, {NW_}
    s_add_u32 s{sI}, s{sI}, s{sG}
    s_mov_b32 s{sG}, {cdelta}
    s_cmp_ge_u32 s{sI}, {nline}
    s_cselect_b32 s{sT3}, {cdelta}, 0
    s_add_u32 s{sG}, s{sG}, s{sT3}
    s_cmp_ge_u32 s{sI}, {2*nline}
    s_cselect_b32 s{sT3}, {cdelta}, 0
    s_add_u32 s{sG}, s{sG}, s{sT3}
    s_cmp_ge_u32 s{sI}, {3*nline}
    s_cselect_b32 s{sT3}, {cdelta}, 0
    s_add_u32 s{sG}, s{sG}, s{sT3}
    s_lshl_b32 s{sI}, s{sI}, 7
    s_add_u32 s{sI}, s{sI}, s{sG}
    s_add_u32 s{sI}, s{sI}, {c.wstride}
    s_add_u32 s44, s42, s{sI}                 ; layer 1
    s_addc_u32 s45, s43, 0""")
        if c.hvec_warm:
            a(f"""
    s_cmp_ge_u32 s{sT0}, 22
    s_cselect_b32 s{sG}, 22, 0
    s_cselect_b32 s{sWG}, 1, 0
    s_sub_u32 s{sG}, s{sT0}, s{sG}
    s_lshl_b32 s{sG}, s{sG}, 6
    s_mul_i32 s{sI}, s{sT1}, 1352
    s_add_u32 s{sI}, s{sI}, s{sG}
    v_add_u32 v{vT0}, s{sI}, v{vL}
    v_lshlrev_b32 v18, 7, v{vT0}
    v_add_u32 v{vT1}, s{sG}, v{vL}
    v_cmp_le_u32 vcc, 1352, v{vT1}
    v_mov_b32 v{vT2}, 0x7ffffff0
    s_nop 0
    v_cndmask_b32 v18, v18, v{vT2}, vcc""")
        nv_l = c.SV * 16 * 52 // 8
        if c.hvwarm:
            a(f"""
    s_mul_i32 s{sI}, s{sT1}, {nv_l}
    s_mul_i32 s{sG}, s{sT0}, 7
    s_min_u32 s{sG}, s{sG}, {nv_l - 7}
    s_add_u32 s{sI}, s{sI}, s{sG}
    s_mov_b32 s{sG}, 0
    s_cmp_ge_u32 s{sI}, {c.SV * 16 * 13}
    s_cselect_b32 s{sT3}, {(208 - c.SV * 16) * ROWB}, 0
    s_add_u32 s{sG}, s{sG}, s{sT3}
    s_cmp_ge_u32 s{sI}, {2 * c.SV * 16 * 13}
    s_cselect_b32 s{sT3}, {(208 - c.SV * 16) * ROWB}, 0
    s_add_u32 s{sG}, s{sG}, s{sT3}
    s_cmp_ge_u32 s{sI}, {3 * c.SV * 16 * 13}
    s_cselect_b32 s{sT3}, {(208 - c.SV * 16) * ROWB}, 0
    s_add_u32 s{sG}, s{sG}, s{sT3}
    s_lshl_b32 s{sI}, s{sI}, 7
    s_add_u32 s{sI}, s{sI}, s{sG}
    s_add_u32 s{sI}, s{sI}, {c.wstride}
    s_add_u32 s46, s42, s{sI}                 ; layer 1
    s_addc_u32 s47, s43, 0""")
        if NK0 and c.hwarm:
            a("    s_waitcnt lgkmcnt(0)")
            for half in range(2):
                if half: a("    s_waitcnt lgkmcnt(0)")
                for n_ in range(7 * half, 7 * half + 7):
                    a(f"    s_load_dwordx2 s[{76+2*(n_%7)}:{77+2*(n_%7)}], s[44:45], {n_*128 + 60}")
            a(f"    s_add_u32 s44, s44, {c.wstride}")
            a(f"    s_addc_u32 s45, s45, 0")
        if NK0:
            a(f"""
    s_waitcnt vmcnt(0)
    s_barrier
    s_cmp_eq_u32 s{sM}, 1
    s_cbranch_scc0 L_hx1
    s_mov_b32 s{sI}, {XBUF}
    buffer_load_dword v30, v19, s[{sWS}:{sWS+3}], s{sI} offen sc1
L_hx1:
""")
        a(f"""
    v_mov_b32 v20, 0
    s_mov_b32 s{sL}, {HF}
    s_mov_b32 s{sT3}, {HF * c.wstride}
    s_waitcnt lgkmcnt(0)
L_h_layer:
""")
        if c.hpace:
            a(f"""
    ; before layer m wait (bounded) until the workers have finished layer m-{c.hlook}
    s_cmp_lt_u32 s{sL}, {c.hlook}
    s_cbranch_scc1 L_h_go
    s_cmp_eq_u32 s{sWV}, 0
    s_cbranch_scc0 L_h_bar
    s_mov_b32 s{sSPIN}, 0
L_h_poll:
    buffer_load_dwordx2 v[16:17], v20, s[{sWS}:{sWS+3}], s{sOWNF} offen sc1
    s_waitcnt vmcnt(0)
    v_readfirstlane_b32 s{sTA}, v16
    v_readfirstlane_b32 s{sTA+1}, v17
    s_sub_u32 s{sTA}, s{sTA}, s{sE}
    s_subb_u32 s{sTA+1}, s{sTA+1}, s{sE+1}
    s_cmp_eq_u32 s{sTA+1}, 0
    s_cselect_b32 s{sTA}, s{sTA}, 0
    s_cmp_gt_u32 s{sTA}, 6
    s_cselect_b32 s{sTA}, 0, s{sTA}
    s_add_u32 s{sTA}, s{sTA}, {c.hlook - 1}
    s_cmp_ge_u32 s{sTA}, s{sL}
    s_cbranch_scc1 L_h_bar
    s_add_u32 s{sSPIN}, s{sSPIN}, 1
    s_cmp_lt_u32 s{sSPIN}, 32
    s_cbranch_scc1 L_h_poll
L_h_bar:
    s_barrier
L_h_go:
""")
        def hw_batch(k, lab):
            if not c.hwarm: return
            a(f"    s_cmp_lt_u32 s{sL}, 5")
            a(f"    s_cbranch_scc0 {lab}")
            if not c.hw0:
                a(f"    s_cmp_eq_u32 s{sL}, 0")
                a(f"    s_cbranch_scc1 {lab}")
            a("    s_waitcnt lgkmcnt(0)")
            for n_ in range(7 * k, 7 * k + 7):
                a(f"    s_load_dwordx2 s[{76+2*(n_%7)}:{77+2*(n_%7)}], s[44:45], {n_*128 + 60}")
            a(f"{lab}:")
        def vec_warm(lab):
            A_ = c.hvw_ahead
            a(f"    s_cmp_eq_u32 s{sWG}, 1")
            a(f"    s_cbranch_scc1 {lab}_b")
            a(f"    s_add_u32 s{sI}, s{sL}, {A_}")
            a(f"    s_cmp_le_u32 s{sI}, 5")
            a(f"    s_cbranch_scc0 {lab}")
            if c.wwarm:
                a(f"    s_cmp_gt_u32 s{sI}, {c.wwarm}")
                a(f"    s_cbranch_scc0 {lab}")
            a(f"    s_add_u32 s{sI}, s{sT3}, {A_ * c.wstride}")
            a(f"    buffer_load_dword v29, v18, s[{sW}:{sW+3}], s{sI} offen")
            a(f"    s_branch {lab}")
            a(f"{lab}_b:")
            if A_ == 2 and c.wwarm < 1:
                a(f"    s_cmp_eq_u32 s{sL}, {HF}")
                a(f"    s_cbranch_scc0 {lab}")
                a(f"    s_add_u32 s{sI}, s{sT3}, {c.wstride}")
                a(f"    buffer_load_dword v29, v18, s[{sW}:{sW+3}], s{sI} offen")
            a(f"{lab}:")
        if c.hvec_warm and c.hvw_pos == "before": vec_warm("L_hvw")
        for k in range(NK):
            a(f"    buffer_load_dword v{31+k}, v{10+k}, s[{sW}:{sW+3}], s{sT3} offen")
            if k < 2: hw_batch(k, f"L_hw{k}")
            a(f"    s_waitcnt vmcnt({c.hdepth})")
            a(f"    s_barrier")
        if c.hvec_warm and c.hvw_pos == "after": vec_warm("L_hvw")
        if c.hvwarm:
            a(f"    s_cmp_lt_u32 s{sL}, 5")
            a(f"    s_cbranch_scc0 L_hnv")
            a("    s_waitcnt lgkmcnt(0)")
            for n_ in range(7):
                a(f"    s_load_dwordx2 s[{76+2*n_}:{77+2*n_}], s[46:47], {n_*128 + 60}")
            a(f"    s_add_u32 s46, s46, {c.wstride}")
            a(f"    s_addc_u32 s47, s47, 0")
            a("L_hnv:")
        if c.hwarm:
            a(f"    s_add_u32 s44, s44, {c.wstride}")
            a(f"    s_addc_u32 s45, s45, 0")
        if c.xt_by != 'worker':
            a(f"""
    s_sub_u32 s{sI}, s{sL}, {HF}
    s_add_u32 s{sI}, s{sI}, {1 if HF != c.hfirst else 0}
    s_cmp_lt_u32 s{sI}, 2
    s_cbranch_scc0 L_hx0
    s_cmp_eq_u32 s{sM}, 1
    s_cbranch_scc0 L_hx0
    s_cmp_eq_u32 s{sI}, 0
    s_cselect_b32 s{sI}, {XBUF}, 0
    buffer_load_dword v30, v19, s[{sWS}:{sWS+3}], s{sI} offen sc1
L_hx0:
""")
        stamp(1)
        a(f"""
    s_add_u32 s{sL}, s{sL}, 1
    s_add_u32 s{sT3}, s{sT3}, {c.wstride}
    s_cmp_lt_u32 s{sL}, 6
    s_cbranch_scc1 L_h_layer
""")
        if c.hwb:
            a(f"""
    s_cmp_lt_u32 s2, 216
    s_cbranch_scc0 L_nowb
    s_cmp_eq_u32 s{sWV}, 0
    s_cbranch_scc0 L_nowb
    s_mov_b32 s{sSPIN}, 0
L_wbpoll:
    buffer_load_dwordx2 v[16:17], v20, s[{sWS}:{sWS+3}], s{sOWNF} offen sc1
    s_waitcnt vmcnt(0)
    v_readfirstlane_b32 s{sTA}, v16
    v_readfirstlane_b32 s{sTA+1}, v17
    s_sub_u32 s{sTA}, s{sTA}, s{sE}
    s_subb_u32 s{sTA+1}, s{sTA+1}, s{sE+1}
    s_cmp_eq_u32 s{sTA+1}, 0
    s_cselect_b32 s{sTA}, s{sTA}, 0
    s_cmp_eq_u32 s{sTA}, 5
    s_cbranch_scc1 L_wbgo
    s_add_u32 s{sSPIN}, s{sSPIN}, 1
    s_cmp_lt_u32 s{sSPIN}, 64
    s_cbranch_scc1 L_wbpoll
L_wbgo:
    buffer_wbl2 sc1
L_nowb:""")
        a("    s_waitcnt vmcnt(0)")
        stamp(1)
        dump_ts()
    a("L_end:")
    a("    s_endpgm")
    kernel_desc(a, KNAME, NV, sgpr=102, accum=NV)
    txt = a.text().rstrip()
    if txt.endswith(".text"):
        txt = txt[:-5]
    return txt

if __name__ == "__main__":
    import json
    kw = json.loads(sys.argv[2]) if len(sys.argv) > 2 else {}
    open(sys.argv[1], "w").write(gen(**kw))
```

```python
import sys, os
from asmlib import *

KNAME = "standalone__dcn_v2_cross__recsys_kernel"
B_, DIN, L_ = 1024, 832, 6
ROWB = DIN * 2
WLAYER = DIN * DIN * 2
XLAYER = B_ * DIN * 2
XMH = 32 * ROWB
XRB = 2 * XMH
XBUF = 16 * XRB
CTRL = 2 * XBUF
TSOFF = CTRL + 16 * 4096
WS_BYTES = TSOFF + 256 * 8 * 256

class Cfg:
    def __init__(self, **kw):
        self.P = 6
        self.D = 5
        self.PF = 2
        self.SV = 3
        self.SB = 7
        self.ssched = 'two'
        self.NS = 3
        self.sp = True
        self.hp = None
        self.helpers = True
        self.hfirst = 0
        self.hlook = 2
        self.hpace = True
        self.hdepth = 1
        self.lthr = 0
        self.lthr_all = True
        self.sD_late = True
        self.ts = 0
        self.force_slow = False
        self.scramble = False
        self.spin_max = 1 << 20
        self.wstride = WLAYER
        self.prio = 2
        self.hello_step = 19
        self.amp = None
        self.hwb = False
        self.probe = 0
        self.probe_off = 5 * WLAYER + 700 * ROWB
        self.codepf = True
        self.wwarm = 0
        self.xt_by = 'worker'
        self.hvec_warm = True
        self.hvw_ahead = 2
        self.hvw_pos = 'after'
        self.tlbwarm = True
        self.l0b1 = False
        self.hvwarm = False
        self.hw0 = False
        self.hello_by = 'compute'
        self.pre_first = False
        self.swarm = False
        self.horder = 'linear'
        self.hwarm = False
        self.prog_step = 22
        self.prog_at = 'end'
        self.vwarm = False
        self.pre_by = 'loader'
        self.mid_step = 21
        self.presched = 'pack'
        self.h0 = 'middle'
        self.xtouch = False
        self.w0assist = False
        self.bias_by = 'loader'
        self.exp_delay = 0
        self.exp_rt = 0
        self.poll2 = True
        self.phased = True
        self.n1 = 4
        self.n2 = 4
        self.onepoll = True
        self.no_suf = self.no_pre = self.no_x = self.no_w = False
        self.__dict__.update(kw)

def gen(cfg=None, **kw):
    c = cfg or Cfg(**kw)
    P, D, PF = c.P, c.D, c.PF
    TS = int(c.ts)
    assert P <= 12 and PF <= P and D >= PF + 1
    KHS = (26 - P) * 2048
    PRE0 = 0
    SUF = 2 * P * 2048
    PRE1 = SUF + 2 * KHS
    PREPAR = PRE1 - PRE0
    RED = PRE1 + 2 * P * 2048
    BIAS = RED + 16384
    MODEW = BIAS
    LDS_BYTES = BIAS + 64
    XS = SUF
    assert XS + 4 * 28672 <= BIAS and LDS_BYTES <= 163840
    sW, sWS, sX0, sOUT, sBS = 4, 8, 12, 16, 24
    sRB, sJ, sG2, sWV, sMH, sKH, sL, sXCC, sMODE = 28, 29, 30, 31, 32, 33, 34, 35, 36
    sXA, sXB, sXST = 37, 38, 39
    sWP, sMP, sPD = 52, 53, 54
    sU, sOWNF, sXD2 = 55, 56, 57
    sT0, sT1, sT2, sT3 = 58, 59, 60, 61
    sSPIN, sROT = 62, 63
    sG, sM, sI = 64, 65, 66
    sTSI, sTM = 67, 68
    sXD, sCB = 70, 71
    sE, sTA, sTB, sMK = 72, 74, 76, 78
    sBP_ = 48
    sWG = 30
    vL = 0
    vT0, vT1, vT2, vT3 = 1, 2, 3, 4
    vDUM = 5
    vXO = 6
    vAPK, vAPS, vASK, vASS = 10, 11, 12, 13
    vDMA, vFA = 14, 15
    vPOLL = 16
    vRW, vRR, vBA, vTS = 20, 21, 22, 23
    vP = 24
    vAK, vAS, vPART, vX0F, vXR = 32, 48, 64, 80, 96
    vWF = 112
    vXF = 136
    vBP = 240
    vOUT, vHA, vFV, vDMA0 = 248, 249, 250, 252
    vPOL2 = 254
    NV = 256
    nsets = PF + 1
    assert nsets * 8 <= 24

    a = Asm()
    a("; Fused DCN-v2 cross network: 6 layers of x = x0 * (x @ W[l] + b[l]) + x, 1024 x 832, bf16 in/out, f32 accumulate.")
    a("; 208 worker workgroups = 16 row blocks (64 rows) x 13 column slices (64 columns); waves 0-3 MFMA, waves 4-7 W loaders;")
    a(f"; @launch grid=({256 if c.helpers else 208},1,1) block=(512,1,1) lds={LDS_BYTES}")
    a('.amdgcn_target "amdgcn-amd-amdhsa--gfx950"')
    a(".text")
    kernel_begin(a, KNAME)
    if c.amp:
        a("    s_memtime s[100:101]")
    if TS == 5:
        a("    s_memrealtime s[26:27]")
        a("    s_memtime s[100:101]")

    def stamp(level=2):
        if not TS or TS < level or (TS == 4 and level > 1) or TS == 5: return
        a(f"    s_memtime s[{sTM}:{sTM+1}]")
        a(f"    s_waitcnt lgkmcnt(0)")
        a(f"    s_mov_b32 m0, s{sTSI}")
        a(f"    s_nop 0")
        a(f"    v_writelane_b32 v{vTS}, s{sTM}, m0")
        a(f"    s_add_u32 s{sTSI}, s{sTSI}, 1")
    def dump_ts():
        if not TS: return
        if TS == 5:
            a("    s_memrealtime s[80:81]")
            a("    s_memtime s[82:83]")
            a("    s_waitcnt lgkmcnt(0)")
            a(f"    v_writelane_b32 v{vTS}, s26, 0")
            a(f"    v_writelane_b32 v{vTS}, s80, 1")
            a(f"    v_writelane_b32 v{vTS}, s100, 2")
            a(f"    v_writelane_b32 v{vTS}, s82, 3")
        a(f"""
    s_lshl_b32 s{sT0}, s2, 3
    s_add_u32 s{sT0}, s{sT0}, s{sWV}
    s_lshl_b32 s{sT0}, s{sT0}, 8
    s_add_u32 s{sT0}, s{sT0}, {TSOFF}
    v_lshlrev_b32 v{vT0}, 2, v{vL}
    buffer_store_dword v{vTS}, v{vT0}, s[{sWS}:{sWS+3}], s{sT0} offen
""")
    def srd(dst, src, nbytes):
        a(f"    s_mov_b32 s{dst}, s{src}")
        a(f"    s_and_b32 s{dst+1}, s{src+1}, 0xffff")
        a(f"    s_mov_b32 s{dst+2}, {nbytes}")
        a(f"    s_mov_b32 s{dst+3}, 0x20000")

    a(f"""
    s_cmp_ge_u32 s2, {256 if c.helpers else 208}
    s_cbranch_scc1 L_end
    s_load_dwordx4 s[40:43], s[0:1], 0
    s_load_dwordx4 s[44:47], s[0:1], 16
    s_load_dwordx2 s[50:51], s[0:1], 40
    s_getreg_b32 s{sXCC}, hwreg(HW_REG_XCC_ID, 0, 4)
""")
    if c.scramble:
        a(f"""
    s_mul_hi_u32 s{sRB}, s2, 0x13B13B14
    s_mul_i32 s{sT0}, s{sRB}, 13
    s_sub_u32 s{sJ}, s2, s{sT0}
    s_and_b32 s{sG2}, s{sRB}, 1
    s_mul_i32 s{sROT}, s{sG2}, 13""")
    else:
        a(f"""
    s_and_b32 s{sT0}, s2, 7
    s_lshr_b32 s{sT1}, s2, 3
    s_cmp_ge_u32 s{sT1}, 13
    s_cselect_b32 s{sG2}, 1, 0
    s_mul_i32 s{sROT}, s{sG2}, 13
    s_sub_u32 s{sJ}, s{sT1}, s{sROT}
    s_lshl_b32 s{sRB}, s{sT0}, 1
    s_add_u32 s{sRB}, s{sRB}, s{sG2}""")
    a(f"""
    v_lshrrev_b32 v{vT0}, 6, v0
    v_and_b32 v{vL}, 63, v0
    v_readfirstlane_b32 s{sWV}, v{vT0}
    s_mov_b32 s{sTSI}, 0
    v_mov_b32 v{vTS}, 0
    s_lshl_b32 s{sCB}, s{sRB}, 12
    s_add_u32 s{sCB}, s{sCB}, {CTRL}
    s_and_b32 s{sMH}, s{sWV}, 1
    s_bfe_u32 s{sKH}, s{sWV}, 0x10001
    v_lshrrev_b32 v{vT0}, 3, v{vL}            ; row8
    v_and_b32 v{vT1}, 7, v{vL}
    v_bfe_u32 v{vT2}, v{vL}, 4, 1
    v_lshlrev_b32 v{vT2}, 2, v{vT2}
    v_xor_b32 v{vT1}, v{vT1}, v{vT2}
    v_lshlrev_b32 v{vT1}, 4, v{vT1}
    s_lshl_b32 s{sT0}, s{sJ}, 7
    v_add_u32 v{vT1}, s{sT0}, v{vT1}
    v_mul_u32_u24 v{vT2}, {ROWB}, v{vT0}
    v_add_u32 v{vDMA}, v{vT2}, v{vT1}
    v_and_b32 v{vT2}, 3, v{vT0}
    v_lshrrev_b32 v{vT0}, 2, v{vT0}
    v_lshl_add_u32 v{vT0}, v{vT0}, 3, v{vT2}
    v_mul_u32_u24 v{vT0}, {ROWB}, v{vT0}
    v_add_u32 v{vDMA0}, v{vT0}, v{vT1}
    s_waitcnt lgkmcnt(0)
""")
    srd(sX0, 40, XLAYER)
    srd(sW, 42, L_ * WLAYER)
    srd(sWS, 50, WS_BYTES)
    if c.codepf:
        a(f"""    ; instruction prefetch into L2: wave (id/8)*8 + w reads line number (that index) of this kernel's code
    s_getpc_b64 s[20:21]
L_pc:
    s_lshr_b32 s22, s2, 3
    s_lshl_b32 s22, s22, 3
    s_add_u32 s22, s22, s{sWV}
    s_lshl_b32 s22, s22, 6
    s_min_u32 s22, s22, L_end - L_pc
    s_load_dword s3, s[20:21], s22""")
    stamp(1)
    if c.helpers:
        a(f"""
    s_cmp_ge_u32 s2, 208
    s_cbranch_scc1 L_helper
""")
    a(f"""
    s_cmp_lt_u32 s{sWV}, 4
    s_cbranch_scc1 L_compute
""")
    def bias_dma(sreg, val, lab):
        a(f"    s_cmp_eq_u32 s{sreg}, {val}")
        a(f"    s_cbranch_scc0 {lab}")
        srd(sBS, 44, L_ * ROWB)
        a(f"""    v_lshrrev_b32 v{vT0}, 5, v{vL}
    v_mul_u32_u24 v{vT0}, {ROWB}, v{vT0}
    v_and_b32 v{vT1}, 31, v{vL}
    v_lshlrev_b32 v{vT1}, 2, v{vT1}
    v_add_u32 v{vT0}, v{vT0}, v{vT1}
    s_lshl_b32 s{sT0}, s{sJ}, 7
    v_add_u32 v{vT0}, s{sT0}, v{vT0}""")
        for t in range(3):
            a(f"    s_mov_b32 m0, {BIAS + 256*t}")
            a(f"    s_mov_b32 s{sT1}, {2*t*ROWB}")
            a(f"    buffer_load_dword v{vT0}, s[{sBS}:{sBS+3}], s{sT1} offen lds")
        a(f"{lab}:")
    vS0, vS1 = vXO, vXO + 1
    sSB = 40
    sWP0 = 98
    SB = c.SB
    NSR = (2 if c.ssched == 'two' else 3) * SB
    def sbatch(k, nextlayer=False):
        if not c.sp: return
        b = sSB + 2 if nextlayer else sSB
        for n_ in range(SB):
            a(f"    s_load_dwordx2 s[{76+2*n_}:{77+2*n_}], s[{b}:{b+1}], {(k * SB + n_) * ROWB + 60}")
    a(f"""
    s_sub_u32 s{sU}, s{sWV}, 4
""")
    if c.xtouch:
        a(f"""
    s_cmp_eq_u32 s{sU}, 0
    s_cbranch_scc0 L_notouch
    s_lshl_b32 s{sT0}, s{sRB}, 6
    s_mul_i32 s{sT0}, s{sT0}, {ROWB}
    s_lshl_b32 s{sT1}, s{sJ}, 7
    s_add_u32 s{sT0}, s{sT0}, s{sT1}
    v_mul_u32_u24 v20, {ROWB}, v{vL}
    s_mov_b32 s20, s{sT0}
    buffer_load_dword v{vDUM}, v20, s[{sX0}:{sX0+3}], s20 offen""")
    a(f"""
L_notouch:
""")
    a(f"""
    s_mul_i32 s{sT0}, s{sKH}, 416
    s_lshl_b32 s{sT1}, s{sMH}, 2
    s_add_u32 s{sT1}, s{sT1}, s{sT0}
    s_mul_i32 s{sT1}, s{sT1}, {ROWB}
    v_add_u32 v{vDMA0}, s{sT1}, v{vDMA0}
    s_lshl_b32 s{sT1}, s{sMH}, 3
    s_add_u32 s{sT1}, s{sT1}, s{sT0}
    s_mul_i32 s{sT1}, s{sT1}, {ROWB}
    v_add_u32 v{vDMA}, s{sT1}, v{vDMA}
    ; ---- stage x0 rows of compute wave u: 7 lines x 4 row groups, start line rotated by j
    v_lshrrev_b32 v{vT0}, 3, v{vL}            ; row8
    v_and_b32 v{vT1}, 7, v{vL}
    v_lshrrev_b32 v{vT2}, 1, v{vT0}
    v_xor_b32 v{vT1}, v{vT1}, v{vT2}          ; c' ^ (row8>>1)
    v_xor_b32 v{vT2}, 4, v{vT1}
    v_mul_u32_u24 v{vT0}, {ROWB}, v{vT0}
    v_lshl_add_u32 v{vS0}, v{vT1}, 4, v{vT0}
    v_lshl_add_u32 v{vS1}, v{vT2}, 4, v{vT0}
    s_lshl_b32 s{sT0}, s{sRB}, 6
    s_lshl_b32 s{sT1}, s{sMH}, 5
    s_add_u32 s{sT0}, s{sT0}, s{sT1}
    s_mul_i32 s{sG}, s{sT0}, {ROWB}
    s_mul_i32 s{sT1}, s{sKH}, {6*128}
    s_add_u32 s{sG}, s{sG}, s{sT1}
    s_mul_i32 s{sM}, s{sU}, 28672
    s_add_u32 s{sM}, s{sM}, {XS}
    s_cmp_ge_u32 s{sJ}, 7
    s_cselect_b32 s{sT3}, 7, 0
    s_sub_u32 s{sT3}, s{sJ}, s{sT3}
    s_mov_b32 s{sI}, 0
L_xs:
    s_lshl_b32 s{sT0}, s{sT3}, 12
    s_add_u32 s{sT0}, s{sT0}, s{sM}
    s_lshl_b32 s{sT1}, s{sT3}, 7
    s_add_u32 s{sT1}, s{sT1}, s{sG}
""")
    for rg in range(4):
        a(f"    s_add_u32 m0, s{sT0}, {rg*1024}")
        a(f"    s_add_u32 s{sT2}, s{sT1}, {rg*8*ROWB}")
        a(f"    buffer_load_dwordx4 v{vS0 if rg % 2 == 0 else vS1}, s[{sX0}:{sX0+3}], s{sT2} offen lds")
    a(f"""
    s_add_u32 s{sT3}, s{sT3}, 1
    s_cmp_eq_u32 s{sT3}, 7
    s_cselect_b32 s{sT3}, 0, s{sT3}
    s_add_u32 s{sI}, s{sI}, 1
    s_cmp_lt_u32 s{sI}, 7
    s_cbranch_scc1 L_xs
    ; ---- W prefix of layer 0
    s_mul_i32 s{sG}, s{sROT}, 26624
    s_mul_i32 s{sM}, s{sKH}, {P*2048}
    s_lshl_b32 s{sT1}, s{sMH}, 10
    s_add_u32 s{sM}, s{sM}, s{sT1}
""")
    for i in range(P):
        a(f"    s_add_u32 m0, s{sM}, {PRE0 + i*2048}")
        a(f"    s_add_u32 s{sT0}, s{sG}, {i*26624}")
        a(f"    buffer_load_dwordx4 v{vDMA0}, s[{sW}:{sW+3}], s{sT0} offen lds")
    a(f"""
""")
    if c.w0assist:
        a(f"""
    s_cmp_eq_u32 s{sU}, 3
    s_cbranch_scc0 L_now0t
    v_lshrrev_b32 v21, 5, v{vL}               ; K half
    v_mul_u32_u24 v21, 416, v21
    v_and_b32 v22, 31, v{vL}
    v_add_u32 v21, v21, v22
    v_mul_u32_u24 v21, {ROWB}, v21
    s_lshl_b32 s20, s{sROT}, 4
    s_add_u32 s20, s20, {P * 16 + 28}
    s_mul_i32 s20, s20, {ROWB}
    s_lshl_b32 s21, s{sJ}, 7
    s_add_u32 s20, s20, s21
    buffer_load_dword v{vDUM}, v21, s[{sW}:{sW+3}], s20 offen
L_now0t:""")
    a(f"""
""")
    if c.xt_by == "worker":
        a(f"""
    v_lshrrev_b32 v21, 5, v{vL}
    v_mul_u32_u24 v21, {XMH}, v21
    v_and_b32 v22, 31, v{vL}
    v_lshl_add_u32 v21, v22, 7, v21
    s_mul_i32 s22, s{sRB}, {XRB}
    s_lshl_b32 s23, s{sJ}, 12
    s_add_u32 s22, s22, s23                   ; buffer 0
    s_add_u32 s23, s22, {XBUF}                ; buffer 1
    s_cmp_eq_u32 s{sU}, 1
    s_cbranch_scc0 L_noxt1
    buffer_load_dword v{vDUM}, v21, s[{sWS}:{sWS+3}], s23 offen sc1
L_noxt1:""")
    if c.hello_by == "loader":
        a(f"""
    s_load_dwordx2 s[{sE}:{sE+1}], s[50:51], s{sCB}
    s_add_u32 s{sT0}, s{sCB}, 128
    s_add_u32 s46, s50, s{sT0}
    s_addc_u32 s47, s51, 0""")
    a(f"""
    s_mul_i32 s{sT2}, s{sKH}, {KHS}
    s_lshl_b32 s{sT1}, s{sMH}, 10
    s_add_u32 s{sT2}, s{sT2}, s{sT1}
    s_add_u32 s{sMP}, s{sT2}, {SUF}
    s_mul_i32 s70, s{sKH}, {P*2048}
    s_add_u32 s70, s70, s{sT1}
    s_add_u32 s70, s70, {PRE1}                ; prefix of layer 1 goes to parity 1
    s_mov_b32 s71, {PREPAR}
    s_mul_i32 s{sT0}, s{sKH}, 416
    s_lshl_b32 s{sT1}, s{sROT}, 4
    s_add_u32 s{sT0}, s{sT0}, s{sT1}
    s_mul_i32 s{sT1}, s{sMH}, {NSR}
    s_add_u32 s{sT0}, s{sT0}, s{sT1}
    s_add_u32 s{sT0}, s{sT0}, {c.SV * 16}
    s_mul_i32 s{sT0}, s{sT0}, {ROWB}
    s_lshl_b32 s{sT1}, s{sJ}, 7
    s_add_u32 s{sT0}, s{sT0}, s{sT1}
    s_add_u32 s{sT0}, s{sT0}, {c.wstride}
    s_mov_b32 s98, s42
    s_mov_b32 s99, s43
    s_add_u32 s40, s42, s{sT0}
    s_addc_u32 s41, s43, 0
    s_add_u32 s42, s40, {c.wstride}
    s_addc_u32 s43, s41, 0
""")
    def swarm(k):
        if not (c.swarm and c.sp): return
        lst = [(l, r) for l in range(2, 6) for r in range(3)]
        lst = lst[:7] if k == 0 else lst[7:]
        cur = None
        for n_, (l, r) in enumerate(lst):
            if cur != l:
                a(f"    s_add_u32 s46, s44, {l * c.wstride}")
                a(f"    s_addc_u32 s47, s45, 0")
                cur = l
            a(f"    s_load_dwordx2 s[{76+2*n_}:{77+2*n_}], s[46:47], {r*ROWB + 60}")
    if c.swarm and c.sp:
        per_range = 2 * NSR // 3
        a(f"""
    ; share of the S rows for the warm-up: q = rb*4 + u, range = q / {per_range}, rows 3*(q % {per_range}) ...
    s_lshl_b32 s{sT0}, s{sRB}, 2
    s_add_u32 s{sT0}, s{sT0}, s{sWV}
    s_sub_u32 s{sT0}, s{sT0}, 4
    s_min_u32 s{sT0}, s{sT0}, {4 * per_range - 1}
    s_mul_i32 s{sT1}, s{sT0}, {-(-65536 // per_range)}
    s_lshr_b32 s{sT1}, s{sT1}, 16             ; range
    s_mul_i32 s{sT2}, s{sT1}, {per_range}
    s_sub_u32 s{sT0}, s{sT0}, s{sT2}
    s_mul_i32 s{sT0}, s{sT0}, 3
    s_mul_i32 s{sT1}, s{sT1}, 208
    s_add_u32 s{sT0}, s{sT0}, s{sT1}
    s_add_u32 s{sT0}, s{sT0}, {c.SV * 16}
    s_mul_i32 s{sT0}, s{sT0}, {ROWB}
    s_lshl_b32 s{sT1}, s{sJ}, 7
    s_add_u32 s{sT0}, s{sT0}, s{sT1}
    s_add_u32 s44, s{sWP0}, s{sT0}
    s_addc_u32 s45, s{sWP0+1}, 0
""")
        swarm(0)
    if c.w0assist:
        a(f"""    s_cmp_eq_u32 s{sU}, 3
    s_cbranch_scc0 L_bxw
    s_waitcnt vmcnt({P + 1})
    s_branch L_bxw2
L_bxw:
    s_waitcnt vmcnt({P})
L_bxw2:""")
    elif c.xt_by == "worker":
        a(f"""    s_cmp_eq_u32 s{sU}, 1
    s_cbranch_scc0 L_bxw
    s_waitcnt vmcnt({P + 1})
    s_branch L_bxw2
L_bxw:
    s_waitcnt vmcnt({P})
L_bxw2:""")
    else:
        a(f"    s_waitcnt vmcnt({P})")
    stamp()
    a(f"""
    s_barrier                                 ; B_x
    s_barrier                                 ; B_y
""")
    if c.swarm and c.sp: a("    s_waitcnt lgkmcnt(0)")
    if c.hello_by != "loader" and c.ssched != "two": sbatch(0)
    def suffix(vreg, lay, thr=True, phased=False, bp=None):
        a(f"    s_mul_i32 s{sG}, s{sROT}, 26624")
        a(f"    s_add_u32 s{sG}, s{sG}, {lay}")
        a(f"    s_sub_u32 s{sM}, 13, s{sROT}")
        a(f"    s_mul_i32 s{sM}, s{sM}, 26624")
        a(f"    s_add_u32 s{sM}, s{sM}, {lay}")
        for n_, i in enumerate(range(P, 26)):
            if bp is not None and n_ == bp:
                a(f"    s_waitcnt vmcnt({bp})")
                a("    s_barrier                                 ; B_p: prefix of layer 0 has landed")
                if c.hello_by == "loader":
                    a(f"""    s_cmp_eq_u32 s{sWV}, 6
    s_cbranch_scc0 L_b0
    s_waitcnt lgkmcnt(0)
    s_load_dwordx16 s[76:91], s[46:47], 0 glc
    s_load_dwordx8 s[92:99], s[46:47], 64 glc
    s_load_dwordx2 s[20:21], s[46:47], 96 glc
    s_branch L_b0d
L_b0:""")
                    sbatch(0)
                    a("L_b0d:")
            if phased and n_ == c.n1: a("    s_barrier")
            if phased and n_ == c.n1 + c.n2: a("    s_barrier")
            a(f"    s_add_u32 m0, s{sMP}, {(i-P)*2048}")
            a(f"    s_add_u32 s{sI}, s{sG if i < 13 else sM}, {(i % 13) * 26624}")
            a(f"    buffer_load_dwordx4 v{vreg}, s[{sW}:{sW+3}], s{sI} offen lds")
            if c.lthr and thr and (c.lthr_all or n_ >= c.n1 + c.n2):
                a(f"    s_waitcnt vmcnt({c.lthr - 1})")
    sPP, sPDL = 70, 71
    def prefix_next(lay_next):
        a(f"    s_mul_i32 s{sG}, s{sROT}, 26624")
        a(f"    s_add_u32 s{sG}, s{sG}, s{lay_next}")
        for t in range(P):
            a(f"    s_add_u32 m0, s{sPP}, {t*2048}")
            a(f"    s_add_u32 s{sI}, s{sG}, {t*26624}")
            a(f"    buffer_load_dwordx4 v{vDMA}, s[{sW}:{sW+3}], s{sI} offen lds")
            if c.lthr and c.lthr_all and t + 1 < P:
                a(f"    s_waitcnt vmcnt({c.lthr - 1})")
        a(f"    s_sub_u32 s{sPP}, s{sPP}, s{sPDL}")
        a(f"    s_sub_u32 s{sPDL}, 0, s{sPDL}")
    def advance_sb():
        a(f"""    s_add_u32 s40, s40, {c.wstride}
    s_addc_u32 s41, s41, 0
    s_add_u32 s42, s42, {c.wstride}
    s_addc_u32 s43, s43, 0""")
    suffix(vDMA0, "0", False, False, bp=13 - P)
    n = 26 - P
    if c.hello_by != "loader":
        if c.sp and c.ssched != "two": a("    s_waitcnt lgkmcnt(0)")
        sbatch(1)
    a(f"    s_waitcnt vmcnt({n - (13 - P)})")
    stamp()
    a("    s_barrier                                 ; chunk [P,13)")
    if c.hello_by == "loader" and c.sp and c.l0b1:
        a(f"    s_cmp_eq_u32 s{sWV}, 6")
        a(f"    s_cbranch_scc1 L_nob1")
        a("    s_waitcnt lgkmcnt(0)"); sbatch(1)
        a("L_nob1:")
    if c.swarm and c.sp:
        a("    s_waitcnt lgkmcnt(0)"); swarm(1)
    a(f"    s_waitcnt vmcnt({26 - 20})")
    a("    s_barrier                                 ; chunk [13,20)")
    if c.hello_by == "loader":
        a(f"""    s_cmp_eq_u32 s{sWV}, 6
    s_cbranch_scc0 L_nohe
    s_add_u32 s{sT0}, s{sE}, 8
    s_addc_u32 s{sT1}, s{sE+1}, 0
    s_and_b32 s{sT2}, s{sT1}, 0x0fffffff
    s_lshl_b32 s22, s{sXCC}, 28
    s_xor_b32 s{sT1}, s{sT1}, s22
    s_mov_b32 s22, 1
    s_mov_b32 s23, 1
    s_waitcnt lgkmcnt(0)""")
        for m_ in range(13):
            lo = 76 + 2 * m_ if m_ < 12 else 20
            a(f"""    s_cmp_eq_u32 s{lo}, s{sT0}
    s_cselect_b32 s23, s23, 0
    s_cmp_eq_u32 s{lo+1}, s{sT1}
    s_cselect_b32 s22, s22, 0
    s_and_b32 s{lo+1}, s{lo+1}, 0x0fffffff
    s_cmp_eq_u32 s{lo+1}, s{sT2}
    s_cselect_b32 s23, s23, 0""")
        a(f"""    s_sub_u32 s22, 2, s22
    s_mul_i32 s22, s22, s23
    v_mov_b32 v25, s22
    v_mov_b32 v26, {MODEW}
    ds_write_b32 v26, v25
    s_waitcnt lgkmcnt(0)
""")
        sbatch(0)
        a("L_nohe:")
    a("    s_waitcnt vmcnt(0)")
    stamp()
    a("    s_barrier                                 ; chunk [20,26)")
    if c.pre_by == "loader":
        a("    s_barrier                                 ; B_mid")
        a(f"    s_mov_b32 s{sT3}, {c.wstride}")
        if not c.no_pre: prefix_next(sT3)
        if c.xt_by == "worker":
            a(f"""    s_cmp_eq_u32 s{sWV}, 5
    s_cbranch_scc0 L_noxt0
    buffer_load_dword v{vDUM}, v21, s[{sWS}:{sWS+3}], s22 offen sc1
L_noxt0:""")
    advance_sb()
    a(f"""
    s_barrier
    s_mov_b32 s{sL}, 1
    s_mov_b32 s{sT3}, {c.wstride}
L_ld_layer:
    s_cmp_lt_u32 s{sL}, 5
    s_cselect_b32 s{sU}, 1, 0
""")
    def guarded(fn, lab):
        if not c.sp: return
        a(f"    s_cmp_eq_u32 s{sU}, 1")
        a(f"    s_cbranch_scc0 {lab}")
        fn()
        a(f"{lab}:")
    if c.ssched != "two":
        guarded(lambda: sbatch(1), "L_sA")
    if not c.no_suf: suffix(vDMA, f"s{sT3}", True, c.phased)
    elif c.phased:
        a("    s_barrier"); a("    s_barrier")
    stamp()
    if c.ssched != "two":
        guarded(lambda: (a("    s_waitcnt lgkmcnt(0)"), sbatch(2)), "L_sB")
    if c.pre_by == "loader": a(f"    s_waitcnt vmcnt({26 - P})                 ; the prefix has landed")
    a("    s_barrier                                 ; B_a")
    if c.ssched == "two":
        guarded(lambda: sbatch(1), "L_sB")
    a("    s_waitcnt vmcnt(0)")
    stamp()
    a("    s_barrier")
    a(f"    s_cmp_lt_u32 s{sL}, 4")
    a(f"    s_cselect_b32 s{sU}, 1, 0")
    guarded(lambda: (a("    s_waitcnt lgkmcnt(0)"), sbatch(0, True)), "L_sC")
    if c.pre_by == "loader":
        a("    s_barrier                                 ; B_mid")
        stamp(3)
        a(f"    s_cmp_lt_u32 s{sL}, 5")
        a(f"    s_cbranch_scc0 L_nopre")
        a(f"    s_add_u32 s{sU}, s{sT3}, {c.wstride}")
        if not c.no_pre: prefix_next(sU)
        a("L_nopre:")
        stamp(3)
    advance_sb()
    a(f"""
    s_barrier                                 ; B2
    s_add_u32 s{sL}, s{sL}, 1
    s_add_u32 s{sT3}, s{sT3}, {c.wstride}
    s_cmp_lt_u32 s{sL}, 6
    s_cbranch_scc1 L_ld_layer
""")
    dump_ts()
    a("    s_endpgm")

    sBI = 84
    sBP = 48
    def bias_load():
        a(f"    s_load_dwordx16 s[{sBI}:{sBI+15}], s[{sBP}:{sBP+1}], 0")
        a(f"    s_add_u32 s{sBP}, s{sBP}, {ROWB}")
        a(f"    s_addc_u32 s{sBP+1}, s{sBP+1}, 0")
    def bias_spread():
        a("    s_mov_b32 exec_hi, 0")
        for q in range(4):
            for d in range(2):
                a(f"    v_mov_b32 v{vBP+2*q+d}, s{sBI+4*q+d}")
        a("    s_mov_b32 exec_lo, 0")
        a("    s_mov_b32 exec_hi, -1")
        for q in range(4):
            for d in range(2):
                a(f"    v_mov_b32 v{vBP+2*q+d}, s{sBI+4*q+2+d}")
        a("    s_mov_b64 exec, -1")
    def bias_unpack(lo=0, hi=8):
        for d in range(lo, hi):
            a(f"    v_lshlrev_b32 v{vAK+2*d}, 16, v{vBP+d}")
            a(f"    v_and_b32 v{vAK+2*d+1}, 0xffff0000, v{vBP+d}")
    a(f"""
L_compute:
    s_load_dwordx2 s[{sE}:{sE+1}], s[50:51], s{sCB}
    s_lshl_b32 s{sT0}, s{sJ}, 7
    s_lshl_b32 s{sT1}, s{sKH}, 6
    s_add_u32 s{sT0}, s{sT0}, s{sT1}
    s_add_u32 s{sBP_}, s44, s{sT0}
    s_addc_u32 s{sBP_+1}, s45, 0
    s_load_dwordx16 s[84:99], s[{sBP_}:{sBP_+1}], 0
    s_load_dword s20, s[{sBP_}:{sBP_+1}], {ROWB}
    s_load_dword s21, s[{sBP_}:{sBP_+1}], {2*ROWB}
    s_load_dword s22, s[{sBP_}:{sBP_+1}], {3*ROWB}
    s_load_dword s23, s[{sBP_}:{sBP_+1}], {4*ROWB}
    s_load_dword s24, s[{sBP_}:{sBP_+1}], {5*ROWB}
    s_add_u32 s{sBP_}, s{sBP_}, {ROWB}
    s_addc_u32 s{sBP_+1}, s{sBP_+1}, 0
    s_setprio {c.prio}
""")
    if c.wwarm:
        a(f"""
    s_sub_u32 s{sT0}, s{sWV}, 1
    s_cmp_lt_u32 s{sT0}, {c.wwarm}
    s_cbranch_scc0 L_noww
    s_mul_i32 s{sT0}, s{sRB}, 13
    s_add_u32 s{sT0}, s{sT0}, s{sJ}
    s_mul_i32 s{sT0}, s{sT0}, {52 * 128}
    s_mul_i32 s{sT1}, s{sWV}, {c.wstride}
    s_add_u32 s20, s{sT0}, s{sT1}
    v_min_u32 v20, 51, v{vL}
    v_lshlrev_b32 v20, 7, v20
    buffer_load_dword v{vDUM}, v20, s[{sW}:{sW+3}], s20 offen
L_noww:""")
    a(f"""
    v_min_u32 v{vT0}, 51, v{vL}
    v_lshlrev_b32 v{vT0}, 3, v{vT0}
    s_add_u32 s{sT0}, s{sCB}, 2048
    v_add_u32 v{vFA}, s{sT0}, v{vT0}
    s_cmp_eq_u32 s{sWV}, 0
    s_cbranch_scc0 L_noft
    buffer_load_dword v{vDUM}, v{vFA}, s[{sWS}:{sWS+3}], 0 offen sc1
L_noft:
    s_lshl_b32 s{sT1}, s{sJ}, 2
    s_add_u32 s{sT1}, s{sT1}, s{sWV}
    s_lshl_b32 s{sT1}, s{sT1}, 3
    s_add_u32 s{sOWNF}, s{sT0}, s{sT1}
    v_min_u32 v{vT0}, 12, v{vL}
    v_lshlrev_b32 v{vT0}, 3, v{vT0}
    s_add_u32 s{sT0}, s{sCB}, 128
    v_add_u32 v{vHA}, s{sT0}, v{vT0}
""")
    srd(sOUT, 46, XLAYER)
    a(f"""
    s_lshl_b32 s{sT0}, s{sRB}, 6
    s_lshl_b32 s{sT1}, s{sMH}, 5
    s_add_u32 s{sT0}, s{sT0}, s{sT1}
    s_mul_i32 s{sT0}, s{sT0}, {ROWB}
    s_lshl_b32 s{sT1}, s{sJ}, 7
    s_add_u32 s{sT0}, s{sT0}, s{sT1}
    s_lshl_b32 s{sT1}, s{sKH}, 6
    s_add_u32 s{sT0}, s{sT0}, s{sT1}
    v_and_b32 v{vT0}, 31, v{vL}
    v_mul_u32_u24 v{vT0}, {ROWB}, v{vT0}
    v_lshrrev_b32 v{vT1}, 5, v{vL}
    v_lshl_add_u32 v{vT0}, v{vT1}, 4, v{vT0}
    v_add_u32 v{vOUT}, s{sT0}, v{vT0}
    v_lshlrev_b32 v{vXO}, 4, v{vL}
    v_add_u32 v{vXO+1}, 0x1000, v{vXO}
    v_add_u32 v{vXO+2}, 0x2000, v{vXO}
    v_add_u32 v{vXO+3}, 0x3000, v{vXO}
    s_mul_i32 s{sT0}, s{sRB}, {XRB}
    s_mul_i32 s{sT1}, s{sMH}, {XMH}
    s_add_u32 s{sT0}, s{sT0}, s{sT1}
    s_add_u32 s{sT0}, s{sT0}, {XBUF}
    s_lshl_b32 s{sT1}, s{sJ}, 2
    s_lshl_b32 s{sT2}, s{sKH}, 1
    s_add_u32 s{sT1}, s{sT1}, s{sT2}
    s_lshl_b32 s{sT1}, s{sT1}, 10
    s_add_u32 s{sXST}, s{sT0}, s{sT1}
""")
    if not c.helpers:
        a(f"""
    v_and_b32 v{vT1}, 15, v{vL}
    v_lshlrev_b32 v{vT1}, 7, v{vT1}
    v_bfe_u32 v{vT2}, v{vL}, 4, 1
    v_mul_u32_u24 v{vT2}, {XBUF >> 8}, v{vT2}
    v_lshl_add_u32 v{vT1}, v{vT2}, 8, v{vT1}
    s_sub_u32 s{sT3}, s{sXST}, {XBUF}
    buffer_load_dword v{vDUM}, v{vT1}, s[{sWS}:{sWS+3}], s{sT3} offen sc1
""")
    a(f"""
    s_mul_i32 s{sT1}, s{sKH}, 26
    s_add_u32 s{sT2}, s{sT1}, s{sROT}
    s_lshl_b32 s{sT2}, s{sT2}, 10
    s_add_u32 s{sXA}, s{sT0}, s{sT2}
    s_add_u32 s{sT2}, s{sT1}, 13
    s_sub_u32 s{sT2}, s{sT2}, s{sROT}
    s_lshl_b32 s{sT2}, s{sT2}, 10
    s_add_u32 s{sXB}, s{sT0}, s{sT2}
    s_mov_b32 s{sXD}, {-XBUF & 0xffffffff}
    s_mov_b32 s{sXD2}, {-XBUF & 0xffffffff}
    ; ---- W prefix bookkeeping for layer 1 (loaded at the end of layer 0)
    s_mul_i32 s{sT0}, s{sKH}, 416
    s_lshl_b32 s{sT1}, s{sROT}, 4
    s_add_u32 s{sT0}, s{sT0}, s{sT1}
    s_lshl_b32 s{sT1}, s{sMH}, 3
    s_add_u32 s{sT0}, s{sT0}, s{sT1}
    s_mul_i32 s{sWP}, s{sT0}, {ROWB}
    s_add_u32 s{sWP}, s{sWP}, {c.wstride}
    s_mul_i32 s{sMP}, s{sKH}, {P*2048}
    s_lshl_b32 s{sT1}, s{sMH}, 10
    s_add_u32 s{sMP}, s{sMP}, s{sT1}
    s_add_u32 s{sMP}, s{sMP}, {PRE1}
    s_mov_b32 s{sPD}, {PREPAR}
    v_lshrrev_b32 v{vT0}, 5, v{vL}            ; h
    v_lshlrev_b32 v{vT0}, 2, v{vT0}
    v_bfe_u32 v{vT1}, v{vL}, 2, 2             ; r
    v_add_u32 v{vT0}, v{vT0}, v{vT1}
    v_lshlrev_b32 v{vT0}, 7, v{vT0}           ; row*128
    v_bfe_u32 v{vT1}, v{vL}, 4, 1             ; nb
    v_lshlrev_b32 v{vT1}, 1, v{vT1}
    v_bfe_u32 v{vT2}, v{vL}, 1, 1             ; c>>1
    v_add_u32 v{vT1}, v{vT1}, v{vT2}
    v_bfe_u32 v{vT2}, v{vL}, 3, 1             ; (r>>1)&1
    v_lshlrev_b32 v{vT2}, 2, v{vT2}
    v_xor_b32 v{vT1}, v{vT1}, v{vT2}
    v_lshlrev_b32 v{vT1}, 4, v{vT1}
    v_add_u32 v{vT0}, v{vT0}, v{vT1}
    v_and_b32 v{vT1}, 1, v{vL}
    v_lshlrev_b32 v{vT1}, 3, v{vT1}
    v_add_u32 v{vT0}, v{vT0}, v{vT1}
    s_lshl_b32 s{sT0}, s{sKH}, 6
    v_xor_b32 v{vT1}, s{sT0}, v{vT0}          ; keep
    v_xor_b32 v{vT2}, 64, v{vT1}              ; send
    s_mul_i32 s{sT0}, s{sKH}, {P*2048}
    v_add_u32 v{vAPK}, s{sT0}, v{vT1}
    v_add_u32 v{vAPS}, s{sT0}, v{vT2}
    s_mul_i32 s{sT0}, s{sKH}, {KHS}
    s_add_u32 s{sT0}, s{sT0}, {SUF}
    v_add_u32 v{vASK}, s{sT0}, v{vT1}
    v_add_u32 v{vASS}, s{sT0}, v{vT2}
    s_lshl_b32 s{sT0}, s{sWV}, 12
    s_add_u32 s{sT0}, s{sT0}, {RED}
    v_add_u32 v{vRW}, s{sT0}, v{vXO}
    s_xor_b32 s{sT1}, s{sWV}, 2
    s_lshl_b32 s{sT1}, s{sT1}, 12
    s_add_u32 s{sT1}, s{sT1}, {RED}
    v_add_u32 v{vRR}, s{sT1}, v{vXO}
    v_lshrrev_b32 v{vT0}, 5, v{vL}
    v_lshlrev_b32 v{vT3}, 3, v{vT0}           ; h*8
    v_and_b32 v{vT0}, 31, v{vL}               ; m
    v_lshrrev_b32 v{vT1}, 3, v{vT0}
    v_lshlrev_b32 v{vT1}, 10, v{vT1}          ; rg*1024
    v_and_b32 v{vT2}, 7, v{vT0}
    v_lshl_add_u32 v{vT1}, v{vT2}, 7, v{vT1}  ; + row8*128
    v_bfe_u32 v{vT2}, v{vT0}, 1, 3            ; f(m)
    s_cmp_ge_u32 s{sJ}, 7
    s_cselect_b32 s{sT0}, 1, 0
    s_mul_i32 s{sT1}, s{sT0}, 6
    s_sub_u32 s{sT1}, s{sJ}, s{sT1}
    s_lshl_b32 s{sT1}, s{sT1}, 12
    s_lshl_b32 s{sT0}, s{sT0}, 1
    s_add_u32 s{sT0}, s{sT0}, s{sMH}
    s_mul_i32 s{sT0}, s{sT0}, 28672
    s_add_u32 s{sT0}, s{sT0}, s{sT1}
    s_add_u32 s{sT0}, s{sT0}, {XS}
    s_lshl_b32 s{sT1}, s{sKH}, 2
    v_add3_u32 v{vT3}, v{vT3}, v{vT1}, s{sT0}
    v_xor_b32 v{vT0}, s{sT1}, v{vT2}          ; (4*nh) ^ f(m)
""")
    for q in range(4):
        a(f"    v_xor_b32 v{vPART+8+q}, {q}, v{vT0}")
        a(f"    v_lshl_add_u32 v{vPART+8+q}, v{vPART+8+q}, 4, v{vT3}")
    a(f"""
    v_lshrrev_b32 v{vT0}, 5, v{vL}
    v_xor_b32 v{vT2}, v{vT2}, v{vT0}          ; f(m) ^ h
    s_mul_i32 s{sT3}, s{sWV}, 28672
    s_add_u32 s{sT3}, s{sT3}, {XS}
    s_mul_i32 s{sI}, s{sKH}, 26
    s_mul_i32 s{sM}, s{sKH}, 6
""")
    for seg in range(2):
        if seg == 0:
            a(f"    s_add_u32 s{sG}, s{sI}, s{sROT}")
        else:
            a(f"    s_add_u32 s{sG}, s{sI}, 13")
            a(f"    s_sub_u32 s{sG}, s{sG}, s{sROT}")
        for x in range(4):
            r = vPART + seg * 4 + x
            a(f"    s_add_u32 s{sT0}, s{sG}, {x}")
            a(f"    s_and_b32 s{sT1}, s{sT0}, 3")
            a(f"    s_lshl_b32 s{sT1}, s{sT1}, 1")
            a(f"    s_lshr_b32 s{sT0}, s{sT0}, 2")
            a(f"    s_sub_u32 s{sT0}, s{sT0}, s{sM}")
            a(f"    s_lshl_b32 s{sT0}, s{sT0}, 12")
            a(f"    s_add_u32 s{sT0}, s{sT0}, s{sT3}")
            a(f"    v_xor_b32 v{r}, s{sT1}, v{vT2}")
            a(f"    v_lshl_add_u32 v{r}, v{r}, 4, v{vT1}")
            a(f"    v_add_u32 v{r}, s{sT0}, v{r}")
    a(f"""
    s_waitcnt lgkmcnt(0)
    s_add_u32 s{sTA}, s{sE}, 1
    s_addc_u32 s{sTA+1}, s{sE+1}, 0
    s_add_u32 s{sTB}, s{sE}, 2
    s_addc_u32 s{sTB+1}, s{sE+1}, 0
    s_cmp_eq_u32 s{sWV}, 0
    s_cbranch_scc0 L_nohello
    s_add_u32 s{sT0}, s{sE}, 8
    s_addc_u32 s{sT1}, s{sE+1}, 0
    s_lshl_b32 s{sT2}, s{sXCC}, 28
    s_xor_b32 s{sT1}, s{sT1}, s{sT2}
    v_mov_b32 v{vPOLL}, s{sT0}
    v_mov_b32 v{vPOLL+1}, s{sT1}
    s_lshl_b32 s{sT2}, s{sJ}, 3
    s_add_u32 s{sT2}, s{sT2}, s{sCB}
    s_add_u32 s{sT2}, s{sT2}, 128
    s_mov_b64 exec, 1
    buffer_store_dwordx2 v[{vPOLL}:{vPOLL+1}], off, s[{sWS}:{sWS+3}], s{sT2} sc1
    s_mov_b64 exec, -1
L_nohello:
""")
    if c.w0assist:
        a(f"""
    s_mul_i32 s{sT0}, s{sKH}, 416
    s_lshl_b32 s{sT1}, s{sROT}, 4
    s_add_u32 s{sT0}, s{sT0}, s{sT1}
    s_mul_i32 s{sT1}, s{sMH}, 14
    s_add_u32 s{sT0}, s{sT0}, s{sT1}
    s_add_u32 s{sT0}, s{sT0}, {P * 16}
    s_mul_i32 s{sT0}, s{sT0}, {ROWB}
    s_lshl_b32 s{sT1}, s{sJ}, 7
    s_add_u32 s{sT0}, s{sT0}, s{sT1}
    s_add_u32 s44, s42, s{sT0}
    s_addc_u32 s45, s43, 0
""")
        for n_ in range(14):
            if n_ == 7: a("    s_waitcnt lgkmcnt(0)")
            a(f"    s_load_dwordx2 s[{20+2*(n_%2)}:{21+2*(n_%2)}], s[44:45], {n_*ROWB + 60}")
    elif c.vwarm:
        nrows = c.SV * 16
        per_rb = nrows // 4
        a(f"""
    s_lshr_b32 s{sT0}, s{sRB}, 2
    s_mul_i32 s{sT0}, s{sT0}, 208             ; range start row: 0, 208, 416, 624
    s_and_b32 s{sT1}, s{sRB}, 3
    s_mul_i32 s{sT1}, s{sT1}, {per_rb}
    s_add_u32 s{sT0}, s{sT0}, s{sT1}
    s_mul_i32 s{sT1}, s{sWV}, {per_rb // 4}
    s_add_u32 s{sT0}, s{sT0}, s{sT1}
    s_mul_i32 s{sT0}, s{sT0}, {ROWB}
    s_lshl_b32 s{sT1}, s{sJ}, 7
    s_add_u32 s{sT0}, s{sT0}, s{sT1}
    s_add_u32 s{sT0}, s{sT0}, {c.wstride}
    s_add_u32 s44, s42, s{sT0}
    s_addc_u32 s45, s43, 0
""")
        nper = per_rb // 4
        vw = [(l, r) for l in range(1, 6) for r in range(nper)][:14]
        def vwarm_batch(k):
            cur = None
            for n_, (l, r) in enumerate(vw[7*k:7*k+7]):
                if cur != l:
                    a(f"    s_add_u32 s46, s44, {(l-1) * c.wstride}")
                    a(f"    s_addc_u32 s47, s45, 0")
                    cur = l
                a(f"    s_load_dwordx2 s[{20+2*(n_%2)}:{21+2*(n_%2)}], s[46:47], {r*ROWB + 60}")
        vwarm_batch(0)
    stamp()
    a("    s_barrier                                 ; B_x: staged x0, prefix(0) and biases have landed")
    stamp()
    for q in range(4):
        a(f"    ds_read_b64 v[{vP+2*q}:{vP+2*q+1}], v{vPART+8+q}")
    for i in range(26):
        seg, ii = (0, i) if i < 13 else (1, i - 13)
        a(f"    ds_read_b128 v[{vXF+4*i}:{vXF+4*i+3}], v{vPART + seg*4 + (ii & 3)} offset:{(ii >> 2) * 4096}")
        if i in (9, 17):
            a("    s_waitcnt lgkmcnt(6)")
    a("    s_waitcnt lgkmcnt(0)")
    a("    s_barrier")
    if c.vwarm and not c.w0assist: vwarm_batch(1)
    stamp()
    for d in range(8):
        a(f"    v_lshlrev_b32 v{vX0F+2*d}, 16, v{vP+d}")
        a(f"    v_and_b32 v{vX0F+2*d+1}, 0xffff0000, v{vP+d}")
    bias_spread()
    bias_unpack()
    for r in range(16):
        a(f"    v_mov_b32 v{vXR+r}, v{vX0F+r}")
    a(f"    s_mov_b32 s{sL}, 0")
    a("    s_barrier                                 ; B_p: prefix of layer 0 has landed")
    stamp()

    def xload(i):
        if c.no_x:
            a("    s_nop 0"); return
        seg = sXA if i < 13 else sXB
        ii = i % 13
        a(f"    buffer_load_dwordx4 v[{vXF+4*i}:{vXF+4*i+3}], v{vXO+(ii>>2)}, s[{sWS}:{sWS+3}], s{seg} offen offset:{(ii&3)*1024} sc1")
    def rd(i, which):
        if c.no_w: return
        st = vWF + 8 * (i % nsets)
        if i < P: k, s_, off = vAPK, vAPS, i * 2048
        else: k, s_, off = vASK, vASS, (i - P) * 2048
        if which == "s":
            a(f"    ds_read_b64_tr_b16 v[{st}:{st+1}], v{s_} offset:{off}")
            a(f"    ds_read_b64_tr_b16 v[{st+2}:{st+3}], v{s_} offset:{off+1024}")
        else:
            a(f"    ds_read_b64_tr_b16 v[{st+4}:{st+5}], v{k} offset:{off}")
            a(f"    ds_read_b64_tr_b16 v[{st+6}:{st+7}], v{k} offset:{off+1024}")
    def pref_sched(i):
        if c.presched == "spread":
            t = i - (26 - P)
            return [t] if 0 <= t < P else []
        k = i - (26 - D)
        if k < 0: return []
        per_ = -(-P // D)
        return [t for t in range(k * per_, min(P, (k + 1) * per_))]
    def kloop(first):
        ops = []
        if first:
            for i in range(PF):
                rd(i, "s"); rd(i, "k")
        else:
            xload(0); ops.append(("x", 0))
            rd(0, "s"); rd(0, "k")
            xload(1); ops.append(("x", 1))
            rd(1, "s"); rd(1, "k")
            nrest = D - 2
            cuts = [8 * k // nrest for k in range(nrest + 1)]
            for k in range(nrest):
                bias_unpack(cuts[k], cuts[k + 1])
                xload(2 + k); ops.append(("x", 2 + k))
        bars = [P, 13, 20] if first else [P]
        assert P < 13
        marks = [0, 1, 2, 4, 8, 12, 16, 20, 25]
        for i in range(26):
            a(f"    ; ---- step {i}")
            if TS == 4 and not first and i in marks:
                a(f"    s_memtime s[{80 + 2*marks.index(i)}:{81 + 2*marks.index(i)}]")
            young = sum(4 for t in range(i + 1, min(i + PF - 1, 25) + 1))
            if first:
                a(f"    s_waitcnt lgkmcnt({young})")
            else:
                nv = len(ops) - 1 - ops.index(("x", i))
                a(f"    s_waitcnt vmcnt({nv}) lgkmcnt({young})")
            st = vWF + 8 * (i % nsets)
            xf = vXF + 4 * i
            cs = "0" if i == 0 else f"v[{vAS}:{vAS+15}]"
            a(f"    v_mfma_f32_32x32x16_bf16 v[{vAS}:{vAS+15}], v[{st}:{st+3}], v[{xf}:{xf+3}], {cs}")
            if i + PF in bars:
                a("    s_barrier")
            if first and i == c.hello_step and c.hello_by != 'loader':
                a(f"    buffer_load_dwordx2 v[{vPOLL}:{vPOLL+1}], v{vHA}, s[{sWS}:{sWS+3}], 0 offen sc1")
            if not first and i + D < 26:
                xload(i + D); ops.append(("x", i + D))
            if c.pre_by == "loader":
                if i == c.mid_step: a("    s_barrier                                 ; B_mid: the x loads are all issued")
                if i == c.prog_step and c.prog_at == "mid":
                    lab = "L_noprogA" if first else "L_noprogB"
                    a(f"""    s_or_b32 s{sT0}, s{sJ}, s{sWV}
    s_cmp_eq_u32 s{sT0}, 0
    s_cbranch_scc0 {lab}
    v_mov_b32 v{vPOL2}, s{sTA}
    v_mov_b32 v{vPOL2+1}, s{sTA+1}
    s_add_u32 s{sT0}, s{sCB}, 3072
    buffer_store_dwordx2 v[{vPOL2}:{vPOL2+1}], off, s[{sWS}:{sWS+3}], s{sT0}
{lab}:""")
            else:
                for t in ([] if c.no_pre else pref_sched(i)):
                    a(f"    s_add_u32 m0, s{sMP}, {t*2048}")
                    a(f"    s_add_u32 s{sT0}, s{sWP}, {t*26624}")
                    a(f"    buffer_load_dwordx4 v{vDMA}, s[{sW}:{sW+3}], s{sT0} offen lds")
                    ops.append(("w", t))
            if i + PF < 26: rd(i + PF, "s")
            a(f"    v_mfma_f32_32x32x16_bf16 v[{vAK}:{vAK+15}], v[{st+4}:{st+7}], v[{xf}:{xf+3}], v[{vAK}:{vAK+15}]")
            if i + PF < 26: rd(i + PF, "k")
        return len([o for o in ops if o[0] == "w"])
    npre = kloop(True)
    if c.hello_by == "loader":
        a(f"""    v_mov_b32 v{vT0}, {MODEW}
    ds_read_b32 v{vT1}, v{vT0}
    s_waitcnt lgkmcnt(0)
    v_readfirstlane_b32 s{sMODE}, v{vT1}""")
        a(f"""
    s_cmp_eq_u32 s{sMODE}, 0
    s_cbranch_scc1 L_hello_slow
    s_and_b32 s{sMODE}, s{sMODE}, {0 if c.force_slow else 1}
    s_branch L_tail
L_hello_slow:
    buffer_load_dwordx2 v[{vPOLL}:{vPOLL+1}], v{vHA}, s[{sWS}:{sWS+3}], 0 offen sc1""")
    a(f"""
    s_add_u32 s{sT0}, s{sE}, 8
    s_addc_u32 s{sT1}, s{sE+1}, 0
    s_mov_b32 s{sSPIN}, 0
    s_waitcnt vmcnt({0 if c.hello_by == "loader" else npre})
    s_and_b32 s{sT2}, s{sT1}, 0x0fffffff
    s_lshl_b32 s{sT3}, s{sXCC}, 28
    s_xor_b32 s{sT3}, s{sT1}, s{sT3}
L_hello:
    v_and_b32 v{vT0}, 0x0fffffff, v{vPOLL+1}
    v_cmp_eq_u32 vcc, s{sT0}, v{vPOLL}
    v_cmp_eq_u32 s[{sMK}:{sMK+1}], s{sT2}, v{vT0}
    s_and_b64 vcc, vcc, s[{sMK}:{sMK+1}]
    s_cmp_eq_u64 vcc, -1
    s_cbranch_scc1 L_hello_ok
    s_add_u32 s{sSPIN}, s{sSPIN}, 1
    s_cmp_gt_u32 s{sSPIN}, {c.spin_max}
    s_cbranch_scc1 L_end
    buffer_load_dwordx2 v[{vPOLL}:{vPOLL+1}], v{vHA}, s[{sWS}:{sWS+3}], 0 offen sc1
    s_waitcnt vmcnt(0)
    s_branch L_hello
L_hello_ok:
    v_cmp_eq_u32 vcc, s{sT3}, v{vPOLL+1}
    s_cmp_eq_u64 vcc, -1
    s_cselect_b32 s{sMODE}, {0 if c.force_slow else 1}, 0
    s_branch L_tail
""")
    assert sT1 == sT0 + 1 and sT0 % 2 == 0
    a("L_layer:")
    if c.amp and c.amp[0] == "start":
        a(f"""    s_cmp_eq_u32 s{sL}, 1
    s_cbranch_scc0 L_amp1
    s_memtime s[26:27]
    s_waitcnt lgkmcnt(0)
    s_sub_u32 s25, s26, s100
L_amp1:""")
    stamp(1)
    a("    s_barrier                                 ; B_a")
    stamp()
    kloop(False)
    if TS == 4:
        a("    s_memtime s[98:99]")
        a("    s_waitcnt lgkmcnt(0)")
        for k in range(10):
            a(f"    s_mov_b32 m0, s{sTSI}")
            a(f"    s_nop 0")
            a(f"    v_writelane_b32 v{vTS}, s{80+2*k}, m0")
            a(f"    s_add_u32 s{sTSI}, s{sTSI}, 1")
    a("L_tail:")
    if c.amp and c.amp[0] == "l0k":
        a(f"""    s_cmp_eq_u32 s{sL}, 0
    s_cbranch_scc0 L_amp2
    s_memtime s[26:27]
    s_waitcnt lgkmcnt(0)
    s_sub_u32 s25, s26, s100
L_amp2:""")
    if TS in (2, 3):
        a("    s_nop 15")
        stamp()
    a(f"    v_mov_b32 v{vFV}, s{sTA}")
    a(f"    v_mov_b32 v{vFV+1}, s{sTA+1}")
    a("    s_nop 8")
    for q in range(4):
        a(f"    ds_write_b128 v{vRW}, v[{vAS+4*q}:{vAS+4*q+3}] offset:{q*1024}")
    a("    s_waitcnt lgkmcnt(0)")
    a("    s_barrier                                 ; B2")
    stamp(3)
    for q in range(4):
        a(f"    ds_read_b128 v[{vPART+4*q}:{vPART+4*q+3}], v{vRR} offset:{q*1024}")
    def epi(q):
        a(f"    s_waitcnt lgkmcnt({3-q})")
        for p in range(2):
            r = 4 * q + 2 * p
            a(f"    v_pk_add_f32 v[{vAK+r}:{vAK+r+1}], v[{vAK+r}:{vAK+r+1}], v[{vPART+r}:{vPART+r+1}]")
        for p in range(2):
            r = 4 * q + 2 * p
            a(f"    v_pk_fma_f32 v[{vAK+r}:{vAK+r+1}], v[{vX0F+r}:{vX0F+r+1}], v[{vAK+r}:{vAK+r+1}], v[{vXR+r}:{vXR+r+1}]")
        for p in range(2):
            r = 4 * q + 2 * p
            a(f"    v_cvt_pk_bf16_f32 v{vP+2*q+p}, v{vAK+r}, v{vAK+r+1}")
    a(f"""
    s_cmp_eq_u32 s{sL}, 5
    s_cbranch_scc1 L_final
    s_cmp_eq_u32 s{sMODE}, 0
    s_cbranch_scc1 L_st_slow
""")
    epi(0); epi(1)
    a(f"    buffer_store_dwordx4 v[{vP}:{vP+3}], v{vXO}, s[{sWS}:{sWS+3}], s{sXST} offen")
    epi(2); epi(3)
    a(f"    buffer_store_dwordx4 v[{vP+4}:{vP+7}], v{vXO}, s[{sWS}:{sWS+3}], s{sXST} offen offset:1024")
    if c.phased: a("    s_barrier                                 ; B_s")
    stamp(3)
    def unpack_res():
        for d in range(8):
            a(f"    v_lshlrev_b32 v{vXR+2*d}, 16, v{vP+d}")
            a(f"    v_and_b32 v{vXR+2*d+1}, 0xffff0000, v{vP+d}")
    bias_load()
    unpack_res()
    a(f"""
    s_waitcnt vmcnt(0)
    buffer_store_dwordx2 v[{vFV}:{vFV+1}], off, s[{sWS}:{sWS+3}], s{sOWNF}
    s_branch L_st_done
L_st_slow:
""")
    epi(0); epi(1); epi(2); epi(3)
    a(f"""
    buffer_store_dwordx4 v[{vP}:{vP+3}], v{vXO}, s[{sWS}:{sWS+3}], s{sXST} offen sc1
    buffer_store_dwordx4 v[{vP+4}:{vP+7}], v{vXO}, s[{sWS}:{sWS+3}], s{sXST} offen offset:1024 sc1
""")
    if c.phased: a("    s_barrier                                 ; B_s")
    stamp(3)
    bias_load()
    unpack_res()
    a(f"""
    s_waitcnt vmcnt(0)
    buffer_store_dwordx2 v[{vFV}:{vFV+1}], off, s[{sWS}:{sWS+3}], s{sOWNF} sc1
L_st_done:
""")
    stamp()
    if c.onepoll:
        a(f"""
    s_cmp_eq_u32 s{sWV}, 0
    s_cbranch_scc0 L_nopoll1""")
    a(f"""
    buffer_load_dwordx2 v[{vPOLL}:{vPOLL+1}], v{vFA}, s[{sWS}:{sWS+3}], 0 offen sc1
L_nopoll1:
    {"s_barrier                                 ; B_f" if c.phased else ""}
""")
    def progress(lab):
        a(f"""    s_or_b32 s{sT0}, s{sJ}, s{sWV}
    s_cmp_eq_u32 s{sT0}, 0
    s_cbranch_scc0 {lab}
    s_add_u32 s{sT0}, s{sCB}, 3072
    buffer_store_dwordx2 v[{vFV}:{vFV+1}], off, s[{sWS}:{sWS+3}], s{sT0}
{lab}:""")
    if c.prog_at == "end": progress("L_noprog")
    a(f"""
    s_add_u32 s{sL}, s{sL}, 1
    s_cmp_eq_u32 s{sL}, 1
    s_cbranch_scc1 L_keep_xa
    s_add_u32 s{sXA}, s{sXA}, s{sXD}
    s_add_u32 s{sXB}, s{sXB}, s{sXD}
    s_sub_u32 s{sXD}, 0, s{sXD}
L_keep_xa:
    s_add_u32 s{sXST}, s{sXST}, s{sXD2}
    s_sub_u32 s{sXD2}, 0, s{sXD2}
    s_add_u32 s{sWP}, s{sWP}, {c.wstride}
    s_sub_u32 s{sMP}, s{sMP}, s{sPD}
    v_add_u32 v{vAPK}, s{sPD}, v{vAPK}
    v_add_u32 v{vAPS}, s{sPD}, v{vAPS}
    s_sub_u32 s{sPD}, 0, s{sPD}
    s_mov_b32 s{sSPIN}, 0
""")
    a("    s_waitcnt lgkmcnt(0)")
    bias_spread()
    if c.onepoll:
        a(f"""
    s_cmp_eq_u32 s{sWV}, 0
    s_cbranch_scc0 L_ready""")
    if c.poll2:
        a(f"""L_poll:
    buffer_load_dwordx2 v[{vPOL2}:{vPOL2+1}], v{vFA}, s[{sWS}:{sWS+3}], 0 offen sc1
    s_waitcnt vmcnt(1)
    v_cmp_eq_u64 vcc, s[{sTA}:{sTA+1}], v[{vPOLL}:{vPOLL+1}]
    v_cmp_eq_u64 s[{sMK}:{sMK+1}], s[{sTB}:{sTB+1}], v[{vPOLL}:{vPOLL+1}]
    s_or_b64 vcc, vcc, s[{sMK}:{sMK+1}]
    s_cmp_eq_u64 vcc, -1
    s_cbranch_scc1 L_ready
    buffer_load_dwordx2 v[{vPOLL}:{vPOLL+1}], v{vFA}, s[{sWS}:{sWS+3}], 0 offen sc1
    s_waitcnt vmcnt(1)
    v_cmp_eq_u64 vcc, s[{sTA}:{sTA+1}], v[{vPOL2}:{vPOL2+1}]
    v_cmp_eq_u64 s[{sMK}:{sMK+1}], s[{sTB}:{sTB+1}], v[{vPOL2}:{vPOL2+1}]
    s_or_b64 vcc, vcc, s[{sMK}:{sMK+1}]
    s_cmp_eq_u64 vcc, -1
    s_cbranch_scc1 L_ready
    s_add_u32 s{sSPIN}, s{sSPIN}, 1
    s_cmp_gt_u32 s{sSPIN}, {c.spin_max}
    s_cbranch_scc0 L_poll
    s_endpgm
""")
    else:
        a(f"""L_poll:
    s_waitcnt vmcnt(0)
    v_cmp_eq_u64 vcc, s[{sTA}:{sTA+1}], v[{vPOLL}:{vPOLL+1}]
    v_cmp_eq_u64 s[{sMK}:{sMK+1}], s[{sTB}:{sTB+1}], v[{vPOLL}:{vPOLL+1}]
    s_or_b64 vcc, vcc, s[{sMK}:{sMK+1}]
    s_cmp_eq_u64 vcc, -1
    s_cbranch_scc1 L_ready
    buffer_load_dwordx2 v[{vPOLL}:{vPOLL+1}], v{vFA}, s[{sWS}:{sWS+3}], 0 offen sc1
    s_add_u32 s{sSPIN}, s{sSPIN}, 1
    s_cmp_gt_u32 s{sSPIN}, {c.spin_max}
    s_cbranch_scc0 L_poll
    s_endpgm
""")
    a(f"""L_ready:
    s_add_u32 s{sTA}, s{sTA}, 1
    s_addc_u32 s{sTA+1}, s{sTA+1}, 0
    s_add_u32 s{sTB}, s{sTB}, 1
    s_addc_u32 s{sTB+1}, s{sTB+1}, 0
    s_branch L_layer
L_final:
""")
    epi(0); epi(1); epi(2); epi(3)
    a(f"""
    s_nop 1
    v_permlane32_swap_b32 v{vP}, v{vP+2}
    v_permlane32_swap_b32 v{vP+1}, v{vP+3}
    v_permlane32_swap_b32 v{vP+4}, v{vP+6}
    v_permlane32_swap_b32 v{vP+5}, v{vP+7}
    buffer_store_dwordx4 v[{vP}:{vP+3}], v{vOUT}, s[{sOUT}:{sOUT+3}], 0 offen
    buffer_store_dwordx4 v[{vP+4}:{vP+7}], v{vOUT}, s[{sOUT}:{sOUT+3}], 0 offen offset:32
    s_or_b32 s{sT0}, s{sJ}, s{sWV}
    s_cmp_eq_u32 s{sT0}, 0
    s_cbranch_scc0 L_noepoch
    s_add_u32 s{sT0}, s{sE}, 16
    s_addc_u32 s{sT1}, s{sE+1}, 0
    v_mov_b32 v{vFV}, s{sT0}
    v_mov_b32 v{vFV+1}, s{sT1}
    s_mov_b64 exec, 1
    buffer_store_dwordx2 v[{vFV}:{vFV+1}], off, s[{sWS}:{sWS+3}], s{sCB} sc1
    s_mov_b64 exec, -1
L_noepoch:
""")
    if c.amp:
        if c.amp[0] == "total":
            a("""    s_memtime s[26:27]
    s_waitcnt lgkmcnt(0)
    s_sub_u32 s25, s26, s100""")
        a(f"""    s_cmp_eq_u32 s2, 0
    s_cbranch_scc0 L_amp9
    s_mul_i32 s25, s25, {c.amp[1]}
    s_memtime s[80:81]
    s_waitcnt lgkmcnt(0)
L_ampspin:
    s_memtime s[82:83]
    s_waitcnt lgkmcnt(0)
    s_sub_u32 s82, s82, s80
    s_cmp_lt_u32 s82, s25
    s_cbranch_scc1 L_ampspin
L_amp9:""")
    if c.exp_delay or c.exp_rt:
        ins = "s_memtime" if c.exp_delay else "s_memrealtime"
        a(f"""
    {ins} s[80:81]
    s_waitcnt lgkmcnt(0)
L_expd:
    {ins} s[82:83]
    s_waitcnt lgkmcnt(0)
    s_sub_u32 s82, s82, s80
    s_cmp_lt_u32 s82, {c.exp_delay or c.exp_rt}
    s_cbranch_scc1 L_expd
""")
    stamp(1); dump_ts()
    a("    s_endpgm")

    if c.helpers:
        HPR = (c.SV * 16 + (2 * NSR if c.sp else 0)) if c.hp is None else c.hp * 16
        HP = HPR // 16
        nrow = 208 - HPR
        nline = nrow * 13
        tot = 4 * nline
        nins = (tot + 63) // 64
        cdelta = HPR * ROWB
        NK = -(-nins // 48)
        HF = 1 if ((c.h0 == 'prefix' or c.w0assist) and c.hfirst == 0) else c.hfirst
        a(f"""
L_helper:
""")
        if c.probe:
            a(f"""
    s_cmp_eq_u32 s2, 208
    s_cbranch_scc0 L_noprobe
    s_cmp_eq_u32 s{sWV}, 0
    s_cbranch_scc0 L_noprobe
    s_mov_b32 s20, {c.probe_off + 16384}
    buffer_load_dword v30, off, s[{sW}:{sW+3}], s20
    s_waitcnt vmcnt(0)
    s_mov_b32 s20, {c.probe_off}
    s_memtime s[22:23]
    s_waitcnt lgkmcnt(0)
    buffer_load_dword v30, off, s[{sW}:{sW+3}], s20
    s_waitcnt vmcnt(0)
    s_memtime s[24:25]
    s_waitcnt lgkmcnt(0)
    s_sub_u32 s24, s24, s22
    s_mul_i32 s24, s24, {c.probe}
L_pspin:
    s_memtime s[26:27]
    s_waitcnt lgkmcnt(0)
    s_sub_u32 s26, s26, s22
    s_cmp_lt_u32 s26, s24
    s_cbranch_scc1 L_pspin
    s_endpgm
L_noprobe:""")
        a(f"""
    ; L2 prefetch for the workers of this die (placement assumed for speed only): one dword per 128-byte line
    s_sub_u32 s{sT0}, s2, 208
    s_and_b32 s{sT1}, s{sT0}, 7
    s_lshr_b32 s{sT0}, s{sT0}, 3
    s_lshl_b32 s{sT0}, s{sT0}, 3
    s_add_u32 s{sT0}, s{sT0}, s{sWV}          ; g = 0..47
    s_lshl_b32 s{sCB}, s{sT1}, 13
    s_add_u32 s{sCB}, s{sCB}, {CTRL}
    s_load_dwordx2 s[{sE}:{sE+1}], s[50:51], s{sCB}
    s_add_u32 s{sOWNF}, s{sCB}, 3072
""")
        if c.tlbwarm:
            a(f"""
    s_cmp_eq_u32 s{sWV}, 7
    s_cbranch_scc0 L_notlb
""")
            k_ = 0
            for base, offs in ((46, [0, XLAYER - 64]), (50, [0, XBUF - 64, XBUF + (1 << 20), 2 * XBUF - 64, 2 * XBUF + 65536 - 64]),
                               (42, [1 << 21, 2 << 21, 3 << 21, L_ * WLAYER - 64])):
                for off in offs:
                    a(f"""    s_add_u32 s24, s{base}, {off}
    s_addc_u32 s25, s{base+1}, 0
    s_load_dword s{76+k_}, s[24:25], 0""")
                    k_ += 1
            a("L_notlb:")
        a(f"""
    ; exchange-buffer lines of the die's two row blocks: {2*XRB//128} lines
    s_mul_i32 s{sG}, s{sT1}, {2*XRB}
    s_lshl_b32 s{sI}, s{sT0}, 13
    s_add_u32 s{sG}, s{sG}, s{sI}
    v_lshlrev_b32 v19, 7, v{vL}
    v_add_u32 v19, s{sG}, v19
    s_cmp_lt_u32 s{sT0}, {-(-2*XRB // 8192)}
    s_cselect_b32 s{sM}, 1, 0
""")
        def lane_addr(vdst, nline_, base0, delta):
            tot_ = 4 * nline_
            a(f"""
    s_lshl_b32 s{sI}, s{sI}, 6
    v_add_u32 v{vT0}, s{sI}, v{vL}
    v_mov_b32 v{vT1}, {base0}
    v_cmp_le_u32 vcc, {nline_}, v{vT0}
    v_mov_b32 v{vT2}, 0
    v_mov_b32 v{vT3}, {delta}
    v_cndmask_b32 v{vT2}, v{vT2}, v{vT3}, vcc
    v_add_u32 v{vT1}, v{vT1}, v{vT2}
    v_cmp_le_u32 vcc, {2*nline_}, v{vT0}
    v_mov_b32 v{vT2}, 0
    s_nop 0
    v_cndmask_b32 v{vT2}, v{vT2}, v{vT3}, vcc
    v_add_u32 v{vT1}, v{vT1}, v{vT2}
    v_cmp_le_u32 vcc, {3*nline_}, v{vT0}
    v_mov_b32 v{vT2}, 0
    s_nop 0
    v_cndmask_b32 v{vT2}, v{vT2}, v{vT3}, vcc
    v_add_u32 v{vT1}, v{vT1}, v{vT2}
    v_lshl_add_u32 v{vdst}, v{vT0}, 7, v{vT1}
    v_cmp_le_u32 vcc, {tot_}, v{vT0}
    v_mov_b32 v{vT2}, 0x7ffffff0
    s_nop 0
    v_cndmask_b32 v{vdst}, v{vdst}, v{vT2}, vcc""")
        def need_set(vbase, skip_rows, nrows):
            tot_ = nrows * 52
            nins_ = (tot_ + 63) // 64
            nk = -(-nins_ // 48)
            for k in range(nk):
                a(f"""
    s_add_u32 s{sI}, s{sT0}, {48*k}
    s_lshl_b32 s{sI}, s{sI}, 6
    v_add_u32 v{vT0}, s{sI}, v{vL}
    v_mul_u32_u24 v{vT1}, 80660, v{vT0}
    v_lshrrev_b32 v{vT1}, 22, v{vT1}
    v_mul_u32_u24 v{vT2}, 52, v{vT1}
    v_sub_u32 v{vT2}, v{vT0}, v{vT2}          ; rem
    v_mul_u32_u24 v{vT3}, 5042, v{vT2}
    v_lshrrev_b32 v{vT3}, 16, v{vT3}
    v_mul_u32_u24 v{vbase+k}, 13, v{vT3}
    v_sub_u32 v{vT2}, v{vT2}, v{vbase+k}
    v_mul_u32_u24 v{vT3}, 208, v{vT3}
    v_add_u32 v{vT1}, v{vT1}, v{vT3}
    v_add_u32 v{vT1}, {skip_rows}, v{vT1}     ; row
    v_mul_u32_u24 v{vT1}, {ROWB}, v{vT1}
    v_lshl_add_u32 v{vbase+k}, v{vT2}, 7, v{vT1}
    v_cmp_le_u32 vcc, {tot_}, v{vT0}
    v_mov_b32 v{vT2}, 0x7ffffff0
    s_nop 0
    v_cndmask_b32 v{vbase+k}, v{vbase+k}, v{vT2}, vcc""")
            return nk
        def addr_set(vbase, nline_, base0, delta, tag):
            tot_ = 4 * nline_
            nins_ = (tot_ + 63) // 64
            nk = -(-nins_ // 48)
            a(f"    s_mul_i32 s{sT2}, s{sT1}, {nins_ // 8}")
            for k in range(nk):
                a(f"""
    s_add_u32 s{sT3}, s{sT0}, {48*k}
    s_add_u32 s{sI}, s{sT3}, s{sT2}
    s_cmp_ge_u32 s{sI}, {nins_}
    s_cselect_b32 s{sG}, {nins_}, 0
    s_sub_u32 s{sI}, s{sI}, s{sG}
    s_cmp_ge_u32 s{sT3}, {nins_}
    s_cselect_b32 s{sI}, {nins_ + 8}, s{sI}   ; no k-th instruction -> past the end""")
                lane_addr(vbase + k, nline_, base0, delta)
            return nk
        NK0 = 0
        if c.w0assist and c.hfirst == 0:
            skip0 = P * 16 + 60
            NK0 = addr_set(40, (208 - skip0) * 13, skip0 * ROWB, skip0 * ROWB, "p")
            for k in range(NK0):
                a(f"    buffer_load_dword v{50+k}, v{40+k}, s[{sW}:{sW+3}], 0 offen")
        elif c.h0 == "prefix" and c.hfirst == 0:
            NK0 = addr_set(40, HP * 16 * 13, 0, (13 - HP) * 26624, "p")
            for k in range(NK0):
                a(f"    buffer_load_dword v{50+k}, v{40+k}, s[{sW}:{sW+3}], 0 offen")
        if c.horder == "need": need_set(10, HPR, nrow)
        else: addr_set(10, nline, cdelta, cdelta, "h")
        nshare_l = tot // 8
        NW_ = 14
        if c.hwarm:
            a(f"""
    s_mul_i32 s{sI}, s{sT1}, {nshare_l}
    s_mul_i32 s{sG}, s{sT0}, {NW_}
    s_add_u32 s{sI}, s{sI}, s{sG}
    s_mov_b32 s{sG}, {cdelta}
    s_cmp_ge_u32 s{sI}, {nline}
    s_cselect_b32 s{sT3}, {cdelta}, 0
    s_add_u32 s{sG}, s{sG}, s{sT3}
    s_cmp_ge_u32 s{sI}, {2*nline}
    s_cselect_b32 s{sT3}, {cdelta}, 0
    s_add_u32 s{sG}, s{sG}, s{sT3}
    s_cmp_ge_u32 s{sI}, {3*nline}
    s_cselect_b32 s{sT3}, {cdelta}, 0
    s_add_u32 s{sG}, s{sG}, s{sT3}
    s_lshl_b32 s{sI}, s{sI}, 7
    s_add_u32 s{sI}, s{sI}, s{sG}
    s_add_u32 s{sI}, s{sI}, {c.wstride}
    s_add_u32 s44, s42, s{sI}                 ; layer 1
    s_addc_u32 s45, s43, 0""")
        if c.hvec_warm:
            a(f"""
    ; memory-side cache warm-up: lines [die*1352, +1352) of a later layer, one line per lane; waves g < 22 (and g - 22 < 22 at the start)
    s_cmp_ge_u32 s{sT0}, 22
    s_cselect_b32 s{sG}, 22, 0
    s_cselect_b32 s{sWG}, 1, 0
    s_sub_u32 s{sG}, s{sT0}, s{sG}
    s_lshl_b32 s{sG}, s{sG}, 6
    s_mul_i32 s{sI}, s{sT1}, 1352
    s_add_u32 s{sI}, s{sI}, s{sG}
    v_add_u32 v{vT0}, s{sI}, v{vL}
    v_lshlrev_b32 v18, 7, v{vT0}
    v_add_u32 v{vT1}, s{sG}, v{vL}
    v_cmp_le_u32 vcc, 1352, v{vT1}
    v_mov_b32 v{vT2}, 0x7ffffff0
    s_nop 0
    v_cndmask_b32 v18, v18, v{vT2}, vcc""")
        nv_l = c.SV * 16 * 52 // 8
        if c.hvwarm:
            a(f"""
    s_mul_i32 s{sI}, s{sT1}, {nv_l}
    s_mul_i32 s{sG}, s{sT0}, 7
    s_min_u32 s{sG}, s{sG}, {nv_l - 7}
    s_add_u32 s{sI}, s{sI}, s{sG}
    s_mov_b32 s{sG}, 0
    s_cmp_ge_u32 s{sI}, {c.SV * 16 * 13}
    s_cselect_b32 s{sT3}, {(208 - c.SV * 16) * ROWB}, 0
    s_add_u32 s{sG}, s{sG}, s{sT3}
    s_cmp_ge_u32 s{sI}, {2 * c.SV * 16 * 13}
    s_cselect_b32 s{sT3}, {(208 - c.SV * 16) * ROWB}, 0
    s_add_u32 s{sG}, s{sG}, s{sT3}
    s_cmp_ge_u32 s{sI}, {3 * c.SV * 16 * 13}
    s_cselect_b32 s{sT3}, {(208 - c.SV * 16) * ROWB}, 0
    s_add_u32 s{sG}, s{sG}, s{sT3}
    s_lshl_b32 s{sI}, s{sI}, 7
    s_add_u32 s{sI}, s{sI}, s{sG}
    s_add_u32 s{sI}, s{sI}, {c.wstride}
    s_add_u32 s46, s42, s{sI}                 ; layer 1
    s_addc_u32 s47, s43, 0""")
        if NK0 and c.hwarm:
            a("    s_waitcnt lgkmcnt(0)")
            for half in range(2):
                if half: a("    s_waitcnt lgkmcnt(0)")
                for n_ in range(7 * half, 7 * half + 7):
                    a(f"    s_load_dwordx2 s[{76+2*(n_%7)}:{77+2*(n_%7)}], s[44:45], {n_*128 + 60}")
            a(f"    s_add_u32 s44, s44, {c.wstride}")
            a(f"    s_addc_u32 s45, s45, 0")
        if NK0:
            a(f"""
    s_waitcnt vmcnt(0)
    s_barrier
    s_cmp_eq_u32 s{sM}, 1
    s_cbranch_scc0 L_hx1
    s_mov_b32 s{sI}, {XBUF}
    buffer_load_dword v30, v19, s[{sWS}:{sWS+3}], s{sI} offen sc1
L_hx1:
""")
        a(f"""
    v_mov_b32 v20, 0
    s_mov_b32 s{sL}, {HF}
    s_mov_b32 s{sT3}, {HF * c.wstride}
    s_waitcnt lgkmcnt(0)
L_h_layer:
""")
        if c.hpace:
            a(f"""
    ; before layer m wait (bounded) until the workers have finished layer m-{c.hlook}
    s_cmp_lt_u32 s{sL}, {c.hlook}
    s_cbranch_scc1 L_h_go
    s_cmp_eq_u32 s{sWV}, 0
    s_cbranch_scc0 L_h_bar
    s_mov_b32 s{sSPIN}, 0
L_h_poll:
    buffer_load_dwordx2 v[16:17], v20, s[{sWS}:{sWS+3}], s{sOWNF} offen sc1
    s_waitcnt vmcnt(0)
    v_readfirstlane_b32 s{sTA}, v16
    v_readfirstlane_b32 s{sTA+1}, v17
    s_sub_u32 s{sTA}, s{sTA}, s{sE}
    s_subb_u32 s{sTA+1}, s{sTA+1}, s{sE+1}
    s_cmp_eq_u32 s{sTA+1}, 0
    s_cselect_b32 s{sTA}, s{sTA}, 0
    s_cmp_gt_u32 s{sTA}, 6
    s_cselect_b32 s{sTA}, 0, s{sTA}
    s_add_u32 s{sTA}, s{sTA}, {c.hlook - 1}
    s_cmp_ge_u32 s{sTA}, s{sL}
    s_cbranch_scc1 L_h_bar
    s_add_u32 s{sSPIN}, s{sSPIN}, 1
    s_cmp_lt_u32 s{sSPIN}, 32
    s_cbranch_scc1 L_h_poll
L_h_bar:
    s_barrier
L_h_go:
""")
        def hw_batch(k, lab):
            if not c.hwarm: return
            a(f"    s_cmp_lt_u32 s{sL}, 5")
            a(f"    s_cbranch_scc0 {lab}")
            if not c.hw0:
                a(f"    s_cmp_eq_u32 s{sL}, 0")
                a(f"    s_cbranch_scc1 {lab}")
            a("    s_waitcnt lgkmcnt(0)")
            for n_ in range(7 * k, 7 * k + 7):
                a(f"    s_load_dwordx2 s[{76+2*(n_%7)}:{77+2*(n_%7)}], s[44:45], {n_*128 + 60}")
            a(f"{lab}:")
        def vec_warm(lab):
            A_ = c.hvw_ahead
            a(f"    s_cmp_eq_u32 s{sWG}, 1")
            a(f"    s_cbranch_scc1 {lab}_b")
            a(f"    s_add_u32 s{sI}, s{sL}, {A_}")
            a(f"    s_cmp_le_u32 s{sI}, 5")
            a(f"    s_cbranch_scc0 {lab}")
            if c.wwarm:
                a(f"    s_cmp_gt_u32 s{sI}, {c.wwarm}")
                a(f"    s_cbranch_scc0 {lab}")
            a(f"    s_add_u32 s{sI}, s{sT3}, {A_ * c.wstride}")
            a(f"    buffer_load_dword v29, v18, s[{sW}:{sW+3}], s{sI} offen")
            a(f"    s_branch {lab}")
            a(f"{lab}_b:")
            if A_ == 2 and c.wwarm < 1:
                a(f"    s_cmp_eq_u32 s{sL}, {HF}")
                a(f"    s_cbranch_scc0 {lab}")
                a(f"    s_add_u32 s{sI}, s{sT3}, {c.wstride}")
                a(f"    buffer_load_dword v29, v18, s[{sW}:{sW+3}], s{sI} offen")
            a(f"{lab}:")
        if c.hvec_warm and c.hvw_pos == "before": vec_warm("L_hvw")
        for k in range(NK):
            a(f"    buffer_load_dword v{31+k}, v{10+k}, s[{sW}:{sW+3}], s{sT3} offen")
            if k < 2: hw_batch(k, f"L_hw{k}")
            a(f"    s_waitcnt vmcnt({c.hdepth})")
            a(f"    s_barrier")
        if c.hvec_warm and c.hvw_pos == "after": vec_warm("L_hvw")
        if c.hvwarm:
            a(f"    s_cmp_lt_u32 s{sL}, 5")
            a(f"    s_cbranch_scc0 L_hnv")
            a("    s_waitcnt lgkmcnt(0)")
            for n_ in range(7):
                a(f"    s_load_dwordx2 s[{76+2*n_}:{77+2*n_}], s[46:47], {n_*128 + 60}")
            a(f"    s_add_u32 s46, s46, {c.wstride}")
            a(f"    s_addc_u32 s47, s47, 0")
            a("L_hnv:")
        if c.hwarm:
            a(f"    s_add_u32 s44, s44, {c.wstride}")
            a(f"    s_addc_u32 s45, s45, 0")
        if c.xt_by != 'worker':
            a(f"""
    s_sub_u32 s{sI}, s{sL}, {HF}
    s_add_u32 s{sI}, s{sI}, {1 if HF != c.hfirst else 0}
    s_cmp_lt_u32 s{sI}, 2
    s_cbranch_scc0 L_hx0
    s_cmp_eq_u32 s{sM}, 1
    s_cbranch_scc0 L_hx0
    s_cmp_eq_u32 s{sI}, 0
    s_cselect_b32 s{sI}, {XBUF}, 0
    buffer_load_dword v30, v19, s[{sWS}:{sWS+3}], s{sI} offen sc1
L_hx0:
""")
        stamp(1)
        a(f"""
    s_add_u32 s{sL}, s{sL}, 1
    s_add_u32 s{sT3}, s{sT3}, {c.wstride}
    s_cmp_lt_u32 s{sL}, 6
    s_cbranch_scc1 L_h_layer
""")
        if c.hwb:
            a(f"""
    ; first helper workgroup of the die, wave 0: once layer 4 is finished, start writing the exchanged activations back
    s_cmp_lt_u32 s2, 216
    s_cbranch_scc0 L_nowb
    s_cmp_eq_u32 s{sWV}, 0
    s_cbranch_scc0 L_nowb
    s_mov_b32 s{sSPIN}, 0
L_wbpoll:
    buffer_load_dwordx2 v[16:17], v20, s[{sWS}:{sWS+3}], s{sOWNF} offen sc1
    s_waitcnt vmcnt(0)
    v_readfirstlane_b32 s{sTA}, v16
    v_readfirstlane_b32 s{sTA+1}, v17
    s_sub_u32 s{sTA}, s{sTA}, s{sE}
    s_subb_u32 s{sTA+1}, s{sTA+1}, s{sE+1}
    s_cmp_eq_u32 s{sTA+1}, 0
    s_cselect_b32 s{sTA}, s{sTA}, 0
    s_cmp_eq_u32 s{sTA}, 5
    s_cbranch_scc1 L_wbgo
    s_add_u32 s{sSPIN}, s{sSPIN}, 1
    s_cmp_lt_u32 s{sSPIN}, 64
    s_cbranch_scc1 L_wbpoll
L_wbgo:
    buffer_wbl2 sc1
L_nowb:""")
        a("    s_waitcnt vmcnt(0)")
        stamp(1)
        dump_ts()
    a("L_end:")
    a("    s_endpgm")
    kernel_desc(a, KNAME, NV, sgpr=102, accum=NV)
    txt = a.text().rstrip()
    if txt.endswith(".text"):
        txt = txt[:-5]
    return txt

if __name__ == "__main__":
    import json
    kw = json.loads(sys.argv[2]) if len(sys.argv) > 2 else {}
    open(sys.argv[1], "w").write(gen(**kw))
```

```python
import sys, os
from asmlib import *

KNAME = "standalone__dcn_v2_cross__recsys_kernel"
B_, DIN, L_ = 1024, 832, 6
ROWB = DIN * 2
WLAYER = DIN * DIN * 2
XLAYER = B_ * DIN * 2
XMH = 32 * ROWB
XRB = 2 * XMH
XBUF = 16 * XRB
CTRL = 2 * XBUF
TSOFF = CTRL + 16 * 4096
WS_BYTES = TSOFF + 256 * 8 * 256

class Cfg:
    def __init__(self, **kw):
        self.P = 6
        self.D = 5
        self.PF = 2
        self.SV = 3
        self.SB = 7
        self.ssched = 'three'
        self.NS = 3
        self.sp = True
        self.hp = None
        self.helpers = True
        self.hfirst = 0
        self.hlook = 2
        self.hpace = True
        self.hdepth = 1
        self.lthr = 0
        self.lthr_all = True
        self.sD_late = True
        self.ts = 0
        self.force_slow = False
        self.scramble = False
        self.spin_max = 1 << 20
        self.wstride = WLAYER
        self.prio = 2
        self.hello_step = 19
        self.nt_last = False
        self.hfirstid = False
        self.chunks0 = [13, 17, 20, 23]
        self.amp = None
        self.hwb = False
        self.probe = 0
        self.probe_off = 5 * WLAYER + 700 * ROWB
        self.codepf = True
        self.wwarm = 0
        self.xt_by = 'front1'
        self.hvec_warm = True
        self.hvw_ahead = 2
        self.hvw_pos = 'after'
        self.tlbwarm = False
        self.l0b1 = False
        self.hvwarm = False
        self.hw0 = False
        self.hello_by = 'compute'
        self.pre_first = False
        self.swarm = False
        self.horder = 'linear'
        self.hwarm = False
        self.prog_step = 22
        self.prog_at = 'end'
        self.vwarm = False
        self.pre_by = 'loader'
        self.mid_step = 21
        self.presched = 'pack'
        self.h0 = 'middle'
        self.xtouch = False
        self.w0assist = False
        self.bias_by = 'loader'
        self.exp_delay = 0
        self.exp_rt = 0
        self.poll2 = True
        self.phased = True
        self.n1 = 0
        self.n2 = 4
        self.onepoll = True
        self.no_suf = self.no_pre = self.no_x = self.no_w = False
        self.__dict__.update(kw)

def gen(cfg=None, **kw):
    c = cfg or Cfg(**kw)
    P, D, PF = c.P, c.D, c.PF
    TS = int(c.ts)
    assert P <= 12 and PF <= P and D >= PF + 1
    KHS = (26 - P) * 2048
    PRE0 = 0
    SUF = 2 * P * 2048
    PRE1 = SUF + 2 * KHS
    PREPAR = PRE1 - PRE0
    RED = PRE1 + 2 * P * 2048
    BIAS = RED + 16384
    MODEW = BIAS
    LDS_BYTES = BIAS + 64
    XS = SUF
    assert XS + 4 * 28672 <= BIAS and LDS_BYTES <= 163840
    sW, sWS, sX0, sOUT, sBS = 4, 8, 12, 16, 24
    sRB, sJ, sG2, sWV, sMH, sKH, sL, sXCC, sMODE = 28, 29, 30, 31, 32, 33, 34, 35, 36
    sXA, sXB, sXST = 37, 38, 39
    sWP, sMP, sPD = 52, 53, 54
    sU, sOWNF, sXD2 = 55, 56, 57
    sT0, sT1, sT2, sT3 = 58, 59, 60, 61
    sSPIN, sROT = 62, 63
    sG, sM, sI = 64, 65, 66
    sTSI, sTM = 67, 68
    sXD, sCB = 70, 71
    sE, sTA, sTB, sMK = 72, 74, 76, 78
    sBP_ = 48
    sWG = 30
    vL = 0
    vT0, vT1, vT2, vT3 = 1, 2, 3, 4
    vDUM = 5
    vXO = 6
    vAPK, vAPS, vASK, vASS = 10, 11, 12, 13
    vDMA, vFA = 14, 15
    vPOLL = 16
    vRW, vRR, vBA, vTS = 20, 21, 22, 23
    vP = 24
    vAK, vAS, vPART, vX0F, vXR = 32, 48, 64, 80, 96
    vWF = 112
    vXF = 136
    vBP = 240
    vOUT, vHA, vFV, vDMA0 = 248, 249, 250, 252
    vPOL2 = 254
    NV = 256
    nsets = PF + 1
    assert nsets * 8 <= 24

    a = Asm()
    a("; Fused DCN-v2 cross network: 6 layers of x = x0 * (x @ W[l] + b[l]) + x, 1024 x 832, bf16 in/out, f32 accumulate.")
    a("; 208 worker workgroups = 16 row blocks (64 rows) x 13 column slices (64 columns); waves 0-3 MFMA, waves 4-7 W loaders;")
    a("; 48 helper workgroups prefetch into L2.  Layer outputs are exchanged inside a row block through d_ws.")
    a(f"; @launch grid=({256 if c.helpers else 208},1,1) block=(512,1,1) lds={LDS_BYTES}")
    a('.amdgcn_target "amdgcn-amd-amdhsa--gfx950"')
    a(".text")
    kernel_begin(a, KNAME)
    if c.amp:
        a("    s_memtime s[100:101]")
    if TS == 5:
        a("    s_memrealtime s[26:27]")
        a("    s_memtime s[100:101]")

    def stamp(level=2):
        if not TS or TS < level or (TS == 4 and level > 1) or TS == 5: return
        a(f"    s_memtime s[{sTM}:{sTM+1}]")
        a(f"    s_waitcnt lgkmcnt(0)")
        a(f"    s_mov_b32 m0, s{sTSI}")
        a(f"    s_nop 0")
        a(f"    v_writelane_b32 v{vTS}, s{sTM}, m0")
        a(f"    s_add_u32 s{sTSI}, s{sTSI}, 1")
    def dump_ts():
        if not TS: return
        if TS == 5:
            a("    s_memrealtime s[80:81]")
            a("    s_memtime s[82:83]")
            a("    s_waitcnt lgkmcnt(0)")
            a(f"    v_writelane_b32 v{vTS}, s26, 0")
            a(f"    v_writelane_b32 v{vTS}, s80, 1")
            a(f"    v_writelane_b32 v{vTS}, s100, 2")
            a(f"    v_writelane_b32 v{vTS}, s82, 3")
        a(f"""
    s_lshl_b32 s{sT0}, s2, 3
    s_add_u32 s{sT0}, s{sT0}, s{sWV}
    s_lshl_b32 s{sT0}, s{sT0}, 8
    s_add_u32 s{sT0}, s{sT0}, {TSOFF}
    v_lshlrev_b32 v{vT0}, 2, v{vL}
    buffer_store_dword v{vTS}, v{vT0}, s[{sWS}:{sWS+3}], s{sT0} offen
""")
    def srd(dst, src, nbytes):
        a(f"    s_mov_b32 s{dst}, s{src}")
        a(f"    s_and_b32 s{dst+1}, s{src+1}, 0xffff")
        a(f"    s_mov_b32 s{dst+2}, {nbytes}")
        a(f"    s_mov_b32 s{dst+3}, 0x20000")

    a(f"""
    s_cmp_ge_u32 s2, {256 if c.helpers else 208}
    s_cbranch_scc1 L_end
    s_load_dwordx4 s[40:43], s[0:1], 0
    s_load_dwordx4 s[44:47], s[0:1], 16
    s_load_dwordx2 s[50:51], s[0:1], 40
    s_getreg_b32 s{sXCC}, hwreg(HW_REG_XCC_ID, 0, 4)
""")
    if c.hfirstid and c.helpers:
        a("""    s_cmp_lt_u32 s2, 48
    s_cselect_b32 s3, 256, 0
    s_add_u32 s2, s2, s3
    s_sub_u32 s2, s2, 48""")
    if c.scramble:
        a(f"""
    s_mul_hi_u32 s{sRB}, s2, 0x13B13B14
    s_mul_i32 s{sT0}, s{sRB}, 13
    s_sub_u32 s{sJ}, s2, s{sT0}
    s_and_b32 s{sG2}, s{sRB}, 1
    s_mul_i32 s{sROT}, s{sG2}, 13""")
    else:
        a(f"""
    s_and_b32 s{sT0}, s2, 7
    s_lshr_b32 s{sT1}, s2, 3
    s_cmp_ge_u32 s{sT1}, 13
    s_cselect_b32 s{sG2}, 1, 0
    s_mul_i32 s{sROT}, s{sG2}, 13
    s_sub_u32 s{sJ}, s{sT1}, s{sROT}
    s_lshl_b32 s{sRB}, s{sT0}, 1
    s_add_u32 s{sRB}, s{sRB}, s{sG2}""")
    a(f"""
    v_lshrrev_b32 v{vT0}, 6, v0
    v_and_b32 v{vL}, 63, v0
    v_readfirstlane_b32 s{sWV}, v{vT0}
    s_mov_b32 s{sTSI}, 0
    v_mov_b32 v{vTS}, 0
    s_lshl_b32 s{sCB}, s{sRB}, 12
    s_add_u32 s{sCB}, s{sCB}, {CTRL}
    s_and_b32 s{sMH}, s{sWV}, 1
    s_bfe_u32 s{sKH}, s{sWV}, 0x10001
    ; ---- x0 staging addresses (used by the loader waves; computed while the kernel arguments are on their way)
    s_sub_u32 s{sU}, s{sWV}, 4                ; u = 0..3: (kh, a) for W, compute wave u for the x0 staging
    v_lshrrev_b32 v{vT0}, 3, v{vL}            ; row8
    v_and_b32 v{vT1}, 7, v{vL}
    v_lshrrev_b32 v{vT2}, 1, v{vT0}
    v_xor_b32 v{vT1}, v{vT1}, v{vT2}          ; c' ^ (row8>>1)
    v_xor_b32 v{vT2}, 4, v{vT1}
    v_mul_u32_u24 v{vT0}, {ROWB}, v{vT0}
    v_lshl_add_u32 v{vXO}, v{vT1}, 4, v{vT0}
    v_lshl_add_u32 v{vXO+1}, v{vT2}, 4, v{vT0}
    s_lshl_b32 s{sT0}, s{sRB}, 6
    s_lshl_b32 s{sT1}, s{sMH}, 5
    s_add_u32 s{sT0}, s{sT0}, s{sT1}
    s_mul_i32 s{sG}, s{sT0}, {ROWB}
    s_mul_i32 s{sT1}, s{sKH}, {6*128}
    s_add_u32 s{sG}, s{sG}, s{sT1}
    s_mul_i32 s{sM}, s{sU}, 28672
    s_add_u32 s{sM}, s{sM}, {XS}
    s_cmp_ge_u32 s{sJ}, 7
    s_cselect_b32 s{sT3}, 7, 0
    s_sub_u32 s{sT3}, s{sJ}, s{sT3}
    s_mov_b32 s{sI}, 0
    s_waitcnt lgkmcnt(0)
""")
    srd(sX0, 40, XLAYER)
    stamp(1)
    def common_srds():
        srd(sW, 42, L_ * WLAYER)
        srd(sWS, 50, WS_BYTES)
        if c.codepf:
            n_ = common_srds.n = getattr(common_srds, "n", 0) + 1
            a(f"""    ; instruction prefetch into L2: wave (id/8)*8 + w reads line number (that index) of this kernel's code
    s_getpc_b64 s[20:21]
L_pc{n_}:
    s_lshr_b32 s22, s2, 3
    s_lshl_b32 s22, s22, 3
    s_add_u32 s22, s22, s{sWV}
    s_lshl_b32 s22, s22, 6
    s_sub_u32 s20, s20, L_pc{n_} - {KNAME}
    s_subb_u32 s21, s21, 0
    s_min_u32 s22, s22, L_end - {KNAME}
    s_load_dword s3, s[20:21], s22""")
    def vdma():
        a(f"""    ; W DMA lane offsets: swizzled 16-byte chunk + j*128; rows in layer-0 order (vDMA0) and in normal order (vDMA)
    v_lshrrev_b32 v{vT0}, 3, v{vL}            ; row8
    v_and_b32 v{vT1}, 7, v{vL}
    v_bfe_u32 v{vT2}, v{vL}, 4, 1
    v_lshlrev_b32 v{vT2}, 2, v{vT2}
    v_xor_b32 v{vT1}, v{vT1}, v{vT2}
    v_lshlrev_b32 v{vT1}, 4, v{vT1}
    s_lshl_b32 s{sT0}, s{sJ}, 7
    v_add_u32 v{vT1}, s{sT0}, v{vT1}
    v_mul_u32_u24 v{vT2}, {ROWB}, v{vT0}
    v_add_u32 v{vDMA}, v{vT2}, v{vT1}
    v_and_b32 v{vT2}, 3, v{vT0}
    v_lshrrev_b32 v{vT0}, 2, v{vT0}
    v_lshl_add_u32 v{vT0}, v{vT0}, 3, v{vT2}
    v_mul_u32_u24 v{vT0}, {ROWB}, v{vT0}
    v_add_u32 v{vDMA0}, v{vT0}, v{vT1}
""")
    a(f"""
    s_cmp_ge_u32 s2, 208
    s_cbranch_scc1 L_nonloader
    s_cmp_lt_u32 s{sWV}, 4
    s_cbranch_scc1 L_nonloader
""")
    def bias_dma(sreg, val, lab):
        a(f"    s_cmp_eq_u32 s{sreg}, {val}")
        a(f"    s_cbranch_scc0 {lab}")
        srd(sBS, 44, L_ * ROWB)
        a(f"""    v_lshrrev_b32 v{vT0}, 5, v{vL}
    v_mul_u32_u24 v{vT0}, {ROWB}, v{vT0}
    v_and_b32 v{vT1}, 31, v{vL}
    v_lshlrev_b32 v{vT1}, 2, v{vT1}
    v_add_u32 v{vT0}, v{vT0}, v{vT1}
    s_lshl_b32 s{sT0}, s{sJ}, 7
    v_add_u32 v{vT0}, s{sT0}, v{vT0}""")
        for t in range(3):
            a(f"    s_mov_b32 m0, {BIAS + 256*t}")
            a(f"    s_mov_b32 s{sT1}, {2*t*ROWB}")
            a(f"    buffer_load_dword v{vT0}, s[{sBS}:{sBS+3}], s{sT1} offen lds")
        a(f"{lab}:")
    vS0, vS1 = vXO, vXO + 1
    sSB = 40
    sWP0 = 98
    SB = c.SB
    NSR = (2 if c.ssched == 'two' else 3) * SB
    def sbatch(k, nextlayer=False):
        if not c.sp: return
        b = sSB + 2 if nextlayer else sSB
        for n_ in range(SB):
            a(f"    s_load_dwordx2 s[{76+2*n_}:{77+2*n_}], s[{b}:{b+1}], {(k * SB + n_) * ROWB + 60}")
    a(f"""
L_xs:
    s_lshl_b32 s{sT0}, s{sT3}, 12
    s_add_u32 s{sT0}, s{sT0}, s{sM}
    s_lshl_b32 s{sT1}, s{sT3}, 7
    s_add_u32 s{sT1}, s{sT1}, s{sG}
""")
    for rg in range(4):
        a(f"    s_add_u32 m0, s{sT0}, {rg*1024}")
        a(f"    s_add_u32 s{sT2}, s{sT1}, {rg*8*ROWB}")
        a(f"    buffer_load_dwordx4 v{vS0 if rg % 2 == 0 else vS1}, s[{sX0}:{sX0+3}], s{sT2} offen lds")
    a(f"""
    s_add_u32 s{sT3}, s{sT3}, 1
    s_cmp_eq_u32 s{sT3}, 7
    s_cselect_b32 s{sT3}, 0, s{sT3}
    s_add_u32 s{sI}, s{sI}, 1
    s_cmp_lt_u32 s{sI}, 7
    s_cbranch_scc1 L_xs
""")
    common_srds()
    vdma()
    a(f"""
    s_mul_i32 s{sT0}, s{sKH}, 416
    s_lshl_b32 s{sT1}, s{sMH}, 2
    s_add_u32 s{sT1}, s{sT1}, s{sT0}
    s_mul_i32 s{sT1}, s{sT1}, {ROWB}
    v_add_u32 v{vDMA0}, s{sT1}, v{vDMA0}
    s_lshl_b32 s{sT1}, s{sMH}, 3
    s_add_u32 s{sT1}, s{sT1}, s{sT0}
    s_mul_i32 s{sT1}, s{sT1}, {ROWB}
    v_add_u32 v{vDMA}, s{sT1}, v{vDMA}
    ; ---- W prefix of layer 0
    s_mul_i32 s{sG}, s{sROT}, 26624
    s_mul_i32 s{sM}, s{sKH}, {P*2048}
    s_lshl_b32 s{sT1}, s{sMH}, 10
    s_add_u32 s{sM}, s{sM}, s{sT1}
""")
    for i in range(P):
        a(f"    s_add_u32 m0, s{sM}, {PRE0 + i*2048}")
        a(f"    s_add_u32 s{sT0}, s{sG}, {i*26624}")
        a(f"    buffer_load_dwordx4 v{vDMA0}, s[{sW}:{sW+3}], s{sT0} offen lds")
    a(f"""
""")
    if c.w0assist:
        a(f"""
    s_cmp_eq_u32 s{sU}, 3
    s_cbranch_scc0 L_now0t
    v_lshrrev_b32 v21, 5, v{vL}               ; K half
    v_mul_u32_u24 v21, 416, v21
    v_and_b32 v22, 31, v{vL}
    v_add_u32 v21, v21, v22
    v_mul_u32_u24 v21, {ROWB}, v21
    s_lshl_b32 s20, s{sROT}, 4
    s_add_u32 s20, s20, {P * 16 + 28}
    s_mul_i32 s20, s20, {ROWB}
    s_lshl_b32 s21, s{sJ}, 7
    s_add_u32 s20, s20, s21
    buffer_load_dword v{vDUM}, v21, s[{sW}:{sW+3}], s20 offen
L_now0t:""")
    a(f"""
""")
    if c.xt_by in ("worker", "mixed", "front1"):
        a(f"""
    v_lshrrev_b32 v21, 5, v{vL}
    v_mul_u32_u24 v21, {XMH}, v21
    v_and_b32 v22, 31, v{vL}
    v_lshl_add_u32 v21, v22, 7, v21
    s_mul_i32 s22, s{sRB}, {XRB}
    s_lshl_b32 s23, s{sJ}, 12
    s_add_u32 s22, s22, s23                   ; buffer 0
    s_add_u32 s23, s22, {XBUF}                ; buffer 1""")
    if c.xt_by == "worker":
        a(f"""    s_cmp_eq_u32 s{sU}, 1
    s_cbranch_scc0 L_noxt1
    buffer_load_dword v{vDUM}, v21, s[{sWS}:{sWS+3}], s23 offen sc1
L_noxt1:""")
    if c.hello_by == "loader":
        a(f"""
    s_load_dwordx2 s[{sE}:{sE+1}], s[50:51], s{sCB}
    s_add_u32 s{sT0}, s{sCB}, 128
    s_add_u32 s46, s50, s{sT0}
    s_addc_u32 s47, s51, 0""")
    a(f"""
    s_mul_i32 s{sT2}, s{sKH}, {KHS}
    s_lshl_b32 s{sT1}, s{sMH}, 10
    s_add_u32 s{sT2}, s{sT2}, s{sT1}
    s_add_u32 s{sMP}, s{sT2}, {SUF}
    s_mul_i32 s70, s{sKH}, {P*2048}
    s_add_u32 s70, s70, s{sT1}
    s_add_u32 s70, s70, {PRE1}                ; prefix of layer 1 goes to parity 1
    s_mov_b32 s71, {PREPAR}
    s_mul_i32 s{sT0}, s{sKH}, 416
    s_lshl_b32 s{sT1}, s{sROT}, 4
    s_add_u32 s{sT0}, s{sT0}, s{sT1}
    s_mul_i32 s{sT1}, s{sMH}, {NSR}
    s_add_u32 s{sT0}, s{sT0}, s{sT1}
    s_add_u32 s{sT0}, s{sT0}, {c.SV * 16}
    s_mul_i32 s{sT0}, s{sT0}, {ROWB}
    s_lshl_b32 s{sT1}, s{sJ}, 7
    s_add_u32 s{sT0}, s{sT0}, s{sT1}
    s_add_u32 s{sT0}, s{sT0}, {c.wstride}
    s_mov_b32 s98, s42
    s_mov_b32 s99, s43
    s_add_u32 s40, s42, s{sT0}
    s_addc_u32 s41, s43, 0
    s_add_u32 s42, s40, {c.wstride}
    s_addc_u32 s43, s41, 0
""")
    def swarm(k):
        if not (c.swarm and c.sp): return
        lst = [(l, r) for l in range(2, 6) for r in range(3)]
        lst = lst[:7] if k == 0 else lst[7:]
        cur = None
        for n_, (l, r) in enumerate(lst):
            if cur != l:
                a(f"    s_add_u32 s46, s44, {l * c.wstride}")
                a(f"    s_addc_u32 s47, s45, 0")
                cur = l
            a(f"    s_load_dwordx2 s[{76+2*n_}:{77+2*n_}], s[46:47], {r*ROWB + 60}")
    if c.swarm and c.sp:
        per_range = 2 * NSR // 3
        a(f"""
    ; share of the S rows for the warm-up: q = rb*4 + u, range = q / {per_range}, rows 3*(q % {per_range}) ...
    s_lshl_b32 s{sT0}, s{sRB}, 2
    s_add_u32 s{sT0}, s{sT0}, s{sWV}
    s_sub_u32 s{sT0}, s{sT0}, 4
    s_min_u32 s{sT0}, s{sT0}, {4 * per_range - 1}
    s_mul_i32 s{sT1}, s{sT0}, {-(-65536 // per_range)}
    s_lshr_b32 s{sT1}, s{sT1}, 16             ; range
    s_mul_i32 s{sT2}, s{sT1}, {per_range}
    s_sub_u32 s{sT0}, s{sT0}, s{sT2}
    s_mul_i32 s{sT0}, s{sT0}, 3
    s_mul_i32 s{sT1}, s{sT1}, 208
    s_add_u32 s{sT0}, s{sT0}, s{sT1}
    s_add_u32 s{sT0}, s{sT0}, {c.SV * 16}
    s_mul_i32 s{sT0}, s{sT0}, {ROWB}
    s_lshl_b32 s{sT1}, s{sJ}, 7
    s_add_u32 s{sT0}, s{sT0}, s{sT1}
    s_add_u32 s44, s{sWP0}, s{sT0}
    s_addc_u32 s45, s{sWP0+1}, 0
""")
        swarm(0)
    if c.w0assist:
        a(f"""    s_cmp_eq_u32 s{sU}, 3
    s_cbranch_scc0 L_bxw
    s_waitcnt vmcnt({P + 1})
    s_branch L_bxw2
L_bxw:
    s_waitcnt vmcnt({P})
L_bxw2:""")
    elif c.xt_by == "worker":
        a(f"""    s_cmp_eq_u32 s{sU}, 1
    s_cbranch_scc0 L_bxw
    s_waitcnt vmcnt({P + 1})
    s_branch L_bxw2
L_bxw:
    s_waitcnt vmcnt({P})
L_bxw2:""")
    else:
        a(f"    s_waitcnt vmcnt({P})")
    stamp()
    a(f"""
    s_barrier                                 ; B_x
    s_barrier                                 ; B_y
""")
    if c.swarm and c.sp: a("    s_waitcnt lgkmcnt(0)")
    if c.hello_by != "loader" and c.ssched != "two": sbatch(0)
    def suffix(vreg, lay, thr=True, phased=False, bp=None):
        a(f"    s_mul_i32 s{sG}, s{sROT}, 26624")
        a(f"    s_add_u32 s{sG}, s{sG}, {lay}")
        a(f"    s_sub_u32 s{sM}, 13, s{sROT}")
        a(f"    s_mul_i32 s{sM}, s{sM}, 26624")
        a(f"    s_add_u32 s{sM}, s{sM}, {lay}")
        for n_, i in enumerate(range(P, 26)):
            if bp is not None and n_ == bp:
                a(f"    s_waitcnt vmcnt({bp})")
                a("    s_barrier                                 ; B_p: prefix of layer 0 has landed")
                if c.hello_by == "loader":
                    a(f"""    s_cmp_eq_u32 s{sWV}, 6
    s_cbranch_scc0 L_b0
    s_waitcnt lgkmcnt(0)
    s_load_dwordx16 s[76:91], s[46:47], 0 glc
    s_load_dwordx8 s[92:99], s[46:47], 64 glc
    s_load_dwordx2 s[20:21], s[46:47], 96 glc
    s_branch L_b0d
L_b0:""")
                    sbatch(0)
                    a("L_b0d:")
            if phased and n_ == c.n1: a("    s_barrier")
            if phased and n_ == c.n1 + c.n2: a("    s_barrier")
            a(f"    s_add_u32 m0, s{sMP}, {(i-P)*2048}")
            a(f"    s_add_u32 s{sI}, s{sG if i < 13 else sM}, {(i % 13) * 26624}")
            a(f"    buffer_load_dwordx4 v{vreg}, s[{sW}:{sW+3}], s{sI} offen {'nt ' if (c.nt_last and i >= 13) else ''}lds")
            if c.lthr and thr and (c.lthr_all or n_ >= c.n1 + c.n2):
                a(f"    s_waitcnt vmcnt({c.lthr - 1})")
    sPP, sPDL = 70, 71
    def prefix_next(lay_next):
        a(f"    s_mul_i32 s{sG}, s{sROT}, 26624")
        a(f"    s_add_u32 s{sG}, s{sG}, s{lay_next}")
        for t in range(P):
            a(f"    s_add_u32 m0, s{sPP}, {t*2048}")
            a(f"    s_add_u32 s{sI}, s{sG}, {t*26624}")
            a(f"    buffer_load_dwordx4 v{vDMA}, s[{sW}:{sW+3}], s{sI} offen lds")
            if c.lthr and c.lthr_all and t + 1 < P:
                a(f"    s_waitcnt vmcnt({c.lthr - 1})")
        a(f"    s_sub_u32 s{sPP}, s{sPP}, s{sPDL}")
        a(f"    s_sub_u32 s{sPDL}, 0, s{sPDL}")
    def advance_sb():
        a(f"""    s_add_u32 s40, s40, {c.wstride}
    s_addc_u32 s41, s41, 0
    s_add_u32 s42, s42, {c.wstride}
    s_addc_u32 s43, s43, 0""")
    suffix(vDMA0, "0", False, False, bp=13 - P)
    n = 26 - P
    if c.hello_by != "loader":
        if c.sp and c.ssched != "two": a("    s_waitcnt lgkmcnt(0)")
        sbatch(1)
    if c.hello_by == "compute" and not c.swarm:
        B0 = [P] + list(c.chunks0)
        for k_, b_ in enumerate(B0):
            nxt = B0[k_ + 1] if k_ + 1 < len(B0) else 26
            a(f"    s_waitcnt vmcnt({26 - nxt})")
            if k_ == 0 or k_ + 1 == len(B0): stamp()
            a(f"    s_barrier")
    else:
        a(f"    s_waitcnt vmcnt({n - (13 - P)})")
        stamp()
        a("    s_barrier                                 ; chunk [P,13)")
        if c.hello_by == "loader" and c.sp and c.l0b1:
            a(f"    s_cmp_eq_u32 s{sWV}, 6")
            a(f"    s_cbranch_scc1 L_nob1")
            a("    s_waitcnt lgkmcnt(0)"); sbatch(1)
            a("L_nob1:")
        if c.swarm and c.sp:
            a("    s_waitcnt lgkmcnt(0)"); swarm(1)
        a(f"    s_waitcnt vmcnt({26 - 20})")
        a("    s_barrier                                 ; chunk [13,20)")
        if c.hello_by == "loader":
            a(f"""    s_cmp_eq_u32 s{sWV}, 6
        s_cbranch_scc0 L_nohe
        s_add_u32 s{sT0}, s{sE}, 8
        s_addc_u32 s{sT1}, s{sE+1}, 0
        s_and_b32 s{sT2}, s{sT1}, 0x0fffffff
        s_lshl_b32 s22, s{sXCC}, 28
        s_xor_b32 s{sT1}, s{sT1}, s22
        s_mov_b32 s22, 1
        s_mov_b32 s23, 1
        s_waitcnt lgkmcnt(0)""")
            for m_ in range(13):
                lo = 76 + 2 * m_ if m_ < 12 else 20
                a(f"""    s_cmp_eq_u32 s{lo}, s{sT0}
        s_cselect_b32 s23, s23, 0
        s_cmp_eq_u32 s{lo+1}, s{sT1}
        s_cselect_b32 s22, s22, 0
        s_and_b32 s{lo+1}, s{lo+1}, 0x0fffffff
        s_cmp_eq_u32 s{lo+1}, s{sT2}
        s_cselect_b32 s23, s23, 0""")
            a(f"""    s_sub_u32 s22, 2, s22
        s_mul_i32 s22, s22, s23
        v_mov_b32 v25, s22
        v_mov_b32 v26, {MODEW}
        ds_write_b32 v26, v25
        s_waitcnt lgkmcnt(0)
    """)
            sbatch(0)
            a("L_nohe:")
        a("    s_waitcnt vmcnt(0)")
        stamp()
        a("    s_barrier                                 ; chunk [20,26)")
    if c.pre_by == "loader":
        a("    s_barrier                                 ; B_mid")
        a(f"    s_mov_b32 s{sT3}, {c.wstride}")
        if not c.no_pre: prefix_next(sT3)
        if c.xt_by in ("worker", "mixed", "front1"):
            a(f"""    s_cmp_eq_u32 s{sWV}, 5
    s_cbranch_scc0 L_noxt0
    buffer_load_dword v{vDUM}, v21, s[{sWS}:{sWS+3}], s22 offen sc1
L_noxt0:""")
    advance_sb()
    a(f"""
    s_barrier
    s_mov_b32 s{sL}, 1
    s_mov_b32 s{sT3}, {c.wstride}
L_ld_layer:
    s_cmp_lt_u32 s{sL}, 5
    s_cselect_b32 s{sU}, 1, 0
""")
    def guarded(fn, lab):
        if not c.sp: return
        a(f"    s_cmp_eq_u32 s{sU}, 1")
        a(f"    s_cbranch_scc0 {lab}")
        fn()
        a(f"{lab}:")
    if c.ssched != "two":
        guarded(lambda: sbatch(1), "L_sA")
    if not c.no_suf: suffix(vDMA, f"s{sT3}", True, c.phased)
    elif c.phased:
        a("    s_barrier"); a("    s_barrier")
    stamp()
    if c.ssched != "two":
        guarded(lambda: (a("    s_waitcnt lgkmcnt(0)"), sbatch(2)), "L_sB")
    if c.pre_by == "loader": a(f"    s_waitcnt vmcnt({26 - P})                 ; the prefix has landed")
    a("    s_barrier                                 ; B_a")
    if c.ssched == "two":
        guarded(lambda: sbatch(1), "L_sB")
    a("    s_waitcnt vmcnt(0)")
    stamp()
    a("    s_barrier")
    a(f"    s_cmp_lt_u32 s{sL}, 4")
    a(f"    s_cselect_b32 s{sU}, 1, 0")
    guarded(lambda: (a("    s_waitcnt lgkmcnt(0)"), sbatch(0, True)), "L_sC")
    if c.pre_by == "loader":
        a("    s_barrier                                 ; B_mid")
        stamp(3)
        a(f"    s_cmp_lt_u32 s{sL}, 5")
        a(f"    s_cbranch_scc0 L_nopre")
        a(f"    s_add_u32 s{sU}, s{sT3}, {c.wstride}")
        if not c.no_pre: prefix_next(sU)
        a("L_nopre:")
        stamp(3)
    advance_sb()
    a(f"""
    s_barrier                                 ; B2
    s_add_u32 s{sL}, s{sL}, 1
    s_add_u32 s{sT3}, s{sT3}, {c.wstride}
    s_cmp_lt_u32 s{sL}, 6
    s_cbranch_scc1 L_ld_layer
""")
    dump_ts()
    a("    s_endpgm")

    sBI = 84
    sBP = 48
    def bias_load():
        a(f"    s_load_dwordx16 s[{sBI}:{sBI+15}], s[{sBP}:{sBP+1}], 0")
        a(f"    s_add_u32 s{sBP}, s{sBP}, {ROWB}")
        a(f"    s_addc_u32 s{sBP+1}, s{sBP+1}, 0")
    def bias_spread():
        a("    s_mov_b32 exec_hi, 0")
        for q in range(4):
            for d in range(2):
                a(f"    v_mov_b32 v{vBP+2*q+d}, s{sBI+4*q+d}")
        a("    s_mov_b32 exec_lo, 0")
        a("    s_mov_b32 exec_hi, -1")
        for q in range(4):
            for d in range(2):
                a(f"    v_mov_b32 v{vBP+2*q+d}, s{sBI+4*q+2+d}")
        a("    s_mov_b64 exec, -1")
    def bias_unpack(lo=0, hi=8):
        for d in range(lo, hi):
            a(f"    v_lshlrev_b32 v{vAK+2*d}, 16, v{vBP+d}")
            a(f"    v_and_b32 v{vAK+2*d+1}, 0xffff0000, v{vBP+d}")
    a("L_nonloader:")
    common_srds()
    if c.helpers:
        a(f"""
    s_cmp_ge_u32 s2, 208
    s_cbranch_scc1 L_helper
""")
    if c.pre_by == "compute": vdma()
    a(f"""
L_compute:
    s_load_dwordx2 s[{sE}:{sE+1}], s[50:51], s{sCB}
    s_lshl_b32 s{sT0}, s{sJ}, 7
    s_lshl_b32 s{sT1}, s{sKH}, 6
    s_add_u32 s{sT0}, s{sT0}, s{sT1}
    s_add_u32 s{sBP_}, s44, s{sT0}
    s_addc_u32 s{sBP_+1}, s45, 0
    s_load_dwordx16 s[84:99], s[{sBP_}:{sBP_+1}], 0
    s_load_dword s20, s[{sBP_}:{sBP_+1}], {ROWB}
    s_load_dword s21, s[{sBP_}:{sBP_+1}], {2*ROWB}
    s_load_dword s22, s[{sBP_}:{sBP_+1}], {3*ROWB}
    s_load_dword s23, s[{sBP_}:{sBP_+1}], {4*ROWB}
    s_load_dword s24, s[{sBP_}:{sBP_+1}], {5*ROWB}
    s_add_u32 s{sBP_}, s{sBP_}, {ROWB}
    s_addc_u32 s{sBP_+1}, s{sBP_+1}, 0
    s_setprio {c.prio}
""")
    if c.xt_by in ("front", "front1"):
        a(f"""
    v_lshrrev_b32 v21, 5, v{vL}
    v_mul_u32_u24 v21, {XMH}, v21
    v_and_b32 v22, 31, v{vL}
    v_lshl_add_u32 v21, v22, 7, v21
    s_mul_i32 s22, s{sRB}, {XRB}
    s_lshl_b32 s23, s{sJ}, 12
    s_add_u32 s22, s22, s23                   ; buffer 0
    s_add_u32 s23, s22, {XBUF}                ; buffer 1
    s_cmp_eq_u32 s{sWV}, 3
    s_cbranch_scc0 L_noxf1
    buffer_load_dword v{vDUM}, v21, s[{sWS}:{sWS+3}], s23 offen sc1
L_noxf1:""")
        if c.xt_by == "front":
            a(f"""    s_cmp_eq_u32 s{sWV}, 2
    s_cbranch_scc0 L_noxf0
    buffer_load_dword v{vDUM}, v21, s[{sWS}:{sWS+3}], s22 offen sc1
L_noxf0:""")
    if c.wwarm:
        a(f"""
    s_sub_u32 s{sT0}, s{sWV}, 1
    s_cmp_lt_u32 s{sT0}, {c.wwarm}
    s_cbranch_scc0 L_noww
    s_mul_i32 s{sT0}, s{sRB}, 13
    s_add_u32 s{sT0}, s{sT0}, s{sJ}
    s_mul_i32 s{sT0}, s{sT0}, {52 * 128}
    s_mul_i32 s{sT1}, s{sWV}, {c.wstride}
    s_add_u32 s20, s{sT0}, s{sT1}
    v_min_u32 v20, 51, v{vL}
    v_lshlrev_b32 v20, 7, v20
    buffer_load_dword v{vDUM}, v20, s[{sW}:{sW+3}], s20 offen
L_noww:""")
    a(f"""
    v_min_u32 v{vT0}, 51, v{vL}
    v_lshlrev_b32 v{vT0}, 3, v{vT0}
    s_add_u32 s{sT0}, s{sCB}, 2048
    v_add_u32 v{vFA}, s{sT0}, v{vT0}
    s_cmp_eq_u32 s{sWV}, 0
    s_cbranch_scc0 L_noft
    buffer_load_dword v{vDUM}, v{vFA}, s[{sWS}:{sWS+3}], 0 offen sc1
L_noft:
    s_lshl_b32 s{sT1}, s{sJ}, 2
    s_add_u32 s{sT1}, s{sT1}, s{sWV}
    s_lshl_b32 s{sT1}, s{sT1}, 3
    s_add_u32 s{sOWNF}, s{sT0}, s{sT1}
    v_min_u32 v{vT0}, 12, v{vL}
    v_lshlrev_b32 v{vT0}, 3, v{vT0}
    s_add_u32 s{sT0}, s{sCB}, 128
    v_add_u32 v{vHA}, s{sT0}, v{vT0}
""")
    srd(sOUT, 46, XLAYER)
    a(f"""
    s_lshl_b32 s{sT0}, s{sRB}, 6
    s_lshl_b32 s{sT1}, s{sMH}, 5
    s_add_u32 s{sT0}, s{sT0}, s{sT1}
    s_mul_i32 s{sT0}, s{sT0}, {ROWB}
    s_lshl_b32 s{sT1}, s{sJ}, 7
    s_add_u32 s{sT0}, s{sT0}, s{sT1}
    s_lshl_b32 s{sT1}, s{sKH}, 6
    s_add_u32 s{sT0}, s{sT0}, s{sT1}
    v_and_b32 v{vT0}, 31, v{vL}
    v_mul_u32_u24 v{vT0}, {ROWB}, v{vT0}
    v_lshrrev_b32 v{vT1}, 5, v{vL}
    v_lshl_add_u32 v{vT0}, v{vT1}, 4, v{vT0}
    v_add_u32 v{vOUT}, s{sT0}, v{vT0}
    v_lshlrev_b32 v{vXO}, 4, v{vL}
    v_add_u32 v{vXO+1}, 0x1000, v{vXO}
    v_add_u32 v{vXO+2}, 0x2000, v{vXO}
    v_add_u32 v{vXO+3}, 0x3000, v{vXO}
    s_mul_i32 s{sT0}, s{sRB}, {XRB}
    s_mul_i32 s{sT1}, s{sMH}, {XMH}
    s_add_u32 s{sT0}, s{sT0}, s{sT1}
    s_add_u32 s{sT0}, s{sT0}, {XBUF}
    s_lshl_b32 s{sT1}, s{sJ}, 2
    s_lshl_b32 s{sT2}, s{sKH}, 1
    s_add_u32 s{sT1}, s{sT1}, s{sT2}
    s_lshl_b32 s{sT1}, s{sT1}, 10
    s_add_u32 s{sXST}, s{sT0}, s{sT1}
""")
    if not c.helpers:
        a(f"""
    v_and_b32 v{vT1}, 15, v{vL}
    v_lshlrev_b32 v{vT1}, 7, v{vT1}
    v_bfe_u32 v{vT2}, v{vL}, 4, 1
    v_mul_u32_u24 v{vT2}, {XBUF >> 8}, v{vT2}
    v_lshl_add_u32 v{vT1}, v{vT2}, 8, v{vT1}
    s_sub_u32 s{sT3}, s{sXST}, {XBUF}
    buffer_load_dword v{vDUM}, v{vT1}, s[{sWS}:{sWS+3}], s{sT3} offen sc1
""")
    a(f"""
    s_mul_i32 s{sT1}, s{sKH}, 26
    s_add_u32 s{sT2}, s{sT1}, s{sROT}
    s_lshl_b32 s{sT2}, s{sT2}, 10
    s_add_u32 s{sXA}, s{sT0}, s{sT2}
    s_add_u32 s{sT2}, s{sT1}, 13
    s_sub_u32 s{sT2}, s{sT2}, s{sROT}
    s_lshl_b32 s{sT2}, s{sT2}, 10
    s_add_u32 s{sXB}, s{sT0}, s{sT2}
    s_mov_b32 s{sXD}, {-XBUF & 0xffffffff}
    s_mov_b32 s{sXD2}, {-XBUF & 0xffffffff}
    ; ---- W prefix bookkeeping for layer 1 (loaded at the end of layer 0)
    s_mul_i32 s{sT0}, s{sKH}, 416
    s_lshl_b32 s{sT1}, s{sROT}, 4
    s_add_u32 s{sT0}, s{sT0}, s{sT1}
    s_lshl_b32 s{sT1}, s{sMH}, 3
    s_add_u32 s{sT0}, s{sT0}, s{sT1}
    s_mul_i32 s{sWP}, s{sT0}, {ROWB}
    s_add_u32 s{sWP}, s{sWP}, {c.wstride}
    s_mul_i32 s{sMP}, s{sKH}, {P*2048}
    s_lshl_b32 s{sT1}, s{sMH}, 10
    s_add_u32 s{sMP}, s{sMP}, s{sT1}
    s_add_u32 s{sMP}, s{sMP}, {PRE1}
    s_mov_b32 s{sPD}, {PREPAR}
    v_lshrrev_b32 v{vT0}, 5, v{vL}            ; h
    v_lshlrev_b32 v{vT0}, 2, v{vT0}
    v_bfe_u32 v{vT1}, v{vL}, 2, 2             ; r
    v_add_u32 v{vT0}, v{vT0}, v{vT1}
    v_lshlrev_b32 v{vT0}, 7, v{vT0}           ; row*128
    v_bfe_u32 v{vT1}, v{vL}, 4, 1             ; nb
    v_lshlrev_b32 v{vT1}, 1, v{vT1}
    v_bfe_u32 v{vT2}, v{vL}, 1, 1             ; c>>1
    v_add_u32 v{vT1}, v{vT1}, v{vT2}
    v_bfe_u32 v{vT2}, v{vL}, 3, 1             ; (r>>1)&1
    v_lshlrev_b32 v{vT2}, 2, v{vT2}
    v_xor_b32 v{vT1}, v{vT1}, v{vT2}
    v_lshlrev_b32 v{vT1}, 4, v{vT1}
    v_add_u32 v{vT0}, v{vT0}, v{vT1}
    v_and_b32 v{vT1}, 1, v{vL}
    v_lshlrev_b32 v{vT1}, 3, v{vT1}
    v_add_u32 v{vT0}, v{vT0}, v{vT1}
    s_lshl_b32 s{sT0}, s{sKH}, 6
    v_xor_b32 v{vT1}, s{sT0}, v{vT0}          ; keep
    v_xor_b32 v{vT2}, 64, v{vT1}              ; send
    s_mul_i32 s{sT0}, s{sKH}, {P*2048}
    v_add_u32 v{vAPK}, s{sT0}, v{vT1}
    v_add_u32 v{vAPS}, s{sT0}, v{vT2}
    s_mul_i32 s{sT0}, s{sKH}, {KHS}
    s_add_u32 s{sT0}, s{sT0}, {SUF}
    v_add_u32 v{vASK}, s{sT0}, v{vT1}
    v_add_u32 v{vASS}, s{sT0}, v{vT2}
    s_lshl_b32 s{sT0}, s{sWV}, 12
    s_add_u32 s{sT0}, s{sT0}, {RED}
    v_add_u32 v{vRW}, s{sT0}, v{vXO}
    s_xor_b32 s{sT1}, s{sWV}, 2
    s_lshl_b32 s{sT1}, s{sT1}, 12
    s_add_u32 s{sT1}, s{sT1}, {RED}
    v_add_u32 v{vRR}, s{sT1}, v{vXO}
    v_lshrrev_b32 v{vT0}, 5, v{vL}
    v_lshlrev_b32 v{vT3}, 3, v{vT0}           ; h*8
    v_and_b32 v{vT0}, 31, v{vL}               ; m
    v_lshrrev_b32 v{vT1}, 3, v{vT0}
    v_lshlrev_b32 v{vT1}, 10, v{vT1}          ; rg*1024
    v_and_b32 v{vT2}, 7, v{vT0}
    v_lshl_add_u32 v{vT1}, v{vT2}, 7, v{vT1}  ; + row8*128
    v_bfe_u32 v{vT2}, v{vT0}, 1, 3            ; f(m)
    s_cmp_ge_u32 s{sJ}, 7
    s_cselect_b32 s{sT0}, 1, 0
    s_mul_i32 s{sT1}, s{sT0}, 6
    s_sub_u32 s{sT1}, s{sJ}, s{sT1}
    s_lshl_b32 s{sT1}, s{sT1}, 12
    s_lshl_b32 s{sT0}, s{sT0}, 1
    s_add_u32 s{sT0}, s{sT0}, s{sMH}
    s_mul_i32 s{sT0}, s{sT0}, 28672
    s_add_u32 s{sT0}, s{sT0}, s{sT1}
    s_add_u32 s{sT0}, s{sT0}, {XS}
    s_lshl_b32 s{sT1}, s{sKH}, 2
    v_add3_u32 v{vT3}, v{vT3}, v{vT1}, s{sT0}
    v_xor_b32 v{vT0}, s{sT1}, v{vT2}          ; (4*nh) ^ f(m)
""")
    for q in range(4):
        a(f"    v_xor_b32 v{vPART+8+q}, {q}, v{vT0}")
        a(f"    v_lshl_add_u32 v{vPART+8+q}, v{vPART+8+q}, 4, v{vT3}")
    a(f"""
    v_lshrrev_b32 v{vT0}, 5, v{vL}
    v_xor_b32 v{vT2}, v{vT2}, v{vT0}          ; f(m) ^ h
    s_mul_i32 s{sT3}, s{sWV}, 28672
    s_add_u32 s{sT3}, s{sT3}, {XS}
    s_mul_i32 s{sI}, s{sKH}, 26
    s_mul_i32 s{sM}, s{sKH}, 6
""")
    for seg in range(2):
        if seg == 0:
            a(f"    s_add_u32 s{sG}, s{sI}, s{sROT}")
        else:
            a(f"    s_add_u32 s{sG}, s{sI}, 13")
            a(f"    s_sub_u32 s{sG}, s{sG}, s{sROT}")
        for x in range(4):
            r = vPART + seg * 4 + x
            a(f"    s_add_u32 s{sT0}, s{sG}, {x}")
            a(f"    s_and_b32 s{sT1}, s{sT0}, 3")
            a(f"    s_lshl_b32 s{sT1}, s{sT1}, 1")
            a(f"    s_lshr_b32 s{sT0}, s{sT0}, 2")
            a(f"    s_sub_u32 s{sT0}, s{sT0}, s{sM}")
            a(f"    s_lshl_b32 s{sT0}, s{sT0}, 12")
            a(f"    s_add_u32 s{sT0}, s{sT0}, s{sT3}")
            a(f"    v_xor_b32 v{r}, s{sT1}, v{vT2}")
            a(f"    v_lshl_add_u32 v{r}, v{r}, 4, v{vT1}")
            a(f"    v_add_u32 v{r}, s{sT0}, v{r}")
    a(f"""
    s_waitcnt lgkmcnt(0)
    s_add_u32 s{sTA}, s{sE}, 1
    s_addc_u32 s{sTA+1}, s{sE+1}, 0
    s_add_u32 s{sTB}, s{sE}, 2
    s_addc_u32 s{sTB+1}, s{sE+1}, 0
    s_cmp_eq_u32 s{sWV}, 0
    s_cbranch_scc0 L_nohello
    s_add_u32 s{sT0}, s{sE}, 8
    s_addc_u32 s{sT1}, s{sE+1}, 0
    s_lshl_b32 s{sT2}, s{sXCC}, 28
    s_xor_b32 s{sT1}, s{sT1}, s{sT2}
    v_mov_b32 v{vPOLL}, s{sT0}
    v_mov_b32 v{vPOLL+1}, s{sT1}
    s_lshl_b32 s{sT2}, s{sJ}, 3
    s_add_u32 s{sT2}, s{sT2}, s{sCB}
    s_add_u32 s{sT2}, s{sT2}, 128
    s_mov_b64 exec, 1
    buffer_store_dwordx2 v[{vPOLL}:{vPOLL+1}], off, s[{sWS}:{sWS+3}], s{sT2} sc1
    s_mov_b64 exec, -1
L_nohello:
""")
    if c.w0assist:
        a(f"""
    s_mul_i32 s{sT0}, s{sKH}, 416
    s_lshl_b32 s{sT1}, s{sROT}, 4
    s_add_u32 s{sT0}, s{sT0}, s{sT1}
    s_mul_i32 s{sT1}, s{sMH}, 14
    s_add_u32 s{sT0}, s{sT0}, s{sT1}
    s_add_u32 s{sT0}, s{sT0}, {P * 16}
    s_mul_i32 s{sT0}, s{sT0}, {ROWB}
    s_lshl_b32 s{sT1}, s{sJ}, 7
    s_add_u32 s{sT0}, s{sT0}, s{sT1}
    s_add_u32 s44, s42, s{sT0}
    s_addc_u32 s45, s43, 0
""")
        for n_ in range(14):
            if n_ == 7: a("    s_waitcnt lgkmcnt(0)")
            a(f"    s_load_dwordx2 s[{20+2*(n_%2)}:{21+2*(n_%2)}], s[44:45], {n_*ROWB + 60}")
    elif c.vwarm:
        nrows = c.SV * 16
        per_rb = nrows // 4
        a(f"""
    s_lshr_b32 s{sT0}, s{sRB}, 2
    s_mul_i32 s{sT0}, s{sT0}, 208             ; range start row: 0, 208, 416, 624
    s_and_b32 s{sT1}, s{sRB}, 3
    s_mul_i32 s{sT1}, s{sT1}, {per_rb}
    s_add_u32 s{sT0}, s{sT0}, s{sT1}
    s_mul_i32 s{sT1}, s{sWV}, {per_rb // 4}
    s_add_u32 s{sT0}, s{sT0}, s{sT1}
    s_mul_i32 s{sT0}, s{sT0}, {ROWB}
    s_lshl_b32 s{sT1}, s{sJ}, 7
    s_add_u32 s{sT0}, s{sT0}, s{sT1}
    s_add_u32 s{sT0}, s{sT0}, {c.wstride}
    s_add_u32 s44, s42, s{sT0}
    s_addc_u32 s45, s43, 0
""")
        nper = per_rb // 4
        vw = [(l, r) for l in range(1, 6) for r in range(nper)][:14]
        def vwarm_batch(k):
            cur = None
            for n_, (l, r) in enumerate(vw[7*k:7*k+7]):
                if cur != l:
                    a(f"    s_add_u32 s46, s44, {(l-1) * c.wstride}")
                    a(f"    s_addc_u32 s47, s45, 0")
                    cur = l
                a(f"    s_load_dwordx2 s[{20+2*(n_%2)}:{21+2*(n_%2)}], s[46:47], {r*ROWB + 60}")
        vwarm_batch(0)
    stamp()
    a("    s_barrier                                 ; B_x: staged x0, prefix(0) and biases have landed")
    stamp()
    for q in range(4):
        a(f"    ds_read_b64 v[{vP+2*q}:{vP+2*q+1}], v{vPART+8+q}")
    for i in range(26):
        seg, ii = (0, i) if i < 13 else (1, i - 13)
        a(f"    ds_read_b128 v[{vXF+4*i}:{vXF+4*i+3}], v{vPART + seg*4 + (ii & 3)} offset:{(ii >> 2) * 4096}")
        if i in (9, 17):
            a("    s_waitcnt lgkmcnt(6)")
    a("    s_waitcnt lgkmcnt(0)")
    a("    s_barrier")
    if c.vwarm and not c.w0assist: vwarm_batch(1)
    stamp()
    for d in range(8):
        a(f"    v_lshlrev_b32 v{vX0F+2*d}, 16, v{vP+d}")
        a(f"    v_and_b32 v{vX0F+2*d+1}, 0xffff0000, v{vP+d}")
    bias_spread()
    bias_unpack()
    for r in range(16):
        a(f"    v_mov_b32 v{vXR+r}, v{vX0F+r}")
    a(f"    s_mov_b32 s{sL}, 0")
    a("    s_barrier                                 ; B_p: prefix of layer 0 has landed")
    stamp()

    def xload(i):
        if c.no_x:
            a("    s_nop 0"); return
        seg = sXA if i < 13 else sXB
        ii = i % 13
        a(f"    buffer_load_dwordx4 v[{vXF+4*i}:{vXF+4*i+3}], v{vXO+(ii>>2)}, s[{sWS}:{sWS+3}], s{seg} offen offset:{(ii&3)*1024} sc1")
    def rd(i, which):
        if c.no_w: return
        st = vWF + 8 * (i % nsets)
        if i < P: k, s_, off = vAPK, vAPS, i * 2048
        else: k, s_, off = vASK, vASS, (i - P) * 2048
        if which == "s":
            a(f"    ds_read_b64_tr_b16 v[{st}:{st+1}], v{s_} offset:{off}")
            a(f"    ds_read_b64_tr_b16 v[{st+2}:{st+3}], v{s_} offset:{off+1024}")
        else:
            a(f"    ds_read_b64_tr_b16 v[{st+4}:{st+5}], v{k} offset:{off}")
            a(f"    ds_read_b64_tr_b16 v[{st+6}:{st+7}], v{k} offset:{off+1024}")
    def pref_sched(i):
        if c.presched == "spread":
            t = i - (26 - P)
            return [t] if 0 <= t < P else []
        k = i - (26 - D)
        if k < 0: return []
        per_ = -(-P // D)
        return [t for t in range(k * per_, min(P, (k + 1) * per_))]
    def kloop(first):
        ops = []
        if first:
            for i in range(PF):
                rd(i, "s"); rd(i, "k")
        else:
            xload(0); ops.append(("x", 0))
            rd(0, "s"); rd(0, "k")
            xload(1); ops.append(("x", 1))
            rd(1, "s"); rd(1, "k")
            nrest = D - 2
            cuts = [8 * k // nrest for k in range(nrest + 1)]
            for k in range(nrest):
                bias_unpack(cuts[k], cuts[k + 1])
                xload(2 + k); ops.append(("x", 2 + k))
        bars = (([P] + list(c.chunks0)) if (c.hello_by == 'compute' and not c.swarm) else [P, 13, 20]) if first else [P]
        assert P < 13
        marks = [0, 1, 2, 4, 8, 12, 16, 20, 25]
        for i in range(26):
            a(f"    ; ---- step {i}")
            if TS == 4 and not first and i in marks:
                a(f"    s_memtime s[{80 + 2*marks.index(i)}:{81 + 2*marks.index(i)}]")
            young = sum(4 for t in range(i + 1, min(i + PF - 1, 25) + 1))
            if first:
                a(f"    s_waitcnt lgkmcnt({young})")
            else:
                nv = len(ops) - 1 - ops.index(("x", i))
                a(f"    s_waitcnt vmcnt({nv}) lgkmcnt({young})")
            st = vWF + 8 * (i % nsets)
            xf = vXF + 4 * i
            cs = "0" if i == 0 else f"v[{vAS}:{vAS+15}]"
            a(f"    v_mfma_f32_32x32x16_bf16 v[{vAS}:{vAS+15}], v[{st}:{st+3}], v[{xf}:{xf+3}], {cs}")
            if not first and i == 1:
                a(f"""    s_add_u32 s{sTA}, s{sTA}, 1
    s_addc_u32 s{sTA+1}, s{sTA+1}, 0""")
            if not first and i == 2:
                a(f"""    s_add_u32 s{sTB}, s{sTB}, 1
    s_addc_u32 s{sTB+1}, s{sTB+1}, 0""")
            if i + PF in bars:
                a("    s_barrier")
            if first and i == c.hello_step and c.hello_by != 'loader':
                a(f"    buffer_load_dwordx2 v[{vPOLL}:{vPOLL+1}], v{vHA}, s[{sWS}:{sWS+3}], 0 offen sc1")
            if not first and i + D < 26:
                xload(i + D); ops.append(("x", i + D))
            if c.pre_by == "loader":
                if i == c.mid_step: a("    s_barrier                                 ; B_mid: the x loads are all issued")
                if i == c.prog_step and c.prog_at == "mid":
                    lab = "L_noprogA" if first else "L_noprogB"
                    a(f"""    s_or_b32 s{sT0}, s{sJ}, s{sWV}
    s_cmp_eq_u32 s{sT0}, 0
    s_cbranch_scc0 {lab}
    v_mov_b32 v{vPOL2}, s{sTA}
    v_mov_b32 v{vPOL2+1}, s{sTA+1}
    s_add_u32 s{sT0}, s{sCB}, 3072
    buffer_store_dwordx2 v[{vPOL2}:{vPOL2+1}], off, s[{sWS}:{sWS+3}], s{sT0}
{lab}:""")
            else:
                for t in ([] if c.no_pre else pref_sched(i)):
                    a(f"    s_add_u32 m0, s{sMP}, {t*2048}")
                    a(f"    s_add_u32 s{sT0}, s{sWP}, {t*26624}")
                    a(f"    buffer_load_dwordx4 v{vDMA}, s[{sW}:{sW+3}], s{sT0} offen lds")
                    ops.append(("w", t))
            if i + PF < 26: rd(i + PF, "s")
            a(f"    v_mfma_f32_32x32x16_bf16 v[{vAK}:{vAK+15}], v[{st+4}:{st+7}], v[{xf}:{xf+3}], v[{vAK}:{vAK+15}]")
            if i + PF < 26: rd(i + PF, "k")
        return len([o for o in ops if o[0] == "w"])
    npre = kloop(True)
    if c.hello_by == "loader":
        a(f"""    v_mov_b32 v{vT0}, {MODEW}
    ds_read_b32 v{vT1}, v{vT0}
    s_waitcnt lgkmcnt(0)
    v_readfirstlane_b32 s{sMODE}, v{vT1}""")
        a(f"""
    s_cmp_eq_u32 s{sMODE}, 0
    s_cbranch_scc1 L_hello_slow
    s_and_b32 s{sMODE}, s{sMODE}, {0 if c.force_slow else 1}
    s_branch L_tail
L_hello_slow:
    buffer_load_dwordx2 v[{vPOLL}:{vPOLL+1}], v{vHA}, s[{sWS}:{sWS+3}], 0 offen sc1""")
    a(f"""
    s_add_u32 s{sT0}, s{sE}, 8
    s_addc_u32 s{sT1}, s{sE+1}, 0
    s_mov_b32 s{sSPIN}, 0
    s_waitcnt vmcnt({0 if c.hello_by == "loader" else npre})
    s_and_b32 s{sT2}, s{sT1}, 0x0fffffff
    s_lshl_b32 s{sT3}, s{sXCC}, 28
    s_xor_b32 s{sT3}, s{sT1}, s{sT3}
L_hello:
    v_and_b32 v{vT0}, 0x0fffffff, v{vPOLL+1}
    v_cmp_eq_u32 vcc, s{sT0}, v{vPOLL}
    v_cmp_eq_u32 s[{sMK}:{sMK+1}], s{sT2}, v{vT0}
    s_and_b64 vcc, vcc, s[{sMK}:{sMK+1}]
    s_cmp_eq_u64 vcc, -1
    s_cbranch_scc1 L_hello_ok
    s_add_u32 s{sSPIN}, s{sSPIN}, 1
    s_cmp_gt_u32 s{sSPIN}, {c.spin_max}
    s_cbranch_scc1 L_end
    buffer_load_dwordx2 v[{vPOLL}:{vPOLL+1}], v{vHA}, s[{sWS}:{sWS+3}], 0 offen sc1
    s_waitcnt vmcnt(0)
    s_branch L_hello
L_hello_ok:
    v_cmp_eq_u32 vcc, s{sT3}, v{vPOLL+1}
    s_cmp_eq_u64 vcc, -1
    s_cselect_b32 s{sMODE}, {0 if c.force_slow else 1}, 0
    s_branch L_tail
""")
    assert sT1 == sT0 + 1 and sT0 % 2 == 0
    a("L_layer2:")
    stamp()
    kloop(False)
    if TS == 4:
        a("    s_memtime s[98:99]")
        a("    s_waitcnt lgkmcnt(0)")
        for k in range(10):
            a(f"    s_mov_b32 m0, s{sTSI}")
            a(f"    s_nop 0")
            a(f"    v_writelane_b32 v{vTS}, s{80+2*k}, m0")
            a(f"    s_add_u32 s{sTSI}, s{sTSI}, 1")
    a("L_tail:")
    if c.amp and c.amp[0] == "l0k":
        a(f"""    s_cmp_eq_u32 s{sL}, 0
    s_cbranch_scc0 L_amp2
    s_memtime s[26:27]
    s_waitcnt lgkmcnt(0)
    s_sub_u32 s25, s26, s100
L_amp2:""")
    if TS in (2, 3):
        a("    s_nop 15")
        stamp()
    a(f"    v_mov_b32 v{vFV}, s{sTA}")
    a(f"    v_mov_b32 v{vFV+1}, s{sTA+1}")
    a("    s_nop 8")
    for q in range(4):
        a(f"    ds_write_b128 v{vRW}, v[{vAS+4*q}:{vAS+4*q+3}] offset:{q*1024}")
    a("    s_waitcnt lgkmcnt(0)")
    a("    s_barrier                                 ; B2")
    stamp(3)
    for q in range(4):
        a(f"    ds_read_b128 v[{vPART+4*q}:{vPART+4*q+3}], v{vRR} offset:{q*1024}")
    def epi(q):
        a(f"    s_waitcnt lgkmcnt({3-q})")
        for p in range(2):
            r = 4 * q + 2 * p
            a(f"    v_pk_add_f32 v[{vAK+r}:{vAK+r+1}], v[{vAK+r}:{vAK+r+1}], v[{vPART+r}:{vPART+r+1}]")
        for p in range(2):
            r = 4 * q + 2 * p
            a(f"    v_pk_fma_f32 v[{vAK+r}:{vAK+r+1}], v[{vX0F+r}:{vX0F+r+1}], v[{vAK+r}:{vAK+r+1}], v[{vXR+r}:{vXR+r+1}]")
        for p in range(2):
            r = 4 * q + 2 * p
            a(f"    v_cvt_pk_bf16_f32 v{vP+2*q+p}, v{vAK+r}, v{vAK+r+1}")
    a(f"""
    s_cmp_eq_u32 s{sL}, 5
    s_cbranch_scc1 L_final
    s_cmp_eq_u32 s{sMODE}, 0
    s_cbranch_scc1 L_st_slow
""")
    epi(0); epi(1)
    a(f"    buffer_store_dwordx4 v[{vP}:{vP+3}], v{vXO}, s[{sWS}:{sWS+3}], s{sXST} offen")
    epi(2); epi(3)
    a(f"    buffer_store_dwordx4 v[{vP+4}:{vP+7}], v{vXO}, s[{sWS}:{sWS+3}], s{sXST} offen offset:1024")
    if c.phased: a("    s_barrier                                 ; B_s")
    stamp(3)
    def unpack_res():
        for d in range(8):
            a(f"    v_lshlrev_b32 v{vXR+2*d}, 16, v{vP+d}")
            a(f"    v_and_b32 v{vXR+2*d+1}, 0xffff0000, v{vP+d}")
    bias_load()
    unpack_res()
    a(f"""
    s_waitcnt vmcnt(0)
    buffer_store_dwordx2 v[{vFV}:{vFV+1}], off, s[{sWS}:{sWS+3}], s{sOWNF}
    s_branch L_st_done
L_st_slow:
""")
    epi(0); epi(1); epi(2); epi(3)
    a(f"""
    buffer_store_dwordx4 v[{vP}:{vP+3}], v{vXO}, s[{sWS}:{sWS+3}], s{sXST} offen sc1
    buffer_store_dwordx4 v[{vP+4}:{vP+7}], v{vXO}, s[{sWS}:{sWS+3}], s{sXST} offen offset:1024 sc1
""")
    if c.phased: a("    s_barrier                                 ; B_s")
    stamp(3)
    bias_load()
    unpack_res()
    a(f"""
    s_waitcnt vmcnt(0)
    buffer_store_dwordx2 v[{vFV}:{vFV+1}], off, s[{sWS}:{sWS+3}], s{sOWNF} sc1
L_st_done:
""")
    stamp()
    if c.onepoll:
        a(f"""
    s_cmp_eq_u32 s{sWV}, 0
    s_cbranch_scc0 L_nopoll1""")
    a(f"""
    buffer_load_dwordx2 v[{vPOLL}:{vPOLL+1}], v{vFA}, s[{sWS}:{sWS+3}], 0 offen sc1
L_nopoll1:
    {"s_barrier                                 ; B_f" if c.phased else ""}
""")
    def progress(lab):
        a(f"""    s_or_b32 s{sT0}, s{sJ}, s{sWV}
    s_cmp_eq_u32 s{sT0}, 0
    s_cbranch_scc0 {lab}
    s_add_u32 s{sT0}, s{sCB}, 3072
    buffer_store_dwordx2 v[{vFV}:{vFV+1}], off, s[{sWS}:{sWS+3}], s{sT0}
{lab}:""")
    if c.prog_at == "end": progress("L_noprog")
    a(f"""
    s_add_u32 s{sL}, s{sL}, 1
    s_cmp_eq_u32 s{sL}, 1
    s_cbranch_scc1 L_keep_xa
    s_add_u32 s{sXA}, s{sXA}, s{sXD}
    s_add_u32 s{sXB}, s{sXB}, s{sXD}
    s_sub_u32 s{sXD}, 0, s{sXD}
L_keep_xa:
    s_add_u32 s{sXST}, s{sXST}, s{sXD2}
    s_sub_u32 s{sXD2}, 0, s{sXD2}
    s_add_u32 s{sWP}, s{sWP}, {c.wstride}
    s_sub_u32 s{sMP}, s{sMP}, s{sPD}
    v_add_u32 v{vAPK}, s{sPD}, v{vAPK}
    v_add_u32 v{vAPS}, s{sPD}, v{vAPS}
    s_sub_u32 s{sPD}, 0, s{sPD}
    s_mov_b32 s{sSPIN}, 0
""")
    a("    s_waitcnt lgkmcnt(0)")
    bias_spread()
    if c.onepoll:
        a(f"""
    s_cmp_eq_u32 s{sWV}, 0
    s_cbranch_scc0 L_ready""")
    if c.poll2:
        a(f"""L_poll:
    buffer_load_dwordx2 v[{vPOL2}:{vPOL2+1}], v{vFA}, s[{sWS}:{sWS+3}], 0 offen sc1
    s_waitcnt vmcnt(1)
    v_cmp_eq_u64 vcc, s[{sTA}:{sTA+1}], v[{vPOLL}:{vPOLL+1}]
    v_cmp_eq_u64 s[{sMK}:{sMK+1}], s[{sTB}:{sTB+1}], v[{vPOLL}:{vPOLL+1}]
    s_or_b64 vcc, vcc, s[{sMK}:{sMK+1}]
    s_cmp_eq_u64 vcc, -1
    s_cbranch_scc1 L_ready
    buffer_load_dwordx2 v[{vPOLL}:{vPOLL+1}], v{vFA}, s[{sWS}:{sWS+3}], 0 offen sc1
    s_waitcnt vmcnt(1)
    v_cmp_eq_u64 vcc, s[{sTA}:{sTA+1}], v[{vPOL2}:{vPOL2+1}]
    v_cmp_eq_u64 s[{sMK}:{sMK+1}], s[{sTB}:{sTB+1}], v[{vPOL2}:{vPOL2+1}]
    s_or_b64 vcc, vcc, s[{sMK}:{sMK+1}]
    s_cmp_eq_u64 vcc, -1
    s_cbranch_scc1 L_ready
    s_add_u32 s{sSPIN}, s{sSPIN}, 1
    s_cmp_gt_u32 s{sSPIN}, {c.spin_max}
    s_cbranch_scc0 L_poll
    s_endpgm
""")
    else:
        a(f"""L_poll:
    s_waitcnt vmcnt(0)
    v_cmp_eq_u64 vcc, s[{sTA}:{sTA+1}], v[{vPOLL}:{vPOLL+1}]
    v_cmp_eq_u64 s[{sMK}:{sMK+1}], s[{sTB}:{sTB+1}], v[{vPOLL}:{vPOLL+1}]
    s_or_b64 vcc, vcc, s[{sMK}:{sMK+1}]
    s_cmp_eq_u64 vcc, -1
    s_cbranch_scc1 L_ready
    buffer_load_dwordx2 v[{vPOLL}:{vPOLL+1}], v{vFA}, s[{sWS}:{sWS+3}], 0 offen sc1
    s_add_u32 s{sSPIN}, s{sSPIN}, 1
    s_cmp_gt_u32 s{sSPIN}, {c.spin_max}
    s_cbranch_scc0 L_poll
    s_endpgm
""")
    a(f"""L_ready:
""")
    if c.amp and c.amp[0] == "start":
        a(f"""    s_cmp_eq_u32 s{sL}, 1
    s_cbranch_scc0 L_amp1
    s_memtime s[26:27]
    s_waitcnt lgkmcnt(0)
    s_sub_u32 s25, s26, s100
L_amp1:""")
    stamp(1)
    a(f"""
    s_barrier                                 ; B_a
    s_branch L_layer2
L_final:
""")
    epi(0); epi(1); epi(2); epi(3)
    a(f"""
    s_nop 1
    v_permlane32_swap_b32 v{vP}, v{vP+2}
    v_permlane32_swap_b32 v{vP+1}, v{vP+3}
    v_permlane32_swap_b32 v{vP+4}, v{vP+6}
    v_permlane32_swap_b32 v{vP+5}, v{vP+7}
    buffer_store_dwordx4 v[{vP}:{vP+3}], v{vOUT}, s[{sOUT}:{sOUT+3}], 0 offen
    buffer_store_dwordx4 v[{vP+4}:{vP+7}], v{vOUT}, s[{sOUT}:{sOUT+3}], 0 offen offset:32
    s_or_b32 s{sT0}, s{sJ}, s{sWV}
    s_cmp_eq_u32 s{sT0}, 0
    s_cbranch_scc0 L_noepoch
    s_add_u32 s{sT0}, s{sE}, 16
    s_addc_u32 s{sT1}, s{sE+1}, 0
    v_mov_b32 v{vFV}, s{sT0}
    v_mov_b32 v{vFV+1}, s{sT1}
    s_mov_b64 exec, 1
    buffer_store_dwordx2 v[{vFV}:{vFV+1}], off, s[{sWS}:{sWS+3}], s{sCB} sc1
    s_mov_b64 exec, -1
L_noepoch:
""")
    if c.amp:
        if c.amp[0] == "total":
            a("""    s_memtime s[26:27]
    s_waitcnt lgkmcnt(0)
    s_sub_u32 s25, s26, s100""")
        a(f"""    s_cmp_eq_u32 s2, 0
    s_cbranch_scc0 L_amp9
    s_mul_i32 s25, s25, {c.amp[1]}
    s_memtime s[80:81]
    s_waitcnt lgkmcnt(0)
L_ampspin:
    s_memtime s[82:83]
    s_waitcnt lgkmcnt(0)
    s_sub_u32 s82, s82, s80
    s_cmp_lt_u32 s82, s25
    s_cbranch_scc1 L_ampspin
L_amp9:""")
    if c.exp_delay or c.exp_rt:
        ins = "s_memtime" if c.exp_delay else "s_memrealtime"
        a(f"""
    {ins} s[80:81]
    s_waitcnt lgkmcnt(0)
L_expd:
    {ins} s[82:83]
    s_waitcnt lgkmcnt(0)
    s_sub_u32 s82, s82, s80
    s_cmp_lt_u32 s82, {c.exp_delay or c.exp_rt}
    s_cbranch_scc1 L_expd
""")
    stamp(1); dump_ts()
    a("    s_endpgm")

    if c.helpers:
        HPR = (c.SV * 16 + (2 * NSR if c.sp else 0)) if c.hp is None else c.hp * 16
        HP = HPR // 16
        nrow = 208 - HPR
        nline = nrow * 13
        tot = 4 * nline
        nins = (tot + 63) // 64
        cdelta = HPR * ROWB
        NK = -(-nins // 48)
        HF = 1 if ((c.h0 == 'prefix' or c.w0assist) and c.hfirst == 0) else c.hfirst
        a(f"""
L_helper:
""")
        if c.probe:
            a(f"""
    s_cmp_eq_u32 s2, 208
    s_cbranch_scc0 L_noprobe
    s_cmp_eq_u32 s{sWV}, 0
    s_cbranch_scc0 L_noprobe
    s_mov_b32 s20, {c.probe_off + 16384}
    buffer_load_dword v30, off, s[{sW}:{sW+3}], s20
    s_waitcnt vmcnt(0)
    s_mov_b32 s20, {c.probe_off}
    s_memtime s[22:23]
    s_waitcnt lgkmcnt(0)
    buffer_load_dword v30, off, s[{sW}:{sW+3}], s20
    s_waitcnt vmcnt(0)
    s_memtime s[24:25]
    s_waitcnt lgkmcnt(0)
    s_sub_u32 s24, s24, s22
    s_mul_i32 s24, s24, {c.probe}
L_pspin:
    s_memtime s[26:27]
    s_waitcnt lgkmcnt(0)
    s_sub_u32 s26, s26, s22
    s_cmp_lt_u32 s26, s24
    s_cbranch_scc1 L_pspin
    s_endpgm
L_noprobe:""")
        a(f"""
    ; L2 prefetch for the workers of this die (placement assumed for speed only): one dword per 128-byte line
    s_sub_u32 s{sT0}, s2, 208
    s_and_b32 s{sT1}, s{sT0}, 7
    s_lshr_b32 s{sT0}, s{sT0}, 3
    s_lshl_b32 s{sT0}, s{sT0}, 3
    s_add_u32 s{sT0}, s{sT0}, s{sWV}          ; g = 0..47
    s_lshl_b32 s{sCB}, s{sT1}, 13
    s_add_u32 s{sCB}, s{sCB}, {CTRL}
    s_load_dwordx2 s[{sE}:{sE+1}], s[50:51], s{sCB}
    s_add_u32 s{sOWNF}, s{sCB}, 3072
""")
        if c.tlbwarm:
            a(f"""
    s_cmp_eq_u32 s{sWV}, 7
    s_cbranch_scc0 L_notlb
""")
            k_ = 0
            for base, offs in ((46, [0, XLAYER - 64]), (50, [0, XBUF - 64, XBUF + (1 << 20), 2 * XBUF - 64, 2 * XBUF + 65536 - 64]),
                               (42, [1 << 21, 2 << 21, 3 << 21, L_ * WLAYER - 64])):
                for off in offs:
                    a(f"""    s_add_u32 s24, s{base}, {off}
    s_addc_u32 s25, s{base+1}, 0
    s_load_dword s{76+k_}, s[24:25], 0""")
                    k_ += 1
            a("L_notlb:")
        a(f"""
    ; exchange-buffer lines of the die's two row blocks: {2*XRB//128} lines
    s_mul_i32 s{sG}, s{sT1}, {2*XRB}
    s_lshl_b32 s{sI}, s{sT0}, 13
    s_add_u32 s{sG}, s{sG}, s{sI}
    v_lshlrev_b32 v19, 7, v{vL}
    v_add_u32 v19, s{sG}, v19
    s_cmp_lt_u32 s{sT0}, {-(-2*XRB // 8192)}
    s_cselect_b32 s{sM}, 1, 0
""")
        def lane_addr(vdst, nline_, base0, delta):
            tot_ = 4 * nline_
            a(f"""
    s_lshl_b32 s{sI}, s{sI}, 6
    v_add_u32 v{vT0}, s{sI}, v{vL}
    v_mov_b32 v{vT1}, {base0}
    v_cmp_le_u32 vcc, {nline_}, v{vT0}
    v_mov_b32 v{vT2}, 0
    v_mov_b32 v{vT3}, {delta}
    v_cndmask_b32 v{vT2}, v{vT2}, v{vT3}, vcc
    v_add_u32 v{vT1}, v{vT1}, v{vT2}
    v_cmp_le_u32 vcc, {2*nline_}, v{vT0}
    v_mov_b32 v{vT2}, 0
    s_nop 0
    v_cndmask_b32 v{vT2}, v{vT2}, v{vT3}, vcc
    v_add_u32 v{vT1}, v{vT1}, v{vT2}
    v_cmp_le_u32 vcc, {3*nline_}, v{vT0}
    v_mov_b32 v{vT2}, 0
    s_nop 0
    v_cndmask_b32 v{vT2}, v{vT2}, v{vT3}, vcc
    v_add_u32 v{vT1}, v{vT1}, v{vT2}
    v_lshl_add_u32 v{vdst}, v{vT0}, 7, v{vT1}
    v_cmp_le_u32 vcc, {tot_}, v{vT0}
    v_mov_b32 v{vT2}, 0x7ffffff0
    s_nop 0
    v_cndmask_b32 v{vdst}, v{vdst}, v{vT2}, vcc""")
        def need_set(vbase, skip_rows, nrows):
            tot_ = nrows * 52
            nins_ = (tot_ + 63) // 64
            nk = -(-nins_ // 48)
            for k in range(nk):
                a(f"""
    s_add_u32 s{sI}, s{sT0}, {48*k}
    s_lshl_b32 s{sI}, s{sI}, 6
    v_add_u32 v{vT0}, s{sI}, v{vL}
    v_mul_u32_u24 v{vT1}, 80660, v{vT0}
    v_lshrrev_b32 v{vT1}, 22, v{vT1}
    v_mul_u32_u24 v{vT2}, 52, v{vT1}
    v_sub_u32 v{vT2}, v{vT0}, v{vT2}          ; rem
    v_mul_u32_u24 v{vT3}, 5042, v{vT2}
    v_lshrrev_b32 v{vT3}, 16, v{vT3}
    v_mul_u32_u24 v{vbase+k}, 13, v{vT3}
    v_sub_u32 v{vT2}, v{vT2}, v{vbase+k}
    v_mul_u32_u24 v{vT3}, 208, v{vT3}
    v_add_u32 v{vT1}, v{vT1}, v{vT3}
    v_add_u32 v{vT1}, {skip_rows}, v{vT1}     ; row
    v_mul_u32_u24 v{vT1}, {ROWB}, v{vT1}
    v_lshl_add_u32 v{vbase+k}, v{vT2}, 7, v{vT1}
    v_cmp_le_u32 vcc, {tot_}, v{vT0}
    v_mov_b32 v{vT2}, 0x7ffffff0
    s_nop 0
    v_cndmask_b32 v{vbase+k}, v{vbase+k}, v{vT2}, vcc""")
            return nk
        def addr_set(vbase, nline_, base0, delta, tag):
            tot_ = 4 * nline_
            nins_ = (tot_ + 63) // 64
            nk = -(-nins_ // 48)
            a(f"    s_mul_i32 s{sT2}, s{sT1}, {nins_ // 8}")
            for k in range(nk):
                a(f"""
    s_add_u32 s{sT3}, s{sT0}, {48*k}
    s_add_u32 s{sI}, s{sT3}, s{sT2}
    s_cmp_ge_u32 s{sI}, {nins_}
    s_cselect_b32 s{sG}, {nins_}, 0
    s_sub_u32 s{sI}, s{sI}, s{sG}
    s_cmp_ge_u32 s{sT3}, {nins_}
    s_cselect_b32 s{sI}, {nins_ + 8}, s{sI}   ; no k-th instruction -> past the end""")
                lane_addr(vbase + k, nline_, base0, delta)
            return nk
        NK0 = 0
        if c.w0assist and c.hfirst == 0:
            skip0 = P * 16 + 60
            NK0 = addr_set(40, (208 - skip0) * 13, skip0 * ROWB, skip0 * ROWB, "p")
            for k in range(NK0):
                a(f"    buffer_load_dword v{50+k}, v{40+k}, s[{sW}:{sW+3}], 0 offen")
        elif c.h0 == "prefix" and c.hfirst == 0:
            NK0 = addr_set(40, HP * 16 * 13, 0, (13 - HP) * 26624, "p")
            for k in range(NK0):
                a(f"    buffer_load_dword v{50+k}, v{40+k}, s[{sW}:{sW+3}], 0 offen")
        if c.horder == "need": need_set(10, HPR, nrow)
        else: addr_set(10, nline, cdelta, cdelta, "h")
        nshare_l = tot // 8
        NW_ = 14
        if c.hwarm:
            a(f"""
    s_mul_i32 s{sI}, s{sT1}, {nshare_l}
    s_mul_i32 s{sG}, s{sT0}, {NW_}
    s_add_u32 s{sI}, s{sI}, s{sG}
    s_mov_b32 s{sG}, {cdelta}
    s_cmp_ge_u32 s{sI}, {nline}
    s_cselect_b32 s{sT3}, {cdelta}, 0
    s_add_u32 s{sG}, s{sG}, s{sT3}
    s_cmp_ge_u32 s{sI}, {2*nline}
    s_cselect_b32 s{sT3}, {cdelta}, 0
    s_add_u32 s{sG}, s{sG}, s{sT3}
    s_cmp_ge_u32 s{sI}, {3*nline}
    s_cselect_b32 s{sT3}, {cdelta}, 0
    s_add_u32 s{sG}, s{sG}, s{sT3}
    s_lshl_b32 s{sI}, s{sI}, 7
    s_add_u32 s{sI}, s{sI}, s{sG}
    s_add_u32 s{sI}, s{sI}, {c.wstride}
    s_add_u32 s44, s42, s{sI}                 ; layer 1
    s_addc_u32 s45, s43, 0""")
        if c.hvec_warm:
            a(f"""
    ; memory-side cache warm-up: lines [die*1352, +1352) of a later layer, one line per lane; waves g < 22 (and g - 22 < 22 at the start)
    s_cmp_ge_u32 s{sT0}, 22
    s_cselect_b32 s{sG}, 22, 0
    s_cselect_b32 s{sWG}, 1, 0
    s_sub_u32 s{sG}, s{sT0}, s{sG}
    s_lshl_b32 s{sG}, s{sG}, 6
    s_mul_i32 s{sI}, s{sT1}, 1352
    s_add_u32 s{sI}, s{sI}, s{sG}
    v_add_u32 v{vT0}, s{sI}, v{vL}
    v_lshlrev_b32 v18, 7, v{vT0}
    v_add_u32 v{vT1}, s{sG}, v{vL}
    v_cmp_le_u32 vcc, 1352, v{vT1}
    v_mov_b32 v{vT2}, 0x7ffffff0
    s_nop 0
    v_cndmask_b32 v18, v18, v{vT2}, vcc""")
        nv_l = c.SV * 16 * 52 // 8
        if c.hvwarm:
            a(f"""
    s_mul_i32 s{sI}, s{sT1}, {nv_l}
    s_mul_i32 s{sG}, s{sT0}, 7
    s_min_u32 s{sG}, s{sG}, {nv_l - 7}
    s_add_u32 s{sI}, s{sI}, s{sG}
    s_mov_b32 s{sG}, 0
    s_cmp_ge_u32 s{sI}, {c.SV * 16 * 13}
    s_cselect_b32 s{sT3}, {(208 - c.SV * 16) * ROWB}, 0
    s_add_u32 s{sG}, s{sG}, s{sT3}
    s_cmp_ge_u32 s{sI}, {2 * c.SV * 16 * 13}
    s_cselect_b32 s{sT3}, {(208 - c.SV * 16) * ROWB}, 0
    s_add_u32 s{sG}, s{sG}, s{sT3}
    s_cmp_ge_u32 s{sI}, {3 * c.SV * 16 * 13}
    s_cselect_b32 s{sT3}, {(208 - c.SV * 16) * ROWB}, 0
    s_add_u32 s{sG}, s{sG}, s{sT3}
    s_lshl_b32 s{sI}, s{sI}, 7
    s_add_u32 s{sI}, s{sI}, s{sG}
    s_add_u32 s{sI}, s{sI}, {c.wstride}
    s_add_u32 s46, s42, s{sI}                 ; layer 1
    s_addc_u32 s47, s43, 0""")
        if NK0 and c.hwarm:
            a("    s_waitcnt lgkmcnt(0)")
            for half in range(2):
                if half: a("    s_waitcnt lgkmcnt(0)")
                for n_ in range(7 * half, 7 * half + 7):
                    a(f"    s_load_dwordx2 s[{76+2*(n_%7)}:{77+2*(n_%7)}], s[44:45], {n_*128 + 60}")
            a(f"    s_add_u32 s44, s44, {c.wstride}")
            a(f"    s_addc_u32 s45, s45, 0")
        if NK0:
            a(f"""
    s_waitcnt vmcnt(0)
    s_barrier
    s_cmp_eq_u32 s{sM}, 1
    s_cbranch_scc0 L_hx1
    s_mov_b32 s{sI}, {XBUF}
    buffer_load_dword v30, v19, s[{sWS}:{sWS+3}], s{sI} offen sc1
L_hx1:
""")
        a(f"""
    v_mov_b32 v20, 0
    s_mov_b32 s{sL}, {HF}
    s_mov_b32 s{sT3}, {HF * c.wstride}
    s_waitcnt lgkmcnt(0)
L_h_layer:
""")
        if c.hpace:
            a(f"""
    ; before layer m wait (bounded) until the workers have finished layer m-{c.hlook}
    s_cmp_lt_u32 s{sL}, {c.hlook}
    s_cbranch_scc1 L_h_go
    s_cmp_eq_u32 s{sWV}, 0
    s_cbranch_scc0 L_h_bar
    s_mov_b32 s{sSPIN}, 0
L_h_poll:
    buffer_load_dwordx2 v[16:17], v20, s[{sWS}:{sWS+3}], s{sOWNF} offen sc1
    s_waitcnt vmcnt(0)
    v_readfirstlane_b32 s{sTA}, v16
    v_readfirstlane_b32 s{sTA+1}, v17
    s_sub_u32 s{sTA}, s{sTA}, s{sE}
    s_subb_u32 s{sTA+1}, s{sTA+1}, s{sE+1}
    s_cmp_eq_u32 s{sTA+1}, 0
    s_cselect_b32 s{sTA}, s{sTA}, 0
    s_cmp_gt_u32 s{sTA}, 6
    s_cselect_b32 s{sTA}, 0, s{sTA}
    s_add_u32 s{sTA}, s{sTA}, {c.hlook - 1}
    s_cmp_ge_u32 s{sTA}, s{sL}
    s_cbranch_scc1 L_h_bar
    s_add_u32 s{sSPIN}, s{sSPIN}, 1
    s_cmp_lt_u32 s{sSPIN}, 32
    s_cbranch_scc1 L_h_poll
L_h_bar:
    s_barrier
L_h_go:
""")
        def hw_batch(k, lab):
            if not c.hwarm: return
            a(f"    s_cmp_lt_u32 s{sL}, 5")
            a(f"    s_cbranch_scc0 {lab}")
            if not c.hw0:
                a(f"    s_cmp_eq_u32 s{sL}, 0")
                a(f"    s_cbranch_scc1 {lab}")
            a("    s_waitcnt lgkmcnt(0)")
            for n_ in range(7 * k, 7 * k + 7):
                a(f"    s_load_dwordx2 s[{76+2*(n_%7)}:{77+2*(n_%7)}], s[44:45], {n_*128 + 60}")
            a(f"{lab}:")
        def vec_warm(lab):
            A_ = c.hvw_ahead
            a(f"    s_cmp_eq_u32 s{sWG}, 1")
            a(f"    s_cbranch_scc1 {lab}_b")
            a(f"    s_add_u32 s{sI}, s{sL}, {A_}")
            a(f"    s_cmp_le_u32 s{sI}, 5")
            a(f"    s_cbranch_scc0 {lab}")
            if c.wwarm:
                a(f"    s_cmp_gt_u32 s{sI}, {c.wwarm}")
                a(f"    s_cbranch_scc0 {lab}")
            a(f"    s_add_u32 s{sI}, s{sT3}, {A_ * c.wstride}")
            a(f"    buffer_load_dword v29, v18, s[{sW}:{sW+3}], s{sI} offen")
            a(f"    s_branch {lab}")
            a(f"{lab}_b:")
            if A_ == 2 and c.wwarm < 1:
                a(f"    s_cmp_eq_u32 s{sL}, {HF}")
                a(f"    s_cbranch_scc0 {lab}")
                a(f"    s_add_u32 s{sI}, s{sT3}, {c.wstride}")
                a(f"    buffer_load_dword v29, v18, s[{sW}:{sW+3}], s{sI} offen")
            a(f"{lab}:")
        if c.hvec_warm and c.hvw_pos == "before": vec_warm("L_hvw")
        for k in range(NK):
            a(f"    buffer_load_dword v{31+k}, v{10+k}, s[{sW}:{sW+3}], s{sT3} offen")
            if k < 2: hw_batch(k, f"L_hw{k}")
            a(f"    s_waitcnt vmcnt({c.hdepth})")
            a(f"    s_barrier")
        if c.hvec_warm and c.hvw_pos == "after": vec_warm("L_hvw")
        if c.hvwarm:
            a(f"    s_cmp_lt_u32 s{sL}, 5")
            a(f"    s_cbranch_scc0 L_hnv")
            a("    s_waitcnt lgkmcnt(0)")
            for n_ in range(7):
                a(f"    s_load_dwordx2 s[{76+2*n_}:{77+2*n_}], s[46:47], {n_*128 + 60}")
            a(f"    s_add_u32 s46, s46, {c.wstride}")
            a(f"    s_addc_u32 s47, s47, 0")
            a("L_hnv:")
        if c.hwarm:
            a(f"    s_add_u32 s44, s44, {c.wstride}")
            a(f"    s_addc_u32 s45, s45, 0")
        if c.xt_by in ('helper', 'mixed'):
            nbuf = 1 if c.xt_by == "mixed" else 2
            a(f"""
    s_sub_u32 s{sI}, s{sL}, {HF}
    s_add_u32 s{sI}, s{sI}, {1 if HF != c.hfirst else 0}
    s_cmp_lt_u32 s{sI}, {nbuf}
    s_cbranch_scc0 L_hx0
    s_cmp_eq_u32 s{sM}, 1
    s_cbranch_scc0 L_hx0
    s_cmp_eq_u32 s{sI}, 0
    s_cselect_b32 s{sI}, {XBUF}, 0
    buffer_load_dword v30, v19, s[{sWS}:{sWS+3}], s{sI} offen sc1
L_hx0:""")
        stamp(1)
        a(f"""
    s_add_u32 s{sL}, s{sL}, 1
    s_add_u32 s{sT3}, s{sT3}, {c.wstride}
    s_cmp_lt_u32 s{sL}, 6
    s_cbranch_scc1 L_h_layer
""")
        if c.hwb:
            a(f"""
    ; first helper workgroup of the die, wave 0: once layer 4 is finished, start writing the exchanged activations back
    s_cmp_lt_u32 s2, 216
    s_cbranch_scc0 L_nowb
    s_cmp_eq_u32 s{sWV}, 0
    s_cbranch_scc0 L_nowb
    s_mov_b32 s{sSPIN}, 0
L_wbpoll:
    buffer_load_dwordx2 v[16:17], v20, s[{sWS}:{sWS+3}], s{sOWNF} offen sc1
    s_waitcnt vmcnt(0)
    v_readfirstlane_b32 s{sTA}, v16
    v_readfirstlane_b32 s{sTA+1}, v17
    s_sub_u32 s{sTA}, s{sTA}, s{sE}
    s_subb_u32 s{sTA+1}, s{sTA+1}, s{sE+1}
    s_cmp_eq_u32 s{sTA+1}, 0
    s_cselect_b32 s{sTA}, s{sTA}, 0
    s_cmp_eq_u32 s{sTA}, 5
    s_cbranch_scc1 L_wbgo
    s_add_u32 s{sSPIN}, s{sSPIN}, 1
    s_cmp_lt_u32 s{sSPIN}, 64
    s_cbranch_scc1 L_wbpoll
L_wbgo:
    buffer_wbl2 sc1
L_nowb:""")
        a("    s_waitcnt vmcnt(0)")
        stamp(1)
        dump_ts()
    a("L_end:")
    a("    s_endpgm")
    kernel_desc(a, KNAME, NV, sgpr=102, accum=NV)
    txt = a.text().rstrip()
    if txt.endswith(".text"):
        txt = txt[:-5]
    return txt

if __name__ == "__main__":
    import json
    kw = json.loads(sys.argv[2]) if len(sys.argv) > 2 else {}
    open(sys.argv[1], "w").write(gen(**kw))
```

```python
import sys, os
from asmlib import *

KNAME = "standalone__dcn_v2_cross__recsys_kernel"
B_, DIN, L_ = 1024, 832, 6
ROWB = DIN * 2
WLAYER = DIN * DIN * 2
XLAYER = B_ * DIN * 2
XMH = 32 * ROWB
XRB = 2 * XMH
XBUF = 16 * XRB
CTRL = 2 * XBUF
TSOFF = CTRL + 16 * 4096
WS_BYTES = TSOFF + 256 * 8 * 256

class Cfg:
    def __init__(self, **kw):
        self.P = 6
        self.D = 5
        self.PF = 2
        self.SV = 3
        self.SB = 7
        self.ssched = 'three'
        self.NS = 3
        self.sp = True
        self.hp = None
        self.helpers = True
        self.hfirst = 0
        self.hlook = 2
        self.hpace = True
        self.hdepth = 1
        self.lthr = 0
        self.lthr_all = True
        self.sD_late = True
        self.ts = 0
        self.force_slow = False
        self.scramble = False
        self.spin_max = 1 << 20
        self.wstride = WLAYER
        self.prio = 2
        self.hello_step = 19
        self.nt_last = False
        self.hfirstid = False
        self.chunks0 = [13, 17, 20, 23]
        self.amp = None
        self.hwb = False
        self.probe = 0
        self.probe_off = 5 * WLAYER + 700 * ROWB
        self.codepf = True
        self.wwarm = 0
        self.xt_by = 'helper'
        self.hvec_warm = False
        self.hvw_ahead = 2
        self.hvw_pos = 'after'
        self.tlbwarm = False
        self.l0b1 = True
        self.hvwarm = False
        self.hw0 = True
        self.hello_by = 'compute'
        self.pre_first = False
        self.swarm = False
        self.horder = 'linear'
        self.hwarm = True
        self.prog_step = 22
        self.prog_at = 'end'
        self.vwarm = True
        self.pre_by = 'loader'
        self.mid_step = 21
        self.presched = 'pack'
        self.h0 = 'middle'
        self.xtouch = False
        self.w0assist = False
        self.bias_by = 'loader'
        self.exp_delay = 0
        self.exp_rt = 0
        self.poll2 = True
        self.phased = True
        self.n1 = 0
        self.n2 = 4
        self.onepoll = True
        self.no_suf = self.no_pre = self.no_x = self.no_w = False
        self.__dict__.update(kw)

def gen(cfg=None, **kw):
    c = cfg or Cfg(**kw)
    P, D, PF = c.P, c.D, c.PF
    TS = int(c.ts)
    assert P <= 12 and PF <= P and D >= PF + 1
    KHS = (26 - P) * 2048
    PRE0 = 0
    SUF = 2 * P * 2048
    PRE1 = SUF + 2 * KHS
    PREPAR = PRE1 - PRE0
    RED = PRE1 + 2 * P * 2048
    BIAS = RED + 16384
    MODEW = BIAS
    LDS_BYTES = BIAS + 64
    XS = SUF
    assert XS + 4 * 28672 <= BIAS and LDS_BYTES <= 163840
    sW, sWS, sX0, sOUT, sBS = 4, 8, 12, 16, 24
    sRB, sJ, sG2, sWV, sMH, sKH, sL, sXCC, sMODE = 28, 29, 30, 31, 32, 33, 34, 35, 36
    sXA, sXB, sXST = 37, 38, 39
    sWP, sMP, sPD = 52, 53, 54
    sU, sOWNF, sXD2 = 55, 56, 57
    sT0, sT1, sT2, sT3 = 58, 59, 60, 61
    sSPIN, sROT = 62, 63
    sG, sM, sI = 64, 65, 66
    sTSI, sTM = 67, 68
    sXD, sCB = 70, 71
    sE, sTA, sTB, sMK = 72, 74, 76, 78
    sBP_ = 48
    sWG = 30
    vL = 0
    vT0, vT1, vT2, vT3 = 1, 2, 3, 4
    vDUM = 5
    vXO = 6
    vAPK, vAPS, vASK, vASS = 10, 11, 12, 13
    vDMA, vFA = 14, 15
    vPOLL = 16
    vRW, vRR, vBA, vTS = 20, 21, 22, 23
    vP = 24
    vAK, vAS, vPART, vX0F, vXR = 32, 48, 64, 80, 96
    vWF = 112
    vXF = 136
    vBP = 240
    vOUT, vHA, vFV, vDMA0 = 248, 249, 250, 252
    vPOL2 = 254
    NV = 256
    nsets = PF + 1
    assert nsets * 8 <= 24

    a = Asm()
    a("; Fused DCN-v2 cross network: 6 layers of x = x0 * (x @ W[l] + b[l]) + x, 1024 x 832, bf16 in/out, f32 accumulate.")
    a("; 208 worker workgroups = 16 row blocks (64 rows) x 13 column slices (64 columns); waves 0-3 MFMA, waves 4-7 W loaders;")
    a("; 48 helper workgroups prefetch into L2.  Layer outputs are exchanged inside a row block through d_ws.")
    a(f"; @launch grid=({256 if c.helpers else 208},1,1) block=(512,1,1) lds={LDS_BYTES}")
    a('.amdgcn_target "amdgcn-amd-amdhsa--gfx950"')
    a(".text")
    kernel_begin(a, KNAME)
    if c.amp:
        a("    s_memtime s[100:101]")
    if TS == 5:
        a("    s_memrealtime s[26:27]")
        a("    s_memtime s[100:101]")

    def stamp(level=2):
        if not TS or TS < level or (TS == 4 and level > 1) or TS == 5: return
        a(f"    s_memtime s[{sTM}:{sTM+1}]")
        a(f"    s_waitcnt lgkmcnt(0)")
        a(f"    s_mov_b32 m0, s{sTSI}")
        a(f"    s_nop 0")
        a(f"    v_writelane_b32 v{vTS}, s{sTM}, m0")
        a(f"    s_add_u32 s{sTSI}, s{sTSI}, 1")
    def dump_ts():
        if not TS: return
        if TS == 5:
            a("    s_memrealtime s[80:81]")
            a("    s_memtime s[82:83]")
            a("    s_waitcnt lgkmcnt(0)")
            a(f"    v_writelane_b32 v{vTS}, s26, 0")
            a(f"    v_writelane_b32 v{vTS}, s80, 1")
            a(f"    v_writelane_b32 v{vTS}, s100, 2")
            a(f"    v_writelane_b32 v{vTS}, s82, 3")
        a(f"""
    s_lshl_b32 s{sT0}, s2, 3
    s_add_u32 s{sT0}, s{sT0}, s{sWV}
    s_lshl_b32 s{sT0}, s{sT0}, 8
    s_add_u32 s{sT0}, s{sT0}, {TSOFF}
    v_lshlrev_b32 v{vT0}, 2, v{vL}
    buffer_store_dword v{vTS}, v{vT0}, s[{sWS}:{sWS+3}], s{sT0} offen
""")
    def srd(dst, src, nbytes):
        a(f"    s_mov_b32 s{dst}, s{src}")
        a(f"    s_and_b32 s{dst+1}, s{src+1}, 0xffff")
        a(f"    s_mov_b32 s{dst+2}, {nbytes}")
        a(f"    s_mov_b32 s{dst+3}, 0x20000")

    a(f"""
    s_cmp_ge_u32 s2, {256 if c.helpers else 208}
    s_cbranch_scc1 L_end
    s_load_dwordx4 s[40:43], s[0:1], 0
    s_load_dwordx4 s[44:47], s[0:1], 16
    s_load_dwordx2 s[50:51], s[0:1], 40
    s_getreg_b32 s{sXCC}, hwreg(HW_REG_XCC_ID, 0, 4)
""")
    if c.hfirstid and c.helpers:
        a("""    s_cmp_lt_u32 s2, 48
    s_cselect_b32 s3, 256, 0
    s_add_u32 s2, s2, s3
    s_sub_u32 s2, s2, 48""")
    if c.scramble:
        a(f"""
    s_mul_hi_u32 s{sRB}, s2, 0x13B13B14
    s_mul_i32 s{sT0}, s{sRB}, 13
    s_sub_u32 s{sJ}, s2, s{sT0}
    s_and_b32 s{sG2}, s{sRB}, 1
    s_mul_i32 s{sROT}, s{sG2}, 13""")
    else:
        a(f"""
    s_and_b32 s{sT0}, s2, 7
    s_lshr_b32 s{sT1}, s2, 3
    s_cmp_ge_u32 s{sT1}, 13
    s_cselect_b32 s{sG2}, 1, 0
    s_mul_i32 s{sROT}, s{sG2}, 13
    s_sub_u32 s{sJ}, s{sT1}, s{sROT}
    s_lshl_b32 s{sRB}, s{sT0}, 1
    s_add_u32 s{sRB}, s{sRB}, s{sG2}""")
    a(f"""
    v_lshrrev_b32 v{vT0}, 6, v0
    v_and_b32 v{vL}, 63, v0
    v_readfirstlane_b32 s{sWV}, v{vT0}
    s_mov_b32 s{sTSI}, 0
    v_mov_b32 v{vTS}, 0
    s_lshl_b32 s{sCB}, s{sRB}, 12
    s_add_u32 s{sCB}, s{sCB}, {CTRL}
    s_and_b32 s{sMH}, s{sWV}, 1
    s_bfe_u32 s{sKH}, s{sWV}, 0x10001
    ; ---- x0 staging addresses (used by the loader waves; computed while the kernel arguments are on their way)
    s_sub_u32 s{sU}, s{sWV}, 4                ; u = 0..3: (kh, a) for W, compute wave u for the x0 staging
    v_lshrrev_b32 v{vT0}, 3, v{vL}            ; row8
    v_and_b32 v{vT1}, 7, v{vL}
    v_lshrrev_b32 v{vT2}, 1, v{vT0}
    v_xor_b32 v{vT1}, v{vT1}, v{vT2}          ; c' ^ (row8>>1)
    v_xor_b32 v{vT2}, 4, v{vT1}
    v_mul_u32_u24 v{vT0}, {ROWB}, v{vT0}
    v_lshl_add_u32 v{vXO}, v{vT1}, 4, v{vT0}
    v_lshl_add_u32 v{vXO+1}, v{vT2}, 4, v{vT0}
    s_lshl_b32 s{sT0}, s{sRB}, 6
    s_lshl_b32 s{sT1}, s{sMH}, 5
    s_add_u32 s{sT0}, s{sT0}, s{sT1}
    s_mul_i32 s{sG}, s{sT0}, {ROWB}
    s_mul_i32 s{sT1}, s{sKH}, {6*128}
    s_add_u32 s{sG}, s{sG}, s{sT1}
    s_mul_i32 s{sM}, s{sU}, 28672
    s_add_u32 s{sM}, s{sM}, {XS}
    s_cmp_ge_u32 s{sJ}, 7
    s_cselect_b32 s{sT3}, 7, 0
    s_sub_u32 s{sT3}, s{sJ}, s{sT3}
    s_mov_b32 s{sI}, 0
    s_waitcnt lgkmcnt(0)
""")
    srd(sX0, 40, XLAYER)
    stamp(1)
    def common_srds():
        srd(sW, 42, L_ * WLAYER)
        srd(sWS, 50, WS_BYTES)
        if c.codepf:
            n_ = common_srds.n = getattr(common_srds, "n", 0) + 1
            a(f"""    ; instruction prefetch into L2: wave (id/8)*8 + w reads line number (that index) of this kernel's code
    s_getpc_b64 s[20:21]
L_pc{n_}:
    s_lshr_b32 s22, s2, 3
    s_lshl_b32 s22, s22, 3
    s_add_u32 s22, s22, s{sWV}
    s_lshl_b32 s22, s22, 6
    s_sub_u32 s20, s20, L_pc{n_} - {KNAME}
    s_subb_u32 s21, s21, 0
    s_min_u32 s22, s22, L_end - {KNAME}
    s_load_dword s3, s[20:21], s22""")
    def vdma():
        a(f"""    ; W DMA lane offsets: swizzled 16-byte chunk + j*128; rows in layer-0 order (vDMA0) and in normal order (vDMA)
    v_lshrrev_b32 v{vT0}, 3, v{vL}            ; row8
    v_and_b32 v{vT1}, 7, v{vL}
    v_bfe_u32 v{vT2}, v{vL}, 4, 1
    v_lshlrev_b32 v{vT2}, 2, v{vT2}
    v_xor_b32 v{vT1}, v{vT1}, v{vT2}
    v_lshlrev_b32 v{vT1}, 4, v{vT1}
    s_lshl_b32 s{sT0}, s{sJ}, 7
    v_add_u32 v{vT1}, s{sT0}, v{vT1}
    v_mul_u32_u24 v{vT2}, {ROWB}, v{vT0}
    v_add_u32 v{vDMA}, v{vT2}, v{vT1}
    v_and_b32 v{vT2}, 3, v{vT0}
    v_lshrrev_b32 v{vT0}, 2, v{vT0}
    v_lshl_add_u32 v{vT0}, v{vT0}, 3, v{vT2}
    v_mul_u32_u24 v{vT0}, {ROWB}, v{vT0}
    v_add_u32 v{vDMA0}, v{vT0}, v{vT1}
""")
    a(f"""
    s_cmp_ge_u32 s2, 208
    s_cbranch_scc1 L_nonloader
    s_cmp_lt_u32 s{sWV}, 4
    s_cbranch_scc1 L_nonloader
""")
    def bias_dma(sreg, val, lab):
        a(f"    s_cmp_eq_u32 s{sreg}, {val}")
        a(f"    s_cbranch_scc0 {lab}")
        srd(sBS, 44, L_ * ROWB)
        a(f"""    v_lshrrev_b32 v{vT0}, 5, v{vL}
    v_mul_u32_u24 v{vT0}, {ROWB}, v{vT0}
    v_and_b32 v{vT1}, 31, v{vL}
    v_lshlrev_b32 v{vT1}, 2, v{vT1}
    v_add_u32 v{vT0}, v{vT0}, v{vT1}
    s_lshl_b32 s{sT0}, s{sJ}, 7
    v_add_u32 v{vT0}, s{sT0}, v{vT0}""")
        for t in range(3):
            a(f"    s_mov_b32 m0, {BIAS + 256*t}")
            a(f"    s_mov_b32 s{sT1}, {2*t*ROWB}")
            a(f"    buffer_load_dword v{vT0}, s[{sBS}:{sBS+3}], s{sT1} offen lds")
        a(f"{lab}:")
    vS0, vS1 = vXO, vXO + 1
    sSB = 40
    sWP0 = 98
    SB = c.SB
    NSR = (2 if c.ssched == 'two' else 3) * SB
    def sbatch(k, nextlayer=False):
        if not c.sp: return
        b = sSB + 2 if nextlayer else sSB
        for n_ in range(SB):
            a(f"    s_load_dwordx2 s[{76+2*n_}:{77+2*n_}], s[{b}:{b+1}], {(k * SB + n_) * ROWB + 60}")
    a(f"""
L_xs:
    s_lshl_b32 s{sT0}, s{sT3}, 12
    s_add_u32 s{sT0}, s{sT0}, s{sM}
    s_lshl_b32 s{sT1}, s{sT3}, 7
    s_add_u32 s{sT1}, s{sT1}, s{sG}
""")
    for rg in range(4):
        a(f"    s_add_u32 m0, s{sT0}, {rg*1024}")
        a(f"    s_add_u32 s{sT2}, s{sT1}, {rg*8*ROWB}")
        a(f"    buffer_load_dwordx4 v{vS0 if rg % 2 == 0 else vS1}, s[{sX0}:{sX0+3}], s{sT2} offen lds")
    a(f"""
    s_add_u32 s{sT3}, s{sT3}, 1
    s_cmp_eq_u32 s{sT3}, 7
    s_cselect_b32 s{sT3}, 0, s{sT3}
    s_add_u32 s{sI}, s{sI}, 1
    s_cmp_lt_u32 s{sI}, 7
    s_cbranch_scc1 L_xs
""")
    common_srds()
    vdma()
    a(f"""
    s_mul_i32 s{sT0}, s{sKH}, 416
    s_lshl_b32 s{sT1}, s{sMH}, 2
    s_add_u32 s{sT1}, s{sT1}, s{sT0}
    s_mul_i32 s{sT1}, s{sT1}, {ROWB}
    v_add_u32 v{vDMA0}, s{sT1}, v{vDMA0}
    s_lshl_b32 s{sT1}, s{sMH}, 3
    s_add_u32 s{sT1}, s{sT1}, s{sT0}
    s_mul_i32 s{sT1}, s{sT1}, {ROWB}
    v_add_u32 v{vDMA}, s{sT1}, v{vDMA}
    ; ---- W prefix of layer 0
    s_mul_i32 s{sG}, s{sROT}, 26624
    s_mul_i32 s{sM}, s{sKH}, {P*2048}
    s_lshl_b32 s{sT1}, s{sMH}, 10
    s_add_u32 s{sM}, s{sM}, s{sT1}
""")
    for i in range(P):
        a(f"    s_add_u32 m0, s{sM}, {PRE0 + i*2048}")
        a(f"    s_add_u32 s{sT0}, s{sG}, {i*26624}")
        a(f"    buffer_load_dwordx4 v{vDMA0}, s[{sW}:{sW+3}], s{sT0} offen lds")
    a(f"""
""")
    if c.w0assist:
        a(f"""
    s_cmp_eq_u32 s{sU}, 3
    s_cbranch_scc0 L_now0t
    v_lshrrev_b32 v21, 5, v{vL}               ; K half
    v_mul_u32_u24 v21, 416, v21
    v_and_b32 v22, 31, v{vL}
    v_add_u32 v21, v21, v22
    v_mul_u32_u24 v21, {ROWB}, v21
    s_lshl_b32 s20, s{sROT}, 4
    s_add_u32 s20, s20, {P * 16 + 28}
    s_mul_i32 s20, s20, {ROWB}
    s_lshl_b32 s21, s{sJ}, 7
    s_add_u32 s20, s20, s21
    buffer_load_dword v{vDUM}, v21, s[{sW}:{sW+3}], s20 offen
L_now0t:""")
    a(f"""
""")
    if c.xt_by in ("worker", "mixed", "front1"):
        a(f"""
    v_lshrrev_b32 v21, 5, v{vL}
    v_mul_u32_u24 v21, {XMH}, v21
    v_and_b32 v22, 31, v{vL}
    v_lshl_add_u32 v21, v22, 7, v21
    s_mul_i32 s22, s{sRB}, {XRB}
    s_lshl_b32 s23, s{sJ}, 12
    s_add_u32 s22, s22, s23                   ; buffer 0
    s_add_u32 s23, s22, {XBUF}                ; buffer 1""")
    if c.xt_by == "worker":
        a(f"""    s_cmp_eq_u32 s{sU}, 1
    s_cbranch_scc0 L_noxt1
    buffer_load_dword v{vDUM}, v21, s[{sWS}:{sWS+3}], s23 offen sc1
L_noxt1:""")
    if c.hello_by == "loader":
        a(f"""
    s_load_dwordx2 s[{sE}:{sE+1}], s[50:51], s{sCB}
    s_add_u32 s{sT0}, s{sCB}, 128
    s_add_u32 s46, s50, s{sT0}
    s_addc_u32 s47, s51, 0""")
    a(f"""
    s_mul_i32 s{sT2}, s{sKH}, {KHS}
    s_lshl_b32 s{sT1}, s{sMH}, 10
    s_add_u32 s{sT2}, s{sT2}, s{sT1}
    s_add_u32 s{sMP}, s{sT2}, {SUF}
    s_mul_i32 s70, s{sKH}, {P*2048}
    s_add_u32 s70, s70, s{sT1}
    s_add_u32 s70, s70, {PRE1}                ; prefix of layer 1 goes to parity 1
    s_mov_b32 s71, {PREPAR}
    s_mul_i32 s{sT0}, s{sKH}, 416
    s_lshl_b32 s{sT1}, s{sROT}, 4
    s_add_u32 s{sT0}, s{sT0}, s{sT1}
    s_mul_i32 s{sT1}, s{sMH}, {NSR}
    s_add_u32 s{sT0}, s{sT0}, s{sT1}
    s_add_u32 s{sT0}, s{sT0}, {c.SV * 16}
    s_mul_i32 s{sT0}, s{sT0}, {ROWB}
    s_lshl_b32 s{sT1}, s{sJ}, 7
    s_add_u32 s{sT0}, s{sT0}, s{sT1}
    s_add_u32 s{sT0}, s{sT0}, {c.wstride}
    s_mov_b32 s98, s42
    s_mov_b32 s99, s43
    s_add_u32 s40, s42, s{sT0}
    s_addc_u32 s41, s43, 0
    s_add_u32 s42, s40, {c.wstride}
    s_addc_u32 s43, s41, 0
""")
    def swarm(k):
        if not (c.swarm and c.sp): return
        lst = [(l, r) for l in range(2, 6) for r in range(3)]
        lst = lst[:7] if k == 0 else lst[7:]
        cur = None
        for n_, (l, r) in enumerate(lst):
            if cur != l:
                a(f"    s_add_u32 s46, s44, {l * c.wstride}")
                a(f"    s_addc_u32 s47, s45, 0")
                cur = l
            a(f"    s_load_dwordx2 s[{76+2*n_}:{77+2*n_}], s[46:47], {r*ROWB + 60}")
    if c.swarm and c.sp:
        per_range = 2 * NSR // 3
        a(f"""
    ; share of the S rows for the warm-up: q = rb*4 + u, range = q / {per_range}, rows 3*(q % {per_range}) ...
    s_lshl_b32 s{sT0}, s{sRB}, 2
    s_add_u32 s{sT0}, s{sT0}, s{sWV}
    s_sub_u32 s{sT0}, s{sT0}, 4
    s_min_u32 s{sT0}, s{sT0}, {4 * per_range - 1}
    s_mul_i32 s{sT1}, s{sT0}, {-(-65536 // per_range)}
    s_lshr_b32 s{sT1}, s{sT1}, 16             ; range
    s_mul_i32 s{sT2}, s{sT1}, {per_range}
    s_sub_u32 s{sT0}, s{sT0}, s{sT2}
    s_mul_i32 s{sT0}, s{sT0}, 3
    s_mul_i32 s{sT1}, s{sT1}, 208
    s_add_u32 s{sT0}, s{sT0}, s{sT1}
    s_add_u32 s{sT0}, s{sT0}, {c.SV * 16}
    s_mul_i32 s{sT0}, s{sT0}, {ROWB}
    s_lshl_b32 s{sT1}, s{sJ}, 7
    s_add_u32 s{sT0}, s{sT0}, s{sT1}
    s_add_u32 s44, s{sWP0}, s{sT0}
    s_addc_u32 s45, s{sWP0+1}, 0
""")
        swarm(0)
    if c.w0assist:
        a(f"""    s_cmp_eq_u32 s{sU}, 3
    s_cbranch_scc0 L_bxw
    s_waitcnt vmcnt({P + 1})
    s_branch L_bxw2
L_bxw:
    s_waitcnt vmcnt({P})
L_bxw2:""")
    elif c.xt_by == "worker":
        a(f"""    s_cmp_eq_u32 s{sU}, 1
    s_cbranch_scc0 L_bxw
    s_waitcnt vmcnt({P + 1})
    s_branch L_bxw2
L_bxw:
    s_waitcnt vmcnt({P})
L_bxw2:""")
    else:
        a(f"    s_waitcnt vmcnt({P})")
    stamp()
    a(f"""
    s_barrier                                 ; B_x
    s_barrier                                 ; B_y
""")
    if c.swarm and c.sp: a("    s_waitcnt lgkmcnt(0)")
    if c.hello_by != "loader" and c.ssched != "two": sbatch(0)
    def suffix(vreg, lay, thr=True, phased=False, bp=None):
        a(f"    s_mul_i32 s{sG}, s{sROT}, 26624")
        a(f"    s_add_u32 s{sG}, s{sG}, {lay}")
        a(f"    s_sub_u32 s{sM}, 13, s{sROT}")
        a(f"    s_mul_i32 s{sM}, s{sM}, 26624")
        a(f"    s_add_u32 s{sM}, s{sM}, {lay}")
        for n_, i in enumerate(range(P, 26)):
            if bp is not None and n_ == bp:
                a(f"    s_waitcnt vmcnt({bp})")
                a("    s_barrier                                 ; B_p: prefix of layer 0 has landed")
                if c.hello_by == "loader":
                    a(f"""    s_cmp_eq_u32 s{sWV}, 6
    s_cbranch_scc0 L_b0
    s_waitcnt lgkmcnt(0)
    s_load_dwordx16 s[76:91], s[46:47], 0 glc
    s_load_dwordx8 s[92:99], s[46:47], 64 glc
    s_load_dwordx2 s[20:21], s[46:47], 96 glc
    s_branch L_b0d
L_b0:""")
                    sbatch(0)
                    a("L_b0d:")
            if phased and n_ == c.n1: a("    s_barrier")
            if phased and n_ == c.n1 + c.n2: a("    s_barrier")
            a(f"    s_add_u32 m0, s{sMP}, {(i-P)*2048}")
            a(f"    s_add_u32 s{sI}, s{sG if i < 13 else sM}, {(i % 13) * 26624}")
            a(f"    buffer_load_dwordx4 v{vreg}, s[{sW}:{sW+3}], s{sI} offen {'nt ' if (c.nt_last and i >= 13) else ''}lds")
            if c.lthr and thr and (c.lthr_all or n_ >= c.n1 + c.n2):
                a(f"    s_waitcnt vmcnt({c.lthr - 1})")
    sPP, sPDL = 70, 71
    def prefix_next(lay_next):
        a(f"    s_mul_i32 s{sG}, s{sROT}, 26624")
        a(f"    s_add_u32 s{sG}, s{sG}, s{lay_next}")
        for t in range(P):
            a(f"    s_add_u32 m0, s{sPP}, {t*2048}")
            a(f"    s_add_u32 s{sI}, s{sG}, {t*26624}")
            a(f"    buffer_load_dwordx4 v{vDMA}, s[{sW}:{sW+3}], s{sI} offen lds")
            if c.lthr and c.lthr_all and t + 1 < P:
                a(f"    s_waitcnt vmcnt({c.lthr - 1})")
        a(f"    s_sub_u32 s{sPP}, s{sPP}, s{sPDL}")
        a(f"    s_sub_u32 s{sPDL}, 0, s{sPDL}")
    def advance_sb():
        a(f"""    s_add_u32 s40, s40, {c.wstride}
    s_addc_u32 s41, s41, 0
    s_add_u32 s42, s42, {c.wstride}
    s_addc_u32 s43, s43, 0""")
    suffix(vDMA0, "0", False, False, bp=13 - P)
    n = 26 - P
    if c.hello_by != "loader":
        if c.sp and c.ssched != "two": a("    s_waitcnt lgkmcnt(0)")
        sbatch(1)
    if c.hello_by == "compute" and not c.swarm:
        B0 = [P] + list(c.chunks0)
        for k_, b_ in enumerate(B0):
            nxt = B0[k_ + 1] if k_ + 1 < len(B0) else 26
            a(f"    s_waitcnt vmcnt({26 - nxt})")
            if k_ == 0 or k_ + 1 == len(B0): stamp()
            a(f"    s_barrier")
    else:
        a(f"    s_waitcnt vmcnt({n - (13 - P)})")
        stamp()
        a("    s_barrier                                 ; chunk [P,13)")
        if c.hello_by == "loader" and c.sp and c.l0b1:
            a(f"    s_cmp_eq_u32 s{sWV}, 6")
            a(f"    s_cbranch_scc1 L_nob1")
            a("    s_waitcnt lgkmcnt(0)"); sbatch(1)
            a("L_nob1:")
        if c.swarm and c.sp:
            a("    s_waitcnt lgkmcnt(0)"); swarm(1)
        a(f"    s_waitcnt vmcnt({26 - 20})")
        a("    s_barrier                                 ; chunk [13,20)")
        if c.hello_by == "loader":
            a(f"""    s_cmp_eq_u32 s{sWV}, 6
        s_cbranch_scc0 L_nohe
        s_add_u32 s{sT0}, s{sE}, 8
        s_addc_u32 s{sT1}, s{sE+1}, 0
        s_and_b32 s{sT2}, s{sT1}, 0x0fffffff
        s_lshl_b32 s22, s{sXCC}, 28
        s_xor_b32 s{sT1}, s{sT1}, s22
        s_mov_b32 s22, 1
        s_mov_b32 s23, 1
        s_waitcnt lgkmcnt(0)""")
            for m_ in range(13):
                lo = 76 + 2 * m_ if m_ < 12 else 20
                a(f"""    s_cmp_eq_u32 s{lo}, s{sT0}
        s_cselect_b32 s23, s23, 0
        s_cmp_eq_u32 s{lo+1}, s{sT1}
        s_cselect_b32 s22, s22, 0
        s_and_b32 s{lo+1}, s{lo+1}, 0x0fffffff
        s_cmp_eq_u32 s{lo+1}, s{sT2}
        s_cselect_b32 s23, s23, 0""")
            a(f"""    s_sub_u32 s22, 2, s22
        s_mul_i32 s22, s22, s23
        v_mov_b32 v25, s22
        v_mov_b32 v26, {MODEW}
        ds_write_b32 v26, v25
        s_waitcnt lgkmcnt(0)
    """)
            sbatch(0)
            a("L_nohe:")
        a("    s_waitcnt vmcnt(0)")
        stamp()
        a("    s_barrier                                 ; chunk [20,26)")
    if c.pre_by == "loader":
        a("    s_barrier                                 ; B_mid")
        a(f"    s_mov_b32 s{sT3}, {c.wstride}")
        if not c.no_pre: prefix_next(sT3)
        if c.xt_by in ("worker", "mixed", "front1"):
            a(f"""    s_cmp_eq_u32 s{sWV}, 5
    s_cbranch_scc0 L_noxt0
    buffer_load_dword v{vDUM}, v21, s[{sWS}:{sWS+3}], s22 offen sc1
L_noxt0:""")
    advance_sb()
    a(f"""
    s_barrier
    s_mov_b32 s{sL}, 1
    s_mov_b32 s{sT3}, {c.wstride}
L_ld_layer:
    s_cmp_lt_u32 s{sL}, 5
    s_cselect_b32 s{sU}, 1, 0
""")
    def guarded(fn, lab):
        if not c.sp: return
        a(f"    s_cmp_eq_u32 s{sU}, 1")
        a(f"    s_cbranch_scc0 {lab}")
        fn()
        a(f"{lab}:")
    if c.ssched != "two":
        guarded(lambda: sbatch(1), "L_sA")
    if not c.no_suf: suffix(vDMA, f"s{sT3}", True, c.phased)
    elif c.phased:
        a("    s_barrier"); a("    s_barrier")
    stamp()
    if c.ssched != "two":
        guarded(lambda: (a("    s_waitcnt lgkmcnt(0)"), sbatch(2)), "L_sB")
    if c.pre_by == "loader": a(f"    s_waitcnt vmcnt({26 - P})                 ; the prefix has landed")
    a("    s_barrier                                 ; B_a")
    if c.ssched == "two":
        guarded(lambda: sbatch(1), "L_sB")
    a("    s_waitcnt vmcnt(0)")
    stamp()
    a("    s_barrier")
    a(f"    s_cmp_lt_u32 s{sL}, 4")
    a(f"    s_cselect_b32 s{sU}, 1, 0")
    guarded(lambda: (a("    s_waitcnt lgkmcnt(0)"), sbatch(0, True)), "L_sC")
    if c.pre_by == "loader":
        a("    s_barrier                                 ; B_mid")
        stamp(3)
        a(f"    s_cmp_lt_u32 s{sL}, 5")
        a(f"    s_cbranch_scc0 L_nopre")
        a(f"    s_add_u32 s{sU}, s{sT3}, {c.wstride}")
        if not c.no_pre: prefix_next(sU)
        a("L_nopre:")
        stamp(3)
    advance_sb()
    a(f"""
    s_barrier                                 ; B2
    s_add_u32 s{sL}, s{sL}, 1
    s_add_u32 s{sT3}, s{sT3}, {c.wstride}
    s_cmp_lt_u32 s{sL}, 6
    s_cbranch_scc1 L_ld_layer
""")
    dump_ts()
    a("    s_endpgm")

    sBI = 84
    sBP = 48
    def bias_load():
        a(f"    s_load_dwordx16 s[{sBI}:{sBI+15}], s[{sBP}:{sBP+1}], 0")
        a(f"    s_add_u32 s{sBP}, s{sBP}, {ROWB}")
        a(f"    s_addc_u32 s{sBP+1}, s{sBP+1}, 0")
    def bias_spread():
        a("    s_mov_b32 exec_hi, 0")
        for q in range(4):
            for d in range(2):
                a(f"    v_mov_b32 v{vBP+2*q+d}, s{sBI+4*q+d}")
        a("    s_mov_b32 exec_lo, 0")
        a("    s_mov_b32 exec_hi, -1")
        for q in range(4):
            for d in range(2):
                a(f"    v_mov_b32 v{vBP+2*q+d}, s{sBI+4*q+2+d}")
        a("    s_mov_b64 exec, -1")
    def bias_unpack(lo=0, hi=8):
        for d in range(lo, hi):
            a(f"    v_lshlrev_b32 v{vAK+2*d}, 16, v{vBP+d}")
            a(f"    v_and_b32 v{vAK+2*d+1}, 0xffff0000, v{vBP+d}")
    a("L_nonloader:")
    common_srds()
    if c.helpers:
        a(f"""
    s_cmp_ge_u32 s2, 208
    s_cbranch_scc1 L_helper
""")
    if c.pre_by == "compute": vdma()
    a(f"""
L_compute:
    s_load_dwordx2 s[{sE}:{sE+1}], s[50:51], s{sCB}
    s_lshl_b32 s{sT0}, s{sJ}, 7
    s_lshl_b32 s{sT1}, s{sKH}, 6
    s_add_u32 s{sT0}, s{sT0}, s{sT1}
    s_add_u32 s{sBP_}, s44, s{sT0}
    s_addc_u32 s{sBP_+1}, s45, 0
    s_load_dwordx16 s[84:99], s[{sBP_}:{sBP_+1}], 0
    s_load_dword s20, s[{sBP_}:{sBP_+1}], {ROWB}
    s_load_dword s21, s[{sBP_}:{sBP_+1}], {2*ROWB}
    s_load_dword s22, s[{sBP_}:{sBP_+1}], {3*ROWB}
    s_load_dword s23, s[{sBP_}:{sBP_+1}], {4*ROWB}
    s_load_dword s24, s[{sBP_}:{sBP_+1}], {5*ROWB}
    s_add_u32 s{sBP_}, s{sBP_}, {ROWB}
    s_addc_u32 s{sBP_+1}, s{sBP_+1}, 0
    s_setprio {c.prio}
""")
    if c.xt_by in ("front", "front1"):
        a(f"""
    v_lshrrev_b32 v21, 5, v{vL}
    v_mul_u32_u24 v21, {XMH}, v21
    v_and_b32 v22, 31, v{vL}
    v_lshl_add_u32 v21, v22, 7, v21
    s_mul_i32 s22, s{sRB}, {XRB}
    s_lshl_b32 s23, s{sJ}, 12
    s_add_u32 s22, s22, s23                   ; buffer 0
    s_add_u32 s23, s22, {XBUF}                ; buffer 1
    s_cmp_eq_u32 s{sWV}, 3
    s_cbranch_scc0 L_noxf1
    buffer_load_dword v{vDUM}, v21, s[{sWS}:{sWS+3}], s23 offen sc1
L_noxf1:""")
        if c.xt_by == "front":
            a(f"""    s_cmp_eq_u32 s{sWV}, 2
    s_cbranch_scc0 L_noxf0
    buffer_load_dword v{vDUM}, v21, s[{sWS}:{sWS+3}], s22 offen sc1
L_noxf0:""")
    if c.wwarm:
        a(f"""
    s_sub_u32 s{sT0}, s{sWV}, 1
    s_cmp_lt_u32 s{sT0}, {c.wwarm}
    s_cbranch_scc0 L_noww
    s_mul_i32 s{sT0}, s{sRB}, 13
    s_add_u32 s{sT0}, s{sT0}, s{sJ}
    s_mul_i32 s{sT0}, s{sT0}, {52 * 128}
    s_mul_i32 s{sT1}, s{sWV}, {c.wstride}
    s_add_u32 s20, s{sT0}, s{sT1}
    v_min_u32 v20, 51, v{vL}
    v_lshlrev_b32 v20, 7, v20
    buffer_load_dword v{vDUM}, v20, s[{sW}:{sW+3}], s20 offen
L_noww:""")
    a(f"""
    v_min_u32 v{vT0}, 51, v{vL}
    v_lshlrev_b32 v{vT0}, 3, v{vT0}
    s_add_u32 s{sT0}, s{sCB}, 2048
    v_add_u32 v{vFA}, s{sT0}, v{vT0}
    s_cmp_eq_u32 s{sWV}, 0
    s_cbranch_scc0 L_noft
    buffer_load_dword v{vDUM}, v{vFA}, s[{sWS}:{sWS+3}], 0 offen sc1
L_noft:
    s_lshl_b32 s{sT1}, s{sJ}, 2
    s_add_u32 s{sT1}, s{sT1}, s{sWV}
    s_lshl_b32 s{sT1}, s{sT1}, 3
    s_add_u32 s{sOWNF}, s{sT0}, s{sT1}
    v_min_u32 v{vT0}, 12, v{vL}
    v_lshlrev_b32 v{vT0}, 3, v{vT0}
    s_add_u32 s{sT0}, s{sCB}, 128
    v_add_u32 v{vHA}, s{sT0}, v{vT0}
""")
    srd(sOUT, 46, XLAYER)
    a(f"""
    s_lshl_b32 s{sT0}, s{sRB}, 6
    s_lshl_b32 s{sT1}, s{sMH}, 5
    s_add_u32 s{sT0}, s{sT0}, s{sT1}
    s_mul_i32 s{sT0}, s{sT0}, {ROWB}
    s_lshl_b32 s{sT1}, s{sJ}, 7
    s_add_u32 s{sT0}, s{sT0}, s{sT1}
    s_lshl_b32 s{sT1}, s{sKH}, 6
    s_add_u32 s{sT0}, s{sT0}, s{sT1}
    v_and_b32 v{vT0}, 31, v{vL}
    v_mul_u32_u24 v{vT0}, {ROWB}, v{vT0}
    v_lshrrev_b32 v{vT1}, 5, v{vL}
    v_lshl_add_u32 v{vT0}, v{vT1}, 4, v{vT0}
    v_add_u32 v{vOUT}, s{sT0}, v{vT0}
    v_lshlrev_b32 v{vXO}, 4, v{vL}
    v_add_u32 v{vXO+1}, 0x1000, v{vXO}
    v_add_u32 v{vXO+2}, 0x2000, v{vXO}
    v_add_u32 v{vXO+3}, 0x3000, v{vXO}
    s_mul_i32 s{sT0}, s{sRB}, {XRB}
    s_mul_i32 s{sT1}, s{sMH}, {XMH}
    s_add_u32 s{sT0}, s{sT0}, s{sT1}
    s_add_u32 s{sT0}, s{sT0}, {XBUF}
    s_lshl_b32 s{sT1}, s{sJ}, 2
    s_lshl_b32 s{sT2}, s{sKH}, 1
    s_add_u32 s{sT1}, s{sT1}, s{sT2}
    s_lshl_b32 s{sT1}, s{sT1}, 10
    s_add_u32 s{sXST}, s{sT0}, s{sT1}
""")
    if not c.helpers:
        a(f"""
    v_and_b32 v{vT1}, 15, v{vL}
    v_lshlrev_b32 v{vT1}, 7, v{vT1}
    v_bfe_u32 v{vT2}, v{vL}, 4, 1
    v_mul_u32_u24 v{vT2}, {XBUF >> 8}, v{vT2}
    v_lshl_add_u32 v{vT1}, v{vT2}, 8, v{vT1}
    s_sub_u32 s{sT3}, s{sXST}, {XBUF}
    buffer_load_dword v{vDUM}, v{vT1}, s[{sWS}:{sWS+3}], s{sT3} offen sc1
""")
    a(f"""
    s_mul_i32 s{sT1}, s{sKH}, 26
    s_add_u32 s{sT2}, s{sT1}, s{sROT}
    s_lshl_b32 s{sT2}, s{sT2}, 10
    s_add_u32 s{sXA}, s{sT0}, s{sT2}
    s_add_u32 s{sT2}, s{sT1}, 13
    s_sub_u32 s{sT2}, s{sT2}, s{sROT}
    s_lshl_b32 s{sT2}, s{sT2}, 10
    s_add_u32 s{sXB}, s{sT0}, s{sT2}
    s_mov_b32 s{sXD}, {-XBUF & 0xffffffff}
    s_mov_b32 s{sXD2}, {-XBUF & 0xffffffff}
    ; ---- W prefix bookkeeping for layer 1 (loaded at the end of layer 0)
    s_mul_i32 s{sT0}, s{sKH}, 416
    s_lshl_b32 s{sT1}, s{sROT}, 4
    s_add_u32 s{sT0}, s{sT0}, s{sT1}
    s_lshl_b32 s{sT1}, s{sMH}, 3
    s_add_u32 s{sT0}, s{sT0}, s{sT1}
    s_mul_i32 s{sWP}, s{sT0}, {ROWB}
    s_add_u32 s{sWP}, s{sWP}, {c.wstride}
    s_mul_i32 s{sMP}, s{sKH}, {P*2048}
    s_lshl_b32 s{sT1}, s{sMH}, 10
    s_add_u32 s{sMP}, s{sMP}, s{sT1}
    s_add_u32 s{sMP}, s{sMP}, {PRE1}
    s_mov_b32 s{sPD}, {PREPAR}
    v_lshrrev_b32 v{vT0}, 5, v{vL}            ; h
    v_lshlrev_b32 v{vT0}, 2, v{vT0}
    v_bfe_u32 v{vT1}, v{vL}, 2, 2             ; r
    v_add_u32 v{vT0}, v{vT0}, v{vT1}
    v_lshlrev_b32 v{vT0}, 7, v{vT0}           ; row*128
    v_bfe_u32 v{vT1}, v{vL}, 4, 1             ; nb
    v_lshlrev_b32 v{vT1}, 1, v{vT1}
    v_bfe_u32 v{vT2}, v{vL}, 1, 1             ; c>>1
    v_add_u32 v{vT1}, v{vT1}, v{vT2}
    v_bfe_u32 v{vT2}, v{vL}, 3, 1             ; (r>>1)&1
    v_lshlrev_b32 v{vT2}, 2, v{vT2}
    v_xor_b32 v{vT1}, v{vT1}, v{vT2}
    v_lshlrev_b32 v{vT1}, 4, v{vT1}
    v_add_u32 v{vT0}, v{vT0}, v{vT1}
    v_and_b32 v{vT1}, 1, v{vL}
    v_lshlrev_b32 v{vT1}, 3, v{vT1}
    v_add_u32 v{vT0}, v{vT0}, v{vT1}
    s_lshl_b32 s{sT0}, s{sKH}, 6
    v_xor_b32 v{vT1}, s{sT0}, v{vT0}          ; keep
    v_xor_b32 v{vT2}, 64, v{vT1}              ; send
    s_mul_i32 s{sT0}, s{sKH}, {P*2048}
    v_add_u32 v{vAPK}, s{sT0}, v{vT1}
    v_add_u32 v{vAPS}, s{sT0}, v{vT2}
    s_mul_i32 s{sT0}, s{sKH}, {KHS}
    s_add_u32 s{sT0}, s{sT0}, {SUF}
    v_add_u32 v{vASK}, s{sT0}, v{vT1}
    v_add_u32 v{vASS}, s{sT0}, v{vT2}
    s_lshl_b32 s{sT0}, s{sWV}, 12
    s_add_u32 s{sT0}, s{sT0}, {RED}
    v_add_u32 v{vRW}, s{sT0}, v{vXO}
    s_xor_b32 s{sT1}, s{sWV}, 2
    s_lshl_b32 s{sT1}, s{sT1}, 12
    s_add_u32 s{sT1}, s{sT1}, {RED}
    v_add_u32 v{vRR}, s{sT1}, v{vXO}
    v_lshrrev_b32 v{vT0}, 5, v{vL}
    v_lshlrev_b32 v{vT3}, 3, v{vT0}           ; h*8
    v_and_b32 v{vT0}, 31, v{vL}               ; m
    v_lshrrev_b32 v{vT1}, 3, v{vT0}
    v_lshlrev_b32 v{vT1}, 10, v{vT1}          ; rg*1024
    v_and_b32 v{vT2}, 7, v{vT0}
    v_lshl_add_u32 v{vT1}, v{vT2}, 7, v{vT1}  ; + row8*128
    v_bfe_u32 v{vT2}, v{vT0}, 1, 3            ; f(m)
    s_cmp_ge_u32 s{sJ}, 7
    s_cselect_b32 s{sT0}, 1, 0
    s_mul_i32 s{sT1}, s{sT0}, 6
    s_sub_u32 s{sT1}, s{sJ}, s{sT1}
    s_lshl_b32 s{sT1}, s{sT1}, 12
    s_lshl_b32 s{sT0}, s{sT0}, 1
    s_add_u32 s{sT0}, s{sT0}, s{sMH}
    s_mul_i32 s{sT0}, s{sT0}, 28672
    s_add_u32 s{sT0}, s{sT0}, s{sT1}
    s_add_u32 s{sT0}, s{sT0}, {XS}
    s_lshl_b32 s{sT1}, s{sKH}, 2
    v_add3_u32 v{vT3}, v{vT3}, v{vT1}, s{sT0}
    v_xor_b32 v{vT0}, s{sT1}, v{vT2}          ; (4*nh) ^ f(m)
""")
    for q in range(4):
        a(f"    v_xor_b32 v{vPART+8+q}, {q}, v{vT0}")
        a(f"    v_lshl_add_u32 v{vPART+8+q}, v{vPART+8+q}, 4, v{vT3}")
    a(f"""
    v_lshrrev_b32 v{vT0}, 5, v{vL}
    v_xor_b32 v{vT2}, v{vT2}, v{vT0}          ; f(m) ^ h
    s_mul_i32 s{sT3}, s{sWV}, 28672
    s_add_u32 s{sT3}, s{sT3}, {XS}
    s_mul_i32 s{sI}, s{sKH}, 26
    s_mul_i32 s{sM}, s{sKH}, 6
""")
    for seg in range(2):
        if seg == 0:
            a(f"    s_add_u32 s{sG}, s{sI}, s{sROT}")
        else:
            a(f"    s_add_u32 s{sG}, s{sI}, 13")
            a(f"    s_sub_u32 s{sG}, s{sG}, s{sROT}")
        for x in range(4):
            r = vPART + seg * 4 + x
            a(f"    s_add_u32 s{sT0}, s{sG}, {x}")
            a(f"    s_and_b32 s{sT1}, s{sT0}, 3")
            a(f"    s_lshl_b32 s{sT1}, s{sT1}, 1")
            a(f"    s_lshr_b32 s{sT0}, s{sT0}, 2")
            a(f"    s_sub_u32 s{sT0}, s{sT0}, s{sM}")
            a(f"    s_lshl_b32 s{sT0}, s{sT0}, 12")
            a(f"    s_add_u32 s{sT0}, s{sT0}, s{sT3}")
            a(f"    v_xor_b32 v{r}, s{sT1}, v{vT2}")
            a(f"    v_lshl_add_u32 v{r}, v{r}, 4, v{vT1}")
            a(f"    v_add_u32 v{r}, s{sT0}, v{r}")
    a(f"""
    s_waitcnt lgkmcnt(0)
    s_add_u32 s{sTA}, s{sE}, 1
    s_addc_u32 s{sTA+1}, s{sE+1}, 0
    s_add_u32 s{sTB}, s{sE}, 2
    s_addc_u32 s{sTB+1}, s{sE+1}, 0
    s_cmp_eq_u32 s{sWV}, 0
    s_cbranch_scc0 L_nohello
    s_add_u32 s{sT0}, s{sE}, 8
    s_addc_u32 s{sT1}, s{sE+1}, 0
    s_lshl_b32 s{sT2}, s{sXCC}, 28
    s_xor_b32 s{sT1}, s{sT1}, s{sT2}
    v_mov_b32 v{vPOLL}, s{sT0}
    v_mov_b32 v{vPOLL+1}, s{sT1}
    s_lshl_b32 s{sT2}, s{sJ}, 3
    s_add_u32 s{sT2}, s{sT2}, s{sCB}
    s_add_u32 s{sT2}, s{sT2}, 128
    s_mov_b64 exec, 1
    buffer_store_dwordx2 v[{vPOLL}:{vPOLL+1}], off, s[{sWS}:{sWS+3}], s{sT2} sc1
    s_mov_b64 exec, -1
L_nohello:
""")
    if c.w0assist:
        a(f"""
    s_mul_i32 s{sT0}, s{sKH}, 416
    s_lshl_b32 s{sT1}, s{sROT}, 4
    s_add_u32 s{sT0}, s{sT0}, s{sT1}
    s_mul_i32 s{sT1}, s{sMH}, 14
    s_add_u32 s{sT0}, s{sT0}, s{sT1}
    s_add_u32 s{sT0}, s{sT0}, {P * 16}
    s_mul_i32 s{sT0}, s{sT0}, {ROWB}
    s_lshl_b32 s{sT1}, s{sJ}, 7
    s_add_u32 s{sT0}, s{sT0}, s{sT1}
    s_add_u32 s44, s42, s{sT0}
    s_addc_u32 s45, s43, 0
""")
        for n_ in range(14):
            if n_ == 7: a("    s_waitcnt lgkmcnt(0)")
            a(f"    s_load_dwordx2 s[{20+2*(n_%2)}:{21+2*(n_%2)}], s[44:45], {n_*ROWB + 60}")
    elif c.vwarm:
        nrows = c.SV * 16
        per_rb = nrows // 4
        a(f"""
    s_lshr_b32 s{sT0}, s{sRB}, 2
    s_mul_i32 s{sT0}, s{sT0}, 208             ; range start row: 0, 208, 416, 624
    s_and_b32 s{sT1}, s{sRB}, 3
    s_mul_i32 s{sT1}, s{sT1}, {per_rb}
    s_add_u32 s{sT0}, s{sT0}, s{sT1}
    s_mul_i32 s{sT1}, s{sWV}, {per_rb // 4}
    s_add_u32 s{sT0}, s{sT0}, s{sT1}
    s_mul_i32 s{sT0}, s{sT0}, {ROWB}
    s_lshl_b32 s{sT1}, s{sJ}, 7
    s_add_u32 s{sT0}, s{sT0}, s{sT1}
    s_add_u32 s{sT0}, s{sT0}, {c.wstride}
    s_add_u32 s44, s42, s{sT0}
    s_addc_u32 s45, s43, 0
""")
        nper = per_rb // 4
        vw = [(l, r) for l in range(1, 6) for r in range(nper)][:14]
        def vwarm_batch(k):
            cur = None
            for n_, (l, r) in enumerate(vw[7*k:7*k+7]):
                if cur != l:
                    a(f"    s_add_u32 s46, s44, {(l-1) * c.wstride}")
                    a(f"    s_addc_u32 s47, s45, 0")
                    cur = l
                a(f"    s_load_dwordx2 s[{20+2*(n_%2)}:{21+2*(n_%2)}], s[46:47], {r*ROWB + 60}")
        vwarm_batch(0)
    stamp()
    a("    s_barrier                                 ; B_x: staged x0, prefix(0) and biases have landed")
    stamp()
    for q in range(4):
        a(f"    ds_read_b64 v[{vP+2*q}:{vP+2*q+1}], v{vPART+8+q}")
    for i in range(26):
        seg, ii = (0, i) if i < 13 else (1, i - 13)
        a(f"    ds_read_b128 v[{vXF+4*i}:{vXF+4*i+3}], v{vPART + seg*4 + (ii & 3)} offset:{(ii >> 2) * 4096}")
        if i in (9, 17):
            a("    s_waitcnt lgkmcnt(6)")
    a("    s_waitcnt lgkmcnt(0)")
    a("    s_barrier")
    if c.vwarm and not c.w0assist: vwarm_batch(1)
    stamp()
    for d in range(8):
        a(f"    v_lshlrev_b32 v{vX0F+2*d}, 16, v{vP+d}")
        a(f"    v_and_b32 v{vX0F+2*d+1}, 0xffff0000, v{vP+d}")
    bias_spread()
    bias_unpack()
    for r in range(16):
        a(f"    v_mov_b32 v{vXR+r}, v{vX0F+r}")
    a(f"    s_mov_b32 s{sL}, 0")
    a("    s_barrier                                 ; B_p: prefix of layer 0 has landed")
    stamp()

    def xload(i):
        if c.no_x:
            a("    s_nop 0"); return
        seg = sXA if i < 13 else sXB
        ii = i % 13
        a(f"    buffer_load_dwordx4 v[{vXF+4*i}:{vXF+4*i+3}], v{vXO+(ii>>2)}, s[{sWS}:{sWS+3}], s{seg} offen offset:{(ii&3)*1024} sc1")
    def rd(i, which):
        if c.no_w: return
        st = vWF + 8 * (i % nsets)
        if i < P: k, s_, off = vAPK, vAPS, i * 2048
        else: k, s_, off = vASK, vASS, (i - P) * 2048
        if which == "s":
            a(f"    ds_read_b64_tr_b16 v[{st}:{st+1}], v{s_} offset:{off}")
            a(f"    ds_read_b64_tr_b16 v[{st+2}:{st+3}], v{s_} offset:{off+1024}")
        else:
            a(f"    ds_read_b64_tr_b16 v[{st+4}:{st+5}], v{k} offset:{off}")
            a(f"    ds_read_b64_tr_b16 v[{st+6}:{st+7}], v{k} offset:{off+1024}")
    def pref_sched(i):
        if c.presched == "spread":
            t = i - (26 - P)
            return [t] if 0 <= t < P else []
        k = i - (26 - D)
        if k < 0: return []
        per_ = -(-P // D)
        return [t for t in range(k * per_, min(P, (k + 1) * per_))]
    def kloop(first):
        ops = []
        if first:
            for i in range(PF):
                rd(i, "s"); rd(i, "k")
        else:
            xload(0); ops.append(("x", 0))
            rd(0, "s"); rd(0, "k")
            xload(1); ops.append(("x", 1))
            rd(1, "s"); rd(1, "k")
            nrest = D - 2
            cuts = [8 * k // nrest for k in range(nrest + 1)]
            for k in range(nrest):
                bias_unpack(cuts[k], cuts[k + 1])
                xload(2 + k); ops.append(("x", 2 + k))
        bars = (([P] + list(c.chunks0)) if (c.hello_by == 'compute' and not c.swarm) else [P, 13, 20]) if first else [P]
        assert P < 13
        marks = [0, 1, 2, 4, 8, 12, 16, 20, 25]
        for i in range(26):
            a(f"    ; ---- step {i}")
            if TS == 4 and not first and i in marks:
                a(f"    s_memtime s[{80 + 2*marks.index(i)}:{81 + 2*marks.index(i)}]")
            young = sum(4 for t in range(i + 1, min(i + PF - 1, 25) + 1))
            if first:
                a(f"    s_waitcnt lgkmcnt({young})")
            else:
                nv = len(ops) - 1 - ops.index(("x", i))
                a(f"    s_waitcnt vmcnt({nv}) lgkmcnt({young})")
            st = vWF + 8 * (i % nsets)
            xf = vXF + 4 * i
            cs = "0" if i == 0 else f"v[{vAS}:{vAS+15}]"
            a(f"    v_mfma_f32_32x32x16_bf16 v[{vAS}:{vAS+15}], v[{st}:{st+3}], v[{xf}:{xf+3}], {cs}")
            if not first and i == 1:
                a(f"""    s_add_u32 s{sTA}, s{sTA}, 1
    s_addc_u32 s{sTA+1}, s{sTA+1}, 0""")
            if not first and i == 2:
                a(f"""    s_add_u32 s{sTB}, s{sTB}, 1
    s_addc_u32 s{sTB+1}, s{sTB+1}, 0""")
            if i + PF in bars:
                a("    s_barrier")
            if first and i == c.hello_step and c.hello_by != 'loader':
                a(f"    buffer_load_dwordx2 v[{vPOLL}:{vPOLL+1}], v{vHA}, s[{sWS}:{sWS+3}], 0 offen sc1")
            if not first and i + D < 26:
                xload(i + D); ops.append(("x", i + D))
            if c.pre_by == "loader":
                if i == c.mid_step: a("    s_barrier                                 ; B_mid: the x loads are all issued")
                if i == c.prog_step and c.prog_at == "mid":
                    lab = "L_noprogA" if first else "L_noprogB"
                    a(f"""    s_or_b32 s{sT0}, s{sJ}, s{sWV}
    s_cmp_eq_u32 s{sT0}, 0
    s_cbranch_scc0 {lab}
    v_mov_b32 v{vPOL2}, s{sTA}
    v_mov_b32 v{vPOL2+1}, s{sTA+1}
    s_add_u32 s{sT0}, s{sCB}, 3072
    buffer_store_dwordx2 v[{vPOL2}:{vPOL2+1}], off, s[{sWS}:{sWS+3}], s{sT0}
{lab}:""")
            else:
                for t in ([] if c.no_pre else pref_sched(i)):
                    a(f"    s_add_u32 m0, s{sMP}, {t*2048}")
                    a(f"    s_add_u32 s{sT0}, s{sWP}, {t*26624}")
                    a(f"    buffer_load_dwordx4 v{vDMA}, s[{sW}:{sW+3}], s{sT0} offen lds")
                    ops.append(("w", t))
            if i + PF < 26: rd(i + PF, "s")
            a(f"    v_mfma_f32_32x32x16_bf16 v[{vAK}:{vAK+15}], v[{st+4}:{st+7}], v[{xf}:{xf+3}], v[{vAK}:{vAK+15}]")
            if i + PF < 26: rd(i + PF, "k")
        return len([o for o in ops if o[0] == "w"])
    npre = kloop(True)
    if c.hello_by == "loader":
        a(f"""    v_mov_b32 v{vT0}, {MODEW}
    ds_read_b32 v{vT1}, v{vT0}
    s_waitcnt lgkmcnt(0)
    v_readfirstlane_b32 s{sMODE}, v{vT1}""")
        a(f"""
    s_cmp_eq_u32 s{sMODE}, 0
    s_cbranch_scc1 L_hello_slow
    s_and_b32 s{sMODE}, s{sMODE}, {0 if c.force_slow else 1}
    s_branch L_tail
L_hello_slow:
    buffer_load_dwordx2 v[{vPOLL}:{vPOLL+1}], v{vHA}, s[{sWS}:{sWS+3}], 0 offen sc1""")
    a(f"""
    s_add_u32 s{sT0}, s{sE}, 8
    s_addc_u32 s{sT1}, s{sE+1}, 0
    s_mov_b32 s{sSPIN}, 0
    s_waitcnt vmcnt({0 if c.hello_by == "loader" else npre})
    s_and_b32 s{sT2}, s{sT1}, 0x0fffffff
    s_lshl_b32 s{sT3}, s{sXCC}, 28
    s_xor_b32 s{sT3}, s{sT1}, s{sT3}
L_hello:
    v_and_b32 v{vT0}, 0x0fffffff, v{vPOLL+1}
    v_cmp_eq_u32 vcc, s{sT0}, v{vPOLL}
    v_cmp_eq_u32 s[{sMK}:{sMK+1}], s{sT2}, v{vT0}
    s_and_b64 vcc, vcc, s[{sMK}:{sMK+1}]
    s_cmp_eq_u64 vcc, -1
    s_cbranch_scc1 L_hello_ok
    s_add_u32 s{sSPIN}, s{sSPIN}, 1
    s_cmp_gt_u32 s{sSPIN}, {c.spin_max}
    s_cbranch_scc1 L_end
    buffer_load_dwordx2 v[{vPOLL}:{vPOLL+1}], v{vHA}, s[{sWS}:{sWS+3}], 0 offen sc1
    s_waitcnt vmcnt(0)
    s_branch L_hello
L_hello_ok:
    v_cmp_eq_u32 vcc, s{sT3}, v{vPOLL+1}
    s_cmp_eq_u64 vcc, -1
    s_cselect_b32 s{sMODE}, {0 if c.force_slow else 1}, 0
    s_branch L_tail
""")
    assert sT1 == sT0 + 1 and sT0 % 2 == 0
    a("L_layer2:")
    stamp()
    kloop(False)
    if TS == 4:
        a("    s_memtime s[98:99]")
        a("    s_waitcnt lgkmcnt(0)")
        for k in range(10):
            a(f"    s_mov_b32 m0, s{sTSI}")
            a(f"    s_nop 0")
            a(f"    v_writelane_b32 v{vTS}, s{80+2*k}, m0")
            a(f"    s_add_u32 s{sTSI}, s{sTSI}, 1")
    a("L_tail:")
    if c.amp and c.amp[0] == "l0k":
        a(f"""    s_cmp_eq_u32 s{sL}, 0
    s_cbranch_scc0 L_amp2
    s_memtime s[26:27]
    s_waitcnt lgkmcnt(0)
    s_sub_u32 s25, s26, s100
L_amp2:""")
    if TS in (2, 3):
        a("    s_nop 15")
        stamp()
    a(f"    v_mov_b32 v{vFV}, s{sTA}")
    a(f"    v_mov_b32 v{vFV+1}, s{sTA+1}")
    a("    s_nop 8")
    for q in range(4):
        a(f"    ds_write_b128 v{vRW}, v[{vAS+4*q}:{vAS+4*q+3}] offset:{q*1024}")
    a("    s_waitcnt lgkmcnt(0)")
    a("    s_barrier                                 ; B2")
    stamp(3)
    for q in range(4):
        a(f"    ds_read_b128 v[{vPART+4*q}:{vPART+4*q+3}], v{vRR} offset:{q*1024}")
    def epi(q):
        a(f"    s_waitcnt lgkmcnt({3-q})")
        for p in range(2):
            r = 4 * q + 2 * p
            a(f"    v_pk_add_f32 v[{vAK+r}:{vAK+r+1}], v[{vAK+r}:{vAK+r+1}], v[{vPART+r}:{vPART+r+1}]")
        for p in range(2):
            r = 4 * q + 2 * p
            a(f"    v_pk_fma_f32 v[{vAK+r}:{vAK+r+1}], v[{vX0F+r}:{vX0F+r+1}], v[{vAK+r}:{vAK+r+1}], v[{vXR+r}:{vXR+r+1}]")
        for p in range(2):
            r = 4 * q + 2 * p
            a(f"    v_cvt_pk_bf16_f32 v{vP+2*q+p}, v{vAK+r}, v{vAK+r+1}")
    a(f"""
    s_cmp_eq_u32 s{sL}, 5
    s_cbranch_scc1 L_final
    s_cmp_eq_u32 s{sMODE}, 0
    s_cbranch_scc1 L_st_slow
""")
    epi(0); epi(1)
    a(f"    buffer_store_dwordx4 v[{vP}:{vP+3}], v{vXO}, s[{sWS}:{sWS+3}], s{sXST} offen")
    epi(2); epi(3)
    a(f"    buffer_store_dwordx4 v[{vP+4}:{vP+7}], v{vXO}, s[{sWS}:{sWS+3}], s{sXST} offen offset:1024")
    if c.phased: a("    s_barrier                                 ; B_s")
    stamp(3)
    def unpack_res():
        for d in range(8):
            a(f"    v_lshlrev_b32 v{vXR+2*d}, 16, v{vP+d}")
            a(f"    v_and_b32 v{vXR+2*d+1}, 0xffff0000, v{vP+d}")
    bias_load()
    unpack_res()
    a(f"""
    s_waitcnt vmcnt(0)
    buffer_store_dwordx2 v[{vFV}:{vFV+1}], off, s[{sWS}:{sWS+3}], s{sOWNF}
    s_branch L_st_done
L_st_slow:
""")
    epi(0); epi(1); epi(2); epi(3)
    a(f"""
    buffer_store_dwordx4 v[{vP}:{vP+3}], v{vXO}, s[{sWS}:{sWS+3}], s{sXST} offen sc1
    buffer_store_dwordx4 v[{vP+4}:{vP+7}], v{vXO}, s[{sWS}:{sWS+3}], s{sXST} offen offset:1024 sc1
""")
    if c.phased: a("    s_barrier                                 ; B_s")
    stamp(3)
    bias_load()
    unpack_res()
    a(f"""
    s_waitcnt vmcnt(0)
    buffer_store_dwordx2 v[{vFV}:{vFV+1}], off, s[{sWS}:{sWS+3}], s{sOWNF} sc1
L_st_done:
""")
    stamp()
    if c.onepoll:
        a(f"""
    s_cmp_eq_u32 s{sWV}, 0
    s_cbranch_scc0 L_nopoll1""")
    a(f"""
    buffer_load_dwordx2 v[{vPOLL}:{vPOLL+1}], v{vFA}, s[{sWS}:{sWS+3}], 0 offen sc1
L_nopoll1:
    {"s_barrier                                 ; B_f" if c.phased else ""}
""")
    def progress(lab):
        a(f"""    s_or_b32 s{sT0}, s{sJ}, s{sWV}
    s_cmp_eq_u32 s{sT0}, 0
    s_cbranch_scc0 {lab}
    s_add_u32 s{sT0}, s{sCB}, 3072
    buffer_store_dwordx2 v[{vFV}:{vFV+1}], off, s[{sWS}:{sWS+3}], s{sT0}
{lab}:""")
    if c.prog_at == "end": progress("L_noprog")
    a(f"""
    s_add_u32 s{sL}, s{sL}, 1
    s_cmp_eq_u32 s{sL}, 1
    s_cbranch_scc1 L_keep_xa
    s_add_u32 s{sXA}, s{sXA}, s{sXD}
    s_add_u32 s{sXB}, s{sXB}, s{sXD}
    s_sub_u32 s{sXD}, 0, s{sXD}
L_keep_xa:
    s_add_u32 s{sXST}, s{sXST}, s{sXD2}
    s_sub_u32 s{sXD2}, 0, s{sXD2}
    s_add_u32 s{sWP}, s{sWP}, {c.wstride}
    s_sub_u32 s{sMP}, s{sMP}, s{sPD}
    v_add_u32 v{vAPK}, s{sPD}, v{vAPK}
    v_add_u32 v{vAPS}, s{sPD}, v{vAPS}
    s_sub_u32 s{sPD}, 0, s{sPD}
    s_mov_b32 s{sSPIN}, 0
""")
    a("    s_waitcnt lgkmcnt(0)")
    bias_spread()
    if c.onepoll:
        a(f"""
    s_cmp_eq_u32 s{sWV}, 0
    s_cbranch_scc0 L_ready""")
    if c.poll2:
        a(f"""L_poll:
    buffer_load_dwordx2 v[{vPOL2}:{vPOL2+1}], v{vFA}, s[{sWS}:{sWS+3}], 0 offen sc1
    s_waitcnt vmcnt(1)
    v_cmp_eq_u64 vcc, s[{sTA}:{sTA+1}], v[{vPOLL}:{vPOLL+1}]
    v_cmp_eq_u64 s[{sMK}:{sMK+1}], s[{sTB}:{sTB+1}], v[{vPOLL}:{vPOLL+1}]
    s_or_b64 vcc, vcc, s[{sMK}:{sMK+1}]
    s_cmp_eq_u64 vcc, -1
    s_cbranch_scc1 L_ready
    buffer_load_dwordx2 v[{vPOLL}:{vPOLL+1}], v{vFA}, s[{sWS}:{sWS+3}], 0 offen sc1
    s_waitcnt vmcnt(1)
    v_cmp_eq_u64 vcc, s[{sTA}:{sTA+1}], v[{vPOL2}:{vPOL2+1}]
    v_cmp_eq_u64 s[{sMK}:{sMK+1}], s[{sTB}:{sTB+1}], v[{vPOL2}:{vPOL2+1}]
    s_or_b64 vcc, vcc, s[{sMK}:{sMK+1}]
    s_cmp_eq_u64 vcc, -1
    s_cbranch_scc1 L_ready
    s_add_u32 s{sSPIN}, s{sSPIN}, 1
    s_cmp_gt_u32 s{sSPIN}, {c.spin_max}
    s_cbranch_scc0 L_poll
    s_endpgm
""")
    else:
        a(f"""L_poll:
    s_waitcnt vmcnt(0)
    v_cmp_eq_u64 vcc, s[{sTA}:{sTA+1}], v[{vPOLL}:{vPOLL+1}]
    v_cmp_eq_u64 s[{sMK}:{sMK+1}], s[{sTB}:{sTB+1}], v[{vPOLL}:{vPOLL+1}]
    s_or_b64 vcc, vcc, s[{sMK}:{sMK+1}]
    s_cmp_eq_u64 vcc, -1
    s_cbranch_scc1 L_ready
    buffer_load_dwordx2 v[{vPOLL}:{vPOLL+1}], v{vFA}, s[{sWS}:{sWS+3}], 0 offen sc1
    s_add_u32 s{sSPIN}, s{sSPIN}, 1
    s_cmp_gt_u32 s{sSPIN}, {c.spin_max}
    s_cbranch_scc0 L_poll
    s_endpgm
""")
    a(f"""L_ready:
""")
    if c.amp and c.amp[0] == "start":
        a(f"""    s_cmp_eq_u32 s{sL}, 1
    s_cbranch_scc0 L_amp1
    s_memtime s[26:27]
    s_waitcnt lgkmcnt(0)
    s_sub_u32 s25, s26, s100
L_amp1:""")
    stamp(1)
    a(f"""
    s_barrier                                 ; B_a
    s_branch L_layer2
L_final:
""")
    epi(0); epi(1); epi(2); epi(3)
    a(f"""
    s_nop 1
    v_permlane32_swap_b32 v{vP}, v{vP+2}
    v_permlane32_swap_b32 v{vP+1}, v{vP+3}
    v_permlane32_swap_b32 v{vP+4}, v{vP+6}
    v_permlane32_swap_b32 v{vP+5}, v{vP+7}
    buffer_store_dwordx4 v[{vP}:{vP+3}], v{vOUT}, s[{sOUT}:{sOUT+3}], 0 offen
    buffer_store_dwordx4 v[{vP+4}:{vP+7}], v{vOUT}, s[{sOUT}:{sOUT+3}], 0 offen offset:32
    s_or_b32 s{sT0}, s{sJ}, s{sWV}
    s_cmp_eq_u32 s{sT0}, 0
    s_cbranch_scc0 L_noepoch
    s_add_u32 s{sT0}, s{sE}, 16
    s_addc_u32 s{sT1}, s{sE+1}, 0
    v_mov_b32 v{vFV}, s{sT0}
    v_mov_b32 v{vFV+1}, s{sT1}
    s_mov_b64 exec, 1
    buffer_store_dwordx2 v[{vFV}:{vFV+1}], off, s[{sWS}:{sWS+3}], s{sCB} sc1
    s_mov_b64 exec, -1
L_noepoch:
""")
    if c.amp:
        if c.amp[0] == "total":
            a("""    s_memtime s[26:27]
    s_waitcnt lgkmcnt(0)
    s_sub_u32 s25, s26, s100""")
        a(f"""    s_cmp_eq_u32 s2, 0
    s_cbranch_scc0 L_amp9
    s_mul_i32 s25, s25, {c.amp[1]}
    s_memtime s[80:81]
    s_waitcnt lgkmcnt(0)
L_ampspin:
    s_memtime s[82:83]
    s_waitcnt lgkmcnt(0)
    s_sub_u32 s82, s82, s80
    s_cmp_lt_u32 s82, s25
    s_cbranch_scc1 L_ampspin
L_amp9:""")
    if c.exp_delay or c.exp_rt:
        ins = "s_memtime" if c.exp_delay else "s_memrealtime"
        a(f"""
    {ins} s[80:81]
    s_waitcnt lgkmcnt(0)
L_expd:
    {ins} s[82:83]
    s_waitcnt lgkmcnt(0)
    s_sub_u32 s82, s82, s80
    s_cmp_lt_u32 s82, {c.exp_delay or c.exp_rt}
    s_cbranch_scc1 L_expd
""")
    stamp(1); dump_ts()
    a("    s_endpgm")

    if c.helpers:
        HPR = (c.SV * 16 + (2 * NSR if c.sp else 0)) if c.hp is None else c.hp * 16
        HP = HPR // 16
        nrow = 208 - HPR
        nline = nrow * 13
        tot = 4 * nline
        nins = (tot + 63) // 64
        cdelta = HPR * ROWB
        NK = -(-nins // 48)
        HF = 1 if ((c.h0 == 'prefix' or c.w0assist) and c.hfirst == 0) else c.hfirst
        a(f"""
L_helper:
""")
        if c.probe:
            a(f"""
    s_cmp_eq_u32 s2, 208
    s_cbranch_scc0 L_noprobe
    s_cmp_eq_u32 s{sWV}, 0
    s_cbranch_scc0 L_noprobe
    s_mov_b32 s20, {c.probe_off + 16384}
    buffer_load_dword v30, off, s[{sW}:{sW+3}], s20
    s_waitcnt vmcnt(0)
    s_mov_b32 s20, {c.probe_off}
    s_memtime s[22:23]
    s_waitcnt lgkmcnt(0)
    buffer_load_dword v30, off, s[{sW}:{sW+3}], s20
    s_waitcnt vmcnt(0)
    s_memtime s[24:25]
    s_waitcnt lgkmcnt(0)
    s_sub_u32 s24, s24, s22
    s_mul_i32 s24, s24, {c.probe}
L_pspin:
    s_memtime s[26:27]
    s_waitcnt lgkmcnt(0)
    s_sub_u32 s26, s26, s22
    s_cmp_lt_u32 s26, s24
    s_cbranch_scc1 L_pspin
    s_endpgm
L_noprobe:""")
        a(f"""
    ; L2 prefetch for the workers of this die (placement assumed for speed only): one dword per 128-byte line
    s_sub_u32 s{sT0}, s2, 208
    s_and_b32 s{sT1}, s{sT0}, 7
    s_lshr_b32 s{sT0}, s{sT0}, 3
    s_lshl_b32 s{sT0}, s{sT0}, 3
    s_add_u32 s{sT0}, s{sT0}, s{sWV}          ; g = 0..47
    s_lshl_b32 s{sCB}, s{sT1}, 13
    s_add_u32 s{sCB}, s{sCB}, {CTRL}
    s_load_dwordx2 s[{sE}:{sE+1}], s[50:51], s{sCB}
    s_add_u32 s{sOWNF}, s{sCB}, 3072
""")
        if c.tlbwarm:
            a(f"""
    s_cmp_eq_u32 s{sWV}, 7
    s_cbranch_scc0 L_notlb
""")
            k_ = 0
            for base, offs in ((46, [0, XLAYER - 64]), (50, [0, XBUF - 64, XBUF + (1 << 20), 2 * XBUF - 64, 2 * XBUF + 65536 - 64]),
                               (42, [1 << 21, 2 << 21, 3 << 21, L_ * WLAYER - 64])):
                for off in offs:
                    a(f"""    s_add_u32 s24, s{base}, {off}
    s_addc_u32 s25, s{base+1}, 0
    s_load_dword s{76+k_}, s[24:25], 0""")
                    k_ += 1
            a("L_notlb:")
        a(f"""
    ; exchange-buffer lines of the die's two row blocks: {2*XRB//128} lines
    s_mul_i32 s{sG}, s{sT1}, {2*XRB}
    s_lshl_b32 s{sI}, s{sT0}, 13
    s_add_u32 s{sG}, s{sG}, s{sI}
    v_lshlrev_b32 v19, 7, v{vL}
    v_add_u32 v19, s{sG}, v19
    s_cmp_lt_u32 s{sT0}, {-(-2*XRB // 8192)}
    s_cselect_b32 s{sM}, 1, 0
""")
        def lane_addr(vdst, nline_, base0, delta):
            tot_ = 4 * nline_
            a(f"""
    s_lshl_b32 s{sI}, s{sI}, 6
    v_add_u32 v{vT0}, s{sI}, v{vL}
    v_mov_b32 v{vT1}, {base0}
    v_cmp_le_u32 vcc, {nline_}, v{vT0}
    v_mov_b32 v{vT2}, 0
    v_mov_b32 v{vT3}, {delta}
    v_cndmask_b32 v{vT2}, v{vT2}, v{vT3}, vcc
    v_add_u32 v{vT1}, v{vT1}, v{vT2}
    v_cmp_le_u32 vcc, {2*nline_}, v{vT0}
    v_mov_b32 v{vT2}, 0
    s_nop 0
    v_cndmask_b32 v{vT2}, v{vT2}, v{vT3}, vcc
    v_add_u32 v{vT1}, v{vT1}, v{vT2}
    v_cmp_le_u32 vcc, {3*nline_}, v{vT0}
    v_mov_b32 v{vT2}, 0
    s_nop 0
    v_cndmask_b32 v{vT2}, v{vT2}, v{vT3}, vcc
    v_add_u32 v{vT1}, v{vT1}, v{vT2}
    v_lshl_add_u32 v{vdst}, v{vT0}, 7, v{vT1}
    v_cmp_le_u32 vcc, {tot_}, v{vT0}
    v_mov_b32 v{vT2}, 0x7ffffff0
    s_nop 0
    v_cndmask_b32 v{vdst}, v{vdst}, v{vT2}, vcc""")
        def need_set(vbase, skip_rows, nrows):
            tot_ = nrows * 52
            nins_ = (tot_ + 63) // 64
            nk = -(-nins_ // 48)
            for k in range(nk):
                a(f"""
    s_add_u32 s{sI}, s{sT0}, {48*k}
    s_lshl_b32 s{sI}, s{sI}, 6
    v_add_u32 v{vT0}, s{sI}, v{vL}
    v_mul_u32_u24 v{vT1}, 80660, v{vT0}
    v_lshrrev_b32 v{vT1}, 22, v{vT1}
    v_mul_u32_u24 v{vT2}, 52, v{vT1}
    v_sub_u32 v{vT2}, v{vT0}, v{vT2}          ; rem
    v_mul_u32_u24 v{vT3}, 5042, v{vT2}
    v_lshrrev_b32 v{vT3}, 16, v{vT3}
    v_mul_u32_u24 v{vbase+k}, 13, v{vT3}
    v_sub_u32 v{vT2}, v{vT2}, v{vbase+k}
    v_mul_u32_u24 v{vT3}, 208, v{vT3}
    v_add_u32 v{vT1}, v{vT1}, v{vT3}
    v_add_u32 v{vT1}, {skip_rows}, v{vT1}     ; row
    v_mul_u32_u24 v{vT1}, {ROWB}, v{vT1}
    v_lshl_add_u32 v{vbase+k}, v{vT2}, 7, v{vT1}
    v_cmp_le_u32 vcc, {tot_}, v{vT0}
    v_mov_b32 v{vT2}, 0x7ffffff0
    s_nop 0
    v_cndmask_b32 v{vbase+k}, v{vbase+k}, v{vT2}, vcc""")
            return nk
        def addr_set(vbase, nline_, base0, delta, tag):
            tot_ = 4 * nline_
            nins_ = (tot_ + 63) // 64
            nk = -(-nins_ // 48)
            a(f"    s_mul_i32 s{sT2}, s{sT1}, {nins_ // 8}")
            for k in range(nk):
                a(f"""
    s_add_u32 s{sT3}, s{sT0}, {48*k}
    s_add_u32 s{sI}, s{sT3}, s{sT2}
    s_cmp_ge_u32 s{sI}, {nins_}
    s_cselect_b32 s{sG}, {nins_}, 0
    s_sub_u32 s{sI}, s{sI}, s{sG}
    s_cmp_ge_u32 s{sT3}, {nins_}
    s_cselect_b32 s{sI}, {nins_ + 8}, s{sI}   ; no k-th instruction -> past the end""")
                lane_addr(vbase + k, nline_, base0, delta)
            return nk
        NK0 = 0
        if c.w0assist and c.hfirst == 0:
            skip0 = P * 16 + 60
            NK0 = addr_set(40, (208 - skip0) * 13, skip0 * ROWB, skip0 * ROWB, "p")
            for k in range(NK0):
                a(f"    buffer_load_dword v{50+k}, v{40+k}, s[{sW}:{sW+3}], 0 offen")
        elif c.h0 == "prefix" and c.hfirst == 0:
            NK0 = addr_set(40, HP * 16 * 13, 0, (13 - HP) * 26624, "p")
            for k in range(NK0):
                a(f"    buffer_load_dword v{50+k}, v{40+k}, s[{sW}:{sW+3}], 0 offen")
        if c.horder == "need": need_set(10, HPR, nrow)
        else: addr_set(10, nline, cdelta, cdelta, "h")
        nshare_l = tot // 8
        NW_ = 14
        if c.hwarm:
            a(f"""
    s_mul_i32 s{sI}, s{sT1}, {nshare_l}
    s_mul_i32 s{sG}, s{sT0}, {NW_}
    s_add_u32 s{sI}, s{sI}, s{sG}
    s_mov_b32 s{sG}, {cdelta}
    s_cmp_ge_u32 s{sI}, {nline}
    s_cselect_b32 s{sT3}, {cdelta}, 0
    s_add_u32 s{sG}, s{sG}, s{sT3}
    s_cmp_ge_u32 s{sI}, {2*nline}
    s_cselect_b32 s{sT3}, {cdelta}, 0
    s_add_u32 s{sG}, s{sG}, s{sT3}
    s_cmp_ge_u32 s{sI}, {3*nline}
    s_cselect_b32 s{sT3}, {cdelta}, 0
    s_add_u32 s{sG}, s{sG}, s{sT3}
    s_lshl_b32 s{sI}, s{sI}, 7
    s_add_u32 s{sI}, s{sI}, s{sG}
    s_add_u32 s{sI}, s{sI}, {c.wstride}
    s_add_u32 s44, s42, s{sI}                 ; layer 1
    s_addc_u32 s45, s43, 0""")
        if c.hvec_warm:
            a(f"""
    ; memory-side cache warm-up: lines [die*1352, +1352) of a later layer, one line per lane; waves g < 22 (and g - 22 < 22 at the start)
    s_cmp_ge_u32 s{sT0}, 22
    s_cselect_b32 s{sG}, 22, 0
    s_cselect_b32 s{sWG}, 1, 0
    s_sub_u32 s{sG}, s{sT0}, s{sG}
    s_lshl_b32 s{sG}, s{sG}, 6
    s_mul_i32 s{sI}, s{sT1}, 1352
    s_add_u32 s{sI}, s{sI}, s{sG}
    v_add_u32 v{vT0}, s{sI}, v{vL}
    v_lshlrev_b32 v18, 7, v{vT0}
    v_add_u32 v{vT1}, s{sG}, v{vL}
    v_cmp_le_u32 vcc, 1352, v{vT1}
    v_mov_b32 v{vT2}, 0x7ffffff0
    s_nop 0
    v_cndmask_b32 v18, v18, v{vT2}, vcc""")
        nv_l = c.SV * 16 * 52 // 8
        if c.hvwarm:
            a(f"""
    s_mul_i32 s{sI}, s{sT1}, {nv_l}
    s_mul_i32 s{sG}, s{sT0}, 7
    s_min_u32 s{sG}, s{sG}, {nv_l - 7}
    s_add_u32 s{sI}, s{sI}, s{sG}
    s_mov_b32 s{sG}, 0
    s_cmp_ge_u32 s{sI}, {c.SV * 16 * 13}
    s_cselect_b32 s{sT3}, {(208 - c.SV * 16) * ROWB}, 0
    s_add_u32 s{sG}, s{sG}, s{sT3}
    s_cmp_ge_u32 s{sI}, {2 * c.SV * 16 * 13}
    s_cselect_b32 s{sT3}, {(208 - c.SV * 16) * ROWB}, 0
    s_add_u32 s{sG}, s{sG}, s{sT3}
    s_cmp_ge_u32 s{sI}, {3 * c.SV * 16 * 13}
    s_cselect_b32 s{sT3}, {(208 - c.SV * 16) * ROWB}, 0
    s_add_u32 s{sG}, s{sG}, s{sT3}
    s_lshl_b32 s{sI}, s{sI}, 7
    s_add_u32 s{sI}, s{sI}, s{sG}
    s_add_u32 s{sI}, s{sI}, {c.wstride}
    s_add_u32 s46, s42, s{sI}                 ; layer 1
    s_addc_u32 s47, s43, 0""")
        if NK0 and c.hwarm:
            a("    s_waitcnt lgkmcnt(0)")
            for half in range(2):
                if half: a("    s_waitcnt lgkmcnt(0)")
                for n_ in range(7 * half, 7 * half + 7):
                    a(f"    s_load_dwordx2 s[{76+2*(n_%7)}:{77+2*(n_%7)}], s[44:45], {n_*128 + 60}")
            a(f"    s_add_u32 s44, s44, {c.wstride}")
            a(f"    s_addc_u32 s45, s45, 0")
        if NK0:
            a(f"""
    s_waitcnt vmcnt(0)
    s_barrier
    s_cmp_eq_u32 s{sM}, 1
    s_cbranch_scc0 L_hx1
    s_mov_b32 s{sI}, {XBUF}
    buffer_load_dword v30, v19, s[{sWS}:{sWS+3}], s{sI} offen sc1
L_hx1:
""")
        a(f"""
    v_mov_b32 v20, 0
    s_mov_b32 s{sL}, {HF}
    s_mov_b32 s{sT3}, {HF * c.wstride}
    s_waitcnt lgkmcnt(0)
L_h_layer:
""")
        if c.hpace:
            a(f"""
    ; before layer m wait (bounded) until the workers have finished layer m-{c.hlook}
    s_cmp_lt_u32 s{sL}, {c.hlook}
    s_cbranch_scc1 L_h_go
    s_cmp_eq_u32 s{sWV}, 0
    s_cbranch_scc0 L_h_bar
    s_mov_b32 s{sSPIN}, 0
L_h_poll:
    buffer_load_dwordx2 v[16:17], v20, s[{sWS}:{sWS+3}], s{sOWNF} offen sc1
    s_waitcnt vmcnt(0)
    v_readfirstlane_b32 s{sTA}, v16
    v_readfirstlane_b32 s{sTA+1}, v17
    s_sub_u32 s{sTA}, s{sTA}, s{sE}
    s_subb_u32 s{sTA+1}, s{sTA+1}, s{sE+1}
    s_cmp_eq_u32 s{sTA+1}, 0
    s_cselect_b32 s{sTA}, s{sTA}, 0
    s_cmp_gt_u32 s{sTA}, 6
    s_cselect_b32 s{sTA}, 0, s{sTA}
    s_add_u32 s{sTA}, s{sTA}, {c.hlook - 1}
    s_cmp_ge_u32 s{sTA}, s{sL}
    s_cbranch_scc1 L_h_bar
    s_add_u32 s{sSPIN}, s{sSPIN}, 1
    s_cmp_lt_u32 s{sSPIN}, 32
    s_cbranch_scc1 L_h_poll
L_h_bar:
    s_barrier
L_h_go:
""")
        def hw_batch(k, lab):
            if not c.hwarm: return
            a(f"    s_cmp_lt_u32 s{sL}, 5")
            a(f"    s_cbranch_scc0 {lab}")
            if not c.hw0:
                a(f"    s_cmp_eq_u32 s{sL}, 0")
                a(f"    s_cbranch_scc1 {lab}")
            a("    s_waitcnt lgkmcnt(0)")
            for n_ in range(7 * k, 7 * k + 7):
                a(f"    s_load_dwordx2 s[{76+2*(n_%7)}:{77+2*(n_%7)}], s[44:45], {n_*128 + 60}")
            a(f"{lab}:")
        def vec_warm(lab):
            A_ = c.hvw_ahead
            a(f"    s_cmp_eq_u32 s{sWG}, 1")
            a(f"    s_cbranch_scc1 {lab}_b")
            a(f"    s_add_u32 s{sI}, s{sL}, {A_}")
            a(f"    s_cmp_le_u32 s{sI}, 5")
            a(f"    s_cbranch_scc0 {lab}")
            if c.wwarm:
                a(f"    s_cmp_gt_u32 s{sI}, {c.wwarm}")
                a(f"    s_cbranch_scc0 {lab}")
            a(f"    s_add_u32 s{sI}, s{sT3}, {A_ * c.wstride}")
            a(f"    buffer_load_dword v29, v18, s[{sW}:{sW+3}], s{sI} offen")
            a(f"    s_branch {lab}")
            a(f"{lab}_b:")
            if A_ == 2 and c.wwarm < 1:
                a(f"    s_cmp_eq_u32 s{sL}, {HF}")
                a(f"    s_cbranch_scc0 {lab}")
                a(f"    s_add_u32 s{sI}, s{sT3}, {c.wstride}")
                a(f"    buffer_load_dword v29, v18, s[{sW}:{sW+3}], s{sI} offen")
            a(f"{lab}:")
        if c.hvec_warm and c.hvw_pos == "before": vec_warm("L_hvw")
        for k in range(NK):
            a(f"    buffer_load_dword v{31+k}, v{10+k}, s[{sW}:{sW+3}], s{sT3} offen")
            if k < 2: hw_batch(k, f"L_hw{k}")
            a(f"    s_waitcnt vmcnt({c.hdepth})")
            a(f"    s_barrier")
        if c.hvec_warm and c.hvw_pos == "after": vec_warm("L_hvw")
        if c.hvwarm:
            a(f"    s_cmp_lt_u32 s{sL}, 5")
            a(f"    s_cbranch_scc0 L_hnv")
            a("    s_waitcnt lgkmcnt(0)")
            for n_ in range(7):
                a(f"    s_load_dwordx2 s[{76+2*n_}:{77+2*n_}], s[46:47], {n_*128 + 60}")
            a(f"    s_add_u32 s46, s46, {c.wstride}")
            a(f"    s_addc_u32 s47, s47, 0")
            a("L_hnv:")
        if c.hwarm:
            a(f"    s_add_u32 s44, s44, {c.wstride}")
            a(f"    s_addc_u32 s45, s45, 0")
        if c.xt_by in ('helper', 'mixed'):
            nbuf = 1 if c.xt_by == "mixed" else 2
            a(f"""
    s_sub_u32 s{sI}, s{sL}, {HF}
    s_add_u32 s{sI}, s{sI}, {1 if HF != c.hfirst else 0}
    s_cmp_lt_u32 s{sI}, {nbuf}
    s_cbranch_scc0 L_hx0
    s_cmp_eq_u32 s{sM}, 1
    s_cbranch_scc0 L_hx0
    s_cmp_eq_u32 s{sI}, 0
    s_cselect_b32 s{sI}, {XBUF}, 0
    buffer_load_dword v30, v19, s[{sWS}:{sWS+3}], s{sI} offen sc1
L_hx0:""")
        stamp(1)
        a(f"""
    s_add_u32 s{sL}, s{sL}, 1
    s_add_u32 s{sT3}, s{sT3}, {c.wstride}
    s_cmp_lt_u32 s{sL}, 6
    s_cbranch_scc1 L_h_layer
""")
        if c.hwb:
            a(f"""
    ; first helper workgroup of the die, wave 0: once layer 4 is finished, start writing the exchanged activations back
    s_cmp_lt_u32 s2, 216
    s_cbranch_scc0 L_nowb
    s_cmp_eq_u32 s{sWV}, 0
    s_cbranch_scc0 L_nowb
    s_mov_b32 s{sSPIN}, 0
L_wbpoll:
    buffer_load_dwordx2 v[16:17], v20, s[{sWS}:{sWS+3}], s{sOWNF} offen sc1
    s_waitcnt vmcnt(0)
    v_readfirstlane_b32 s{sTA}, v16
    v_readfirstlane_b32 s{sTA+1}, v17
    s_sub_u32 s{sTA}, s{sTA}, s{sE}
    s_subb_u32 s{sTA+1}, s{sTA+1}, s{sE+1}
    s_cmp_eq_u32 s{sTA+1}, 0
    s_cselect_b32 s{sTA}, s{sTA}, 0
    s_cmp_eq_u32 s{sTA}, 5
    s_cbranch_scc1 L_wbgo
    s_add_u32 s{sSPIN}, s{sSPIN}, 1
    s_cmp_lt_u32 s{sSPIN}, 64
    s_cbranch_scc1 L_wbpoll
L_wbgo:
    buffer_wbl2 sc1
L_nowb:""")
        a("    s_waitcnt vmcnt(0)")
        stamp(1)
        dump_ts()
    a("L_end:")
    a("    s_endpgm")
    kernel_desc(a, KNAME, NV, sgpr=102, accum=NV)
    txt = a.text().rstrip()
    if txt.endswith(".text"):
        txt = txt[:-5]
    return txt

if __name__ == "__main__":
    import json
    kw = json.loads(sys.argv[2]) if len(sys.argv) > 2 else {}
    open(sys.argv[1], "w").write(gen(**kw))
```

```python
import sys, os
from asmlib import *

KNAME = "standalone__dcn_v2_cross__recsys_kernel"
B_, DIN, L_ = 1024, 832, 6
ROWB = DIN * 2
WLAYER = DIN * DIN * 2
XLAYER = B_ * DIN * 2
XMH = 32 * ROWB
XRB = 2 * XMH
XBUF = 16 * XRB
CTRL = 2 * XBUF
TSOFF = CTRL + 16 * 4096
WS_BYTES = TSOFF + 256 * 8 * 256

class Cfg:
    def __init__(self, **kw):
        self.P = 6
        self.D = 5
        self.PF = 2
        self.SV = 3
        self.SB = 7
        self.ssched = 'three'
        self.NS = 3
        self.sp = True
        self.hp = None
        self.helpers = True
        self.hfirst = 0
        self.hlook = 2
        self.hpace = True
        self.hdepth = 1
        self.lthr = 0
        self.lthr_all = True
        self.sD_late = True
        self.ts = 0
        self.force_slow = False
        self.scramble = False
        self.spin_max = 1 << 20
        self.wstride = WLAYER
        self.prio = 2
        self.hello_step = 19
        self.nt_last = False
        self.hfirstid = False
        self.chunks0 = [13, 17, 20, 23]
        self.amp = None
        self.hwb = False
        self.probe = 0
        self.probe_off = 5 * WLAYER + 700 * ROWB
        self.codepf = True
        self.wwarm = 0
        self.xt_by = 'helper'
        self.hvec_warm = False
        self.hvw_ahead = 2
        self.hvw_pos = 'after'
        self.tlbwarm = False
        self.l0b1 = True
        self.hvwarm = False
        self.hw0 = True
        self.hello_by = 'compute'
        self.pre_first = False
        self.swarm = False
        self.horder = 'linear'
        self.hwarm = True
        self.prog_step = 22
        self.prog_at = 'end'
        self.vwarm = True
        self.pre_by = 'loader'
        self.mid_step = 21
        self.presched = 'pack'
        self.h0 = 'middle'
        self.xtouch = False
        self.w0assist = False
        self.bias_by = 'loader'
        self.exp_delay = 0
        self.exp_rt = 0
        self.poll2 = True
        self.phased = True
        self.n1 = 0
        self.n2 = 4
        self.onepoll = True
        self.no_suf = self.no_pre = self.no_x = self.no_w = False
        self.__dict__.update(kw)

def gen(cfg=None, **kw):
    c = cfg or Cfg(**kw)
    P, D, PF = c.P, c.D, c.PF
    TS = int(c.ts)
    assert P <= 12 and PF <= P and D >= PF + 1
    KHS = (26 - P) * 2048
    PRE0 = 0
    SUF = 2 * P * 2048
    PRE1 = SUF + 2 * KHS
    PREPAR = PRE1 - PRE0
    RED = PRE1 + 2 * P * 2048
    BIAS = RED + 16384
    MODEW = BIAS
    LDS_BYTES = BIAS + 64
    XS = SUF
    assert XS + 4 * 28672 <= BIAS and LDS_BYTES <= 163840
    sW, sWS, sX0, sOUT, sBS = 4, 8, 12, 16, 24
    sRB, sJ, sG2, sWV, sMH, sKH, sL, sXCC, sMODE = 28, 29, 30, 31, 32, 33, 34, 35, 36
    sXA, sXB, sXST = 37, 38, 39
    sWP, sMP, sPD = 52, 53, 54
    sU, sOWNF, sXD2 = 55, 56, 57
    sT0, sT1, sT2, sT3 = 58, 59, 60, 61
    sSPIN, sROT = 62, 63
    sG, sM, sI = 64, 65, 66
    sTSI, sTM = 67, 68
    sXD, sCB = 70, 71
    sE, sTA, sTB, sMK = 72, 74, 76, 78
    sBP_ = 48
    sWG = 30
    vL = 0
    vT0, vT1, vT2, vT3 = 1, 2, 3, 4
    vDUM = 5
    vXO = 6
    vAPK, vAPS, vASK, vASS = 10, 11, 12, 13
    vDMA, vFA = 14, 15
    vPOLL = 16
    vRW, vRR, vBA, vTS = 20, 21, 22, 23
    vP = 24
    vAK, vAS, vPART, vX0F, vXR = 32, 48, 64, 80, 96
    vWF = 112
    vXF = 136
    vBP = 240
    vOUT, vHA, vFV, vDMA0 = 248, 249, 250, 252
    vPOL2 = 254
    NV = 256
    nsets = PF + 1
    assert nsets * 8 <= 24

    a = Asm()
    a("; Fused DCN-v2 cross network: 6 layers of x = x0 * (x @ W[l] + b[l]) + x, 1024 x 832, bf16 in/out, f32 accumulate.")
    a("; 208 worker workgroups = 16 row blocks (64 rows) x 13 column slices (64 columns); waves 0-3 MFMA, waves 4-7 W loaders;")
    a("; 48 helper workgroups prefetch into L2.  Layer outputs are exchanged inside a row block through d_ws.")
    a(f"; @launch grid=({256 if c.helpers else 208},1,1) block=(512,1,1) lds={LDS_BYTES}")
    a('.amdgcn_target "amdgcn-amd-amdhsa--gfx950"')
    a(".text")
    kernel_begin(a, KNAME)
    if c.amp:
        a("    s_memrealtime s[100:101]" if c.amp[0] == "totalrt" else "    s_memtime s[100:101]")
    if TS == 5:
        a("    s_memrealtime s[26:27]")
        a("    s_memtime s[100:101]")

    def stamp(level=2):
        if not TS or TS < level or (TS == 4 and level > 1) or TS == 5: return
        a(f"    s_memtime s[{sTM}:{sTM+1}]")
        a(f"    s_waitcnt lgkmcnt(0)")
        a(f"    s_mov_b32 m0, s{sTSI}")
        a(f"    s_nop 0")
        a(f"    v_writelane_b32 v{vTS}, s{sTM}, m0")
        a(f"    s_add_u32 s{sTSI}, s{sTSI}, 1")
    def dump_ts():
        if not TS: return
        if TS == 5:
            a("    s_memrealtime s[80:81]")
            a("    s_memtime s[82:83]")
            a("    s_waitcnt lgkmcnt(0)")
            a(f"    v_writelane_b32 v{vTS}, s26, 0")
            a(f"    v_writelane_b32 v{vTS}, s80, 1")
            a(f"    v_writelane_b32 v{vTS}, s100, 2")
            a(f"    v_writelane_b32 v{vTS}, s82, 3")
        a(f"""
    s_lshl_b32 s{sT0}, s2, 3
    s_add_u32 s{sT0}, s{sT0}, s{sWV}
    s_lshl_b32 s{sT0}, s{sT0}, 8
    s_add_u32 s{sT0}, s{sT0}, {TSOFF}
    v_lshlrev_b32 v{vT0}, 2, v{vL}
    buffer_store_dword v{vTS}, v{vT0}, s[{sWS}:{sWS+3}], s{sT0} offen
""")
    def srd(dst, src, nbytes):
        a(f"    s_mov_b32 s{dst}, s{src}")
        a(f"    s_and_b32 s{dst+1}, s{src+1}, 0xffff")
        a(f"    s_mov_b32 s{dst+2}, {nbytes}")
        a(f"    s_mov_b32 s{dst+3}, 0x20000")

    a(f"""
    s_cmp_ge_u32 s2, {256 if c.helpers else 208}
    s_cbranch_scc1 L_end
    s_load_dwordx4 s[40:43], s[0:1], 0
    s_load_dwordx4 s[44:47], s[0:1], 16
    s_load_dwordx2 s[50:51], s[0:1], 40
    s_getreg_b32 s{sXCC}, hwreg(HW_REG_XCC_ID, 0, 4)
""")
    if c.hfirstid and c.helpers:
        a("""    s_cmp_lt_u32 s2, 48
    s_cselect_b32 s3, 256, 0
    s_add_u32 s2, s2, s3
    s_sub_u32 s2, s2, 48""")
    if c.scramble:
        a(f"""
    s_mul_hi_u32 s{sRB}, s2, 0x13B13B14
    s_mul_i32 s{sT0}, s{sRB}, 13
    s_sub_u32 s{sJ}, s2, s{sT0}
    s_and_b32 s{sG2}, s{sRB}, 1
    s_mul_i32 s{sROT}, s{sG2}, 13""")
    else:
        a(f"""
    s_and_b32 s{sT0}, s2, 7
    s_lshr_b32 s{sT1}, s2, 3
    s_cmp_ge_u32 s{sT1}, 13
    s_cselect_b32 s{sG2}, 1, 0
    s_mul_i32 s{sROT}, s{sG2}, 13
    s_sub_u32 s{sJ}, s{sT1}, s{sROT}
    s_lshl_b32 s{sRB}, s{sT0}, 1
    s_add_u32 s{sRB}, s{sRB}, s{sG2}""")
    a(f"""
    v_lshrrev_b32 v{vT0}, 6, v0
    v_and_b32 v{vL}, 63, v0
    v_readfirstlane_b32 s{sWV}, v{vT0}
    s_mov_b32 s{sTSI}, 0
    v_mov_b32 v{vTS}, 0
    s_lshl_b32 s{sCB}, s{sRB}, 12
    s_add_u32 s{sCB}, s{sCB}, {CTRL}
    s_and_b32 s{sMH}, s{sWV}, 1
    s_bfe_u32 s{sKH}, s{sWV}, 0x10001
    ; ---- x0 staging addresses (used by the loader waves; computed while the kernel arguments are on their way)
    s_sub_u32 s{sU}, s{sWV}, 4                ; u = 0..3: (kh, a) for W, compute wave u for the x0 staging
    v_lshrrev_b32 v{vT0}, 3, v{vL}            ; row8
    v_and_b32 v{vT1}, 7, v{vL}
    v_lshrrev_b32 v{vT2}, 1, v{vT0}
    v_xor_b32 v{vT1}, v{vT1}, v{vT2}          ; c' ^ (row8>>1)
    v_xor_b32 v{vT2}, 4, v{vT1}
    v_mul_u32_u24 v{vT0}, {ROWB}, v{vT0}
    v_lshl_add_u32 v{vXO}, v{vT1}, 4, v{vT0}
    v_lshl_add_u32 v{vXO+1}, v{vT2}, 4, v{vT0}
    s_lshl_b32 s{sT0}, s{sRB}, 6
    s_lshl_b32 s{sT1}, s{sMH}, 5
    s_add_u32 s{sT0}, s{sT0}, s{sT1}
    s_mul_i32 s{sG}, s{sT0}, {ROWB}
    s_mul_i32 s{sT1}, s{sKH}, {6*128}
    s_add_u32 s{sG}, s{sG}, s{sT1}
    s_mul_i32 s{sM}, s{sU}, 28672
    s_add_u32 s{sM}, s{sM}, {XS}
    s_cmp_ge_u32 s{sJ}, 7
    s_cselect_b32 s{sT3}, 7, 0
    s_sub_u32 s{sT3}, s{sJ}, s{sT3}
    s_mov_b32 s{sI}, 0
    s_waitcnt lgkmcnt(0)
""")
    srd(sX0, 40, XLAYER)
    stamp(1)
    def common_srds():
        srd(sW, 42, L_ * WLAYER)
        srd(sWS, 50, WS_BYTES)
        if c.codepf:
            n_ = common_srds.n = getattr(common_srds, "n", 0) + 1
            a(f"""    ; instruction prefetch into L2: wave (id/8)*8 + w reads line number (that index) of this kernel's code
    s_getpc_b64 s[20:21]
L_pc{n_}:
    s_lshr_b32 s22, s2, 3
    s_lshl_b32 s22, s22, 3
    s_add_u32 s22, s22, s{sWV}
    s_lshl_b32 s22, s22, 6
    s_sub_u32 s20, s20, L_pc{n_} - {KNAME}
    s_subb_u32 s21, s21, 0
    s_min_u32 s22, s22, L_end - {KNAME}
    s_load_dword s3, s[20:21], s22""")
    def vdma():
        a(f"""    ; W DMA lane offsets: swizzled 16-byte chunk + j*128; rows in layer-0 order (vDMA0) and in normal order (vDMA)
    v_lshrrev_b32 v{vT0}, 3, v{vL}            ; row8
    v_and_b32 v{vT1}, 7, v{vL}
    v_bfe_u32 v{vT2}, v{vL}, 4, 1
    v_lshlrev_b32 v{vT2}, 2, v{vT2}
    v_xor_b32 v{vT1}, v{vT1}, v{vT2}
    v_lshlrev_b32 v{vT1}, 4, v{vT1}
    s_lshl_b32 s{sT0}, s{sJ}, 7
    v_add_u32 v{vT1}, s{sT0}, v{vT1}
    v_mul_u32_u24 v{vT2}, {ROWB}, v{vT0}
    v_add_u32 v{vDMA}, v{vT2}, v{vT1}
    v_and_b32 v{vT2}, 3, v{vT0}
    v_lshrrev_b32 v{vT0}, 2, v{vT0}
    v_lshl_add_u32 v{vT0}, v{vT0}, 3, v{vT2}
    v_mul_u32_u24 v{vT0}, {ROWB}, v{vT0}
    v_add_u32 v{vDMA0}, v{vT0}, v{vT1}
""")
    a(f"""
    s_cmp_ge_u32 s2, 208
    s_cbranch_scc1 L_nonloader
    s_cmp_lt_u32 s{sWV}, 4
    s_cbranch_scc1 L_nonloader
""")
    def bias_dma(sreg, val, lab):
        a(f"    s_cmp_eq_u32 s{sreg}, {val}")
        a(f"    s_cbranch_scc0 {lab}")
        srd(sBS, 44, L_ * ROWB)
        a(f"""    v_lshrrev_b32 v{vT0}, 5, v{vL}
    v_mul_u32_u24 v{vT0}, {ROWB}, v{vT0}
    v_and_b32 v{vT1}, 31, v{vL}
    v_lshlrev_b32 v{vT1}, 2, v{vT1}
    v_add_u32 v{vT0}, v{vT0}, v{vT1}
    s_lshl_b32 s{sT0}, s{sJ}, 7
    v_add_u32 v{vT0}, s{sT0}, v{vT0}""")
        for t in range(3):
            a(f"    s_mov_b32 m0, {BIAS + 256*t}")
            a(f"    s_mov_b32 s{sT1}, {2*t*ROWB}")
            a(f"    buffer_load_dword v{vT0}, s[{sBS}:{sBS+3}], s{sT1} offen lds")
        a(f"{lab}:")
    vS0, vS1 = vXO, vXO + 1
    sSB = 40
    sWP0 = 98
    SB = c.SB
    NSR = (2 if c.ssched == 'two' else 3) * SB
    def sbatch(k, nextlayer=False):
        if not c.sp: return
        b = sSB + 2 if nextlayer else sSB
        for n_ in range(SB):
            a(f"    s_load_dwordx2 s[{76+2*n_}:{77+2*n_}], s[{b}:{b+1}], {(k * SB + n_) * ROWB + 60}")
    a(f"""
L_xs:
    s_lshl_b32 s{sT0}, s{sT3}, 12
    s_add_u32 s{sT0}, s{sT0}, s{sM}
    s_lshl_b32 s{sT1}, s{sT3}, 7
    s_add_u32 s{sT1}, s{sT1}, s{sG}
""")
    for rg in range(4):
        a(f"    s_add_u32 m0, s{sT0}, {rg*1024}")
        a(f"    s_add_u32 s{sT2}, s{sT1}, {rg*8*ROWB}")
        a(f"    buffer_load_dwordx4 v{vS0 if rg % 2 == 0 else vS1}, s[{sX0}:{sX0+3}], s{sT2} offen lds")
    a(f"""
    s_add_u32 s{sT3}, s{sT3}, 1
    s_cmp_eq_u32 s{sT3}, 7
    s_cselect_b32 s{sT3}, 0, s{sT3}
    s_add_u32 s{sI}, s{sI}, 1
    s_cmp_lt_u32 s{sI}, 7
    s_cbranch_scc1 L_xs
""")
    common_srds()
    vdma()
    a(f"""
    s_mul_i32 s{sT0}, s{sKH}, 416
    s_lshl_b32 s{sT1}, s{sMH}, 2
    s_add_u32 s{sT1}, s{sT1}, s{sT0}
    s_mul_i32 s{sT1}, s{sT1}, {ROWB}
    v_add_u32 v{vDMA0}, s{sT1}, v{vDMA0}
    s_lshl_b32 s{sT1}, s{sMH}, 3
    s_add_u32 s{sT1}, s{sT1}, s{sT0}
    s_mul_i32 s{sT1}, s{sT1}, {ROWB}
    v_add_u32 v{vDMA}, s{sT1}, v{vDMA}
    ; ---- W prefix of layer 0
    s_mul_i32 s{sG}, s{sROT}, 26624
    s_mul_i32 s{sM}, s{sKH}, {P*2048}
    s_lshl_b32 s{sT1}, s{sMH}, 10
    s_add_u32 s{sM}, s{sM}, s{sT1}
""")
    for i in range(P):
        a(f"    s_add_u32 m0, s{sM}, {PRE0 + i*2048}")
        a(f"    s_add_u32 s{sT0}, s{sG}, {i*26624}")
        a(f"    buffer_load_dwordx4 v{vDMA0}, s[{sW}:{sW+3}], s{sT0} offen lds")
    a(f"""
""")
    if c.w0assist:
        a(f"""
    s_cmp_eq_u32 s{sU}, 3
    s_cbranch_scc0 L_now0t
    v_lshrrev_b32 v21, 5, v{vL}               ; K half
    v_mul_u32_u24 v21, 416, v21
    v_and_b32 v22, 31, v{vL}
    v_add_u32 v21, v21, v22
    v_mul_u32_u24 v21, {ROWB}, v21
    s_lshl_b32 s20, s{sROT}, 4
    s_add_u32 s20, s20, {P * 16 + 28}
    s_mul_i32 s20, s20, {ROWB}
    s_lshl_b32 s21, s{sJ}, 7
    s_add_u32 s20, s20, s21
    buffer_load_dword v{vDUM}, v21, s[{sW}:{sW+3}], s20 offen
L_now0t:""")
    a(f"""
""")
    if c.xt_by in ("worker", "mixed", "front1"):
        a(f"""
    v_lshrrev_b32 v21, 5, v{vL}
    v_mul_u32_u24 v21, {XMH}, v21
    v_and_b32 v22, 31, v{vL}
    v_lshl_add_u32 v21, v22, 7, v21
    s_mul_i32 s22, s{sRB}, {XRB}
    s_lshl_b32 s23, s{sJ}, 12
    s_add_u32 s22, s22, s23                   ; buffer 0
    s_add_u32 s23, s22, {XBUF}                ; buffer 1""")
    if c.xt_by == "worker":
        a(f"""    s_cmp_eq_u32 s{sU}, 1
    s_cbranch_scc0 L_noxt1
    buffer_load_dword v{vDUM}, v21, s[{sWS}:{sWS+3}], s23 offen sc1
L_noxt1:""")
    if c.hello_by == "loader":
        a(f"""
    s_load_dwordx2 s[{sE}:{sE+1}], s[50:51], s{sCB}
    s_add_u32 s{sT0}, s{sCB}, 128
    s_add_u32 s46, s50, s{sT0}
    s_addc_u32 s47, s51, 0""")
    a(f"""
    s_mul_i32 s{sT2}, s{sKH}, {KHS}
    s_lshl_b32 s{sT1}, s{sMH}, 10
    s_add_u32 s{sT2}, s{sT2}, s{sT1}
    s_add_u32 s{sMP}, s{sT2}, {SUF}
    s_mul_i32 s70, s{sKH}, {P*2048}
    s_add_u32 s70, s70, s{sT1}
    s_add_u32 s70, s70, {PRE1}                ; prefix of layer 1 goes to parity 1
    s_mov_b32 s71, {PREPAR}
    s_mul_i32 s{sT0}, s{sKH}, 416
    s_lshl_b32 s{sT1}, s{sROT}, 4
    s_add_u32 s{sT0}, s{sT0}, s{sT1}
    s_mul_i32 s{sT1}, s{sMH}, {NSR}
    s_add_u32 s{sT0}, s{sT0}, s{sT1}
    s_add_u32 s{sT0}, s{sT0}, {c.SV * 16}
    s_mul_i32 s{sT0}, s{sT0}, {ROWB}
    s_lshl_b32 s{sT1}, s{sJ}, 7
    s_add_u32 s{sT0}, s{sT0}, s{sT1}
    s_add_u32 s{sT0}, s{sT0}, {c.wstride}
    s_mov_b32 s98, s42
    s_mov_b32 s99, s43
    s_add_u32 s40, s42, s{sT0}
    s_addc_u32 s41, s43, 0
    s_add_u32 s42, s40, {c.wstride}
    s_addc_u32 s43, s41, 0
""")
    def swarm(k):
        if not (c.swarm and c.sp): return
        lst = [(l, r) for l in range(2, 6) for r in range(3)]
        lst = lst[:7] if k == 0 else lst[7:]
        cur = None
        for n_, (l, r) in enumerate(lst):
            if cur != l:
                a(f"    s_add_u32 s46, s44, {l * c.wstride}")
                a(f"    s_addc_u32 s47, s45, 0")
                cur = l
            a(f"    s_load_dwordx2 s[{76+2*n_}:{77+2*n_}], s[46:47], {r*ROWB + 60}")
    if c.swarm and c.sp:
        per_range = 2 * NSR // 3
        a(f"""
    ; share of the S rows for the warm-up: q = rb*4 + u, range = q / {per_range}, rows 3*(q % {per_range}) ...
    s_lshl_b32 s{sT0}, s{sRB}, 2
    s_add_u32 s{sT0}, s{sT0}, s{sWV}
    s_sub_u32 s{sT0}, s{sT0}, 4
    s_min_u32 s{sT0}, s{sT0}, {4 * per_range - 1}
    s_mul_i32 s{sT1}, s{sT0}, {-(-65536 // per_range)}
    s_lshr_b32 s{sT1}, s{sT1}, 16             ; range
    s_mul_i32 s{sT2}, s{sT1}, {per_range}
    s_sub_u32 s{sT0}, s{sT0}, s{sT2}
    s_mul_i32 s{sT0}, s{sT0}, 3
    s_mul_i32 s{sT1}, s{sT1}, 208
    s_add_u32 s{sT0}, s{sT0}, s{sT1}
    s_add_u32 s{sT0}, s{sT0}, {c.SV * 16}
    s_mul_i32 s{sT0}, s{sT0}, {ROWB}
    s_lshl_b32 s{sT1}, s{sJ}, 7
    s_add_u32 s{sT0}, s{sT0}, s{sT1}
    s_add_u32 s44, s{sWP0}, s{sT0}
    s_addc_u32 s45, s{sWP0+1}, 0
""")
        swarm(0)
    if c.w0assist:
        a(f"""    s_cmp_eq_u32 s{sU}, 3
    s_cbranch_scc0 L_bxw
    s_waitcnt vmcnt({P + 1})
    s_branch L_bxw2
L_bxw:
    s_waitcnt vmcnt({P})
L_bxw2:""")
    elif c.xt_by == "worker":
        a(f"""    s_cmp_eq_u32 s{sU}, 1
    s_cbranch_scc0 L_bxw
    s_waitcnt vmcnt({P + 1})
    s_branch L_bxw2
L_bxw:
    s_waitcnt vmcnt({P})
L_bxw2:""")
    else:
        a(f"    s_waitcnt vmcnt({P})")
    stamp()
    a(f"""
    s_barrier                                 ; B_x
    s_barrier                                 ; B_y
""")
    if c.swarm and c.sp: a("    s_waitcnt lgkmcnt(0)")
    if c.hello_by != "loader" and c.ssched != "two": sbatch(0)
    def suffix(vreg, lay, thr=True, phased=False, bp=None):
        a(f"    s_mul_i32 s{sG}, s{sROT}, 26624")
        a(f"    s_add_u32 s{sG}, s{sG}, {lay}")
        a(f"    s_sub_u32 s{sM}, 13, s{sROT}")
        a(f"    s_mul_i32 s{sM}, s{sM}, 26624")
        a(f"    s_add_u32 s{sM}, s{sM}, {lay}")
        for n_, i in enumerate(range(P, 26)):
            if bp is not None and n_ == bp:
                a(f"    s_waitcnt vmcnt({bp})")
                a("    s_barrier                                 ; B_p: prefix of layer 0 has landed")
                if c.hello_by == "loader":
                    a(f"""    s_cmp_eq_u32 s{sWV}, 6
    s_cbranch_scc0 L_b0
    s_waitcnt lgkmcnt(0)
    s_load_dwordx16 s[76:91], s[46:47], 0 glc
    s_load_dwordx8 s[92:99], s[46:47], 64 glc
    s_load_dwordx2 s[20:21], s[46:47], 96 glc
    s_branch L_b0d
L_b0:""")
                    sbatch(0)
                    a("L_b0d:")
            if phased and n_ == c.n1: a("    s_barrier")
            if phased and n_ == c.n1 + c.n2: a("    s_barrier")
            a(f"    s_add_u32 m0, s{sMP}, {(i-P)*2048}")
            a(f"    s_add_u32 s{sI}, s{sG if i < 13 else sM}, {(i % 13) * 26624}")
            a(f"    buffer_load_dwordx4 v{vreg}, s[{sW}:{sW+3}], s{sI} offen {'nt ' if (c.nt_last and i >= 13) else ''}lds")
            if c.lthr and thr and (c.lthr_all or n_ >= c.n1 + c.n2):
                a(f"    s_waitcnt vmcnt({c.lthr - 1})")
    sPP, sPDL = 70, 71
    def prefix_next(lay_next):
        a(f"    s_mul_i32 s{sG}, s{sROT}, 26624")
        a(f"    s_add_u32 s{sG}, s{sG}, s{lay_next}")
        for t in range(P):
            a(f"    s_add_u32 m0, s{sPP}, {t*2048}")
            a(f"    s_add_u32 s{sI}, s{sG}, {t*26624}")
            a(f"    buffer_load_dwordx4 v{vDMA}, s[{sW}:{sW+3}], s{sI} offen lds")
            if c.lthr and c.lthr_all and t + 1 < P:
                a(f"    s_waitcnt vmcnt({c.lthr - 1})")
        a(f"    s_sub_u32 s{sPP}, s{sPP}, s{sPDL}")
        a(f"    s_sub_u32 s{sPDL}, 0, s{sPDL}")
    def advance_sb():
        a(f"""    s_add_u32 s40, s40, {c.wstride}
    s_addc_u32 s41, s41, 0
    s_add_u32 s42, s42, {c.wstride}
    s_addc_u32 s43, s43, 0""")
    suffix(vDMA0, "0", False, False, bp=13 - P)
    n = 26 - P
    if c.hello_by != "loader":
        if c.sp and c.ssched != "two": a("    s_waitcnt lgkmcnt(0)")
        sbatch(1)
    if c.hello_by == "compute" and not c.swarm:
        B0 = [P] + list(c.chunks0)
        for k_, b_ in enumerate(B0):
            nxt = B0[k_ + 1] if k_ + 1 < len(B0) else 26
            a(f"    s_waitcnt vmcnt({26 - nxt})")
            if k_ == 0 or k_ + 1 == len(B0): stamp()
            a(f"    s_barrier")
    else:
        a(f"    s_waitcnt vmcnt({n - (13 - P)})")
        stamp()
        a("    s_barrier                                 ; chunk [P,13)")
        if c.hello_by == "loader" and c.sp and c.l0b1:
            a(f"    s_cmp_eq_u32 s{sWV}, 6")
            a(f"    s_cbranch_scc1 L_nob1")
            a("    s_waitcnt lgkmcnt(0)"); sbatch(1)
            a("L_nob1:")
        if c.swarm and c.sp:
            a("    s_waitcnt lgkmcnt(0)"); swarm(1)
        a(f"    s_waitcnt vmcnt({26 - 20})")
        a("    s_barrier                                 ; chunk [13,20)")
        if c.hello_by == "loader":
            a(f"""    s_cmp_eq_u32 s{sWV}, 6
        s_cbranch_scc0 L_nohe
        s_add_u32 s{sT0}, s{sE}, 8
        s_addc_u32 s{sT1}, s{sE+1}, 0
        s_and_b32 s{sT2}, s{sT1}, 0x0fffffff
        s_lshl_b32 s22, s{sXCC}, 28
        s_xor_b32 s{sT1}, s{sT1}, s22
        s_mov_b32 s22, 1
        s_mov_b32 s23, 1
        s_waitcnt lgkmcnt(0)""")
            for m_ in range(13):
                lo = 76 + 2 * m_ if m_ < 12 else 20
                a(f"""    s_cmp_eq_u32 s{lo}, s{sT0}
        s_cselect_b32 s23, s23, 0
        s_cmp_eq_u32 s{lo+1}, s{sT1}
        s_cselect_b32 s22, s22, 0
        s_and_b32 s{lo+1}, s{lo+1}, 0x0fffffff
        s_cmp_eq_u32 s{lo+1}, s{sT2}
        s_cselect_b32 s23, s23, 0""")
            a(f"""    s_sub_u32 s22, 2, s22
        s_mul_i32 s22, s22, s23
        v_mov_b32 v25, s22
        v_mov_b32 v26, {MODEW}
        ds_write_b32 v26, v25
        s_waitcnt lgkmcnt(0)
    """)
            sbatch(0)
            a("L_nohe:")
        a("    s_waitcnt vmcnt(0)")
        stamp()
        a("    s_barrier                                 ; chunk [20,26)")
    if c.pre_by == "loader":
        a("    s_barrier                                 ; B_mid")
        a(f"    s_mov_b32 s{sT3}, {c.wstride}")
        if not c.no_pre: prefix_next(sT3)
        if c.xt_by in ("worker", "mixed", "front1"):
            a(f"""    s_cmp_eq_u32 s{sWV}, 5
    s_cbranch_scc0 L_noxt0
    buffer_load_dword v{vDUM}, v21, s[{sWS}:{sWS+3}], s22 offen sc1
L_noxt0:""")
    advance_sb()
    a(f"""
    s_barrier
    s_mov_b32 s{sL}, 1
    s_mov_b32 s{sT3}, {c.wstride}
L_ld_layer:
    s_cmp_lt_u32 s{sL}, 5
    s_cselect_b32 s{sU}, 1, 0
""")
    def guarded(fn, lab):
        if not c.sp: return
        a(f"    s_cmp_eq_u32 s{sU}, 1")
        a(f"    s_cbranch_scc0 {lab}")
        fn()
        a(f"{lab}:")
    if c.ssched != "two":
        guarded(lambda: sbatch(1), "L_sA")
    if not c.no_suf: suffix(vDMA, f"s{sT3}", True, c.phased)
    elif c.phased:
        a("    s_barrier"); a("    s_barrier")
    stamp()
    if c.ssched != "two":
        guarded(lambda: (a("    s_waitcnt lgkmcnt(0)"), sbatch(2)), "L_sB")
    if c.pre_by == "loader": a(f"    s_waitcnt vmcnt({26 - P})                 ; the prefix has landed")
    a("    s_barrier                                 ; B_a")
    if c.ssched == "two":
        guarded(lambda: sbatch(1), "L_sB")
    a("    s_waitcnt vmcnt(0)")
    stamp()
    a("    s_barrier")
    a(f"    s_cmp_lt_u32 s{sL}, 4")
    a(f"    s_cselect_b32 s{sU}, 1, 0")
    guarded(lambda: (a("    s_waitcnt lgkmcnt(0)"), sbatch(0, True)), "L_sC")
    if c.pre_by == "loader":
        a("    s_barrier                                 ; B_mid")
        stamp(3)
        a(f"    s_cmp_lt_u32 s{sL}, 5")
        a(f"    s_cbranch_scc0 L_nopre")
        a(f"    s_add_u32 s{sU}, s{sT3}, {c.wstride}")
        if not c.no_pre: prefix_next(sU)
        a("L_nopre:")
        stamp(3)
    advance_sb()
    a(f"""
    s_barrier                                 ; B2
    s_add_u32 s{sL}, s{sL}, 1
    s_add_u32 s{sT3}, s{sT3}, {c.wstride}
    s_cmp_lt_u32 s{sL}, 6
    s_cbranch_scc1 L_ld_layer
""")
    dump_ts()
    a("    s_endpgm")

    sBI = 84
    sBP = 48
    def bias_load():
        a(f"    s_load_dwordx16 s[{sBI}:{sBI+15}], s[{sBP}:{sBP+1}], 0")
        a(f"    s_add_u32 s{sBP}, s{sBP}, {ROWB}")
        a(f"    s_addc_u32 s{sBP+1}, s{sBP+1}, 0")
    def bias_spread():
        a("    s_mov_b32 exec_hi, 0")
        for q in range(4):
            for d in range(2):
                a(f"    v_mov_b32 v{vBP+2*q+d}, s{sBI+4*q+d}")
        a("    s_mov_b32 exec_lo, 0")
        a("    s_mov_b32 exec_hi, -1")
        for q in range(4):
            for d in range(2):
                a(f"    v_mov_b32 v{vBP+2*q+d}, s{sBI+4*q+2+d}")
        a("    s_mov_b64 exec, -1")
    def bias_unpack(lo=0, hi=8):
        for d in range(lo, hi):
            a(f"    v_lshlrev_b32 v{vAK+2*d}, 16, v{vBP+d}")
            a(f"    v_and_b32 v{vAK+2*d+1}, 0xffff0000, v{vBP+d}")
    a("L_nonloader:")
    common_srds()
    if c.helpers:
        a(f"""
    s_cmp_ge_u32 s2, 208
    s_cbranch_scc1 L_helper
""")
    if c.pre_by == "compute": vdma()
    a(f"""
L_compute:
    s_load_dwordx2 s[{sE}:{sE+1}], s[50:51], s{sCB}
    s_lshl_b32 s{sT0}, s{sJ}, 7
    s_lshl_b32 s{sT1}, s{sKH}, 6
    s_add_u32 s{sT0}, s{sT0}, s{sT1}
    s_add_u32 s{sBP_}, s44, s{sT0}
    s_addc_u32 s{sBP_+1}, s45, 0
    s_load_dwordx16 s[84:99], s[{sBP_}:{sBP_+1}], 0
    s_load_dword s20, s[{sBP_}:{sBP_+1}], {ROWB}
    s_load_dword s21, s[{sBP_}:{sBP_+1}], {2*ROWB}
    s_load_dword s22, s[{sBP_}:{sBP_+1}], {3*ROWB}
    s_load_dword s23, s[{sBP_}:{sBP_+1}], {4*ROWB}
    s_load_dword s24, s[{sBP_}:{sBP_+1}], {5*ROWB}
    s_add_u32 s{sBP_}, s{sBP_}, {ROWB}
    s_addc_u32 s{sBP_+1}, s{sBP_+1}, 0
    s_setprio {c.prio}
""")
    if c.xt_by in ("front", "front1"):
        a(f"""
    v_lshrrev_b32 v21, 5, v{vL}
    v_mul_u32_u24 v21, {XMH}, v21
    v_and_b32 v22, 31, v{vL}
    v_lshl_add_u32 v21, v22, 7, v21
    s_mul_i32 s22, s{sRB}, {XRB}
    s_lshl_b32 s23, s{sJ}, 12
    s_add_u32 s22, s22, s23                   ; buffer 0
    s_add_u32 s23, s22, {XBUF}                ; buffer 1
    s_cmp_eq_u32 s{sWV}, 3
    s_cbranch_scc0 L_noxf1
    buffer_load_dword v{vDUM}, v21, s[{sWS}:{sWS+3}], s23 offen sc1
L_noxf1:""")
        if c.xt_by == "front":
            a(f"""    s_cmp_eq_u32 s{sWV}, 2
    s_cbranch_scc0 L_noxf0
    buffer_load_dword v{vDUM}, v21, s[{sWS}:{sWS+3}], s22 offen sc1
L_noxf0:""")
    if c.wwarm:
        a(f"""
    s_sub_u32 s{sT0}, s{sWV}, 1
    s_cmp_lt_u32 s{sT0}, {c.wwarm}
    s_cbranch_scc0 L_noww
    s_mul_i32 s{sT0}, s{sRB}, 13
    s_add_u32 s{sT0}, s{sT0}, s{sJ}
    s_mul_i32 s{sT0}, s{sT0}, {52 * 128}
    s_mul_i32 s{sT1}, s{sWV}, {c.wstride}
    s_add_u32 s20, s{sT0}, s{sT1}
    v_min_u32 v20, 51, v{vL}
    v_lshlrev_b32 v20, 7, v20
    buffer_load_dword v{vDUM}, v20, s[{sW}:{sW+3}], s20 offen
L_noww:""")
    a(f"""
    v_min_u32 v{vT0}, 51, v{vL}
    v_lshlrev_b32 v{vT0}, 3, v{vT0}
    s_add_u32 s{sT0}, s{sCB}, 2048
    v_add_u32 v{vFA}, s{sT0}, v{vT0}
    s_cmp_eq_u32 s{sWV}, 0
    s_cbranch_scc0 L_noft
    buffer_load_dword v{vDUM}, v{vFA}, s[{sWS}:{sWS+3}], 0 offen sc1
L_noft:
    s_lshl_b32 s{sT1}, s{sJ}, 2
    s_add_u32 s{sT1}, s{sT1}, s{sWV}
    s_lshl_b32 s{sT1}, s{sT1}, 3
    s_add_u32 s{sOWNF}, s{sT0}, s{sT1}
    v_min_u32 v{vT0}, 12, v{vL}
    v_lshlrev_b32 v{vT0}, 3, v{vT0}
    s_add_u32 s{sT0}, s{sCB}, 128
    v_add_u32 v{vHA}, s{sT0}, v{vT0}
""")
    srd(sOUT, 46, XLAYER)
    a(f"""
    s_lshl_b32 s{sT0}, s{sRB}, 6
    s_lshl_b32 s{sT1}, s{sMH}, 5
    s_add_u32 s{sT0}, s{sT0}, s{sT1}
    s_mul_i32 s{sT0}, s{sT0}, {ROWB}
    s_lshl_b32 s{sT1}, s{sJ}, 7
    s_add_u32 s{sT0}, s{sT0}, s{sT1}
    s_lshl_b32 s{sT1}, s{sKH}, 6
    s_add_u32 s{sT0}, s{sT0}, s{sT1}
    v_and_b32 v{vT0}, 31, v{vL}
    v_mul_u32_u24 v{vT0}, {ROWB}, v{vT0}
    v_lshrrev_b32 v{vT1}, 5, v{vL}
    v_lshl_add_u32 v{vT0}, v{vT1}, 4, v{vT0}
    v_add_u32 v{vOUT}, s{sT0}, v{vT0}
    v_lshlrev_b32 v{vXO}, 4, v{vL}
    v_add_u32 v{vXO+1}, 0x1000, v{vXO}
    v_add_u32 v{vXO+2}, 0x2000, v{vXO}
    v_add_u32 v{vXO+3}, 0x3000, v{vXO}
    s_mul_i32 s{sT0}, s{sRB}, {XRB}
    s_mul_i32 s{sT1}, s{sMH}, {XMH}
    s_add_u32 s{sT0}, s{sT0}, s{sT1}
    s_add_u32 s{sT0}, s{sT0}, {XBUF}
    s_lshl_b32 s{sT1}, s{sJ}, 2
    s_lshl_b32 s{sT2}, s{sKH}, 1
    s_add_u32 s{sT1}, s{sT1}, s{sT2}
    s_lshl_b32 s{sT1}, s{sT1}, 10
    s_add_u32 s{sXST}, s{sT0}, s{sT1}
""")
    if not c.helpers:
        a(f"""
    v_and_b32 v{vT1}, 15, v{vL}
    v_lshlrev_b32 v{vT1}, 7, v{vT1}
    v_bfe_u32 v{vT2}, v{vL}, 4, 1
    v_mul_u32_u24 v{vT2}, {XBUF >> 8}, v{vT2}
    v_lshl_add_u32 v{vT1}, v{vT2}, 8, v{vT1}
    s_sub_u32 s{sT3}, s{sXST}, {XBUF}
    buffer_load_dword v{vDUM}, v{vT1}, s[{sWS}:{sWS+3}], s{sT3} offen sc1
""")
    a(f"""
    s_mul_i32 s{sT1}, s{sKH}, 26
    s_add_u32 s{sT2}, s{sT1}, s{sROT}
    s_lshl_b32 s{sT2}, s{sT2}, 10
    s_add_u32 s{sXA}, s{sT0}, s{sT2}
    s_add_u32 s{sT2}, s{sT1}, 13
    s_sub_u32 s{sT2}, s{sT2}, s{sROT}
    s_lshl_b32 s{sT2}, s{sT2}, 10
    s_add_u32 s{sXB}, s{sT0}, s{sT2}
    s_mov_b32 s{sXD}, {-XBUF & 0xffffffff}
    s_mov_b32 s{sXD2}, {-XBUF & 0xffffffff}
    ; ---- W prefix bookkeeping for layer 1 (loaded at the end of layer 0)
    s_mul_i32 s{sT0}, s{sKH}, 416
    s_lshl_b32 s{sT1}, s{sROT}, 4
    s_add_u32 s{sT0}, s{sT0}, s{sT1}
    s_lshl_b32 s{sT1}, s{sMH}, 3
    s_add_u32 s{sT0}, s{sT0}, s{sT1}
    s_mul_i32 s{sWP}, s{sT0}, {ROWB}
    s_add_u32 s{sWP}, s{sWP}, {c.wstride}
    s_mul_i32 s{sMP}, s{sKH}, {P*2048}
    s_lshl_b32 s{sT1}, s{sMH}, 10
    s_add_u32 s{sMP}, s{sMP}, s{sT1}
    s_add_u32 s{sMP}, s{sMP}, {PRE1}
    s_mov_b32 s{sPD}, {PREPAR}
    v_lshrrev_b32 v{vT0}, 5, v{vL}            ; h
    v_lshlrev_b32 v{vT0}, 2, v{vT0}
    v_bfe_u32 v{vT1}, v{vL}, 2, 2             ; r
    v_add_u32 v{vT0}, v{vT0}, v{vT1}
    v_lshlrev_b32 v{vT0}, 7, v{vT0}           ; row*128
    v_bfe_u32 v{vT1}, v{vL}, 4, 1             ; nb
    v_lshlrev_b32 v{vT1}, 1, v{vT1}
    v_bfe_u32 v{vT2}, v{vL}, 1, 1             ; c>>1
    v_add_u32 v{vT1}, v{vT1}, v{vT2}
    v_bfe_u32 v{vT2}, v{vL}, 3, 1             ; (r>>1)&1
    v_lshlrev_b32 v{vT2}, 2, v{vT2}
    v_xor_b32 v{vT1}, v{vT1}, v{vT2}
    v_lshlrev_b32 v{vT1}, 4, v{vT1}
    v_add_u32 v{vT0}, v{vT0}, v{vT1}
    v_and_b32 v{vT1}, 1, v{vL}
    v_lshlrev_b32 v{vT1}, 3, v{vT1}
    v_add_u32 v{vT0}, v{vT0}, v{vT1}
    s_lshl_b32 s{sT0}, s{sKH}, 6
    v_xor_b32 v{vT1}, s{sT0}, v{vT0}          ; keep
    v_xor_b32 v{vT2}, 64, v{vT1}              ; send
    s_mul_i32 s{sT0}, s{sKH}, {P*2048}
    v_add_u32 v{vAPK}, s{sT0}, v{vT1}
    v_add_u32 v{vAPS}, s{sT0}, v{vT2}
    s_mul_i32 s{sT0}, s{sKH}, {KHS}
    s_add_u32 s{sT0}, s{sT0}, {SUF}
    v_add_u32 v{vASK}, s{sT0}, v{vT1}
    v_add_u32 v{vASS}, s{sT0}, v{vT2}
    s_lshl_b32 s{sT0}, s{sWV}, 12
    s_add_u32 s{sT0}, s{sT0}, {RED}
    v_add_u32 v{vRW}, s{sT0}, v{vXO}
    s_xor_b32 s{sT1}, s{sWV}, 2
    s_lshl_b32 s{sT1}, s{sT1}, 12
    s_add_u32 s{sT1}, s{sT1}, {RED}
    v_add_u32 v{vRR}, s{sT1}, v{vXO}
    v_lshrrev_b32 v{vT0}, 5, v{vL}
    v_lshlrev_b32 v{vT3}, 3, v{vT0}           ; h*8
    v_and_b32 v{vT0}, 31, v{vL}               ; m
    v_lshrrev_b32 v{vT1}, 3, v{vT0}
    v_lshlrev_b32 v{vT1}, 10, v{vT1}          ; rg*1024
    v_and_b32 v{vT2}, 7, v{vT0}
    v_lshl_add_u32 v{vT1}, v{vT2}, 7, v{vT1}  ; + row8*128
    v_bfe_u32 v{vT2}, v{vT0}, 1, 3            ; f(m)
    s_cmp_ge_u32 s{sJ}, 7
    s_cselect_b32 s{sT0}, 1, 0
    s_mul_i32 s{sT1}, s{sT0}, 6
    s_sub_u32 s{sT1}, s{sJ}, s{sT1}
    s_lshl_b32 s{sT1}, s{sT1}, 12
    s_lshl_b32 s{sT0}, s{sT0}, 1
    s_add_u32 s{sT0}, s{sT0}, s{sMH}
    s_mul_i32 s{sT0}, s{sT0}, 28672
    s_add_u32 s{sT0}, s{sT0}, s{sT1}
    s_add_u32 s{sT0}, s{sT0}, {XS}
    s_lshl_b32 s{sT1}, s{sKH}, 2
    v_add3_u32 v{vT3}, v{vT3}, v{vT1}, s{sT0}
    v_xor_b32 v{vT0}, s{sT1}, v{vT2}          ; (4*nh) ^ f(m)
""")
    for q in range(4):
        a(f"    v_xor_b32 v{vPART+8+q}, {q}, v{vT0}")
        a(f"    v_lshl_add_u32 v{vPART+8+q}, v{vPART+8+q}, 4, v{vT3}")
    a(f"""
    v_lshrrev_b32 v{vT0}, 5, v{vL}
    v_xor_b32 v{vT2}, v{vT2}, v{vT0}          ; f(m) ^ h
    s_mul_i32 s{sT3}, s{sWV}, 28672
    s_add_u32 s{sT3}, s{sT3}, {XS}
    s_mul_i32 s{sI}, s{sKH}, 26
    s_mul_i32 s{sM}, s{sKH}, 6
""")
    for seg in range(2):
        if seg == 0:
            a(f"    s_add_u32 s{sG}, s{sI}, s{sROT}")
        else:
            a(f"    s_add_u32 s{sG}, s{sI}, 13")
            a(f"    s_sub_u32 s{sG}, s{sG}, s{sROT}")
        for x in range(4):
            r = vPART + seg * 4 + x
            a(f"    s_add_u32 s{sT0}, s{sG}, {x}")
            a(f"    s_and_b32 s{sT1}, s{sT0}, 3")
            a(f"    s_lshl_b32 s{sT1}, s{sT1}, 1")
            a(f"    s_lshr_b32 s{sT0}, s{sT0}, 2")
            a(f"    s_sub_u32 s{sT0}, s{sT0}, s{sM}")
            a(f"    s_lshl_b32 s{sT0}, s{sT0}, 12")
            a(f"    s_add_u32 s{sT0}, s{sT0}, s{sT3}")
            a(f"    v_xor_b32 v{r}, s{sT1}, v{vT2}")
            a(f"    v_lshl_add_u32 v{r}, v{r}, 4, v{vT1}")
            a(f"    v_add_u32 v{r}, s{sT0}, v{r}")
    a(f"""
    s_waitcnt lgkmcnt(0)
    s_add_u32 s{sTA}, s{sE}, 1
    s_addc_u32 s{sTA+1}, s{sE+1}, 0
    s_add_u32 s{sTB}, s{sE}, 2
    s_addc_u32 s{sTB+1}, s{sE+1}, 0
    s_cmp_eq_u32 s{sWV}, 0
    s_cbranch_scc0 L_nohello
    s_add_u32 s{sT0}, s{sE}, 8
    s_addc_u32 s{sT1}, s{sE+1}, 0
    s_lshl_b32 s{sT2}, s{sXCC}, 28
    s_xor_b32 s{sT1}, s{sT1}, s{sT2}
    v_mov_b32 v{vPOLL}, s{sT0}
    v_mov_b32 v{vPOLL+1}, s{sT1}
    s_lshl_b32 s{sT2}, s{sJ}, 3
    s_add_u32 s{sT2}, s{sT2}, s{sCB}
    s_add_u32 s{sT2}, s{sT2}, 128
    s_mov_b64 exec, 1
    buffer_store_dwordx2 v[{vPOLL}:{vPOLL+1}], off, s[{sWS}:{sWS+3}], s{sT2} sc1
    s_mov_b64 exec, -1
L_nohello:
""")
    if c.w0assist:
        a(f"""
    s_mul_i32 s{sT0}, s{sKH}, 416
    s_lshl_b32 s{sT1}, s{sROT}, 4
    s_add_u32 s{sT0}, s{sT0}, s{sT1}
    s_mul_i32 s{sT1}, s{sMH}, 14
    s_add_u32 s{sT0}, s{sT0}, s{sT1}
    s_add_u32 s{sT0}, s{sT0}, {P * 16}
    s_mul_i32 s{sT0}, s{sT0}, {ROWB}
    s_lshl_b32 s{sT1}, s{sJ}, 7
    s_add_u32 s{sT0}, s{sT0}, s{sT1}
    s_add_u32 s44, s42, s{sT0}
    s_addc_u32 s45, s43, 0
""")
        for n_ in range(14):
            if n_ == 7: a("    s_waitcnt lgkmcnt(0)")
            a(f"    s_load_dwordx2 s[{20+2*(n_%2)}:{21+2*(n_%2)}], s[44:45], {n_*ROWB + 60}")
    elif c.vwarm:
        nrows = c.SV * 16
        per_rb = nrows // 4
        a(f"""
    s_lshr_b32 s{sT0}, s{sRB}, 2
    s_mul_i32 s{sT0}, s{sT0}, 208             ; range start row: 0, 208, 416, 624
    s_and_b32 s{sT1}, s{sRB}, 3
    s_mul_i32 s{sT1}, s{sT1}, {per_rb}
    s_add_u32 s{sT0}, s{sT0}, s{sT1}
    s_mul_i32 s{sT1}, s{sWV}, {per_rb // 4}
    s_add_u32 s{sT0}, s{sT0}, s{sT1}
    s_mul_i32 s{sT0}, s{sT0}, {ROWB}
    s_lshl_b32 s{sT1}, s{sJ}, 7
    s_add_u32 s{sT0}, s{sT0}, s{sT1}
    s_add_u32 s{sT0}, s{sT0}, {c.wstride}
    s_add_u32 s44, s42, s{sT0}
    s_addc_u32 s45, s43, 0
""")
        nper = per_rb // 4
        vw = [(l, r) for l in range(1, 6) for r in range(nper)][:14]
        def vwarm_batch(k):
            cur = None
            for n_, (l, r) in enumerate(vw[7*k:7*k+7]):
                if cur != l:
                    a(f"    s_add_u32 s46, s44, {(l-1) * c.wstride}")
                    a(f"    s_addc_u32 s47, s45, 0")
                    cur = l
                a(f"    s_load_dwordx2 s[{20+2*(n_%2)}:{21+2*(n_%2)}], s[46:47], {r*ROWB + 60}")
        vwarm_batch(0)
    stamp()
    a("    s_barrier                                 ; B_x: staged x0, prefix(0) and biases have landed")
    stamp()
    for q in range(4):
        a(f"    ds_read_b64 v[{vP+2*q}:{vP+2*q+1}], v{vPART+8+q}")
    for i in range(26):
        seg, ii = (0, i) if i < 13 else (1, i - 13)
        a(f"    ds_read_b128 v[{vXF+4*i}:{vXF+4*i+3}], v{vPART + seg*4 + (ii & 3)} offset:{(ii >> 2) * 4096}")
        if i in (9, 17):
            a("    s_waitcnt lgkmcnt(6)")
    a("    s_waitcnt lgkmcnt(0)")
    a("    s_barrier")
    if c.vwarm and not c.w0assist: vwarm_batch(1)
    stamp()
    for d in range(8):
        a(f"    v_lshlrev_b32 v{vX0F+2*d}, 16, v{vP+d}")
        a(f"    v_and_b32 v{vX0F+2*d+1}, 0xffff0000, v{vP+d}")
    bias_spread()
    bias_unpack()
    for r in range(16):
        a(f"    v_mov_b32 v{vXR+r}, v{vX0F+r}")
    a(f"    s_mov_b32 s{sL}, 0")
    a("    s_barrier                                 ; B_p: prefix of layer 0 has landed")
    stamp()

    def xload(i):
        if c.no_x:
            a("    s_nop 0"); return
        seg = sXA if i < 13 else sXB
        ii = i % 13
        a(f"    buffer_load_dwordx4 v[{vXF+4*i}:{vXF+4*i+3}], v{vXO+(ii>>2)}, s[{sWS}:{sWS+3}], s{seg} offen offset:{(ii&3)*1024} sc1")
    def rd(i, which):
        if c.no_w: return
        st = vWF + 8 * (i % nsets)
        if i < P: k, s_, off = vAPK, vAPS, i * 2048
        else: k, s_, off = vASK, vASS, (i - P) * 2048
        if which == "s":
            a(f"    ds_read_b64_tr_b16 v[{st}:{st+1}], v{s_} offset:{off}")
            a(f"    ds_read_b64_tr_b16 v[{st+2}:{st+3}], v{s_} offset:{off+1024}")
        else:
            a(f"    ds_read_b64_tr_b16 v[{st+4}:{st+5}], v{k} offset:{off}")
            a(f"    ds_read_b64_tr_b16 v[{st+6}:{st+7}], v{k} offset:{off+1024}")
    def pref_sched(i):
        if c.presched == "spread":
            t = i - (26 - P)
            return [t] if 0 <= t < P else []
        k = i - (26 - D)
        if k < 0: return []
        per_ = -(-P // D)
        return [t for t in range(k * per_, min(P, (k + 1) * per_))]
    def kloop(first):
        ops = []
        if first:
            for i in range(PF):
                rd(i, "s"); rd(i, "k")
        else:
            xload(0); ops.append(("x", 0))
            rd(0, "s"); rd(0, "k")
            xload(1); ops.append(("x", 1))
            rd(1, "s"); rd(1, "k")
            nrest = D - 2
            cuts = [8 * k // nrest for k in range(nrest + 1)]
            for k in range(nrest):
                bias_unpack(cuts[k], cuts[k + 1])
                xload(2 + k); ops.append(("x", 2 + k))
        bars = (([P] + list(c.chunks0)) if (c.hello_by == 'compute' and not c.swarm) else [P, 13, 20]) if first else [P]
        assert P < 13
        marks = [0, 1, 2, 4, 8, 12, 16, 20, 25]
        for i in range(26):
            a(f"    ; ---- step {i}")
            if TS == 4 and not first and i in marks:
                a(f"    s_memtime s[{80 + 2*marks.index(i)}:{81 + 2*marks.index(i)}]")
            young = sum(4 for t in range(i + 1, min(i + PF - 1, 25) + 1))
            if first:
                a(f"    s_waitcnt lgkmcnt({young})")
            else:
                nv = len(ops) - 1 - ops.index(("x", i))
                a(f"    s_waitcnt vmcnt({nv}) lgkmcnt({young})")
            st = vWF + 8 * (i % nsets)
            xf = vXF + 4 * i
            cs = "0" if i == 0 else f"v[{vAS}:{vAS+15}]"
            a(f"    v_mfma_f32_32x32x16_bf16 v[{vAS}:{vAS+15}], v[{st}:{st+3}], v[{xf}:{xf+3}], {cs}")
            if not first and i == 1:
                a(f"""    s_add_u32 s{sTA}, s{sTA}, 1
    s_addc_u32 s{sTA+1}, s{sTA+1}, 0""")
            if not first and i == 2:
                a(f"""    s_add_u32 s{sTB}, s{sTB}, 1
    s_addc_u32 s{sTB+1}, s{sTB+1}, 0""")
            if i + PF in bars:
                a("    s_barrier")
            if first and i == c.hello_step and c.hello_by != 'loader':
                a(f"    buffer_load_dwordx2 v[{vPOLL}:{vPOLL+1}], v{vHA}, s[{sWS}:{sWS+3}], 0 offen sc1")
            if not first and i + D < 26:
                xload(i + D); ops.append(("x", i + D))
            if c.pre_by == "loader":
                if i == c.mid_step: a("    s_barrier                                 ; B_mid: the x loads are all issued")
                if i == c.prog_step and c.prog_at == "mid":
                    lab = "L_noprogA" if first else "L_noprogB"
                    a(f"""    s_or_b32 s{sT0}, s{sJ}, s{sWV}
    s_cmp_eq_u32 s{sT0}, 0
    s_cbranch_scc0 {lab}
    v_mov_b32 v{vPOL2}, s{sTA}
    v_mov_b32 v{vPOL2+1}, s{sTA+1}
    s_add_u32 s{sT0}, s{sCB}, 3072
    buffer_store_dwordx2 v[{vPOL2}:{vPOL2+1}], off, s[{sWS}:{sWS+3}], s{sT0}
{lab}:""")
            else:
                for t in ([] if c.no_pre else pref_sched(i)):
                    a(f"    s_add_u32 m0, s{sMP}, {t*2048}")
                    a(f"    s_add_u32 s{sT0}, s{sWP}, {t*26624}")
                    a(f"    buffer_load_dwordx4 v{vDMA}, s[{sW}:{sW+3}], s{sT0} offen lds")
                    ops.append(("w", t))
            if i + PF < 26: rd(i + PF, "s")
            a(f"    v_mfma_f32_32x32x16_bf16 v[{vAK}:{vAK+15}], v[{st+4}:{st+7}], v[{xf}:{xf+3}], v[{vAK}:{vAK+15}]")
            if i + PF < 26: rd(i + PF, "k")
        return len([o for o in ops if o[0] == "w"])
    npre = kloop(True)
    if c.hello_by == "loader":
        a(f"""    v_mov_b32 v{vT0}, {MODEW}
    ds_read_b32 v{vT1}, v{vT0}
    s_waitcnt lgkmcnt(0)
    v_readfirstlane_b32 s{sMODE}, v{vT1}""")
        a(f"""
    s_cmp_eq_u32 s{sMODE}, 0
    s_cbranch_scc1 L_hello_slow
    s_and_b32 s{sMODE}, s{sMODE}, {0 if c.force_slow else 1}
    s_branch L_tail
L_hello_slow:
    buffer_load_dwordx2 v[{vPOLL}:{vPOLL+1}], v{vHA}, s[{sWS}:{sWS+3}], 0 offen sc1""")
    a(f"""
    s_add_u32 s{sT0}, s{sE}, 8
    s_addc_u32 s{sT1}, s{sE+1}, 0
    s_mov_b32 s{sSPIN}, 0
    s_waitcnt vmcnt({0 if c.hello_by == "loader" else npre})
    s_and_b32 s{sT2}, s{sT1}, 0x0fffffff
    s_lshl_b32 s{sT3}, s{sXCC}, 28
    s_xor_b32 s{sT3}, s{sT1}, s{sT3}
L_hello:
    v_and_b32 v{vT0}, 0x0fffffff, v{vPOLL+1}
    v_cmp_eq_u32 vcc, s{sT0}, v{vPOLL}
    v_cmp_eq_u32 s[{sMK}:{sMK+1}], s{sT2}, v{vT0}
    s_and_b64 vcc, vcc, s[{sMK}:{sMK+1}]
    s_cmp_eq_u64 vcc, -1
    s_cbranch_scc1 L_hello_ok
    s_add_u32 s{sSPIN}, s{sSPIN}, 1
    s_cmp_gt_u32 s{sSPIN}, {c.spin_max}
    s_cbranch_scc1 L_end
    buffer_load_dwordx2 v[{vPOLL}:{vPOLL+1}], v{vHA}, s[{sWS}:{sWS+3}], 0 offen sc1
    s_waitcnt vmcnt(0)
    s_branch L_hello
L_hello_ok:
    v_cmp_eq_u32 vcc, s{sT3}, v{vPOLL+1}
    s_cmp_eq_u64 vcc, -1
    s_cselect_b32 s{sMODE}, {0 if c.force_slow else 1}, 0
    s_branch L_tail
""")
    assert sT1 == sT0 + 1 and sT0 % 2 == 0
    a("L_layer2:")
    stamp()
    kloop(False)
    if TS == 4:
        a("    s_memtime s[98:99]")
        a("    s_waitcnt lgkmcnt(0)")
        for k in range(10):
            a(f"    s_mov_b32 m0, s{sTSI}")
            a(f"    s_nop 0")
            a(f"    v_writelane_b32 v{vTS}, s{80+2*k}, m0")
            a(f"    s_add_u32 s{sTSI}, s{sTSI}, 1")
    a("L_tail:")
    if c.amp and c.amp[0] == "l0k":
        a(f"""    s_cmp_eq_u32 s{sL}, 0
    s_cbranch_scc0 L_amp2
    s_memtime s[26:27]
    s_waitcnt lgkmcnt(0)
    s_sub_u32 s25, s26, s100
L_amp2:""")
    if TS in (2, 3):
        a("    s_nop 15")
        stamp()
    a(f"    v_mov_b32 v{vFV}, s{sTA}")
    a(f"    v_mov_b32 v{vFV+1}, s{sTA+1}")
    a("    s_nop 8")
    for q in range(4):
        a(f"    ds_write_b128 v{vRW}, v[{vAS+4*q}:{vAS+4*q+3}] offset:{q*1024}")
    a("    s_waitcnt lgkmcnt(0)")
    a("    s_barrier                                 ; B2")
    stamp(3)
    for q in range(4):
        a(f"    ds_read_b128 v[{vPART+4*q}:{vPART+4*q+3}], v{vRR} offset:{q*1024}")
    def epi(q):
        a(f"    s_waitcnt lgkmcnt({3-q})")
        for p in range(2):
            r = 4 * q + 2 * p
            a(f"    v_pk_add_f32 v[{vAK+r}:{vAK+r+1}], v[{vAK+r}:{vAK+r+1}], v[{vPART+r}:{vPART+r+1}]")
        for p in range(2):
            r = 4 * q + 2 * p
            a(f"    v_pk_fma_f32 v[{vAK+r}:{vAK+r+1}], v[{vX0F+r}:{vX0F+r+1}], v[{vAK+r}:{vAK+r+1}], v[{vXR+r}:{vXR+r+1}]")
        for p in range(2):
            r = 4 * q + 2 * p
            a(f"    v_cvt_pk_bf16_f32 v{vP+2*q+p}, v{vAK+r}, v{vAK+r+1}")
    a(f"""
    s_cmp_eq_u32 s{sL}, 5
    s_cbranch_scc1 L_final
    s_cmp_eq_u32 s{sMODE}, 0
    s_cbranch_scc1 L_st_slow
""")
    epi(0); epi(1)
    a(f"    buffer_store_dwordx4 v[{vP}:{vP+3}], v{vXO}, s[{sWS}:{sWS+3}], s{sXST} offen")
    epi(2); epi(3)
    a(f"    buffer_store_dwordx4 v[{vP+4}:{vP+7}], v{vXO}, s[{sWS}:{sWS+3}], s{sXST} offen offset:1024")
    if c.phased: a("    s_barrier                                 ; B_s")
    stamp(3)
    def unpack_res():
        for d in range(8):
            a(f"    v_lshlrev_b32 v{vXR+2*d}, 16, v{vP+d}")
            a(f"    v_and_b32 v{vXR+2*d+1}, 0xffff0000, v{vP+d}")
    bias_load()
    unpack_res()
    a(f"""
    s_waitcnt vmcnt(0)
    buffer_store_dwordx2 v[{vFV}:{vFV+1}], off, s[{sWS}:{sWS+3}], s{sOWNF}
    s_branch L_st_done
L_st_slow:
""")
    epi(0); epi(1); epi(2); epi(3)
    a(f"""
    buffer_store_dwordx4 v[{vP}:{vP+3}], v{vXO}, s[{sWS}:{sWS+3}], s{sXST} offen sc1
    buffer_store_dwordx4 v[{vP+4}:{vP+7}], v{vXO}, s[{sWS}:{sWS+3}], s{sXST} offen offset:1024 sc1
""")
    if c.phased: a("    s_barrier                                 ; B_s")
    stamp(3)
    bias_load()
    unpack_res()
    a(f"""
    s_waitcnt vmcnt(0)
    buffer_store_dwordx2 v[{vFV}:{vFV+1}], off, s[{sWS}:{sWS+3}], s{sOWNF} sc1
L_st_done:
""")
    stamp()
    if c.onepoll:
        a(f"""
    s_cmp_eq_u32 s{sWV}, 0
    s_cbranch_scc0 L_nopoll1""")
    a(f"""
    buffer_load_dwordx2 v[{vPOLL}:{vPOLL+1}], v{vFA}, s[{sWS}:{sWS+3}], 0 offen sc1
L_nopoll1:
    {"s_barrier                                 ; B_f" if c.phased else ""}
""")
    def progress(lab):
        a(f"""    s_or_b32 s{sT0}, s{sJ}, s{sWV}
    s_cmp_eq_u32 s{sT0}, 0
    s_cbranch_scc0 {lab}
    s_add_u32 s{sT0}, s{sCB}, 3072
    buffer_store_dwordx2 v[{vFV}:{vFV+1}], off, s[{sWS}:{sWS+3}], s{sT0}
{lab}:""")
    if c.prog_at == "end": progress("L_noprog")
    a(f"""
    s_add_u32 s{sL}, s{sL}, 1
    s_cmp_eq_u32 s{sL}, 1
    s_cbranch_scc1 L_keep_xa
    s_add_u32 s{sXA}, s{sXA}, s{sXD}
    s_add_u32 s{sXB}, s{sXB}, s{sXD}
    s_sub_u32 s{sXD}, 0, s{sXD}
L_keep_xa:
    s_add_u32 s{sXST}, s{sXST}, s{sXD2}
    s_sub_u32 s{sXD2}, 0, s{sXD2}
    s_add_u32 s{sWP}, s{sWP}, {c.wstride}
    s_sub_u32 s{sMP}, s{sMP}, s{sPD}
    v_add_u32 v{vAPK}, s{sPD}, v{vAPK}
    v_add_u32 v{vAPS}, s{sPD}, v{vAPS}
    s_sub_u32 s{sPD}, 0, s{sPD}
    s_mov_b32 s{sSPIN}, 0
""")
    a("    s_waitcnt lgkmcnt(0)")
    bias_spread()
    if c.onepoll:
        a(f"""
    s_cmp_eq_u32 s{sWV}, 0
    s_cbranch_scc0 L_ready""")
    if c.poll2:
        a(f"""L_poll:
    buffer_load_dwordx2 v[{vPOL2}:{vPOL2+1}], v{vFA}, s[{sWS}:{sWS+3}], 0 offen sc1
    s_waitcnt vmcnt(1)
    v_cmp_eq_u64 vcc, s[{sTA}:{sTA+1}], v[{vPOLL}:{vPOLL+1}]
    v_cmp_eq_u64 s[{sMK}:{sMK+1}], s[{sTB}:{sTB+1}], v[{vPOLL}:{vPOLL+1}]
    s_or_b64 vcc, vcc, s[{sMK}:{sMK+1}]
    s_cmp_eq_u64 vcc, -1
    s_cbranch_scc1 L_ready
    buffer_load_dwordx2 v[{vPOLL}:{vPOLL+1}], v{vFA}, s[{sWS}:{sWS+3}], 0 offen sc1
    s_waitcnt vmcnt(1)
    v_cmp_eq_u64 vcc, s[{sTA}:{sTA+1}], v[{vPOL2}:{vPOL2+1}]
    v_cmp_eq_u64 s[{sMK}:{sMK+1}], s[{sTB}:{sTB+1}], v[{vPOL2}:{vPOL2+1}]
    s_or_b64 vcc, vcc, s[{sMK}:{sMK+1}]
    s_cmp_eq_u64 vcc, -1
    s_cbranch_scc1 L_ready
    s_add_u32 s{sSPIN}, s{sSPIN}, 1
    s_cmp_gt_u32 s{sSPIN}, {c.spin_max}
    s_cbranch_scc0 L_poll
    s_endpgm
""")
    else:
        a(f"""L_poll:
    s_waitcnt vmcnt(0)
    v_cmp_eq_u64 vcc, s[{sTA}:{sTA+1}], v[{vPOLL}:{vPOLL+1}]
    v_cmp_eq_u64 s[{sMK}:{sMK+1}], s[{sTB}:{sTB+1}], v[{vPOLL}:{vPOLL+1}]
    s_or_b64 vcc, vcc, s[{sMK}:{sMK+1}]
    s_cmp_eq_u64 vcc, -1
    s_cbranch_scc1 L_ready
    buffer_load_dwordx2 v[{vPOLL}:{vPOLL+1}], v{vFA}, s[{sWS}:{sWS+3}], 0 offen sc1
    s_add_u32 s{sSPIN}, s{sSPIN}, 1
    s_cmp_gt_u32 s{sSPIN}, {c.spin_max}
    s_cbranch_scc0 L_poll
    s_endpgm
""")
    a(f"""L_ready:
""")
    if c.amp and c.amp[0] == "start":
        a(f"""    s_cmp_eq_u32 s{sL}, 1
    s_cbranch_scc0 L_amp1
    s_memtime s[26:27]
    s_waitcnt lgkmcnt(0)
    s_sub_u32 s25, s26, s100
L_amp1:""")
    stamp(1)
    a(f"""
    s_barrier                                 ; B_a
    s_branch L_layer2
L_final:
""")
    epi(0); epi(1); epi(2); epi(3)
    a(f"""
    s_nop 1
    v_permlane32_swap_b32 v{vP}, v{vP+2}
    v_permlane32_swap_b32 v{vP+1}, v{vP+3}
    v_permlane32_swap_b32 v{vP+4}, v{vP+6}
    v_permlane32_swap_b32 v{vP+5}, v{vP+7}
    buffer_store_dwordx4 v[{vP}:{vP+3}], v{vOUT}, s[{sOUT}:{sOUT+3}], 0 offen
    buffer_store_dwordx4 v[{vP+4}:{vP+7}], v{vOUT}, s[{sOUT}:{sOUT+3}], 0 offen offset:32
    s_or_b32 s{sT0}, s{sJ}, s{sWV}
    s_cmp_eq_u32 s{sT0}, 0
    s_cbranch_scc0 L_noepoch
    s_add_u32 s{sT0}, s{sE}, 16
    s_addc_u32 s{sT1}, s{sE+1}, 0
    v_mov_b32 v{vFV}, s{sT0}
    v_mov_b32 v{vFV+1}, s{sT1}
    s_mov_b64 exec, 1
    buffer_store_dwordx2 v[{vFV}:{vFV+1}], off, s[{sWS}:{sWS+3}], s{sCB} sc1
    s_mov_b64 exec, -1
L_noepoch:
""")
    if c.amp:
        if c.amp[0] in ("total", "totalrt"):
            a(("    s_memtime s[26:27]" if c.amp[0] == "total" else "    s_memrealtime s[26:27]") + """
    s_waitcnt lgkmcnt(0)
    s_sub_u32 s25, s26, s100""")
        tm = "s_memrealtime" if c.amp[0] == "totalrt" else "s_memtime"
        a(f"""    s_cmp_eq_u32 s2, 0
    s_cbranch_scc0 L_amp9
    s_mul_i32 s25, s25, {c.amp[1]}
    {tm} s[80:81]
    s_waitcnt lgkmcnt(0)
L_ampspin:
    {tm} s[82:83]
    s_waitcnt lgkmcnt(0)
    s_sub_u32 s82, s82, s80
    s_cmp_lt_u32 s82, s25
    s_cbranch_scc1 L_ampspin
L_amp9:""")
    if c.exp_delay or c.exp_rt:
        ins = "s_memtime" if c.exp_delay else "s_memrealtime"
        a(f"""
    {ins} s[80:81]
    s_waitcnt lgkmcnt(0)
L_expd:
    {ins} s[82:83]
    s_waitcnt lgkmcnt(0)
    s_sub_u32 s82, s82, s80
    s_cmp_lt_u32 s82, {c.exp_delay or c.exp_rt}
    s_cbranch_scc1 L_expd
""")
    stamp(1); dump_ts()
    a("    s_endpgm")

    if c.helpers:
        HPR = (c.SV * 16 + (2 * NSR if c.sp else 0)) if c.hp is None else c.hp * 16
        HP = HPR // 16
        nrow = 208 - HPR
        nline = nrow * 13
        tot = 4 * nline
        nins = (tot + 63) // 64
        cdelta = HPR * ROWB
        NK = -(-nins // 48)
        HF = 1 if ((c.h0 == 'prefix' or c.w0assist) and c.hfirst == 0) else c.hfirst
        a(f"""
L_helper:
""")
        if c.probe:
            a(f"""
    s_cmp_eq_u32 s2, 208
    s_cbranch_scc0 L_noprobe
    s_cmp_eq_u32 s{sWV}, 0
    s_cbranch_scc0 L_noprobe
    s_mov_b32 s20, {c.probe_off + 16384}
    buffer_load_dword v30, off, s[{sW}:{sW+3}], s20
    s_waitcnt vmcnt(0)
    s_mov_b32 s20, {c.probe_off}
    s_memtime s[22:23]
    s_waitcnt lgkmcnt(0)
    buffer_load_dword v30, off, s[{sW}:{sW+3}], s20
    s_waitcnt vmcnt(0)
    s_memtime s[24:25]
    s_waitcnt lgkmcnt(0)
    s_sub_u32 s24, s24, s22
    s_mul_i32 s24, s24, {c.probe}
L_pspin:
    s_memtime s[26:27]
    s_waitcnt lgkmcnt(0)
    s_sub_u32 s26, s26, s22
    s_cmp_lt_u32 s26, s24
    s_cbranch_scc1 L_pspin
    s_endpgm
L_noprobe:""")
        a(f"""
    ; L2 prefetch for the workers of this die (placement assumed for speed only): one dword per 128-byte line
    s_sub_u32 s{sT0}, s2, 208
    s_and_b32 s{sT1}, s{sT0}, 7
    s_lshr_b32 s{sT0}, s{sT0}, 3
    s_lshl_b32 s{sT0}, s{sT0}, 3
    s_add_u32 s{sT0}, s{sT0}, s{sWV}          ; g = 0..47
    s_lshl_b32 s{sCB}, s{sT1}, 13
    s_add_u32 s{sCB}, s{sCB}, {CTRL}
    s_load_dwordx2 s[{sE}:{sE+1}], s[50:51], s{sCB}
    s_add_u32 s{sOWNF}, s{sCB}, 3072
""")
        if c.tlbwarm:
            a(f"""
    s_cmp_eq_u32 s{sWV}, 7
    s_cbranch_scc0 L_notlb
""")
            k_ = 0
            for base, offs in ((46, [0, XLAYER - 64]), (50, [0, XBUF - 64, XBUF + (1 << 20), 2 * XBUF - 64, 2 * XBUF + 65536 - 64]),
                               (42, [1 << 21, 2 << 21, 3 << 21, L_ * WLAYER - 64])):
                for off in offs:
                    a(f"""    s_add_u32 s24, s{base}, {off}
    s_addc_u32 s25, s{base+1}, 0
    s_load_dword s{76+k_}, s[24:25], 0""")
                    k_ += 1
            a("L_notlb:")
        a(f"""
    ; exchange-buffer lines of the die's two row blocks: {2*XRB//128} lines
    s_mul_i32 s{sG}, s{sT1}, {2*XRB}
    s_lshl_b32 s{sI}, s{sT0}, 13
    s_add_u32 s{sG}, s{sG}, s{sI}
    v_lshlrev_b32 v19, 7, v{vL}
    v_add_u32 v19, s{sG}, v19
    s_cmp_lt_u32 s{sT0}, {-(-2*XRB // 8192)}
    s_cselect_b32 s{sM}, 1, 0
""")
        def lane_addr(vdst, nline_, base0, delta):
            tot_ = 4 * nline_
            a(f"""
    s_lshl_b32 s{sI}, s{sI}, 6
    v_add_u32 v{vT0}, s{sI}, v{vL}
    v_mov_b32 v{vT1}, {base0}
    v_cmp_le_u32 vcc, {nline_}, v{vT0}
    v_mov_b32 v{vT2}, 0
    v_mov_b32 v{vT3}, {delta}
    v_cndmask_b32 v{vT2}, v{vT2}, v{vT3}, vcc
    v_add_u32 v{vT1}, v{vT1}, v{vT2}
    v_cmp_le_u32 vcc, {2*nline_}, v{vT0}
    v_mov_b32 v{vT2}, 0
    s_nop 0
    v_cndmask_b32 v{vT2}, v{vT2}, v{vT3}, vcc
    v_add_u32 v{vT1}, v{vT1}, v{vT2}
    v_cmp_le_u32 vcc, {3*nline_}, v{vT0}
    v_mov_b32 v{vT2}, 0
    s_nop 0
    v_cndmask_b32 v{vT2}, v{vT2}, v{vT3}, vcc
    v_add_u32 v{vT1}, v{vT1}, v{vT2}
    v_lshl_add_u32 v{vdst}, v{vT0}, 7, v{vT1}
    v_cmp_le_u32 vcc, {tot_}, v{vT0}
    v_mov_b32 v{vT2}, 0x7ffffff0
    s_nop 0
    v_cndmask_b32 v{vdst}, v{vdst}, v{vT2}, vcc""")
        def need_set(vbase, skip_rows, nrows):
            tot_ = nrows * 52
            nins_ = (tot_ + 63) // 64
            nk = -(-nins_ // 48)
            for k in range(nk):
                a(f"""
    s_add_u32 s{sI}, s{sT0}, {48*k}
    s_lshl_b32 s{sI}, s{sI}, 6
    v_add_u32 v{vT0}, s{sI}, v{vL}
    v_mul_u32_u24 v{vT1}, 80660, v{vT0}
    v_lshrrev_b32 v{vT1}, 22, v{vT1}
    v_mul_u32_u24 v{vT2}, 52, v{vT1}
    v_sub_u32 v{vT2}, v{vT0}, v{vT2}          ; rem
    v_mul_u32_u24 v{vT3}, 5042, v{vT2}
    v_lshrrev_b32 v{vT3}, 16, v{vT3}
    v_mul_u32_u24 v{vbase+k}, 13, v{vT3}
    v_sub_u32 v{vT2}, v{vT2}, v{vbase+k}
    v_mul_u32_u24 v{vT3}, 208, v{vT3}
    v_add_u32 v{vT1}, v{vT1}, v{vT3}
    v_add_u32 v{vT1}, {skip_rows}, v{vT1}     ; row
    v_mul_u32_u24 v{vT1}, {ROWB}, v{vT1}
    v_lshl_add_u32 v{vbase+k}, v{vT2}, 7, v{vT1}
    v_cmp_le_u32 vcc, {tot_}, v{vT0}
    v_mov_b32 v{vT2}, 0x7ffffff0
    s_nop 0
    v_cndmask_b32 v{vbase+k}, v{vbase+k}, v{vT2}, vcc""")
            return nk
        def addr_set(vbase, nline_, base0, delta, tag):
            tot_ = 4 * nline_
            nins_ = (tot_ + 63) // 64
            nk = -(-nins_ // 48)
            a(f"    s_mul_i32 s{sT2}, s{sT1}, {nins_ // 8}")
            for k in range(nk):
                a(f"""
    s_add_u32 s{sT3}, s{sT0}, {48*k}
    s_add_u32 s{sI}, s{sT3}, s{sT2}
    s_cmp_ge_u32 s{sI}, {nins_}
    s_cselect_b32 s{sG}, {nins_}, 0
    s_sub_u32 s{sI}, s{sI}, s{sG}
    s_cmp_ge_u32 s{sT3}, {nins_}
    s_cselect_b32 s{sI}, {nins_ + 8}, s{sI}   ; no k-th instruction -> past the end""")
                lane_addr(vbase + k, nline_, base0, delta)
            return nk
        NK0 = 0
        if c.w0assist and c.hfirst == 0:
            skip0 = P * 16 + 60
            NK0 = addr_set(40, (208 - skip0) * 13, skip0 * ROWB, skip0 * ROWB, "p")
            for k in range(NK0):
                a(f"    buffer_load_dword v{50+k}, v{40+k}, s[{sW}:{sW+3}], 0 offen")
        elif c.h0 == "prefix" and c.hfirst == 0:
            NK0 = addr_set(40, HP * 16 * 13, 0, (13 - HP) * 26624, "p")
            for k in range(NK0):
                a(f"    buffer_load_dword v{50+k}, v{40+k}, s[{sW}:{sW+3}], 0 offen")
        if c.horder == "need": need_set(10, HPR, nrow)
        else: addr_set(10, nline, cdelta, cdelta, "h")
        nshare_l = tot // 8
        NW_ = 14
        if c.hwarm:
            a(f"""
    s_mul_i32 s{sI}, s{sT1}, {nshare_l}
    s_mul_i32 s{sG}, s{sT0}, {NW_}
    s_add_u32 s{sI}, s{sI}, s{sG}
    s_mov_b32 s{sG}, {cdelta}
    s_cmp_ge_u32 s{sI}, {nline}
    s_cselect_b32 s{sT3}, {cdelta}, 0
    s_add_u32 s{sG}, s{sG}, s{sT3}
    s_cmp_ge_u32 s{sI}, {2*nline}
    s_cselect_b32 s{sT3}, {cdelta}, 0
    s_add_u32 s{sG}, s{sG}, s{sT3}
    s_cmp_ge_u32 s{sI}, {3*nline}
    s_cselect_b32 s{sT3}, {cdelta}, 0
    s_add_u32 s{sG}, s{sG}, s{sT3}
    s_lshl_b32 s{sI}, s{sI}, 7
    s_add_u32 s{sI}, s{sI}, s{sG}
    s_add_u32 s{sI}, s{sI}, {c.wstride}
    s_add_u32 s44, s42, s{sI}                 ; layer 1
    s_addc_u32 s45, s43, 0""")
        if c.hvec_warm:
            a(f"""
    ; memory-side cache warm-up: lines [die*1352, +1352) of a later layer, one line per lane; waves g < 22 (and g - 22 < 22 at the start)
    s_cmp_ge_u32 s{sT0}, 22
    s_cselect_b32 s{sG}, 22, 0
    s_cselect_b32 s{sWG}, 1, 0
    s_sub_u32 s{sG}, s{sT0}, s{sG}
    s_lshl_b32 s{sG}, s{sG}, 6
    s_mul_i32 s{sI}, s{sT1}, 1352
    s_add_u32 s{sI}, s{sI}, s{sG}
    v_add_u32 v{vT0}, s{sI}, v{vL}
    v_lshlrev_b32 v18, 7, v{vT0}
    v_add_u32 v{vT1}, s{sG}, v{vL}
    v_cmp_le_u32 vcc, 1352, v{vT1}
    v_mov_b32 v{vT2}, 0x7ffffff0
    s_nop 0
    v_cndmask_b32 v18, v18, v{vT2}, vcc""")
        nv_l = c.SV * 16 * 52 // 8
        if c.hvwarm:
            a(f"""
    s_mul_i32 s{sI}, s{sT1}, {nv_l}
    s_mul_i32 s{sG}, s{sT0}, 7
    s_min_u32 s{sG}, s{sG}, {nv_l - 7}
    s_add_u32 s{sI}, s{sI}, s{sG}
    s_mov_b32 s{sG}, 0
    s_cmp_ge_u32 s{sI}, {c.SV * 16 * 13}
    s_cselect_b32 s{sT3}, {(208 - c.SV * 16) * ROWB}, 0
    s_add_u32 s{sG}, s{sG}, s{sT3}
    s_cmp_ge_u32 s{sI}, {2 * c.SV * 16 * 13}
    s_cselect_b32 s{sT3}, {(208 - c.SV * 16) * ROWB}, 0
    s_add_u32 s{sG}, s{sG}, s{sT3}
    s_cmp_ge_u32 s{sI}, {3 * c.SV * 16 * 13}
    s_cselect_b32 s{sT3}, {(208 - c.SV * 16) * ROWB}, 0
    s_add_u32 s{sG}, s{sG}, s{sT3}
    s_lshl_b32 s{sI}, s{sI}, 7
    s_add_u32 s{sI}, s{sI}, s{sG}
    s_add_u32 s{sI}, s{sI}, {c.wstride}
    s_add_u32 s46, s42, s{sI}                 ; layer 1
    s_addc_u32 s47, s43, 0""")
        if NK0 and c.hwarm:
            a("    s_waitcnt lgkmcnt(0)")
            for half in range(2):
                if half: a("    s_waitcnt lgkmcnt(0)")
                for n_ in range(7 * half, 7 * half + 7):
                    a(f"    s_load_dwordx2 s[{76+2*(n_%7)}:{77+2*(n_%7)}], s[44:45], {n_*128 + 60}")
            a(f"    s_add_u32 s44, s44, {c.wstride}")
            a(f"    s_addc_u32 s45, s45, 0")
        if NK0:
            a(f"""
    s_waitcnt vmcnt(0)
    s_barrier
    s_cmp_eq_u32 s{sM}, 1
    s_cbranch_scc0 L_hx1
    s_mov_b32 s{sI}, {XBUF}
    buffer_load_dword v30, v19, s[{sWS}:{sWS+3}], s{sI} offen sc1
L_hx1:
""")
        a(f"""
    v_mov_b32 v20, 0
    s_mov_b32 s{sL}, {HF}
    s_mov_b32 s{sT3}, {HF * c.wstride}
    s_waitcnt lgkmcnt(0)
L_h_layer:
""")
        if c.hpace:
            a(f"""
    ; before layer m wait (bounded) until the workers have finished layer m-{c.hlook}
    s_cmp_lt_u32 s{sL}, {c.hlook}
    s_cbranch_scc1 L_h_go
    s_cmp_eq_u32 s{sWV}, 0
    s_cbranch_scc0 L_h_bar
    s_mov_b32 s{sSPIN}, 0
L_h_poll:
    buffer_load_dwordx2 v[16:17], v20, s[{sWS}:{sWS+3}], s{sOWNF} offen sc1
    s_waitcnt vmcnt(0)
    v_readfirstlane_b32 s{sTA}, v16
    v_readfirstlane_b32 s{sTA+1}, v17
    s_sub_u32 s{sTA}, s{sTA}, s{sE}
    s_subb_u32 s{sTA+1}, s{sTA+1}, s{sE+1}
    s_cmp_eq_u32 s{sTA+1}, 0
    s_cselect_b32 s{sTA}, s{sTA}, 0
    s_cmp_gt_u32 s{sTA}, 6
    s_cselect_b32 s{sTA}, 0, s{sTA}
    s_add_u32 s{sTA}, s{sTA}, {c.hlook - 1}
    s_cmp_ge_u32 s{sTA}, s{sL}
    s_cbranch_scc1 L_h_bar
    s_add_u32 s{sSPIN}, s{sSPIN}, 1
    s_cmp_lt_u32 s{sSPIN}, 32
    s_cbranch_scc1 L_h_poll
L_h_bar:
    s_barrier
L_h_go:
""")
        def hw_batch(k, lab):
            if not c.hwarm: return
            a(f"    s_cmp_lt_u32 s{sL}, 5")
            a(f"    s_cbranch_scc0 {lab}")
            if not c.hw0:
                a(f"    s_cmp_eq_u32 s{sL}, 0")
                a(f"    s_cbranch_scc1 {lab}")
            a("    s_waitcnt lgkmcnt(0)")
            for n_ in range(7 * k, 7 * k + 7):
                a(f"    s_load_dwordx2 s[{76+2*(n_%7)}:{77+2*(n_%7)}], s[44:45], {n_*128 + 60}")
            a(f"{lab}:")
        def vec_warm(lab):
            A_ = c.hvw_ahead
            a(f"    s_cmp_eq_u32 s{sWG}, 1")
            a(f"    s_cbranch_scc1 {lab}_b")
            a(f"    s_add_u32 s{sI}, s{sL}, {A_}")
            a(f"    s_cmp_le_u32 s{sI}, 5")
            a(f"    s_cbranch_scc0 {lab}")
            if c.wwarm:
                a(f"    s_cmp_gt_u32 s{sI}, {c.wwarm}")
                a(f"    s_cbranch_scc0 {lab}")
            a(f"    s_add_u32 s{sI}, s{sT3}, {A_ * c.wstride}")
            a(f"    buffer_load_dword v29, v18, s[{sW}:{sW+3}], s{sI} offen")
            a(f"    s_branch {lab}")
            a(f"{lab}_b:")
            if A_ == 2 and c.wwarm < 1:
                a(f"    s_cmp_eq_u32 s{sL}, {HF}")
                a(f"    s_cbranch_scc0 {lab}")
                a(f"    s_add_u32 s{sI}, s{sT3}, {c.wstride}")
                a(f"    buffer_load_dword v29, v18, s[{sW}:{sW+3}], s{sI} offen")
            a(f"{lab}:")
        if c.hvec_warm and c.hvw_pos == "before": vec_warm("L_hvw")
        for k in range(NK):
            a(f"    buffer_load_dword v{31+k}, v{10+k}, s[{sW}:{sW+3}], s{sT3} offen")
            if k < 2: hw_batch(k, f"L_hw{k}")
            a(f"    s_waitcnt vmcnt({c.hdepth})")
            a(f"    s_barrier")
        if c.hvec_warm and c.hvw_pos == "after": vec_warm("L_hvw")
        if c.hvwarm:
            a(f"    s_cmp_lt_u32 s{sL}, 5")
            a(f"    s_cbranch_scc0 L_hnv")
            a("    s_waitcnt lgkmcnt(0)")
            for n_ in range(7):
                a(f"    s_load_dwordx2 s[{76+2*n_}:{77+2*n_}], s[46:47], {n_*128 + 60}")
            a(f"    s_add_u32 s46, s46, {c.wstride}")
            a(f"    s_addc_u32 s47, s47, 0")
            a("L_hnv:")
        if c.hwarm:
            a(f"    s_add_u32 s44, s44, {c.wstride}")
            a(f"    s_addc_u32 s45, s45, 0")
        if c.xt_by in ('helper', 'mixed'):
            nbuf = 1 if c.xt_by == "mixed" else 2
            a(f"""
    s_sub_u32 s{sI}, s{sL}, {HF}
    s_add_u32 s{sI}, s{sI}, {1 if HF != c.hfirst else 0}
    s_cmp_lt_u32 s{sI}, {nbuf}
    s_cbranch_scc0 L_hx0
    s_cmp_eq_u32 s{sM}, 1
    s_cbranch_scc0 L_hx0
    s_cmp_eq_u32 s{sI}, 0
    s_cselect_b32 s{sI}, {XBUF}, 0
    buffer_load_dword v30, v19, s[{sWS}:{sWS+3}], s{sI} offen sc1
L_hx0:""")
        stamp(1)
        a(f"""
    s_add_u32 s{sL}, s{sL}, 1
    s_add_u32 s{sT3}, s{sT3}, {c.wstride}
    s_cmp_lt_u32 s{sL}, 6
    s_cbranch_scc1 L_h_layer
""")
        if c.hwb:
            a(f"""
    ; first helper workgroup of the die, wave 0: once layer 4 is finished, start writing the exchanged activations back
    s_cmp_lt_u32 s2, 216
    s_cbranch_scc0 L_nowb
    s_cmp_eq_u32 s{sWV}, 0
    s_cbranch_scc0 L_nowb
    s_mov_b32 s{sSPIN}, 0
L_wbpoll:
    buffer_load_dwordx2 v[16:17], v20, s[{sWS}:{sWS+3}], s{sOWNF} offen sc1
    s_waitcnt vmcnt(0)
    v_readfirstlane_b32 s{sTA}, v16
    v_readfirstlane_b32 s{sTA+1}, v17
    s_sub_u32 s{sTA}, s{sTA}, s{sE}
    s_subb_u32 s{sTA+1}, s{sTA+1}, s{sE+1}
    s_cmp_eq_u32 s{sTA+1}, 0
    s_cselect_b32 s{sTA}, s{sTA}, 0
    s_cmp_eq_u32 s{sTA}, 5
    s_cbranch_scc1 L_wbgo
    s_add_u32 s{sSPIN}, s{sSPIN}, 1
    s_cmp_lt_u32 s{sSPIN}, 64
    s_cbranch_scc1 L_wbpoll
L_wbgo:
    buffer_wbl2 sc1
L_nowb:""")
        a("    s_waitcnt vmcnt(0)")
        stamp(1)
        dump_ts()
    a("L_end:")
    a("    s_endpgm")
    kernel_desc(a, KNAME, NV, sgpr=102, accum=NV)
    txt = a.text().rstrip()
    if txt.endswith(".text"):
        txt = txt[:-5]
    return txt

if __name__ == "__main__":
    import json
    kw = json.loads(sys.argv[2]) if len(sys.argv) > 2 else {}
    open(sys.argv[1], "w").write(gen(**kw))
```

```python
import sys, os
from asmlib import *

KNAME = "standalone__dcn_v2_cross__recsys_kernel"
B_, DIN, L_ = 1024, 832, 6
ROWB = DIN * 2
WLAYER = DIN * DIN * 2
XLAYER = B_ * DIN * 2
XMH = 32 * ROWB
XRB = 2 * XMH
XBUF = 16 * XRB
CTRL = 2 * XBUF
TSOFF = CTRL + 16 * 4096
WS_BYTES = TSOFF + 256 * 8 * 256

class Cfg:
    def __init__(self, **kw):
        self.P = 6
        self.D = 5
        self.PF = 2
        self.SV = 3
        self.SB = 7
        self.ssched = 'three'
        self.NS = 3
        self.sp = True
        self.hp = None
        self.helpers = True
        self.hfirst = 0
        self.hlook = 2
        self.hpace = True
        self.hdepth = 1
        self.lthr = 0
        self.lthr_all = True
        self.sD_late = True
        self.ts = 0
        self.force_slow = False
        self.scramble = False
        self.spin_max = 1 << 20
        self.wstride = WLAYER
        self.prio = 2
        self.hello_step = 19
        self.vw2 = 'after_by'
        self.nt_last = False
        self.hfirstid = False
        self.chunks0 = [13, 17, 20, 23]
        self.amp = None
        self.hwb = False
        self.probe = 0
        self.probe_off = 5 * WLAYER + 700 * ROWB
        self.codepf = True
        self.wwarm = 0
        self.xt_by = 'helper'
        self.hvec_warm = False
        self.hvw_ahead = 2
        self.hvw_pos = 'after'
        self.tlbwarm = False
        self.l0b1 = True
        self.hvwarm = False
        self.hw0 = True
        self.hello_by = 'compute'
        self.pre_first = False
        self.swarm = False
        self.horder = 'linear'
        self.hwarm = True
        self.prog_step = 22
        self.prog_at = 'end'
        self.vwarm = True
        self.pre_by = 'loader'
        self.mid_step = 21
        self.presched = 'pack'
        self.h0 = 'middle'
        self.xtouch = False
        self.w0assist = False
        self.bias_by = 'loader'
        self.exp_delay = 0
        self.exp_rt = 0
        self.poll2 = True
        self.phased = True
        self.n1 = 0
        self.n2 = 4
        self.onepoll = True
        self.no_suf = self.no_pre = self.no_x = self.no_w = False
        self.__dict__.update(kw)

def gen(cfg=None, **kw):
    c = cfg or Cfg(**kw)
    P, D, PF = c.P, c.D, c.PF
    TS = int(c.ts)
    assert P <= 12 and PF <= P and D >= PF + 1
    KHS = (26 - P) * 2048
    PRE0 = 0
    SUF = 2 * P * 2048
    PRE1 = SUF + 2 * KHS
    PREPAR = PRE1 - PRE0
    RED = PRE1 + 2 * P * 2048
    BIAS = RED + 16384
    MODEW = BIAS
    LDS_BYTES = BIAS + 64
    XS = SUF
    assert XS + 4 * 28672 <= BIAS and LDS_BYTES <= 163840
    sW, sWS, sX0, sOUT, sBS = 4, 8, 12, 16, 24
    sRB, sJ, sG2, sWV, sMH, sKH, sL, sXCC, sMODE = 28, 29, 30, 31, 32, 33, 34, 35, 36
    sXA, sXB, sXST = 37, 38, 39
    sWP, sMP, sPD = 52, 53, 54
    sU, sOWNF, sXD2 = 55, 56, 57
    sT0, sT1, sT2, sT3 = 58, 59, 60, 61
    sSPIN, sROT = 62, 63
    sG, sM, sI = 64, 65, 66
    sTSI, sTM = 67, 68
    sXD, sCB = 70, 71
    sE, sTA, sTB, sMK = 72, 74, 76, 78
    sBP_ = 48
    sWG = 30
    vL = 0
    vT0, vT1, vT2, vT3 = 1, 2, 3, 4
    vDUM = 5
    vXO = 6
    vAPK, vAPS, vASK, vASS = 10, 11, 12, 13
    vDMA, vFA = 14, 15
    vPOLL = 16
    vRW, vRR, vBA, vTS = 20, 21, 22, 23
    vP = 24
    vAK, vAS, vPART, vX0F, vXR = 32, 48, 64, 80, 96
    vWF = 112
    vXF = 136
    vBP = 240
    vOUT, vHA, vFV, vDMA0 = 248, 249, 250, 252
    vPOL2 = 254
    NV = 256
    nsets = PF + 1
    assert nsets * 8 <= 24

    a = Asm()
    a("; Fused DCN-v2 cross network: 6 layers of x = x0 * (x @ W[l] + b[l]) + x, 1024 x 832, bf16 in/out, f32 accumulate.")
    a("; 208 worker workgroups = 16 row blocks (64 rows) x 13 column slices (64 columns); waves 0-3 MFMA, waves 4-7 W loaders;")
    a("; 48 helper workgroups prefetch into L2.  Layer outputs are exchanged inside a row block through d_ws.")
    a(f"; @launch grid=({256 if c.helpers else 208},1,1) block=(512,1,1) lds={LDS_BYTES}")
    a('.amdgcn_target "amdgcn-amd-amdhsa--gfx950"')
    a(".text")
    kernel_begin(a, KNAME)
    if c.amp:
        a("    s_memrealtime s[100:101]" if c.amp[0] == "totalrt" else "    s_memtime s[100:101]")
    if TS == 5:
        a("    s_memrealtime s[26:27]")
        a("    s_memtime s[100:101]")

    def stamp(level=2):
        if not TS or TS < level or (TS == 4 and level > 1) or TS == 5: return
        a(f"    s_memtime s[{sTM}:{sTM+1}]")
        a(f"    s_waitcnt lgkmcnt(0)")
        a(f"    s_mov_b32 m0, s{sTSI}")
        a(f"    s_nop 0")
        a(f"    v_writelane_b32 v{vTS}, s{sTM}, m0")
        a(f"    s_add_u32 s{sTSI}, s{sTSI}, 1")
    def dump_ts():
        if not TS: return
        if TS == 5:
            a("    s_memrealtime s[80:81]")
            a("    s_memtime s[82:83]")
            a("    s_waitcnt lgkmcnt(0)")
            a(f"    v_writelane_b32 v{vTS}, s26, 0")
            a(f"    v_writelane_b32 v{vTS}, s80, 1")
            a(f"    v_writelane_b32 v{vTS}, s100, 2")
            a(f"    v_writelane_b32 v{vTS}, s82, 3")
        a(f"""
    s_lshl_b32 s{sT0}, s2, 3
    s_add_u32 s{sT0}, s{sT0}, s{sWV}
    s_lshl_b32 s{sT0}, s{sT0}, 8
    s_add_u32 s{sT0}, s{sT0}, {TSOFF}
    v_lshlrev_b32 v{vT0}, 2, v{vL}
    buffer_store_dword v{vTS}, v{vT0}, s[{sWS}:{sWS+3}], s{sT0} offen
""")
    def srd(dst, src, nbytes):
        a(f"    s_mov_b32 s{dst}, s{src}")
        a(f"    s_and_b32 s{dst+1}, s{src+1}, 0xffff")
        a(f"    s_mov_b32 s{dst+2}, {nbytes}")
        a(f"    s_mov_b32 s{dst+3}, 0x20000")

    a(f"""
    s_cmp_ge_u32 s2, {256 if c.helpers else 208}
    s_cbranch_scc1 L_end
    s_load_dwordx4 s[40:43], s[0:1], 0
    s_load_dwordx4 s[44:47], s[0:1], 16
    s_load_dwordx2 s[50:51], s[0:1], 40
    s_getreg_b32 s{sXCC}, hwreg(HW_REG_XCC_ID, 0, 4)
""")
    if c.hfirstid and c.helpers:
        a("""    s_cmp_lt_u32 s2, 48
    s_cselect_b32 s3, 256, 0
    s_add_u32 s2, s2, s3
    s_sub_u32 s2, s2, 48""")
    if c.scramble:
        a(f"""
    s_mul_hi_u32 s{sRB}, s2, 0x13B13B14
    s_mul_i32 s{sT0}, s{sRB}, 13
    s_sub_u32 s{sJ}, s2, s{sT0}
    s_and_b32 s{sG2}, s{sRB}, 1
    s_mul_i32 s{sROT}, s{sG2}, 13""")
    else:
        a(f"""
    s_and_b32 s{sT0}, s2, 7
    s_lshr_b32 s{sT1}, s2, 3
    s_cmp_ge_u32 s{sT1}, 13
    s_cselect_b32 s{sG2}, 1, 0
    s_mul_i32 s{sROT}, s{sG2}, 13
    s_sub_u32 s{sJ}, s{sT1}, s{sROT}
    s_lshl_b32 s{sRB}, s{sT0}, 1
    s_add_u32 s{sRB}, s{sRB}, s{sG2}""")
    a(f"""
    v_lshrrev_b32 v{vT0}, 6, v0
    v_and_b32 v{vL}, 63, v0
    v_readfirstlane_b32 s{sWV}, v{vT0}
    s_mov_b32 s{sTSI}, 0
    v_mov_b32 v{vTS}, 0
    s_lshl_b32 s{sCB}, s{sRB}, 12
    s_add_u32 s{sCB}, s{sCB}, {CTRL}
    s_and_b32 s{sMH}, s{sWV}, 1
    s_bfe_u32 s{sKH}, s{sWV}, 0x10001
    ; ---- x0 staging addresses (used by the loader waves; computed while the kernel arguments are on their way)
    s_sub_u32 s{sU}, s{sWV}, 4                ; u = 0..3: (kh, a) for W, compute wave u for the x0 staging
    v_lshrrev_b32 v{vT0}, 3, v{vL}            ; row8
    v_and_b32 v{vT1}, 7, v{vL}
    v_lshrrev_b32 v{vT2}, 1, v{vT0}
    v_xor_b32 v{vT1}, v{vT1}, v{vT2}          ; c' ^ (row8>>1)
    v_xor_b32 v{vT2}, 4, v{vT1}
    v_mul_u32_u24 v{vT0}, {ROWB}, v{vT0}
    v_lshl_add_u32 v{vXO}, v{vT1}, 4, v{vT0}
    v_lshl_add_u32 v{vXO+1}, v{vT2}, 4, v{vT0}
    s_lshl_b32 s{sT0}, s{sRB}, 6
    s_lshl_b32 s{sT1}, s{sMH}, 5
    s_add_u32 s{sT0}, s{sT0}, s{sT1}
    s_mul_i32 s{sG}, s{sT0}, {ROWB}
    s_mul_i32 s{sT1}, s{sKH}, {6*128}
    s_add_u32 s{sG}, s{sG}, s{sT1}
    s_mul_i32 s{sM}, s{sU}, 28672
    s_add_u32 s{sM}, s{sM}, {XS}
    s_cmp_ge_u32 s{sJ}, 7
    s_cselect_b32 s{sT3}, 7, 0
    s_sub_u32 s{sT3}, s{sJ}, s{sT3}
    s_mov_b32 s{sI}, 0
    s_waitcnt lgkmcnt(0)
""")
    srd(sX0, 40, XLAYER)
    stamp(1)
    def common_srds():
        srd(sW, 42, L_ * WLAYER)
        srd(sWS, 50, WS_BYTES)
        if c.codepf:
            n_ = common_srds.n = getattr(common_srds, "n", 0) + 1
            a(f"""    ; instruction prefetch into L2: wave (id/8)*8 + w reads line number (that index) of this kernel's code
    s_getpc_b64 s[20:21]
L_pc{n_}:
    s_lshr_b32 s22, s2, 3
    s_lshl_b32 s22, s22, 3
    s_add_u32 s22, s22, s{sWV}
    s_lshl_b32 s22, s22, 6
    s_sub_u32 s20, s20, L_pc{n_} - {KNAME}
    s_subb_u32 s21, s21, 0
    s_min_u32 s22, s22, L_end - {KNAME}
    s_load_dword s3, s[20:21], s22""")
    def vdma():
        a(f"""    ; W DMA lane offsets: swizzled 16-byte chunk + j*128; rows in layer-0 order (vDMA0) and in normal order (vDMA)
    v_lshrrev_b32 v{vT0}, 3, v{vL}            ; row8
    v_and_b32 v{vT1}, 7, v{vL}
    v_bfe_u32 v{vT2}, v{vL}, 4, 1
    v_lshlrev_b32 v{vT2}, 2, v{vT2}
    v_xor_b32 v{vT1}, v{vT1}, v{vT2}
    v_lshlrev_b32 v{vT1}, 4, v{vT1}
    s_lshl_b32 s{sT0}, s{sJ}, 7
    v_add_u32 v{vT1}, s{sT0}, v{vT1}
    v_mul_u32_u24 v{vT2}, {ROWB}, v{vT0}
    v_add_u32 v{vDMA}, v{vT2}, v{vT1}
    v_and_b32 v{vT2}, 3, v{vT0}
    v_lshrrev_b32 v{vT0}, 2, v{vT0}
    v_lshl_add_u32 v{vT0}, v{vT0}, 3, v{vT2}
    v_mul_u32_u24 v{vT0}, {ROWB}, v{vT0}
    v_add_u32 v{vDMA0}, v{vT0}, v{vT1}
""")
    a(f"""
    s_cmp_ge_u32 s2, 208
    s_cbranch_scc1 L_nonloader
    s_cmp_lt_u32 s{sWV}, 4
    s_cbranch_scc1 L_nonloader
""")
    def bias_dma(sreg, val, lab):
        a(f"    s_cmp_eq_u32 s{sreg}, {val}")
        a(f"    s_cbranch_scc0 {lab}")
        srd(sBS, 44, L_ * ROWB)
        a(f"""    v_lshrrev_b32 v{vT0}, 5, v{vL}
    v_mul_u32_u24 v{vT0}, {ROWB}, v{vT0}
    v_and_b32 v{vT1}, 31, v{vL}
    v_lshlrev_b32 v{vT1}, 2, v{vT1}
    v_add_u32 v{vT0}, v{vT0}, v{vT1}
    s_lshl_b32 s{sT0}, s{sJ}, 7
    v_add_u32 v{vT0}, s{sT0}, v{vT0}""")
        for t in range(3):
            a(f"    s_mov_b32 m0, {BIAS + 256*t}")
            a(f"    s_mov_b32 s{sT1}, {2*t*ROWB}")
            a(f"    buffer_load_dword v{vT0}, s[{sBS}:{sBS+3}], s{sT1} offen lds")
        a(f"{lab}:")
    vS0, vS1 = vXO, vXO + 1
    sSB = 40
    sWP0 = 98
    SB = c.SB
    NSR = (2 if c.ssched == 'two' else 3) * SB
    def sbatch(k, nextlayer=False):
        if not c.sp: return
        b = sSB + 2 if nextlayer else sSB
        for n_ in range(SB):
            a(f"    s_load_dwordx2 s[{76+2*n_}:{77+2*n_}], s[{b}:{b+1}], {(k * SB + n_) * ROWB + 60}")
    a(f"""
L_xs:
    s_lshl_b32 s{sT0}, s{sT3}, 12
    s_add_u32 s{sT0}, s{sT0}, s{sM}
    s_lshl_b32 s{sT1}, s{sT3}, 7
    s_add_u32 s{sT1}, s{sT1}, s{sG}
""")
    for rg in range(4):
        a(f"    s_add_u32 m0, s{sT0}, {rg*1024}")
        a(f"    s_add_u32 s{sT2}, s{sT1}, {rg*8*ROWB}")
        a(f"    buffer_load_dwordx4 v{vS0 if rg % 2 == 0 else vS1}, s[{sX0}:{sX0+3}], s{sT2} offen lds")
    a(f"""
    s_add_u32 s{sT3}, s{sT3}, 1
    s_cmp_eq_u32 s{sT3}, 7
    s_cselect_b32 s{sT3}, 0, s{sT3}
    s_add_u32 s{sI}, s{sI}, 1
    s_cmp_lt_u32 s{sI}, 7
    s_cbranch_scc1 L_xs
""")
    common_srds()
    vdma()
    a(f"""
    s_mul_i32 s{sT0}, s{sKH}, 416
    s_lshl_b32 s{sT1}, s{sMH}, 2
    s_add_u32 s{sT1}, s{sT1}, s{sT0}
    s_mul_i32 s{sT1}, s{sT1}, {ROWB}
    v_add_u32 v{vDMA0}, s{sT1}, v{vDMA0}
    s_lshl_b32 s{sT1}, s{sMH}, 3
    s_add_u32 s{sT1}, s{sT1}, s{sT0}
    s_mul_i32 s{sT1}, s{sT1}, {ROWB}
    v_add_u32 v{vDMA}, s{sT1}, v{vDMA}
    ; ---- W prefix of layer 0
    s_mul_i32 s{sG}, s{sROT}, 26624
    s_mul_i32 s{sM}, s{sKH}, {P*2048}
    s_lshl_b32 s{sT1}, s{sMH}, 10
    s_add_u32 s{sM}, s{sM}, s{sT1}
""")
    for i in range(P):
        a(f"    s_add_u32 m0, s{sM}, {PRE0 + i*2048}")
        a(f"    s_add_u32 s{sT0}, s{sG}, {i*26624}")
        a(f"    buffer_load_dwordx4 v{vDMA0}, s[{sW}:{sW+3}], s{sT0} offen lds")
    a(f"""
""")
    if c.w0assist:
        a(f"""
    s_cmp_eq_u32 s{sU}, 3
    s_cbranch_scc0 L_now0t
    v_lshrrev_b32 v21, 5, v{vL}               ; K half
    v_mul_u32_u24 v21, 416, v21
    v_and_b32 v22, 31, v{vL}
    v_add_u32 v21, v21, v22
    v_mul_u32_u24 v21, {ROWB}, v21
    s_lshl_b32 s20, s{sROT}, 4
    s_add_u32 s20, s20, {P * 16 + 28}
    s_mul_i32 s20, s20, {ROWB}
    s_lshl_b32 s21, s{sJ}, 7
    s_add_u32 s20, s20, s21
    buffer_load_dword v{vDUM}, v21, s[{sW}:{sW+3}], s20 offen
L_now0t:""")
    a(f"""
""")
    if c.xt_by in ("worker", "mixed", "front1"):
        a(f"""
    v_lshrrev_b32 v21, 5, v{vL}
    v_mul_u32_u24 v21, {XMH}, v21
    v_and_b32 v22, 31, v{vL}
    v_lshl_add_u32 v21, v22, 7, v21
    s_mul_i32 s22, s{sRB}, {XRB}
    s_lshl_b32 s23, s{sJ}, 12
    s_add_u32 s22, s22, s23                   ; buffer 0
    s_add_u32 s23, s22, {XBUF}                ; buffer 1""")
    if c.xt_by == "worker":
        a(f"""    s_cmp_eq_u32 s{sU}, 1
    s_cbranch_scc0 L_noxt1
    buffer_load_dword v{vDUM}, v21, s[{sWS}:{sWS+3}], s23 offen sc1
L_noxt1:""")
    if c.hello_by == "loader":
        a(f"""
    s_load_dwordx2 s[{sE}:{sE+1}], s[50:51], s{sCB}
    s_add_u32 s{sT0}, s{sCB}, 128
    s_add_u32 s46, s50, s{sT0}
    s_addc_u32 s47, s51, 0""")
    a(f"""
    s_mul_i32 s{sT2}, s{sKH}, {KHS}
    s_lshl_b32 s{sT1}, s{sMH}, 10
    s_add_u32 s{sT2}, s{sT2}, s{sT1}
    s_add_u32 s{sMP}, s{sT2}, {SUF}
    s_mul_i32 s70, s{sKH}, {P*2048}
    s_add_u32 s70, s70, s{sT1}
    s_add_u32 s70, s70, {PRE1}                ; prefix of layer 1 goes to parity 1
    s_mov_b32 s71, {PREPAR}
    s_mul_i32 s{sT0}, s{sKH}, 416
    s_lshl_b32 s{sT1}, s{sROT}, 4
    s_add_u32 s{sT0}, s{sT0}, s{sT1}
    s_mul_i32 s{sT1}, s{sMH}, {NSR}
    s_add_u32 s{sT0}, s{sT0}, s{sT1}
    s_add_u32 s{sT0}, s{sT0}, {c.SV * 16}
    s_mul_i32 s{sT0}, s{sT0}, {ROWB}
    s_lshl_b32 s{sT1}, s{sJ}, 7
    s_add_u32 s{sT0}, s{sT0}, s{sT1}
    s_add_u32 s{sT0}, s{sT0}, {c.wstride}
    s_mov_b32 s98, s42
    s_mov_b32 s99, s43
    s_add_u32 s40, s42, s{sT0}
    s_addc_u32 s41, s43, 0
    s_add_u32 s42, s40, {c.wstride}
    s_addc_u32 s43, s41, 0
""")
    def swarm(k):
        if not (c.swarm and c.sp): return
        lst = [(l, r) for l in range(2, 6) for r in range(3)]
        lst = lst[:7] if k == 0 else lst[7:]
        cur = None
        for n_, (l, r) in enumerate(lst):
            if cur != l:
                a(f"    s_add_u32 s46, s44, {l * c.wstride}")
                a(f"    s_addc_u32 s47, s45, 0")
                cur = l
            a(f"    s_load_dwordx2 s[{76+2*n_}:{77+2*n_}], s[46:47], {r*ROWB + 60}")
    if c.swarm and c.sp:
        per_range = 2 * NSR // 3
        a(f"""
    ; share of the S rows for the warm-up: q = rb*4 + u, range = q / {per_range}, rows 3*(q % {per_range}) ...
    s_lshl_b32 s{sT0}, s{sRB}, 2
    s_add_u32 s{sT0}, s{sT0}, s{sWV}
    s_sub_u32 s{sT0}, s{sT0}, 4
    s_min_u32 s{sT0}, s{sT0}, {4 * per_range - 1}
    s_mul_i32 s{sT1}, s{sT0}, {-(-65536 // per_range)}
    s_lshr_b32 s{sT1}, s{sT1}, 16             ; range
    s_mul_i32 s{sT2}, s{sT1}, {per_range}
    s_sub_u32 s{sT0}, s{sT0}, s{sT2}
    s_mul_i32 s{sT0}, s{sT0}, 3
    s_mul_i32 s{sT1}, s{sT1}, 208
    s_add_u32 s{sT0}, s{sT0}, s{sT1}
    s_add_u32 s{sT0}, s{sT0}, {c.SV * 16}
    s_mul_i32 s{sT0}, s{sT0}, {ROWB}
    s_lshl_b32 s{sT1}, s{sJ}, 7
    s_add_u32 s{sT0}, s{sT0}, s{sT1}
    s_add_u32 s44, s{sWP0}, s{sT0}
    s_addc_u32 s45, s{sWP0+1}, 0
""")
        swarm(0)
    if c.w0assist:
        a(f"""    s_cmp_eq_u32 s{sU}, 3
    s_cbranch_scc0 L_bxw
    s_waitcnt vmcnt({P + 1})
    s_branch L_bxw2
L_bxw:
    s_waitcnt vmcnt({P})
L_bxw2:""")
    elif c.xt_by == "worker":
        a(f"""    s_cmp_eq_u32 s{sU}, 1
    s_cbranch_scc0 L_bxw
    s_waitcnt vmcnt({P + 1})
    s_branch L_bxw2
L_bxw:
    s_waitcnt vmcnt({P})
L_bxw2:""")
    else:
        a(f"    s_waitcnt vmcnt({P})")
    stamp()
    a(f"""
    s_barrier                                 ; B_x
    s_barrier                                 ; B_y
""")
    if c.swarm and c.sp: a("    s_waitcnt lgkmcnt(0)")
    if c.hello_by != "loader" and c.ssched != "two": sbatch(0)
    def suffix(vreg, lay, thr=True, phased=False, bp=None):
        a(f"    s_mul_i32 s{sG}, s{sROT}, 26624")
        a(f"    s_add_u32 s{sG}, s{sG}, {lay}")
        a(f"    s_sub_u32 s{sM}, 13, s{sROT}")
        a(f"    s_mul_i32 s{sM}, s{sM}, 26624")
        a(f"    s_add_u32 s{sM}, s{sM}, {lay}")
        for n_, i in enumerate(range(P, 26)):
            if bp is not None and n_ == bp:
                a(f"    s_waitcnt vmcnt({bp})")
                a("    s_barrier                                 ; B_p: prefix of layer 0 has landed")
                if c.hello_by == "loader":
                    a(f"""    s_cmp_eq_u32 s{sWV}, 6
    s_cbranch_scc0 L_b0
    s_waitcnt lgkmcnt(0)
    s_load_dwordx16 s[76:91], s[46:47], 0 glc
    s_load_dwordx8 s[92:99], s[46:47], 64 glc
    s_load_dwordx2 s[20:21], s[46:47], 96 glc
    s_branch L_b0d
L_b0:""")
                    sbatch(0)
                    a("L_b0d:")
            if phased and n_ == c.n1: a("    s_barrier")
            if phased and n_ == c.n1 + c.n2: a("    s_barrier")
            a(f"    s_add_u32 m0, s{sMP}, {(i-P)*2048}")
            a(f"    s_add_u32 s{sI}, s{sG if i < 13 else sM}, {(i % 13) * 26624}")
            a(f"    buffer_load_dwordx4 v{vreg}, s[{sW}:{sW+3}], s{sI} offen {'nt ' if (c.nt_last and i >= 13) else ''}lds")
            if c.lthr and thr and (c.lthr_all or n_ >= c.n1 + c.n2):
                a(f"    s_waitcnt vmcnt({c.lthr - 1})")
    sPP, sPDL = 70, 71
    def prefix_next(lay_next):
        a(f"    s_mul_i32 s{sG}, s{sROT}, 26624")
        a(f"    s_add_u32 s{sG}, s{sG}, s{lay_next}")
        for t in range(P):
            a(f"    s_add_u32 m0, s{sPP}, {t*2048}")
            a(f"    s_add_u32 s{sI}, s{sG}, {t*26624}")
            a(f"    buffer_load_dwordx4 v{vDMA}, s[{sW}:{sW+3}], s{sI} offen lds")
            if c.lthr and c.lthr_all and t + 1 < P:
                a(f"    s_waitcnt vmcnt({c.lthr - 1})")
        a(f"    s_sub_u32 s{sPP}, s{sPP}, s{sPDL}")
        a(f"    s_sub_u32 s{sPDL}, 0, s{sPDL}")
    def advance_sb():
        a(f"""    s_add_u32 s40, s40, {c.wstride}
    s_addc_u32 s41, s41, 0
    s_add_u32 s42, s42, {c.wstride}
    s_addc_u32 s43, s43, 0""")
    suffix(vDMA0, "0", False, False, bp=13 - P)
    n = 26 - P
    if c.hello_by != "loader":
        if c.sp and c.ssched != "two": a("    s_waitcnt lgkmcnt(0)")
        sbatch(1)
    if c.hello_by == "compute" and not c.swarm:
        B0 = [P] + list(c.chunks0)
        for k_, b_ in enumerate(B0):
            nxt = B0[k_ + 1] if k_ + 1 < len(B0) else 26
            a(f"    s_waitcnt vmcnt({26 - nxt})")
            if k_ == 0 or k_ + 1 == len(B0): stamp()
            a(f"    s_barrier")
    else:
        a(f"    s_waitcnt vmcnt({n - (13 - P)})")
        stamp()
        a("    s_barrier                                 ; chunk [P,13)")
        if c.hello_by == "loader" and c.sp and c.l0b1:
            a(f"    s_cmp_eq_u32 s{sWV}, 6")
            a(f"    s_cbranch_scc1 L_nob1")
            a("    s_waitcnt lgkmcnt(0)"); sbatch(1)
            a("L_nob1:")
        if c.swarm and c.sp:
            a("    s_waitcnt lgkmcnt(0)"); swarm(1)
        a(f"    s_waitcnt vmcnt({26 - 20})")
        a("    s_barrier                                 ; chunk [13,20)")
        if c.hello_by == "loader":
            a(f"""    s_cmp_eq_u32 s{sWV}, 6
        s_cbranch_scc0 L_nohe
        s_add_u32 s{sT0}, s{sE}, 8
        s_addc_u32 s{sT1}, s{sE+1}, 0
        s_and_b32 s{sT2}, s{sT1}, 0x0fffffff
        s_lshl_b32 s22, s{sXCC}, 28
        s_xor_b32 s{sT1}, s{sT1}, s22
        s_mov_b32 s22, 1
        s_mov_b32 s23, 1
        s_waitcnt lgkmcnt(0)""")
            for m_ in range(13):
                lo = 76 + 2 * m_ if m_ < 12 else 20
                a(f"""    s_cmp_eq_u32 s{lo}, s{sT0}
        s_cselect_b32 s23, s23, 0
        s_cmp_eq_u32 s{lo+1}, s{sT1}
        s_cselect_b32 s22, s22, 0
        s_and_b32 s{lo+1}, s{lo+1}, 0x0fffffff
        s_cmp_eq_u32 s{lo+1}, s{sT2}
        s_cselect_b32 s23, s23, 0""")
            a(f"""    s_sub_u32 s22, 2, s22
        s_mul_i32 s22, s22, s23
        v_mov_b32 v25, s22
        v_mov_b32 v26, {MODEW}
        ds_write_b32 v26, v25
        s_waitcnt lgkmcnt(0)
    """)
            sbatch(0)
            a("L_nohe:")
        a("    s_waitcnt vmcnt(0)")
        stamp()
        a("    s_barrier                                 ; chunk [20,26)")
    if c.pre_by == "loader":
        a("    s_barrier                                 ; B_mid")
        a(f"    s_mov_b32 s{sT3}, {c.wstride}")
        if not c.no_pre: prefix_next(sT3)
        if c.xt_by in ("worker", "mixed", "front1"):
            a(f"""    s_cmp_eq_u32 s{sWV}, 5
    s_cbranch_scc0 L_noxt0
    buffer_load_dword v{vDUM}, v21, s[{sWS}:{sWS+3}], s22 offen sc1
L_noxt0:""")
    advance_sb()
    a(f"""
    s_barrier
    s_mov_b32 s{sL}, 1
    s_mov_b32 s{sT3}, {c.wstride}
L_ld_layer:
    s_cmp_lt_u32 s{sL}, 5
    s_cselect_b32 s{sU}, 1, 0
""")
    def guarded(fn, lab):
        if not c.sp: return
        a(f"    s_cmp_eq_u32 s{sU}, 1")
        a(f"    s_cbranch_scc0 {lab}")
        fn()
        a(f"{lab}:")
    if c.ssched != "two":
        guarded(lambda: sbatch(1), "L_sA")
    if not c.no_suf: suffix(vDMA, f"s{sT3}", True, c.phased)
    elif c.phased:
        a("    s_barrier"); a("    s_barrier")
    stamp()
    if c.ssched != "two":
        guarded(lambda: (a("    s_waitcnt lgkmcnt(0)"), sbatch(2)), "L_sB")
    if c.pre_by == "loader": a(f"    s_waitcnt vmcnt({26 - P})                 ; the prefix has landed")
    a("    s_barrier                                 ; B_a")
    if c.ssched == "two":
        guarded(lambda: sbatch(1), "L_sB")
    a("    s_waitcnt vmcnt(0)")
    stamp()
    a("    s_barrier")
    a(f"    s_cmp_lt_u32 s{sL}, 4")
    a(f"    s_cselect_b32 s{sU}, 1, 0")
    guarded(lambda: (a("    s_waitcnt lgkmcnt(0)"), sbatch(0, True)), "L_sC")
    if c.pre_by == "loader":
        a("    s_barrier                                 ; B_mid")
        stamp(3)
        a(f"    s_cmp_lt_u32 s{sL}, 5")
        a(f"    s_cbranch_scc0 L_nopre")
        a(f"    s_add_u32 s{sU}, s{sT3}, {c.wstride}")
        if not c.no_pre: prefix_next(sU)
        a("L_nopre:")
        stamp(3)
    advance_sb()
    a(f"""
    s_barrier                                 ; B2
    s_add_u32 s{sL}, s{sL}, 1
    s_add_u32 s{sT3}, s{sT3}, {c.wstride}
    s_cmp_lt_u32 s{sL}, 6
    s_cbranch_scc1 L_ld_layer
""")
    dump_ts()
    a("    s_endpgm")

    sBI = 84
    sBP = 48
    def bias_load():
        a(f"    s_load_dwordx16 s[{sBI}:{sBI+15}], s[{sBP}:{sBP+1}], 0")
        a(f"    s_add_u32 s{sBP}, s{sBP}, {ROWB}")
        a(f"    s_addc_u32 s{sBP+1}, s{sBP+1}, 0")
    def bias_spread():
        a("    s_mov_b32 exec_hi, 0")
        for q in range(4):
            for d in range(2):
                a(f"    v_mov_b32 v{vBP+2*q+d}, s{sBI+4*q+d}")
        a("    s_mov_b32 exec_lo, 0")
        a("    s_mov_b32 exec_hi, -1")
        for q in range(4):
            for d in range(2):
                a(f"    v_mov_b32 v{vBP+2*q+d}, s{sBI+4*q+2+d}")
        a("    s_mov_b64 exec, -1")
    def bias_unpack(lo=0, hi=8):
        for d in range(lo, hi):
            a(f"    v_lshlrev_b32 v{vAK+2*d}, 16, v{vBP+d}")
            a(f"    v_and_b32 v{vAK+2*d+1}, 0xffff0000, v{vBP+d}")
    a("L_nonloader:")
    common_srds()
    if c.helpers:
        a(f"""
    s_cmp_ge_u32 s2, 208
    s_cbranch_scc1 L_helper
""")
    if c.pre_by == "compute": vdma()
    a(f"""
L_compute:
    s_load_dwordx2 s[{sE}:{sE+1}], s[50:51], s{sCB}
    s_lshl_b32 s{sT0}, s{sJ}, 7
    s_lshl_b32 s{sT1}, s{sKH}, 6
    s_add_u32 s{sT0}, s{sT0}, s{sT1}
    s_add_u32 s{sBP_}, s44, s{sT0}
    s_addc_u32 s{sBP_+1}, s45, 0
    s_load_dwordx16 s[84:99], s[{sBP_}:{sBP_+1}], 0
    s_load_dword s20, s[{sBP_}:{sBP_+1}], {ROWB}
    s_load_dword s21, s[{sBP_}:{sBP_+1}], {2*ROWB}
    s_load_dword s22, s[{sBP_}:{sBP_+1}], {3*ROWB}
    s_load_dword s23, s[{sBP_}:{sBP_+1}], {4*ROWB}
    s_load_dword s24, s[{sBP_}:{sBP_+1}], {5*ROWB}
    s_add_u32 s{sBP_}, s{sBP_}, {ROWB}
    s_addc_u32 s{sBP_+1}, s{sBP_+1}, 0
    s_setprio {c.prio}
""")
    if c.xt_by in ("front", "front1"):
        a(f"""
    v_lshrrev_b32 v21, 5, v{vL}
    v_mul_u32_u24 v21, {XMH}, v21
    v_and_b32 v22, 31, v{vL}
    v_lshl_add_u32 v21, v22, 7, v21
    s_mul_i32 s22, s{sRB}, {XRB}
    s_lshl_b32 s23, s{sJ}, 12
    s_add_u32 s22, s22, s23                   ; buffer 0
    s_add_u32 s23, s22, {XBUF}                ; buffer 1
    s_cmp_eq_u32 s{sWV}, 3
    s_cbranch_scc0 L_noxf1
    buffer_load_dword v{vDUM}, v21, s[{sWS}:{sWS+3}], s23 offen sc1
L_noxf1:""")
        if c.xt_by == "front":
            a(f"""    s_cmp_eq_u32 s{sWV}, 2
    s_cbranch_scc0 L_noxf0
    buffer_load_dword v{vDUM}, v21, s[{sWS}:{sWS+3}], s22 offen sc1
L_noxf0:""")
    if c.wwarm:
        a(f"""
    s_sub_u32 s{sT0}, s{sWV}, 1
    s_cmp_lt_u32 s{sT0}, {c.wwarm}
    s_cbranch_scc0 L_noww
    s_mul_i32 s{sT0}, s{sRB}, 13
    s_add_u32 s{sT0}, s{sT0}, s{sJ}
    s_mul_i32 s{sT0}, s{sT0}, {52 * 128}
    s_mul_i32 s{sT1}, s{sWV}, {c.wstride}
    s_add_u32 s20, s{sT0}, s{sT1}
    v_min_u32 v20, 51, v{vL}
    v_lshlrev_b32 v20, 7, v20
    buffer_load_dword v{vDUM}, v20, s[{sW}:{sW+3}], s20 offen
L_noww:""")
    a(f"""
    v_min_u32 v{vT0}, 51, v{vL}
    v_lshlrev_b32 v{vT0}, 3, v{vT0}
    s_add_u32 s{sT0}, s{sCB}, 2048
    v_add_u32 v{vFA}, s{sT0}, v{vT0}
    s_cmp_eq_u32 s{sWV}, 0
    s_cbranch_scc0 L_noft
    buffer_load_dword v{vDUM}, v{vFA}, s[{sWS}:{sWS+3}], 0 offen sc1
L_noft:
    s_lshl_b32 s{sT1}, s{sJ}, 2
    s_add_u32 s{sT1}, s{sT1}, s{sWV}
    s_lshl_b32 s{sT1}, s{sT1}, 3
    s_add_u32 s{sOWNF}, s{sT0}, s{sT1}
    v_min_u32 v{vT0}, 12, v{vL}
    v_lshlrev_b32 v{vT0}, 3, v{vT0}
    s_add_u32 s{sT0}, s{sCB}, 128
    v_add_u32 v{vHA}, s{sT0}, v{vT0}
""")
    srd(sOUT, 46, XLAYER)
    a(f"""
    ; ---- output address (final stores): row*1664 + j*128 + nh*64 + h*16
    s_lshl_b32 s{sT0}, s{sRB}, 6
    s_lshl_b32 s{sT1}, s{sMH}, 5
    s_add_u32 s{sT0}, s{sT0}, s{sT1}
    s_mul_i32 s{sT0}, s{sT0}, {ROWB}
    s_lshl_b32 s{sT1}, s{sJ}, 7
    s_add_u32 s{sT0}, s{sT0}, s{sT1}
    s_lshl_b32 s{sT1}, s{sKH}, 6
    s_add_u32 s{sT0}, s{sT0}, s{sT1}
    v_and_b32 v{vT0}, 31, v{vL}
    v_mul_u32_u24 v{vT0}, {ROWB}, v{vT0}
    v_lshrrev_b32 v{vT1}, 5, v{vL}
    v_lshl_add_u32 v{vT0}, v{vT1}, 4, v{vT0}
    v_add_u32 v{vOUT}, s{sT0}, v{vT0}
    v_lshlrev_b32 v{vXO}, 4, v{vL}
    v_add_u32 v{vXO+1}, 0x1000, v{vXO}
    v_add_u32 v{vXO+2}, 0x2000, v{vXO}
    v_add_u32 v{vXO+3}, 0x3000, v{vXO}
    s_mul_i32 s{sT0}, s{sRB}, {XRB}
    s_mul_i32 s{sT1}, s{sMH}, {XMH}
    s_add_u32 s{sT0}, s{sT0}, s{sT1}
    s_add_u32 s{sT0}, s{sT0}, {XBUF}
    s_lshl_b32 s{sT1}, s{sJ}, 2
    s_lshl_b32 s{sT2}, s{sKH}, 1
    s_add_u32 s{sT1}, s{sT1}, s{sT2}
    s_lshl_b32 s{sT1}, s{sT1}, 10
    s_add_u32 s{sXST}, s{sT0}, s{sT1}
""")
    if not c.helpers:
        a(f"""
    v_and_b32 v{vT1}, 15, v{vL}
    v_lshlrev_b32 v{vT1}, 7, v{vT1}
    v_bfe_u32 v{vT2}, v{vL}, 4, 1
    v_mul_u32_u24 v{vT2}, {XBUF >> 8}, v{vT2}
    v_lshl_add_u32 v{vT1}, v{vT2}, 8, v{vT1}
    s_sub_u32 s{sT3}, s{sXST}, {XBUF}
    buffer_load_dword v{vDUM}, v{vT1}, s[{sWS}:{sWS+3}], s{sT3} offen sc1
""")
    a(f"""
    s_mul_i32 s{sT1}, s{sKH}, 26
    s_add_u32 s{sT2}, s{sT1}, s{sROT}
    s_lshl_b32 s{sT2}, s{sT2}, 10
    s_add_u32 s{sXA}, s{sT0}, s{sT2}
    s_add_u32 s{sT2}, s{sT1}, 13
    s_sub_u32 s{sT2}, s{sT2}, s{sROT}
    s_lshl_b32 s{sT2}, s{sT2}, 10
    s_add_u32 s{sXB}, s{sT0}, s{sT2}
    s_mov_b32 s{sXD}, {-XBUF & 0xffffffff}
    s_mov_b32 s{sXD2}, {-XBUF & 0xffffffff}
    ; ---- W prefix bookkeeping for layer 1 (loaded at the end of layer 0)
    s_mul_i32 s{sT0}, s{sKH}, 416
    s_lshl_b32 s{sT1}, s{sROT}, 4
    s_add_u32 s{sT0}, s{sT0}, s{sT1}
    s_lshl_b32 s{sT1}, s{sMH}, 3
    s_add_u32 s{sT0}, s{sT0}, s{sT1}
    s_mul_i32 s{sWP}, s{sT0}, {ROWB}
    s_add_u32 s{sWP}, s{sWP}, {c.wstride}
    s_mul_i32 s{sMP}, s{sKH}, {P*2048}
    s_lshl_b32 s{sT1}, s{sMH}, 10
    s_add_u32 s{sMP}, s{sMP}, s{sT1}
    s_add_u32 s{sMP}, s{sMP}, {PRE1}
    s_mov_b32 s{sPD}, {PREPAR}
    v_lshrrev_b32 v{vT0}, 5, v{vL}            ; h
    v_lshlrev_b32 v{vT0}, 2, v{vT0}
    v_bfe_u32 v{vT1}, v{vL}, 2, 2             ; r
    v_add_u32 v{vT0}, v{vT0}, v{vT1}
    v_lshlrev_b32 v{vT0}, 7, v{vT0}           ; row*128
    v_bfe_u32 v{vT1}, v{vL}, 4, 1             ; nb
    v_lshlrev_b32 v{vT1}, 1, v{vT1}
    v_bfe_u32 v{vT2}, v{vL}, 1, 1             ; c>>1
    v_add_u32 v{vT1}, v{vT1}, v{vT2}
    v_bfe_u32 v{vT2}, v{vL}, 3, 1             ; (r>>1)&1
    v_lshlrev_b32 v{vT2}, 2, v{vT2}
    v_xor_b32 v{vT1}, v{vT1}, v{vT2}
    v_lshlrev_b32 v{vT1}, 4, v{vT1}
    v_add_u32 v{vT0}, v{vT0}, v{vT1}
    v_and_b32 v{vT1}, 1, v{vL}
    v_lshlrev_b32 v{vT1}, 3, v{vT1}
    v_add_u32 v{vT0}, v{vT0}, v{vT1}
    s_lshl_b32 s{sT0}, s{sKH}, 6
    v_xor_b32 v{vT1}, s{sT0}, v{vT0}          ; keep
    v_xor_b32 v{vT2}, 64, v{vT1}              ; send
    s_mul_i32 s{sT0}, s{sKH}, {P*2048}
    v_add_u32 v{vAPK}, s{sT0}, v{vT1}
    v_add_u32 v{vAPS}, s{sT0}, v{vT2}
    s_mul_i32 s{sT0}, s{sKH}, {KHS}
    s_add_u32 s{sT0}, s{sT0}, {SUF}
    v_add_u32 v{vASK}, s{sT0}, v{vT1}
    v_add_u32 v{vASS}, s{sT0}, v{vT2}
    s_lshl_b32 s{sT0}, s{sWV}, 12
    s_add_u32 s{sT0}, s{sT0}, {RED}
    v_add_u32 v{vRW}, s{sT0}, v{vXO}
    s_xor_b32 s{sT1}, s{sWV}, 2
    s_lshl_b32 s{sT1}, s{sT1}, 12
    s_add_u32 s{sT1}, s{sT1}, {RED}
    v_add_u32 v{vRR}, s{sT1}, v{vXO}
    v_lshrrev_b32 v{vT0}, 5, v{vL}
    v_lshlrev_b32 v{vT3}, 3, v{vT0}           ; h*8
    v_and_b32 v{vT0}, 31, v{vL}               ; m
    v_lshrrev_b32 v{vT1}, 3, v{vT0}
    v_lshlrev_b32 v{vT1}, 10, v{vT1}          ; rg*1024
    v_and_b32 v{vT2}, 7, v{vT0}
    v_lshl_add_u32 v{vT1}, v{vT2}, 7, v{vT1}  ; + row8*128
    v_bfe_u32 v{vT2}, v{vT0}, 1, 3            ; f(m)
    s_cmp_ge_u32 s{sJ}, 7
    s_cselect_b32 s{sT0}, 1, 0
    s_mul_i32 s{sT1}, s{sT0}, 6
    s_sub_u32 s{sT1}, s{sJ}, s{sT1}
    s_lshl_b32 s{sT1}, s{sT1}, 12
    s_lshl_b32 s{sT0}, s{sT0}, 1
    s_add_u32 s{sT0}, s{sT0}, s{sMH}
    s_mul_i32 s{sT0}, s{sT0}, 28672
    s_add_u32 s{sT0}, s{sT0}, s{sT1}
    s_add_u32 s{sT0}, s{sT0}, {XS}
    s_lshl_b32 s{sT1}, s{sKH}, 2
    v_add3_u32 v{vT3}, v{vT3}, v{vT1}, s{sT0}
    v_xor_b32 v{vT0}, s{sT1}, v{vT2}          ; (4*nh) ^ f(m)
""")
    for q in range(4):
        a(f"    v_xor_b32 v{vPART+8+q}, {q}, v{vT0}")
        a(f"    v_lshl_add_u32 v{vPART+8+q}, v{vPART+8+q}, 4, v{vT3}")
    a(f"""
    v_lshrrev_b32 v{vT0}, 5, v{vL}
    v_xor_b32 v{vT2}, v{vT2}, v{vT0}          ; f(m) ^ h
    s_mul_i32 s{sT3}, s{sWV}, 28672
    s_add_u32 s{sT3}, s{sT3}, {XS}
    s_mul_i32 s{sI}, s{sKH}, 26
    s_mul_i32 s{sM}, s{sKH}, 6
""")
    for seg in range(2):
        if seg == 0:
            a(f"    s_add_u32 s{sG}, s{sI}, s{sROT}")
        else:
            a(f"    s_add_u32 s{sG}, s{sI}, 13")
            a(f"    s_sub_u32 s{sG}, s{sG}, s{sROT}")
        for x in range(4):
            r = vPART + seg * 4 + x
            a(f"    s_add_u32 s{sT0}, s{sG}, {x}")
            a(f"    s_and_b32 s{sT1}, s{sT0}, 3")
            a(f"    s_lshl_b32 s{sT1}, s{sT1}, 1")
            a(f"    s_lshr_b32 s{sT0}, s{sT0}, 2")
            a(f"    s_sub_u32 s{sT0}, s{sT0}, s{sM}")
            a(f"    s_lshl_b32 s{sT0}, s{sT0}, 12")
            a(f"    s_add_u32 s{sT0}, s{sT0}, s{sT3}")
            a(f"    v_xor_b32 v{r}, s{sT1}, v{vT2}")
            a(f"    v_lshl_add_u32 v{r}, v{r}, 4, v{vT1}")
            a(f"    v_add_u32 v{r}, s{sT0}, v{r}")
    a(f"""
    s_waitcnt lgkmcnt(0)
    s_add_u32 s{sTA}, s{sE}, 1
    s_addc_u32 s{sTA+1}, s{sE+1}, 0
    s_add_u32 s{sTB}, s{sE}, 2
    s_addc_u32 s{sTB+1}, s{sE+1}, 0
    s_cmp_eq_u32 s{sWV}, 0
    s_cbranch_scc0 L_nohello
    s_add_u32 s{sT0}, s{sE}, 8
    s_addc_u32 s{sT1}, s{sE+1}, 0
    s_lshl_b32 s{sT2}, s{sXCC}, 28
    s_xor_b32 s{sT1}, s{sT1}, s{sT2}
    v_mov_b32 v{vPOLL}, s{sT0}
    v_mov_b32 v{vPOLL+1}, s{sT1}
    s_lshl_b32 s{sT2}, s{sJ}, 3
    s_add_u32 s{sT2}, s{sT2}, s{sCB}
    s_add_u32 s{sT2}, s{sT2}, 128
    s_mov_b64 exec, 1
    buffer_store_dwordx2 v[{vPOLL}:{vPOLL+1}], off, s[{sWS}:{sWS+3}], s{sT2} sc1
    s_mov_b64 exec, -1
L_nohello:
""")
    if c.w0assist:
        a(f"""
    s_mul_i32 s{sT0}, s{sKH}, 416
    s_lshl_b32 s{sT1}, s{sROT}, 4
    s_add_u32 s{sT0}, s{sT0}, s{sT1}
    s_mul_i32 s{sT1}, s{sMH}, 14
    s_add_u32 s{sT0}, s{sT0}, s{sT1}
    s_add_u32 s{sT0}, s{sT0}, {P * 16}
    s_mul_i32 s{sT0}, s{sT0}, {ROWB}
    s_lshl_b32 s{sT1}, s{sJ}, 7
    s_add_u32 s{sT0}, s{sT0}, s{sT1}
    s_add_u32 s44, s42, s{sT0}
    s_addc_u32 s45, s43, 0
""")
        for n_ in range(14):
            if n_ == 7: a("    s_waitcnt lgkmcnt(0)")
            a(f"    s_load_dwordx2 s[{20+2*(n_%2)}:{21+2*(n_%2)}], s[44:45], {n_*ROWB + 60}")
    elif c.vwarm:
        nrows = c.SV * 16
        per_rb = nrows // 4
        a(f"""
    s_lshr_b32 s{sT0}, s{sRB}, 2
    s_mul_i32 s{sT0}, s{sT0}, 208             ; range start row: 0, 208, 416, 624
    s_and_b32 s{sT1}, s{sRB}, 3
    s_mul_i32 s{sT1}, s{sT1}, {per_rb}
    s_add_u32 s{sT0}, s{sT0}, s{sT1}
    s_mul_i32 s{sT1}, s{sWV}, {per_rb // 4}
    s_add_u32 s{sT0}, s{sT0}, s{sT1}
    s_mul_i32 s{sT0}, s{sT0}, {ROWB}
    s_lshl_b32 s{sT1}, s{sJ}, 7
    s_add_u32 s{sT0}, s{sT0}, s{sT1}
    s_add_u32 s{sT0}, s{sT0}, {c.wstride}
    s_add_u32 s44, s42, s{sT0}
    s_addc_u32 s45, s43, 0
""")
        nper = per_rb // 4
        vw = [(l, r) for l in range(1, 6) for r in range(nper)][:14]
        def vwarm_batch(k):
            cur = None
            for n_, (l, r) in enumerate(vw[7*k:7*k+7]):
                if cur != l:
                    a(f"    s_add_u32 s46, s44, {(l-1) * c.wstride}")
                    a(f"    s_addc_u32 s47, s45, 0")
                    cur = l
                a(f"    s_load_dwordx2 s[{20+2*(n_%2)}:{21+2*(n_%2)}], s[46:47], {r*ROWB + 60}")
        vwarm_batch(0)
        if c.vw2 == 'wait':
            a("    s_waitcnt lgkmcnt(0)")
            vwarm_batch(1)
    stamp()
    a("    s_barrier                                 ; B_x: staged x0, prefix(0) and biases have landed")
    stamp()
    for q in range(4):
        a(f"    ds_read_b64 v[{vP+2*q}:{vP+2*q+1}], v{vPART+8+q}")
    for i in range(26):
        seg, ii = (0, i) if i < 13 else (1, i - 13)
        a(f"    ds_read_b128 v[{vXF+4*i}:{vXF+4*i+3}], v{vPART + seg*4 + (ii & 3)} offset:{(ii >> 2) * 4096}")
        if i in (9, 17):
            a("    s_waitcnt lgkmcnt(6)")
    a("    s_waitcnt lgkmcnt(0)")
    a("    s_barrier")
    if c.vwarm and not c.w0assist and c.vw2 == 'after_by': vwarm_batch(1)
    stamp()
    for d in range(8):
        a(f"    v_lshlrev_b32 v{vX0F+2*d}, 16, v{vP+d}")
        a(f"    v_and_b32 v{vX0F+2*d+1}, 0xffff0000, v{vP+d}")
    bias_spread()
    bias_unpack()
    for r in range(16):
        a(f"    v_mov_b32 v{vXR+r}, v{vX0F+r}")
    a(f"    s_mov_b32 s{sL}, 0")
    a("    s_barrier                                 ; B_p: prefix of layer 0 has landed")
    stamp()

    def xload(i):
        if c.no_x:
            a("    s_nop 0"); return
        seg = sXA if i < 13 else sXB
        ii = i % 13
        a(f"    buffer_load_dwordx4 v[{vXF+4*i}:{vXF+4*i+3}], v{vXO+(ii>>2)}, s[{sWS}:{sWS+3}], s{seg} offen offset:{(ii&3)*1024} sc1")
    def rd(i, which):
        if c.no_w: return
        st = vWF + 8 * (i % nsets)
        if i < P: k, s_, off = vAPK, vAPS, i * 2048
        else: k, s_, off = vASK, vASS, (i - P) * 2048
        if which == "s":
            a(f"    ds_read_b64_tr_b16 v[{st}:{st+1}], v{s_} offset:{off}")
            a(f"    ds_read_b64_tr_b16 v[{st+2}:{st+3}], v{s_} offset:{off+1024}")
        else:
            a(f"    ds_read_b64_tr_b16 v[{st+4}:{st+5}], v{k} offset:{off}")
            a(f"    ds_read_b64_tr_b16 v[{st+6}:{st+7}], v{k} offset:{off+1024}")
    def pref_sched(i):
        if c.presched == "spread":
            t = i - (26 - P)
            return [t] if 0 <= t < P else []
        k = i - (26 - D)
        if k < 0: return []
        per_ = -(-P // D)
        return [t for t in range(k * per_, min(P, (k + 1) * per_))]
    def kloop(first):
        ops = []
        if first:
            for i in range(PF):
                rd(i, "s"); rd(i, "k")
        else:
            xload(0); ops.append(("x", 0))
            rd(0, "s"); rd(0, "k")
            xload(1); ops.append(("x", 1))
            rd(1, "s"); rd(1, "k")
            nrest = D - 2
            cuts = [8 * k // nrest for k in range(nrest + 1)]
            for k in range(nrest):
                bias_unpack(cuts[k], cuts[k + 1])
                xload(2 + k); ops.append(("x", 2 + k))
        bars = (([P] + list(c.chunks0)) if (c.hello_by == 'compute' and not c.swarm) else [P, 13, 20]) if first else [P]
        assert P < 13
        marks = [0, 1, 2, 4, 8, 12, 16, 20, 25]
        for i in range(26):
            a(f"    ; ---- step {i}")
            if TS == 4 and not first and i in marks:
                a(f"    s_memtime s[{80 + 2*marks.index(i)}:{81 + 2*marks.index(i)}]")
            young = sum(4 for t in range(i + 1, min(i + PF - 1, 25) + 1))
            if first:
                a(f"    s_waitcnt lgkmcnt({young})")
            else:
                nv = len(ops) - 1 - ops.index(("x", i))
                a(f"    s_waitcnt vmcnt({nv}) lgkmcnt({young})")
            st = vWF + 8 * (i % nsets)
            xf = vXF + 4 * i
            cs = "0" if i == 0 else f"v[{vAS}:{vAS+15}]"
            a(f"    v_mfma_f32_32x32x16_bf16 v[{vAS}:{vAS+15}], v[{st}:{st+3}], v[{xf}:{xf+3}], {cs}")
            if not first and i == 1:
                a(f"""    s_add_u32 s{sTA}, s{sTA}, 1
    s_addc_u32 s{sTA+1}, s{sTA+1}, 0""")
            if not first and i == 2:
                a(f"""    s_add_u32 s{sTB}, s{sTB}, 1
    s_addc_u32 s{sTB+1}, s{sTB+1}, 0""")
            if i + PF in bars:
                a("    s_barrier")
            if first and i == c.hello_step and c.hello_by != 'loader':
                a(f"    buffer_load_dwordx2 v[{vPOLL}:{vPOLL+1}], v{vHA}, s[{sWS}:{sWS+3}], 0 offen sc1")
            if not first and i + D < 26:
                xload(i + D); ops.append(("x", i + D))
            if c.pre_by == "loader":
                if i == c.mid_step: a("    s_barrier                                 ; B_mid: the x loads are all issued")
                if i == c.prog_step and c.prog_at == "mid":
                    lab = "L_noprogA" if first else "L_noprogB"
                    a(f"""    s_or_b32 s{sT0}, s{sJ}, s{sWV}
    s_cmp_eq_u32 s{sT0}, 0
    s_cbranch_scc0 {lab}
    v_mov_b32 v{vPOL2}, s{sTA}
    v_mov_b32 v{vPOL2+1}, s{sTA+1}
    s_add_u32 s{sT0}, s{sCB}, 3072
    buffer_store_dwordx2 v[{vPOL2}:{vPOL2+1}], off, s[{sWS}:{sWS+3}], s{sT0}
{lab}:""")
            else:
                for t in ([] if c.no_pre else pref_sched(i)):
                    a(f"    s_add_u32 m0, s{sMP}, {t*2048}")
                    a(f"    s_add_u32 s{sT0}, s{sWP}, {t*26624}")
                    a(f"    buffer_load_dwordx4 v{vDMA}, s[{sW}:{sW+3}], s{sT0} offen lds")
                    ops.append(("w", t))
            if i + PF < 26: rd(i + PF, "s")
            a(f"    v_mfma_f32_32x32x16_bf16 v[{vAK}:{vAK+15}], v[{st+4}:{st+7}], v[{xf}:{xf+3}], v[{vAK}:{vAK+15}]")
            if i + PF < 26: rd(i + PF, "k")
        return len([o for o in ops if o[0] == "w"])
    npre = kloop(True)
    if c.hello_by == "loader":
        a(f"""    v_mov_b32 v{vT0}, {MODEW}
    ds_read_b32 v{vT1}, v{vT0}
    s_waitcnt lgkmcnt(0)
    v_readfirstlane_b32 s{sMODE}, v{vT1}""")
        a(f"""
    s_cmp_eq_u32 s{sMODE}, 0
    s_cbranch_scc1 L_hello_slow
    s_and_b32 s{sMODE}, s{sMODE}, {0 if c.force_slow else 1}
    s_branch L_tail
L_hello_slow:
    buffer_load_dwordx2 v[{vPOLL}:{vPOLL+1}], v{vHA}, s[{sWS}:{sWS+3}], 0 offen sc1""")
    a(f"""
    s_add_u32 s{sT0}, s{sE}, 8
    s_addc_u32 s{sT1}, s{sE+1}, 0
    s_mov_b32 s{sSPIN}, 0
    s_waitcnt vmcnt({0 if c.hello_by == "loader" else npre})
    s_and_b32 s{sT2}, s{sT1}, 0x0fffffff
    s_lshl_b32 s{sT3}, s{sXCC}, 28
    s_xor_b32 s{sT3}, s{sT1}, s{sT3}
L_hello:
    v_and_b32 v{vT0}, 0x0fffffff, v{vPOLL+1}
    v_cmp_eq_u32 vcc, s{sT0}, v{vPOLL}
    v_cmp_eq_u32 s[{sMK}:{sMK+1}], s{sT2}, v{vT0}
    s_and_b64 vcc, vcc, s[{sMK}:{sMK+1}]
    s_cmp_eq_u64 vcc, -1
    s_cbranch_scc1 L_hello_ok
    s_add_u32 s{sSPIN}, s{sSPIN}, 1
    s_cmp_gt_u32 s{sSPIN}, {c.spin_max}
    s_cbranch_scc1 L_end
    buffer_load_dwordx2 v[{vPOLL}:{vPOLL+1}], v{vHA}, s[{sWS}:{sWS+3}], 0 offen sc1
    s_waitcnt vmcnt(0)
    s_branch L_hello
L_hello_ok:
    v_cmp_eq_u32 vcc, s{sT3}, v{vPOLL+1}
    s_cmp_eq_u64 vcc, -1
    s_cselect_b32 s{sMODE}, {0 if c.force_slow else 1}, 0
    s_branch L_tail
""")
    assert sT1 == sT0 + 1 and sT0 % 2 == 0
    a("L_layer2:")
    stamp()
    kloop(False)
    if TS == 4:
        a("    s_memtime s[98:99]")
        a("    s_waitcnt lgkmcnt(0)")
        for k in range(10):
            a(f"    s_mov_b32 m0, s{sTSI}")
            a(f"    s_nop 0")
            a(f"    v_writelane_b32 v{vTS}, s{80+2*k}, m0")
            a(f"    s_add_u32 s{sTSI}, s{sTSI}, 1")
    a("L_tail:")
    if c.amp and c.amp[0] == "l0k":
        a(f"""    s_cmp_eq_u32 s{sL}, 0
    s_cbranch_scc0 L_amp2
    s_memtime s[26:27]
    s_waitcnt lgkmcnt(0)
    s_sub_u32 s25, s26, s100
L_amp2:""")
    if TS in (2, 3):
        a("    s_nop 15")
        stamp()
    a(f"    v_mov_b32 v{vFV}, s{sTA}")
    a(f"    v_mov_b32 v{vFV+1}, s{sTA+1}")
    a("    s_nop 8")
    for q in range(4):
        a(f"    ds_write_b128 v{vRW}, v[{vAS+4*q}:{vAS+4*q+3}] offset:{q*1024}")
    a("    s_waitcnt lgkmcnt(0)")
    a("    s_barrier                                 ; B2")
    stamp(3)
    for q in range(4):
        a(f"    ds_read_b128 v[{vPART+4*q}:{vPART+4*q+3}], v{vRR} offset:{q*1024}")
    def epi(q):
        a(f"    s_waitcnt lgkmcnt({3-q})")
        for p in range(2):
            r = 4 * q + 2 * p
            a(f"    v_pk_add_f32 v[{vAK+r}:{vAK+r+1}], v[{vAK+r}:{vAK+r+1}], v[{vPART+r}:{vPART+r+1}]")
        for p in range(2):
            r = 4 * q + 2 * p
            a(f"    v_pk_fma_f32 v[{vAK+r}:{vAK+r+1}], v[{vX0F+r}:{vX0F+r+1}], v[{vAK+r}:{vAK+r+1}], v[{vXR+r}:{vXR+r+1}]")
        for p in range(2):
            r = 4 * q + 2 * p
            a(f"    v_cvt_pk_bf16_f32 v{vP+2*q+p}, v{vAK+r}, v{vAK+r+1}")
    a(f"""
    s_cmp_eq_u32 s{sL}, 5
    s_cbranch_scc1 L_final
    s_cmp_eq_u32 s{sMODE}, 0
    s_cbranch_scc1 L_st_slow
""")
    epi(0); epi(1)
    a(f"    buffer_store_dwordx4 v[{vP}:{vP+3}], v{vXO}, s[{sWS}:{sWS+3}], s{sXST} offen")
    epi(2); epi(3)
    a(f"    buffer_store_dwordx4 v[{vP+4}:{vP+7}], v{vXO}, s[{sWS}:{sWS+3}], s{sXST} offen offset:1024")
    if c.phased: a("    s_barrier                                 ; B_s")
    stamp(3)
    def unpack_res():
        for d in range(8):
            a(f"    v_lshlrev_b32 v{vXR+2*d}, 16, v{vP+d}")
            a(f"    v_and_b32 v{vXR+2*d+1}, 0xffff0000, v{vP+d}")
    bias_load()
    unpack_res()
    a(f"""
    s_waitcnt vmcnt(0)
    buffer_store_dwordx2 v[{vFV}:{vFV+1}], off, s[{sWS}:{sWS+3}], s{sOWNF}
    s_branch L_st_done
L_st_slow:
""")
    epi(0); epi(1); epi(2); epi(3)
    a(f"""
    buffer_store_dwordx4 v[{vP}:{vP+3}], v{vXO}, s[{sWS}:{sWS+3}], s{sXST} offen sc1
    buffer_store_dwordx4 v[{vP+4}:{vP+7}], v{vXO}, s[{sWS}:{sWS+3}], s{sXST} offen offset:1024 sc1
""")
    if c.phased: a("    s_barrier                                 ; B_s")
    stamp(3)
    bias_load()
    unpack_res()
    a(f"""
    s_waitcnt vmcnt(0)
    buffer_store_dwordx2 v[{vFV}:{vFV+1}], off, s[{sWS}:{sWS+3}], s{sOWNF} sc1
L_st_done:
""")
    stamp()
    if c.onepoll:
        a(f"""
    s_cmp_eq_u32 s{sWV}, 0
    s_cbranch_scc0 L_nopoll1""")
    a(f"""
    buffer_load_dwordx2 v[{vPOLL}:{vPOLL+1}], v{vFA}, s[{sWS}:{sWS+3}], 0 offen sc1
L_nopoll1:
    {"s_barrier                                 ; B_f" if c.phased else ""}
""")
    def progress(lab):
        a(f"""    s_or_b32 s{sT0}, s{sJ}, s{sWV}
    s_cmp_eq_u32 s{sT0}, 0
    s_cbranch_scc0 {lab}
    s_add_u32 s{sT0}, s{sCB}, 3072
    buffer_store_dwordx2 v[{vFV}:{vFV+1}], off, s[{sWS}:{sWS+3}], s{sT0}
{lab}:""")
    if c.prog_at == "end": progress("L_noprog")
    a(f"""
    s_add_u32 s{sL}, s{sL}, 1
    s_cmp_eq_u32 s{sL}, 1
    s_cbranch_scc1 L_keep_xa
    s_add_u32 s{sXA}, s{sXA}, s{sXD}
    s_add_u32 s{sXB}, s{sXB}, s{sXD}
    s_sub_u32 s{sXD}, 0, s{sXD}
L_keep_xa:
    s_add_u32 s{sXST}, s{sXST}, s{sXD2}
    s_sub_u32 s{sXD2}, 0, s{sXD2}
    s_add_u32 s{sWP}, s{sWP}, {c.wstride}
    s_sub_u32 s{sMP}, s{sMP}, s{sPD}
    v_add_u32 v{vAPK}, s{sPD}, v{vAPK}
    v_add_u32 v{vAPS}, s{sPD}, v{vAPS}
    s_sub_u32 s{sPD}, 0, s{sPD}
    s_mov_b32 s{sSPIN}, 0
""")
    a("    s_waitcnt lgkmcnt(0)")
    bias_spread()
    if c.onepoll:
        a(f"""
    s_cmp_eq_u32 s{sWV}, 0
    s_cbranch_scc0 L_ready""")
    if c.poll2:
        a(f"""L_poll:
    buffer_load_dwordx2 v[{vPOL2}:{vPOL2+1}], v{vFA}, s[{sWS}:{sWS+3}], 0 offen sc1
    s_waitcnt vmcnt(1)
    v_cmp_eq_u64 vcc, s[{sTA}:{sTA+1}], v[{vPOLL}:{vPOLL+1}]
    v_cmp_eq_u64 s[{sMK}:{sMK+1}], s[{sTB}:{sTB+1}], v[{vPOLL}:{vPOLL+1}]
    s_or_b64 vcc, vcc, s[{sMK}:{sMK+1}]
    s_cmp_eq_u64 vcc, -1
    s_cbranch_scc1 L_ready
    buffer_load_dwordx2 v[{vPOLL}:{vPOLL+1}], v{vFA}, s[{sWS}:{sWS+3}], 0 offen sc1
    s_waitcnt vmcnt(1)
    v_cmp_eq_u64 vcc, s[{sTA}:{sTA+1}], v[{vPOL2}:{vPOL2+1}]
    v_cmp_eq_u64 s[{sMK}:{sMK+1}], s[{sTB}:{sTB+1}], v[{vPOL2}:{vPOL2+1}]
    s_or_b64 vcc, vcc, s[{sMK}:{sMK+1}]
    s_cmp_eq_u64 vcc, -1
    s_cbranch_scc1 L_ready
    s_add_u32 s{sSPIN}, s{sSPIN}, 1
    s_cmp_gt_u32 s{sSPIN}, {c.spin_max}
    s_cbranch_scc0 L_poll
    s_endpgm
""")
    else:
        a(f"""L_poll:
    s_waitcnt vmcnt(0)
    v_cmp_eq_u64 vcc, s[{sTA}:{sTA+1}], v[{vPOLL}:{vPOLL+1}]
    v_cmp_eq_u64 s[{sMK}:{sMK+1}], s[{sTB}:{sTB+1}], v[{vPOLL}:{vPOLL+1}]
    s_or_b64 vcc, vcc, s[{sMK}:{sMK+1}]
    s_cmp_eq_u64 vcc, -1
    s_cbranch_scc1 L_ready
    buffer_load_dwordx2 v[{vPOLL}:{vPOLL+1}], v{vFA}, s[{sWS}:{sWS+3}], 0 offen sc1
    s_add_u32 s{sSPIN}, s{sSPIN}, 1
    s_cmp_gt_u32 s{sSPIN}, {c.spin_max}
    s_cbranch_scc0 L_poll
    s_endpgm
""")
    a(f"""L_ready:
""")
    if c.amp and c.amp[0] == "start":
        a(f"""    s_cmp_eq_u32 s{sL}, 1
    s_cbranch_scc0 L_amp1
    s_memtime s[26:27]
    s_waitcnt lgkmcnt(0)
    s_sub_u32 s25, s26, s100
L_amp1:""")
    stamp(1)
    a(f"""
    s_barrier                                 ; B_a
    s_branch L_layer2
L_final:
""")
    epi(0); epi(1); epi(2); epi(3)
    a(f"""
    s_nop 1
    v_permlane32_swap_b32 v{vP}, v{vP+2}
    v_permlane32_swap_b32 v{vP+1}, v{vP+3}
    v_permlane32_swap_b32 v{vP+4}, v{vP+6}
    v_permlane32_swap_b32 v{vP+5}, v{vP+7}
""")
    if c.amp and c.amp[0] == "fin":
        a("    s_memtime s[100:101]\n    s_waitcnt lgkmcnt(0)")
    a(f"""
    buffer_store_dwordx4 v[{vP}:{vP+3}], v{vOUT}, s[{sOUT}:{sOUT+3}], 0 offen
    buffer_store_dwordx4 v[{vP+4}:{vP+7}], v{vOUT}, s[{sOUT}:{sOUT+3}], 0 offen offset:32
""")
    if c.amp and c.amp[0] == "fin":
        a("    s_waitcnt vmcnt(0)\n    s_memtime s[26:27]\n    s_waitcnt lgkmcnt(0)\n    s_sub_u32 s25, s26, s100")
    a(f"""
    s_or_b32 s{sT0}, s{sJ}, s{sWV}
    s_cmp_eq_u32 s{sT0}, 0
    s_cbranch_scc0 L_noepoch
    s_add_u32 s{sT0}, s{sE}, 16
    s_addc_u32 s{sT1}, s{sE+1}, 0
    v_mov_b32 v{vFV}, s{sT0}
    v_mov_b32 v{vFV+1}, s{sT1}
    s_mov_b64 exec, 1
    buffer_store_dwordx2 v[{vFV}:{vFV+1}], off, s[{sWS}:{sWS+3}], s{sCB} sc1
    s_mov_b64 exec, -1
L_noepoch:
""")
    if c.amp:
        if c.amp[0] in ("total", "totalrt"):
            a(("    s_memtime s[26:27]" if c.amp[0] == "total" else "    s_memrealtime s[26:27]") + """
    s_waitcnt lgkmcnt(0)
    s_sub_u32 s25, s26, s100""")
        tm = "s_memrealtime" if c.amp[0] == "totalrt" else "s_memtime"
        a(f"""    s_cmp_eq_u32 s2, 0
    s_cbranch_scc0 L_amp9
    s_mul_i32 s25, s25, {c.amp[1]}
    {tm} s[80:81]
    s_waitcnt lgkmcnt(0)
L_ampspin:
    {tm} s[82:83]
    s_waitcnt lgkmcnt(0)
    s_sub_u32 s82, s82, s80
    s_cmp_lt_u32 s82, s25
    s_cbranch_scc1 L_ampspin
L_amp9:""")
    if c.exp_delay or c.exp_rt:
        ins = "s_memtime" if c.exp_delay else "s_memrealtime"
        a(f"""
    {ins} s[80:81]
    s_waitcnt lgkmcnt(0)
L_expd:
    {ins} s[82:83]
    s_waitcnt lgkmcnt(0)
    s_sub_u32 s82, s82, s80
    s_cmp_lt_u32 s82, {c.exp_delay or c.exp_rt}
    s_cbranch_scc1 L_expd
""")
    stamp(1); dump_ts()
    a("    s_endpgm")

    if c.helpers:
        HPR = (c.SV * 16 + (2 * NSR if c.sp else 0)) if c.hp is None else c.hp * 16
        HP = HPR // 16
        nrow = 208 - HPR
        nline = nrow * 13
        tot = 4 * nline
        nins = (tot + 63) // 64
        cdelta = HPR * ROWB
        NK = -(-nins // 48)
        HF = 1 if ((c.h0 == 'prefix' or c.w0assist) and c.hfirst == 0) else c.hfirst
        a(f"""
L_helper:
""")
        if c.probe:
            a(f"""
    s_cmp_eq_u32 s2, 208
    s_cbranch_scc0 L_noprobe
    s_cmp_eq_u32 s{sWV}, 0
    s_cbranch_scc0 L_noprobe
    s_mov_b32 s20, {c.probe_off + 16384}
    buffer_load_dword v30, off, s[{sW}:{sW+3}], s20
    s_waitcnt vmcnt(0)
    s_mov_b32 s20, {c.probe_off}
    s_memtime s[22:23]
    s_waitcnt lgkmcnt(0)
    buffer_load_dword v30, off, s[{sW}:{sW+3}], s20
    s_waitcnt vmcnt(0)
    s_memtime s[24:25]
    s_waitcnt lgkmcnt(0)
    s_sub_u32 s24, s24, s22
    s_mul_i32 s24, s24, {c.probe}
L_pspin:
    s_memtime s[26:27]
    s_waitcnt lgkmcnt(0)
    s_sub_u32 s26, s26, s22
    s_cmp_lt_u32 s26, s24
    s_cbranch_scc1 L_pspin
    s_endpgm
L_noprobe:""")
        a(f"""
    ; L2 prefetch for the workers of this die (placement assumed for speed only): one dword per 128-byte line
    s_sub_u32 s{sT0}, s2, 208
    s_and_b32 s{sT1}, s{sT0}, 7
    s_lshr_b32 s{sT0}, s{sT0}, 3
    s_lshl_b32 s{sT0}, s{sT0}, 3
    s_add_u32 s{sT0}, s{sT0}, s{sWV}          ; g = 0..47
    s_lshl_b32 s{sCB}, s{sT1}, 13
    s_add_u32 s{sCB}, s{sCB}, {CTRL}
    s_load_dwordx2 s[{sE}:{sE+1}], s[50:51], s{sCB}
    s_add_u32 s{sOWNF}, s{sCB}, 3072
""")
        if c.tlbwarm:
            a(f"""
    s_cmp_eq_u32 s{sWV}, 7
    s_cbranch_scc0 L_notlb
""")
            k_ = 0
            for base, offs in ((46, [0, XLAYER - 64]), (50, [0, XBUF - 64, XBUF + (1 << 20), 2 * XBUF - 64, 2 * XBUF + 65536 - 64]),
                               (42, [1 << 21, 2 << 21, 3 << 21, L_ * WLAYER - 64])):
                for off in offs:
                    a(f"""    s_add_u32 s24, s{base}, {off}
    s_addc_u32 s25, s{base+1}, 0
    s_load_dword s{76+k_}, s[24:25], 0""")
                    k_ += 1
            a("L_notlb:")
        a(f"""
    ; exchange-buffer lines of the die's two row blocks: {2*XRB//128} lines
    s_mul_i32 s{sG}, s{sT1}, {2*XRB}
    s_lshl_b32 s{sI}, s{sT0}, 13
    s_add_u32 s{sG}, s{sG}, s{sI}
    v_lshlrev_b32 v19, 7, v{vL}
    v_add_u32 v19, s{sG}, v19
    s_cmp_lt_u32 s{sT0}, {-(-2*XRB // 8192)}
    s_cselect_b32 s{sM}, 1, 0
""")
        def lane_addr(vdst, nline_, base0, delta):
            tot_ = 4 * nline_
            a(f"""
    s_lshl_b32 s{sI}, s{sI}, 6
    v_add_u32 v{vT0}, s{sI}, v{vL}
    v_mov_b32 v{vT1}, {base0}
    v_cmp_le_u32 vcc, {nline_}, v{vT0}
    v_mov_b32 v{vT2}, 0
    v_mov_b32 v{vT3}, {delta}
    v_cndmask_b32 v{vT2}, v{vT2}, v{vT3}, vcc
    v_add_u32 v{vT1}, v{vT1}, v{vT2}
    v_cmp_le_u32 vcc, {2*nline_}, v{vT0}
    v_mov_b32 v{vT2}, 0
    s_nop 0
    v_cndmask_b32 v{vT2}, v{vT2}, v{vT3}, vcc
    v_add_u32 v{vT1}, v{vT1}, v{vT2}
    v_cmp_le_u32 vcc, {3*nline_}, v{vT0}
    v_mov_b32 v{vT2}, 0
    s_nop 0
    v_cndmask_b32 v{vT2}, v{vT2}, v{vT3}, vcc
    v_add_u32 v{vT1}, v{vT1}, v{vT2}
    v_lshl_add_u32 v{vdst}, v{vT0}, 7, v{vT1}
    v_cmp_le_u32 vcc, {tot_}, v{vT0}
    v_mov_b32 v{vT2}, 0x7ffffff0
    s_nop 0
    v_cndmask_b32 v{vdst}, v{vdst}, v{vT2}, vcc""")
        def need_set(vbase, skip_rows, nrows):
            tot_ = nrows * 52
            nins_ = (tot_ + 63) // 64
            nk = -(-nins_ // 48)
            for k in range(nk):
                a(f"""
    s_add_u32 s{sI}, s{sT0}, {48*k}
    s_lshl_b32 s{sI}, s{sI}, 6
    v_add_u32 v{vT0}, s{sI}, v{vL}
    v_mul_u32_u24 v{vT1}, 80660, v{vT0}
    v_lshrrev_b32 v{vT1}, 22, v{vT1}
    v_mul_u32_u24 v{vT2}, 52, v{vT1}
    v_sub_u32 v{vT2}, v{vT0}, v{vT2}          ; rem
    v_mul_u32_u24 v{vT3}, 5042, v{vT2}
    v_lshrrev_b32 v{vT3}, 16, v{vT3}
    v_mul_u32_u24 v{vbase+k}, 13, v{vT3}
    v_sub_u32 v{vT2}, v{vT2}, v{vbase+k}
    v_mul_u32_u24 v{vT3}, 208, v{vT3}
    v_add_u32 v{vT1}, v{vT1}, v{vT3}
    v_add_u32 v{vT1}, {skip_rows}, v{vT1}     ; row
    v_mul_u32_u24 v{vT1}, {ROWB}, v{vT1}
    v_lshl_add_u32 v{vbase+k}, v{vT2}, 7, v{vT1}
    v_cmp_le_u32 vcc, {tot_}, v{vT0}
    v_mov_b32 v{vT2}, 0x7ffffff0
    s_nop 0
    v_cndmask_b32 v{vbase+k}, v{vbase+k}, v{vT2}, vcc""")
            return nk
        def addr_set(vbase, nline_, base0, delta, tag):
            tot_ = 4 * nline_
            nins_ = (tot_ + 63) // 64
            nk = -(-nins_ // 48)
            a(f"    s_mul_i32 s{sT2}, s{sT1}, {nins_ // 8}")
            for k in range(nk):
                a(f"""
    s_add_u32 s{sT3}, s{sT0}, {48*k}
    s_add_u32 s{sI}, s{sT3}, s{sT2}
    s_cmp_ge_u32 s{sI}, {nins_}
    s_cselect_b32 s{sG}, {nins_}, 0
    s_sub_u32 s{sI}, s{sI}, s{sG}
    s_cmp_ge_u32 s{sT3}, {nins_}
    s_cselect_b32 s{sI}, {nins_ + 8}, s{sI}   ; no k-th instruction -> past the end""")
                lane_addr(vbase + k, nline_, base0, delta)
            return nk
        NK0 = 0
        if c.w0assist and c.hfirst == 0:
            skip0 = P * 16 + 60
            NK0 = addr_set(40, (208 - skip0) * 13, skip0 * ROWB, skip0 * ROWB, "p")
            for k in range(NK0):
                a(f"    buffer_load_dword v{50+k}, v{40+k}, s[{sW}:{sW+3}], 0 offen")
        elif c.h0 == "prefix" and c.hfirst == 0:
            NK0 = addr_set(40, HP * 16 * 13, 0, (13 - HP) * 26624, "p")
            for k in range(NK0):
                a(f"    buffer_load_dword v{50+k}, v{40+k}, s[{sW}:{sW+3}], 0 offen")
        if c.horder == "need": need_set(10, HPR, nrow)
        else: addr_set(10, nline, cdelta, cdelta, "h")
        nshare_l = tot // 8
        NW_ = 14
        if c.hwarm:
            a(f"""
    s_mul_i32 s{sI}, s{sT1}, {nshare_l}
    s_mul_i32 s{sG}, s{sT0}, {NW_}
    s_add_u32 s{sI}, s{sI}, s{sG}
    s_mov_b32 s{sG}, {cdelta}
    s_cmp_ge_u32 s{sI}, {nline}
    s_cselect_b32 s{sT3}, {cdelta}, 0
    s_add_u32 s{sG}, s{sG}, s{sT3}
    s_cmp_ge_u32 s{sI}, {2*nline}
    s_cselect_b32 s{sT3}, {cdelta}, 0
    s_add_u32 s{sG}, s{sG}, s{sT3}
    s_cmp_ge_u32 s{sI}, {3*nline}
    s_cselect_b32 s{sT3}, {cdelta}, 0
    s_add_u32 s{sG}, s{sG}, s{sT3}
    s_lshl_b32 s{sI}, s{sI}, 7
    s_add_u32 s{sI}, s{sI}, s{sG}
    s_add_u32 s{sI}, s{sI}, {c.wstride}
    s_add_u32 s44, s42, s{sI}                 ; layer 1
    s_addc_u32 s45, s43, 0""")
        if c.hvec_warm:
            a(f"""
    ; memory-side cache warm-up: lines [die*1352, +1352) of a later layer, one line per lane; waves g < 22 (and g - 22 < 22 at the start)
    s_cmp_ge_u32 s{sT0}, 22
    s_cselect_b32 s{sG}, 22, 0
    s_cselect_b32 s{sWG}, 1, 0
    s_sub_u32 s{sG}, s{sT0}, s{sG}
    s_lshl_b32 s{sG}, s{sG}, 6
    s_mul_i32 s{sI}, s{sT1}, 1352
    s_add_u32 s{sI}, s{sI}, s{sG}
    v_add_u32 v{vT0}, s{sI}, v{vL}
    v_lshlrev_b32 v18, 7, v{vT0}
    v_add_u32 v{vT1}, s{sG}, v{vL}
    v_cmp_le_u32 vcc, 1352, v{vT1}
    v_mov_b32 v{vT2}, 0x7ffffff0
    s_nop 0
    v_cndmask_b32 v18, v18, v{vT2}, vcc""")
        nv_l = c.SV * 16 * 52 // 8
        if c.hvwarm:
            a(f"""
    s_mul_i32 s{sI}, s{sT1}, {nv_l}
    s_mul_i32 s{sG}, s{sT0}, 7
    s_min_u32 s{sG}, s{sG}, {nv_l - 7}
    s_add_u32 s{sI}, s{sI}, s{sG}
    s_mov_b32 s{sG}, 0
    s_cmp_ge_u32 s{sI}, {c.SV * 16 * 13}
    s_cselect_b32 s{sT3}, {(208 - c.SV * 16) * ROWB}, 0
    s_add_u32 s{sG}, s{sG}, s{sT3}
    s_cmp_ge_u32 s{sI}, {2 * c.SV * 16 * 13}
    s_cselect_b32 s{sT3}, {(208 - c.SV * 16) * ROWB}, 0
    s_add_u32 s{sG}, s{sG}, s{sT3}
    s_cmp_ge_u32 s{sI}, {3 * c.SV * 16 * 13}
    s_cselect_b32 s{sT3}, {(208 - c.SV * 16) * ROWB}, 0
    s_add_u32 s{sG}, s{sG}, s{sT3}
    s_lshl_b32 s{sI}, s{sI}, 7
    s_add_u32 s{sI}, s{sI}, s{sG}
    s_add_u32 s{sI}, s{sI}, {c.wstride}
    s_add_u32 s46, s42, s{sI}                 ; layer 1
    s_addc_u32 s47, s43, 0""")
        if NK0 and c.hwarm:
            a("    s_waitcnt lgkmcnt(0)")
            for half in range(2):
                if half: a("    s_waitcnt lgkmcnt(0)")
                for n_ in range(7 * half, 7 * half + 7):
                    a(f"    s_load_dwordx2 s[{76+2*(n_%7)}:{77+2*(n_%7)}], s[44:45], {n_*128 + 60}")
            a(f"    s_add_u32 s44, s44, {c.wstride}")
            a(f"    s_addc_u32 s45, s45, 0")
        if NK0:
            a(f"""
    s_waitcnt vmcnt(0)
    s_barrier
    s_cmp_eq_u32 s{sM}, 1
    s_cbranch_scc0 L_hx1
    s_mov_b32 s{sI}, {XBUF}
    buffer_load_dword v30, v19, s[{sWS}:{sWS+3}], s{sI} offen sc1
L_hx1:
""")
        a(f"""
    v_mov_b32 v20, 0
    s_mov_b32 s{sL}, {HF}
    s_mov_b32 s{sT3}, {HF * c.wstride}
    s_waitcnt lgkmcnt(0)
L_h_layer:
""")
        if c.hpace:
            a(f"""
    ; before layer m wait (bounded) until the workers have finished layer m-{c.hlook}
    s_cmp_lt_u32 s{sL}, {c.hlook}
    s_cbranch_scc1 L_h_go
    s_cmp_eq_u32 s{sWV}, 0
    s_cbranch_scc0 L_h_bar
    s_mov_b32 s{sSPIN}, 0
L_h_poll:
    buffer_load_dwordx2 v[16:17], v20, s[{sWS}:{sWS+3}], s{sOWNF} offen sc1
    s_waitcnt vmcnt(0)
    v_readfirstlane_b32 s{sTA}, v16
    v_readfirstlane_b32 s{sTA+1}, v17
    s_sub_u32 s{sTA}, s{sTA}, s{sE}
    s_subb_u32 s{sTA+1}, s{sTA+1}, s{sE+1}
    s_cmp_eq_u32 s{sTA+1}, 0
    s_cselect_b32 s{sTA}, s{sTA}, 0
    s_cmp_gt_u32 s{sTA}, 6
    s_cselect_b32 s{sTA}, 0, s{sTA}           ; layers finished so far
    s_add_u32 s{sTA}, s{sTA}, {c.hlook - 1}
    s_cmp_ge_u32 s{sTA}, s{sL}
    s_cbranch_scc1 L_h_bar
    s_add_u32 s{sSPIN}, s{sSPIN}, 1
    s_cmp_lt_u32 s{sSPIN}, 32
    s_cbranch_scc1 L_h_poll
L_h_bar:
    s_barrier
L_h_go:
""")
        def hw_batch(k, lab):
            if not c.hwarm: return
            a(f"    s_cmp_lt_u32 s{sL}, 5")
            a(f"    s_cbranch_scc0 {lab}")
            if not c.hw0:
                a(f"    s_cmp_eq_u32 s{sL}, 0")
                a(f"    s_cbranch_scc1 {lab}")
            a("    s_waitcnt lgkmcnt(0)")
            for n_ in range(7 * k, 7 * k + 7):
                a(f"    s_load_dwordx2 s[{76+2*(n_%7)}:{77+2*(n_%7)}], s[44:45], {n_*128 + 60}")
            a(f"{lab}:")
        def vec_warm(lab):
            A_ = c.hvw_ahead
            a(f"    s_cmp_eq_u32 s{sWG}, 1")
            a(f"    s_cbranch_scc1 {lab}_b")
            a(f"    s_add_u32 s{sI}, s{sL}, {A_}")
            a(f"    s_cmp_le_u32 s{sI}, 5")
            a(f"    s_cbranch_scc0 {lab}")
            if c.wwarm:
                a(f"    s_cmp_gt_u32 s{sI}, {c.wwarm}")
                a(f"    s_cbranch_scc0 {lab}")
            a(f"    s_add_u32 s{sI}, s{sT3}, {A_ * c.wstride}")
            a(f"    buffer_load_dword v29, v18, s[{sW}:{sW+3}], s{sI} offen")
            a(f"    s_branch {lab}")
            a(f"{lab}_b:")
            if A_ == 2 and c.wwarm < 1:
                a(f"    s_cmp_eq_u32 s{sL}, {HF}")
                a(f"    s_cbranch_scc0 {lab}")
                a(f"    s_add_u32 s{sI}, s{sT3}, {c.wstride}")
                a(f"    buffer_load_dword v29, v18, s[{sW}:{sW+3}], s{sI} offen")
            a(f"{lab}:")
        if c.hvec_warm and c.hvw_pos == "before": vec_warm("L_hvw")
        for k in range(NK):
            a(f"    buffer_load_dword v{31+k}, v{10+k}, s[{sW}:{sW+3}], s{sT3} offen")
            if k < 2: hw_batch(k, f"L_hw{k}")
            a(f"    s_waitcnt vmcnt({c.hdepth})")
            a(f"    s_barrier")
        if c.hvec_warm and c.hvw_pos == "after": vec_warm("L_hvw")
        if c.hvwarm:
            a(f"    s_cmp_lt_u32 s{sL}, 5")
            a(f"    s_cbranch_scc0 L_hnv")
            a("    s_waitcnt lgkmcnt(0)")
            for n_ in range(7):
                a(f"    s_load_dwordx2 s[{76+2*n_}:{77+2*n_}], s[46:47], {n_*128 + 60}")
            a(f"    s_add_u32 s46, s46, {c.wstride}")
            a(f"    s_addc_u32 s47, s47, 0")
            a("L_hnv:")
        if c.hwarm:
            a(f"    s_add_u32 s44, s44, {c.wstride}")
            a(f"    s_addc_u32 s45, s45, 0")
        if c.xt_by in ('helper', 'mixed'):
            nbuf = 1 if c.xt_by == "mixed" else 2
            a(f"""
    s_sub_u32 s{sI}, s{sL}, {HF}
    s_add_u32 s{sI}, s{sI}, {1 if HF != c.hfirst else 0}
    s_cmp_lt_u32 s{sI}, {nbuf}
    s_cbranch_scc0 L_hx0
    s_cmp_eq_u32 s{sM}, 1
    s_cbranch_scc0 L_hx0
    s_cmp_eq_u32 s{sI}, 0
    s_cselect_b32 s{sI}, {XBUF}, 0
    buffer_load_dword v30, v19, s[{sWS}:{sWS+3}], s{sI} offen sc1
L_hx0:""")
        stamp(1)
        a(f"""
    s_add_u32 s{sL}, s{sL}, 1
    s_add_u32 s{sT3}, s{sT3}, {c.wstride}
    s_cmp_lt_u32 s{sL}, 6
    s_cbranch_scc1 L_h_layer
""")
        if c.hwb:
            a(f"""
    ; first helper workgroup of the die, wave 0: once layer 4 is finished, start writing the exchanged activations back
    s_cmp_lt_u32 s2, 216
    s_cbranch_scc0 L_nowb
    s_cmp_eq_u32 s{sWV}, 0
    s_cbranch_scc0 L_nowb
    s_mov_b32 s{sSPIN}, 0
L_wbpoll:
    buffer_load_dwordx2 v[16:17], v20, s[{sWS}:{sWS+3}], s{sOWNF} offen sc1
    s_waitcnt vmcnt(0)
    v_readfirstlane_b32 s{sTA}, v16
    v_readfirstlane_b32 s{sTA+1}, v17
    s_sub_u32 s{sTA}, s{sTA}, s{sE}
    s_subb_u32 s{sTA+1}, s{sTA+1}, s{sE+1}
    s_cmp_eq_u32 s{sTA+1}, 0
    s_cselect_b32 s{sTA}, s{sTA}, 0
    s_cmp_eq_u32 s{sTA}, 5
    s_cbranch_scc1 L_wbgo
    s_add_u32 s{sSPIN}, s{sSPIN}, 1
    s_cmp_lt_u32 s{sSPIN}, 64
    s_cbranch_scc1 L_wbpoll
L_wbgo:
    buffer_wbl2 sc1
L_nowb:""")
        a("    s_waitcnt vmcnt(0)")
        stamp(1)
        dump_ts()
    a("L_end:")
    a("    s_endpgm")
    kernel_desc(a, KNAME, NV, sgpr=102, accum=NV)
    txt = a.text().rstrip()
    if txt.endswith(".text"):
        txt = txt[:-5]
    return txt

if __name__ == "__main__":
    import json
    kw = json.loads(sys.argv[2]) if len(sys.argv) > 2 else {}
    open(sys.argv[1], "w").write(gen(**kw))
```

```python
import sys, os
from asmlib import *

KNAME = "standalone__dcn_v2_cross__recsys_kernel"
B_, DIN, L_ = 1024, 832, 6
ROWB = DIN * 2
WLAYER = DIN * DIN * 2
XLAYER = B_ * DIN * 2
XMH = 32 * ROWB
XRB = 2 * XMH
XBUF = 16 * XRB
CTRL = 2 * XBUF
TSOFF = CTRL + 16 * 4096
WS_BYTES = TSOFF + 256 * 8 * 256

class Cfg:
    def __init__(self, **kw):
        self.P = 6
        self.D = 5
        self.PF = 2
        self.SV = 3
        self.SB = 7
        self.ssched = 'three'
        self.NS = 3
        self.sp = True
        self.hp = None
        self.helpers = True
        self.hfirst = 0
        self.hlook = 2
        self.hpace = True
        self.hdepth = 1
        self.lthr = 0
        self.lthr_all = True
        self.sD_late = True
        self.ts = 0
        self.force_slow = False
        self.scramble = False
        self.spin_max = 1 << 20
        self.wstride = WLAYER
        self.prio = 2
        self.hello_step = 19
        self.outtouch = False
        self.vw2 = 'after_by'
        self.nt_last = False
        self.hfirstid = False
        self.chunks0 = [13, 17, 20, 23]
        self.amp = None
        self.hwb = False
        self.probe = 0
        self.probe_off = 5 * WLAYER + 700 * ROWB
        self.codepf = True
        self.wwarm = 0
        self.xt_by = 'helper'
        self.hvec_warm = False
        self.hvw_ahead = 2
        self.hvw_pos = 'after'
        self.tlbwarm = False
        self.l0b1 = True
        self.hvwarm = False
        self.hw0 = True
        self.hello_by = 'compute'
        self.pre_first = False
        self.swarm = False
        self.horder = 'linear'
        self.hwarm = True
        self.prog_step = 22
        self.prog_at = 'end'
        self.vwarm = True
        self.pre_by = 'loader'
        self.mid_step = 21
        self.presched = 'pack'
        self.h0 = 'middle'
        self.xtouch = False
        self.w0assist = False
        self.bias_by = 'loader'
        self.exp_delay = 0
        self.exp_rt = 0
        self.poll2 = True
        self.phased = True
        self.n1 = 0
        self.n2 = 4
        self.onepoll = True
        self.no_suf = self.no_pre = self.no_x = self.no_w = False
        self.__dict__.update(kw)

def gen(cfg=None, **kw):
    c = cfg or Cfg(**kw)
    P, D, PF = c.P, c.D, c.PF
    TS = int(c.ts)
    assert P <= 12 and PF <= P and D >= PF + 1
    KHS = (26 - P) * 2048
    PRE0 = 0
    SUF = 2 * P * 2048
    PRE1 = SUF + 2 * KHS
    PREPAR = PRE1 - PRE0
    RED = PRE1 + 2 * P * 2048
    BIAS = RED + 16384
    MODEW = BIAS
    LDS_BYTES = BIAS + 64
    XS = SUF
    assert XS + 4 * 28672 <= BIAS and LDS_BYTES <= 163840
    sW, sWS, sX0, sOUT, sBS = 4, 8, 12, 16, 24
    sRB, sJ, sG2, sWV, sMH, sKH, sL, sXCC, sMODE = 28, 29, 30, 31, 32, 33, 34, 35, 36
    sXA, sXB, sXST = 37, 38, 39
    sWP, sMP, sPD = 52, 53, 54
    sU, sOWNF, sXD2 = 55, 56, 57
    sT0, sT1, sT2, sT3 = 58, 59, 60, 61
    sSPIN, sROT = 62, 63
    sG, sM, sI = 64, 65, 66
    sTSI, sTM = 67, 68
    sXD, sCB = 70, 71
    sE, sTA, sTB, sMK = 72, 74, 76, 78
    sBP_ = 48
    sWG = 30
    vL = 0
    vT0, vT1, vT2, vT3 = 1, 2, 3, 4
    vDUM = 5
    vXO = 6
    vAPK, vAPS, vASK, vASS = 10, 11, 12, 13
    vDMA, vFA = 14, 15
    vPOLL = 16
    vRW, vRR, vBA, vTS = 20, 21, 22, 23
    vP = 24
    vAK, vAS, vPART, vX0F, vXR = 32, 48, 64, 80, 96
    vWF = 112
    vXF = 136
    vBP = 240
    vOUT, vHA, vFV, vDMA0 = 248, 249, 250, 252
    vPOL2 = 254
    NV = 256
    nsets = PF + 1
    assert nsets * 8 <= 24

    a = Asm()
    a("; Fused DCN-v2 cross network: 6 layers of x = x0 * (x @ W[l] + b[l]) + x, 1024 x 832, bf16 in/out, f32 accumulate.")
    a("; 208 worker workgroups = 16 row blocks (64 rows) x 13 column slices (64 columns); waves 0-3 MFMA, waves 4-7 W loaders;")
    a("; 48 helper workgroups prefetch into L2.  Layer outputs are exchanged inside a row block through d_ws.")
    a(f"; @launch grid=({256 if c.helpers else 208},1,1) block=(512,1,1) lds={LDS_BYTES}")
    a('.amdgcn_target "amdgcn-amd-amdhsa--gfx950"')
    a(".text")
    kernel_begin(a, KNAME)
    if c.amp:
        a("    s_memrealtime s[100:101]" if c.amp[0] == "totalrt" else "    s_memtime s[100:101]")
    if TS == 5:
        a("    s_memrealtime s[26:27]")
        a("    s_memtime s[100:101]")

    def stamp(level=2):
        if not TS or TS < level or (TS == 4 and level > 1) or TS == 5: return
        a(f"    s_memtime s[{sTM}:{sTM+1}]")
        a(f"    s_waitcnt lgkmcnt(0)")
        a(f"    s_mov_b32 m0, s{sTSI}")
        a(f"    s_nop 0")
        a(f"    v_writelane_b32 v{vTS}, s{sTM}, m0")
        a(f"    s_add_u32 s{sTSI}, s{sTSI}, 1")
    def dump_ts():
        if not TS: return
        if TS == 5:
            a("    s_memrealtime s[80:81]")
            a("    s_memtime s[82:83]")
            a("    s_waitcnt lgkmcnt(0)")
            a(f"    v_writelane_b32 v{vTS}, s26, 0")
            a(f"    v_writelane_b32 v{vTS}, s80, 1")
            a(f"    v_writelane_b32 v{vTS}, s100, 2")
            a(f"    v_writelane_b32 v{vTS}, s82, 3")
        a(f"""
    s_lshl_b32 s{sT0}, s2, 3
    s_add_u32 s{sT0}, s{sT0}, s{sWV}
    s_lshl_b32 s{sT0}, s{sT0}, 8
    s_add_u32 s{sT0}, s{sT0}, {TSOFF}
    v_lshlrev_b32 v{vT0}, 2, v{vL}
    buffer_store_dword v{vTS}, v{vT0}, s[{sWS}:{sWS+3}], s{sT0} offen
""")
    def srd(dst, src, nbytes):
        a(f"    s_mov_b32 s{dst}, s{src}")
        a(f"    s_and_b32 s{dst+1}, s{src+1}, 0xffff")
        a(f"    s_mov_b32 s{dst+2}, {nbytes}")
        a(f"    s_mov_b32 s{dst+3}, 0x20000")

    a(f"""
    s_cmp_ge_u32 s2, {256 if c.helpers else 208}
    s_cbranch_scc1 L_end
    s_load_dwordx4 s[40:43], s[0:1], 0
    s_load_dwordx4 s[44:47], s[0:1], 16
    s_load_dwordx2 s[50:51], s[0:1], 40
    s_getreg_b32 s{sXCC}, hwreg(HW_REG_XCC_ID, 0, 4)
""")
    if c.hfirstid and c.helpers:
        a("""    s_cmp_lt_u32 s2, 48
    s_cselect_b32 s3, 256, 0
    s_add_u32 s2, s2, s3
    s_sub_u32 s2, s2, 48""")
    if c.scramble:
        a(f"""
    s_mul_hi_u32 s{sRB}, s2, 0x13B13B14
    s_mul_i32 s{sT0}, s{sRB}, 13
    s_sub_u32 s{sJ}, s2, s{sT0}
    s_and_b32 s{sG2}, s{sRB}, 1
    s_mul_i32 s{sROT}, s{sG2}, 13""")
    else:
        a(f"""
    s_and_b32 s{sT0}, s2, 7
    s_lshr_b32 s{sT1}, s2, 3
    s_cmp_ge_u32 s{sT1}, 13
    s_cselect_b32 s{sG2}, 1, 0
    s_mul_i32 s{sROT}, s{sG2}, 13
    s_sub_u32 s{sJ}, s{sT1}, s{sROT}
    s_lshl_b32 s{sRB}, s{sT0}, 1
    s_add_u32 s{sRB}, s{sRB}, s{sG2}""")
    a(f"""
    v_lshrrev_b32 v{vT0}, 6, v0
    v_and_b32 v{vL}, 63, v0
    v_readfirstlane_b32 s{sWV}, v{vT0}
    s_mov_b32 s{sTSI}, 0
    v_mov_b32 v{vTS}, 0
    s_lshl_b32 s{sCB}, s{sRB}, 12
    s_add_u32 s{sCB}, s{sCB}, {CTRL}
    s_and_b32 s{sMH}, s{sWV}, 1
    s_bfe_u32 s{sKH}, s{sWV}, 0x10001
    ; ---- x0 staging addresses (used by the loader waves; computed while the kernel arguments are on their way)
    s_sub_u32 s{sU}, s{sWV}, 4                ; u = 0..3: (kh, a) for W, compute wave u for the x0 staging
    v_lshrrev_b32 v{vT0}, 3, v{vL}            ; row8
    v_and_b32 v{vT1}, 7, v{vL}
    v_lshrrev_b32 v{vT2}, 1, v{vT0}
    v_xor_b32 v{vT1}, v{vT1}, v{vT2}          ; c' ^ (row8>>1)
    v_xor_b32 v{vT2}, 4, v{vT1}
    v_mul_u32_u24 v{vT0}, {ROWB}, v{vT0}
    v_lshl_add_u32 v{vXO}, v{vT1}, 4, v{vT0}
    v_lshl_add_u32 v{vXO+1}, v{vT2}, 4, v{vT0}
    s_lshl_b32 s{sT0}, s{sRB}, 6
    s_lshl_b32 s{sT1}, s{sMH}, 5
    s_add_u32 s{sT0}, s{sT0}, s{sT1}
    s_mul_i32 s{sG}, s{sT0}, {ROWB}
    s_mul_i32 s{sT1}, s{sKH}, {6*128}
    s_add_u32 s{sG}, s{sG}, s{sT1}
    s_mul_i32 s{sM}, s{sU}, 28672
    s_add_u32 s{sM}, s{sM}, {XS}
    s_cmp_ge_u32 s{sJ}, 7
    s_cselect_b32 s{sT3}, 7, 0
    s_sub_u32 s{sT3}, s{sJ}, s{sT3}
    s_mov_b32 s{sI}, 0
    s_waitcnt lgkmcnt(0)
""")
    srd(sX0, 40, XLAYER)
    stamp(1)
    def common_srds():
        srd(sW, 42, L_ * WLAYER)
        srd(sWS, 50, WS_BYTES)
        if c.codepf:
            n_ = common_srds.n = getattr(common_srds, "n", 0) + 1
            a(f"""    ; instruction prefetch into L2: wave (id/8)*8 + w reads line number (that index) of this kernel's code
    s_getpc_b64 s[20:21]
L_pc{n_}:
    s_lshr_b32 s22, s2, 3
    s_lshl_b32 s22, s22, 3
    s_add_u32 s22, s22, s{sWV}
    s_lshl_b32 s22, s22, 6
    s_sub_u32 s20, s20, L_pc{n_} - {KNAME}
    s_subb_u32 s21, s21, 0
    s_min_u32 s22, s22, L_end - {KNAME}
    s_load_dword s3, s[20:21], s22""")
    def vdma():
        a(f"""    ; W DMA lane offsets: swizzled 16-byte chunk + j*128; rows in layer-0 order (vDMA0) and in normal order (vDMA)
    v_lshrrev_b32 v{vT0}, 3, v{vL}            ; row8
    v_and_b32 v{vT1}, 7, v{vL}
    v_bfe_u32 v{vT2}, v{vL}, 4, 1
    v_lshlrev_b32 v{vT2}, 2, v{vT2}
    v_xor_b32 v{vT1}, v{vT1}, v{vT2}
    v_lshlrev_b32 v{vT1}, 4, v{vT1}
    s_lshl_b32 s{sT0}, s{sJ}, 7
    v_add_u32 v{vT1}, s{sT0}, v{vT1}
    v_mul_u32_u24 v{vT2}, {ROWB}, v{vT0}
    v_add_u32 v{vDMA}, v{vT2}, v{vT1}
    v_and_b32 v{vT2}, 3, v{vT0}
    v_lshrrev_b32 v{vT0}, 2, v{vT0}
    v_lshl_add_u32 v{vT0}, v{vT0}, 3, v{vT2}
    v_mul_u32_u24 v{vT0}, {ROWB}, v{vT0}
    v_add_u32 v{vDMA0}, v{vT0}, v{vT1}
""")
    a(f"""
    s_cmp_ge_u32 s2, 208
    s_cbranch_scc1 L_nonloader
    s_cmp_lt_u32 s{sWV}, 4
    s_cbranch_scc1 L_nonloader
""")
    def bias_dma(sreg, val, lab):
        a(f"    s_cmp_eq_u32 s{sreg}, {val}")
        a(f"    s_cbranch_scc0 {lab}")
        srd(sBS, 44, L_ * ROWB)
        a(f"""    v_lshrrev_b32 v{vT0}, 5, v{vL}
    v_mul_u32_u24 v{vT0}, {ROWB}, v{vT0}
    v_and_b32 v{vT1}, 31, v{vL}
    v_lshlrev_b32 v{vT1}, 2, v{vT1}
    v_add_u32 v{vT0}, v{vT0}, v{vT1}
    s_lshl_b32 s{sT0}, s{sJ}, 7
    v_add_u32 v{vT0}, s{sT0}, v{vT0}""")
        for t in range(3):
            a(f"    s_mov_b32 m0, {BIAS + 256*t}")
            a(f"    s_mov_b32 s{sT1}, {2*t*ROWB}")
            a(f"    buffer_load_dword v{vT0}, s[{sBS}:{sBS+3}], s{sT1} offen lds")
        a(f"{lab}:")
    vS0, vS1 = vXO, vXO + 1
    sSB = 40
    sWP0 = 98
    SB = c.SB
    NSR = (2 if c.ssched == 'two' else 3) * SB
    def sbatch(k, nextlayer=False):
        if not c.sp: return
        b = sSB + 2 if nextlayer else sSB
        for n_ in range(SB):
            a(f"    s_load_dwordx2 s[{76+2*n_}:{77+2*n_}], s[{b}:{b+1}], {(k * SB + n_) * ROWB + 60}")
    a(f"""
L_xs:
    s_lshl_b32 s{sT0}, s{sT3}, 12
    s_add_u32 s{sT0}, s{sT0}, s{sM}
    s_lshl_b32 s{sT1}, s{sT3}, 7
    s_add_u32 s{sT1}, s{sT1}, s{sG}
""")
    for rg in range(4):
        a(f"    s_add_u32 m0, s{sT0}, {rg*1024}")
        a(f"    s_add_u32 s{sT2}, s{sT1}, {rg*8*ROWB}")
        a(f"    buffer_load_dwordx4 v{vS0 if rg % 2 == 0 else vS1}, s[{sX0}:{sX0+3}], s{sT2} offen lds")
    a(f"""
    s_add_u32 s{sT3}, s{sT3}, 1
    s_cmp_eq_u32 s{sT3}, 7
    s_cselect_b32 s{sT3}, 0, s{sT3}
    s_add_u32 s{sI}, s{sI}, 1
    s_cmp_lt_u32 s{sI}, 7
    s_cbranch_scc1 L_xs
""")
    common_srds()
    vdma()
    a(f"""
    s_mul_i32 s{sT0}, s{sKH}, 416
    s_lshl_b32 s{sT1}, s{sMH}, 2
    s_add_u32 s{sT1}, s{sT1}, s{sT0}
    s_mul_i32 s{sT1}, s{sT1}, {ROWB}
    v_add_u32 v{vDMA0}, s{sT1}, v{vDMA0}
    s_lshl_b32 s{sT1}, s{sMH}, 3
    s_add_u32 s{sT1}, s{sT1}, s{sT0}
    s_mul_i32 s{sT1}, s{sT1}, {ROWB}
    v_add_u32 v{vDMA}, s{sT1}, v{vDMA}
    ; ---- W prefix of layer 0
    s_mul_i32 s{sG}, s{sROT}, 26624
    s_mul_i32 s{sM}, s{sKH}, {P*2048}
    s_lshl_b32 s{sT1}, s{sMH}, 10
    s_add_u32 s{sM}, s{sM}, s{sT1}
""")
    for i in range(P):
        a(f"    s_add_u32 m0, s{sM}, {PRE0 + i*2048}")
        a(f"    s_add_u32 s{sT0}, s{sG}, {i*26624}")
        a(f"    buffer_load_dwordx4 v{vDMA0}, s[{sW}:{sW+3}], s{sT0} offen lds")
    a(f"""
""")
    if c.w0assist:
        a(f"""
    s_cmp_eq_u32 s{sU}, 3
    s_cbranch_scc0 L_now0t
    v_lshrrev_b32 v21, 5, v{vL}               ; K half
    v_mul_u32_u24 v21, 416, v21
    v_and_b32 v22, 31, v{vL}
    v_add_u32 v21, v21, v22
    v_mul_u32_u24 v21, {ROWB}, v21
    s_lshl_b32 s20, s{sROT}, 4
    s_add_u32 s20, s20, {P * 16 + 28}
    s_mul_i32 s20, s20, {ROWB}
    s_lshl_b32 s21, s{sJ}, 7
    s_add_u32 s20, s20, s21
    buffer_load_dword v{vDUM}, v21, s[{sW}:{sW+3}], s20 offen
L_now0t:""")
    a(f"""
""")
    if c.xt_by in ("worker", "mixed", "front1"):
        a(f"""
    v_lshrrev_b32 v21, 5, v{vL}
    v_mul_u32_u24 v21, {XMH}, v21
    v_and_b32 v22, 31, v{vL}
    v_lshl_add_u32 v21, v22, 7, v21
    s_mul_i32 s22, s{sRB}, {XRB}
    s_lshl_b32 s23, s{sJ}, 12
    s_add_u32 s22, s22, s23                   ; buffer 0
    s_add_u32 s23, s22, {XBUF}                ; buffer 1""")
    if c.xt_by == "worker":
        a(f"""    s_cmp_eq_u32 s{sU}, 1
    s_cbranch_scc0 L_noxt1
    buffer_load_dword v{vDUM}, v21, s[{sWS}:{sWS+3}], s23 offen sc1
L_noxt1:""")
    if c.hello_by == "loader":
        a(f"""
    s_load_dwordx2 s[{sE}:{sE+1}], s[50:51], s{sCB}
    s_add_u32 s{sT0}, s{sCB}, 128
    s_add_u32 s46, s50, s{sT0}
    s_addc_u32 s47, s51, 0""")
    a(f"""
    s_mul_i32 s{sT2}, s{sKH}, {KHS}
    s_lshl_b32 s{sT1}, s{sMH}, 10
    s_add_u32 s{sT2}, s{sT2}, s{sT1}
    s_add_u32 s{sMP}, s{sT2}, {SUF}
    s_mul_i32 s70, s{sKH}, {P*2048}
    s_add_u32 s70, s70, s{sT1}
    s_add_u32 s70, s70, {PRE1}                ; prefix of layer 1 goes to parity 1
    s_mov_b32 s71, {PREPAR}
    s_mul_i32 s{sT0}, s{sKH}, 416
    s_lshl_b32 s{sT1}, s{sROT}, 4
    s_add_u32 s{sT0}, s{sT0}, s{sT1}
    s_mul_i32 s{sT1}, s{sMH}, {NSR}
    s_add_u32 s{sT0}, s{sT0}, s{sT1}
    s_add_u32 s{sT0}, s{sT0}, {c.SV * 16}
    s_mul_i32 s{sT0}, s{sT0}, {ROWB}
    s_lshl_b32 s{sT1}, s{sJ}, 7
    s_add_u32 s{sT0}, s{sT0}, s{sT1}
    s_add_u32 s{sT0}, s{sT0}, {c.wstride}
    s_mov_b32 s98, s42
    s_mov_b32 s99, s43
    s_add_u32 s40, s42, s{sT0}
    s_addc_u32 s41, s43, 0
    s_add_u32 s42, s40, {c.wstride}
    s_addc_u32 s43, s41, 0
""")
    def swarm(k):
        if not (c.swarm and c.sp): return
        lst = [(l, r) for l in range(2, 6) for r in range(3)]
        lst = lst[:7] if k == 0 else lst[7:]
        cur = None
        for n_, (l, r) in enumerate(lst):
            if cur != l:
                a(f"    s_add_u32 s46, s44, {l * c.wstride}")
                a(f"    s_addc_u32 s47, s45, 0")
                cur = l
            a(f"    s_load_dwordx2 s[{76+2*n_}:{77+2*n_}], s[46:47], {r*ROWB + 60}")
    if c.swarm and c.sp:
        per_range = 2 * NSR // 3
        a(f"""
    ; share of the S rows for the warm-up: q = rb*4 + u, range = q / {per_range}, rows 3*(q % {per_range}) ...
    s_lshl_b32 s{sT0}, s{sRB}, 2
    s_add_u32 s{sT0}, s{sT0}, s{sWV}
    s_sub_u32 s{sT0}, s{sT0}, 4
    s_min_u32 s{sT0}, s{sT0}, {4 * per_range - 1}
    s_mul_i32 s{sT1}, s{sT0}, {-(-65536 // per_range)}
    s_lshr_b32 s{sT1}, s{sT1}, 16             ; range
    s_mul_i32 s{sT2}, s{sT1}, {per_range}
    s_sub_u32 s{sT0}, s{sT0}, s{sT2}
    s_mul_i32 s{sT0}, s{sT0}, 3
    s_mul_i32 s{sT1}, s{sT1}, 208
    s_add_u32 s{sT0}, s{sT0}, s{sT1}
    s_add_u32 s{sT0}, s{sT0}, {c.SV * 16}
    s_mul_i32 s{sT0}, s{sT0}, {ROWB}
    s_lshl_b32 s{sT1}, s{sJ}, 7
    s_add_u32 s{sT0}, s{sT0}, s{sT1}
    s_add_u32 s44, s{sWP0}, s{sT0}
    s_addc_u32 s45, s{sWP0+1}, 0
""")
        swarm(0)
    if c.w0assist:
        a(f"""    s_cmp_eq_u32 s{sU}, 3
    s_cbranch_scc0 L_bxw
    s_waitcnt vmcnt({P + 1})
    s_branch L_bxw2
L_bxw:
    s_waitcnt vmcnt({P})
L_bxw2:""")
    elif c.xt_by == "worker":
        a(f"""    s_cmp_eq_u32 s{sU}, 1
    s_cbranch_scc0 L_bxw
    s_waitcnt vmcnt({P + 1})
    s_branch L_bxw2
L_bxw:
    s_waitcnt vmcnt({P})
L_bxw2:""")
    else:
        a(f"    s_waitcnt vmcnt({P})")
    stamp()
    a(f"""
    s_barrier                                 ; B_x
    s_barrier                                 ; B_y
""")
    if c.swarm and c.sp: a("    s_waitcnt lgkmcnt(0)")
    if c.hello_by != "loader" and c.ssched != "two": sbatch(0)
    def suffix(vreg, lay, thr=True, phased=False, bp=None):
        a(f"    s_mul_i32 s{sG}, s{sROT}, 26624")
        a(f"    s_add_u32 s{sG}, s{sG}, {lay}")
        a(f"    s_sub_u32 s{sM}, 13, s{sROT}")
        a(f"    s_mul_i32 s{sM}, s{sM}, 26624")
        a(f"    s_add_u32 s{sM}, s{sM}, {lay}")
        for n_, i in enumerate(range(P, 26)):
            if bp is not None and n_ == bp:
                a(f"    s_waitcnt vmcnt({bp})")
                a("    s_barrier                                 ; B_p: prefix of layer 0 has landed")
                if c.hello_by == "loader":
                    a(f"""    s_cmp_eq_u32 s{sWV}, 6
    s_cbranch_scc0 L_b0
    s_waitcnt lgkmcnt(0)
    s_load_dwordx16 s[76:91], s[46:47], 0 glc
    s_load_dwordx8 s[92:99], s[46:47], 64 glc
    s_load_dwordx2 s[20:21], s[46:47], 96 glc
    s_branch L_b0d
L_b0:""")
                    sbatch(0)
                    a("L_b0d:")
            if phased and n_ == c.n1: a("    s_barrier")
            if phased and n_ == c.n1 + c.n2: a("    s_barrier")
            a(f"    s_add_u32 m0, s{sMP}, {(i-P)*2048}")
            a(f"    s_add_u32 s{sI}, s{sG if i < 13 else sM}, {(i % 13) * 26624}")
            a(f"    buffer_load_dwordx4 v{vreg}, s[{sW}:{sW+3}], s{sI} offen {'nt ' if (c.nt_last and i >= 13) else ''}lds")
            if c.lthr and thr and (c.lthr_all or n_ >= c.n1 + c.n2):
                a(f"    s_waitcnt vmcnt({c.lthr - 1})")
    sPP, sPDL = 70, 71
    def prefix_next(lay_next):
        a(f"    s_mul_i32 s{sG}, s{sROT}, 26624")
        a(f"    s_add_u32 s{sG}, s{sG}, s{lay_next}")
        for t in range(P):
            a(f"    s_add_u32 m0, s{sPP}, {t*2048}")
            a(f"    s_add_u32 s{sI}, s{sG}, {t*26624}")
            a(f"    buffer_load_dwordx4 v{vDMA}, s[{sW}:{sW+3}], s{sI} offen lds")
            if c.lthr and c.lthr_all and t + 1 < P:
                a(f"    s_waitcnt vmcnt({c.lthr - 1})")
        a(f"    s_sub_u32 s{sPP}, s{sPP}, s{sPDL}")
        a(f"    s_sub_u32 s{sPDL}, 0, s{sPDL}")
    def advance_sb():
        a(f"""    s_add_u32 s40, s40, {c.wstride}
    s_addc_u32 s41, s41, 0
    s_add_u32 s42, s42, {c.wstride}
    s_addc_u32 s43, s43, 0""")
    suffix(vDMA0, "0", False, False, bp=13 - P)
    n = 26 - P
    if c.hello_by != "loader":
        if c.sp and c.ssched != "two": a("    s_waitcnt lgkmcnt(0)")
        sbatch(1)
    if c.hello_by == "compute" and not c.swarm:
        B0 = [P] + list(c.chunks0)
        for k_, b_ in enumerate(B0):
            nxt = B0[k_ + 1] if k_ + 1 < len(B0) else 26
            a(f"    s_waitcnt vmcnt({26 - nxt})")
            if k_ == 0 or k_ + 1 == len(B0): stamp()
            a(f"    s_barrier")
    else:
        a(f"    s_waitcnt vmcnt({n - (13 - P)})")
        stamp()
        a("    s_barrier                                 ; chunk [P,13)")
        if c.hello_by == "loader" and c.sp and c.l0b1:
            a(f"    s_cmp_eq_u32 s{sWV}, 6")
            a(f"    s_cbranch_scc1 L_nob1")
            a("    s_waitcnt lgkmcnt(0)"); sbatch(1)
            a("L_nob1:")
        if c.swarm and c.sp:
            a("    s_waitcnt lgkmcnt(0)"); swarm(1)
        a(f"    s_waitcnt vmcnt({26 - 20})")
        a("    s_barrier                                 ; chunk [13,20)")
        if c.hello_by == "loader":
            a(f"""    s_cmp_eq_u32 s{sWV}, 6
        s_cbranch_scc0 L_nohe
        s_add_u32 s{sT0}, s{sE}, 8
        s_addc_u32 s{sT1}, s{sE+1}, 0
        s_and_b32 s{sT2}, s{sT1}, 0x0fffffff
        s_lshl_b32 s22, s{sXCC}, 28
        s_xor_b32 s{sT1}, s{sT1}, s22
        s_mov_b32 s22, 1
        s_mov_b32 s23, 1
        s_waitcnt lgkmcnt(0)""")
            for m_ in range(13):
                lo = 76 + 2 * m_ if m_ < 12 else 20
                a(f"""    s_cmp_eq_u32 s{lo}, s{sT0}
        s_cselect_b32 s23, s23, 0
        s_cmp_eq_u32 s{lo+1}, s{sT1}
        s_cselect_b32 s22, s22, 0
        s_and_b32 s{lo+1}, s{lo+1}, 0x0fffffff
        s_cmp_eq_u32 s{lo+1}, s{sT2}
        s_cselect_b32 s23, s23, 0""")
            a(f"""    s_sub_u32 s22, 2, s22
        s_mul_i32 s22, s22, s23
        v_mov_b32 v25, s22
        v_mov_b32 v26, {MODEW}
        ds_write_b32 v26, v25
        s_waitcnt lgkmcnt(0)
    """)
            sbatch(0)
            a("L_nohe:")
        a("    s_waitcnt vmcnt(0)")
        stamp()
        a("    s_barrier                                 ; chunk [20,26)")
    if c.pre_by == "loader":
        a("    s_barrier                                 ; B_mid")
        a(f"    s_mov_b32 s{sT3}, {c.wstride}")
        if not c.no_pre: prefix_next(sT3)
        if c.xt_by in ("worker", "mixed", "front1"):
            a(f"""    s_cmp_eq_u32 s{sWV}, 5
    s_cbranch_scc0 L_noxt0
    buffer_load_dword v{vDUM}, v21, s[{sWS}:{sWS+3}], s22 offen sc1
L_noxt0:""")
    advance_sb()
    a(f"""
    s_barrier
    s_mov_b32 s{sL}, 1
    s_mov_b32 s{sT3}, {c.wstride}
L_ld_layer:
    s_cmp_lt_u32 s{sL}, 5
    s_cselect_b32 s{sU}, 1, 0
""")
    def guarded(fn, lab):
        if not c.sp: return
        a(f"    s_cmp_eq_u32 s{sU}, 1")
        a(f"    s_cbranch_scc0 {lab}")
        fn()
        a(f"{lab}:")
    if c.ssched != "two":
        guarded(lambda: sbatch(1), "L_sA")
    if not c.no_suf: suffix(vDMA, f"s{sT3}", True, c.phased)
    elif c.phased:
        a("    s_barrier"); a("    s_barrier")
    stamp()
    if c.ssched != "two":
        guarded(lambda: (a("    s_waitcnt lgkmcnt(0)"), sbatch(2)), "L_sB")
    if c.pre_by == "loader": a(f"    s_waitcnt vmcnt({26 - P})                 ; the prefix has landed")
    a("    s_barrier                                 ; B_a")
    if c.ssched == "two":
        guarded(lambda: sbatch(1), "L_sB")
    a("    s_waitcnt vmcnt(0)")
    stamp()
    a("    s_barrier")
    a(f"    s_cmp_lt_u32 s{sL}, 4")
    a(f"    s_cselect_b32 s{sU}, 1, 0")
    guarded(lambda: (a("    s_waitcnt lgkmcnt(0)"), sbatch(0, True)), "L_sC")
    if c.pre_by == "loader":
        a("    s_barrier                                 ; B_mid")
        stamp(3)
        a(f"    s_cmp_lt_u32 s{sL}, 5")
        a(f"    s_cbranch_scc0 L_nopre")
        a(f"    s_add_u32 s{sU}, s{sT3}, {c.wstride}")
        if not c.no_pre: prefix_next(sU)
        a("L_nopre:")
        stamp(3)
    advance_sb()
    a(f"""
    s_barrier                                 ; B2
    s_add_u32 s{sL}, s{sL}, 1
    s_add_u32 s{sT3}, s{sT3}, {c.wstride}
    s_cmp_lt_u32 s{sL}, 6
    s_cbranch_scc1 L_ld_layer
""")
    dump_ts()
    a("    s_endpgm")

    sBI = 84
    sBP = 48
    def bias_load():
        a(f"    s_load_dwordx16 s[{sBI}:{sBI+15}], s[{sBP}:{sBP+1}], 0")
        a(f"    s_add_u32 s{sBP}, s{sBP}, {ROWB}")
        a(f"    s_addc_u32 s{sBP+1}, s{sBP+1}, 0")
    def bias_spread():
        a("    s_mov_b32 exec_hi, 0")
        for q in range(4):
            for d in range(2):
                a(f"    v_mov_b32 v{vBP+2*q+d}, s{sBI+4*q+d}")
        a("    s_mov_b32 exec_lo, 0")
        a("    s_mov_b32 exec_hi, -1")
        for q in range(4):
            for d in range(2):
                a(f"    v_mov_b32 v{vBP+2*q+d}, s{sBI+4*q+2+d}")
        a("    s_mov_b64 exec, -1")
    def bias_unpack(lo=0, hi=8):
        for d in range(lo, hi):
            a(f"    v_lshlrev_b32 v{vAK+2*d}, 16, v{vBP+d}")
            a(f"    v_and_b32 v{vAK+2*d+1}, 0xffff0000, v{vBP+d}")
    a("L_nonloader:")
    common_srds()
    if c.helpers:
        a(f"""
    s_cmp_ge_u32 s2, 208
    s_cbranch_scc1 L_helper
""")
    if c.pre_by == "compute": vdma()
    a(f"""
L_compute:
    s_load_dwordx2 s[{sE}:{sE+1}], s[50:51], s{sCB}
    s_lshl_b32 s{sT0}, s{sJ}, 7
    s_lshl_b32 s{sT1}, s{sKH}, 6
    s_add_u32 s{sT0}, s{sT0}, s{sT1}
    s_add_u32 s{sBP_}, s44, s{sT0}
    s_addc_u32 s{sBP_+1}, s45, 0
    s_load_dwordx16 s[84:99], s[{sBP_}:{sBP_+1}], 0
    s_load_dword s20, s[{sBP_}:{sBP_+1}], {ROWB}
    s_load_dword s21, s[{sBP_}:{sBP_+1}], {2*ROWB}
    s_load_dword s22, s[{sBP_}:{sBP_+1}], {3*ROWB}
    s_load_dword s23, s[{sBP_}:{sBP_+1}], {4*ROWB}
    s_load_dword s24, s[{sBP_}:{sBP_+1}], {5*ROWB}
    s_add_u32 s{sBP_}, s{sBP_}, {ROWB}
    s_addc_u32 s{sBP_+1}, s{sBP_+1}, 0
    s_setprio {c.prio}
""")
    if c.xt_by in ("front", "front1"):
        a(f"""
    v_lshrrev_b32 v21, 5, v{vL}
    v_mul_u32_u24 v21, {XMH}, v21
    v_and_b32 v22, 31, v{vL}
    v_lshl_add_u32 v21, v22, 7, v21
    s_mul_i32 s22, s{sRB}, {XRB}
    s_lshl_b32 s23, s{sJ}, 12
    s_add_u32 s22, s22, s23                   ; buffer 0
    s_add_u32 s23, s22, {XBUF}                ; buffer 1
    s_cmp_eq_u32 s{sWV}, 3
    s_cbranch_scc0 L_noxf1
    buffer_load_dword v{vDUM}, v21, s[{sWS}:{sWS+3}], s23 offen sc1
L_noxf1:""")
        if c.xt_by == "front":
            a(f"""    s_cmp_eq_u32 s{sWV}, 2
    s_cbranch_scc0 L_noxf0
    buffer_load_dword v{vDUM}, v21, s[{sWS}:{sWS+3}], s22 offen sc1
L_noxf0:""")
    if c.wwarm:
        a(f"""
    s_sub_u32 s{sT0}, s{sWV}, 1
    s_cmp_lt_u32 s{sT0}, {c.wwarm}
    s_cbranch_scc0 L_noww
    s_mul_i32 s{sT0}, s{sRB}, 13
    s_add_u32 s{sT0}, s{sT0}, s{sJ}
    s_mul_i32 s{sT0}, s{sT0}, {52 * 128}
    s_mul_i32 s{sT1}, s{sWV}, {c.wstride}
    s_add_u32 s20, s{sT0}, s{sT1}
    v_min_u32 v20, 51, v{vL}
    v_lshlrev_b32 v20, 7, v20
    buffer_load_dword v{vDUM}, v20, s[{sW}:{sW+3}], s20 offen
L_noww:""")
    a(f"""
    v_min_u32 v{vT0}, 51, v{vL}
    v_lshlrev_b32 v{vT0}, 3, v{vT0}
    s_add_u32 s{sT0}, s{sCB}, 2048
    v_add_u32 v{vFA}, s{sT0}, v{vT0}
    s_cmp_eq_u32 s{sWV}, 0
    s_cbranch_scc0 L_noft
    buffer_load_dword v{vDUM}, v{vFA}, s[{sWS}:{sWS+3}], 0 offen sc1
L_noft:
    s_lshl_b32 s{sT1}, s{sJ}, 2
    s_add_u32 s{sT1}, s{sT1}, s{sWV}
    s_lshl_b32 s{sT1}, s{sT1}, 3
    s_add_u32 s{sOWNF}, s{sT0}, s{sT1}
    v_min_u32 v{vT0}, 12, v{vL}
    v_lshlrev_b32 v{vT0}, 3, v{vT0}
    s_add_u32 s{sT0}, s{sCB}, 128
    v_add_u32 v{vHA}, s{sT0}, v{vT0}
""")
    srd(sOUT, 46, XLAYER)
    a(f"""
    ; ---- output address (final stores): row*1664 + j*128 + nh*64 + h*16
    s_lshl_b32 s{sT0}, s{sRB}, 6
    s_lshl_b32 s{sT1}, s{sMH}, 5
    s_add_u32 s{sT0}, s{sT0}, s{sT1}
    s_mul_i32 s{sT0}, s{sT0}, {ROWB}
    s_lshl_b32 s{sT1}, s{sJ}, 7
    s_add_u32 s{sT0}, s{sT0}, s{sT1}
    s_lshl_b32 s{sT1}, s{sKH}, 6
    s_add_u32 s{sT0}, s{sT0}, s{sT1}
    v_and_b32 v{vT0}, 31, v{vL}
    v_mul_u32_u24 v{vT0}, {ROWB}, v{vT0}
    v_lshrrev_b32 v{vT1}, 5, v{vL}
    v_lshl_add_u32 v{vT0}, v{vT1}, 4, v{vT0}
    v_add_u32 v{vOUT}, s{sT0}, v{vT0}
    v_lshlrev_b32 v{vXO}, 4, v{vL}
    v_add_u32 v{vXO+1}, 0x1000, v{vXO}
    v_add_u32 v{vXO+2}, 0x2000, v{vXO}
    v_add_u32 v{vXO+3}, 0x3000, v{vXO}
    s_mul_i32 s{sT0}, s{sRB}, {XRB}
    s_mul_i32 s{sT1}, s{sMH}, {XMH}
    s_add_u32 s{sT0}, s{sT0}, s{sT1}
    s_add_u32 s{sT0}, s{sT0}, {XBUF}
    s_lshl_b32 s{sT1}, s{sJ}, 2
    s_lshl_b32 s{sT2}, s{sKH}, 1
    s_add_u32 s{sT1}, s{sT1}, s{sT2}
    s_lshl_b32 s{sT1}, s{sT1}, 10
    s_add_u32 s{sXST}, s{sT0}, s{sT1}
""")
    if not c.helpers:
        a(f"""
    v_and_b32 v{vT1}, 15, v{vL}
    v_lshlrev_b32 v{vT1}, 7, v{vT1}
    v_bfe_u32 v{vT2}, v{vL}, 4, 1
    v_mul_u32_u24 v{vT2}, {XBUF >> 8}, v{vT2}
    v_lshl_add_u32 v{vT1}, v{vT2}, 8, v{vT1}
    s_sub_u32 s{sT3}, s{sXST}, {XBUF}
    buffer_load_dword v{vDUM}, v{vT1}, s[{sWS}:{sWS+3}], s{sT3} offen sc1
""")
    a(f"""
    s_mul_i32 s{sT1}, s{sKH}, 26
    s_add_u32 s{sT2}, s{sT1}, s{sROT}
    s_lshl_b32 s{sT2}, s{sT2}, 10
    s_add_u32 s{sXA}, s{sT0}, s{sT2}
    s_add_u32 s{sT2}, s{sT1}, 13
    s_sub_u32 s{sT2}, s{sT2}, s{sROT}
    s_lshl_b32 s{sT2}, s{sT2}, 10
    s_add_u32 s{sXB}, s{sT0}, s{sT2}
    s_mov_b32 s{sXD}, {-XBUF & 0xffffffff}
    s_mov_b32 s{sXD2}, {-XBUF & 0xffffffff}
    ; ---- W prefix bookkeeping for layer 1 (loaded at the end of layer 0)
    s_mul_i32 s{sT0}, s{sKH}, 416
    s_lshl_b32 s{sT1}, s{sROT}, 4
    s_add_u32 s{sT0}, s{sT0}, s{sT1}
    s_lshl_b32 s{sT1}, s{sMH}, 3
    s_add_u32 s{sT0}, s{sT0}, s{sT1}
    s_mul_i32 s{sWP}, s{sT0}, {ROWB}
    s_add_u32 s{sWP}, s{sWP}, {c.wstride}
    s_mul_i32 s{sMP}, s{sKH}, {P*2048}
    s_lshl_b32 s{sT1}, s{sMH}, 10
    s_add_u32 s{sMP}, s{sMP}, s{sT1}
    s_add_u32 s{sMP}, s{sMP}, {PRE1}
    s_mov_b32 s{sPD}, {PREPAR}
    v_lshrrev_b32 v{vT0}, 5, v{vL}            ; h
    v_lshlrev_b32 v{vT0}, 2, v{vT0}
    v_bfe_u32 v{vT1}, v{vL}, 2, 2             ; r
    v_add_u32 v{vT0}, v{vT0}, v{vT1}
    v_lshlrev_b32 v{vT0}, 7, v{vT0}           ; row*128
    v_bfe_u32 v{vT1}, v{vL}, 4, 1             ; nb
    v_lshlrev_b32 v{vT1}, 1, v{vT1}
    v_bfe_u32 v{vT2}, v{vL}, 1, 1             ; c>>1
    v_add_u32 v{vT1}, v{vT1}, v{vT2}
    v_bfe_u32 v{vT2}, v{vL}, 3, 1             ; (r>>1)&1
    v_lshlrev_b32 v{vT2}, 2, v{vT2}
    v_xor_b32 v{vT1}, v{vT1}, v{vT2}
    v_lshlrev_b32 v{vT1}, 4, v{vT1}
    v_add_u32 v{vT0}, v{vT0}, v{vT1}
    v_and_b32 v{vT1}, 1, v{vL}
    v_lshlrev_b32 v{vT1}, 3, v{vT1}
    v_add_u32 v{vT0}, v{vT0}, v{vT1}
    s_lshl_b32 s{sT0}, s{sKH}, 6
    v_xor_b32 v{vT1}, s{sT0}, v{vT0}          ; keep
    v_xor_b32 v{vT2}, 64, v{vT1}              ; send
    s_mul_i32 s{sT0}, s{sKH}, {P*2048}
    v_add_u32 v{vAPK}, s{sT0}, v{vT1}
    v_add_u32 v{vAPS}, s{sT0}, v{vT2}
    s_mul_i32 s{sT0}, s{sKH}, {KHS}
    s_add_u32 s{sT0}, s{sT0}, {SUF}
    v_add_u32 v{vASK}, s{sT0}, v{vT1}
    v_add_u32 v{vASS}, s{sT0}, v{vT2}
    s_lshl_b32 s{sT0}, s{sWV}, 12
    s_add_u32 s{sT0}, s{sT0}, {RED}
    v_add_u32 v{vRW}, s{sT0}, v{vXO}
    s_xor_b32 s{sT1}, s{sWV}, 2
    s_lshl_b32 s{sT1}, s{sT1}, 12
    s_add_u32 s{sT1}, s{sT1}, {RED}
    v_add_u32 v{vRR}, s{sT1}, v{vXO}
    v_lshrrev_b32 v{vT0}, 5, v{vL}
    v_lshlrev_b32 v{vT3}, 3, v{vT0}           ; h*8
    v_and_b32 v{vT0}, 31, v{vL}               ; m
    v_lshrrev_b32 v{vT1}, 3, v{vT0}
    v_lshlrev_b32 v{vT1}, 10, v{vT1}          ; rg*1024
    v_and_b32 v{vT2}, 7, v{vT0}
    v_lshl_add_u32 v{vT1}, v{vT2}, 7, v{vT1}  ; + row8*128
    v_bfe_u32 v{vT2}, v{vT0}, 1, 3            ; f(m)
    s_cmp_ge_u32 s{sJ}, 7
    s_cselect_b32 s{sT0}, 1, 0
    s_mul_i32 s{sT1}, s{sT0}, 6
    s_sub_u32 s{sT1}, s{sJ}, s{sT1}
    s_lshl_b32 s{sT1}, s{sT1}, 12
    s_lshl_b32 s{sT0}, s{sT0}, 1
    s_add_u32 s{sT0}, s{sT0}, s{sMH}
    s_mul_i32 s{sT0}, s{sT0}, 28672
    s_add_u32 s{sT0}, s{sT0}, s{sT1}
    s_add_u32 s{sT0}, s{sT0}, {XS}
    s_lshl_b32 s{sT1}, s{sKH}, 2
    v_add3_u32 v{vT3}, v{vT3}, v{vT1}, s{sT0}
    v_xor_b32 v{vT0}, s{sT1}, v{vT2}          ; (4*nh) ^ f(m)
""")
    for q in range(4):
        a(f"    v_xor_b32 v{vPART+8+q}, {q}, v{vT0}")
        a(f"    v_lshl_add_u32 v{vPART+8+q}, v{vPART+8+q}, 4, v{vT3}")
    a(f"""
    v_lshrrev_b32 v{vT0}, 5, v{vL}
    v_xor_b32 v{vT2}, v{vT2}, v{vT0}          ; f(m) ^ h
    s_mul_i32 s{sT3}, s{sWV}, 28672
    s_add_u32 s{sT3}, s{sT3}, {XS}
    s_mul_i32 s{sI}, s{sKH}, 26
    s_mul_i32 s{sM}, s{sKH}, 6
""")
    for seg in range(2):
        if seg == 0:
            a(f"    s_add_u32 s{sG}, s{sI}, s{sROT}")
        else:
            a(f"    s_add_u32 s{sG}, s{sI}, 13")
            a(f"    s_sub_u32 s{sG}, s{sG}, s{sROT}")
        for x in range(4):
            r = vPART + seg * 4 + x
            a(f"    s_add_u32 s{sT0}, s{sG}, {x}")
            a(f"    s_and_b32 s{sT1}, s{sT0}, 3")
            a(f"    s_lshl_b32 s{sT1}, s{sT1}, 1")
            a(f"    s_lshr_b32 s{sT0}, s{sT0}, 2")
            a(f"    s_sub_u32 s{sT0}, s{sT0}, s{sM}")
            a(f"    s_lshl_b32 s{sT0}, s{sT0}, 12")
            a(f"    s_add_u32 s{sT0}, s{sT0}, s{sT3}")
            a(f"    v_xor_b32 v{r}, s{sT1}, v{vT2}")
            a(f"    v_lshl_add_u32 v{r}, v{r}, 4, v{vT1}")
            a(f"    v_add_u32 v{r}, s{sT0}, v{r}")
    a(f"""
    s_waitcnt lgkmcnt(0)
    s_add_u32 s{sTA}, s{sE}, 1
    s_addc_u32 s{sTA+1}, s{sE+1}, 0
    s_add_u32 s{sTB}, s{sE}, 2
    s_addc_u32 s{sTB+1}, s{sE+1}, 0
    s_cmp_eq_u32 s{sWV}, 0
    s_cbranch_scc0 L_nohello
    s_add_u32 s{sT0}, s{sE}, 8
    s_addc_u32 s{sT1}, s{sE+1}, 0
    s_lshl_b32 s{sT2}, s{sXCC}, 28
    s_xor_b32 s{sT1}, s{sT1}, s{sT2}
    v_mov_b32 v{vPOLL}, s{sT0}
    v_mov_b32 v{vPOLL+1}, s{sT1}
    s_lshl_b32 s{sT2}, s{sJ}, 3
    s_add_u32 s{sT2}, s{sT2}, s{sCB}
    s_add_u32 s{sT2}, s{sT2}, 128
    s_mov_b64 exec, 1
    buffer_store_dwordx2 v[{vPOLL}:{vPOLL+1}], off, s[{sWS}:{sWS+3}], s{sT2} sc1
    s_mov_b64 exec, -1
L_nohello:
""")
    if c.w0assist:
        a(f"""
    s_mul_i32 s{sT0}, s{sKH}, 416
    s_lshl_b32 s{sT1}, s{sROT}, 4
    s_add_u32 s{sT0}, s{sT0}, s{sT1}
    s_mul_i32 s{sT1}, s{sMH}, 14
    s_add_u32 s{sT0}, s{sT0}, s{sT1}
    s_add_u32 s{sT0}, s{sT0}, {P * 16}
    s_mul_i32 s{sT0}, s{sT0}, {ROWB}
    s_lshl_b32 s{sT1}, s{sJ}, 7
    s_add_u32 s{sT0}, s{sT0}, s{sT1}
    s_add_u32 s44, s42, s{sT0}
    s_addc_u32 s45, s43, 0
""")
        for n_ in range(14):
            if n_ == 7: a("    s_waitcnt lgkmcnt(0)")
            a(f"    s_load_dwordx2 s[{20+2*(n_%2)}:{21+2*(n_%2)}], s[44:45], {n_*ROWB + 60}")
    elif c.vwarm:
        nrows = c.SV * 16
        per_rb = nrows // 4
        a(f"""
    s_lshr_b32 s{sT0}, s{sRB}, 2
    s_mul_i32 s{sT0}, s{sT0}, 208             ; range start row: 0, 208, 416, 624
    s_and_b32 s{sT1}, s{sRB}, 3
    s_mul_i32 s{sT1}, s{sT1}, {per_rb}
    s_add_u32 s{sT0}, s{sT0}, s{sT1}
    s_mul_i32 s{sT1}, s{sWV}, {per_rb // 4}
    s_add_u32 s{sT0}, s{sT0}, s{sT1}
    s_mul_i32 s{sT0}, s{sT0}, {ROWB}
    s_lshl_b32 s{sT1}, s{sJ}, 7
    s_add_u32 s{sT0}, s{sT0}, s{sT1}
    s_add_u32 s{sT0}, s{sT0}, {c.wstride}
    s_add_u32 s44, s42, s{sT0}
    s_addc_u32 s45, s43, 0
""")
        nper = per_rb // 4
        vw = [(l, r) for l in range(1, 6) for r in range(nper)][:14]
        def vwarm_batch(k):
            cur = None
            for n_, (l, r) in enumerate(vw[7*k:7*k+7]):
                if cur != l:
                    a(f"    s_add_u32 s46, s44, {(l-1) * c.wstride}")
                    a(f"    s_addc_u32 s47, s45, 0")
                    cur = l
                a(f"    s_load_dwordx2 s[{20+2*(n_%2)}:{21+2*(n_%2)}], s[46:47], {r*ROWB + 60}")
        vwarm_batch(0)
        if c.vw2 == 'wait':
            a("    s_waitcnt lgkmcnt(0)")
            vwarm_batch(1)
    stamp()
    a("    s_barrier                                 ; B_x: staged x0, prefix(0) and biases have landed")
    stamp()
    for q in range(4):
        a(f"    ds_read_b64 v[{vP+2*q}:{vP+2*q+1}], v{vPART+8+q}")
    for i in range(26):
        seg, ii = (0, i) if i < 13 else (1, i - 13)
        a(f"    ds_read_b128 v[{vXF+4*i}:{vXF+4*i+3}], v{vPART + seg*4 + (ii & 3)} offset:{(ii >> 2) * 4096}")
        if i in (9, 17):
            a("    s_waitcnt lgkmcnt(6)")
    a("    s_waitcnt lgkmcnt(0)")
    a("    s_barrier")
    if c.vwarm and not c.w0assist and c.vw2 == 'after_by': vwarm_batch(1)
    stamp()
    for d in range(8):
        a(f"    v_lshlrev_b32 v{vX0F+2*d}, 16, v{vP+d}")
        a(f"    v_and_b32 v{vX0F+2*d+1}, 0xffff0000, v{vP+d}")
    bias_spread()
    bias_unpack()
    for r in range(16):
        a(f"    v_mov_b32 v{vXR+r}, v{vX0F+r}")
    a(f"    s_mov_b32 s{sL}, 0")
    a("    s_barrier                                 ; B_p: prefix of layer 0 has landed")
    stamp()

    def xload(i):
        if c.no_x:
            a("    s_nop 0"); return
        seg = sXA if i < 13 else sXB
        ii = i % 13
        a(f"    buffer_load_dwordx4 v[{vXF+4*i}:{vXF+4*i+3}], v{vXO+(ii>>2)}, s[{sWS}:{sWS+3}], s{seg} offen offset:{(ii&3)*1024} sc1")
    def rd(i, which):
        if c.no_w: return
        st = vWF + 8 * (i % nsets)
        if i < P: k, s_, off = vAPK, vAPS, i * 2048
        else: k, s_, off = vASK, vASS, (i - P) * 2048
        if which == "s":
            a(f"    ds_read_b64_tr_b16 v[{st}:{st+1}], v{s_} offset:{off}")
            a(f"    ds_read_b64_tr_b16 v[{st+2}:{st+3}], v{s_} offset:{off+1024}")
        else:
            a(f"    ds_read_b64_tr_b16 v[{st+4}:{st+5}], v{k} offset:{off}")
            a(f"    ds_read_b64_tr_b16 v[{st+6}:{st+7}], v{k} offset:{off+1024}")
    def pref_sched(i):
        if c.presched == "spread":
            t = i - (26 - P)
            return [t] if 0 <= t < P else []
        k = i - (26 - D)
        if k < 0: return []
        per_ = -(-P // D)
        return [t for t in range(k * per_, min(P, (k + 1) * per_))]
    def kloop(first):
        ops = []
        if first:
            for i in range(PF):
                rd(i, "s"); rd(i, "k")
        else:
            xload(0); ops.append(("x", 0))
            rd(0, "s"); rd(0, "k")
            xload(1); ops.append(("x", 1))
            rd(1, "s"); rd(1, "k")
            nrest = D - 2
            cuts = [8 * k // nrest for k in range(nrest + 1)]
            for k in range(nrest):
                bias_unpack(cuts[k], cuts[k + 1])
                xload(2 + k); ops.append(("x", 2 + k))
        bars = (([P] + list(c.chunks0)) if (c.hello_by == 'compute' and not c.swarm) else [P, 13, 20]) if first else [P]
        assert P < 13
        marks = [0, 1, 2, 4, 8, 12, 16, 20, 25]
        for i in range(26):
            a(f"    ; ---- step {i}")
            if TS == 4 and not first and i in marks:
                a(f"    s_memtime s[{80 + 2*marks.index(i)}:{81 + 2*marks.index(i)}]")
            young = sum(4 for t in range(i + 1, min(i + PF - 1, 25) + 1))
            if first:
                a(f"    s_waitcnt lgkmcnt({young})")
            else:
                nv = len(ops) - 1 - ops.index(("x", i))
                a(f"    s_waitcnt vmcnt({nv}) lgkmcnt({young})")
            st = vWF + 8 * (i % nsets)
            xf = vXF + 4 * i
            cs = "0" if i == 0 else f"v[{vAS}:{vAS+15}]"
            a(f"    v_mfma_f32_32x32x16_bf16 v[{vAS}:{vAS+15}], v[{st}:{st+3}], v[{xf}:{xf+3}], {cs}")
            if not first and i == 1:
                a(f"""    s_add_u32 s{sTA}, s{sTA}, 1
    s_addc_u32 s{sTA+1}, s{sTA+1}, 0""")
            if not first and i == 2:
                a(f"""    s_add_u32 s{sTB}, s{sTB}, 1
    s_addc_u32 s{sTB+1}, s{sTB+1}, 0""")
            if i + PF in bars:
                a("    s_barrier")
            if first and i == c.hello_step and c.hello_by != 'loader':
                a(f"    buffer_load_dwordx2 v[{vPOLL}:{vPOLL+1}], v{vHA}, s[{sWS}:{sWS+3}], 0 offen sc1")
            if not first and i + D < 26:
                xload(i + D); ops.append(("x", i + D))
            if c.pre_by == "loader":
                if i == c.mid_step: a("    s_barrier                                 ; B_mid: the x loads are all issued")
                if i == c.prog_step and c.prog_at == "mid":
                    lab = "L_noprogA" if first else "L_noprogB"
                    a(f"""    s_or_b32 s{sT0}, s{sJ}, s{sWV}
    s_cmp_eq_u32 s{sT0}, 0
    s_cbranch_scc0 {lab}
    v_mov_b32 v{vPOL2}, s{sTA}
    v_mov_b32 v{vPOL2+1}, s{sTA+1}
    s_add_u32 s{sT0}, s{sCB}, 3072
    buffer_store_dwordx2 v[{vPOL2}:{vPOL2+1}], off, s[{sWS}:{sWS+3}], s{sT0}
{lab}:""")
            else:
                for t in ([] if c.no_pre else pref_sched(i)):
                    a(f"    s_add_u32 m0, s{sMP}, {t*2048}")
                    a(f"    s_add_u32 s{sT0}, s{sWP}, {t*26624}")
                    a(f"    buffer_load_dwordx4 v{vDMA}, s[{sW}:{sW+3}], s{sT0} offen lds")
                    ops.append(("w", t))
            if i + PF < 26: rd(i + PF, "s")
            a(f"    v_mfma_f32_32x32x16_bf16 v[{vAK}:{vAK+15}], v[{st+4}:{st+7}], v[{xf}:{xf+3}], v[{vAK}:{vAK+15}]")
            if i + PF < 26: rd(i + PF, "k")
        return len([o for o in ops if o[0] == "w"])
    npre = kloop(True)
    if c.hello_by == "loader":
        a(f"""    v_mov_b32 v{vT0}, {MODEW}
    ds_read_b32 v{vT1}, v{vT0}
    s_waitcnt lgkmcnt(0)
    v_readfirstlane_b32 s{sMODE}, v{vT1}""")
        a(f"""
    s_cmp_eq_u32 s{sMODE}, 0
    s_cbranch_scc1 L_hello_slow
    s_and_b32 s{sMODE}, s{sMODE}, {0 if c.force_slow else 1}
    s_branch L_tail
L_hello_slow:
    buffer_load_dwordx2 v[{vPOLL}:{vPOLL+1}], v{vHA}, s[{sWS}:{sWS+3}], 0 offen sc1""")
    a(f"""
    s_add_u32 s{sT0}, s{sE}, 8
    s_addc_u32 s{sT1}, s{sE+1}, 0
    s_mov_b32 s{sSPIN}, 0
    s_waitcnt vmcnt({0 if c.hello_by == "loader" else npre})
    s_and_b32 s{sT2}, s{sT1}, 0x0fffffff
    s_lshl_b32 s{sT3}, s{sXCC}, 28
    s_xor_b32 s{sT3}, s{sT1}, s{sT3}
L_hello:
    v_and_b32 v{vT0}, 0x0fffffff, v{vPOLL+1}
    v_cmp_eq_u32 vcc, s{sT0}, v{vPOLL}
    v_cmp_eq_u32 s[{sMK}:{sMK+1}], s{sT2}, v{vT0}
    s_and_b64 vcc, vcc, s[{sMK}:{sMK+1}]
    s_cmp_eq_u64 vcc, -1
    s_cbranch_scc1 L_hello_ok
    s_add_u32 s{sSPIN}, s{sSPIN}, 1
    s_cmp_gt_u32 s{sSPIN}, {c.spin_max}
    s_cbranch_scc1 L_end
    buffer_load_dwordx2 v[{vPOLL}:{vPOLL+1}], v{vHA}, s[{sWS}:{sWS+3}], 0 offen sc1
    s_waitcnt vmcnt(0)
    s_branch L_hello
L_hello_ok:
    v_cmp_eq_u32 vcc, s{sT3}, v{vPOLL+1}
    s_cmp_eq_u64 vcc, -1
    s_cselect_b32 s{sMODE}, {0 if c.force_slow else 1}, 0
    s_branch L_tail
""")
    assert sT1 == sT0 + 1 and sT0 % 2 == 0
    a("L_layer2:")
    stamp()
    kloop(False)
    if TS == 4:
        a("    s_memtime s[98:99]")
        a("    s_waitcnt lgkmcnt(0)")
        for k in range(10):
            a(f"    s_mov_b32 m0, s{sTSI}")
            a(f"    s_nop 0")
            a(f"    v_writelane_b32 v{vTS}, s{80+2*k}, m0")
            a(f"    s_add_u32 s{sTSI}, s{sTSI}, 1")
    a("L_tail:")
    if c.amp and c.amp[0] == "l0k":
        a(f"""    s_cmp_eq_u32 s{sL}, 0
    s_cbranch_scc0 L_amp2
    s_memtime s[26:27]
    s_waitcnt lgkmcnt(0)
    s_sub_u32 s25, s26, s100
L_amp2:""")
    if TS in (2, 3):
        a("    s_nop 15")
        stamp()
    a(f"    v_mov_b32 v{vFV}, s{sTA}")
    a(f"    v_mov_b32 v{vFV+1}, s{sTA+1}")
    a("    s_nop 8")
    for q in range(4):
        a(f"    ds_write_b128 v{vRW}, v[{vAS+4*q}:{vAS+4*q+3}] offset:{q*1024}")
    a("    s_waitcnt lgkmcnt(0)")
    a("    s_barrier                                 ; B2")
    stamp(3)
    for q in range(4):
        a(f"    ds_read_b128 v[{vPART+4*q}:{vPART+4*q+3}], v{vRR} offset:{q*1024}")
    def epi(q):
        a(f"    s_waitcnt lgkmcnt({3-q})")
        for p in range(2):
            r = 4 * q + 2 * p
            a(f"    v_pk_add_f32 v[{vAK+r}:{vAK+r+1}], v[{vAK+r}:{vAK+r+1}], v[{vPART+r}:{vPART+r+1}]")
        for p in range(2):
            r = 4 * q + 2 * p
            a(f"    v_pk_fma_f32 v[{vAK+r}:{vAK+r+1}], v[{vX0F+r}:{vX0F+r+1}], v[{vAK+r}:{vAK+r+1}], v[{vXR+r}:{vXR+r+1}]")
        for p in range(2):
            r = 4 * q + 2 * p
            a(f"    v_cvt_pk_bf16_f32 v{vP+2*q+p}, v{vAK+r}, v{vAK+r+1}")
    a(f"""
    s_cmp_eq_u32 s{sL}, 5
    s_cbranch_scc1 L_final
    s_cmp_eq_u32 s{sMODE}, 0
    s_cbranch_scc1 L_st_slow
""")
    epi(0); epi(1)
    a(f"    buffer_store_dwordx4 v[{vP}:{vP+3}], v{vXO}, s[{sWS}:{sWS+3}], s{sXST} offen")
    epi(2); epi(3)
    a(f"    buffer_store_dwordx4 v[{vP+4}:{vP+7}], v{vXO}, s[{sWS}:{sWS+3}], s{sXST} offen offset:1024")
    if c.phased: a("    s_barrier                                 ; B_s")
    stamp(3)
    def unpack_res():
        for d in range(8):
            a(f"    v_lshlrev_b32 v{vXR+2*d}, 16, v{vP+d}")
            a(f"    v_and_b32 v{vXR+2*d+1}, 0xffff0000, v{vP+d}")
    bias_load()
    unpack_res()
    a(f"""
    s_waitcnt vmcnt(0)
    buffer_store_dwordx2 v[{vFV}:{vFV+1}], off, s[{sWS}:{sWS+3}], s{sOWNF}
    s_branch L_st_done
L_st_slow:
""")
    epi(0); epi(1); epi(2); epi(3)
    a(f"""
    buffer_store_dwordx4 v[{vP}:{vP+3}], v{vXO}, s[{sWS}:{sWS+3}], s{sXST} offen sc1
    buffer_store_dwordx4 v[{vP+4}:{vP+7}], v{vXO}, s[{sWS}:{sWS+3}], s{sXST} offen offset:1024 sc1
""")
    if c.phased: a("    s_barrier                                 ; B_s")
    stamp(3)
    bias_load()
    unpack_res()
    a(f"""
    s_waitcnt vmcnt(0)
    buffer_store_dwordx2 v[{vFV}:{vFV+1}], off, s[{sWS}:{sWS+3}], s{sOWNF} sc1
L_st_done:
""")
    stamp()
    if c.onepoll:
        a(f"""
    s_cmp_eq_u32 s{sWV}, 0
    s_cbranch_scc0 L_nopoll1""")
    a(f"""
    buffer_load_dwordx2 v[{vPOLL}:{vPOLL+1}], v{vFA}, s[{sWS}:{sWS+3}], 0 offen sc1
L_nopoll1:
    {"s_barrier                                 ; B_f" if c.phased else ""}
""")
    def progress(lab):
        a(f"""    s_or_b32 s{sT0}, s{sJ}, s{sWV}
    s_cmp_eq_u32 s{sT0}, 0
    s_cbranch_scc0 {lab}
    s_add_u32 s{sT0}, s{sCB}, 3072
    buffer_store_dwordx2 v[{vFV}:{vFV+1}], off, s[{sWS}:{sWS+3}], s{sT0}
{lab}:""")
    if c.prog_at == "end": progress("L_noprog")
    a(f"""
    s_add_u32 s{sL}, s{sL}, 1
    s_cmp_eq_u32 s{sL}, 1
    s_cbranch_scc1 L_keep_xa
    s_add_u32 s{sXA}, s{sXA}, s{sXD}
    s_add_u32 s{sXB}, s{sXB}, s{sXD}
    s_sub_u32 s{sXD}, 0, s{sXD}
L_keep_xa:
    s_add_u32 s{sXST}, s{sXST}, s{sXD2}
    s_sub_u32 s{sXD2}, 0, s{sXD2}
    s_add_u32 s{sWP}, s{sWP}, {c.wstride}
    s_sub_u32 s{sMP}, s{sMP}, s{sPD}
    v_add_u32 v{vAPK}, s{sPD}, v{vAPK}
    v_add_u32 v{vAPS}, s{sPD}, v{vAPS}
    s_sub_u32 s{sPD}, 0, s{sPD}
    s_mov_b32 s{sSPIN}, 0
""")
    a("    s_waitcnt lgkmcnt(0)")
    bias_spread()
    if c.onepoll:
        a(f"""
    s_cmp_eq_u32 s{sWV}, 0
    s_cbranch_scc0 L_ready""")
    if c.poll2:
        a(f"""L_poll:
    buffer_load_dwordx2 v[{vPOL2}:{vPOL2+1}], v{vFA}, s[{sWS}:{sWS+3}], 0 offen sc1
    s_waitcnt vmcnt(1)
    v_cmp_eq_u64 vcc, s[{sTA}:{sTA+1}], v[{vPOLL}:{vPOLL+1}]
    v_cmp_eq_u64 s[{sMK}:{sMK+1}], s[{sTB}:{sTB+1}], v[{vPOLL}:{vPOLL+1}]
    s_or_b64 vcc, vcc, s[{sMK}:{sMK+1}]
    s_cmp_eq_u64 vcc, -1
    s_cbranch_scc1 L_ready
    buffer_load_dwordx2 v[{vPOLL}:{vPOLL+1}], v{vFA}, s[{sWS}:{sWS+3}], 0 offen sc1
    s_waitcnt vmcnt(1)
    v_cmp_eq_u64 vcc, s[{sTA}:{sTA+1}], v[{vPOL2}:{vPOL2+1}]
    v_cmp_eq_u64 s[{sMK}:{sMK+1}], s[{sTB}:{sTB+1}], v[{vPOL2}:{vPOL2+1}]
    s_or_b64 vcc, vcc, s[{sMK}:{sMK+1}]
    s_cmp_eq_u64 vcc, -1
    s_cbranch_scc1 L_ready
    s_add_u32 s{sSPIN}, s{sSPIN}, 1
    s_cmp_gt_u32 s{sSPIN}, {c.spin_max}
    s_cbranch_scc0 L_poll
    s_endpgm
""")
    else:
        a(f"""L_poll:
    s_waitcnt vmcnt(0)
    v_cmp_eq_u64 vcc, s[{sTA}:{sTA+1}], v[{vPOLL}:{vPOLL+1}]
    v_cmp_eq_u64 s[{sMK}:{sMK+1}], s[{sTB}:{sTB+1}], v[{vPOLL}:{vPOLL+1}]
    s_or_b64 vcc, vcc, s[{sMK}:{sMK+1}]
    s_cmp_eq_u64 vcc, -1
    s_cbranch_scc1 L_ready
    buffer_load_dwordx2 v[{vPOLL}:{vPOLL+1}], v{vFA}, s[{sWS}:{sWS+3}], 0 offen sc1
    s_add_u32 s{sSPIN}, s{sSPIN}, 1
    s_cmp_gt_u32 s{sSPIN}, {c.spin_max}
    s_cbranch_scc0 L_poll
    s_endpgm
""")
    a(f"""L_ready:
""")
    if c.amp and c.amp[0] == "start":
        a(f"""    s_cmp_eq_u32 s{sL}, 1
    s_cbranch_scc0 L_amp1
    s_memtime s[26:27]
    s_waitcnt lgkmcnt(0)
    s_sub_u32 s25, s26, s100
L_amp1:""")
    stamp(1)
    a(f"""
    s_barrier                                 ; B_a
    s_branch L_layer2
L_final:
""")
    epi(0); epi(1); epi(2); epi(3)
    a(f"""
    s_nop 1
    v_permlane32_swap_b32 v{vP}, v{vP+2}
    v_permlane32_swap_b32 v{vP+1}, v{vP+3}
    v_permlane32_swap_b32 v{vP+4}, v{vP+6}
    v_permlane32_swap_b32 v{vP+5}, v{vP+7}
""")
    if c.amp and c.amp[0] == "fin":
        a("    s_memtime s[100:101]\n    s_waitcnt lgkmcnt(0)")
    a(f"""
    buffer_store_dwordx4 v[{vP}:{vP+3}], v{vOUT}, s[{sOUT}:{sOUT+3}], 0 offen
    buffer_store_dwordx4 v[{vP+4}:{vP+7}], v{vOUT}, s[{sOUT}:{sOUT+3}], 0 offen offset:32
""")
    if c.amp and c.amp[0] == "fin":
        a("    s_waitcnt vmcnt(0)\n    s_memtime s[26:27]\n    s_waitcnt lgkmcnt(0)\n    s_sub_u32 s25, s26, s100")
    a(f"""
    s_or_b32 s{sT0}, s{sJ}, s{sWV}
    s_cmp_eq_u32 s{sT0}, 0
    s_cbranch_scc0 L_noepoch
    s_add_u32 s{sT0}, s{sE}, 16
    s_addc_u32 s{sT1}, s{sE+1}, 0
    v_mov_b32 v{vFV}, s{sT0}
    v_mov_b32 v{vFV+1}, s{sT1}
    s_mov_b64 exec, 1
    buffer_store_dwordx2 v[{vFV}:{vFV+1}], off, s[{sWS}:{sWS+3}], s{sCB} sc1
    s_mov_b64 exec, -1
L_noepoch:
""")
    if c.amp:
        if c.amp[0] in ("total", "totalrt"):
            a(("    s_memtime s[26:27]" if c.amp[0] == "total" else "    s_memrealtime s[26:27]") + """
    s_waitcnt lgkmcnt(0)
    s_sub_u32 s25, s26, s100""")
        tm = "s_memrealtime" if c.amp[0] == "totalrt" else "s_memtime"
        a(f"""    s_cmp_eq_u32 s2, 0
    s_cbranch_scc0 L_amp9
    s_mul_i32 s25, s25, {c.amp[1]}
    {tm} s[80:81]
    s_waitcnt lgkmcnt(0)
L_ampspin:
    {tm} s[82:83]
    s_waitcnt lgkmcnt(0)
    s_sub_u32 s82, s82, s80
    s_cmp_lt_u32 s82, s25
    s_cbranch_scc1 L_ampspin
L_amp9:""")
    if c.exp_delay or c.exp_rt:
        ins = "s_memtime" if c.exp_delay else "s_memrealtime"
        a(f"""
    {ins} s[80:81]
    s_waitcnt lgkmcnt(0)
L_expd:
    {ins} s[82:83]
    s_waitcnt lgkmcnt(0)
    s_sub_u32 s82, s82, s80
    s_cmp_lt_u32 s82, {c.exp_delay or c.exp_rt}
    s_cbranch_scc1 L_expd
""")
    stamp(1); dump_ts()
    a("    s_endpgm")

    if c.helpers:
        HPR = (c.SV * 16 + (2 * NSR if c.sp else 0)) if c.hp is None else c.hp * 16
        HP = HPR // 16
        nrow = 208 - HPR
        nline = nrow * 13
        tot = 4 * nline
        nins = (tot + 63) // 64
        cdelta = HPR * ROWB
        NK = -(-nins // 48)
        HF = 1 if ((c.h0 == 'prefix' or c.w0assist) and c.hfirst == 0) else c.hfirst
        a(f"""
L_helper:
""")
        if c.probe:
            a(f"""
    s_cmp_eq_u32 s2, 208
    s_cbranch_scc0 L_noprobe
    s_cmp_eq_u32 s{sWV}, 0
    s_cbranch_scc0 L_noprobe
    s_mov_b32 s20, {c.probe_off + 16384}
    buffer_load_dword v30, off, s[{sW}:{sW+3}], s20
    s_waitcnt vmcnt(0)
    s_mov_b32 s20, {c.probe_off}
    s_memtime s[22:23]
    s_waitcnt lgkmcnt(0)
    buffer_load_dword v30, off, s[{sW}:{sW+3}], s20
    s_waitcnt vmcnt(0)
    s_memtime s[24:25]
    s_waitcnt lgkmcnt(0)
    s_sub_u32 s24, s24, s22
    s_mul_i32 s24, s24, {c.probe}
L_pspin:
    s_memtime s[26:27]
    s_waitcnt lgkmcnt(0)
    s_sub_u32 s26, s26, s22
    s_cmp_lt_u32 s26, s24
    s_cbranch_scc1 L_pspin
    s_endpgm
L_noprobe:""")
        a(f"""
    ; L2 prefetch for the workers of this die (placement assumed for speed only): one dword per 128-byte line
    s_sub_u32 s{sT0}, s2, 208
    s_and_b32 s{sT1}, s{sT0}, 7
    s_lshr_b32 s{sT0}, s{sT0}, 3
    s_lshl_b32 s{sT0}, s{sT0}, 3
    s_add_u32 s{sT0}, s{sT0}, s{sWV}          ; g = 0..47
    s_lshl_b32 s{sCB}, s{sT1}, 13
    s_add_u32 s{sCB}, s{sCB}, {CTRL}
    s_load_dwordx2 s[{sE}:{sE+1}], s[50:51], s{sCB}
    s_add_u32 s{sOWNF}, s{sCB}, 3072
""")
        if c.tlbwarm:
            a(f"""
    s_cmp_eq_u32 s{sWV}, 7
    s_cbranch_scc0 L_notlb
""")
            k_ = 0
            for base, offs in ((46, [0, XLAYER - 64]), (50, [0, XBUF - 64, XBUF + (1 << 20), 2 * XBUF - 64, 2 * XBUF + 65536 - 64]),
                               (42, [1 << 21, 2 << 21, 3 << 21, L_ * WLAYER - 64])):
                for off in offs:
                    a(f"""    s_add_u32 s24, s{base}, {off}
    s_addc_u32 s25, s{base+1}, 0
    s_load_dword s{76+k_}, s[24:25], 0""")
                    k_ += 1
            a("L_notlb:")
        a(f"""
    ; exchange-buffer lines of the die's two row blocks: {2*XRB//128} lines
    s_mul_i32 s{sG}, s{sT1}, {2*XRB}
    s_lshl_b32 s{sI}, s{sT0}, 13
    s_add_u32 s{sG}, s{sG}, s{sI}
    v_lshlrev_b32 v19, 7, v{vL}
    v_add_u32 v19, s{sG}, v19
    s_cmp_lt_u32 s{sT0}, {-(-2*XRB // 8192)}
    s_cselect_b32 s{sM}, 1, 0
""")
        def lane_addr(vdst, nline_, base0, delta):
            tot_ = 4 * nline_
            a(f"""
    s_lshl_b32 s{sI}, s{sI}, 6
    v_add_u32 v{vT0}, s{sI}, v{vL}
    v_mov_b32 v{vT1}, {base0}
    v_cmp_le_u32 vcc, {nline_}, v{vT0}
    v_mov_b32 v{vT2}, 0
    v_mov_b32 v{vT3}, {delta}
    v_cndmask_b32 v{vT2}, v{vT2}, v{vT3}, vcc
    v_add_u32 v{vT1}, v{vT1}, v{vT2}
    v_cmp_le_u32 vcc, {2*nline_}, v{vT0}
    v_mov_b32 v{vT2}, 0
    s_nop 0
    v_cndmask_b32 v{vT2}, v{vT2}, v{vT3}, vcc
    v_add_u32 v{vT1}, v{vT1}, v{vT2}
    v_cmp_le_u32 vcc, {3*nline_}, v{vT0}
    v_mov_b32 v{vT2}, 0
    s_nop 0
    v_cndmask_b32 v{vT2}, v{vT2}, v{vT3}, vcc
    v_add_u32 v{vT1}, v{vT1}, v{vT2}
    v_lshl_add_u32 v{vdst}, v{vT0}, 7, v{vT1}
    v_cmp_le_u32 vcc, {tot_}, v{vT0}
    v_mov_b32 v{vT2}, 0x7ffffff0
    s_nop 0
    v_cndmask_b32 v{vdst}, v{vdst}, v{vT2}, vcc""")
        def need_set(vbase, skip_rows, nrows):
            tot_ = nrows * 52
            nins_ = (tot_ + 63) // 64
            nk = -(-nins_ // 48)
            for k in range(nk):
                a(f"""
    s_add_u32 s{sI}, s{sT0}, {48*k}
    s_lshl_b32 s{sI}, s{sI}, 6
    v_add_u32 v{vT0}, s{sI}, v{vL}
    v_mul_u32_u24 v{vT1}, 80660, v{vT0}
    v_lshrrev_b32 v{vT1}, 22, v{vT1}
    v_mul_u32_u24 v{vT2}, 52, v{vT1}
    v_sub_u32 v{vT2}, v{vT0}, v{vT2}          ; rem
    v_mul_u32_u24 v{vT3}, 5042, v{vT2}
    v_lshrrev_b32 v{vT3}, 16, v{vT3}
    v_mul_u32_u24 v{vbase+k}, 13, v{vT3}
    v_sub_u32 v{vT2}, v{vT2}, v{vbase+k}
    v_mul_u32_u24 v{vT3}, 208, v{vT3}
    v_add_u32 v{vT1}, v{vT1}, v{vT3}
    v_add_u32 v{vT1}, {skip_rows}, v{vT1}     ; row
    v_mul_u32_u24 v{vT1}, {ROWB}, v{vT1}
    v_lshl_add_u32 v{vbase+k}, v{vT2}, 7, v{vT1}
    v_cmp_le_u32 vcc, {tot_}, v{vT0}
    v_mov_b32 v{vT2}, 0x7ffffff0
    s_nop 0
    v_cndmask_b32 v{vbase+k}, v{vbase+k}, v{vT2}, vcc""")
            return nk
        def addr_set(vbase, nline_, base0, delta, tag):
            tot_ = 4 * nline_
            nins_ = (tot_ + 63) // 64
            nk = -(-nins_ // 48)
            a(f"    s_mul_i32 s{sT2}, s{sT1}, {nins_ // 8}")
            for k in range(nk):
                a(f"""
    s_add_u32 s{sT3}, s{sT0}, {48*k}
    s_add_u32 s{sI}, s{sT3}, s{sT2}
    s_cmp_ge_u32 s{sI}, {nins_}
    s_cselect_b32 s{sG}, {nins_}, 0
    s_sub_u32 s{sI}, s{sI}, s{sG}
    s_cmp_ge_u32 s{sT3}, {nins_}
    s_cselect_b32 s{sI}, {nins_ + 8}, s{sI}   ; no k-th instruction -> past the end""")
                lane_addr(vbase + k, nline_, base0, delta)
            return nk
        NK0 = 0
        if c.w0assist and c.hfirst == 0:
            skip0 = P * 16 + 60
            NK0 = addr_set(40, (208 - skip0) * 13, skip0 * ROWB, skip0 * ROWB, "p")
            for k in range(NK0):
                a(f"    buffer_load_dword v{50+k}, v{40+k}, s[{sW}:{sW+3}], 0 offen")
        elif c.h0 == "prefix" and c.hfirst == 0:
            NK0 = addr_set(40, HP * 16 * 13, 0, (13 - HP) * 26624, "p")
            for k in range(NK0):
                a(f"    buffer_load_dword v{50+k}, v{40+k}, s[{sW}:{sW+3}], 0 offen")
        if c.horder == "need": need_set(10, HPR, nrow)
        else: addr_set(10, nline, cdelta, cdelta, "h")
        nshare_l = tot // 8
        NW_ = 14
        if c.hwarm:
            a(f"""
    s_mul_i32 s{sI}, s{sT1}, {nshare_l}
    s_mul_i32 s{sG}, s{sT0}, {NW_}
    s_add_u32 s{sI}, s{sI}, s{sG}
    s_mov_b32 s{sG}, {cdelta}
    s_cmp_ge_u32 s{sI}, {nline}
    s_cselect_b32 s{sT3}, {cdelta}, 0
    s_add_u32 s{sG}, s{sG}, s{sT3}
    s_cmp_ge_u32 s{sI}, {2*nline}
    s_cselect_b32 s{sT3}, {cdelta}, 0
    s_add_u32 s{sG}, s{sG}, s{sT3}
    s_cmp_ge_u32 s{sI}, {3*nline}
    s_cselect_b32 s{sT3}, {cdelta}, 0
    s_add_u32 s{sG}, s{sG}, s{sT3}
    s_lshl_b32 s{sI}, s{sI}, 7
    s_add_u32 s{sI}, s{sI}, s{sG}
    s_add_u32 s{sI}, s{sI}, {c.wstride}
    s_add_u32 s44, s42, s{sI}                 ; layer 1
    s_addc_u32 s45, s43, 0""")
        if c.hvec_warm:
            a(f"""
    ; memory-side cache warm-up: lines [die*1352, +1352) of a later layer, one line per lane; waves g < 22 (and g - 22 < 22 at the start)
    s_cmp_ge_u32 s{sT0}, 22
    s_cselect_b32 s{sG}, 22, 0
    s_cselect_b32 s{sWG}, 1, 0
    s_sub_u32 s{sG}, s{sT0}, s{sG}
    s_lshl_b32 s{sG}, s{sG}, 6
    s_mul_i32 s{sI}, s{sT1}, 1352
    s_add_u32 s{sI}, s{sI}, s{sG}
    v_add_u32 v{vT0}, s{sI}, v{vL}
    v_lshlrev_b32 v18, 7, v{vT0}
    v_add_u32 v{vT1}, s{sG}, v{vL}
    v_cmp_le_u32 vcc, 1352, v{vT1}
    v_mov_b32 v{vT2}, 0x7ffffff0
    s_nop 0
    v_cndmask_b32 v18, v18, v{vT2}, vcc""")
        nv_l = c.SV * 16 * 52 // 8
        if c.hvwarm:
            a(f"""
    s_mul_i32 s{sI}, s{sT1}, {nv_l}
    s_mul_i32 s{sG}, s{sT0}, 7
    s_min_u32 s{sG}, s{sG}, {nv_l - 7}
    s_add_u32 s{sI}, s{sI}, s{sG}
    s_mov_b32 s{sG}, 0
    s_cmp_ge_u32 s{sI}, {c.SV * 16 * 13}
    s_cselect_b32 s{sT3}, {(208 - c.SV * 16) * ROWB}, 0
    s_add_u32 s{sG}, s{sG}, s{sT3}
    s_cmp_ge_u32 s{sI}, {2 * c.SV * 16 * 13}
    s_cselect_b32 s{sT3}, {(208 - c.SV * 16) * ROWB}, 0
    s_add_u32 s{sG}, s{sG}, s{sT3}
    s_cmp_ge_u32 s{sI}, {3 * c.SV * 16 * 13}
    s_cselect_b32 s{sT3}, {(208 - c.SV * 16) * ROWB}, 0
    s_add_u32 s{sG}, s{sG}, s{sT3}
    s_lshl_b32 s{sI}, s{sI}, 7
    s_add_u32 s{sI}, s{sI}, s{sG}
    s_add_u32 s{sI}, s{sI}, {c.wstride}
    s_add_u32 s46, s42, s{sI}                 ; layer 1
    s_addc_u32 s47, s43, 0""")
        if NK0 and c.hwarm:
            a("    s_waitcnt lgkmcnt(0)")
            for half in range(2):
                if half: a("    s_waitcnt lgkmcnt(0)")
                for n_ in range(7 * half, 7 * half + 7):
                    a(f"    s_load_dwordx2 s[{76+2*(n_%7)}:{77+2*(n_%7)}], s[44:45], {n_*128 + 60}")
            a(f"    s_add_u32 s44, s44, {c.wstride}")
            a(f"    s_addc_u32 s45, s45, 0")
        if NK0:
            a(f"""
    s_waitcnt vmcnt(0)
    s_barrier
    s_cmp_eq_u32 s{sM}, 1
    s_cbranch_scc0 L_hx1
    s_mov_b32 s{sI}, {XBUF}
    buffer_load_dword v30, v19, s[{sWS}:{sWS+3}], s{sI} offen sc1
L_hx1:
""")
        a(f"""
    v_mov_b32 v20, 0
    s_mov_b32 s{sL}, {HF}
    s_mov_b32 s{sT3}, {HF * c.wstride}
    s_waitcnt lgkmcnt(0)
L_h_layer:
""")
        if c.hpace:
            a(f"""
    ; before layer m wait (bounded) until the workers have finished layer m-{c.hlook}
    s_cmp_lt_u32 s{sL}, {c.hlook}
    s_cbranch_scc1 L_h_go
    s_cmp_eq_u32 s{sWV}, 0
    s_cbranch_scc0 L_h_bar
    s_mov_b32 s{sSPIN}, 0
L_h_poll:
    buffer_load_dwordx2 v[16:17], v20, s[{sWS}:{sWS+3}], s{sOWNF} offen sc1
    s_waitcnt vmcnt(0)
    v_readfirstlane_b32 s{sTA}, v16
    v_readfirstlane_b32 s{sTA+1}, v17
    s_sub_u32 s{sTA}, s{sTA}, s{sE}
    s_subb_u32 s{sTA+1}, s{sTA+1}, s{sE+1}
    s_cmp_eq_u32 s{sTA+1}, 0
    s_cselect_b32 s{sTA}, s{sTA}, 0
    s_cmp_gt_u32 s{sTA}, 6
    s_cselect_b32 s{sTA}, 0, s{sTA}           ; layers finished so far
    s_add_u32 s{sTA}, s{sTA}, {c.hlook - 1}
    s_cmp_ge_u32 s{sTA}, s{sL}
    s_cbranch_scc1 L_h_bar
    s_add_u32 s{sSPIN}, s{sSPIN}, 1
    s_cmp_lt_u32 s{sSPIN}, 32
    s_cbranch_scc1 L_h_poll
L_h_bar:
    s_barrier
L_h_go:
""")
        def hw_batch(k, lab):
            if not c.hwarm: return
            a(f"    s_cmp_lt_u32 s{sL}, 5")
            a(f"    s_cbranch_scc0 {lab}")
            if not c.hw0:
                a(f"    s_cmp_eq_u32 s{sL}, 0")
                a(f"    s_cbranch_scc1 {lab}")
            a("    s_waitcnt lgkmcnt(0)")
            for n_ in range(7 * k, 7 * k + 7):
                a(f"    s_load_dwordx2 s[{76+2*(n_%7)}:{77+2*(n_%7)}], s[44:45], {n_*128 + 60}")
            a(f"{lab}:")
        def vec_warm(lab):
            A_ = c.hvw_ahead
            a(f"    s_cmp_eq_u32 s{sWG}, 1")
            a(f"    s_cbranch_scc1 {lab}_b")
            a(f"    s_add_u32 s{sI}, s{sL}, {A_}")
            a(f"    s_cmp_le_u32 s{sI}, 5")
            a(f"    s_cbranch_scc0 {lab}")
            if c.wwarm:
                a(f"    s_cmp_gt_u32 s{sI}, {c.wwarm}")
                a(f"    s_cbranch_scc0 {lab}")
            a(f"    s_add_u32 s{sI}, s{sT3}, {A_ * c.wstride}")
            a(f"    buffer_load_dword v29, v18, s[{sW}:{sW+3}], s{sI} offen")
            a(f"    s_branch {lab}")
            a(f"{lab}_b:")
            if A_ == 2 and c.wwarm < 1:
                a(f"    s_cmp_eq_u32 s{sL}, {HF}")
                a(f"    s_cbranch_scc0 {lab}")
                a(f"    s_add_u32 s{sI}, s{sT3}, {c.wstride}")
                a(f"    buffer_load_dword v29, v18, s[{sW}:{sW+3}], s{sI} offen")
            a(f"{lab}:")
        if c.hvec_warm and c.hvw_pos == "before": vec_warm("L_hvw")
        for k in range(NK):
            a(f"    buffer_load_dword v{31+k}, v{10+k}, s[{sW}:{sW+3}], s{sT3} offen")
            if k < 2: hw_batch(k, f"L_hw{k}")
            a(f"    s_waitcnt vmcnt({c.hdepth})")
            a(f"    s_barrier")
        if c.hvec_warm and c.hvw_pos == "after": vec_warm("L_hvw")
        if c.hvwarm:
            a(f"    s_cmp_lt_u32 s{sL}, 5")
            a(f"    s_cbranch_scc0 L_hnv")
            a("    s_waitcnt lgkmcnt(0)")
            for n_ in range(7):
                a(f"    s_load_dwordx2 s[{76+2*n_}:{77+2*n_}], s[46:47], {n_*128 + 60}")
            a(f"    s_add_u32 s46, s46, {c.wstride}")
            a(f"    s_addc_u32 s47, s47, 0")
            a("L_hnv:")
        if c.hwarm:
            a(f"    s_add_u32 s44, s44, {c.wstride}")
            a(f"    s_addc_u32 s45, s45, 0")
        if c.xt_by in ('helper', 'mixed'):
            nbuf = 1 if c.xt_by == "mixed" else 2
            a(f"""
    s_sub_u32 s{sI}, s{sL}, {HF}
    s_add_u32 s{sI}, s{sI}, {1 if HF != c.hfirst else 0}
    s_cmp_lt_u32 s{sI}, {nbuf}
    s_cbranch_scc0 L_hx0
    s_cmp_eq_u32 s{sM}, 1
    s_cbranch_scc0 L_hx0
    s_cmp_eq_u32 s{sI}, 0
    s_cselect_b32 s{sI}, {XBUF}, 0
    buffer_load_dword v30, v19, s[{sWS}:{sWS+3}], s{sI} offen sc1
L_hx0:""")
        stamp(1)
        a(f"""
    s_add_u32 s{sL}, s{sL}, 1
    s_add_u32 s{sT3}, s{sT3}, {c.wstride}
    s_cmp_lt_u32 s{sL}, 6
    s_cbranch_scc1 L_h_layer
""")
        if c.outtouch:
            srd(sOUT, 46, XLAYER)
            a(f"""
    ; output lines of the die's 128 rows: the final stores then stay in L2
    s_cmp_eq_u32 s{sM}, 1
    s_cbranch_scc0 L_noot
    buffer_load_dword v30, v19, s[{sOUT}:{sOUT+3}], 0 offen
L_noot:""")
        if c.hwb:
            a(f"""
    ; first helper workgroup of the die, wave 0: once layer 4 is finished, start writing the exchanged activations back
    s_cmp_lt_u32 s2, 216
    s_cbranch_scc0 L_nowb
    s_cmp_eq_u32 s{sWV}, 0
    s_cbranch_scc0 L_nowb
    s_mov_b32 s{sSPIN}, 0
L_wbpoll:
    buffer_load_dwordx2 v[16:17], v20, s[{sWS}:{sWS+3}], s{sOWNF} offen sc1
    s_waitcnt vmcnt(0)
    v_readfirstlane_b32 s{sTA}, v16
    v_readfirstlane_b32 s{sTA+1}, v17
    s_sub_u32 s{sTA}, s{sTA}, s{sE}
    s_subb_u32 s{sTA+1}, s{sTA+1}, s{sE+1}
    s_cmp_eq_u32 s{sTA+1}, 0
    s_cselect_b32 s{sTA}, s{sTA}, 0
    s_cmp_eq_u32 s{sTA}, 5
    s_cbranch_scc1 L_wbgo
    s_add_u32 s{sSPIN}, s{sSPIN}, 1
    s_cmp_lt_u32 s{sSPIN}, 64
    s_cbranch_scc1 L_wbpoll
L_wbgo:
    buffer_wbl2 sc1
L_nowb:""")
        a("    s_waitcnt vmcnt(0)")
        stamp(1)
        dump_ts()
    a("L_end:")
    a("    s_endpgm")
    kernel_desc(a, KNAME, NV, sgpr=102, accum=NV)
    txt = a.text().rstrip()
    if txt.endswith(".text"):
        txt = txt[:-5]
    return txt

if __name__ == "__main__":
    import json
    kw = json.loads(sys.argv[2]) if len(sys.argv) > 2 else {}
    open(sys.argv[1], "w").write(gen(**kw))
```

```python
import sys, os
from asmlib import *

KNAME = "standalone__dcn_v2_cross__recsys_kernel"
B_, DIN, L_ = 1024, 832, 6
ROWB = DIN * 2
WLAYER = DIN * DIN * 2
XLAYER = B_ * DIN * 2
XMH = 32 * ROWB
XRB = 2 * XMH
XBUF = 16 * XRB
CTRL = 2 * XBUF
TSOFF = CTRL + 16 * 4096
WS_BYTES = TSOFF + 256 * 8 * 256

class Cfg:
    def __init__(self, **kw):
        self.P = 6
        self.D = 5
        self.PF = 2
        self.SV = 3
        self.SB = 7
        self.ssched = 'three'
        self.NS = 3
        self.sp = True
        self.hp = None
        self.helpers = True
        self.hfirst = 0
        self.hlook = 2
        self.hpace = True
        self.hdepth = 1
        self.lthr = 0
        self.lthr_all = True
        self.sD_late = True
        self.ts = 0
        self.force_slow = False
        self.scramble = False
        self.spin_max = 1 << 20
        self.wstride = WLAYER
        self.prio = 2
        self.hello_step = 19
        self.epi2 = True
        self.outtouch = False
        self.vw2 = 'after_by'
        self.nt_last = False
        self.hfirstid = False
        self.chunks0 = [13, 17, 20, 23]
        self.amp = None
        self.hwb = False
        self.probe = 0
        self.probe_off = 5 * WLAYER + 700 * ROWB
        self.codepf = True
        self.wwarm = 0
        self.xt_by = 'helper'
        self.hvec_warm = False
        self.hvw_ahead = 2
        self.hvw_pos = 'after'
        self.tlbwarm = False
        self.l0b1 = True
        self.hvwarm = False
        self.hw0 = True
        self.hello_by = 'compute'
        self.pre_first = False
        self.swarm = False
        self.horder = 'linear'
        self.hwarm = True
        self.prog_step = 22
        self.prog_at = 'end'
        self.vwarm = True
        self.pre_by = 'loader'
        self.mid_step = 21
        self.presched = 'pack'
        self.h0 = 'middle'
        self.xtouch = False
        self.w0assist = False
        self.bias_by = 'loader'
        self.exp_delay = 0
        self.exp_rt = 0
        self.poll2 = True
        self.phased = True
        self.n1 = 0
        self.n2 = 4
        self.onepoll = True
        self.no_suf = self.no_pre = self.no_x = self.no_w = False
        self.__dict__.update(kw)

def gen(cfg=None, **kw):
    c = cfg or Cfg(**kw)
    P, D, PF = c.P, c.D, c.PF
    TS = int(c.ts)
    assert P <= 12 and PF <= P and D >= PF + 1
    KHS = (26 - P) * 2048
    PRE0 = 0
    SUF = 2 * P * 2048
    PRE1 = SUF + 2 * KHS
    PREPAR = PRE1 - PRE0
    RED = PRE1 + 2 * P * 2048
    BIAS = RED + 16384
    MODEW = BIAS
    LDS_BYTES = BIAS + 64
    XS = SUF
    assert XS + 4 * 28672 <= BIAS and LDS_BYTES <= 163840
    sW, sWS, sX0, sOUT, sBS = 4, 8, 12, 16, 24
    sRB, sJ, sG2, sWV, sMH, sKH, sL, sXCC, sMODE = 28, 29, 30, 31, 32, 33, 34, 35, 36
    sXA, sXB, sXST = 37, 38, 39
    sWP, sMP, sPD = 52, 53, 54
    sU, sOWNF, sXD2 = 55, 56, 57
    sT0, sT1, sT2, sT3 = 58, 59, 60, 61
    sSPIN, sROT = 62, 63
    sG, sM, sI = 64, 65, 66
    sTSI, sTM = 67, 68
    sXD, sCB = 70, 71
    sE, sTA, sTB, sMK = 72, 74, 76, 78
    sBP_ = 48
    sWG = 30
    vL = 0
    vT0, vT1, vT2, vT3 = 1, 2, 3, 4
    vDUM = 5
    vXO = 6
    vAPK, vAPS, vASK, vASS = 10, 11, 12, 13
    vDMA, vFA = 14, 15
    vPOLL = 16
    vRW, vRR, vBA, vTS = 20, 21, 22, 23
    vP = 24
    vAK, vAS, vPART, vX0F, vXR = 32, 48, 64, 80, 96
    vWF = 112
    vXF = 136
    vBP = 240
    vOUT, vHA, vFV, vDMA0 = 248, 249, 250, 252
    vPOL2 = 254
    NV = 256
    nsets = PF + 1
    assert nsets * 8 <= 24

    a = Asm()
    a("; Fused DCN-v2 cross network: 6 layers of x = x0 * (x @ W[l] + b[l]) + x, 1024 x 832, bf16 in/out, f32 accumulate.")
    a("; 208 worker workgroups = 16 row blocks (64 rows) x 13 column slices (64 columns); waves 0-3 MFMA, waves 4-7 W loaders;")
    a("; 48 helper workgroups prefetch into L2.  Layer outputs are exchanged inside a row block through d_ws.")
    a(f"; @launch grid=({256 if c.helpers else 208},1,1) block=(512,1,1) lds={LDS_BYTES}")
    a('.amdgcn_target "amdgcn-amd-amdhsa--gfx950"')
    a(".text")
    kernel_begin(a, KNAME)
    if c.amp:
        a("    s_memrealtime s[100:101]" if c.amp[0] == "totalrt" else "    s_memtime s[100:101]")
    if TS == 5:
        a("    s_memrealtime s[26:27]")
        a("    s_memtime s[100:101]")

    def stamp(level=2):
        if not TS or TS < level or (TS == 4 and level > 1) or TS == 5: return
        a(f"    s_memtime s[{sTM}:{sTM+1}]")
        a(f"    s_waitcnt lgkmcnt(0)")
        a(f"    s_mov_b32 m0, s{sTSI}")
        a(f"    s_nop 0")
        a(f"    v_writelane_b32 v{vTS}, s{sTM}, m0")
        a(f"    s_add_u32 s{sTSI}, s{sTSI}, 1")
    def dump_ts():
        if not TS: return
        if TS == 5:
            a("    s_memrealtime s[80:81]")
            a("    s_memtime s[82:83]")
            a("    s_waitcnt lgkmcnt(0)")
            a(f"    v_writelane_b32 v{vTS}, s26, 0")
            a(f"    v_writelane_b32 v{vTS}, s80, 1")
            a(f"    v_writelane_b32 v{vTS}, s100, 2")
            a(f"    v_writelane_b32 v{vTS}, s82, 3")
        a(f"""
    s_lshl_b32 s{sT0}, s2, 3
    s_add_u32 s{sT0}, s{sT0}, s{sWV}
    s_lshl_b32 s{sT0}, s{sT0}, 8
    s_add_u32 s{sT0}, s{sT0}, {TSOFF}
    v_lshlrev_b32 v{vT0}, 2, v{vL}
    buffer_store_dword v{vTS}, v{vT0}, s[{sWS}:{sWS+3}], s{sT0} offen
""")
    def srd(dst, src, nbytes):
        a(f"    s_mov_b32 s{dst}, s{src}")
        a(f"    s_and_b32 s{dst+1}, s{src+1}, 0xffff")
        a(f"    s_mov_b32 s{dst+2}, {nbytes}")
        a(f"    s_mov_b32 s{dst+3}, 0x20000")

    a(f"""
    s_cmp_ge_u32 s2, {256 if c.helpers else 208}
    s_cbranch_scc1 L_end
    s_load_dwordx4 s[40:43], s[0:1], 0
    s_load_dwordx4 s[44:47], s[0:1], 16
    s_load_dwordx2 s[50:51], s[0:1], 40
    s_getreg_b32 s{sXCC}, hwreg(HW_REG_XCC_ID, 0, 4)
""")
    if c.hfirstid and c.helpers:
        a("""    s_cmp_lt_u32 s2, 48
    s_cselect_b32 s3, 256, 0
    s_add_u32 s2, s2, s3
    s_sub_u32 s2, s2, 48""")
    if c.scramble:
        a(f"""
    s_mul_hi_u32 s{sRB}, s2, 0x13B13B14
    s_mul_i32 s{sT0}, s{sRB}, 13
    s_sub_u32 s{sJ}, s2, s{sT0}
    s_and_b32 s{sG2}, s{sRB}, 1
    s_mul_i32 s{sROT}, s{sG2}, 13""")
    else:
        a(f"""
    s_and_b32 s{sT0}, s2, 7
    s_lshr_b32 s{sT1}, s2, 3
    s_cmp_ge_u32 s{sT1}, 13
    s_cselect_b32 s{sG2}, 1, 0
    s_mul_i32 s{sROT}, s{sG2}, 13
    s_sub_u32 s{sJ}, s{sT1}, s{sROT}
    s_lshl_b32 s{sRB}, s{sT0}, 1
    s_add_u32 s{sRB}, s{sRB}, s{sG2}""")
    a(f"""
    v_lshrrev_b32 v{vT0}, 6, v0
    v_and_b32 v{vL}, 63, v0
    v_readfirstlane_b32 s{sWV}, v{vT0}
    s_mov_b32 s{sTSI}, 0
    v_mov_b32 v{vTS}, 0
    s_lshl_b32 s{sCB}, s{sRB}, 12
    s_add_u32 s{sCB}, s{sCB}, {CTRL}
    s_and_b32 s{sMH}, s{sWV}, 1
    s_bfe_u32 s{sKH}, s{sWV}, 0x10001
    ; ---- x0 staging addresses (used by the loader waves; computed while the kernel arguments are on their way)
    s_sub_u32 s{sU}, s{sWV}, 4                ; u = 0..3: (kh, a) for W, compute wave u for the x0 staging
    v_lshrrev_b32 v{vT0}, 3, v{vL}            ; row8
    v_and_b32 v{vT1}, 7, v{vL}
    v_lshrrev_b32 v{vT2}, 1, v{vT0}
    v_xor_b32 v{vT1}, v{vT1}, v{vT2}          ; c' ^ (row8>>1)
    v_xor_b32 v{vT2}, 4, v{vT1}
    v_mul_u32_u24 v{vT0}, {ROWB}, v{vT0}
    v_lshl_add_u32 v{vXO}, v{vT1}, 4, v{vT0}
    v_lshl_add_u32 v{vXO+1}, v{vT2}, 4, v{vT0}
    s_lshl_b32 s{sT0}, s{sRB}, 6
    s_lshl_b32 s{sT1}, s{sMH}, 5
    s_add_u32 s{sT0}, s{sT0}, s{sT1}
    s_mul_i32 s{sG}, s{sT0}, {ROWB}
    s_mul_i32 s{sT1}, s{sKH}, {6*128}
    s_add_u32 s{sG}, s{sG}, s{sT1}
    s_mul_i32 s{sM}, s{sU}, 28672
    s_add_u32 s{sM}, s{sM}, {XS}
    s_cmp_ge_u32 s{sJ}, 7
    s_cselect_b32 s{sT3}, 7, 0
    s_sub_u32 s{sT3}, s{sJ}, s{sT3}
    s_mov_b32 s{sI}, 0
    s_waitcnt lgkmcnt(0)
""")
    if c.amp and c.amp[0] == "karg":
        a("    s_memtime s[26:27]\n    s_waitcnt lgkmcnt(0)\n    s_sub_u32 s25, s26, s100")
    srd(sX0, 40, XLAYER)
    stamp(1)
    def common_srds():
        srd(sW, 42, L_ * WLAYER)
        srd(sWS, 50, WS_BYTES)
        if c.codepf:
            n_ = common_srds.n = getattr(common_srds, "n", 0) + 1
            a(f"""    ; instruction prefetch into L2: wave (id/8)*8 + w reads line number (that index) of this kernel's code
    s_getpc_b64 s[20:21]
L_pc{n_}:
    s_lshr_b32 s22, s2, 3
    s_lshl_b32 s22, s22, 3
    s_add_u32 s22, s22, s{sWV}
    s_lshl_b32 s22, s22, 6
    s_sub_u32 s20, s20, L_pc{n_} - {KNAME}
    s_subb_u32 s21, s21, 0
    s_min_u32 s22, s22, L_end - {KNAME}
    s_load_dword s3, s[20:21], s22""")
    def vdma():
        a(f"""    ; W DMA lane offsets: swizzled 16-byte chunk + j*128; rows in layer-0 order (vDMA0) and in normal order (vDMA)
    v_lshrrev_b32 v{vT0}, 3, v{vL}            ; row8
    v_and_b32 v{vT1}, 7, v{vL}
    v_bfe_u32 v{vT2}, v{vL}, 4, 1
    v_lshlrev_b32 v{vT2}, 2, v{vT2}
    v_xor_b32 v{vT1}, v{vT1}, v{vT2}
    v_lshlrev_b32 v{vT1}, 4, v{vT1}
    s_lshl_b32 s{sT0}, s{sJ}, 7
    v_add_u32 v{vT1}, s{sT0}, v{vT1}
    v_mul_u32_u24 v{vT2}, {ROWB}, v{vT0}
    v_add_u32 v{vDMA}, v{vT2}, v{vT1}
    v_and_b32 v{vT2}, 3, v{vT0}
    v_lshrrev_b32 v{vT0}, 2, v{vT0}
    v_lshl_add_u32 v{vT0}, v{vT0}, 3, v{vT2}
    v_mul_u32_u24 v{vT0}, {ROWB}, v{vT0}
    v_add_u32 v{vDMA0}, v{vT0}, v{vT1}
""")
    a(f"""
    s_cmp_ge_u32 s2, 208
    s_cbranch_scc1 L_nonloader
    s_cmp_lt_u32 s{sWV}, 4
    s_cbranch_scc1 L_nonloader
""")
    def bias_dma(sreg, val, lab):
        a(f"    s_cmp_eq_u32 s{sreg}, {val}")
        a(f"    s_cbranch_scc0 {lab}")
        srd(sBS, 44, L_ * ROWB)
        a(f"""    v_lshrrev_b32 v{vT0}, 5, v{vL}
    v_mul_u32_u24 v{vT0}, {ROWB}, v{vT0}
    v_and_b32 v{vT1}, 31, v{vL}
    v_lshlrev_b32 v{vT1}, 2, v{vT1}
    v_add_u32 v{vT0}, v{vT0}, v{vT1}
    s_lshl_b32 s{sT0}, s{sJ}, 7
    v_add_u32 v{vT0}, s{sT0}, v{vT0}""")
        for t in range(3):
            a(f"    s_mov_b32 m0, {BIAS + 256*t}")
            a(f"    s_mov_b32 s{sT1}, {2*t*ROWB}")
            a(f"    buffer_load_dword v{vT0}, s[{sBS}:{sBS+3}], s{sT1} offen lds")
        a(f"{lab}:")
    vS0, vS1 = vXO, vXO + 1
    sSB = 40
    sWP0 = 98
    SB = c.SB
    NSR = (2 if c.ssched == 'two' else 3) * SB
    def sbatch(k, nextlayer=False):
        if not c.sp: return
        b = sSB + 2 if nextlayer else sSB
        for n_ in range(SB):
            a(f"    s_load_dwordx2 s[{76+2*n_}:{77+2*n_}], s[{b}:{b+1}], {(k * SB + n_) * ROWB + 60}")
    a(f"""
L_xs:
    s_lshl_b32 s{sT0}, s{sT3}, 12
    s_add_u32 s{sT0}, s{sT0}, s{sM}
    s_lshl_b32 s{sT1}, s{sT3}, 7
    s_add_u32 s{sT1}, s{sT1}, s{sG}
""")
    for rg in range(4):
        a(f"    s_add_u32 m0, s{sT0}, {rg*1024}")
        a(f"    s_add_u32 s{sT2}, s{sT1}, {rg*8*ROWB}")
        a(f"    buffer_load_dwordx4 v{vS0 if rg % 2 == 0 else vS1}, s[{sX0}:{sX0+3}], s{sT2} offen lds")
    a(f"""
    s_add_u32 s{sT3}, s{sT3}, 1
    s_cmp_eq_u32 s{sT3}, 7
    s_cselect_b32 s{sT3}, 0, s{sT3}
    s_add_u32 s{sI}, s{sI}, 1
    s_cmp_lt_u32 s{sI}, 7
    s_cbranch_scc1 L_xs
""")
    common_srds()
    vdma()
    a(f"""
    s_mul_i32 s{sT0}, s{sKH}, 416
    s_lshl_b32 s{sT1}, s{sMH}, 2
    s_add_u32 s{sT1}, s{sT1}, s{sT0}
    s_mul_i32 s{sT1}, s{sT1}, {ROWB}
    v_add_u32 v{vDMA0}, s{sT1}, v{vDMA0}
    s_lshl_b32 s{sT1}, s{sMH}, 3
    s_add_u32 s{sT1}, s{sT1}, s{sT0}
    s_mul_i32 s{sT1}, s{sT1}, {ROWB}
    v_add_u32 v{vDMA}, s{sT1}, v{vDMA}
    ; ---- W prefix of layer 0
    s_mul_i32 s{sG}, s{sROT}, 26624
    s_mul_i32 s{sM}, s{sKH}, {P*2048}
    s_lshl_b32 s{sT1}, s{sMH}, 10
    s_add_u32 s{sM}, s{sM}, s{sT1}
""")
    for i in range(P):
        a(f"    s_add_u32 m0, s{sM}, {PRE0 + i*2048}")
        a(f"    s_add_u32 s{sT0}, s{sG}, {i*26624}")
        a(f"    buffer_load_dwordx4 v{vDMA0}, s[{sW}:{sW+3}], s{sT0} offen lds")
    a(f"""
""")
    if c.w0assist:
        a(f"""
    s_cmp_eq_u32 s{sU}, 3
    s_cbranch_scc0 L_now0t
    v_lshrrev_b32 v21, 5, v{vL}               ; K half
    v_mul_u32_u24 v21, 416, v21
    v_and_b32 v22, 31, v{vL}
    v_add_u32 v21, v21, v22
    v_mul_u32_u24 v21, {ROWB}, v21
    s_lshl_b32 s20, s{sROT}, 4
    s_add_u32 s20, s20, {P * 16 + 28}
    s_mul_i32 s20, s20, {ROWB}
    s_lshl_b32 s21, s{sJ}, 7
    s_add_u32 s20, s20, s21
    buffer_load_dword v{vDUM}, v21, s[{sW}:{sW+3}], s20 offen
L_now0t:""")
    a(f"""
""")
    if c.xt_by in ("worker", "mixed", "front1"):
        a(f"""
    v_lshrrev_b32 v21, 5, v{vL}
    v_mul_u32_u24 v21, {XMH}, v21
    v_and_b32 v22, 31, v{vL}
    v_lshl_add_u32 v21, v22, 7, v21
    s_mul_i32 s22, s{sRB}, {XRB}
    s_lshl_b32 s23, s{sJ}, 12
    s_add_u32 s22, s22, s23                   ; buffer 0
    s_add_u32 s23, s22, {XBUF}                ; buffer 1""")
    if c.xt_by == "worker":
        a(f"""    s_cmp_eq_u32 s{sU}, 1
    s_cbranch_scc0 L_noxt1
    buffer_load_dword v{vDUM}, v21, s[{sWS}:{sWS+3}], s23 offen sc1
L_noxt1:""")
    if c.hello_by == "loader":
        a(f"""
    s_load_dwordx2 s[{sE}:{sE+1}], s[50:51], s{sCB}
    s_add_u32 s{sT0}, s{sCB}, 128
    s_add_u32 s46, s50, s{sT0}
    s_addc_u32 s47, s51, 0""")
    a(f"""
    s_mul_i32 s{sT2}, s{sKH}, {KHS}
    s_lshl_b32 s{sT1}, s{sMH}, 10
    s_add_u32 s{sT2}, s{sT2}, s{sT1}
    s_add_u32 s{sMP}, s{sT2}, {SUF}
    s_mul_i32 s70, s{sKH}, {P*2048}
    s_add_u32 s70, s70, s{sT1}
    s_add_u32 s70, s70, {PRE1}                ; prefix of layer 1 goes to parity 1
    s_mov_b32 s71, {PREPAR}
    s_mul_i32 s{sT0}, s{sKH}, 416
    s_lshl_b32 s{sT1}, s{sROT}, 4
    s_add_u32 s{sT0}, s{sT0}, s{sT1}
    s_mul_i32 s{sT1}, s{sMH}, {NSR}
    s_add_u32 s{sT0}, s{sT0}, s{sT1}
    s_add_u32 s{sT0}, s{sT0}, {c.SV * 16}
    s_mul_i32 s{sT0}, s{sT0}, {ROWB}
    s_lshl_b32 s{sT1}, s{sJ}, 7
    s_add_u32 s{sT0}, s{sT0}, s{sT1}
    s_add_u32 s{sT0}, s{sT0}, {c.wstride}
    s_mov_b32 s98, s42
    s_mov_b32 s99, s43
    s_add_u32 s40, s42, s{sT0}
    s_addc_u32 s41, s43, 0
    s_add_u32 s42, s40, {c.wstride}
    s_addc_u32 s43, s41, 0
""")
    def swarm(k):
        if not (c.swarm and c.sp): return
        lst = [(l, r) for l in range(2, 6) for r in range(3)]
        lst = lst[:7] if k == 0 else lst[7:]
        cur = None
        for n_, (l, r) in enumerate(lst):
            if cur != l:
                a(f"    s_add_u32 s46, s44, {l * c.wstride}")
                a(f"    s_addc_u32 s47, s45, 0")
                cur = l
            a(f"    s_load_dwordx2 s[{76+2*n_}:{77+2*n_}], s[46:47], {r*ROWB + 60}")
    if c.swarm and c.sp:
        per_range = 2 * NSR // 3
        a(f"""
    ; share of the S rows for the warm-up: q = rb*4 + u, range = q / {per_range}, rows 3*(q % {per_range}) ...
    s_lshl_b32 s{sT0}, s{sRB}, 2
    s_add_u32 s{sT0}, s{sT0}, s{sWV}
    s_sub_u32 s{sT0}, s{sT0}, 4
    s_min_u32 s{sT0}, s{sT0}, {4 * per_range - 1}
    s_mul_i32 s{sT1}, s{sT0}, {-(-65536 // per_range)}
    s_lshr_b32 s{sT1}, s{sT1}, 16             ; range
    s_mul_i32 s{sT2}, s{sT1}, {per_range}
    s_sub_u32 s{sT0}, s{sT0}, s{sT2}
    s_mul_i32 s{sT0}, s{sT0}, 3
    s_mul_i32 s{sT1}, s{sT1}, 208
    s_add_u32 s{sT0}, s{sT0}, s{sT1}
    s_add_u32 s{sT0}, s{sT0}, {c.SV * 16}
    s_mul_i32 s{sT0}, s{sT0}, {ROWB}
    s_lshl_b32 s{sT1}, s{sJ}, 7
    s_add_u32 s{sT0}, s{sT0}, s{sT1}
    s_add_u32 s44, s{sWP0}, s{sT0}
    s_addc_u32 s45, s{sWP0+1}, 0
""")
        swarm(0)
    if c.w0assist:
        a(f"""    s_cmp_eq_u32 s{sU}, 3
    s_cbranch_scc0 L_bxw
    s_waitcnt vmcnt({P + 1})
    s_branch L_bxw2
L_bxw:
    s_waitcnt vmcnt({P})
L_bxw2:""")
    elif c.xt_by == "worker":
        a(f"""    s_cmp_eq_u32 s{sU}, 1
    s_cbranch_scc0 L_bxw
    s_waitcnt vmcnt({P + 1})
    s_branch L_bxw2
L_bxw:
    s_waitcnt vmcnt({P})
L_bxw2:""")
    else:
        a(f"    s_waitcnt vmcnt({P})")
    stamp()
    a(f"""
    s_barrier                                 ; B_x
    s_barrier                                 ; B_y
""")
    if c.swarm and c.sp: a("    s_waitcnt lgkmcnt(0)")
    if c.hello_by != "loader" and c.ssched != "two": sbatch(0)
    def suffix(vreg, lay, thr=True, phased=False, bp=None):
        a(f"    s_mul_i32 s{sG}, s{sROT}, 26624")
        a(f"    s_add_u32 s{sG}, s{sG}, {lay}")
        a(f"    s_sub_u32 s{sM}, 13, s{sROT}")
        a(f"    s_mul_i32 s{sM}, s{sM}, 26624")
        a(f"    s_add_u32 s{sM}, s{sM}, {lay}")
        for n_, i in enumerate(range(P, 26)):
            if bp is not None and n_ == bp:
                a(f"    s_waitcnt vmcnt({bp})")
                a("    s_barrier                                 ; B_p: prefix of layer 0 has landed")
                if c.hello_by == "loader":
                    a(f"""    s_cmp_eq_u32 s{sWV}, 6
    s_cbranch_scc0 L_b0
    s_waitcnt lgkmcnt(0)
    s_load_dwordx16 s[76:91], s[46:47], 0 glc
    s_load_dwordx8 s[92:99], s[46:47], 64 glc
    s_load_dwordx2 s[20:21], s[46:47], 96 glc
    s_branch L_b0d
L_b0:""")
                    sbatch(0)
                    a("L_b0d:")
            if phased and n_ == c.n1: a("    s_barrier")
            if phased and n_ == c.n1 + c.n2: a("    s_barrier")
            a(f"    s_add_u32 m0, s{sMP}, {(i-P)*2048}")
            a(f"    s_add_u32 s{sI}, s{sG if i < 13 else sM}, {(i % 13) * 26624}")
            a(f"    buffer_load_dwordx4 v{vreg}, s[{sW}:{sW+3}], s{sI} offen {'nt ' if (c.nt_last and i >= 13) else ''}lds")
            if c.lthr and thr and (c.lthr_all or n_ >= c.n1 + c.n2):
                a(f"    s_waitcnt vmcnt({c.lthr - 1})")
    sPP, sPDL = 70, 71
    def prefix_next(lay_next):
        a(f"    s_mul_i32 s{sG}, s{sROT}, 26624")
        a(f"    s_add_u32 s{sG}, s{sG}, s{lay_next}")
        for t in range(P):
            a(f"    s_add_u32 m0, s{sPP}, {t*2048}")
            a(f"    s_add_u32 s{sI}, s{sG}, {t*26624}")
            a(f"    buffer_load_dwordx4 v{vDMA}, s[{sW}:{sW+3}], s{sI} offen lds")
            if c.lthr and c.lthr_all and t + 1 < P:
                a(f"    s_waitcnt vmcnt({c.lthr - 1})")
        a(f"    s_sub_u32 s{sPP}, s{sPP}, s{sPDL}")
        a(f"    s_sub_u32 s{sPDL}, 0, s{sPDL}")
    def advance_sb():
        a(f"""    s_add_u32 s40, s40, {c.wstride}
    s_addc_u32 s41, s41, 0
    s_add_u32 s42, s42, {c.wstride}
    s_addc_u32 s43, s43, 0""")
    suffix(vDMA0, "0", False, False, bp=13 - P)
    n = 26 - P
    if c.hello_by != "loader":
        if c.sp and c.ssched != "two": a("    s_waitcnt lgkmcnt(0)")
        sbatch(1)
    if c.hello_by == "compute" and not c.swarm:
        B0 = [P] + list(c.chunks0)
        for k_, b_ in enumerate(B0):
            nxt = B0[k_ + 1] if k_ + 1 < len(B0) else 26
            a(f"    s_waitcnt vmcnt({26 - nxt})")
            if k_ == 0 or k_ + 1 == len(B0): stamp()
            a(f"    s_barrier")
    else:
        a(f"    s_waitcnt vmcnt({n - (13 - P)})")
        stamp()
        a("    s_barrier                                 ; chunk [P,13)")
        if c.hello_by == "loader" and c.sp and c.l0b1:
            a(f"    s_cmp_eq_u32 s{sWV}, 6")
            a(f"    s_cbranch_scc1 L_nob1")
            a("    s_waitcnt lgkmcnt(0)"); sbatch(1)
            a("L_nob1:")
        if c.swarm and c.sp:
            a("    s_waitcnt lgkmcnt(0)"); swarm(1)
        a(f"    s_waitcnt vmcnt({26 - 20})")
        a("    s_barrier                                 ; chunk [13,20)")
        if c.hello_by == "loader":
            a(f"""    s_cmp_eq_u32 s{sWV}, 6
        s_cbranch_scc0 L_nohe
        s_add_u32 s{sT0}, s{sE}, 8
        s_addc_u32 s{sT1}, s{sE+1}, 0
        s_and_b32 s{sT2}, s{sT1}, 0x0fffffff
        s_lshl_b32 s22, s{sXCC}, 28
        s_xor_b32 s{sT1}, s{sT1}, s22
        s_mov_b32 s22, 1
        s_mov_b32 s23, 1
        s_waitcnt lgkmcnt(0)""")
            for m_ in range(13):
                lo = 76 + 2 * m_ if m_ < 12 else 20
                a(f"""    s_cmp_eq_u32 s{lo}, s{sT0}
        s_cselect_b32 s23, s23, 0
        s_cmp_eq_u32 s{lo+1}, s{sT1}
        s_cselect_b32 s22, s22, 0
        s_and_b32 s{lo+1}, s{lo+1}, 0x0fffffff
        s_cmp_eq_u32 s{lo+1}, s{sT2}
        s_cselect_b32 s23, s23, 0""")
            a(f"""    s_sub_u32 s22, 2, s22
        s_mul_i32 s22, s22, s23
        v_mov_b32 v25, s22
        v_mov_b32 v26, {MODEW}
        ds_write_b32 v26, v25
        s_waitcnt lgkmcnt(0)
    """)
            sbatch(0)
            a("L_nohe:")
        a("    s_waitcnt vmcnt(0)")
        stamp()
        a("    s_barrier                                 ; chunk [20,26)")
    if c.pre_by == "loader":
        a("    s_barrier                                 ; B_mid")
        a(f"    s_mov_b32 s{sT3}, {c.wstride}")
        if not c.no_pre: prefix_next(sT3)
        if c.xt_by in ("worker", "mixed", "front1"):
            a(f"""    s_cmp_eq_u32 s{sWV}, 5
    s_cbranch_scc0 L_noxt0
    buffer_load_dword v{vDUM}, v21, s[{sWS}:{sWS+3}], s22 offen sc1
L_noxt0:""")
    advance_sb()
    a(f"""
    s_barrier
    s_mov_b32 s{sL}, 1
    s_mov_b32 s{sT3}, {c.wstride}
L_ld_layer:
    s_cmp_lt_u32 s{sL}, 5
    s_cselect_b32 s{sU}, 1, 0
""")
    def guarded(fn, lab):
        if not c.sp: return
        a(f"    s_cmp_eq_u32 s{sU}, 1")
        a(f"    s_cbranch_scc0 {lab}")
        fn()
        a(f"{lab}:")
    if c.ssched != "two":
        guarded(lambda: sbatch(1), "L_sA")
    if not c.no_suf: suffix(vDMA, f"s{sT3}", True, c.phased)
    elif c.phased:
        a("    s_barrier"); a("    s_barrier")
    stamp()
    if c.ssched != "two":
        guarded(lambda: (a("    s_waitcnt lgkmcnt(0)"), sbatch(2)), "L_sB")
    if c.pre_by == "loader": a(f"    s_waitcnt vmcnt({26 - P})                 ; the prefix has landed")
    a("    s_barrier                                 ; B_a")
    if c.ssched == "two":
        guarded(lambda: sbatch(1), "L_sB")
    a("    s_waitcnt vmcnt(0)")
    stamp()
    a("    s_barrier")
    a(f"    s_cmp_lt_u32 s{sL}, 4")
    a(f"    s_cselect_b32 s{sU}, 1, 0")
    guarded(lambda: (a("    s_waitcnt lgkmcnt(0)"), sbatch(0, True)), "L_sC")
    if c.pre_by == "loader":
        a("    s_barrier                                 ; B_mid")
        stamp(3)
        a(f"    s_cmp_lt_u32 s{sL}, 5")
        a(f"    s_cbranch_scc0 L_nopre")
        a(f"    s_add_u32 s{sU}, s{sT3}, {c.wstride}")
        if not c.no_pre: prefix_next(sU)
        a("L_nopre:")
        stamp(3)
    advance_sb()
    a(f"""
    s_barrier                                 ; B2
    s_add_u32 s{sL}, s{sL}, 1
    s_add_u32 s{sT3}, s{sT3}, {c.wstride}
    s_cmp_lt_u32 s{sL}, 6
    s_cbranch_scc1 L_ld_layer
""")
    dump_ts()
    a("    s_endpgm")

    sBI = 84
    sBP = 48
    def bias_load():
        a(f"    s_load_dwordx16 s[{sBI}:{sBI+15}], s[{sBP}:{sBP+1}], 0")
        a(f"    s_add_u32 s{sBP}, s{sBP}, {ROWB}")
        a(f"    s_addc_u32 s{sBP+1}, s{sBP+1}, 0")
    def bias_spread():
        a("    s_mov_b32 exec_hi, 0")
        for q in range(4):
            for d in range(2):
                a(f"    v_mov_b32 v{vBP+2*q+d}, s{sBI+4*q+d}")
        a("    s_mov_b32 exec_lo, 0")
        a("    s_mov_b32 exec_hi, -1")
        for q in range(4):
            for d in range(2):
                a(f"    v_mov_b32 v{vBP+2*q+d}, s{sBI+4*q+2+d}")
        a("    s_mov_b64 exec, -1")
    def bias_unpack(lo=0, hi=8):
        for d in range(lo, hi):
            a(f"    v_lshlrev_b32 v{vAK+2*d}, 16, v{vBP+d}")
            a(f"    v_and_b32 v{vAK+2*d+1}, 0xffff0000, v{vBP+d}")
    a("L_nonloader:")
    common_srds()
    if c.helpers:
        a(f"""
    s_cmp_ge_u32 s2, 208
    s_cbranch_scc1 L_helper
""")
    if c.pre_by == "compute": vdma()
    a(f"""
L_compute:
    s_load_dwordx2 s[{sE}:{sE+1}], s[50:51], s{sCB}
    s_lshl_b32 s{sT0}, s{sJ}, 7
    s_lshl_b32 s{sT1}, s{sKH}, 6
    s_add_u32 s{sT0}, s{sT0}, s{sT1}
    s_add_u32 s{sBP_}, s44, s{sT0}
    s_addc_u32 s{sBP_+1}, s45, 0
    s_load_dwordx16 s[84:99], s[{sBP_}:{sBP_+1}], 0
    s_load_dword s20, s[{sBP_}:{sBP_+1}], {ROWB}
    s_load_dword s21, s[{sBP_}:{sBP_+1}], {2*ROWB}
    s_load_dword s22, s[{sBP_}:{sBP_+1}], {3*ROWB}
    s_load_dword s23, s[{sBP_}:{sBP_+1}], {4*ROWB}
    s_load_dword s24, s[{sBP_}:{sBP_+1}], {5*ROWB}
    s_add_u32 s{sBP_}, s{sBP_}, {ROWB}
    s_addc_u32 s{sBP_+1}, s{sBP_+1}, 0
    s_setprio {c.prio}
""")
    if c.xt_by in ("front", "front1"):
        a(f"""
    v_lshrrev_b32 v21, 5, v{vL}
    v_mul_u32_u24 v21, {XMH}, v21
    v_and_b32 v22, 31, v{vL}
    v_lshl_add_u32 v21, v22, 7, v21
    s_mul_i32 s22, s{sRB}, {XRB}
    s_lshl_b32 s23, s{sJ}, 12
    s_add_u32 s22, s22, s23                   ; buffer 0
    s_add_u32 s23, s22, {XBUF}                ; buffer 1
    s_cmp_eq_u32 s{sWV}, 3
    s_cbranch_scc0 L_noxf1
    buffer_load_dword v{vDUM}, v21, s[{sWS}:{sWS+3}], s23 offen sc1
L_noxf1:""")
        if c.xt_by == "front":
            a(f"""    s_cmp_eq_u32 s{sWV}, 2
    s_cbranch_scc0 L_noxf0
    buffer_load_dword v{vDUM}, v21, s[{sWS}:{sWS+3}], s22 offen sc1
L_noxf0:""")
    if c.wwarm:
        a(f"""
    s_sub_u32 s{sT0}, s{sWV}, 1
    s_cmp_lt_u32 s{sT0}, {c.wwarm}
    s_cbranch_scc0 L_noww
    s_mul_i32 s{sT0}, s{sRB}, 13
    s_add_u32 s{sT0}, s{sT0}, s{sJ}
    s_mul_i32 s{sT0}, s{sT0}, {52 * 128}
    s_mul_i32 s{sT1}, s{sWV}, {c.wstride}
    s_add_u32 s20, s{sT0}, s{sT1}
    v_min_u32 v20, 51, v{vL}
    v_lshlrev_b32 v20, 7, v20
    buffer_load_dword v{vDUM}, v20, s[{sW}:{sW+3}], s20 offen
L_noww:""")
    a(f"""
    v_min_u32 v{vT0}, 51, v{vL}
    v_lshlrev_b32 v{vT0}, 3, v{vT0}
    s_add_u32 s{sT0}, s{sCB}, 2048
    v_add_u32 v{vFA}, s{sT0}, v{vT0}
    s_cmp_eq_u32 s{sWV}, 0
    s_cbranch_scc0 L_noft
    buffer_load_dword v{vDUM}, v{vFA}, s[{sWS}:{sWS+3}], 0 offen sc1
L_noft:
    s_lshl_b32 s{sT1}, s{sJ}, 2
    s_add_u32 s{sT1}, s{sT1}, s{sWV}
    s_lshl_b32 s{sT1}, s{sT1}, 3
    s_add_u32 s{sOWNF}, s{sT0}, s{sT1}
    v_min_u32 v{vT0}, 12, v{vL}
    v_lshlrev_b32 v{vT0}, 3, v{vT0}
    s_add_u32 s{sT0}, s{sCB}, 128
    v_add_u32 v{vHA}, s{sT0}, v{vT0}
""")
    srd(sOUT, 46, XLAYER)
    a(f"""
    ; ---- output address (final stores): row*1664 + j*128 + nh*64 + h*16
    s_lshl_b32 s{sT0}, s{sRB}, 6
    s_lshl_b32 s{sT1}, s{sMH}, 5
    s_add_u32 s{sT0}, s{sT0}, s{sT1}
    s_mul_i32 s{sT0}, s{sT0}, {ROWB}
    s_lshl_b32 s{sT1}, s{sJ}, 7
    s_add_u32 s{sT0}, s{sT0}, s{sT1}
    s_lshl_b32 s{sT1}, s{sKH}, 6
    s_add_u32 s{sT0}, s{sT0}, s{sT1}
    v_and_b32 v{vT0}, 31, v{vL}
    v_mul_u32_u24 v{vT0}, {ROWB}, v{vT0}
    v_lshrrev_b32 v{vT1}, 5, v{vL}
    v_lshl_add_u32 v{vT0}, v{vT1}, 4, v{vT0}
    v_add_u32 v{vOUT}, s{sT0}, v{vT0}
    v_lshlrev_b32 v{vXO}, 4, v{vL}
    v_add_u32 v{vXO+1}, 0x1000, v{vXO}
    v_add_u32 v{vXO+2}, 0x2000, v{vXO}
    v_add_u32 v{vXO+3}, 0x3000, v{vXO}
    s_mul_i32 s{sT0}, s{sRB}, {XRB}
    s_mul_i32 s{sT1}, s{sMH}, {XMH}
    s_add_u32 s{sT0}, s{sT0}, s{sT1}
    s_add_u32 s{sT0}, s{sT0}, {XBUF}
    s_lshl_b32 s{sT1}, s{sJ}, 2
    s_lshl_b32 s{sT2}, s{sKH}, 1
    s_add_u32 s{sT1}, s{sT1}, s{sT2}
    s_lshl_b32 s{sT1}, s{sT1}, 10
    s_add_u32 s{sXST}, s{sT0}, s{sT1}
""")
    if not c.helpers:
        a(f"""
    v_and_b32 v{vT1}, 15, v{vL}
    v_lshlrev_b32 v{vT1}, 7, v{vT1}
    v_bfe_u32 v{vT2}, v{vL}, 4, 1
    v_mul_u32_u24 v{vT2}, {XBUF >> 8}, v{vT2}
    v_lshl_add_u32 v{vT1}, v{vT2}, 8, v{vT1}
    s_sub_u32 s{sT3}, s{sXST}, {XBUF}
    buffer_load_dword v{vDUM}, v{vT1}, s[{sWS}:{sWS+3}], s{sT3} offen sc1
""")
    a(f"""
    s_mul_i32 s{sT1}, s{sKH}, 26
    s_add_u32 s{sT2}, s{sT1}, s{sROT}
    s_lshl_b32 s{sT2}, s{sT2}, 10
    s_add_u32 s{sXA}, s{sT0}, s{sT2}
    s_add_u32 s{sT2}, s{sT1}, 13
    s_sub_u32 s{sT2}, s{sT2}, s{sROT}
    s_lshl_b32 s{sT2}, s{sT2}, 10
    s_add_u32 s{sXB}, s{sT0}, s{sT2}
    s_mov_b32 s{sXD}, {-XBUF & 0xffffffff}
    s_mov_b32 s{sXD2}, {-XBUF & 0xffffffff}
    ; ---- W prefix bookkeeping for layer 1 (loaded at the end of layer 0)
    s_mul_i32 s{sT0}, s{sKH}, 416
    s_lshl_b32 s{sT1}, s{sROT}, 4
    s_add_u32 s{sT0}, s{sT0}, s{sT1}
    s_lshl_b32 s{sT1}, s{sMH}, 3
    s_add_u32 s{sT0}, s{sT0}, s{sT1}
    s_mul_i32 s{sWP}, s{sT0}, {ROWB}
    s_add_u32 s{sWP}, s{sWP}, {c.wstride}
    s_mul_i32 s{sMP}, s{sKH}, {P*2048}
    s_lshl_b32 s{sT1}, s{sMH}, 10
    s_add_u32 s{sMP}, s{sMP}, s{sT1}
    s_add_u32 s{sMP}, s{sMP}, {PRE1}
    s_mov_b32 s{sPD}, {PREPAR}
    v_lshrrev_b32 v{vT0}, 5, v{vL}            ; h
    v_lshlrev_b32 v{vT0}, 2, v{vT0}
    v_bfe_u32 v{vT1}, v{vL}, 2, 2             ; r
    v_add_u32 v{vT0}, v{vT0}, v{vT1}
    v_lshlrev_b32 v{vT0}, 7, v{vT0}           ; row*128
    v_bfe_u32 v{vT1}, v{vL}, 4, 1             ; nb
    v_lshlrev_b32 v{vT1}, 1, v{vT1}
    v_bfe_u32 v{vT2}, v{vL}, 1, 1             ; c>>1
    v_add_u32 v{vT1}, v{vT1}, v{vT2}
    v_bfe_u32 v{vT2}, v{vL}, 3, 1             ; (r>>1)&1
    v_lshlrev_b32 v{vT2}, 2, v{vT2}
    v_xor_b32 v{vT1}, v{vT1}, v{vT2}
    v_lshlrev_b32 v{vT1}, 4, v{vT1}
    v_add_u32 v{vT0}, v{vT0}, v{vT1}
    v_and_b32 v{vT1}, 1, v{vL}
    v_lshlrev_b32 v{vT1}, 3, v{vT1}
    v_add_u32 v{vT0}, v{vT0}, v{vT1}
    s_lshl_b32 s{sT0}, s{sKH}, 6
    v_xor_b32 v{vT1}, s{sT0}, v{vT0}          ; keep
    v_xor_b32 v{vT2}, 64, v{vT1}              ; send
    s_mul_i32 s{sT0}, s{sKH}, {P*2048}
    v_add_u32 v{vAPK}, s{sT0}, v{vT1}
    v_add_u32 v{vAPS}, s{sT0}, v{vT2}
    s_mul_i32 s{sT0}, s{sKH}, {KHS}
    s_add_u32 s{sT0}, s{sT0}, {SUF}
    v_add_u32 v{vASK}, s{sT0}, v{vT1}
    v_add_u32 v{vASS}, s{sT0}, v{vT2}
    s_lshl_b32 s{sT0}, s{sWV}, 12
    s_add_u32 s{sT0}, s{sT0}, {RED}
    v_add_u32 v{vRW}, s{sT0}, v{vXO}
    s_xor_b32 s{sT1}, s{sWV}, 2
    s_lshl_b32 s{sT1}, s{sT1}, 12
    s_add_u32 s{sT1}, s{sT1}, {RED}
    v_add_u32 v{vRR}, s{sT1}, v{vXO}
    v_lshrrev_b32 v{vT0}, 5, v{vL}
    v_lshlrev_b32 v{vT3}, 3, v{vT0}           ; h*8
    v_and_b32 v{vT0}, 31, v{vL}               ; m
    v_lshrrev_b32 v{vT1}, 3, v{vT0}
    v_lshlrev_b32 v{vT1}, 10, v{vT1}          ; rg*1024
    v_and_b32 v{vT2}, 7, v{vT0}
    v_lshl_add_u32 v{vT1}, v{vT2}, 7, v{vT1}  ; + row8*128
    v_bfe_u32 v{vT2}, v{vT0}, 1, 3            ; f(m)
    s_cmp_ge_u32 s{sJ}, 7
    s_cselect_b32 s{sT0}, 1, 0
    s_mul_i32 s{sT1}, s{sT0}, 6
    s_sub_u32 s{sT1}, s{sJ}, s{sT1}
    s_lshl_b32 s{sT1}, s{sT1}, 12
    s_lshl_b32 s{sT0}, s{sT0}, 1
    s_add_u32 s{sT0}, s{sT0}, s{sMH}
    s_mul_i32 s{sT0}, s{sT0}, 28672
    s_add_u32 s{sT0}, s{sT0}, s{sT1}
    s_add_u32 s{sT0}, s{sT0}, {XS}
    s_lshl_b32 s{sT1}, s{sKH}, 2
    v_add3_u32 v{vT3}, v{vT3}, v{vT1}, s{sT0}
    v_xor_b32 v{vT0}, s{sT1}, v{vT2}          ; (4*nh) ^ f(m)
""")
    for q in range(4):
        a(f"    v_xor_b32 v{vPART+8+q}, {q}, v{vT0}")
        a(f"    v_lshl_add_u32 v{vPART+8+q}, v{vPART+8+q}, 4, v{vT3}")
    a(f"""
    v_lshrrev_b32 v{vT0}, 5, v{vL}
    v_xor_b32 v{vT2}, v{vT2}, v{vT0}          ; f(m) ^ h
    s_mul_i32 s{sT3}, s{sWV}, 28672
    s_add_u32 s{sT3}, s{sT3}, {XS}
    s_mul_i32 s{sI}, s{sKH}, 26
    s_mul_i32 s{sM}, s{sKH}, 6
""")
    for seg in range(2):
        if seg == 0:
            a(f"    s_add_u32 s{sG}, s{sI}, s{sROT}")
        else:
            a(f"    s_add_u32 s{sG}, s{sI}, 13")
            a(f"    s_sub_u32 s{sG}, s{sG}, s{sROT}")
        for x in range(4):
            r = vPART + seg * 4 + x
            a(f"    s_add_u32 s{sT0}, s{sG}, {x}")
            a(f"    s_and_b32 s{sT1}, s{sT0}, 3")
            a(f"    s_lshl_b32 s{sT1}, s{sT1}, 1")
            a(f"    s_lshr_b32 s{sT0}, s{sT0}, 2")
            a(f"    s_sub_u32 s{sT0}, s{sT0}, s{sM}")
            a(f"    s_lshl_b32 s{sT0}, s{sT0}, 12")
            a(f"    s_add_u32 s{sT0}, s{sT0}, s{sT3}")
            a(f"    v_xor_b32 v{r}, s{sT1}, v{vT2}")
            a(f"    v_lshl_add_u32 v{r}, v{r}, 4, v{vT1}")
            a(f"    v_add_u32 v{r}, s{sT0}, v{r}")
    a(f"""
    s_waitcnt lgkmcnt(0)
    s_add_u32 s{sTA}, s{sE}, 1
    s_addc_u32 s{sTA+1}, s{sE+1}, 0
    s_add_u32 s{sTB}, s{sE}, 2
    s_addc_u32 s{sTB+1}, s{sE+1}, 0
    s_cmp_eq_u32 s{sWV}, 0
    s_cbranch_scc0 L_nohello
    s_add_u32 s{sT0}, s{sE}, 8
    s_addc_u32 s{sT1}, s{sE+1}, 0
    s_lshl_b32 s{sT2}, s{sXCC}, 28
    s_xor_b32 s{sT1}, s{sT1}, s{sT2}
    v_mov_b32 v{vPOLL}, s{sT0}
    v_mov_b32 v{vPOLL+1}, s{sT1}
    s_lshl_b32 s{sT2}, s{sJ}, 3
    s_add_u32 s{sT2}, s{sT2}, s{sCB}
    s_add_u32 s{sT2}, s{sT2}, 128
    s_mov_b64 exec, 1
    buffer_store_dwordx2 v[{vPOLL}:{vPOLL+1}], off, s[{sWS}:{sWS+3}], s{sT2} sc1
    s_mov_b64 exec, -1
L_nohello:
""")
    if c.w0assist:
        a(f"""
    s_mul_i32 s{sT0}, s{sKH}, 416
    s_lshl_b32 s{sT1}, s{sROT}, 4
    s_add_u32 s{sT0}, s{sT0}, s{sT1}
    s_mul_i32 s{sT1}, s{sMH}, 14
    s_add_u32 s{sT0}, s{sT0}, s{sT1}
    s_add_u32 s{sT0}, s{sT0}, {P * 16}
    s_mul_i32 s{sT0}, s{sT0}, {ROWB}
    s_lshl_b32 s{sT1}, s{sJ}, 7
    s_add_u32 s{sT0}, s{sT0}, s{sT1}
    s_add_u32 s44, s42, s{sT0}
    s_addc_u32 s45, s43, 0
""")
        for n_ in range(14):
            if n_ == 7: a("    s_waitcnt lgkmcnt(0)")
            a(f"    s_load_dwordx2 s[{20+2*(n_%2)}:{21+2*(n_%2)}], s[44:45], {n_*ROWB + 60}")
    elif c.vwarm:
        nrows = c.SV * 16
        per_rb = nrows // 4
        a(f"""
    s_lshr_b32 s{sT0}, s{sRB}, 2
    s_mul_i32 s{sT0}, s{sT0}, 208             ; range start row: 0, 208, 416, 624
    s_and_b32 s{sT1}, s{sRB}, 3
    s_mul_i32 s{sT1}, s{sT1}, {per_rb}
    s_add_u32 s{sT0}, s{sT0}, s{sT1}
    s_mul_i32 s{sT1}, s{sWV}, {per_rb // 4}
    s_add_u32 s{sT0}, s{sT0}, s{sT1}
    s_mul_i32 s{sT0}, s{sT0}, {ROWB}
    s_lshl_b32 s{sT1}, s{sJ}, 7
    s_add_u32 s{sT0}, s{sT0}, s{sT1}
    s_add_u32 s{sT0}, s{sT0}, {c.wstride}
    s_add_u32 s44, s42, s{sT0}
    s_addc_u32 s45, s43, 0
""")
        nper = per_rb // 4
        vw = [(l, r) for l in range(1, 6) for r in range(nper)][:14]
        def vwarm_batch(k):
            cur = None
            for n_, (l, r) in enumerate(vw[7*k:7*k+7]):
                if cur != l:
                    a(f"    s_add_u32 s46, s44, {(l-1) * c.wstride}")
                    a(f"    s_addc_u32 s47, s45, 0")
                    cur = l
                a(f"    s_load_dwordx2 s[{20+2*(n_%2)}:{21+2*(n_%2)}], s[46:47], {r*ROWB + 60}")
        vwarm_batch(0)
        if c.vw2 == 'wait':
            a("    s_waitcnt lgkmcnt(0)")
            vwarm_batch(1)
    stamp()
    a("    s_barrier                                 ; B_x: staged x0, prefix(0) and biases have landed")
    if c.amp and c.amp[0] == "bx":
        a("    s_memtime s[26:27]\n    s_waitcnt lgkmcnt(0)\n    s_sub_u32 s25, s26, s100")
    stamp()
    for q in range(4):
        a(f"    ds_read_b64 v[{vP+2*q}:{vP+2*q+1}], v{vPART+8+q}")
    for i in range(26):
        seg, ii = (0, i) if i < 13 else (1, i - 13)
        a(f"    ds_read_b128 v[{vXF+4*i}:{vXF+4*i+3}], v{vPART + seg*4 + (ii & 3)} offset:{(ii >> 2) * 4096}")
        if i in (9, 17):
            a("    s_waitcnt lgkmcnt(6)")
    a("    s_waitcnt lgkmcnt(0)")
    a("    s_barrier")
    if c.vwarm and not c.w0assist and c.vw2 == 'after_by': vwarm_batch(1)
    stamp()
    for d in range(8):
        a(f"    v_lshlrev_b32 v{vX0F+2*d}, 16, v{vP+d}")
        a(f"    v_and_b32 v{vX0F+2*d+1}, 0xffff0000, v{vP+d}")
    bias_spread()
    bias_unpack()
    for r in range(16):
        a(f"    v_mov_b32 v{vXR+r}, v{vX0F+r}")
    a(f"    s_mov_b32 s{sL}, 0")
    a("    s_barrier                                 ; B_p: prefix of layer 0 has landed")
    if c.amp and c.amp[0] == "bp":
        a("    s_memtime s[26:27]\n    s_waitcnt lgkmcnt(0)\n    s_sub_u32 s25, s26, s100")
    stamp()

    def xload(i):
        if c.no_x:
            a("    s_nop 0"); return
        seg = sXA if i < 13 else sXB
        ii = i % 13
        a(f"    buffer_load_dwordx4 v[{vXF+4*i}:{vXF+4*i+3}], v{vXO+(ii>>2)}, s[{sWS}:{sWS+3}], s{seg} offen offset:{(ii&3)*1024} sc1")
    def rd(i, which):
        if c.no_w: return
        st = vWF + 8 * (i % nsets)
        if i < P: k, s_, off = vAPK, vAPS, i * 2048
        else: k, s_, off = vASK, vASS, (i - P) * 2048
        if which == "s":
            a(f"    ds_read_b64_tr_b16 v[{st}:{st+1}], v{s_} offset:{off}")
            a(f"    ds_read_b64_tr_b16 v[{st+2}:{st+3}], v{s_} offset:{off+1024}")
        else:
            a(f"    ds_read_b64_tr_b16 v[{st+4}:{st+5}], v{k} offset:{off}")
            a(f"    ds_read_b64_tr_b16 v[{st+6}:{st+7}], v{k} offset:{off+1024}")
    def pref_sched(i):
        if c.presched == "spread":
            t = i - (26 - P)
            return [t] if 0 <= t < P else []
        k = i - (26 - D)
        if k < 0: return []
        per_ = -(-P // D)
        return [t for t in range(k * per_, min(P, (k + 1) * per_))]
    def kloop(first):
        ops = []
        if first:
            for i in range(PF):
                rd(i, "s"); rd(i, "k")
        else:
            xload(0); ops.append(("x", 0))
            rd(0, "s"); rd(0, "k")
            xload(1); ops.append(("x", 1))
            rd(1, "s"); rd(1, "k")
            nrest = D - 2
            cuts = [8 * k // nrest for k in range(nrest + 1)]
            for k in range(nrest):
                bias_unpack(cuts[k], cuts[k + 1])
                xload(2 + k); ops.append(("x", 2 + k))
        bars = (([P] + list(c.chunks0)) if (c.hello_by == 'compute' and not c.swarm) else [P, 13, 20]) if first else [P]
        assert P < 13
        marks = [0, 1, 2, 4, 8, 12, 16, 20, 25]
        for i in range(26):
            a(f"    ; ---- step {i}")
            if TS == 4 and not first and i in marks:
                a(f"    s_memtime s[{80 + 2*marks.index(i)}:{81 + 2*marks.index(i)}]")
            young = sum(4 for t in range(i + 1, min(i + PF - 1, 25) + 1))
            if first:
                a(f"    s_waitcnt lgkmcnt({young})")
            else:
                nv = len(ops) - 1 - ops.index(("x", i))
                a(f"    s_waitcnt vmcnt({nv}) lgkmcnt({young})")
            st = vWF + 8 * (i % nsets)
            xf = vXF + 4 * i
            cs = "0" if i == 0 else f"v[{vAS}:{vAS+15}]"
            a(f"    v_mfma_f32_32x32x16_bf16 v[{vAS}:{vAS+15}], v[{st}:{st+3}], v[{xf}:{xf+3}], {cs}")
            if not first and i == 1:
                a(f"""    s_add_u32 s{sTA}, s{sTA}, 1
    s_addc_u32 s{sTA+1}, s{sTA+1}, 0""")
            if not first and i == 2:
                a(f"""    s_add_u32 s{sTB}, s{sTB}, 1
    s_addc_u32 s{sTB+1}, s{sTB+1}, 0""")
            if i + PF in bars:
                a("    s_barrier")
            if first and i == c.hello_step and c.hello_by != 'loader':
                a(f"    buffer_load_dwordx2 v[{vPOLL}:{vPOLL+1}], v{vHA}, s[{sWS}:{sWS+3}], 0 offen sc1")
            if not first and i + D < 26:
                xload(i + D); ops.append(("x", i + D))
            if c.pre_by == "loader":
                if i == c.mid_step: a("    s_barrier                                 ; B_mid: the x loads are all issued")
                if i == c.prog_step and c.prog_at == "mid":
                    lab = "L_noprogA" if first else "L_noprogB"
                    a(f"""    s_or_b32 s{sT0}, s{sJ}, s{sWV}
    s_cmp_eq_u32 s{sT0}, 0
    s_cbranch_scc0 {lab}
    v_mov_b32 v{vPOL2}, s{sTA}
    v_mov_b32 v{vPOL2+1}, s{sTA+1}
    s_add_u32 s{sT0}, s{sCB}, 3072
    buffer_store_dwordx2 v[{vPOL2}:{vPOL2+1}], off, s[{sWS}:{sWS+3}], s{sT0}
{lab}:""")
            else:
                for t in ([] if c.no_pre else pref_sched(i)):
                    a(f"    s_add_u32 m0, s{sMP}, {t*2048}")
                    a(f"    s_add_u32 s{sT0}, s{sWP}, {t*26624}")
                    a(f"    buffer_load_dwordx4 v{vDMA}, s[{sW}:{sW+3}], s{sT0} offen lds")
                    ops.append(("w", t))
            if i + PF < 26: rd(i + PF, "s")
            a(f"    v_mfma_f32_32x32x16_bf16 v[{vAK}:{vAK+15}], v[{st+4}:{st+7}], v[{xf}:{xf+3}], v[{vAK}:{vAK+15}]")
            if i + PF < 26: rd(i + PF, "k")
        return len([o for o in ops if o[0] == "w"])
    npre = kloop(True)
    if c.hello_by == "loader":
        a(f"""    v_mov_b32 v{vT0}, {MODEW}
    ds_read_b32 v{vT1}, v{vT0}
    s_waitcnt lgkmcnt(0)
    v_readfirstlane_b32 s{sMODE}, v{vT1}""")
        a(f"""
    s_cmp_eq_u32 s{sMODE}, 0
    s_cbranch_scc1 L_hello_slow
    s_and_b32 s{sMODE}, s{sMODE}, {0 if c.force_slow else 1}
    s_branch L_tail
L_hello_slow:
    buffer_load_dwordx2 v[{vPOLL}:{vPOLL+1}], v{vHA}, s[{sWS}:{sWS+3}], 0 offen sc1""")
    a(f"""
    s_add_u32 s{sT0}, s{sE}, 8
    s_addc_u32 s{sT1}, s{sE+1}, 0
    s_mov_b32 s{sSPIN}, 0
    s_waitcnt vmcnt({0 if c.hello_by == "loader" else npre})
    s_and_b32 s{sT2}, s{sT1}, 0x0fffffff
    s_lshl_b32 s{sT3}, s{sXCC}, 28
    s_xor_b32 s{sT3}, s{sT1}, s{sT3}
L_hello:
    v_and_b32 v{vT0}, 0x0fffffff, v{vPOLL+1}
    v_cmp_eq_u32 vcc, s{sT0}, v{vPOLL}
    v_cmp_eq_u32 s[{sMK}:{sMK+1}], s{sT2}, v{vT0}
    s_and_b64 vcc, vcc, s[{sMK}:{sMK+1}]
    s_cmp_eq_u64 vcc, -1
    s_cbranch_scc1 L_hello_ok
    s_add_u32 s{sSPIN}, s{sSPIN}, 1
    s_cmp_gt_u32 s{sSPIN}, {c.spin_max}
    s_cbranch_scc1 L_end
    buffer_load_dwordx2 v[{vPOLL}:{vPOLL+1}], v{vHA}, s[{sWS}:{sWS+3}], 0 offen sc1
    s_waitcnt vmcnt(0)
    s_branch L_hello
L_hello_ok:
    v_cmp_eq_u32 vcc, s{sT3}, v{vPOLL+1}
    s_cmp_eq_u64 vcc, -1
    s_cselect_b32 s{sMODE}, {0 if c.force_slow else 1}, 0
    s_branch L_tail
""")
    assert sT1 == sT0 + 1 and sT0 % 2 == 0
    a("L_layer2:")
    stamp()
    kloop(False)
    if TS == 4:
        a("    s_memtime s[98:99]")
        a("    s_waitcnt lgkmcnt(0)")
        for k in range(10):
            a(f"    s_mov_b32 m0, s{sTSI}")
            a(f"    s_nop 0")
            a(f"    v_writelane_b32 v{vTS}, s{80+2*k}, m0")
            a(f"    s_add_u32 s{sTSI}, s{sTSI}, 1")
    a("L_tail:")
    if c.amp and c.amp[0] == "l0k":
        a(f"""    s_cmp_eq_u32 s{sL}, 0
    s_cbranch_scc0 L_amp2
    s_memtime s[26:27]
    s_waitcnt lgkmcnt(0)
    s_sub_u32 s25, s26, s100
L_amp2:""")
    if TS in (2, 3):
        a("    s_nop 15")
        stamp()
    a(f"    v_mov_b32 v{vFV}, s{sTA}")
    a(f"    v_mov_b32 v{vFV+1}, s{sTA+1}")
    a("    s_nop 8")
    for q in range(4):
        a(f"    ds_write_b128 v{vRW}, v[{vAS+4*q}:{vAS+4*q+3}] offset:{q*1024}")
    if c.epi2:
        a("    s_nop 0")
        for r in range(0, 16, 2):
            a(f"    v_pk_fma_f32 v[{vAK+r}:{vAK+r+1}], v[{vX0F+r}:{vX0F+r+1}], v[{vAK+r}:{vAK+r+1}], v[{vXR+r}:{vXR+r+1}]")
    a("    s_waitcnt lgkmcnt(0)")
    a("    s_barrier                                 ; B2")
    stamp(3)
    for q in range(4):
        a(f"    ds_read_b128 v[{vPART+4*q}:{vPART+4*q+3}], v{vRR} offset:{q*1024}")
    def epi(q):
        a(f"    s_waitcnt lgkmcnt({3-q})")
        if c.epi2:
            for p in range(2):
                r = 4 * q + 2 * p
                a(f"    v_pk_fma_f32 v[{vAK+r}:{vAK+r+1}], v[{vX0F+r}:{vX0F+r+1}], v[{vPART+r}:{vPART+r+1}], v[{vAK+r}:{vAK+r+1}]")
        else:
            for p in range(2):
                r = 4 * q + 2 * p
                a(f"    v_pk_add_f32 v[{vAK+r}:{vAK+r+1}], v[{vAK+r}:{vAK+r+1}], v[{vPART+r}:{vPART+r+1}]")
            for p in range(2):
                r = 4 * q + 2 * p
                a(f"    v_pk_fma_f32 v[{vAK+r}:{vAK+r+1}], v[{vX0F+r}:{vX0F+r+1}], v[{vAK+r}:{vAK+r+1}], v[{vXR+r}:{vXR+r+1}]")
        for p in range(2):
            r = 4 * q + 2 * p
            a(f"    v_cvt_pk_bf16_f32 v{vP+2*q+p}, v{vAK+r}, v{vAK+r+1}")
    a(f"""
    s_cmp_eq_u32 s{sL}, 5
    s_cbranch_scc1 L_final
    s_cmp_eq_u32 s{sMODE}, 0
    s_cbranch_scc1 L_st_slow
""")
    epi(0); epi(1)
    a(f"    buffer_store_dwordx4 v[{vP}:{vP+3}], v{vXO}, s[{sWS}:{sWS+3}], s{sXST} offen")
    epi(2); epi(3)
    a(f"    buffer_store_dwordx4 v[{vP+4}:{vP+7}], v{vXO}, s[{sWS}:{sWS+3}], s{sXST} offen offset:1024")
    if c.phased: a("    s_barrier                                 ; B_s")
    stamp(3)
    def unpack_res():
        for d in range(8):
            a(f"    v_lshlrev_b32 v{vXR+2*d}, 16, v{vP+d}")
            a(f"    v_and_b32 v{vXR+2*d+1}, 0xffff0000, v{vP+d}")
    bias_load()
    unpack_res()
    a(f"""
    s_waitcnt vmcnt(0)
    buffer_store_dwordx2 v[{vFV}:{vFV+1}], off, s[{sWS}:{sWS+3}], s{sOWNF}
    s_branch L_st_done
L_st_slow:
""")
    epi(0); epi(1); epi(2); epi(3)
    a(f"""
    buffer_store_dwordx4 v[{vP}:{vP+3}], v{vXO}, s[{sWS}:{sWS+3}], s{sXST} offen sc1
    buffer_store_dwordx4 v[{vP+4}:{vP+7}], v{vXO}, s[{sWS}:{sWS+3}], s{sXST} offen offset:1024 sc1
""")
    if c.phased: a("    s_barrier                                 ; B_s")
    stamp(3)
    bias_load()
    unpack_res()
    a(f"""
    s_waitcnt vmcnt(0)
    buffer_store_dwordx2 v[{vFV}:{vFV+1}], off, s[{sWS}:{sWS+3}], s{sOWNF} sc1
L_st_done:
""")
    stamp()
    if c.onepoll:
        a(f"""
    s_cmp_eq_u32 s{sWV}, 0
    s_cbranch_scc0 L_nopoll1""")
    a(f"""
    buffer_load_dwordx2 v[{vPOLL}:{vPOLL+1}], v{vFA}, s[{sWS}:{sWS+3}], 0 offen sc1
L_nopoll1:
    {"s_barrier                                 ; B_f" if c.phased else ""}
""")
    def progress(lab):
        a(f"""    s_or_b32 s{sT0}, s{sJ}, s{sWV}
    s_cmp_eq_u32 s{sT0}, 0
    s_cbranch_scc0 {lab}
    s_add_u32 s{sT0}, s{sCB}, 3072
    buffer_store_dwordx2 v[{vFV}:{vFV+1}], off, s[{sWS}:{sWS+3}], s{sT0}
{lab}:""")
    if c.prog_at == "end": progress("L_noprog")
    a(f"""
    s_add_u32 s{sL}, s{sL}, 1
    s_cmp_eq_u32 s{sL}, 1
    s_cbranch_scc1 L_keep_xa
    s_add_u32 s{sXA}, s{sXA}, s{sXD}
    s_add_u32 s{sXB}, s{sXB}, s{sXD}
    s_sub_u32 s{sXD}, 0, s{sXD}
L_keep_xa:
    s_add_u32 s{sXST}, s{sXST}, s{sXD2}
    s_sub_u32 s{sXD2}, 0, s{sXD2}
    s_add_u32 s{sWP}, s{sWP}, {c.wstride}
    s_sub_u32 s{sMP}, s{sMP}, s{sPD}
    v_add_u32 v{vAPK}, s{sPD}, v{vAPK}
    v_add_u32 v{vAPS}, s{sPD}, v{vAPS}
    s_sub_u32 s{sPD}, 0, s{sPD}
    s_mov_b32 s{sSPIN}, 0
""")
    a("    s_waitcnt lgkmcnt(0)")
    bias_spread()
    if c.onepoll:
        a(f"""
    s_cmp_eq_u32 s{sWV}, 0
    s_cbranch_scc0 L_ready""")
    if c.poll2:
        a(f"""L_poll:
    buffer_load_dwordx2 v[{vPOL2}:{vPOL2+1}], v{vFA}, s[{sWS}:{sWS+3}], 0 offen sc1
    s_waitcnt vmcnt(1)
    v_cmp_eq_u64 vcc, s[{sTA}:{sTA+1}], v[{vPOLL}:{vPOLL+1}]
    v_cmp_eq_u64 s[{sMK}:{sMK+1}], s[{sTB}:{sTB+1}], v[{vPOLL}:{vPOLL+1}]
    s_or_b64 vcc, vcc, s[{sMK}:{sMK+1}]
    s_cmp_eq_u64 vcc, -1
    s_cbranch_scc1 L_ready
    buffer_load_dwordx2 v[{vPOLL}:{vPOLL+1}], v{vFA}, s[{sWS}:{sWS+3}], 0 offen sc1
    s_waitcnt vmcnt(1)
    v_cmp_eq_u64 vcc, s[{sTA}:{sTA+1}], v[{vPOL2}:{vPOL2+1}]
    v_cmp_eq_u64 s[{sMK}:{sMK+1}], s[{sTB}:{sTB+1}], v[{vPOL2}:{vPOL2+1}]
    s_or_b64 vcc, vcc, s[{sMK}:{sMK+1}]
    s_cmp_eq_u64 vcc, -1
    s_cbranch_scc1 L_ready
    s_add_u32 s{sSPIN}, s{sSPIN}, 1
    s_cmp_gt_u32 s{sSPIN}, {c.spin_max}
    s_cbranch_scc0 L_poll
    s_endpgm
""")
    else:
        a(f"""L_poll:
    s_waitcnt vmcnt(0)
    v_cmp_eq_u64 vcc, s[{sTA}:{sTA+1}], v[{vPOLL}:{vPOLL+1}]
    v_cmp_eq_u64 s[{sMK}:{sMK+1}], s[{sTB}:{sTB+1}], v[{vPOLL}:{vPOLL+1}]
    s_or_b64 vcc, vcc, s[{sMK}:{sMK+1}]
    s_cmp_eq_u64 vcc, -1
    s_cbranch_scc1 L_ready
    buffer_load_dwordx2 v[{vPOLL}:{vPOLL+1}], v{vFA}, s[{sWS}:{sWS+3}], 0 offen sc1
    s_add_u32 s{sSPIN}, s{sSPIN}, 1
    s_cmp_gt_u32 s{sSPIN}, {c.spin_max}
    s_cbranch_scc0 L_poll
    s_endpgm
""")
    a(f"""L_ready:
""")
    if c.amp and c.amp[0] == "start":
        a(f"""    s_cmp_eq_u32 s{sL}, 1
    s_cbranch_scc0 L_amp1
    s_memtime s[26:27]
    s_waitcnt lgkmcnt(0)
    s_sub_u32 s25, s26, s100
L_amp1:""")
    stamp(1)
    a(f"""
    s_barrier                                 ; B_a
    s_branch L_layer2
L_final:
""")
    epi(0); epi(1); epi(2); epi(3)
    a(f"""
    s_nop 1
    v_permlane32_swap_b32 v{vP}, v{vP+2}
    v_permlane32_swap_b32 v{vP+1}, v{vP+3}
    v_permlane32_swap_b32 v{vP+4}, v{vP+6}
    v_permlane32_swap_b32 v{vP+5}, v{vP+7}
""")
    if c.amp and c.amp[0] == "fin":
        a("    s_memtime s[100:101]\n    s_waitcnt lgkmcnt(0)")
    a(f"""
    buffer_store_dwordx4 v[{vP}:{vP+3}], v{vOUT}, s[{sOUT}:{sOUT+3}], 0 offen
    buffer_store_dwordx4 v[{vP+4}:{vP+7}], v{vOUT}, s[{sOUT}:{sOUT+3}], 0 offen offset:32
""")
    if c.amp and c.amp[0] == "fin":
        a("    s_waitcnt vmcnt(0)\n    s_memtime s[26:27]\n    s_waitcnt lgkmcnt(0)\n    s_sub_u32 s25, s26, s100")
    a(f"""
    s_or_b32 s{sT0}, s{sJ}, s{sWV}
    s_cmp_eq_u32 s{sT0}, 0
    s_cbranch_scc0 L_noepoch
    s_add_u32 s{sT0}, s{sE}, 16
    s_addc_u32 s{sT1}, s{sE+1}, 0
    v_mov_b32 v{vFV}, s{sT0}
    v_mov_b32 v{vFV+1}, s{sT1}
    s_mov_b64 exec, 1
    buffer_store_dwordx2 v[{vFV}:{vFV+1}], off, s[{sWS}:{sWS+3}], s{sCB} sc1
    s_mov_b64 exec, -1
L_noepoch:
""")
    if c.amp:
        if c.amp[0] in ("total", "totalrt"):
            a(("    s_memtime s[26:27]" if c.amp[0] == "total" else "    s_memrealtime s[26:27]") + """
    s_waitcnt lgkmcnt(0)
    s_sub_u32 s25, s26, s100""")
        tm = "s_memrealtime" if c.amp[0] == "totalrt" else "s_memtime"
        a(f"""    s_cmp_eq_u32 s2, 0
    s_cbranch_scc0 L_amp9
    s_mul_i32 s25, s25, {c.amp[1]}
    {tm} s[80:81]
    s_waitcnt lgkmcnt(0)
L_ampspin:
    {tm} s[82:83]
    s_waitcnt lgkmcnt(0)
    s_sub_u32 s82, s82, s80
    s_cmp_lt_u32 s82, s25
    s_cbranch_scc1 L_ampspin
L_amp9:""")
    if c.exp_delay or c.exp_rt:
        ins = "s_memtime" if c.exp_delay else "s_memrealtime"
        a(f"""
    {ins} s[80:81]
    s_waitcnt lgkmcnt(0)
L_expd:
    {ins} s[82:83]
    s_waitcnt lgkmcnt(0)
    s_sub_u32 s82, s82, s80
    s_cmp_lt_u32 s82, {c.exp_delay or c.exp_rt}
    s_cbranch_scc1 L_expd
""")
    stamp(1); dump_ts()
    a("    s_endpgm")

    if c.helpers:
        HPR = (c.SV * 16 + (2 * NSR if c.sp else 0)) if c.hp is None else c.hp * 16
        HP = HPR // 16
        nrow = 208 - HPR
        nline = nrow * 13
        tot = 4 * nline
        nins = (tot + 63) // 64
        cdelta = HPR * ROWB
        NK = -(-nins // 48)
        HF = 1 if ((c.h0 == 'prefix' or c.w0assist) and c.hfirst == 0) else c.hfirst
        a(f"""
L_helper:
""")
        if c.probe:
            a(f"""
    s_cmp_eq_u32 s2, 208
    s_cbranch_scc0 L_noprobe
    s_cmp_eq_u32 s{sWV}, 0
    s_cbranch_scc0 L_noprobe
    s_mov_b32 s20, {c.probe_off + 16384}
    buffer_load_dword v30, off, s[{sW}:{sW+3}], s20
    s_waitcnt vmcnt(0)
    s_mov_b32 s20, {c.probe_off}
    s_memtime s[22:23]
    s_waitcnt lgkmcnt(0)
    buffer_load_dword v30, off, s[{sW}:{sW+3}], s20
    s_waitcnt vmcnt(0)
    s_memtime s[24:25]
    s_waitcnt lgkmcnt(0)
    s_sub_u32 s24, s24, s22
    s_mul_i32 s24, s24, {c.probe}
L_pspin:
    s_memtime s[26:27]
    s_waitcnt lgkmcnt(0)
    s_sub_u32 s26, s26, s22
    s_cmp_lt_u32 s26, s24
    s_cbranch_scc1 L_pspin
    s_endpgm
L_noprobe:""")
        a(f"""
    ; L2 prefetch for the workers of this die (placement assumed for speed only): one dword per 128-byte line
    s_sub_u32 s{sT0}, s2, 208
    s_and_b32 s{sT1}, s{sT0}, 7
    s_lshr_b32 s{sT0}, s{sT0}, 3
    s_lshl_b32 s{sT0}, s{sT0}, 3
    s_add_u32 s{sT0}, s{sT0}, s{sWV}          ; g = 0..47
    s_lshl_b32 s{sCB}, s{sT1}, 13
    s_add_u32 s{sCB}, s{sCB}, {CTRL}
    s_load_dwordx2 s[{sE}:{sE+1}], s[50:51], s{sCB}
    s_add_u32 s{sOWNF}, s{sCB}, 3072
""")
        if c.tlbwarm:
            a(f"""
    s_cmp_eq_u32 s{sWV}, 7
    s_cbranch_scc0 L_notlb
""")
            k_ = 0
            for base, offs in ((46, [0, XLAYER - 64]), (50, [0, XBUF - 64, XBUF + (1 << 20), 2 * XBUF - 64, 2 * XBUF + 65536 - 64]),
                               (42, [1 << 21, 2 << 21, 3 << 21, L_ * WLAYER - 64])):
                for off in offs:
                    a(f"""    s_add_u32 s24, s{base}, {off}
    s_addc_u32 s25, s{base+1}, 0
    s_load_dword s{76+k_}, s[24:25], 0""")
                    k_ += 1
            a("L_notlb:")
        a(f"""
    ; exchange-buffer lines of the die's two row blocks: {2*XRB//128} lines
    s_mul_i32 s{sG}, s{sT1}, {2*XRB}
    s_lshl_b32 s{sI}, s{sT0}, 13
    s_add_u32 s{sG}, s{sG}, s{sI}
    v_lshlrev_b32 v19, 7, v{vL}
    v_add_u32 v19, s{sG}, v19
    s_cmp_lt_u32 s{sT0}, {-(-2*XRB // 8192)}
    s_cselect_b32 s{sM}, 1, 0
""")
        def lane_addr(vdst, nline_, base0, delta):
            tot_ = 4 * nline_
            a(f"""
    s_lshl_b32 s{sI}, s{sI}, 6
    v_add_u32 v{vT0}, s{sI}, v{vL}
    v_mov_b32 v{vT1}, {base0}
    v_cmp_le_u32 vcc, {nline_}, v{vT0}
    v_mov_b32 v{vT2}, 0
    v_mov_b32 v{vT3}, {delta}
    v_cndmask_b32 v{vT2}, v{vT2}, v{vT3}, vcc
    v_add_u32 v{vT1}, v{vT1}, v{vT2}
    v_cmp_le_u32 vcc, {2*nline_}, v{vT0}
    v_mov_b32 v{vT2}, 0
    s_nop 0
    v_cndmask_b32 v{vT2}, v{vT2}, v{vT3}, vcc
    v_add_u32 v{vT1}, v{vT1}, v{vT2}
    v_cmp_le_u32 vcc, {3*nline_}, v{vT0}
    v_mov_b32 v{vT2}, 0
    s_nop 0
    v_cndmask_b32 v{vT2}, v{vT2}, v{vT3}, vcc
    v_add_u32 v{vT1}, v{vT1}, v{vT2}
    v_lshl_add_u32 v{vdst}, v{vT0}, 7, v{vT1}
    v_cmp_le_u32 vcc, {tot_}, v{vT0}
    v_mov_b32 v{vT2}, 0x7ffffff0
    s_nop 0
    v_cndmask_b32 v{vdst}, v{vdst}, v{vT2}, vcc""")
        def need_set(vbase, skip_rows, nrows):
            tot_ = nrows * 52
            nins_ = (tot_ + 63) // 64
            nk = -(-nins_ // 48)
            for k in range(nk):
                a(f"""
    s_add_u32 s{sI}, s{sT0}, {48*k}
    s_lshl_b32 s{sI}, s{sI}, 6
    v_add_u32 v{vT0}, s{sI}, v{vL}
    v_mul_u32_u24 v{vT1}, 80660, v{vT0}
    v_lshrrev_b32 v{vT1}, 22, v{vT1}
    v_mul_u32_u24 v{vT2}, 52, v{vT1}
    v_sub_u32 v{vT2}, v{vT0}, v{vT2}          ; rem
    v_mul_u32_u24 v{vT3}, 5042, v{vT2}
    v_lshrrev_b32 v{vT3}, 16, v{vT3}
    v_mul_u32_u24 v{vbase+k}, 13, v{vT3}
    v_sub_u32 v{vT2}, v{vT2}, v{vbase+k}
    v_mul_u32_u24 v{vT3}, 208, v{vT3}
    v_add_u32 v{vT1}, v{vT1}, v{vT3}
    v_add_u32 v{vT1}, {skip_rows}, v{vT1}     ; row
    v_mul_u32_u24 v{vT1}, {ROWB}, v{vT1}
    v_lshl_add_u32 v{vbase+k}, v{vT2}, 7, v{vT1}
    v_cmp_le_u32 vcc, {tot_}, v{vT0}
    v_mov_b32 v{vT2}, 0x7ffffff0
    s_nop 0
    v_cndmask_b32 v{vbase+k}, v{vbase+k}, v{vT2}, vcc""")
            return nk
        def addr_set(vbase, nline_, base0, delta, tag):
            tot_ = 4 * nline_
            nins_ = (tot_ + 63) // 64
            nk = -(-nins_ // 48)
            a(f"    s_mul_i32 s{sT2}, s{sT1}, {nins_ // 8}")
            for k in range(nk):
                a(f"""
    s_add_u32 s{sT3}, s{sT0}, {48*k}
    s_add_u32 s{sI}, s{sT3}, s{sT2}
    s_cmp_ge_u32 s{sI}, {nins_}
    s_cselect_b32 s{sG}, {nins_}, 0
    s_sub_u32 s{sI}, s{sI}, s{sG}
    s_cmp_ge_u32 s{sT3}, {nins_}
    s_cselect_b32 s{sI}, {nins_ + 8}, s{sI}   ; no k-th instruction -> past the end""")
                lane_addr(vbase + k, nline_, base0, delta)
            return nk
        NK0 = 0
        if c.w0assist and c.hfirst == 0:
            skip0 = P * 16 + 60
            NK0 = addr_set(40, (208 - skip0) * 13, skip0 * ROWB, skip0 * ROWB, "p")
            for k in range(NK0):
                a(f"    buffer_load_dword v{50+k}, v{40+k}, s[{sW}:{sW+3}], 0 offen")
        elif c.h0 == "prefix" and c.hfirst == 0:
            NK0 = addr_set(40, HP * 16 * 13, 0, (13 - HP) * 26624, "p")
            for k in range(NK0):
                a(f"    buffer_load_dword v{50+k}, v{40+k}, s[{sW}:{sW+3}], 0 offen")
        if c.horder == "need": need_set(10, HPR, nrow)
        else: addr_set(10, nline, cdelta, cdelta, "h")
        nshare_l = tot // 8
        NW_ = 14
        if c.hwarm:
            a(f"""
    s_mul_i32 s{sI}, s{sT1}, {nshare_l}
    s_mul_i32 s{sG}, s{sT0}, {NW_}
    s_add_u32 s{sI}, s{sI}, s{sG}
    s_mov_b32 s{sG}, {cdelta}
    s_cmp_ge_u32 s{sI}, {nline}
    s_cselect_b32 s{sT3}, {cdelta}, 0
    s_add_u32 s{sG}, s{sG}, s{sT3}
    s_cmp_ge_u32 s{sI}, {2*nline}
    s_cselect_b32 s{sT3}, {cdelta}, 0
    s_add_u32 s{sG}, s{sG}, s{sT3}
    s_cmp_ge_u32 s{sI}, {3*nline}
    s_cselect_b32 s{sT3}, {cdelta}, 0
    s_add_u32 s{sG}, s{sG}, s{sT3}
    s_lshl_b32 s{sI}, s{sI}, 7
    s_add_u32 s{sI}, s{sI}, s{sG}
    s_add_u32 s{sI}, s{sI}, {c.wstride}
    s_add_u32 s44, s42, s{sI}                 ; layer 1
    s_addc_u32 s45, s43, 0""")
        if c.hvec_warm:
            a(f"""
    ; memory-side cache warm-up: lines [die*1352, +1352) of a later layer, one line per lane; waves g < 22 (and g - 22 < 22 at the start)
    s_cmp_ge_u32 s{sT0}, 22
    s_cselect_b32 s{sG}, 22, 0
    s_cselect_b32 s{sWG}, 1, 0
    s_sub_u32 s{sG}, s{sT0}, s{sG}
    s_lshl_b32 s{sG}, s{sG}, 6
    s_mul_i32 s{sI}, s{sT1}, 1352
    s_add_u32 s{sI}, s{sI}, s{sG}
    v_add_u32 v{vT0}, s{sI}, v{vL}
    v_lshlrev_b32 v18, 7, v{vT0}
    v_add_u32 v{vT1}, s{sG}, v{vL}
    v_cmp_le_u32 vcc, 1352, v{vT1}
    v_mov_b32 v{vT2}, 0x7ffffff0
    s_nop 0
    v_cndmask_b32 v18, v18, v{vT2}, vcc""")
        nv_l = c.SV * 16 * 52 // 8
        if c.hvwarm:
            a(f"""
    s_mul_i32 s{sI}, s{sT1}, {nv_l}
    s_mul_i32 s{sG}, s{sT0}, 7
    s_min_u32 s{sG}, s{sG}, {nv_l - 7}
    s_add_u32 s{sI}, s{sI}, s{sG}
    s_mov_b32 s{sG}, 0
    s_cmp_ge_u32 s{sI}, {c.SV * 16 * 13}
    s_cselect_b32 s{sT3}, {(208 - c.SV * 16) * ROWB}, 0
    s_add_u32 s{sG}, s{sG}, s{sT3}
    s_cmp_ge_u32 s{sI}, {2 * c.SV * 16 * 13}
    s_cselect_b32 s{sT3}, {(208 - c.SV * 16) * ROWB}, 0
    s_add_u32 s{sG}, s{sG}, s{sT3}
    s_cmp_ge_u32 s{sI}, {3 * c.SV * 16 * 13}
    s_cselect_b32 s{sT3}, {(208 - c.SV * 16) * ROWB}, 0
    s_add_u32 s{sG}, s{sG}, s{sT3}
    s_lshl_b32 s{sI}, s{sI}, 7
    s_add_u32 s{sI}, s{sI}, s{sG}
    s_add_u32 s{sI}, s{sI}, {c.wstride}
    s_add_u32 s46, s42, s{sI}                 ; layer 1
    s_addc_u32 s47, s43, 0""")
        if NK0 and c.hwarm:
            a("    s_waitcnt lgkmcnt(0)")
            for half in range(2):
                if half: a("    s_waitcnt lgkmcnt(0)")
                for n_ in range(7 * half, 7 * half + 7):
                    a(f"    s_load_dwordx2 s[{76+2*(n_%7)}:{77+2*(n_%7)}], s[44:45], {n_*128 + 60}")
            a(f"    s_add_u32 s44, s44, {c.wstride}")
            a(f"    s_addc_u32 s45, s45, 0")
        if NK0:
            a(f"""
    s_waitcnt vmcnt(0)
    s_barrier
    s_cmp_eq_u32 s{sM}, 1
    s_cbranch_scc0 L_hx1
    s_mov_b32 s{sI}, {XBUF}
    buffer_load_dword v30, v19, s[{sWS}:{sWS+3}], s{sI} offen sc1
L_hx1:
""")
        a(f"""
    v_mov_b32 v20, 0
    s_mov_b32 s{sL}, {HF}
    s_mov_b32 s{sT3}, {HF * c.wstride}
    s_waitcnt lgkmcnt(0)
L_h_layer:
""")
        if c.hpace:
            a(f"""
    ; before layer m wait (bounded) until the workers have finished layer m-{c.hlook}
    s_cmp_lt_u32 s{sL}, {c.hlook}
    s_cbranch_scc1 L_h_go
    s_cmp_eq_u32 s{sWV}, 0
    s_cbranch_scc0 L_h_bar
    s_mov_b32 s{sSPIN}, 0
L_h_poll:
    buffer_load_dwordx2 v[16:17], v20, s[{sWS}:{sWS+3}], s{sOWNF} offen sc1
    s_waitcnt vmcnt(0)
    v_readfirstlane_b32 s{sTA}, v16
    v_readfirstlane_b32 s{sTA+1}, v17
    s_sub_u32 s{sTA}, s{sTA}, s{sE}
    s_subb_u32 s{sTA+1}, s{sTA+1}, s{sE+1}
    s_cmp_eq_u32 s{sTA+1}, 0
    s_cselect_b32 s{sTA}, s{sTA}, 0
    s_cmp_gt_u32 s{sTA}, 6
    s_cselect_b32 s{sTA}, 0, s{sTA}           ; layers finished so far
    s_add_u32 s{sTA}, s{sTA}, {c.hlook - 1}
    s_cmp_ge_u32 s{sTA}, s{sL}
    s_cbranch_scc1 L_h_bar
    s_add_u32 s{sSPIN}, s{sSPIN}, 1
    s_cmp_lt_u32 s{sSPIN}, 32
    s_cbranch_scc1 L_h_poll
L_h_bar:
    s_barrier
L_h_go:
""")
        def hw_batch(k, lab):
            if not c.hwarm: return
            a(f"    s_cmp_lt_u32 s{sL}, 5")
            a(f"    s_cbranch_scc0 {lab}")
            if not c.hw0:
                a(f"    s_cmp_eq_u32 s{sL}, 0")
                a(f"    s_cbranch_scc1 {lab}")
            a("    s_waitcnt lgkmcnt(0)")
            for n_ in range(7 * k, 7 * k + 7):
                a(f"    s_load_dwordx2 s[{76+2*(n_%7)}:{77+2*(n_%7)}], s[44:45], {n_*128 + 60}")
            a(f"{lab}:")
        def vec_warm(lab):
            A_ = c.hvw_ahead
            a(f"    s_cmp_eq_u32 s{sWG}, 1")
            a(f"    s_cbranch_scc1 {lab}_b")
            a(f"    s_add_u32 s{sI}, s{sL}, {A_}")
            a(f"    s_cmp_le_u32 s{sI}, 5")
            a(f"    s_cbranch_scc0 {lab}")
            if c.wwarm:
                a(f"    s_cmp_gt_u32 s{sI}, {c.wwarm}")
                a(f"    s_cbranch_scc0 {lab}")
            a(f"    s_add_u32 s{sI}, s{sT3}, {A_ * c.wstride}")
            a(f"    buffer_load_dword v29, v18, s[{sW}:{sW+3}], s{sI} offen")
            a(f"    s_branch {lab}")
            a(f"{lab}_b:")
            if A_ == 2 and c.wwarm < 1:
                a(f"    s_cmp_eq_u32 s{sL}, {HF}")
                a(f"    s_cbranch_scc0 {lab}")
                a(f"    s_add_u32 s{sI}, s{sT3}, {c.wstride}")
                a(f"    buffer_load_dword v29, v18, s[{sW}:{sW+3}], s{sI} offen")
            a(f"{lab}:")
        if c.hvec_warm and c.hvw_pos == "before": vec_warm("L_hvw")
        for k in range(NK):
            a(f"    buffer_load_dword v{31+k}, v{10+k}, s[{sW}:{sW+3}], s{sT3} offen")
            if k < 2: hw_batch(k, f"L_hw{k}")
            a(f"    s_waitcnt vmcnt({c.hdepth})")
            a(f"    s_barrier")
        if c.hvec_warm and c.hvw_pos == "after": vec_warm("L_hvw")
        if c.hvwarm:
            a(f"    s_cmp_lt_u32 s{sL}, 5")
            a(f"    s_cbranch_scc0 L_hnv")
            a("    s_waitcnt lgkmcnt(0)")
            for n_ in range(7):
                a(f"    s_load_dwordx2 s[{76+2*n_}:{77+2*n_}], s[46:47], {n_*128 + 60}")
            a(f"    s_add_u32 s46, s46, {c.wstride}")
            a(f"    s_addc_u32 s47, s47, 0")
            a("L_hnv:")
        if c.hwarm:
            a(f"    s_add_u32 s44, s44, {c.wstride}")
            a(f"    s_addc_u32 s45, s45, 0")
        if c.xt_by in ('helper', 'mixed'):
            nbuf = 1 if c.xt_by == "mixed" else 2
            a(f"""
    s_sub_u32 s{sI}, s{sL}, {HF}
    s_add_u32 s{sI}, s{sI}, {1 if HF != c.hfirst else 0}
    s_cmp_lt_u32 s{sI}, {nbuf}
    s_cbranch_scc0 L_hx0
    s_cmp_eq_u32 s{sM}, 1
    s_cbranch_scc0 L_hx0
    s_cmp_eq_u32 s{sI}, 0
    s_cselect_b32 s{sI}, {XBUF}, 0
    buffer_load_dword v30, v19, s[{sWS}:{sWS+3}], s{sI} offen sc1
L_hx0:""")
        stamp(1)
        a(f"""
    s_add_u32 s{sL}, s{sL}, 1
    s_add_u32 s{sT3}, s{sT3}, {c.wstride}
    s_cmp_lt_u32 s{sL}, 6
    s_cbranch_scc1 L_h_layer
""")
        if c.outtouch:
            srd(sOUT, 46, XLAYER)
            a(f"""
    ; output lines of the die's 128 rows: the final stores then stay in L2
    s_cmp_eq_u32 s{sM}, 1
    s_cbranch_scc0 L_noot
    buffer_load_dword v30, v19, s[{sOUT}:{sOUT+3}], 0 offen
L_noot:""")
        if c.hwb:
            a(f"""
    ; first helper workgroup of the die, wave 0: once layer 4 is finished, start writing the exchanged activations back
    s_cmp_lt_u32 s2, 216
    s_cbranch_scc0 L_nowb
    s_cmp_eq_u32 s{sWV}, 0
    s_cbranch_scc0 L_nowb
    s_mov_b32 s{sSPIN}, 0
L_wbpoll:
    buffer_load_dwordx2 v[16:17], v20, s[{sWS}:{sWS+3}], s{sOWNF} offen sc1
    s_waitcnt vmcnt(0)
    v_readfirstlane_b32 s{sTA}, v16
    v_readfirstlane_b32 s{sTA+1}, v17
    s_sub_u32 s{sTA}, s{sTA}, s{sE}
    s_subb_u32 s{sTA+1}, s{sTA+1}, s{sE+1}
    s_cmp_eq_u32 s{sTA+1}, 0
    s_cselect_b32 s{sTA}, s{sTA}, 0
    s_cmp_eq_u32 s{sTA}, 5
    s_cbranch_scc1 L_wbgo
    s_add_u32 s{sSPIN}, s{sSPIN}, 1
    s_cmp_lt_u32 s{sSPIN}, 64
    s_cbranch_scc1 L_wbpoll
L_wbgo:
    buffer_wbl2 sc1
L_nowb:""")
        a("    s_waitcnt vmcnt(0)")
        stamp(1)
        dump_ts()
    a("L_end:")
    a("    s_endpgm")
    kernel_desc(a, KNAME, NV, sgpr=102, accum=NV)
    txt = a.text().rstrip()
    if txt.endswith(".text"):
        txt = txt[:-5]
    return txt

if __name__ == "__main__":
    import json
    kw = json.loads(sys.argv[2]) if len(sys.argv) > 2 else {}
    open(sys.argv[1], "w").write(gen(**kw))
```

```python
import sys, os
from asmlib import *

KNAME = "standalone__dcn_v2_cross__recsys_kernel"
B_, DIN, L_ = 1024, 832, 6
ROWB = DIN * 2
WLAYER = DIN * DIN * 2
XLAYER = B_ * DIN * 2
XMH = 32 * ROWB
XRB = 2 * XMH
XBUF = 16 * XRB
CTRL = 2 * XBUF
TSOFF = CTRL + 16 * 4096
WS_BYTES = TSOFF + 256 * 8 * 256

class Cfg:
    def __init__(self, **kw):
        self.P = 6
        self.D = 5
        self.PF = 2
        self.SV = 3
        self.SB = 7
        self.ssched = 'three'
        self.NS = 3
        self.sp = True
        self.hp = None
        self.helpers = True
        self.hfirst = 0
        self.hlook = 2
        self.hpace = True
        self.hdepth = 1
        self.lthr = 0
        self.lthr_all = True
        self.sD_late = True
        self.ts = 0
        self.force_slow = False
        self.scramble = False
        self.spin_max = 1 << 20
        self.wstride = WLAYER
        self.prio = 2
        self.hello_step = 19
        self.r1touch = False
        self.w0scal = False
        self.epi2 = True
        self.outtouch = False
        self.vw2 = 'after_by'
        self.nt_last = False
        self.hfirstid = False
        self.chunks0 = [13, 17, 20, 23]
        self.amp = None
        self.hwb = False
        self.probe = 0
        self.probe_off = 5 * WLAYER + 700 * ROWB
        self.codepf = True
        self.wwarm = 0
        self.xt_by = 'helper'
        self.hvec_warm = False
        self.hvw_ahead = 2
        self.hvw_pos = 'after'
        self.tlbwarm = False
        self.l0b1 = True
        self.hvwarm = False
        self.hw0 = True
        self.hello_by = 'compute'
        self.pre_first = False
        self.swarm = False
        self.horder = 'linear'
        self.hwarm = True
        self.prog_step = 22
        self.prog_at = 'end'
        self.vwarm = True
        self.pre_by = 'loader'
        self.mid_step = 21
        self.presched = 'pack'
        self.h0 = 'middle'
        self.xtouch = False
        self.w0assist = False
        self.bias_by = 'loader'
        self.exp_delay = 0
        self.exp_rt = 0
        self.poll2 = True
        self.phased = True
        self.n1 = 0
        self.n2 = 4
        self.onepoll = True
        self.no_suf = self.no_pre = self.no_x = self.no_w = False
        self.__dict__.update(kw)

def gen(cfg=None, **kw):
    c = cfg or Cfg(**kw)
    P, D, PF = c.P, c.D, c.PF
    TS = int(c.ts)
    assert P <= 12 and PF <= P and D >= PF + 1
    KHS = (26 - P) * 2048
    PRE0 = 0
    SUF = 2 * P * 2048
    PRE1 = SUF + 2 * KHS
    PREPAR = PRE1 - PRE0
    RED = PRE1 + 2 * P * 2048
    BIAS = RED + 16384
    MODEW = BIAS
    LDS_BYTES = BIAS + 64
    XS = SUF
    assert XS + 4 * 28672 <= BIAS and LDS_BYTES <= 163840
    sW, sWS, sX0, sOUT, sBS = 4, 8, 12, 16, 24
    sRB, sJ, sG2, sWV, sMH, sKH, sL, sXCC, sMODE = 28, 29, 30, 31, 32, 33, 34, 35, 36
    sXA, sXB, sXST = 37, 38, 39
    sWP, sMP, sPD = 52, 53, 54
    sU, sOWNF, sXD2 = 55, 56, 57
    sT0, sT1, sT2, sT3 = 58, 59, 60, 61
    sSPIN, sROT = 62, 63
    sG, sM, sI = 64, 65, 66
    sTSI, sTM = 67, 68
    sXD, sCB = 70, 71
    sE, sTA, sTB, sMK = 72, 74, 76, 78
    sBP_ = 48
    sWG = 30
    vL = 0
    vT0, vT1, vT2, vT3 = 1, 2, 3, 4
    vDUM = 5
    vXO = 6
    vAPK, vAPS, vASK, vASS = 10, 11, 12, 13
    vDMA, vFA = 14, 15
    vPOLL = 16
    vRW, vRR, vBA, vTS = 20, 21, 22, 23
    vP = 24
    vAK, vAS, vPART, vX0F, vXR = 32, 48, 64, 80, 96
    vWF = 112
    vXF = 136
    vBP = 240
    vOUT, vHA, vFV, vDMA0 = 248, 249, 250, 252
    vPOL2 = 254
    NV = 256
    nsets = PF + 1
    assert nsets * 8 <= 24

    a = Asm()
    a("; Fused DCN-v2 cross network: 6 layers of x = x0 * (x @ W[l] + b[l]) + x, 1024 x 832, bf16 in/out, f32 accumulate.")
    a("; 208 worker workgroups = 16 row blocks (64 rows) x 13 column slices (64 columns); waves 0-3 MFMA, waves 4-7 W loaders;")
    a("; 48 helper workgroups prefetch into L2.  Layer outputs are exchanged inside a row block through d_ws.")
    a(f"; @launch grid=({256 if c.helpers else 208},1,1) block=(512,1,1) lds={LDS_BYTES}")
    a('.amdgcn_target "amdgcn-amd-amdhsa--gfx950"')
    a(".text")
    kernel_begin(a, KNAME)
    if c.amp:
        a("    s_memrealtime s[100:101]" if c.amp[0] == "totalrt" else "    s_memtime s[100:101]")
    if TS == 5:
        a("    s_memrealtime s[26:27]")
        a("    s_memtime s[100:101]")

    def stamp(level=2):
        if not TS or TS < level or (TS == 4 and level > 1) or TS == 5: return
        a(f"    s_memtime s[{sTM}:{sTM+1}]")
        a(f"    s_waitcnt lgkmcnt(0)")
        a(f"    s_mov_b32 m0, s{sTSI}")
        a(f"    s_nop 0")
        a(f"    v_writelane_b32 v{vTS}, s{sTM}, m0")
        a(f"    s_add_u32 s{sTSI}, s{sTSI}, 1")
    def dump_ts():
        if not TS: return
        if TS == 5:
            a("    s_memrealtime s[80:81]")
            a("    s_memtime s[82:83]")
            a("    s_waitcnt lgkmcnt(0)")
            a(f"    v_writelane_b32 v{vTS}, s26, 0")
            a(f"    v_writelane_b32 v{vTS}, s80, 1")
            a(f"    v_writelane_b32 v{vTS}, s100, 2")
            a(f"    v_writelane_b32 v{vTS}, s82, 3")
        a(f"""
    s_lshl_b32 s{sT0}, s2, 3
    s_add_u32 s{sT0}, s{sT0}, s{sWV}
    s_lshl_b32 s{sT0}, s{sT0}, 8
    s_add_u32 s{sT0}, s{sT0}, {TSOFF}
    v_lshlrev_b32 v{vT0}, 2, v{vL}
    buffer_store_dword v{vTS}, v{vT0}, s[{sWS}:{sWS+3}], s{sT0} offen
""")
    def srd(dst, src, nbytes):
        a(f"    s_mov_b32 s{dst}, s{src}")
        a(f"    s_and_b32 s{dst+1}, s{src+1}, 0xffff")
        a(f"    s_mov_b32 s{dst+2}, {nbytes}")
        a(f"    s_mov_b32 s{dst+3}, 0x20000")

    a(f"""
    s_cmp_ge_u32 s2, {256 if c.helpers else 208}
    s_cbranch_scc1 L_end
    s_load_dwordx4 s[40:43], s[0:1], 0
    s_load_dwordx4 s[44:47], s[0:1], 16
    s_load_dwordx2 s[50:51], s[0:1], 40
    s_getreg_b32 s{sXCC}, hwreg(HW_REG_XCC_ID, 0, 4)
""")
    if c.hfirstid and c.helpers:
        a("""    s_cmp_lt_u32 s2, 48
    s_cselect_b32 s3, 256, 0
    s_add_u32 s2, s2, s3
    s_sub_u32 s2, s2, 48""")
    if c.scramble:
        a(f"""
    s_mul_hi_u32 s{sRB}, s2, 0x13B13B14
    s_mul_i32 s{sT0}, s{sRB}, 13
    s_sub_u32 s{sJ}, s2, s{sT0}
    s_and_b32 s{sG2}, s{sRB}, 1
    s_mul_i32 s{sROT}, s{sG2}, 13""")
    else:
        a(f"""
    s_and_b32 s{sT0}, s2, 7
    s_lshr_b32 s{sT1}, s2, 3
    s_cmp_ge_u32 s{sT1}, 13
    s_cselect_b32 s{sG2}, 1, 0
    s_mul_i32 s{sROT}, s{sG2}, 13
    s_sub_u32 s{sJ}, s{sT1}, s{sROT}
    s_lshl_b32 s{sRB}, s{sT0}, 1
    s_add_u32 s{sRB}, s{sRB}, s{sG2}""")
    a(f"""
    v_lshrrev_b32 v{vT0}, 6, v0
    v_and_b32 v{vL}, 63, v0
    v_readfirstlane_b32 s{sWV}, v{vT0}
    s_mov_b32 s{sTSI}, 0
    v_mov_b32 v{vTS}, 0
    s_lshl_b32 s{sCB}, s{sRB}, 12
    s_add_u32 s{sCB}, s{sCB}, {CTRL}
    s_and_b32 s{sMH}, s{sWV}, 1
    s_bfe_u32 s{sKH}, s{sWV}, 0x10001
    ; ---- x0 staging addresses (used by the loader waves; computed while the kernel arguments are on their way)
    s_sub_u32 s{sU}, s{sWV}, 4                ; u = 0..3: (kh, a) for W, compute wave u for the x0 staging
    v_lshrrev_b32 v{vT0}, 3, v{vL}            ; row8
    v_and_b32 v{vT1}, 7, v{vL}
    v_lshrrev_b32 v{vT2}, 1, v{vT0}
    v_xor_b32 v{vT1}, v{vT1}, v{vT2}          ; c' ^ (row8>>1)
    v_xor_b32 v{vT2}, 4, v{vT1}
    v_mul_u32_u24 v{vT0}, {ROWB}, v{vT0}
    v_lshl_add_u32 v{vXO}, v{vT1}, 4, v{vT0}
    v_lshl_add_u32 v{vXO+1}, v{vT2}, 4, v{vT0}
    s_lshl_b32 s{sT0}, s{sRB}, 6
    s_lshl_b32 s{sT1}, s{sMH}, 5
    s_add_u32 s{sT0}, s{sT0}, s{sT1}
    s_mul_i32 s{sG}, s{sT0}, {ROWB}
    s_mul_i32 s{sT1}, s{sKH}, {6*128}
    s_add_u32 s{sG}, s{sG}, s{sT1}
    s_mul_i32 s{sM}, s{sU}, 28672
    s_add_u32 s{sM}, s{sM}, {XS}
    s_cmp_ge_u32 s{sJ}, 7
    s_cselect_b32 s{sT3}, 7, 0
    s_sub_u32 s{sT3}, s{sJ}, s{sT3}
    s_mov_b32 s{sI}, 0
    s_waitcnt lgkmcnt(0)
""")
    if c.amp and c.amp[0] == "karg":
        a("    s_memtime s[26:27]\n    s_waitcnt lgkmcnt(0)\n    s_sub_u32 s25, s26, s100")
    srd(sX0, 40, XLAYER)
    stamp(1)
    def common_srds():
        srd(sW, 42, L_ * WLAYER)
        srd(sWS, 50, WS_BYTES)
        if c.codepf:
            n_ = common_srds.n = getattr(common_srds, "n", 0) + 1
            a(f"""    ; instruction prefetch into L2: wave (id/8)*8 + w reads line number (that index) of this kernel's code
    s_getpc_b64 s[20:21]
L_pc{n_}:
    s_lshr_b32 s22, s2, 3
    s_lshl_b32 s22, s22, 3
    s_add_u32 s22, s22, s{sWV}
    s_lshl_b32 s22, s22, 6
    s_sub_u32 s20, s20, L_pc{n_} - {KNAME}
    s_subb_u32 s21, s21, 0
    s_min_u32 s22, s22, L_end - {KNAME}
    s_load_dword s3, s[20:21], s22""")
    def vdma():
        a(f"""    ; W DMA lane offsets: swizzled 16-byte chunk + j*128; rows in layer-0 order (vDMA0) and in normal order (vDMA)
    v_lshrrev_b32 v{vT0}, 3, v{vL}            ; row8
    v_and_b32 v{vT1}, 7, v{vL}
    v_bfe_u32 v{vT2}, v{vL}, 4, 1
    v_lshlrev_b32 v{vT2}, 2, v{vT2}
    v_xor_b32 v{vT1}, v{vT1}, v{vT2}
    v_lshlrev_b32 v{vT1}, 4, v{vT1}
    s_lshl_b32 s{sT0}, s{sJ}, 7
    v_add_u32 v{vT1}, s{sT0}, v{vT1}
    v_mul_u32_u24 v{vT2}, {ROWB}, v{vT0}
    v_add_u32 v{vDMA}, v{vT2}, v{vT1}
    v_and_b32 v{vT2}, 3, v{vT0}
    v_lshrrev_b32 v{vT0}, 2, v{vT0}
    v_lshl_add_u32 v{vT0}, v{vT0}, 3, v{vT2}
    v_mul_u32_u24 v{vT0}, {ROWB}, v{vT0}
    v_add_u32 v{vDMA0}, v{vT0}, v{vT1}
""")
    if c.r1touch:
        srd(sW, 42, L_ * WLAYER)
        a(f"""
    s_cmp_ge_u32 s2, 208
    s_cbranch_scc1 L_nonloader
    s_cmp_lt_u32 s{sWV}, 4
    s_cbranch_scc0 L_r1done
    ; first touches: wave 0 -> line j of the 64 x0 rows, waves 1..3 -> the 192 prefix lines of W[0]
    s_cmp_eq_u32 s{sWV}, 0
    s_cbranch_scc0 L_r1w
    s_lshl_b32 s20, s{sRB}, 6
    s_mul_i32 s20, s20, {ROWB}
    s_lshl_b32 s21, s{sJ}, 7
    s_add_u32 s20, s20, s21
    v_mul_u32_u24 v20, {ROWB}, v{vL}
    buffer_load_dword v{vDUM}, v20, s[{sX0}:{sX0+3}], s20 offen
    s_branch L_r1done
L_r1w:
    s_sub_u32 s20, s{sWV}, 1
    s_lshl_b32 s20, s20, 6
    v_add_u32 v20, s20, v{vL}                 ; n = 0..191
    v_cmp_le_u32 vcc, {P * 16}, v20
    v_mov_b32 v21, {416 - P * 16}
    s_lshl_b32 s20, s{sROT}, 4
    v_cndmask_b32 v21, 0, v21, vcc
    v_add_u32 v20, v20, v21                   ; row = n + (n >= 96 ? 416 - 96 : 0)
    v_mul_u32_u24 v20, {ROWB}, v20
    s_mul_i32 s20, s20, {ROWB}
    s_lshl_b32 s21, s{sJ}, 7
    s_add_u32 s20, s20, s21
    buffer_load_dword v{vDUM}, v20, s[{sW}:{sW+3}], s20 offen
L_r1done:
    s_barrier                                 ; B_0
    s_cmp_lt_u32 s{sWV}, 4
    s_cbranch_scc1 L_nonloader
""")
    else:
        a(f"""
    s_cmp_ge_u32 s2, 208
    s_cbranch_scc1 L_nonloader
    s_cmp_lt_u32 s{sWV}, 4
    s_cbranch_scc1 L_nonloader
""")
    def bias_dma(sreg, val, lab):
        a(f"    s_cmp_eq_u32 s{sreg}, {val}")
        a(f"    s_cbranch_scc0 {lab}")
        srd(sBS, 44, L_ * ROWB)
        a(f"""    v_lshrrev_b32 v{vT0}, 5, v{vL}
    v_mul_u32_u24 v{vT0}, {ROWB}, v{vT0}
    v_and_b32 v{vT1}, 31, v{vL}
    v_lshlrev_b32 v{vT1}, 2, v{vT1}
    v_add_u32 v{vT0}, v{vT0}, v{vT1}
    s_lshl_b32 s{sT0}, s{sJ}, 7
    v_add_u32 v{vT0}, s{sT0}, v{vT0}""")
        for t in range(3):
            a(f"    s_mov_b32 m0, {BIAS + 256*t}")
            a(f"    s_mov_b32 s{sT1}, {2*t*ROWB}")
            a(f"    buffer_load_dword v{vT0}, s[{sBS}:{sBS+3}], s{sT1} offen lds")
        a(f"{lab}:")
    vS0, vS1 = vXO, vXO + 1
    sSB = 40
    sWP0 = 98
    SB = c.SB
    NSR = (2 if c.ssched == 'two' else 3) * SB
    def sbatch(k, nextlayer=False):
        if not c.sp: return
        b = sSB + 2 if nextlayer else sSB
        for n_ in range(SB):
            a(f"    s_load_dwordx2 s[{76+2*n_}:{77+2*n_}], s[{b}:{b+1}], {(k * SB + n_) * ROWB + 60}")
    a(f"""
L_xs:
    s_lshl_b32 s{sT0}, s{sT3}, 12
    s_add_u32 s{sT0}, s{sT0}, s{sM}
    s_lshl_b32 s{sT1}, s{sT3}, 7
    s_add_u32 s{sT1}, s{sT1}, s{sG}
""")
    for rg in range(4):
        a(f"    s_add_u32 m0, s{sT0}, {rg*1024}")
        a(f"    s_add_u32 s{sT2}, s{sT1}, {rg*8*ROWB}")
        a(f"    buffer_load_dwordx4 v{vS0 if rg % 2 == 0 else vS1}, s[{sX0}:{sX0+3}], s{sT2} offen lds")
    a(f"""
    s_add_u32 s{sT3}, s{sT3}, 1
    s_cmp_eq_u32 s{sT3}, 7
    s_cselect_b32 s{sT3}, 0, s{sT3}
    s_add_u32 s{sI}, s{sI}, 1
    s_cmp_lt_u32 s{sI}, 7
    s_cbranch_scc1 L_xs
""")
    common_srds()
    vdma()
    a(f"""
    s_mul_i32 s{sT0}, s{sKH}, 416
    s_lshl_b32 s{sT1}, s{sMH}, 2
    s_add_u32 s{sT1}, s{sT1}, s{sT0}
    s_mul_i32 s{sT1}, s{sT1}, {ROWB}
    v_add_u32 v{vDMA0}, s{sT1}, v{vDMA0}
    s_lshl_b32 s{sT1}, s{sMH}, 3
    s_add_u32 s{sT1}, s{sT1}, s{sT0}
    s_mul_i32 s{sT1}, s{sT1}, {ROWB}
    v_add_u32 v{vDMA}, s{sT1}, v{vDMA}
    ; ---- W prefix of layer 0
    s_mul_i32 s{sG}, s{sROT}, 26624
    s_mul_i32 s{sM}, s{sKH}, {P*2048}
    s_lshl_b32 s{sT1}, s{sMH}, 10
    s_add_u32 s{sM}, s{sM}, s{sT1}
""")
    for i in range(P):
        a(f"    s_add_u32 m0, s{sM}, {PRE0 + i*2048}")
        a(f"    s_add_u32 s{sT0}, s{sG}, {i*26624}")
        a(f"    buffer_load_dwordx4 v{vDMA0}, s[{sW}:{sW+3}], s{sT0} offen lds")
    a(f"""
""")
    if c.w0assist:
        a(f"""
    s_cmp_eq_u32 s{sU}, 3
    s_cbranch_scc0 L_now0t
    v_lshrrev_b32 v21, 5, v{vL}               ; K half
    v_mul_u32_u24 v21, 416, v21
    v_and_b32 v22, 31, v{vL}
    v_add_u32 v21, v21, v22
    v_mul_u32_u24 v21, {ROWB}, v21
    s_lshl_b32 s20, s{sROT}, 4
    s_add_u32 s20, s20, {P * 16 + 28}
    s_mul_i32 s20, s20, {ROWB}
    s_lshl_b32 s21, s{sJ}, 7
    s_add_u32 s20, s20, s21
    buffer_load_dword v{vDUM}, v21, s[{sW}:{sW+3}], s20 offen
L_now0t:""")
    a(f"""
""")
    if c.xt_by in ("worker", "mixed", "front1"):
        a(f"""
    v_lshrrev_b32 v21, 5, v{vL}
    v_mul_u32_u24 v21, {XMH}, v21
    v_and_b32 v22, 31, v{vL}
    v_lshl_add_u32 v21, v22, 7, v21
    s_mul_i32 s22, s{sRB}, {XRB}
    s_lshl_b32 s23, s{sJ}, 12
    s_add_u32 s22, s22, s23                   ; buffer 0
    s_add_u32 s23, s22, {XBUF}                ; buffer 1""")
    if c.xt_by == "worker":
        a(f"""    s_cmp_eq_u32 s{sU}, 1
    s_cbranch_scc0 L_noxt1
    buffer_load_dword v{vDUM}, v21, s[{sWS}:{sWS+3}], s23 offen sc1
L_noxt1:""")
    if c.hello_by == "loader":
        a(f"""
    s_load_dwordx2 s[{sE}:{sE+1}], s[50:51], s{sCB}
    s_add_u32 s{sT0}, s{sCB}, 128
    s_add_u32 s46, s50, s{sT0}
    s_addc_u32 s47, s51, 0""")
    a(f"""
    s_mul_i32 s{sT2}, s{sKH}, {KHS}
    s_lshl_b32 s{sT1}, s{sMH}, 10
    s_add_u32 s{sT2}, s{sT2}, s{sT1}
    s_add_u32 s{sMP}, s{sT2}, {SUF}
    s_mul_i32 s70, s{sKH}, {P*2048}
    s_add_u32 s70, s70, s{sT1}
    s_add_u32 s70, s70, {PRE1}                ; prefix of layer 1 goes to parity 1
    s_mov_b32 s71, {PREPAR}
    s_mul_i32 s{sT0}, s{sKH}, 416
    s_lshl_b32 s{sT1}, s{sROT}, 4
    s_add_u32 s{sT0}, s{sT0}, s{sT1}
    s_mul_i32 s{sT1}, s{sMH}, {NSR}
    s_add_u32 s{sT0}, s{sT0}, s{sT1}
    s_add_u32 s{sT0}, s{sT0}, {c.SV * 16}
    s_mul_i32 s{sT0}, s{sT0}, {ROWB}
    s_lshl_b32 s{sT1}, s{sJ}, 7
    s_add_u32 s{sT0}, s{sT0}, s{sT1}
    s_add_u32 s{sT0}, s{sT0}, {c.wstride}
    s_mov_b32 s98, s42
    s_mov_b32 s99, s43
    s_add_u32 s40, s42, s{sT0}
    s_addc_u32 s41, s43, 0
    s_add_u32 s42, s40, {c.wstride}
    s_addc_u32 s43, s41, 0
""")
    def swarm(k):
        if not (c.swarm and c.sp): return
        lst = [(l, r) for l in range(2, 6) for r in range(3)]
        lst = lst[:7] if k == 0 else lst[7:]
        cur = None
        for n_, (l, r) in enumerate(lst):
            if cur != l:
                a(f"    s_add_u32 s46, s44, {l * c.wstride}")
                a(f"    s_addc_u32 s47, s45, 0")
                cur = l
            a(f"    s_load_dwordx2 s[{76+2*n_}:{77+2*n_}], s[46:47], {r*ROWB + 60}")
    if c.swarm and c.sp:
        per_range = 2 * NSR // 3
        a(f"""
    ; share of the S rows for the warm-up: q = rb*4 + u, range = q / {per_range}, rows 3*(q % {per_range}) ...
    s_lshl_b32 s{sT0}, s{sRB}, 2
    s_add_u32 s{sT0}, s{sT0}, s{sWV}
    s_sub_u32 s{sT0}, s{sT0}, 4
    s_min_u32 s{sT0}, s{sT0}, {4 * per_range - 1}
    s_mul_i32 s{sT1}, s{sT0}, {-(-65536 // per_range)}
    s_lshr_b32 s{sT1}, s{sT1}, 16             ; range
    s_mul_i32 s{sT2}, s{sT1}, {per_range}
    s_sub_u32 s{sT0}, s{sT0}, s{sT2}
    s_mul_i32 s{sT0}, s{sT0}, 3
    s_mul_i32 s{sT1}, s{sT1}, 208
    s_add_u32 s{sT0}, s{sT0}, s{sT1}
    s_add_u32 s{sT0}, s{sT0}, {c.SV * 16}
    s_mul_i32 s{sT0}, s{sT0}, {ROWB}
    s_lshl_b32 s{sT1}, s{sJ}, 7
    s_add_u32 s{sT0}, s{sT0}, s{sT1}
    s_add_u32 s44, s{sWP0}, s{sT0}
    s_addc_u32 s45, s{sWP0+1}, 0
""")
        swarm(0)
    if c.w0assist:
        a(f"""    s_cmp_eq_u32 s{sU}, 3
    s_cbranch_scc0 L_bxw
    s_waitcnt vmcnt({P + 1})
    s_branch L_bxw2
L_bxw:
    s_waitcnt vmcnt({P})
L_bxw2:""")
    elif c.xt_by == "worker":
        a(f"""    s_cmp_eq_u32 s{sU}, 1
    s_cbranch_scc0 L_bxw
    s_waitcnt vmcnt({P + 1})
    s_branch L_bxw2
L_bxw:
    s_waitcnt vmcnt({P})
L_bxw2:""")
    else:
        a(f"    s_waitcnt vmcnt({P})")
    stamp()
    a(f"""
    s_barrier                                 ; B_x
    s_barrier                                 ; B_y
""")
    if c.swarm and c.sp: a("    s_waitcnt lgkmcnt(0)")
    if c.hello_by != "loader" and c.ssched != "two": sbatch(0)
    def suffix(vreg, lay, thr=True, phased=False, bp=None):
        a(f"    s_mul_i32 s{sG}, s{sROT}, 26624")
        a(f"    s_add_u32 s{sG}, s{sG}, {lay}")
        a(f"    s_sub_u32 s{sM}, 13, s{sROT}")
        a(f"    s_mul_i32 s{sM}, s{sM}, 26624")
        a(f"    s_add_u32 s{sM}, s{sM}, {lay}")
        for n_, i in enumerate(range(P, 26)):
            if bp is not None and n_ == bp:
                a(f"    s_waitcnt vmcnt({bp})")
                a("    s_barrier                                 ; B_p: prefix of layer 0 has landed")
                if c.hello_by == "loader":
                    a(f"""    s_cmp_eq_u32 s{sWV}, 6
    s_cbranch_scc0 L_b0
    s_waitcnt lgkmcnt(0)
    s_load_dwordx16 s[76:91], s[46:47], 0 glc
    s_load_dwordx8 s[92:99], s[46:47], 64 glc
    s_load_dwordx2 s[20:21], s[46:47], 96 glc
    s_branch L_b0d
L_b0:""")
                    sbatch(0)
                    a("L_b0d:")
            if phased and n_ == c.n1: a("    s_barrier")
            if phased and n_ == c.n1 + c.n2: a("    s_barrier")
            a(f"    s_add_u32 m0, s{sMP}, {(i-P)*2048}")
            a(f"    s_add_u32 s{sI}, s{sG if i < 13 else sM}, {(i % 13) * 26624}")
            a(f"    buffer_load_dwordx4 v{vreg}, s[{sW}:{sW+3}], s{sI} offen {'nt ' if (c.nt_last and i >= 13) else ''}lds")
            if c.lthr and thr and (c.lthr_all or n_ >= c.n1 + c.n2):
                a(f"    s_waitcnt vmcnt({c.lthr - 1})")
    sPP, sPDL = 70, 71
    def prefix_next(lay_next):
        a(f"    s_mul_i32 s{sG}, s{sROT}, 26624")
        a(f"    s_add_u32 s{sG}, s{sG}, s{lay_next}")
        for t in range(P):
            a(f"    s_add_u32 m0, s{sPP}, {t*2048}")
            a(f"    s_add_u32 s{sI}, s{sG}, {t*26624}")
            a(f"    buffer_load_dwordx4 v{vDMA}, s[{sW}:{sW+3}], s{sI} offen lds")
            if c.lthr and c.lthr_all and t + 1 < P:
                a(f"    s_waitcnt vmcnt({c.lthr - 1})")
        a(f"    s_sub_u32 s{sPP}, s{sPP}, s{sPDL}")
        a(f"    s_sub_u32 s{sPDL}, 0, s{sPDL}")
    def advance_sb():
        a(f"""    s_add_u32 s40, s40, {c.wstride}
    s_addc_u32 s41, s41, 0
    s_add_u32 s42, s42, {c.wstride}
    s_addc_u32 s43, s43, 0""")
    suffix(vDMA0, "0", False, False, bp=13 - P)
    n = 26 - P
    if c.hello_by != "loader":
        if c.sp and c.ssched != "two": a("    s_waitcnt lgkmcnt(0)")
        sbatch(1)
    if c.hello_by == "compute" and not c.swarm:
        B0 = [P] + list(c.chunks0)
        for k_, b_ in enumerate(B0):
            nxt = B0[k_ + 1] if k_ + 1 < len(B0) else 26
            a(f"    s_waitcnt vmcnt({26 - nxt})")
            if k_ == 0 or k_ + 1 == len(B0): stamp()
            a(f"    s_barrier")
    else:
        a(f"    s_waitcnt vmcnt({n - (13 - P)})")
        stamp()
        a("    s_barrier                                 ; chunk [P,13)")
        if c.hello_by == "loader" and c.sp and c.l0b1:
            a(f"    s_cmp_eq_u32 s{sWV}, 6")
            a(f"    s_cbranch_scc1 L_nob1")
            a("    s_waitcnt lgkmcnt(0)"); sbatch(1)
            a("L_nob1:")
        if c.swarm and c.sp:
            a("    s_waitcnt lgkmcnt(0)"); swarm(1)
        a(f"    s_waitcnt vmcnt({26 - 20})")
        a("    s_barrier                                 ; chunk [13,20)")
        if c.hello_by == "loader":
            a(f"""    s_cmp_eq_u32 s{sWV}, 6
        s_cbranch_scc0 L_nohe
        s_add_u32 s{sT0}, s{sE}, 8
        s_addc_u32 s{sT1}, s{sE+1}, 0
        s_and_b32 s{sT2}, s{sT1}, 0x0fffffff
        s_lshl_b32 s22, s{sXCC}, 28
        s_xor_b32 s{sT1}, s{sT1}, s22
        s_mov_b32 s22, 1
        s_mov_b32 s23, 1
        s_waitcnt lgkmcnt(0)""")
            for m_ in range(13):
                lo = 76 + 2 * m_ if m_ < 12 else 20
                a(f"""    s_cmp_eq_u32 s{lo}, s{sT0}
        s_cselect_b32 s23, s23, 0
        s_cmp_eq_u32 s{lo+1}, s{sT1}
        s_cselect_b32 s22, s22, 0
        s_and_b32 s{lo+1}, s{lo+1}, 0x0fffffff
        s_cmp_eq_u32 s{lo+1}, s{sT2}
        s_cselect_b32 s23, s23, 0""")
            a(f"""    s_sub_u32 s22, 2, s22
        s_mul_i32 s22, s22, s23
        v_mov_b32 v25, s22
        v_mov_b32 v26, {MODEW}
        ds_write_b32 v26, v25
        s_waitcnt lgkmcnt(0)
    """)
            sbatch(0)
            a("L_nohe:")
        a("    s_waitcnt vmcnt(0)")
        stamp()
        a("    s_barrier                                 ; chunk [20,26)")
    if c.pre_by == "loader":
        a("    s_barrier                                 ; B_mid")
        a(f"    s_mov_b32 s{sT3}, {c.wstride}")
        if not c.no_pre: prefix_next(sT3)
        if c.xt_by in ("worker", "mixed", "front1"):
            a(f"""    s_cmp_eq_u32 s{sWV}, 5
    s_cbranch_scc0 L_noxt0
    buffer_load_dword v{vDUM}, v21, s[{sWS}:{sWS+3}], s22 offen sc1
L_noxt0:""")
    advance_sb()
    a(f"""
    s_barrier
    s_mov_b32 s{sL}, 1
    s_mov_b32 s{sT3}, {c.wstride}
L_ld_layer:
    s_cmp_lt_u32 s{sL}, 5
    s_cselect_b32 s{sU}, 1, 0
""")
    def guarded(fn, lab):
        if not c.sp: return
        a(f"    s_cmp_eq_u32 s{sU}, 1")
        a(f"    s_cbranch_scc0 {lab}")
        fn()
        a(f"{lab}:")
    if c.ssched != "two":
        guarded(lambda: sbatch(1), "L_sA")
    if not c.no_suf: suffix(vDMA, f"s{sT3}", True, c.phased)
    elif c.phased:
        a("    s_barrier"); a("    s_barrier")
    stamp()
    if c.ssched != "two":
        guarded(lambda: (a("    s_waitcnt lgkmcnt(0)"), sbatch(2)), "L_sB")
    if c.pre_by == "loader": a(f"    s_waitcnt vmcnt({26 - P})                 ; the prefix has landed")
    a("    s_barrier                                 ; B_a")
    if c.ssched == "two":
        guarded(lambda: sbatch(1), "L_sB")
    a("    s_waitcnt vmcnt(0)")
    stamp()
    a("    s_barrier")
    a(f"    s_cmp_lt_u32 s{sL}, 4")
    a(f"    s_cselect_b32 s{sU}, 1, 0")
    guarded(lambda: (a("    s_waitcnt lgkmcnt(0)"), sbatch(0, True)), "L_sC")
    if c.pre_by == "loader":
        a("    s_barrier                                 ; B_mid")
        stamp(3)
        a(f"    s_cmp_lt_u32 s{sL}, 5")
        a(f"    s_cbranch_scc0 L_nopre")
        a(f"    s_add_u32 s{sU}, s{sT3}, {c.wstride}")
        if not c.no_pre: prefix_next(sU)
        a("L_nopre:")
        stamp(3)
    advance_sb()
    a(f"""
    s_barrier                                 ; B2
    s_add_u32 s{sL}, s{sL}, 1
    s_add_u32 s{sT3}, s{sT3}, {c.wstride}
    s_cmp_lt_u32 s{sL}, 6
    s_cbranch_scc1 L_ld_layer
""")
    dump_ts()
    a("    s_endpgm")

    sBI = 84
    sBP = 48
    def bias_load():
        a(f"    s_load_dwordx16 s[{sBI}:{sBI+15}], s[{sBP}:{sBP+1}], 0")
        a(f"    s_add_u32 s{sBP}, s{sBP}, {ROWB}")
        a(f"    s_addc_u32 s{sBP+1}, s{sBP+1}, 0")
    def bias_spread():
        a("    s_mov_b32 exec_hi, 0")
        for q in range(4):
            for d in range(2):
                a(f"    v_mov_b32 v{vBP+2*q+d}, s{sBI+4*q+d}")
        a("    s_mov_b32 exec_lo, 0")
        a("    s_mov_b32 exec_hi, -1")
        for q in range(4):
            for d in range(2):
                a(f"    v_mov_b32 v{vBP+2*q+d}, s{sBI+4*q+2+d}")
        a("    s_mov_b64 exec, -1")
    def bias_unpack(lo=0, hi=8):
        for d in range(lo, hi):
            a(f"    v_lshlrev_b32 v{vAK+2*d}, 16, v{vBP+d}")
            a(f"    v_and_b32 v{vAK+2*d+1}, 0xffff0000, v{vBP+d}")
    a("L_nonloader:")
    common_srds()
    if c.helpers:
        a(f"""
    s_cmp_ge_u32 s2, 208
    s_cbranch_scc1 L_helper
""")
    if c.pre_by == "compute": vdma()
    a(f"""
L_compute:
    s_load_dwordx2 s[{sE}:{sE+1}], s[50:51], s{sCB}
    s_lshl_b32 s{sT0}, s{sJ}, 7
    s_lshl_b32 s{sT1}, s{sKH}, 6
    s_add_u32 s{sT0}, s{sT0}, s{sT1}
    s_add_u32 s{sBP_}, s44, s{sT0}
    s_addc_u32 s{sBP_+1}, s45, 0
    s_load_dwordx16 s[84:99], s[{sBP_}:{sBP_+1}], 0
    s_load_dword s20, s[{sBP_}:{sBP_+1}], {ROWB}
    s_load_dword s21, s[{sBP_}:{sBP_+1}], {2*ROWB}
    s_load_dword s22, s[{sBP_}:{sBP_+1}], {3*ROWB}
    s_load_dword s23, s[{sBP_}:{sBP_+1}], {4*ROWB}
    s_load_dword s24, s[{sBP_}:{sBP_+1}], {5*ROWB}
    s_add_u32 s{sBP_}, s{sBP_}, {ROWB}
    s_addc_u32 s{sBP_+1}, s{sBP_+1}, 0
    s_setprio {c.prio}
""")
    if c.xt_by in ("front", "front1"):
        a(f"""
    v_lshrrev_b32 v21, 5, v{vL}
    v_mul_u32_u24 v21, {XMH}, v21
    v_and_b32 v22, 31, v{vL}
    v_lshl_add_u32 v21, v22, 7, v21
    s_mul_i32 s22, s{sRB}, {XRB}
    s_lshl_b32 s23, s{sJ}, 12
    s_add_u32 s22, s22, s23                   ; buffer 0
    s_add_u32 s23, s22, {XBUF}                ; buffer 1
    s_cmp_eq_u32 s{sWV}, 3
    s_cbranch_scc0 L_noxf1
    buffer_load_dword v{vDUM}, v21, s[{sWS}:{sWS+3}], s23 offen sc1
L_noxf1:""")
        if c.xt_by == "front":
            a(f"""    s_cmp_eq_u32 s{sWV}, 2
    s_cbranch_scc0 L_noxf0
    buffer_load_dword v{vDUM}, v21, s[{sWS}:{sWS+3}], s22 offen sc1
L_noxf0:""")
    if c.wwarm:
        a(f"""
    s_sub_u32 s{sT0}, s{sWV}, 1
    s_cmp_lt_u32 s{sT0}, {c.wwarm}
    s_cbranch_scc0 L_noww
    s_mul_i32 s{sT0}, s{sRB}, 13
    s_add_u32 s{sT0}, s{sT0}, s{sJ}
    s_mul_i32 s{sT0}, s{sT0}, {52 * 128}
    s_mul_i32 s{sT1}, s{sWV}, {c.wstride}
    s_add_u32 s20, s{sT0}, s{sT1}
    v_min_u32 v20, 51, v{vL}
    v_lshlrev_b32 v20, 7, v20
    buffer_load_dword v{vDUM}, v20, s[{sW}:{sW+3}], s20 offen
L_noww:""")
    a(f"""
    v_min_u32 v{vT0}, 51, v{vL}
    v_lshlrev_b32 v{vT0}, 3, v{vT0}
    s_add_u32 s{sT0}, s{sCB}, 2048
    v_add_u32 v{vFA}, s{sT0}, v{vT0}
    s_cmp_eq_u32 s{sWV}, 0
    s_cbranch_scc0 L_noft
    buffer_load_dword v{vDUM}, v{vFA}, s[{sWS}:{sWS+3}], 0 offen sc1
L_noft:
    s_lshl_b32 s{sT1}, s{sJ}, 2
    s_add_u32 s{sT1}, s{sT1}, s{sWV}
    s_lshl_b32 s{sT1}, s{sT1}, 3
    s_add_u32 s{sOWNF}, s{sT0}, s{sT1}
    v_min_u32 v{vT0}, 12, v{vL}
    v_lshlrev_b32 v{vT0}, 3, v{vT0}
    s_add_u32 s{sT0}, s{sCB}, 128
    v_add_u32 v{vHA}, s{sT0}, v{vT0}
""")
    srd(sOUT, 46, XLAYER)
    a(f"""
    ; ---- output address (final stores): row*1664 + j*128 + nh*64 + h*16
    s_lshl_b32 s{sT0}, s{sRB}, 6
    s_lshl_b32 s{sT1}, s{sMH}, 5
    s_add_u32 s{sT0}, s{sT0}, s{sT1}
    s_mul_i32 s{sT0}, s{sT0}, {ROWB}
    s_lshl_b32 s{sT1}, s{sJ}, 7
    s_add_u32 s{sT0}, s{sT0}, s{sT1}
    s_lshl_b32 s{sT1}, s{sKH}, 6
    s_add_u32 s{sT0}, s{sT0}, s{sT1}
    v_and_b32 v{vT0}, 31, v{vL}
    v_mul_u32_u24 v{vT0}, {ROWB}, v{vT0}
    v_lshrrev_b32 v{vT1}, 5, v{vL}
    v_lshl_add_u32 v{vT0}, v{vT1}, 4, v{vT0}
    v_add_u32 v{vOUT}, s{sT0}, v{vT0}
    v_lshlrev_b32 v{vXO}, 4, v{vL}
    v_add_u32 v{vXO+1}, 0x1000, v{vXO}
    v_add_u32 v{vXO+2}, 0x2000, v{vXO}
    v_add_u32 v{vXO+3}, 0x3000, v{vXO}
    s_mul_i32 s{sT0}, s{sRB}, {XRB}
    s_mul_i32 s{sT1}, s{sMH}, {XMH}
    s_add_u32 s{sT0}, s{sT0}, s{sT1}
    s_add_u32 s{sT0}, s{sT0}, {XBUF}
    s_lshl_b32 s{sT1}, s{sJ}, 2
    s_lshl_b32 s{sT2}, s{sKH}, 1
    s_add_u32 s{sT1}, s{sT1}, s{sT2}
    s_lshl_b32 s{sT1}, s{sT1}, 10
    s_add_u32 s{sXST}, s{sT0}, s{sT1}
""")
    if not c.helpers:
        a(f"""
    v_and_b32 v{vT1}, 15, v{vL}
    v_lshlrev_b32 v{vT1}, 7, v{vT1}
    v_bfe_u32 v{vT2}, v{vL}, 4, 1
    v_mul_u32_u24 v{vT2}, {XBUF >> 8}, v{vT2}
    v_lshl_add_u32 v{vT1}, v{vT2}, 8, v{vT1}
    s_sub_u32 s{sT3}, s{sXST}, {XBUF}
    buffer_load_dword v{vDUM}, v{vT1}, s[{sWS}:{sWS+3}], s{sT3} offen sc1
""")
    a(f"""
    s_mul_i32 s{sT1}, s{sKH}, 26
    s_add_u32 s{sT2}, s{sT1}, s{sROT}
    s_lshl_b32 s{sT2}, s{sT2}, 10
    s_add_u32 s{sXA}, s{sT0}, s{sT2}
    s_add_u32 s{sT2}, s{sT1}, 13
    s_sub_u32 s{sT2}, s{sT2}, s{sROT}
    s_lshl_b32 s{sT2}, s{sT2}, 10
    s_add_u32 s{sXB}, s{sT0}, s{sT2}
    s_mov_b32 s{sXD}, {-XBUF & 0xffffffff}
    s_mov_b32 s{sXD2}, {-XBUF & 0xffffffff}
    ; ---- W prefix bookkeeping for layer 1 (loaded at the end of layer 0)
    s_mul_i32 s{sT0}, s{sKH}, 416
    s_lshl_b32 s{sT1}, s{sROT}, 4
    s_add_u32 s{sT0}, s{sT0}, s{sT1}
    s_lshl_b32 s{sT1}, s{sMH}, 3
    s_add_u32 s{sT0}, s{sT0}, s{sT1}
    s_mul_i32 s{sWP}, s{sT0}, {ROWB}
    s_add_u32 s{sWP}, s{sWP}, {c.wstride}
    s_mul_i32 s{sMP}, s{sKH}, {P*2048}
    s_lshl_b32 s{sT1}, s{sMH}, 10
    s_add_u32 s{sMP}, s{sMP}, s{sT1}
    s_add_u32 s{sMP}, s{sMP}, {PRE1}
    s_mov_b32 s{sPD}, {PREPAR}
    v_lshrrev_b32 v{vT0}, 5, v{vL}            ; h
    v_lshlrev_b32 v{vT0}, 2, v{vT0}
    v_bfe_u32 v{vT1}, v{vL}, 2, 2             ; r
    v_add_u32 v{vT0}, v{vT0}, v{vT1}
    v_lshlrev_b32 v{vT0}, 7, v{vT0}           ; row*128
    v_bfe_u32 v{vT1}, v{vL}, 4, 1             ; nb
    v_lshlrev_b32 v{vT1}, 1, v{vT1}
    v_bfe_u32 v{vT2}, v{vL}, 1, 1             ; c>>1
    v_add_u32 v{vT1}, v{vT1}, v{vT2}
    v_bfe_u32 v{vT2}, v{vL}, 3, 1             ; (r>>1)&1
    v_lshlrev_b32 v{vT2}, 2, v{vT2}
    v_xor_b32 v{vT1}, v{vT1}, v{vT2}
    v_lshlrev_b32 v{vT1}, 4, v{vT1}
    v_add_u32 v{vT0}, v{vT0}, v{vT1}
    v_and_b32 v{vT1}, 1, v{vL}
    v_lshlrev_b32 v{vT1}, 3, v{vT1}
    v_add_u32 v{vT0}, v{vT0}, v{vT1}
    s_lshl_b32 s{sT0}, s{sKH}, 6
    v_xor_b32 v{vT1}, s{sT0}, v{vT0}          ; keep
    v_xor_b32 v{vT2}, 64, v{vT1}              ; send
    s_mul_i32 s{sT0}, s{sKH}, {P*2048}
    v_add_u32 v{vAPK}, s{sT0}, v{vT1}
    v_add_u32 v{vAPS}, s{sT0}, v{vT2}
    s_mul_i32 s{sT0}, s{sKH}, {KHS}
    s_add_u32 s{sT0}, s{sT0}, {SUF}
    v_add_u32 v{vASK}, s{sT0}, v{vT1}
    v_add_u32 v{vASS}, s{sT0}, v{vT2}
    s_lshl_b32 s{sT0}, s{sWV}, 12
    s_add_u32 s{sT0}, s{sT0}, {RED}
    v_add_u32 v{vRW}, s{sT0}, v{vXO}
    s_xor_b32 s{sT1}, s{sWV}, 2
    s_lshl_b32 s{sT1}, s{sT1}, 12
    s_add_u32 s{sT1}, s{sT1}, {RED}
    v_add_u32 v{vRR}, s{sT1}, v{vXO}
    v_lshrrev_b32 v{vT0}, 5, v{vL}
    v_lshlrev_b32 v{vT3}, 3, v{vT0}           ; h*8
    v_and_b32 v{vT0}, 31, v{vL}               ; m
    v_lshrrev_b32 v{vT1}, 3, v{vT0}
    v_lshlrev_b32 v{vT1}, 10, v{vT1}          ; rg*1024
    v_and_b32 v{vT2}, 7, v{vT0}
    v_lshl_add_u32 v{vT1}, v{vT2}, 7, v{vT1}  ; + row8*128
    v_bfe_u32 v{vT2}, v{vT0}, 1, 3            ; f(m)
    s_cmp_ge_u32 s{sJ}, 7
    s_cselect_b32 s{sT0}, 1, 0
    s_mul_i32 s{sT1}, s{sT0}, 6
    s_sub_u32 s{sT1}, s{sJ}, s{sT1}
    s_lshl_b32 s{sT1}, s{sT1}, 12
    s_lshl_b32 s{sT0}, s{sT0}, 1
    s_add_u32 s{sT0}, s{sT0}, s{sMH}
    s_mul_i32 s{sT0}, s{sT0}, 28672
    s_add_u32 s{sT0}, s{sT0}, s{sT1}
    s_add_u32 s{sT0}, s{sT0}, {XS}
    s_lshl_b32 s{sT1}, s{sKH}, 2
    v_add3_u32 v{vT3}, v{vT3}, v{vT1}, s{sT0}
    v_xor_b32 v{vT0}, s{sT1}, v{vT2}          ; (4*nh) ^ f(m)
""")
    for q in range(4):
        a(f"    v_xor_b32 v{vPART+8+q}, {q}, v{vT0}")
        a(f"    v_lshl_add_u32 v{vPART+8+q}, v{vPART+8+q}, 4, v{vT3}")
    a(f"""
    v_lshrrev_b32 v{vT0}, 5, v{vL}
    v_xor_b32 v{vT2}, v{vT2}, v{vT0}          ; f(m) ^ h
    s_mul_i32 s{sT3}, s{sWV}, 28672
    s_add_u32 s{sT3}, s{sT3}, {XS}
    s_mul_i32 s{sI}, s{sKH}, 26
    s_mul_i32 s{sM}, s{sKH}, 6
""")
    for seg in range(2):
        if seg == 0:
            a(f"    s_add_u32 s{sG}, s{sI}, s{sROT}")
        else:
            a(f"    s_add_u32 s{sG}, s{sI}, 13")
            a(f"    s_sub_u32 s{sG}, s{sG}, s{sROT}")
        for x in range(4):
            r = vPART + seg * 4 + x
            a(f"    s_add_u32 s{sT0}, s{sG}, {x}")
            a(f"    s_and_b32 s{sT1}, s{sT0}, 3")
            a(f"    s_lshl_b32 s{sT1}, s{sT1}, 1")
            a(f"    s_lshr_b32 s{sT0}, s{sT0}, 2")
            a(f"    s_sub_u32 s{sT0}, s{sT0}, s{sM}")
            a(f"    s_lshl_b32 s{sT0}, s{sT0}, 12")
            a(f"    s_add_u32 s{sT0}, s{sT0}, s{sT3}")
            a(f"    v_xor_b32 v{r}, s{sT1}, v{vT2}")
            a(f"    v_lshl_add_u32 v{r}, v{r}, 4, v{vT1}")
            a(f"    v_add_u32 v{r}, s{sT0}, v{r}")
    a(f"""
    s_waitcnt lgkmcnt(0)
    s_add_u32 s{sTA}, s{sE}, 1
    s_addc_u32 s{sTA+1}, s{sE+1}, 0
    s_add_u32 s{sTB}, s{sE}, 2
    s_addc_u32 s{sTB+1}, s{sE+1}, 0
    s_cmp_eq_u32 s{sWV}, 0
    s_cbranch_scc0 L_nohello
    s_add_u32 s{sT0}, s{sE}, 8
    s_addc_u32 s{sT1}, s{sE+1}, 0
    s_lshl_b32 s{sT2}, s{sXCC}, 28
    s_xor_b32 s{sT1}, s{sT1}, s{sT2}
    v_mov_b32 v{vPOLL}, s{sT0}
    v_mov_b32 v{vPOLL+1}, s{sT1}
    s_lshl_b32 s{sT2}, s{sJ}, 3
    s_add_u32 s{sT2}, s{sT2}, s{sCB}
    s_add_u32 s{sT2}, s{sT2}, 128
    s_mov_b64 exec, 1
    buffer_store_dwordx2 v[{vPOLL}:{vPOLL+1}], off, s[{sWS}:{sWS+3}], s{sT2} sc1
    s_mov_b64 exec, -1
L_nohello:
""")
    if c.w0assist or c.w0scal:
        a(f"""
    s_mul_i32 s{sT0}, s{sKH}, 416
    s_lshl_b32 s{sT1}, s{sROT}, 4
    s_add_u32 s{sT0}, s{sT0}, s{sT1}
    s_mul_i32 s{sT1}, s{sMH}, 14
    s_add_u32 s{sT0}, s{sT0}, s{sT1}
    s_add_u32 s{sT0}, s{sT0}, {P * 16}
    s_mul_i32 s{sT0}, s{sT0}, {ROWB}
    s_lshl_b32 s{sT1}, s{sJ}, 7
    s_add_u32 s{sT0}, s{sT0}, s{sT1}
    s_add_u32 s44, s42, s{sT0}
    s_addc_u32 s45, s43, 0
""")
        for n_ in range(14):
            if n_ == 7: a("    s_waitcnt lgkmcnt(0)")
            a(f"    s_load_dwordx2 s[{20+2*(n_%2)}:{21+2*(n_%2)}], s[44:45], {n_*ROWB + 60}")
    elif c.vwarm:
        nrows = c.SV * 16
        per_rb = nrows // 4
        a(f"""
    s_lshr_b32 s{sT0}, s{sRB}, 2
    s_mul_i32 s{sT0}, s{sT0}, 208             ; range start row: 0, 208, 416, 624
    s_and_b32 s{sT1}, s{sRB}, 3
    s_mul_i32 s{sT1}, s{sT1}, {per_rb}
    s_add_u32 s{sT0}, s{sT0}, s{sT1}
    s_mul_i32 s{sT1}, s{sWV}, {per_rb // 4}
    s_add_u32 s{sT0}, s{sT0}, s{sT1}
    s_mul_i32 s{sT0}, s{sT0}, {ROWB}
    s_lshl_b32 s{sT1}, s{sJ}, 7
    s_add_u32 s{sT0}, s{sT0}, s{sT1}
    s_add_u32 s{sT0}, s{sT0}, {c.wstride}
    s_add_u32 s44, s42, s{sT0}
    s_addc_u32 s45, s43, 0
""")
        nper = per_rb // 4
        vw = [(l, r) for l in range(1, 6) for r in range(nper)][:14]
        def vwarm_batch(k):
            cur = None
            for n_, (l, r) in enumerate(vw[7*k:7*k+7]):
                if cur != l:
                    a(f"    s_add_u32 s46, s44, {(l-1) * c.wstride}")
                    a(f"    s_addc_u32 s47, s45, 0")
                    cur = l
                a(f"    s_load_dwordx2 s[{20+2*(n_%2)}:{21+2*(n_%2)}], s[46:47], {r*ROWB + 60}")
        vwarm_batch(0)
        if c.vw2 == 'wait':
            a("    s_waitcnt lgkmcnt(0)")
            vwarm_batch(1)
    stamp()
    a("    s_barrier                                 ; B_x: staged x0, prefix(0) and biases have landed")
    if c.amp and c.amp[0] == "bx":
        a("    s_memtime s[26:27]\n    s_waitcnt lgkmcnt(0)\n    s_sub_u32 s25, s26, s100")
    stamp()
    for q in range(4):
        a(f"    ds_read_b64 v[{vP+2*q}:{vP+2*q+1}], v{vPART+8+q}")
    for i in range(26):
        seg, ii = (0, i) if i < 13 else (1, i - 13)
        a(f"    ds_read_b128 v[{vXF+4*i}:{vXF+4*i+3}], v{vPART + seg*4 + (ii & 3)} offset:{(ii >> 2) * 4096}")
        if i in (9, 17):
            a("    s_waitcnt lgkmcnt(6)")
    a("    s_waitcnt lgkmcnt(0)")
    a("    s_barrier")
    if c.vwarm and not c.w0assist and not c.w0scal and c.vw2 == 'after_by': vwarm_batch(1)
    stamp()
    for d in range(8):
        a(f"    v_lshlrev_b32 v{vX0F+2*d}, 16, v{vP+d}")
        a(f"    v_and_b32 v{vX0F+2*d+1}, 0xffff0000, v{vP+d}")
    bias_spread()
    bias_unpack()
    for r in range(16):
        a(f"    v_mov_b32 v{vXR+r}, v{vX0F+r}")
    a(f"    s_mov_b32 s{sL}, 0")
    a("    s_barrier                                 ; B_p: prefix of layer 0 has landed")
    if c.amp and c.amp[0] == "bp":
        a("    s_memtime s[26:27]\n    s_waitcnt lgkmcnt(0)\n    s_sub_u32 s25, s26, s100")
    stamp()

    def xload(i):
        if c.no_x:
            a("    s_nop 0"); return
        seg = sXA if i < 13 else sXB
        ii = i % 13
        a(f"    buffer_load_dwordx4 v[{vXF+4*i}:{vXF+4*i+3}], v{vXO+(ii>>2)}, s[{sWS}:{sWS+3}], s{seg} offen offset:{(ii&3)*1024} sc1")
    def rd(i, which):
        if c.no_w: return
        st = vWF + 8 * (i % nsets)
        if i < P: k, s_, off = vAPK, vAPS, i * 2048
        else: k, s_, off = vASK, vASS, (i - P) * 2048
        if which == "s":
            a(f"    ds_read_b64_tr_b16 v[{st}:{st+1}], v{s_} offset:{off}")
            a(f"    ds_read_b64_tr_b16 v[{st+2}:{st+3}], v{s_} offset:{off+1024}")
        else:
            a(f"    ds_read_b64_tr_b16 v[{st+4}:{st+5}], v{k} offset:{off}")
            a(f"    ds_read_b64_tr_b16 v[{st+6}:{st+7}], v{k} offset:{off+1024}")
    def pref_sched(i):
        if c.presched == "spread":
            t = i - (26 - P)
            return [t] if 0 <= t < P else []
        k = i - (26 - D)
        if k < 0: return []
        per_ = -(-P // D)
        return [t for t in range(k * per_, min(P, (k + 1) * per_))]
    def kloop(first):
        ops = []
        if first:
            for i in range(PF):
                rd(i, "s"); rd(i, "k")
        else:
            xload(0); ops.append(("x", 0))
            rd(0, "s"); rd(0, "k")
            xload(1); ops.append(("x", 1))
            rd(1, "s"); rd(1, "k")
            nrest = D - 2
            cuts = [8 * k // nrest for k in range(nrest + 1)]
            for k in range(nrest):
                bias_unpack(cuts[k], cuts[k + 1])
                xload(2 + k); ops.append(("x", 2 + k))
        bars = (([P] + list(c.chunks0)) if (c.hello_by == 'compute' and not c.swarm) else [P, 13, 20]) if first else [P]
        assert P < 13
        marks = [0, 1, 2, 4, 8, 12, 16, 20, 25]
        for i in range(26):
            a(f"    ; ---- step {i}")
            if TS == 4 and not first and i in marks:
                a(f"    s_memtime s[{80 + 2*marks.index(i)}:{81 + 2*marks.index(i)}]")
            young = sum(4 for t in range(i + 1, min(i + PF - 1, 25) + 1))
            if first:
                a(f"    s_waitcnt lgkmcnt({young})")
            else:
                nv = len(ops) - 1 - ops.index(("x", i))
                a(f"    s_waitcnt vmcnt({nv}) lgkmcnt({young})")
            st = vWF + 8 * (i % nsets)
            xf = vXF + 4 * i
            cs = "0" if i == 0 else f"v[{vAS}:{vAS+15}]"
            a(f"    v_mfma_f32_32x32x16_bf16 v[{vAS}:{vAS+15}], v[{st}:{st+3}], v[{xf}:{xf+3}], {cs}")
            if not first and i == 1:
                a(f"""    s_add_u32 s{sTA}, s{sTA}, 1
    s_addc_u32 s{sTA+1}, s{sTA+1}, 0""")
            if not first and i == 2:
                a(f"""    s_add_u32 s{sTB}, s{sTB}, 1
    s_addc_u32 s{sTB+1}, s{sTB+1}, 0""")
            if i + PF in bars:
                a("    s_barrier")
            if first and i == c.hello_step and c.hello_by != 'loader':
                a(f"    buffer_load_dwordx2 v[{vPOLL}:{vPOLL+1}], v{vHA}, s[{sWS}:{sWS+3}], 0 offen sc1")
            if not first and i + D < 26:
                xload(i + D); ops.append(("x", i + D))
            if c.pre_by == "loader":
                if i == c.mid_step: a("    s_barrier                                 ; B_mid: the x loads are all issued")
                if i == c.prog_step and c.prog_at == "mid":
                    lab = "L_noprogA" if first else "L_noprogB"
                    a(f"""    s_or_b32 s{sT0}, s{sJ}, s{sWV}
    s_cmp_eq_u32 s{sT0}, 0
    s_cbranch_scc0 {lab}
    v_mov_b32 v{vPOL2}, s{sTA}
    v_mov_b32 v{vPOL2+1}, s{sTA+1}
    s_add_u32 s{sT0}, s{sCB}, 3072
    buffer_store_dwordx2 v[{vPOL2}:{vPOL2+1}], off, s[{sWS}:{sWS+3}], s{sT0}
{lab}:""")
            else:
                for t in ([] if c.no_pre else pref_sched(i)):
                    a(f"    s_add_u32 m0, s{sMP}, {t*2048}")
                    a(f"    s_add_u32 s{sT0}, s{sWP}, {t*26624}")
                    a(f"    buffer_load_dwordx4 v{vDMA}, s[{sW}:{sW+3}], s{sT0} offen lds")
                    ops.append(("w", t))
            if i + PF < 26: rd(i + PF, "s")
            a(f"    v_mfma_f32_32x32x16_bf16 v[{vAK}:{vAK+15}], v[{st+4}:{st+7}], v[{xf}:{xf+3}], v[{vAK}:{vAK+15}]")
            if i + PF < 26: rd(i + PF, "k")
        return len([o for o in ops if o[0] == "w"])
    npre = kloop(True)
    if c.hello_by == "loader":
        a(f"""    v_mov_b32 v{vT0}, {MODEW}
    ds_read_b32 v{vT1}, v{vT0}
    s_waitcnt lgkmcnt(0)
    v_readfirstlane_b32 s{sMODE}, v{vT1}""")
        a(f"""
    s_cmp_eq_u32 s{sMODE}, 0
    s_cbranch_scc1 L_hello_slow
    s_and_b32 s{sMODE}, s{sMODE}, {0 if c.force_slow else 1}
    s_branch L_tail
L_hello_slow:
    buffer_load_dwordx2 v[{vPOLL}:{vPOLL+1}], v{vHA}, s[{sWS}:{sWS+3}], 0 offen sc1""")
    a(f"""
    s_add_u32 s{sT0}, s{sE}, 8
    s_addc_u32 s{sT1}, s{sE+1}, 0
    s_mov_b32 s{sSPIN}, 0
    s_waitcnt vmcnt({0 if c.hello_by == "loader" else npre})
    s_and_b32 s{sT2}, s{sT1}, 0x0fffffff
    s_lshl_b32 s{sT3}, s{sXCC}, 28
    s_xor_b32 s{sT3}, s{sT1}, s{sT3}
L_hello:
    v_and_b32 v{vT0}, 0x0fffffff, v{vPOLL+1}
    v_cmp_eq_u32 vcc, s{sT0}, v{vPOLL}
    v_cmp_eq_u32 s[{sMK}:{sMK+1}], s{sT2}, v{vT0}
    s_and_b64 vcc, vcc, s[{sMK}:{sMK+1}]
    s_cmp_eq_u64 vcc, -1
    s_cbranch_scc1 L_hello_ok
    s_add_u32 s{sSPIN}, s{sSPIN}, 1
    s_cmp_gt_u32 s{sSPIN}, {c.spin_max}
    s_cbranch_scc1 L_end
    buffer_load_dwordx2 v[{vPOLL}:{vPOLL+1}], v{vHA}, s[{sWS}:{sWS+3}], 0 offen sc1
    s_waitcnt vmcnt(0)
    s_branch L_hello
L_hello_ok:
    v_cmp_eq_u32 vcc, s{sT3}, v{vPOLL+1}
    s_cmp_eq_u64 vcc, -1
    s_cselect_b32 s{sMODE}, {0 if c.force_slow else 1}, 0
    s_branch L_tail
""")
    assert sT1 == sT0 + 1 and sT0 % 2 == 0
    a("L_layer2:")
    stamp()
    kloop(False)
    if TS == 4:
        a("    s_memtime s[98:99]")
        a("    s_waitcnt lgkmcnt(0)")
        for k in range(10):
            a(f"    s_mov_b32 m0, s{sTSI}")
            a(f"    s_nop 0")
            a(f"    v_writelane_b32 v{vTS}, s{80+2*k}, m0")
            a(f"    s_add_u32 s{sTSI}, s{sTSI}, 1")
    a("L_tail:")
    if c.amp and c.amp[0] == "l0k":
        a(f"""    s_cmp_eq_u32 s{sL}, 0
    s_cbranch_scc0 L_amp2
    s_memtime s[26:27]
    s_waitcnt lgkmcnt(0)
    s_sub_u32 s25, s26, s100
L_amp2:""")
    if TS in (2, 3):
        a("    s_nop 15")
        stamp()
    a(f"    v_mov_b32 v{vFV}, s{sTA}")
    a(f"    v_mov_b32 v{vFV+1}, s{sTA+1}")
    a("    s_nop 8")
    for q in range(4):
        a(f"    ds_write_b128 v{vRW}, v[{vAS+4*q}:{vAS+4*q+3}] offset:{q*1024}")
    if c.epi2:
        a("    s_nop 0")
        for r in range(0, 16, 2):
            a(f"    v_pk_fma_f32 v[{vAK+r}:{vAK+r+1}], v[{vX0F+r}:{vX0F+r+1}], v[{vAK+r}:{vAK+r+1}], v[{vXR+r}:{vXR+r+1}]")
    a("    s_waitcnt lgkmcnt(0)")
    a("    s_barrier                                 ; B2")
    stamp(3)
    for q in range(4):
        a(f"    ds_read_b128 v[{vPART+4*q}:{vPART+4*q+3}], v{vRR} offset:{q*1024}")
    def epi(q):
        a(f"    s_waitcnt lgkmcnt({3-q})")
        if c.epi2:
            for p in range(2):
                r = 4 * q + 2 * p
                a(f"    v_pk_fma_f32 v[{vAK+r}:{vAK+r+1}], v[{vX0F+r}:{vX0F+r+1}], v[{vPART+r}:{vPART+r+1}], v[{vAK+r}:{vAK+r+1}]")
        else:
            for p in range(2):
                r = 4 * q + 2 * p
                a(f"    v_pk_add_f32 v[{vAK+r}:{vAK+r+1}], v[{vAK+r}:{vAK+r+1}], v[{vPART+r}:{vPART+r+1}]")
            for p in range(2):
                r = 4 * q + 2 * p
                a(f"    v_pk_fma_f32 v[{vAK+r}:{vAK+r+1}], v[{vX0F+r}:{vX0F+r+1}], v[{vAK+r}:{vAK+r+1}], v[{vXR+r}:{vXR+r+1}]")
        for p in range(2):
            r = 4 * q + 2 * p
            a(f"    v_cvt_pk_bf16_f32 v{vP+2*q+p}, v{vAK+r}, v{vAK+r+1}")
    a(f"""
    s_cmp_eq_u32 s{sL}, 5
    s_cbranch_scc1 L_final
    s_cmp_eq_u32 s{sMODE}, 0
    s_cbranch_scc1 L_st_slow
""")
    epi(0); epi(1)
    a(f"    buffer_store_dwordx4 v[{vP}:{vP+3}], v{vXO}, s[{sWS}:{sWS+3}], s{sXST} offen")
    epi(2); epi(3)
    a(f"    buffer_store_dwordx4 v[{vP+4}:{vP+7}], v{vXO}, s[{sWS}:{sWS+3}], s{sXST} offen offset:1024")
    if c.phased: a("    s_barrier                                 ; B_s")
    stamp(3)
    def unpack_res():
        for d in range(8):
            a(f"    v_lshlrev_b32 v{vXR+2*d}, 16, v{vP+d}")
            a(f"    v_and_b32 v{vXR+2*d+1}, 0xffff0000, v{vP+d}")
    bias_load()
    unpack_res()
    a(f"""
    s_waitcnt vmcnt(0)
    buffer_store_dwordx2 v[{vFV}:{vFV+1}], off, s[{sWS}:{sWS+3}], s{sOWNF}
    s_branch L_st_done
L_st_slow:
""")
    epi(0); epi(1); epi(2); epi(3)
    a(f"""
    buffer_store_dwordx4 v[{vP}:{vP+3}], v{vXO}, s[{sWS}:{sWS+3}], s{sXST} offen sc1
    buffer_store_dwordx4 v[{vP+4}:{vP+7}], v{vXO}, s[{sWS}:{sWS+3}], s{sXST} offen offset:1024 sc1
""")
    if c.phased: a("    s_barrier                                 ; B_s")
    stamp(3)
    bias_load()
    unpack_res()
    a(f"""
    s_waitcnt vmcnt(0)
    buffer_store_dwordx2 v[{vFV}:{vFV+1}], off, s[{sWS}:{sWS+3}], s{sOWNF} sc1
L_st_done:
""")
    stamp()
    if c.onepoll:
        a(f"""
    s_cmp_eq_u32 s{sWV}, 0
    s_cbranch_scc0 L_nopoll1""")
    a(f"""
    buffer_load_dwordx2 v[{vPOLL}:{vPOLL+1}], v{vFA}, s[{sWS}:{sWS+3}], 0 offen sc1
L_nopoll1:
    {"s_barrier                                 ; B_f" if c.phased else ""}
""")
    def progress(lab):
        a(f"""    s_or_b32 s{sT0}, s{sJ}, s{sWV}
    s_cmp_eq_u32 s{sT0}, 0
    s_cbranch_scc0 {lab}
    s_add_u32 s{sT0}, s{sCB}, 3072
    buffer_store_dwordx2 v[{vFV}:{vFV+1}], off, s[{sWS}:{sWS+3}], s{sT0}
{lab}:""")
    if c.prog_at == "end": progress("L_noprog")
    a(f"""
    s_add_u32 s{sL}, s{sL}, 1
    s_cmp_eq_u32 s{sL}, 1
    s_cbranch_scc1 L_keep_xa
    s_add_u32 s{sXA}, s{sXA}, s{sXD}
    s_add_u32 s{sXB}, s{sXB}, s{sXD}
    s_sub_u32 s{sXD}, 0, s{sXD}
L_keep_xa:
    s_add_u32 s{sXST}, s{sXST}, s{sXD2}
    s_sub_u32 s{sXD2}, 0, s{sXD2}
    s_add_u32 s{sWP}, s{sWP}, {c.wstride}
    s_sub_u32 s{sMP}, s{sMP}, s{sPD}
    v_add_u32 v{vAPK}, s{sPD}, v{vAPK}
    v_add_u32 v{vAPS}, s{sPD}, v{vAPS}
    s_sub_u32 s{sPD}, 0, s{sPD}
    s_mov_b32 s{sSPIN}, 0
""")
    a("    s_waitcnt lgkmcnt(0)")
    bias_spread()
    if c.onepoll:
        a(f"""
    s_cmp_eq_u32 s{sWV}, 0
    s_cbranch_scc0 L_ready""")
    if c.poll2:
        a(f"""L_poll:
    buffer_load_dwordx2 v[{vPOL2}:{vPOL2+1}], v{vFA}, s[{sWS}:{sWS+3}], 0 offen sc1
    s_waitcnt vmcnt(1)
    v_cmp_eq_u64 vcc, s[{sTA}:{sTA+1}], v[{vPOLL}:{vPOLL+1}]
    v_cmp_eq_u64 s[{sMK}:{sMK+1}], s[{sTB}:{sTB+1}], v[{vPOLL}:{vPOLL+1}]
    s_or_b64 vcc, vcc, s[{sMK}:{sMK+1}]
    s_cmp_eq_u64 vcc, -1
    s_cbranch_scc1 L_ready
    buffer_load_dwordx2 v[{vPOLL}:{vPOLL+1}], v{vFA}, s[{sWS}:{sWS+3}], 0 offen sc1
    s_waitcnt vmcnt(1)
    v_cmp_eq_u64 vcc, s[{sTA}:{sTA+1}], v[{vPOL2}:{vPOL2+1}]
    v_cmp_eq_u64 s[{sMK}:{sMK+1}], s[{sTB}:{sTB+1}], v[{vPOL2}:{vPOL2+1}]
    s_or_b64 vcc, vcc, s[{sMK}:{sMK+1}]
    s_cmp_eq_u64 vcc, -1
    s_cbranch_scc1 L_ready
    s_add_u32 s{sSPIN}, s{sSPIN}, 1
    s_cmp_gt_u32 s{sSPIN}, {c.spin_max}
    s_cbranch_scc0 L_poll
    s_endpgm
""")
    else:
        a(f"""L_poll:
    s_waitcnt vmcnt(0)
    v_cmp_eq_u64 vcc, s[{sTA}:{sTA+1}], v[{vPOLL}:{vPOLL+1}]
    v_cmp_eq_u64 s[{sMK}:{sMK+1}], s[{sTB}:{sTB+1}], v[{vPOLL}:{vPOLL+1}]
    s_or_b64 vcc, vcc, s[{sMK}:{sMK+1}]
    s_cmp_eq_u64 vcc, -1
    s_cbranch_scc1 L_ready
    buffer_load_dwordx2 v[{vPOLL}:{vPOLL+1}], v{vFA}, s[{sWS}:{sWS+3}], 0 offen sc1
    s_add_u32 s{sSPIN}, s{sSPIN}, 1
    s_cmp_gt_u32 s{sSPIN}, {c.spin_max}
    s_cbranch_scc0 L_poll
    s_endpgm
""")
    a(f"""L_ready:
""")
    if c.amp and c.amp[0] == "start":
        a(f"""    s_cmp_eq_u32 s{sL}, 1
    s_cbranch_scc0 L_amp1
    s_memtime s[26:27]
    s_waitcnt lgkmcnt(0)
    s_sub_u32 s25, s26, s100
L_amp1:""")
    stamp(1)
    a(f"""
    s_barrier                                 ; B_a
    s_branch L_layer2
L_final:
""")
    epi(0); epi(1); epi(2); epi(3)
    a(f"""
    s_nop 1
    v_permlane32_swap_b32 v{vP}, v{vP+2}
    v_permlane32_swap_b32 v{vP+1}, v{vP+3}
    v_permlane32_swap_b32 v{vP+4}, v{vP+6}
    v_permlane32_swap_b32 v{vP+5}, v{vP+7}
""")
    if c.amp and c.amp[0] == "fin":
        a("    s_memtime s[100:101]\n    s_waitcnt lgkmcnt(0)")
    a(f"""
    buffer_store_dwordx4 v[{vP}:{vP+3}], v{vOUT}, s[{sOUT}:{sOUT+3}], 0 offen
    buffer_store_dwordx4 v[{vP+4}:{vP+7}], v{vOUT}, s[{sOUT}:{sOUT+3}], 0 offen offset:32
""")
    if c.amp and c.amp[0] == "fin":
        a("    s_waitcnt vmcnt(0)\n    s_memtime s[26:27]\n    s_waitcnt lgkmcnt(0)\n    s_sub_u32 s25, s26, s100")
    a(f"""
    s_or_b32 s{sT0}, s{sJ}, s{sWV}
    s_cmp_eq_u32 s{sT0}, 0
    s_cbranch_scc0 L_noepoch
    s_add_u32 s{sT0}, s{sE}, 16
    s_addc_u32 s{sT1}, s{sE+1}, 0
    v_mov_b32 v{vFV}, s{sT0}
    v_mov_b32 v{vFV+1}, s{sT1}
    s_mov_b64 exec, 1
    buffer_store_dwordx2 v[{vFV}:{vFV+1}], off, s[{sWS}:{sWS+3}], s{sCB} sc1
    s_mov_b64 exec, -1
L_noepoch:
""")
    if c.amp:
        if c.amp[0] in ("total", "totalrt"):
            a(("    s_memtime s[26:27]" if c.amp[0] == "total" else "    s_memrealtime s[26:27]") + """
    s_waitcnt lgkmcnt(0)
    s_sub_u32 s25, s26, s100""")
        tm = "s_memrealtime" if c.amp[0] == "totalrt" else "s_memtime"
        a(f"""    s_cmp_eq_u32 s2, 0
    s_cbranch_scc0 L_amp9
    s_mul_i32 s25, s25, {c.amp[1]}
    {tm} s[80:81]
    s_waitcnt lgkmcnt(0)
L_ampspin:
    {tm} s[82:83]
    s_waitcnt lgkmcnt(0)
    s_sub_u32 s82, s82, s80
    s_cmp_lt_u32 s82, s25
    s_cbranch_scc1 L_ampspin
L_amp9:""")
    if c.exp_delay or c.exp_rt:
        ins = "s_memtime" if c.exp_delay else "s_memrealtime"
        a(f"""
    {ins} s[80:81]
    s_waitcnt lgkmcnt(0)
L_expd:
    {ins} s[82:83]
    s_waitcnt lgkmcnt(0)
    s_sub_u32 s82, s82, s80
    s_cmp_lt_u32 s82, {c.exp_delay or c.exp_rt}
    s_cbranch_scc1 L_expd
""")
    stamp(1); dump_ts()
    a("    s_endpgm")

    if c.helpers:
        HPR = (c.SV * 16 + (2 * NSR if c.sp else 0)) if c.hp is None else c.hp * 16
        HP = HPR // 16
        nrow = 208 - HPR
        nline = nrow * 13
        tot = 4 * nline
        nins = (tot + 63) // 64
        cdelta = HPR * ROWB
        NK = -(-nins // 48)
        HF = 1 if ((c.h0 == 'prefix' or c.w0assist or c.w0scal) and c.hfirst == 0) else c.hfirst
        a(f"""
L_helper:
""")
        if c.probe:
            a(f"""
    s_cmp_eq_u32 s2, 208
    s_cbranch_scc0 L_noprobe
    s_cmp_eq_u32 s{sWV}, 0
    s_cbranch_scc0 L_noprobe
    s_mov_b32 s20, {c.probe_off + 16384}
    buffer_load_dword v30, off, s[{sW}:{sW+3}], s20
    s_waitcnt vmcnt(0)
    s_mov_b32 s20, {c.probe_off}
    s_memtime s[22:23]
    s_waitcnt lgkmcnt(0)
    buffer_load_dword v30, off, s[{sW}:{sW+3}], s20
    s_waitcnt vmcnt(0)
    s_memtime s[24:25]
    s_waitcnt lgkmcnt(0)
    s_sub_u32 s24, s24, s22
    s_mul_i32 s24, s24, {c.probe}
L_pspin:
    s_memtime s[26:27]
    s_waitcnt lgkmcnt(0)
    s_sub_u32 s26, s26, s22
    s_cmp_lt_u32 s26, s24
    s_cbranch_scc1 L_pspin
    s_endpgm
L_noprobe:""")
        a(f"""
    ; L2 prefetch for the workers of this die (placement assumed for speed only): one dword per 128-byte line
    s_sub_u32 s{sT0}, s2, 208
    s_and_b32 s{sT1}, s{sT0}, 7
    s_lshr_b32 s{sT0}, s{sT0}, 3
    s_lshl_b32 s{sT0}, s{sT0}, 3
    s_add_u32 s{sT0}, s{sT0}, s{sWV}          ; g = 0..47
    s_lshl_b32 s{sCB}, s{sT1}, 13
    s_add_u32 s{sCB}, s{sCB}, {CTRL}
    s_load_dwordx2 s[{sE}:{sE+1}], s[50:51], s{sCB}
    s_add_u32 s{sOWNF}, s{sCB}, 3072
""")
        if c.tlbwarm:
            a(f"""
    s_cmp_eq_u32 s{sWV}, 7
    s_cbranch_scc0 L_notlb
""")
            k_ = 0
            for base, offs in ((46, [0, XLAYER - 64]), (50, [0, XBUF - 64, XBUF + (1 << 20), 2 * XBUF - 64, 2 * XBUF + 65536 - 64]),
                               (42, [1 << 21, 2 << 21, 3 << 21, L_ * WLAYER - 64])):
                for off in offs:
                    a(f"""    s_add_u32 s24, s{base}, {off}
    s_addc_u32 s25, s{base+1}, 0
    s_load_dword s{76+k_}, s[24:25], 0""")
                    k_ += 1
            a("L_notlb:")
        a(f"""
    ; exchange-buffer lines of the die's two row blocks: {2*XRB//128} lines
    s_mul_i32 s{sG}, s{sT1}, {2*XRB}
    s_lshl_b32 s{sI}, s{sT0}, 13
    s_add_u32 s{sG}, s{sG}, s{sI}
    v_lshlrev_b32 v19, 7, v{vL}
    v_add_u32 v19, s{sG}, v19
    s_cmp_lt_u32 s{sT0}, {-(-2*XRB // 8192)}
    s_cselect_b32 s{sM}, 1, 0
""")
        def lane_addr(vdst, nline_, base0, delta):
            tot_ = 4 * nline_
            a(f"""
    s_lshl_b32 s{sI}, s{sI}, 6
    v_add_u32 v{vT0}, s{sI}, v{vL}
    v_mov_b32 v{vT1}, {base0}
    v_cmp_le_u32 vcc, {nline_}, v{vT0}
    v_mov_b32 v{vT2}, 0
    v_mov_b32 v{vT3}, {delta}
    v_cndmask_b32 v{vT2}, v{vT2}, v{vT3}, vcc
    v_add_u32 v{vT1}, v{vT1}, v{vT2}
    v_cmp_le_u32 vcc, {2*nline_}, v{vT0}
    v_mov_b32 v{vT2}, 0
    s_nop 0
    v_cndmask_b32 v{vT2}, v{vT2}, v{vT3}, vcc
    v_add_u32 v{vT1}, v{vT1}, v{vT2}
    v_cmp_le_u32 vcc, {3*nline_}, v{vT0}
    v_mov_b32 v{vT2}, 0
    s_nop 0
    v_cndmask_b32 v{vT2}, v{vT2}, v{vT3}, vcc
    v_add_u32 v{vT1}, v{vT1}, v{vT2}
    v_lshl_add_u32 v{vdst}, v{vT0}, 7, v{vT1}
    v_cmp_le_u32 vcc, {tot_}, v{vT0}
    v_mov_b32 v{vT2}, 0x7ffffff0
    s_nop 0
    v_cndmask_b32 v{vdst}, v{vdst}, v{vT2}, vcc""")
        def need_set(vbase, skip_rows, nrows):
            tot_ = nrows * 52
            nins_ = (tot_ + 63) // 64
            nk = -(-nins_ // 48)
            for k in range(nk):
                a(f"""
    s_add_u32 s{sI}, s{sT0}, {48*k}
    s_lshl_b32 s{sI}, s{sI}, 6
    v_add_u32 v{vT0}, s{sI}, v{vL}
    v_mul_u32_u24 v{vT1}, 80660, v{vT0}
    v_lshrrev_b32 v{vT1}, 22, v{vT1}
    v_mul_u32_u24 v{vT2}, 52, v{vT1}
    v_sub_u32 v{vT2}, v{vT0}, v{vT2}          ; rem
    v_mul_u32_u24 v{vT3}, 5042, v{vT2}
    v_lshrrev_b32 v{vT3}, 16, v{vT3}
    v_mul_u32_u24 v{vbase+k}, 13, v{vT3}
    v_sub_u32 v{vT2}, v{vT2}, v{vbase+k}
    v_mul_u32_u24 v{vT3}, 208, v{vT3}
    v_add_u32 v{vT1}, v{vT1}, v{vT3}
    v_add_u32 v{vT1}, {skip_rows}, v{vT1}     ; row
    v_mul_u32_u24 v{vT1}, {ROWB}, v{vT1}
    v_lshl_add_u32 v{vbase+k}, v{vT2}, 7, v{vT1}
    v_cmp_le_u32 vcc, {tot_}, v{vT0}
    v_mov_b32 v{vT2}, 0x7ffffff0
    s_nop 0
    v_cndmask_b32 v{vbase+k}, v{vbase+k}, v{vT2}, vcc""")
            return nk
        def addr_set(vbase, nline_, base0, delta, tag):
            tot_ = 4 * nline_
            nins_ = (tot_ + 63) // 64
            nk = -(-nins_ // 48)
            a(f"    s_mul_i32 s{sT2}, s{sT1}, {nins_ // 8}")
            for k in range(nk):
                a(f"""
    s_add_u32 s{sT3}, s{sT0}, {48*k}
    s_add_u32 s{sI}, s{sT3}, s{sT2}
    s_cmp_ge_u32 s{sI}, {nins_}
    s_cselect_b32 s{sG}, {nins_}, 0
    s_sub_u32 s{sI}, s{sI}, s{sG}
    s_cmp_ge_u32 s{sT3}, {nins_}
    s_cselect_b32 s{sI}, {nins_ + 8}, s{sI}   ; no k-th instruction -> past the end""")
                lane_addr(vbase + k, nline_, base0, delta)
            return nk
        NK0 = 0
        if (c.w0assist or c.w0scal) and c.hfirst == 0:
            skip0 = P * 16 + (60 if c.w0assist else 28)
            NK0 = addr_set(40, (208 - skip0) * 13, skip0 * ROWB, skip0 * ROWB, "p")
            for k in range(NK0):
                a(f"    buffer_load_dword v{50+k}, v{40+k}, s[{sW}:{sW+3}], 0 offen")
        elif c.h0 == "prefix" and c.hfirst == 0:
            NK0 = addr_set(40, HP * 16 * 13, 0, (13 - HP) * 26624, "p")
            for k in range(NK0):
                a(f"    buffer_load_dword v{50+k}, v{40+k}, s[{sW}:{sW+3}], 0 offen")
        if c.horder == "need": need_set(10, HPR, nrow)
        else: addr_set(10, nline, cdelta, cdelta, "h")
        nshare_l = tot // 8
        NW_ = 14
        if c.hwarm:
            a(f"""
    s_mul_i32 s{sI}, s{sT1}, {nshare_l}
    s_mul_i32 s{sG}, s{sT0}, {NW_}
    s_add_u32 s{sI}, s{sI}, s{sG}
    s_mov_b32 s{sG}, {cdelta}
    s_cmp_ge_u32 s{sI}, {nline}
    s_cselect_b32 s{sT3}, {cdelta}, 0
    s_add_u32 s{sG}, s{sG}, s{sT3}
    s_cmp_ge_u32 s{sI}, {2*nline}
    s_cselect_b32 s{sT3}, {cdelta}, 0
    s_add_u32 s{sG}, s{sG}, s{sT3}
    s_cmp_ge_u32 s{sI}, {3*nline}
    s_cselect_b32 s{sT3}, {cdelta}, 0
    s_add_u32 s{sG}, s{sG}, s{sT3}
    s_lshl_b32 s{sI}, s{sI}, 7
    s_add_u32 s{sI}, s{sI}, s{sG}
    s_add_u32 s{sI}, s{sI}, {c.wstride}
    s_add_u32 s44, s42, s{sI}                 ; layer 1
    s_addc_u32 s45, s43, 0""")
        if c.hvec_warm:
            a(f"""
    ; memory-side cache warm-up: lines [die*1352, +1352) of a later layer, one line per lane; waves g < 22 (and g - 22 < 22 at the start)
    s_cmp_ge_u32 s{sT0}, 22
    s_cselect_b32 s{sG}, 22, 0
    s_cselect_b32 s{sWG}, 1, 0
    s_sub_u32 s{sG}, s{sT0}, s{sG}
    s_lshl_b32 s{sG}, s{sG}, 6
    s_mul_i32 s{sI}, s{sT1}, 1352
    s_add_u32 s{sI}, s{sI}, s{sG}
    v_add_u32 v{vT0}, s{sI}, v{vL}
    v_lshlrev_b32 v18, 7, v{vT0}
    v_add_u32 v{vT1}, s{sG}, v{vL}
    v_cmp_le_u32 vcc, 1352, v{vT1}
    v_mov_b32 v{vT2}, 0x7ffffff0
    s_nop 0
    v_cndmask_b32 v18, v18, v{vT2}, vcc""")
        nv_l = c.SV * 16 * 52 // 8
        if c.hvwarm:
            a(f"""
    s_mul_i32 s{sI}, s{sT1}, {nv_l}
    s_mul_i32 s{sG}, s{sT0}, 7
    s_min_u32 s{sG}, s{sG}, {nv_l - 7}
    s_add_u32 s{sI}, s{sI}, s{sG}
    s_mov_b32 s{sG}, 0
    s_cmp_ge_u32 s{sI}, {c.SV * 16 * 13}
    s_cselect_b32 s{sT3}, {(208 - c.SV * 16) * ROWB}, 0
    s_add_u32 s{sG}, s{sG}, s{sT3}
    s_cmp_ge_u32 s{sI}, {2 * c.SV * 16 * 13}
    s_cselect_b32 s{sT3}, {(208 - c.SV * 16) * ROWB}, 0
    s_add_u32 s{sG}, s{sG}, s{sT3}
    s_cmp_ge_u32 s{sI}, {3 * c.SV * 16 * 13}
    s_cselect_b32 s{sT3}, {(208 - c.SV * 16) * ROWB}, 0
    s_add_u32 s{sG}, s{sG}, s{sT3}
    s_lshl_b32 s{sI}, s{sI}, 7
    s_add_u32 s{sI}, s{sI}, s{sG}
    s_add_u32 s{sI}, s{sI}, {c.wstride}
    s_add_u32 s46, s42, s{sI}                 ; layer 1
    s_addc_u32 s47, s43, 0""")
        if NK0 and c.hwarm:
            a("    s_waitcnt lgkmcnt(0)")
            for half in range(2):
                if half: a("    s_waitcnt lgkmcnt(0)")
                for n_ in range(7 * half, 7 * half + 7):
                    a(f"    s_load_dwordx2 s[{76+2*(n_%7)}:{77+2*(n_%7)}], s[44:45], {n_*128 + 60}")
            a(f"    s_add_u32 s44, s44, {c.wstride}")
            a(f"    s_addc_u32 s45, s45, 0")
        if NK0:
            a(f"""
    s_waitcnt vmcnt(0)
    s_barrier
    s_cmp_eq_u32 s{sM}, 1
    s_cbranch_scc0 L_hx1
    s_mov_b32 s{sI}, {XBUF}
    buffer_load_dword v30, v19, s[{sWS}:{sWS+3}], s{sI} offen sc1
L_hx1:
""")
        a(f"""
    v_mov_b32 v20, 0
    s_mov_b32 s{sL}, {HF}
    s_mov_b32 s{sT3}, {HF * c.wstride}
    s_waitcnt lgkmcnt(0)
L_h_layer:
""")
        if c.hpace:
            a(f"""
    ; before layer m wait (bounded) until the workers have finished layer m-{c.hlook}
    s_cmp_lt_u32 s{sL}, {c.hlook}
    s_cbranch_scc1 L_h_go
    s_cmp_eq_u32 s{sWV}, 0
    s_cbranch_scc0 L_h_bar
    s_mov_b32 s{sSPIN}, 0
L_h_poll:
    buffer_load_dwordx2 v[16:17], v20, s[{sWS}:{sWS+3}], s{sOWNF} offen sc1
    s_waitcnt vmcnt(0)
    v_readfirstlane_b32 s{sTA}, v16
    v_readfirstlane_b32 s{sTA+1}, v17
    s_sub_u32 s{sTA}, s{sTA}, s{sE}
    s_subb_u32 s{sTA+1}, s{sTA+1}, s{sE+1}
    s_cmp_eq_u32 s{sTA+1}, 0
    s_cselect_b32 s{sTA}, s{sTA}, 0
    s_cmp_gt_u32 s{sTA}, 6
    s_cselect_b32 s{sTA}, 0, s{sTA}           ; layers finished so far
    s_add_u32 s{sTA}, s{sTA}, {c.hlook - 1}
    s_cmp_ge_u32 s{sTA}, s{sL}
    s_cbranch_scc1 L_h_bar
    s_add_u32 s{sSPIN}, s{sSPIN}, 1
    s_cmp_lt_u32 s{sSPIN}, 32
    s_cbranch_scc1 L_h_poll
L_h_bar:
    s_barrier
L_h_go:
""")
        def hw_batch(k, lab):
            if not c.hwarm: return
            a(f"    s_cmp_lt_u32 s{sL}, 5")
            a(f"    s_cbranch_scc0 {lab}")
            if not c.hw0:
                a(f"    s_cmp_eq_u32 s{sL}, 0")
                a(f"    s_cbranch_scc1 {lab}")
            a("    s_waitcnt lgkmcnt(0)")
            for n_ in range(7 * k, 7 * k + 7):
                a(f"    s_load_dwordx2 s[{76+2*(n_%7)}:{77+2*(n_%7)}], s[44:45], {n_*128 + 60}")
            a(f"{lab}:")
        def vec_warm(lab):
            A_ = c.hvw_ahead
            a(f"    s_cmp_eq_u32 s{sWG}, 1")
            a(f"    s_cbranch_scc1 {lab}_b")
            a(f"    s_add_u32 s{sI}, s{sL}, {A_}")
            a(f"    s_cmp_le_u32 s{sI}, 5")
            a(f"    s_cbranch_scc0 {lab}")
            if c.wwarm:
                a(f"    s_cmp_gt_u32 s{sI}, {c.wwarm}")
                a(f"    s_cbranch_scc0 {lab}")
            a(f"    s_add_u32 s{sI}, s{sT3}, {A_ * c.wstride}")
            a(f"    buffer_load_dword v29, v18, s[{sW}:{sW+3}], s{sI} offen")
            a(f"    s_branch {lab}")
            a(f"{lab}_b:")
            if A_ == 2 and c.wwarm < 1:
                a(f"    s_cmp_eq_u32 s{sL}, {HF}")
                a(f"    s_cbranch_scc0 {lab}")
                a(f"    s_add_u32 s{sI}, s{sT3}, {c.wstride}")
                a(f"    buffer_load_dword v29, v18, s[{sW}:{sW+3}], s{sI} offen")
            a(f"{lab}:")
        if c.hvec_warm and c.hvw_pos == "before": vec_warm("L_hvw")
        for k in range(NK):
            a(f"    buffer_load_dword v{31+k}, v{10+k}, s[{sW}:{sW+3}], s{sT3} offen")
            if k < 2: hw_batch(k, f"L_hw{k}")
            a(f"    s_waitcnt vmcnt({c.hdepth})")
            a(f"    s_barrier")
        if c.hvec_warm and c.hvw_pos == "after": vec_warm("L_hvw")
        if c.hvwarm:
            a(f"    s_cmp_lt_u32 s{sL}, 5")
            a(f"    s_cbranch_scc0 L_hnv")
            a("    s_waitcnt lgkmcnt(0)")
            for n_ in range(7):
                a(f"    s_load_dwordx2 s[{76+2*n_}:{77+2*n_}], s[46:47], {n_*128 + 60}")
            a(f"    s_add_u32 s46, s46, {c.wstride}")
            a(f"    s_addc_u32 s47, s47, 0")
            a("L_hnv:")
        if c.hwarm:
            a(f"    s_add_u32 s44, s44, {c.wstride}")
            a(f"    s_addc_u32 s45, s45, 0")
        if c.xt_by in ('helper', 'mixed'):
            nbuf = 1 if c.xt_by == "mixed" else 2
            a(f"""
    s_sub_u32 s{sI}, s{sL}, {HF}
    s_add_u32 s{sI}, s{sI}, {1 if HF != c.hfirst else 0}
    s_cmp_lt_u32 s{sI}, {nbuf}
    s_cbranch_scc0 L_hx0
    s_cmp_eq_u32 s{sM}, 1
    s_cbranch_scc0 L_hx0
    s_cmp_eq_u32 s{sI}, 0
    s_cselect_b32 s{sI}, {XBUF}, 0
    buffer_load_dword v30, v19, s[{sWS}:{sWS+3}], s{sI} offen sc1
L_hx0:""")
        stamp(1)
        a(f"""
    s_add_u32 s{sL}, s{sL}, 1
    s_add_u32 s{sT3}, s{sT3}, {c.wstride}
    s_cmp_lt_u32 s{sL}, 6
    s_cbranch_scc1 L_h_layer
""")
        if c.outtouch:
            srd(sOUT, 46, XLAYER)
            a(f"""
    ; output lines of the die's 128 rows: the final stores then stay in L2
    s_cmp_eq_u32 s{sM}, 1
    s_cbranch_scc0 L_noot
    buffer_load_dword v30, v19, s[{sOUT}:{sOUT+3}], 0 offen
L_noot:""")
        if c.hwb:
            a(f"""
    ; first helper workgroup of the die, wave 0: once layer 4 is finished, start writing the exchanged activations back
    s_cmp_lt_u32 s2, 216
    s_cbranch_scc0 L_nowb
    s_cmp_eq_u32 s{sWV}, 0
    s_cbranch_scc0 L_nowb
    s_mov_b32 s{sSPIN}, 0
L_wbpoll:
    buffer_load_dwordx2 v[16:17], v20, s[{sWS}:{sWS+3}], s{sOWNF} offen sc1
    s_waitcnt vmcnt(0)
    v_readfirstlane_b32 s{sTA}, v16
    v_readfirstlane_b32 s{sTA+1}, v17
    s_sub_u32 s{sTA}, s{sTA}, s{sE}
    s_subb_u32 s{sTA+1}, s{sTA+1}, s{sE+1}
    s_cmp_eq_u32 s{sTA+1}, 0
    s_cselect_b32 s{sTA}, s{sTA}, 0
    s_cmp_eq_u32 s{sTA}, 5
    s_cbranch_scc1 L_wbgo
    s_add_u32 s{sSPIN}, s{sSPIN}, 1
    s_cmp_lt_u32 s{sSPIN}, 64
    s_cbranch_scc1 L_wbpoll
L_wbgo:
    buffer_wbl2 sc1
L_nowb:""")
        a("    s_waitcnt vmcnt(0)")
        stamp(1)
        dump_ts()
    a("L_end:")
    a("    s_endpgm")
    kernel_desc(a, KNAME, NV, sgpr=102, accum=NV)
    txt = a.text().rstrip()
    if txt.endswith(".text"):
        txt = txt[:-5]
    return txt

if __name__ == "__main__":
    import json
    kw = json.loads(sys.argv[2]) if len(sys.argv) > 2 else {}
    open(sys.argv[1], "w").write(gen(**kw))
```

```python
import sys, os
from asmlib import *

KNAME = "standalone__dcn_v2_cross__recsys_kernel"
B_, DIN, L_ = 1024, 832, 6
ROWB = DIN * 2
WLAYER = DIN * DIN * 2
XLAYER = B_ * DIN * 2
XMH = 32 * ROWB
XRB = 2 * XMH
XBUF = 16 * XRB
CTRL = 2 * XBUF
TSOFF = CTRL + 16 * 4096
WS_BYTES = TSOFF + 256 * 8 * 256

class Cfg:
    def __init__(self, **kw):
        self.P = 6
        self.D = 5
        self.PF = 2
        self.SV = 3
        self.SB = 7
        self.ssched = 'three'
        self.NS = 3
        self.sp = True
        self.hp = None
        self.helpers = True
        self.hfirst = 0
        self.hlook = 2
        self.hpace = True
        self.hdepth = 1
        self.lthr = 0
        self.lthr_all = True
        self.sD_late = True
        self.ts = 0
        self.force_slow = False
        self.scramble = False
        self.spin_max = 1 << 20
        self.wstride = WLAYER
        self.prio = 2
        self.hello_step = 19
        self.hx0 = False
        self.no_mfma = False
        self.fake16 = False
        self.r1touch = False
        self.w0scal = False
        self.epi2 = True
        self.outtouch = False
        self.vw2 = 'after_by'
        self.nt_last = False
        self.hfirstid = False
        self.chunks0 = [13, 17, 20, 23]
        self.amp = None
        self.hwb = False
        self.probe = 0
        self.probe_off = 5 * WLAYER + 700 * ROWB
        self.codepf = True
        self.wwarm = 0
        self.xt_by = 'helper'
        self.hvec_warm = False
        self.hvw_ahead = 2
        self.hvw_pos = 'after'
        self.tlbwarm = False
        self.l0b1 = True
        self.hvwarm = False
        self.hw0 = True
        self.hello_by = 'compute'
        self.pre_first = False
        self.swarm = False
        self.horder = 'linear'
        self.hwarm = True
        self.prog_step = 22
        self.prog_at = 'end'
        self.vwarm = True
        self.pre_by = 'loader'
        self.mid_step = 21
        self.presched = 'pack'
        self.h0 = 'middle'
        self.xtouch = False
        self.w0assist = False
        self.bias_by = 'loader'
        self.exp_delay = 0
        self.exp_rt = 0
        self.poll2 = True
        self.phased = True
        self.n1 = 0
        self.n2 = 4
        self.onepoll = True
        self.no_suf = self.no_pre = self.no_x = self.no_w = False
        self.__dict__.update(kw)

def gen(cfg=None, **kw):
    c = cfg or Cfg(**kw)
    P, D, PF = c.P, c.D, c.PF
    TS = int(c.ts)
    assert P <= 12 and PF <= P and D >= PF + 1
    KHS = (26 - P) * 2048
    PRE0 = 0
    SUF = 2 * P * 2048
    PRE1 = SUF + 2 * KHS
    PREPAR = PRE1 - PRE0
    RED = PRE1 + 2 * P * 2048
    BIAS = RED + 16384
    MODEW = BIAS
    LDS_BYTES = BIAS + 64
    XS = SUF
    assert XS + 4 * 28672 <= BIAS and LDS_BYTES <= 163840
    sW, sWS, sX0, sOUT, sBS = 4, 8, 12, 16, 24
    sRB, sJ, sG2, sWV, sMH, sKH, sL, sXCC, sMODE = 28, 29, 30, 31, 32, 33, 34, 35, 36
    sXA, sXB, sXST = 37, 38, 39
    sWP, sMP, sPD = 52, 53, 54
    sU, sOWNF, sXD2 = 55, 56, 57
    sT0, sT1, sT2, sT3 = 58, 59, 60, 61
    sSPIN, sROT = 62, 63
    sG, sM, sI = 64, 65, 66
    sTSI, sTM = 67, 68
    sXD, sCB = 70, 71
    sE, sTA, sTB, sMK = 72, 74, 76, 78
    sBP_ = 48
    sWG = 30
    vL = 0
    vT0, vT1, vT2, vT3 = 1, 2, 3, 4
    vDUM = 5
    vXO = 6
    vAPK, vAPS, vASK, vASS = 10, 11, 12, 13
    vDMA, vFA = 14, 15
    vPOLL = 16
    vRW, vRR, vBA, vTS = 20, 21, 22, 23
    vP = 24
    vAK, vAS, vPART, vX0F, vXR = 32, 48, 64, 80, 96
    vWF = 112
    vXF = 136
    vBP = 240
    vOUT, vHA, vFV, vDMA0 = 248, 249, 250, 252
    vPOL2 = 254
    NV = 256
    nsets = PF + 1
    assert nsets * 8 <= 24

    a = Asm()
    a("; Fused DCN-v2 cross network: 6 layers of x = x0 * (x @ W[l] + b[l]) + x, 1024 x 832, bf16 in/out, f32 accumulate.")
    a("; 208 worker workgroups = 16 row blocks (64 rows) x 13 column slices (64 columns); waves 0-3 MFMA, waves 4-7 W loaders;")
    a("; 48 helper workgroups prefetch into L2.  Layer outputs are exchanged inside a row block through d_ws.")
    a(f"; @launch grid=({256 if c.helpers else 208},1,1) block=(512,1,1) lds={LDS_BYTES}")
    a('.amdgcn_target "amdgcn-amd-amdhsa--gfx950"')
    a(".text")
    kernel_begin(a, KNAME)
    if c.amp:
        a("    s_memrealtime s[100:101]" if c.amp[0] == "totalrt" else "    s_memtime s[100:101]")
    if TS == 5:
        a("    s_memrealtime s[26:27]")
        a("    s_memtime s[100:101]")

    def stamp(level=2):
        if not TS or TS < level or (TS == 4 and level > 1) or TS == 5: return
        a(f"    s_memtime s[{sTM}:{sTM+1}]")
        a(f"    s_waitcnt lgkmcnt(0)")
        a(f"    s_mov_b32 m0, s{sTSI}")
        a(f"    s_nop 0")
        a(f"    v_writelane_b32 v{vTS}, s{sTM}, m0")
        a(f"    s_add_u32 s{sTSI}, s{sTSI}, 1")
    def dump_ts():
        if not TS: return
        if TS == 5:
            a("    s_memrealtime s[80:81]")
            a("    s_memtime s[82:83]")
            a("    s_waitcnt lgkmcnt(0)")
            a(f"    v_writelane_b32 v{vTS}, s26, 0")
            a(f"    v_writelane_b32 v{vTS}, s80, 1")
            a(f"    v_writelane_b32 v{vTS}, s100, 2")
            a(f"    v_writelane_b32 v{vTS}, s82, 3")
        a(f"""
    s_lshl_b32 s{sT0}, s2, 3
    s_add_u32 s{sT0}, s{sT0}, s{sWV}
    s_lshl_b32 s{sT0}, s{sT0}, 8
    s_add_u32 s{sT0}, s{sT0}, {TSOFF}
    v_lshlrev_b32 v{vT0}, 2, v{vL}
    buffer_store_dword v{vTS}, v{vT0}, s[{sWS}:{sWS+3}], s{sT0} offen
""")
    def srd(dst, src, nbytes):
        a(f"    s_mov_b32 s{dst}, s{src}")
        a(f"    s_and_b32 s{dst+1}, s{src+1}, 0xffff")
        a(f"    s_mov_b32 s{dst+2}, {nbytes}")
        a(f"    s_mov_b32 s{dst+3}, 0x20000")

    a(f"""
    s_cmp_ge_u32 s2, {256 if c.helpers else 208}
    s_cbranch_scc1 L_end
    s_load_dwordx4 s[40:43], s[0:1], 0
    s_load_dwordx4 s[44:47], s[0:1], 16
    s_load_dwordx2 s[50:51], s[0:1], 40
    s_getreg_b32 s{sXCC}, hwreg(HW_REG_XCC_ID, 0, 4)
""")
    if c.hfirstid and c.helpers:
        a("""    s_cmp_lt_u32 s2, 48
    s_cselect_b32 s3, 256, 0
    s_add_u32 s2, s2, s3
    s_sub_u32 s2, s2, 48""")
    if c.scramble:
        a(f"""
    s_mul_hi_u32 s{sRB}, s2, 0x13B13B14
    s_mul_i32 s{sT0}, s{sRB}, 13
    s_sub_u32 s{sJ}, s2, s{sT0}
    s_and_b32 s{sG2}, s{sRB}, 1
    s_mul_i32 s{sROT}, s{sG2}, 13""")
    else:
        a(f"""
    s_and_b32 s{sT0}, s2, 7
    s_lshr_b32 s{sT1}, s2, 3
    s_cmp_ge_u32 s{sT1}, 13
    s_cselect_b32 s{sG2}, 1, 0
    s_mul_i32 s{sROT}, s{sG2}, 13
    s_sub_u32 s{sJ}, s{sT1}, s{sROT}
    s_lshl_b32 s{sRB}, s{sT0}, 1
    s_add_u32 s{sRB}, s{sRB}, s{sG2}""")
    a(f"""
    v_lshrrev_b32 v{vT0}, 6, v0
    v_and_b32 v{vL}, 63, v0
    v_readfirstlane_b32 s{sWV}, v{vT0}
    s_mov_b32 s{sTSI}, 0
    v_mov_b32 v{vTS}, 0
    s_lshl_b32 s{sCB}, s{sRB}, 12
    s_add_u32 s{sCB}, s{sCB}, {CTRL}
    s_and_b32 s{sMH}, s{sWV}, 1
    s_bfe_u32 s{sKH}, s{sWV}, 0x10001
    ; ---- x0 staging addresses (used by the loader waves; computed while the kernel arguments are on their way)
    s_sub_u32 s{sU}, s{sWV}, 4                ; u = 0..3: (kh, a) for W, compute wave u for the x0 staging
    v_lshrrev_b32 v{vT0}, 3, v{vL}            ; row8
    v_and_b32 v{vT1}, 7, v{vL}
    v_lshrrev_b32 v{vT2}, 1, v{vT0}
    v_xor_b32 v{vT1}, v{vT1}, v{vT2}          ; c' ^ (row8>>1)
    v_xor_b32 v{vT2}, 4, v{vT1}
    v_mul_u32_u24 v{vT0}, {ROWB}, v{vT0}
    v_lshl_add_u32 v{vXO}, v{vT1}, 4, v{vT0}
    v_lshl_add_u32 v{vXO+1}, v{vT2}, 4, v{vT0}
    s_lshl_b32 s{sT0}, s{sRB}, 6
    s_lshl_b32 s{sT1}, s{sMH}, 5
    s_add_u32 s{sT0}, s{sT0}, s{sT1}
    s_mul_i32 s{sG}, s{sT0}, {ROWB}
    s_mul_i32 s{sT1}, s{sKH}, {6*128}
    s_add_u32 s{sG}, s{sG}, s{sT1}
    s_mul_i32 s{sM}, s{sU}, 28672
    s_add_u32 s{sM}, s{sM}, {XS}
    s_cmp_ge_u32 s{sJ}, 7
    s_cselect_b32 s{sT3}, 7, 0
    s_sub_u32 s{sT3}, s{sJ}, s{sT3}
    s_mov_b32 s{sI}, 0
    s_waitcnt lgkmcnt(0)
""")
    if c.amp and c.amp[0] == "karg":
        a("    s_memtime s[26:27]\n    s_waitcnt lgkmcnt(0)\n    s_sub_u32 s25, s26, s100")
    srd(sX0, 40, XLAYER)
    stamp(1)
    def common_srds():
        srd(sW, 42, L_ * WLAYER)
        srd(sWS, 50, WS_BYTES)
        if c.codepf:
            n_ = common_srds.n = getattr(common_srds, "n", 0) + 1
            a(f"""    ; instruction prefetch into L2: wave (id/8)*8 + w reads line number (that index) of this kernel's code
    s_getpc_b64 s[20:21]
L_pc{n_}:
    s_lshr_b32 s22, s2, 3
    s_lshl_b32 s22, s22, 3
    s_add_u32 s22, s22, s{sWV}
    s_lshl_b32 s22, s22, 6
    s_sub_u32 s20, s20, L_pc{n_} - {KNAME}
    s_subb_u32 s21, s21, 0
    s_min_u32 s22, s22, L_end - {KNAME}
    s_load_dword s3, s[20:21], s22""")
    def vdma():
        a(f"""    ; W DMA lane offsets: swizzled 16-byte chunk + j*128; rows in layer-0 order (vDMA0) and in normal order (vDMA)
    v_lshrrev_b32 v{vT0}, 3, v{vL}            ; row8
    v_and_b32 v{vT1}, 7, v{vL}
    v_bfe_u32 v{vT2}, v{vL}, 4, 1
    v_lshlrev_b32 v{vT2}, 2, v{vT2}
    v_xor_b32 v{vT1}, v{vT1}, v{vT2}
    v_lshlrev_b32 v{vT1}, 4, v{vT1}
    s_lshl_b32 s{sT0}, s{sJ}, 7
    v_add_u32 v{vT1}, s{sT0}, v{vT1}
    v_mul_u32_u24 v{vT2}, {ROWB}, v{vT0}
    v_add_u32 v{vDMA}, v{vT2}, v{vT1}
    v_and_b32 v{vT2}, 3, v{vT0}
    v_lshrrev_b32 v{vT0}, 2, v{vT0}
    v_lshl_add_u32 v{vT0}, v{vT0}, 3, v{vT2}
    v_mul_u32_u24 v{vT0}, {ROWB}, v{vT0}
    v_add_u32 v{vDMA0}, v{vT0}, v{vT1}
""")
    if c.r1touch:
        srd(sW, 42, L_ * WLAYER)
        a(f"""
    s_cmp_ge_u32 s2, 208
    s_cbranch_scc1 L_nonloader
    s_cmp_lt_u32 s{sWV}, 4
    s_cbranch_scc0 L_r1done
    ; first touches: wave 0 -> line j of the 64 x0 rows, waves 1..3 -> the 192 prefix lines of W[0]
    s_cmp_eq_u32 s{sWV}, 0
    s_cbranch_scc0 L_r1w
    s_lshl_b32 s20, s{sRB}, 6
    s_mul_i32 s20, s20, {ROWB}
    s_lshl_b32 s21, s{sJ}, 7
    s_add_u32 s20, s20, s21
    v_mul_u32_u24 v20, {ROWB}, v{vL}
    buffer_load_dword v{vDUM}, v20, s[{sX0}:{sX0+3}], s20 offen
    s_branch L_r1done
L_r1w:
    s_sub_u32 s20, s{sWV}, 1
    s_lshl_b32 s20, s20, 6
    v_add_u32 v20, s20, v{vL}                 ; n = 0..191
    v_cmp_le_u32 vcc, {P * 16}, v20
    v_mov_b32 v21, {416 - P * 16}
    s_lshl_b32 s20, s{sROT}, 4
    v_cndmask_b32 v21, 0, v21, vcc
    v_add_u32 v20, v20, v21                   ; row = n + (n >= 96 ? 416 - 96 : 0)
    v_mul_u32_u24 v20, {ROWB}, v20
    s_mul_i32 s20, s20, {ROWB}
    s_lshl_b32 s21, s{sJ}, 7
    s_add_u32 s20, s20, s21
    buffer_load_dword v{vDUM}, v20, s[{sW}:{sW+3}], s20 offen
L_r1done:
    s_barrier                                 ; B_0
    s_cmp_lt_u32 s{sWV}, 4
    s_cbranch_scc1 L_nonloader
""")
    else:
        a(f"""
    s_cmp_ge_u32 s2, 208
    s_cbranch_scc1 L_nonloader
    s_cmp_lt_u32 s{sWV}, 4
    s_cbranch_scc1 L_nonloader
""")
    def bias_dma(sreg, val, lab):
        a(f"    s_cmp_eq_u32 s{sreg}, {val}")
        a(f"    s_cbranch_scc0 {lab}")
        srd(sBS, 44, L_ * ROWB)
        a(f"""    v_lshrrev_b32 v{vT0}, 5, v{vL}
    v_mul_u32_u24 v{vT0}, {ROWB}, v{vT0}
    v_and_b32 v{vT1}, 31, v{vL}
    v_lshlrev_b32 v{vT1}, 2, v{vT1}
    v_add_u32 v{vT0}, v{vT0}, v{vT1}
    s_lshl_b32 s{sT0}, s{sJ}, 7
    v_add_u32 v{vT0}, s{sT0}, v{vT0}""")
        for t in range(3):
            a(f"    s_mov_b32 m0, {BIAS + 256*t}")
            a(f"    s_mov_b32 s{sT1}, {2*t*ROWB}")
            a(f"    buffer_load_dword v{vT0}, s[{sBS}:{sBS+3}], s{sT1} offen lds")
        a(f"{lab}:")
    vS0, vS1 = vXO, vXO + 1
    sSB = 40
    sWP0 = 98
    SB = c.SB
    NSR = (2 if c.ssched == 'two' else 3) * SB
    def sbatch(k, nextlayer=False):
        if not c.sp: return
        b = sSB + 2 if nextlayer else sSB
        for n_ in range(SB):
            a(f"    s_load_dwordx2 s[{76+2*n_}:{77+2*n_}], s[{b}:{b+1}], {(k * SB + n_) * ROWB + 60}")
    def w0_prefix():
        common_srds()
        vdma()
        a(f"""
    s_mul_i32 s{sT0}, s{sKH}, 416
    s_lshl_b32 s{sT1}, s{sMH}, 2
    s_add_u32 s{sT1}, s{sT1}, s{sT0}
    s_mul_i32 s{sT1}, s{sT1}, {ROWB}
    v_add_u32 v{vDMA0}, s{sT1}, v{vDMA0}
    s_lshl_b32 s{sT1}, s{sMH}, 3
    s_add_u32 s{sT1}, s{sT1}, s{sT0}
    s_mul_i32 s{sT1}, s{sT1}, {ROWB}
    v_add_u32 v{vDMA}, s{sT1}, v{vDMA}
    ; ---- W prefix of layer 0
    s_mul_i32 s20, s{sROT}, 26624
    s_mul_i32 s21, s{sKH}, {P*2048}
    s_lshl_b32 s{sT1}, s{sMH}, 10
    s_add_u32 s21, s21, s{sT1}
""")
        for i in range(P):
            a(f"    s_add_u32 m0, s21, {PRE0 + i*2048}")
            a(f"    s_add_u32 s{sT0}, s20, {i*26624}")
            a(f"    buffer_load_dwordx4 v{vDMA0}, s[{sW}:{sW+3}], s{sT0} offen lds")
    if c.pre_first: w0_prefix()
    a(f"""
L_xs:
    s_lshl_b32 s{sT0}, s{sT3}, 12
    s_add_u32 s{sT0}, s{sT0}, s{sM}
    s_lshl_b32 s{sT1}, s{sT3}, 7
    s_add_u32 s{sT1}, s{sT1}, s{sG}
""")
    for rg in range(4):
        a(f"    s_add_u32 m0, s{sT0}, {rg*1024}")
        a(f"    s_add_u32 s{sT2}, s{sT1}, {rg*8*ROWB}")
        a(f"    buffer_load_dwordx4 v{vS0 if rg % 2 == 0 else vS1}, s[{sX0}:{sX0+3}], s{sT2} offen lds")
    a(f"""
    s_add_u32 s{sT3}, s{sT3}, 1
    s_cmp_eq_u32 s{sT3}, 7
    s_cselect_b32 s{sT3}, 0, s{sT3}
    s_add_u32 s{sI}, s{sI}, 1
    s_cmp_lt_u32 s{sI}, 7
    s_cbranch_scc1 L_xs
""")
    if not c.pre_first: w0_prefix()
    if c.w0assist:
        a(f"""
    s_cmp_eq_u32 s{sU}, 3
    s_cbranch_scc0 L_now0t
    v_lshrrev_b32 v21, 5, v{vL}               ; K half
    v_mul_u32_u24 v21, 416, v21
    v_and_b32 v22, 31, v{vL}
    v_add_u32 v21, v21, v22
    v_mul_u32_u24 v21, {ROWB}, v21
    s_lshl_b32 s20, s{sROT}, 4
    s_add_u32 s20, s20, {P * 16 + 28}
    s_mul_i32 s20, s20, {ROWB}
    s_lshl_b32 s21, s{sJ}, 7
    s_add_u32 s20, s20, s21
    buffer_load_dword v{vDUM}, v21, s[{sW}:{sW+3}], s20 offen
L_now0t:""")
    a(f"""
""")
    if c.xt_by in ("worker", "mixed", "front1"):
        a(f"""
    v_lshrrev_b32 v21, 5, v{vL}
    v_mul_u32_u24 v21, {XMH}, v21
    v_and_b32 v22, 31, v{vL}
    v_lshl_add_u32 v21, v22, 7, v21
    s_mul_i32 s22, s{sRB}, {XRB}
    s_lshl_b32 s23, s{sJ}, 12
    s_add_u32 s22, s22, s23                   ; buffer 0
    s_add_u32 s23, s22, {XBUF}                ; buffer 1""")
    if c.xt_by == "worker":
        a(f"""    s_cmp_eq_u32 s{sU}, 1
    s_cbranch_scc0 L_noxt1
    buffer_load_dword v{vDUM}, v21, s[{sWS}:{sWS+3}], s23 offen sc1
L_noxt1:""")
    if c.hello_by == "loader":
        a(f"""
    s_load_dwordx2 s[{sE}:{sE+1}], s[50:51], s{sCB}
    s_add_u32 s{sT0}, s{sCB}, 128
    s_add_u32 s46, s50, s{sT0}
    s_addc_u32 s47, s51, 0""")
    a(f"""
    s_mul_i32 s{sT2}, s{sKH}, {KHS}
    s_lshl_b32 s{sT1}, s{sMH}, 10
    s_add_u32 s{sT2}, s{sT2}, s{sT1}
    s_add_u32 s{sMP}, s{sT2}, {SUF}
    s_mul_i32 s70, s{sKH}, {P*2048}
    s_add_u32 s70, s70, s{sT1}
    s_add_u32 s70, s70, {PRE1}                ; prefix of layer 1 goes to parity 1
    s_mov_b32 s71, {PREPAR}
    s_mul_i32 s{sT0}, s{sKH}, 416
    s_lshl_b32 s{sT1}, s{sROT}, 4
    s_add_u32 s{sT0}, s{sT0}, s{sT1}
    s_mul_i32 s{sT1}, s{sMH}, {NSR}
    s_add_u32 s{sT0}, s{sT0}, s{sT1}
    s_add_u32 s{sT0}, s{sT0}, {c.SV * 16}
    s_mul_i32 s{sT0}, s{sT0}, {ROWB}
    s_lshl_b32 s{sT1}, s{sJ}, 7
    s_add_u32 s{sT0}, s{sT0}, s{sT1}
    s_add_u32 s{sT0}, s{sT0}, {c.wstride}
    s_mov_b32 s98, s42
    s_mov_b32 s99, s43
    s_add_u32 s40, s42, s{sT0}
    s_addc_u32 s41, s43, 0
    s_add_u32 s42, s40, {c.wstride}
    s_addc_u32 s43, s41, 0
""")
    def swarm(k):
        if not (c.swarm and c.sp): return
        lst = [(l, r) for l in range(2, 6) for r in range(3)]
        lst = lst[:7] if k == 0 else lst[7:]
        cur = None
        for n_, (l, r) in enumerate(lst):
            if cur != l:
                a(f"    s_add_u32 s46, s44, {l * c.wstride}")
                a(f"    s_addc_u32 s47, s45, 0")
                cur = l
            a(f"    s_load_dwordx2 s[{76+2*n_}:{77+2*n_}], s[46:47], {r*ROWB + 60}")
    if c.swarm and c.sp:
        per_range = 2 * NSR // 3
        a(f"""
    ; share of the S rows for the warm-up: q = rb*4 + u, range = q / {per_range}, rows 3*(q % {per_range}) ...
    s_lshl_b32 s{sT0}, s{sRB}, 2
    s_add_u32 s{sT0}, s{sT0}, s{sWV}
    s_sub_u32 s{sT0}, s{sT0}, 4
    s_min_u32 s{sT0}, s{sT0}, {4 * per_range - 1}
    s_mul_i32 s{sT1}, s{sT0}, {-(-65536 // per_range)}
    s_lshr_b32 s{sT1}, s{sT1}, 16             ; range
    s_mul_i32 s{sT2}, s{sT1}, {per_range}
    s_sub_u32 s{sT0}, s{sT0}, s{sT2}
    s_mul_i32 s{sT0}, s{sT0}, 3
    s_mul_i32 s{sT1}, s{sT1}, 208
    s_add_u32 s{sT0}, s{sT0}, s{sT1}
    s_add_u32 s{sT0}, s{sT0}, {c.SV * 16}
    s_mul_i32 s{sT0}, s{sT0}, {ROWB}
    s_lshl_b32 s{sT1}, s{sJ}, 7
    s_add_u32 s{sT0}, s{sT0}, s{sT1}
    s_add_u32 s44, s{sWP0}, s{sT0}
    s_addc_u32 s45, s{sWP0+1}, 0
""")
        swarm(0)
    if c.w0assist:
        a(f"""    s_cmp_eq_u32 s{sU}, 3
    s_cbranch_scc0 L_bxw
    s_waitcnt vmcnt({P + 1})
    s_branch L_bxw2
L_bxw:
    s_waitcnt vmcnt({P})
L_bxw2:""")
    elif c.xt_by == "worker":
        a(f"""    s_cmp_eq_u32 s{sU}, 1
    s_cbranch_scc0 L_bxw
    s_waitcnt vmcnt({P + 1})
    s_branch L_bxw2
L_bxw:
    s_waitcnt vmcnt({P})
L_bxw2:""")
    else:
        a(f"    s_waitcnt vmcnt({0 if c.pre_first else P})")
    stamp()
    a(f"""
    s_barrier                                 ; B_x
    s_barrier                                 ; B_y
""")
    if c.swarm and c.sp: a("    s_waitcnt lgkmcnt(0)")
    if c.hello_by != "loader" and c.ssched != "two": sbatch(0)
    def suffix(vreg, lay, thr=True, phased=False, bp=None):
        a(f"    s_mul_i32 s{sG}, s{sROT}, 26624")
        a(f"    s_add_u32 s{sG}, s{sG}, {lay}")
        a(f"    s_sub_u32 s{sM}, 13, s{sROT}")
        a(f"    s_mul_i32 s{sM}, s{sM}, 26624")
        a(f"    s_add_u32 s{sM}, s{sM}, {lay}")
        for n_, i in enumerate(range(P, 26)):
            if bp is not None and n_ == bp:
                a(f"    s_waitcnt vmcnt({bp})")
                a("    s_barrier                                 ; B_p: prefix of layer 0 has landed")
                if c.hello_by == "loader":
                    a(f"""    s_cmp_eq_u32 s{sWV}, 6
    s_cbranch_scc0 L_b0
    s_waitcnt lgkmcnt(0)
    s_load_dwordx16 s[76:91], s[46:47], 0 glc
    s_load_dwordx8 s[92:99], s[46:47], 64 glc
    s_load_dwordx2 s[20:21], s[46:47], 96 glc
    s_branch L_b0d
L_b0:""")
                    sbatch(0)
                    a("L_b0d:")
            if phased and n_ == c.n1: a("    s_barrier")
            if phased and n_ == c.n1 + c.n2: a("    s_barrier")
            a(f"    s_add_u32 m0, s{sMP}, {(i-P)*2048}")
            a(f"    s_add_u32 s{sI}, s{sG if i < 13 else sM}, {(i % 13) * 26624}")
            a(f"    buffer_load_dwordx4 v{vreg}, s[{sW}:{sW+3}], s{sI} offen {'nt ' if (c.nt_last and i >= 13) else ''}lds")
            if c.lthr and thr and (c.lthr_all or n_ >= c.n1 + c.n2):
                a(f"    s_waitcnt vmcnt({c.lthr - 1})")
    sPP, sPDL = 70, 71
    def prefix_next(lay_next):
        a(f"    s_mul_i32 s{sG}, s{sROT}, 26624")
        a(f"    s_add_u32 s{sG}, s{sG}, s{lay_next}")
        for t in range(P):
            a(f"    s_add_u32 m0, s{sPP}, {t*2048}")
            a(f"    s_add_u32 s{sI}, s{sG}, {t*26624}")
            a(f"    buffer_load_dwordx4 v{vDMA}, s[{sW}:{sW+3}], s{sI} offen lds")
            if c.lthr and c.lthr_all and t + 1 < P:
                a(f"    s_waitcnt vmcnt({c.lthr - 1})")
        a(f"    s_sub_u32 s{sPP}, s{sPP}, s{sPDL}")
        a(f"    s_sub_u32 s{sPDL}, 0, s{sPDL}")
    def advance_sb():
        a(f"""    s_add_u32 s40, s40, {c.wstride}
    s_addc_u32 s41, s41, 0
    s_add_u32 s42, s42, {c.wstride}
    s_addc_u32 s43, s43, 0""")
    suffix(vDMA0, "0", False, False, bp=13 - P)
    n = 26 - P
    if c.hello_by != "loader":
        if c.sp and c.ssched != "two": a("    s_waitcnt lgkmcnt(0)")
        sbatch(1)
    if c.hello_by == "compute" and not c.swarm:
        B0 = [P] + list(c.chunks0)
        for k_, b_ in enumerate(B0):
            nxt = B0[k_ + 1] if k_ + 1 < len(B0) else 26
            a(f"    s_waitcnt vmcnt({26 - nxt})")
            if k_ == 0 or k_ + 1 == len(B0): stamp()
            a(f"    s_barrier")
    else:
        a(f"    s_waitcnt vmcnt({n - (13 - P)})")
        stamp()
        a("    s_barrier                                 ; chunk [P,13)")
        if c.hello_by == "loader" and c.sp and c.l0b1:
            a(f"    s_cmp_eq_u32 s{sWV}, 6")
            a(f"    s_cbranch_scc1 L_nob1")
            a("    s_waitcnt lgkmcnt(0)"); sbatch(1)
            a("L_nob1:")
        if c.swarm and c.sp:
            a("    s_waitcnt lgkmcnt(0)"); swarm(1)
        a(f"    s_waitcnt vmcnt({26 - 20})")
        a("    s_barrier                                 ; chunk [13,20)")
        if c.hello_by == "loader":
            a(f"""    s_cmp_eq_u32 s{sWV}, 6
        s_cbranch_scc0 L_nohe
        s_add_u32 s{sT0}, s{sE}, 8
        s_addc_u32 s{sT1}, s{sE+1}, 0
        s_and_b32 s{sT2}, s{sT1}, 0x0fffffff
        s_lshl_b32 s22, s{sXCC}, 28
        s_xor_b32 s{sT1}, s{sT1}, s22
        s_mov_b32 s22, 1
        s_mov_b32 s23, 1
        s_waitcnt lgkmcnt(0)""")
            for m_ in range(13):
                lo = 76 + 2 * m_ if m_ < 12 else 20
                a(f"""    s_cmp_eq_u32 s{lo}, s{sT0}
        s_cselect_b32 s23, s23, 0
        s_cmp_eq_u32 s{lo+1}, s{sT1}
        s_cselect_b32 s22, s22, 0
        s_and_b32 s{lo+1}, s{lo+1}, 0x0fffffff
        s_cmp_eq_u32 s{lo+1}, s{sT2}
        s_cselect_b32 s23, s23, 0""")
            a(f"""    s_sub_u32 s22, 2, s22
        s_mul_i32 s22, s22, s23
        v_mov_b32 v25, s22
        v_mov_b32 v26, {MODEW}
        ds_write_b32 v26, v25
        s_waitcnt lgkmcnt(0)
    """)
            sbatch(0)
            a("L_nohe:")
        a("    s_waitcnt vmcnt(0)")
        stamp()
        a("    s_barrier                                 ; chunk [20,26)")
    if c.pre_by == "loader":
        a("    s_barrier                                 ; B_mid")
        a(f"    s_mov_b32 s{sT3}, {c.wstride}")
        if not c.no_pre: prefix_next(sT3)
        if c.xt_by in ("worker", "mixed", "front1"):
            a(f"""    s_cmp_eq_u32 s{sWV}, 5
    s_cbranch_scc0 L_noxt0
    buffer_load_dword v{vDUM}, v21, s[{sWS}:{sWS+3}], s22 offen sc1
L_noxt0:""")
    advance_sb()
    a(f"""
    s_barrier
    s_mov_b32 s{sL}, 1
    s_mov_b32 s{sT3}, {c.wstride}
L_ld_layer:
    s_cmp_lt_u32 s{sL}, 5
    s_cselect_b32 s{sU}, 1, 0
""")
    def guarded(fn, lab):
        if not c.sp: return
        a(f"    s_cmp_eq_u32 s{sU}, 1")
        a(f"    s_cbranch_scc0 {lab}")
        fn()
        a(f"{lab}:")
    if c.ssched != "two":
        guarded(lambda: sbatch(1), "L_sA")
    if not c.no_suf: suffix(vDMA, f"s{sT3}", True, c.phased)
    elif c.phased:
        a("    s_barrier"); a("    s_barrier")
    stamp()
    if c.ssched != "two":
        guarded(lambda: (a("    s_waitcnt lgkmcnt(0)"), sbatch(2)), "L_sB")
    if c.pre_by == "loader": a(f"    s_waitcnt vmcnt({26 - P})                 ; the prefix has landed")
    a("    s_barrier                                 ; B_a")
    if c.ssched == "two":
        guarded(lambda: sbatch(1), "L_sB")
    a("    s_waitcnt vmcnt(0)")
    stamp()
    a("    s_barrier")
    a(f"    s_cmp_lt_u32 s{sL}, 4")
    a(f"    s_cselect_b32 s{sU}, 1, 0")
    guarded(lambda: (a("    s_waitcnt lgkmcnt(0)"), sbatch(0, True)), "L_sC")
    if c.pre_by == "loader":
        a("    s_barrier                                 ; B_mid")
        stamp(3)
        a(f"    s_cmp_lt_u32 s{sL}, 5")
        a(f"    s_cbranch_scc0 L_nopre")
        a(f"    s_add_u32 s{sU}, s{sT3}, {c.wstride}")
        if not c.no_pre: prefix_next(sU)
        a("L_nopre:")
        stamp(3)
    advance_sb()
    a(f"""
    s_barrier                                 ; B2
    s_add_u32 s{sL}, s{sL}, 1
    s_add_u32 s{sT3}, s{sT3}, {c.wstride}
    s_cmp_lt_u32 s{sL}, 6
    s_cbranch_scc1 L_ld_layer
""")
    dump_ts()
    a("    s_endpgm")

    sBI = 84
    sBP = 48
    def bias_load():
        a(f"    s_load_dwordx16 s[{sBI}:{sBI+15}], s[{sBP}:{sBP+1}], 0")
        a(f"    s_add_u32 s{sBP}, s{sBP}, {ROWB}")
        a(f"    s_addc_u32 s{sBP+1}, s{sBP+1}, 0")
    def bias_spread():
        a("    s_mov_b32 exec_hi, 0")
        for q in range(4):
            for d in range(2):
                a(f"    v_mov_b32 v{vBP+2*q+d}, s{sBI+4*q+d}")
        a("    s_mov_b32 exec_lo, 0")
        a("    s_mov_b32 exec_hi, -1")
        for q in range(4):
            for d in range(2):
                a(f"    v_mov_b32 v{vBP+2*q+d}, s{sBI+4*q+2+d}")
        a("    s_mov_b64 exec, -1")
    def bias_unpack(lo=0, hi=8):
        for d in range(lo, hi):
            a(f"    v_lshlrev_b32 v{vAK+2*d}, 16, v{vBP+d}")
            a(f"    v_and_b32 v{vAK+2*d+1}, 0xffff0000, v{vBP+d}")
    a("L_nonloader:")
    common_srds()
    if c.helpers:
        a(f"""
    s_cmp_ge_u32 s2, 208
    s_cbranch_scc1 L_helper
""")
    if c.pre_by == "compute": vdma()
    a(f"""
L_compute:
    s_load_dwordx2 s[{sE}:{sE+1}], s[50:51], s{sCB}
    s_lshl_b32 s{sT0}, s{sJ}, 7
    s_lshl_b32 s{sT1}, s{sKH}, 6
    s_add_u32 s{sT0}, s{sT0}, s{sT1}
    s_add_u32 s{sBP_}, s44, s{sT0}
    s_addc_u32 s{sBP_+1}, s45, 0
    s_load_dwordx16 s[84:99], s[{sBP_}:{sBP_+1}], 0
    s_load_dword s20, s[{sBP_}:{sBP_+1}], {ROWB}
    s_load_dword s21, s[{sBP_}:{sBP_+1}], {2*ROWB}
    s_load_dword s22, s[{sBP_}:{sBP_+1}], {3*ROWB}
    s_load_dword s23, s[{sBP_}:{sBP_+1}], {4*ROWB}
    s_load_dword s24, s[{sBP_}:{sBP_+1}], {5*ROWB}
    s_add_u32 s{sBP_}, s{sBP_}, {ROWB}
    s_addc_u32 s{sBP_+1}, s{sBP_+1}, 0
    s_setprio {c.prio}
""")
    if c.xt_by in ("front", "front1"):
        a(f"""
    v_lshrrev_b32 v21, 5, v{vL}
    v_mul_u32_u24 v21, {XMH}, v21
    v_and_b32 v22, 31, v{vL}
    v_lshl_add_u32 v21, v22, 7, v21
    s_mul_i32 s22, s{sRB}, {XRB}
    s_lshl_b32 s23, s{sJ}, 12
    s_add_u32 s22, s22, s23                   ; buffer 0
    s_add_u32 s23, s22, {XBUF}                ; buffer 1
    s_cmp_eq_u32 s{sWV}, 3
    s_cbranch_scc0 L_noxf1
    buffer_load_dword v{vDUM}, v21, s[{sWS}:{sWS+3}], s23 offen sc1
L_noxf1:""")
        if c.xt_by == "front":
            a(f"""    s_cmp_eq_u32 s{sWV}, 2
    s_cbranch_scc0 L_noxf0
    buffer_load_dword v{vDUM}, v21, s[{sWS}:{sWS+3}], s22 offen sc1
L_noxf0:""")
    if c.wwarm:
        a(f"""
    s_sub_u32 s{sT0}, s{sWV}, 1
    s_cmp_lt_u32 s{sT0}, {c.wwarm}
    s_cbranch_scc0 L_noww
    s_mul_i32 s{sT0}, s{sRB}, 13
    s_add_u32 s{sT0}, s{sT0}, s{sJ}
    s_mul_i32 s{sT0}, s{sT0}, {52 * 128}
    s_mul_i32 s{sT1}, s{sWV}, {c.wstride}
    s_add_u32 s20, s{sT0}, s{sT1}
    v_min_u32 v20, 51, v{vL}
    v_lshlrev_b32 v20, 7, v20
    buffer_load_dword v{vDUM}, v20, s[{sW}:{sW+3}], s20 offen
L_noww:""")
    a(f"""
    v_min_u32 v{vT0}, 51, v{vL}
    v_lshlrev_b32 v{vT0}, 3, v{vT0}
    s_add_u32 s{sT0}, s{sCB}, 2048
    v_add_u32 v{vFA}, s{sT0}, v{vT0}
    s_cmp_eq_u32 s{sWV}, 0
    s_cbranch_scc0 L_noft
    buffer_load_dword v{vDUM}, v{vFA}, s[{sWS}:{sWS+3}], 0 offen sc1
L_noft:
    s_lshl_b32 s{sT1}, s{sJ}, 2
    s_add_u32 s{sT1}, s{sT1}, s{sWV}
    s_lshl_b32 s{sT1}, s{sT1}, 3
    s_add_u32 s{sOWNF}, s{sT0}, s{sT1}
    v_min_u32 v{vT0}, 12, v{vL}
    v_lshlrev_b32 v{vT0}, 3, v{vT0}
    s_add_u32 s{sT0}, s{sCB}, 128
    v_add_u32 v{vHA}, s{sT0}, v{vT0}
""")
    srd(sOUT, 46, XLAYER)
    a(f"""
    ; ---- output address (final stores): row*1664 + j*128 + nh*64 + h*16
    s_lshl_b32 s{sT0}, s{sRB}, 6
    s_lshl_b32 s{sT1}, s{sMH}, 5
    s_add_u32 s{sT0}, s{sT0}, s{sT1}
    s_mul_i32 s{sT0}, s{sT0}, {ROWB}
    s_lshl_b32 s{sT1}, s{sJ}, 7
    s_add_u32 s{sT0}, s{sT0}, s{sT1}
    s_lshl_b32 s{sT1}, s{sKH}, 6
    s_add_u32 s{sT0}, s{sT0}, s{sT1}
    v_and_b32 v{vT0}, 31, v{vL}
    v_mul_u32_u24 v{vT0}, {ROWB}, v{vT0}
    v_lshrrev_b32 v{vT1}, 5, v{vL}
    v_lshl_add_u32 v{vT0}, v{vT1}, 4, v{vT0}
    v_add_u32 v{vOUT}, s{sT0}, v{vT0}
    v_lshlrev_b32 v{vXO}, 4, v{vL}
    v_add_u32 v{vXO+1}, 0x1000, v{vXO}
    v_add_u32 v{vXO+2}, 0x2000, v{vXO}
    v_add_u32 v{vXO+3}, 0x3000, v{vXO}
    s_mul_i32 s{sT0}, s{sRB}, {XRB}
    s_mul_i32 s{sT1}, s{sMH}, {XMH}
    s_add_u32 s{sT0}, s{sT0}, s{sT1}
    s_add_u32 s{sT0}, s{sT0}, {XBUF}
    s_lshl_b32 s{sT1}, s{sJ}, 2
    s_lshl_b32 s{sT2}, s{sKH}, 1
    s_add_u32 s{sT1}, s{sT1}, s{sT2}
    s_lshl_b32 s{sT1}, s{sT1}, 10
    s_add_u32 s{sXST}, s{sT0}, s{sT1}
""")
    if not c.helpers:
        a(f"""
    v_and_b32 v{vT1}, 15, v{vL}
    v_lshlrev_b32 v{vT1}, 7, v{vT1}
    v_bfe_u32 v{vT2}, v{vL}, 4, 1
    v_mul_u32_u24 v{vT2}, {XBUF >> 8}, v{vT2}
    v_lshl_add_u32 v{vT1}, v{vT2}, 8, v{vT1}
    s_sub_u32 s{sT3}, s{sXST}, {XBUF}
    buffer_load_dword v{vDUM}, v{vT1}, s[{sWS}:{sWS+3}], s{sT3} offen sc1
""")
    a(f"""
    s_mul_i32 s{sT1}, s{sKH}, 26
    s_add_u32 s{sT2}, s{sT1}, s{sROT}
    s_lshl_b32 s{sT2}, s{sT2}, 10
    s_add_u32 s{sXA}, s{sT0}, s{sT2}
    s_add_u32 s{sT2}, s{sT1}, 13
    s_sub_u32 s{sT2}, s{sT2}, s{sROT}
    s_lshl_b32 s{sT2}, s{sT2}, 10
    s_add_u32 s{sXB}, s{sT0}, s{sT2}
    s_mov_b32 s{sXD}, {-XBUF & 0xffffffff}
    s_mov_b32 s{sXD2}, {-XBUF & 0xffffffff}
    ; ---- W prefix bookkeeping for layer 1 (loaded at the end of layer 0)
    s_mul_i32 s{sT0}, s{sKH}, 416
    s_lshl_b32 s{sT1}, s{sROT}, 4
    s_add_u32 s{sT0}, s{sT0}, s{sT1}
    s_lshl_b32 s{sT1}, s{sMH}, 3
    s_add_u32 s{sT0}, s{sT0}, s{sT1}
    s_mul_i32 s{sWP}, s{sT0}, {ROWB}
    s_add_u32 s{sWP}, s{sWP}, {c.wstride}
    s_mul_i32 s{sMP}, s{sKH}, {P*2048}
    s_lshl_b32 s{sT1}, s{sMH}, 10
    s_add_u32 s{sMP}, s{sMP}, s{sT1}
    s_add_u32 s{sMP}, s{sMP}, {PRE1}
    s_mov_b32 s{sPD}, {PREPAR}
    v_lshrrev_b32 v{vT0}, 5, v{vL}            ; h
    v_lshlrev_b32 v{vT0}, 2, v{vT0}
    v_bfe_u32 v{vT1}, v{vL}, 2, 2             ; r
    v_add_u32 v{vT0}, v{vT0}, v{vT1}
    v_lshlrev_b32 v{vT0}, 7, v{vT0}           ; row*128
    v_bfe_u32 v{vT1}, v{vL}, 4, 1             ; nb
    v_lshlrev_b32 v{vT1}, 1, v{vT1}
    v_bfe_u32 v{vT2}, v{vL}, 1, 1             ; c>>1
    v_add_u32 v{vT1}, v{vT1}, v{vT2}
    v_bfe_u32 v{vT2}, v{vL}, 3, 1             ; (r>>1)&1
    v_lshlrev_b32 v{vT2}, 2, v{vT2}
    v_xor_b32 v{vT1}, v{vT1}, v{vT2}
    v_lshlrev_b32 v{vT1}, 4, v{vT1}
    v_add_u32 v{vT0}, v{vT0}, v{vT1}
    v_and_b32 v{vT1}, 1, v{vL}
    v_lshlrev_b32 v{vT1}, 3, v{vT1}
    v_add_u32 v{vT0}, v{vT0}, v{vT1}
    s_lshl_b32 s{sT0}, s{sKH}, 6
    v_xor_b32 v{vT1}, s{sT0}, v{vT0}          ; keep
    v_xor_b32 v{vT2}, 64, v{vT1}              ; send
    s_mul_i32 s{sT0}, s{sKH}, {P*2048}
    v_add_u32 v{vAPK}, s{sT0}, v{vT1}
    v_add_u32 v{vAPS}, s{sT0}, v{vT2}
    s_mul_i32 s{sT0}, s{sKH}, {KHS}
    s_add_u32 s{sT0}, s{sT0}, {SUF}
    v_add_u32 v{vASK}, s{sT0}, v{vT1}
    v_add_u32 v{vASS}, s{sT0}, v{vT2}
    s_lshl_b32 s{sT0}, s{sWV}, 12
    s_add_u32 s{sT0}, s{sT0}, {RED}
    v_add_u32 v{vRW}, s{sT0}, v{vXO}
    s_xor_b32 s{sT1}, s{sWV}, 2
    s_lshl_b32 s{sT1}, s{sT1}, 12
    s_add_u32 s{sT1}, s{sT1}, {RED}
    v_add_u32 v{vRR}, s{sT1}, v{vXO}
    v_lshrrev_b32 v{vT0}, 5, v{vL}
    v_lshlrev_b32 v{vT3}, 3, v{vT0}           ; h*8
    v_and_b32 v{vT0}, 31, v{vL}               ; m
    v_lshrrev_b32 v{vT1}, 3, v{vT0}
    v_lshlrev_b32 v{vT1}, 10, v{vT1}          ; rg*1024
    v_and_b32 v{vT2}, 7, v{vT0}
    v_lshl_add_u32 v{vT1}, v{vT2}, 7, v{vT1}  ; + row8*128
    v_bfe_u32 v{vT2}, v{vT0}, 1, 3            ; f(m)
    s_cmp_ge_u32 s{sJ}, 7
    s_cselect_b32 s{sT0}, 1, 0
    s_mul_i32 s{sT1}, s{sT0}, 6
    s_sub_u32 s{sT1}, s{sJ}, s{sT1}
    s_lshl_b32 s{sT1}, s{sT1}, 12
    s_lshl_b32 s{sT0}, s{sT0}, 1
    s_add_u32 s{sT0}, s{sT0}, s{sMH}
    s_mul_i32 s{sT0}, s{sT0}, 28672
    s_add_u32 s{sT0}, s{sT0}, s{sT1}
    s_add_u32 s{sT0}, s{sT0}, {XS}
    s_lshl_b32 s{sT1}, s{sKH}, 2
    v_add3_u32 v{vT3}, v{vT3}, v{vT1}, s{sT0}
    v_xor_b32 v{vT0}, s{sT1}, v{vT2}          ; (4*nh) ^ f(m)
""")
    for q in range(4):
        a(f"    v_xor_b32 v{vPART+8+q}, {q}, v{vT0}")
        a(f"    v_lshl_add_u32 v{vPART+8+q}, v{vPART+8+q}, 4, v{vT3}")
    a(f"""
    v_lshrrev_b32 v{vT0}, 5, v{vL}
    v_xor_b32 v{vT2}, v{vT2}, v{vT0}          ; f(m) ^ h
    s_mul_i32 s{sT3}, s{sWV}, 28672
    s_add_u32 s{sT3}, s{sT3}, {XS}
    s_mul_i32 s{sI}, s{sKH}, 26
    s_mul_i32 s{sM}, s{sKH}, 6
""")
    for seg in range(2):
        if seg == 0:
            a(f"    s_add_u32 s{sG}, s{sI}, s{sROT}")
        else:
            a(f"    s_add_u32 s{sG}, s{sI}, 13")
            a(f"    s_sub_u32 s{sG}, s{sG}, s{sROT}")
        for x in range(4):
            r = vPART + seg * 4 + x
            a(f"    s_add_u32 s{sT0}, s{sG}, {x}")
            a(f"    s_and_b32 s{sT1}, s{sT0}, 3")
            a(f"    s_lshl_b32 s{sT1}, s{sT1}, 1")
            a(f"    s_lshr_b32 s{sT0}, s{sT0}, 2")
            a(f"    s_sub_u32 s{sT0}, s{sT0}, s{sM}")
            a(f"    s_lshl_b32 s{sT0}, s{sT0}, 12")
            a(f"    s_add_u32 s{sT0}, s{sT0}, s{sT3}")
            a(f"    v_xor_b32 v{r}, s{sT1}, v{vT2}")
            a(f"    v_lshl_add_u32 v{r}, v{r}, 4, v{vT1}")
            a(f"    v_add_u32 v{r}, s{sT0}, v{r}")
    a(f"""
    s_waitcnt lgkmcnt(0)
    s_add_u32 s{sTA}, s{sE}, 1
    s_addc_u32 s{sTA+1}, s{sE+1}, 0
    s_add_u32 s{sTB}, s{sE}, 2
    s_addc_u32 s{sTB+1}, s{sE+1}, 0
    s_cmp_eq_u32 s{sWV}, 0
    s_cbranch_scc0 L_nohello
    s_add_u32 s{sT0}, s{sE}, 8
    s_addc_u32 s{sT1}, s{sE+1}, 0
    s_lshl_b32 s{sT2}, s{sXCC}, 28
    s_xor_b32 s{sT1}, s{sT1}, s{sT2}
    v_mov_b32 v{vPOLL}, s{sT0}
    v_mov_b32 v{vPOLL+1}, s{sT1}
    s_lshl_b32 s{sT2}, s{sJ}, 3
    s_add_u32 s{sT2}, s{sT2}, s{sCB}
    s_add_u32 s{sT2}, s{sT2}, 128
    s_mov_b64 exec, 1
    buffer_store_dwordx2 v[{vPOLL}:{vPOLL+1}], off, s[{sWS}:{sWS+3}], s{sT2} sc1
    s_mov_b64 exec, -1
L_nohello:
""")
    if c.w0assist or c.w0scal:
        a(f"""
    s_mul_i32 s{sT0}, s{sKH}, 416
    s_lshl_b32 s{sT1}, s{sROT}, 4
    s_add_u32 s{sT0}, s{sT0}, s{sT1}
    s_mul_i32 s{sT1}, s{sMH}, 14
    s_add_u32 s{sT0}, s{sT0}, s{sT1}
    s_add_u32 s{sT0}, s{sT0}, {P * 16}
    s_mul_i32 s{sT0}, s{sT0}, {ROWB}
    s_lshl_b32 s{sT1}, s{sJ}, 7
    s_add_u32 s{sT0}, s{sT0}, s{sT1}
    s_add_u32 s44, s42, s{sT0}
    s_addc_u32 s45, s43, 0
""")
        for n_ in range(14):
            if n_ == 7: a("    s_waitcnt lgkmcnt(0)")
            a(f"    s_load_dwordx2 s[{20+2*(n_%2)}:{21+2*(n_%2)}], s[44:45], {n_*ROWB + 60}")
    elif c.vwarm:
        nrows = c.SV * 16
        per_rb = nrows // 4
        a(f"""
    s_lshr_b32 s{sT0}, s{sRB}, 2
    s_mul_i32 s{sT0}, s{sT0}, 208             ; range start row: 0, 208, 416, 624
    s_and_b32 s{sT1}, s{sRB}, 3
    s_mul_i32 s{sT1}, s{sT1}, {per_rb}
    s_add_u32 s{sT0}, s{sT0}, s{sT1}
    s_mul_i32 s{sT1}, s{sWV}, {per_rb // 4}
    s_add_u32 s{sT0}, s{sT0}, s{sT1}
    s_mul_i32 s{sT0}, s{sT0}, {ROWB}
    s_lshl_b32 s{sT1}, s{sJ}, 7
    s_add_u32 s{sT0}, s{sT0}, s{sT1}
    s_add_u32 s{sT0}, s{sT0}, {c.wstride}
    s_add_u32 s44, s42, s{sT0}
    s_addc_u32 s45, s43, 0
""")
        nper = per_rb // 4
        vw = [(l, r) for l in range(1, 6) for r in range(nper)][:14]
        def vwarm_batch(k):
            cur = None
            for n_, (l, r) in enumerate(vw[7*k:7*k+7]):
                if cur != l:
                    a(f"    s_add_u32 s46, s44, {(l-1) * c.wstride}")
                    a(f"    s_addc_u32 s47, s45, 0")
                    cur = l
                a(f"    s_load_dwordx2 s[{20+2*(n_%2)}:{21+2*(n_%2)}], s[46:47], {r*ROWB + 60}")
        vwarm_batch(0)
        if c.vw2 == 'wait':
            a("    s_waitcnt lgkmcnt(0)")
            vwarm_batch(1)
    stamp()
    a("    s_barrier                                 ; B_x: staged x0, prefix(0) and biases have landed")
    if c.amp and c.amp[0] == "bx":
        a("    s_memtime s[26:27]\n    s_waitcnt lgkmcnt(0)\n    s_sub_u32 s25, s26, s100")
    stamp()
    for q in range(4):
        a(f"    ds_read_b64 v[{vP+2*q}:{vP+2*q+1}], v{vPART+8+q}")
    for i in range(26):
        seg, ii = (0, i) if i < 13 else (1, i - 13)
        a(f"    ds_read_b128 v[{vXF+4*i}:{vXF+4*i+3}], v{vPART + seg*4 + (ii & 3)} offset:{(ii >> 2) * 4096}")
        if i in (9, 17):
            a("    s_waitcnt lgkmcnt(6)")
    a("    s_waitcnt lgkmcnt(0)")
    a("    s_barrier")
    if c.vwarm and not c.w0assist and not c.w0scal and c.vw2 == 'after_by': vwarm_batch(1)
    stamp()
    for d in range(8):
        a(f"    v_lshlrev_b32 v{vX0F+2*d}, 16, v{vP+d}")
        a(f"    v_and_b32 v{vX0F+2*d+1}, 0xffff0000, v{vP+d}")
    bias_spread()
    bias_unpack()
    for r in range(16):
        a(f"    v_mov_b32 v{vXR+r}, v{vX0F+r}")
    a(f"    s_mov_b32 s{sL}, 0")
    a("    s_barrier                                 ; B_p: prefix of layer 0 has landed")
    if c.amp and c.amp[0] == "bp":
        a("    s_memtime s[26:27]\n    s_waitcnt lgkmcnt(0)\n    s_sub_u32 s25, s26, s100")
    stamp()

    def xload(i):
        if c.no_x:
            a("    s_nop 0"); return
        seg = sXA if i < 13 else sXB
        ii = i % 13
        a(f"    buffer_load_dwordx4 v[{vXF+4*i}:{vXF+4*i+3}], v{vXO+(ii>>2)}, s[{sWS}:{sWS+3}], s{seg} offen offset:{(ii&3)*1024} sc1")
    def rd(i, which):
        if c.no_w: return
        st = vWF + 8 * (i % nsets)
        if i < P: k, s_, off = vAPK, vAPS, i * 2048
        else: k, s_, off = vASK, vASS, (i - P) * 2048
        if which == "s":
            a(f"    ds_read_b64_tr_b16 v[{st}:{st+1}], v{s_} offset:{off}")
            a(f"    ds_read_b64_tr_b16 v[{st+2}:{st+3}], v{s_} offset:{off+1024}")
        else:
            a(f"    ds_read_b64_tr_b16 v[{st+4}:{st+5}], v{k} offset:{off}")
            a(f"    ds_read_b64_tr_b16 v[{st+6}:{st+7}], v{k} offset:{off+1024}")
    def pref_sched(i):
        if c.presched == "spread":
            t = i - (26 - P)
            return [t] if 0 <= t < P else []
        k = i - (26 - D)
        if k < 0: return []
        per_ = -(-P // D)
        return [t for t in range(k * per_, min(P, (k + 1) * per_))]
    def kloop(first):
        ops = []
        if first:
            for i in range(PF):
                rd(i, "s"); rd(i, "k")
        else:
            xload(0); ops.append(("x", 0))
            rd(0, "s"); rd(0, "k")
            xload(1); ops.append(("x", 1))
            rd(1, "s"); rd(1, "k")
            nrest = D - 2
            cuts = [8 * k // nrest for k in range(nrest + 1)]
            for k in range(nrest):
                bias_unpack(cuts[k], cuts[k + 1])
                xload(2 + k); ops.append(("x", 2 + k))
        bars = (([P] + list(c.chunks0)) if (c.hello_by == 'compute' and not c.swarm) else [P, 13, 20]) if first else [P]
        assert P < 13
        marks = [0, 1, 2, 4, 8, 12, 16, 20, 25]
        for i in range(26):
            a(f"    ; ---- step {i}")
            if TS == 4 and not first and i in marks:
                a(f"    s_memtime s[{80 + 2*marks.index(i)}:{81 + 2*marks.index(i)}]")
            young = sum(4 for t in range(i + 1, min(i + PF - 1, 25) + 1))
            if first:
                a(f"    s_waitcnt lgkmcnt({young})")
            else:
                nv = len(ops) - 1 - ops.index(("x", i))
                a(f"    s_waitcnt vmcnt({nv}) lgkmcnt({young})")
            st = vWF + 8 * (i % nsets)
            xf = vXF + 4 * i
            cs = "0" if i == 0 else f"v[{vAS}:{vAS+15}]"
            if c.fake16:
                q_ = (i % 2) * 8
                a(f"    v_mfma_f32_16x16x32_bf16 v[{vAS+q_}:{vAS+q_+3}], v[{st}:{st+3}], v[{xf}:{xf+3}], v[{vAS+q_}:{vAS+q_+3}]")
                a(f"    v_mfma_f32_16x16x32_bf16 v[{vAS+q_+4}:{vAS+q_+7}], v[{st}:{st+3}], v[{xf}:{xf+3}], v[{vAS+q_+4}:{vAS+q_+7}]")
            else:
                a(f"    v_mfma_f32_32x32x16_bf16 v[{vAS}:{vAS+15}], v[{st}:{st+3}], v[{xf}:{xf+3}], {cs}" if not c.no_mfma else "    s_nop 7")
            if not first and i == 1:
                a(f"""    s_add_u32 s{sTA}, s{sTA}, 1
    s_addc_u32 s{sTA+1}, s{sTA+1}, 0""")
            if not first and i == 2:
                a(f"""    s_add_u32 s{sTB}, s{sTB}, 1
    s_addc_u32 s{sTB+1}, s{sTB+1}, 0""")
            if i + PF in bars:
                a("    s_barrier")
            if first and i == c.hello_step and c.hello_by != 'loader':
                a(f"    buffer_load_dwordx2 v[{vPOLL}:{vPOLL+1}], v{vHA}, s[{sWS}:{sWS+3}], 0 offen sc1")
            if not first and i + D < 26:
                xload(i + D); ops.append(("x", i + D))
            if c.pre_by == "loader":
                if i == c.mid_step: a("    s_barrier                                 ; B_mid: the x loads are all issued")
                if i == c.prog_step and c.prog_at == "mid":
                    lab = "L_noprogA" if first else "L_noprogB"
                    a(f"""    s_or_b32 s{sT0}, s{sJ}, s{sWV}
    s_cmp_eq_u32 s{sT0}, 0
    s_cbranch_scc0 {lab}
    v_mov_b32 v{vPOL2}, s{sTA}
    v_mov_b32 v{vPOL2+1}, s{sTA+1}
    s_add_u32 s{sT0}, s{sCB}, 3072
    buffer_store_dwordx2 v[{vPOL2}:{vPOL2+1}], off, s[{sWS}:{sWS+3}], s{sT0}
{lab}:""")
            else:
                for t in ([] if c.no_pre else pref_sched(i)):
                    a(f"    s_add_u32 m0, s{sMP}, {t*2048}")
                    a(f"    s_add_u32 s{sT0}, s{sWP}, {t*26624}")
                    a(f"    buffer_load_dwordx4 v{vDMA}, s[{sW}:{sW+3}], s{sT0} offen lds")
                    ops.append(("w", t))
            if i + PF < 26: rd(i + PF, "s")
            if c.fake16:
                q_ = (i % 2) * 8
                a(f"    v_mfma_f32_16x16x32_bf16 v[{vAK+q_}:{vAK+q_+3}], v[{st+4}:{st+7}], v[{xf}:{xf+3}], v[{vAK+q_}:{vAK+q_+3}]")
                a(f"    v_mfma_f32_16x16x32_bf16 v[{vAK+q_+4}:{vAK+q_+7}], v[{st+4}:{st+7}], v[{xf}:{xf+3}], v[{vAK+q_+4}:{vAK+q_+7}]")
            else:
                a(f"    v_mfma_f32_32x32x16_bf16 v[{vAK}:{vAK+15}], v[{st+4}:{st+7}], v[{xf}:{xf+3}], v[{vAK}:{vAK+15}]" if not c.no_mfma else "    s_nop 7")
            if i + PF < 26: rd(i + PF, "k")
        return len([o for o in ops if o[0] == "w"])
    npre = kloop(True)
    if c.hello_by == "loader":
        a(f"""    v_mov_b32 v{vT0}, {MODEW}
    ds_read_b32 v{vT1}, v{vT0}
    s_waitcnt lgkmcnt(0)
    v_readfirstlane_b32 s{sMODE}, v{vT1}""")
        a(f"""
    s_cmp_eq_u32 s{sMODE}, 0
    s_cbranch_scc1 L_hello_slow
    s_and_b32 s{sMODE}, s{sMODE}, {0 if c.force_slow else 1}
    s_branch L_tail
L_hello_slow:
    buffer_load_dwordx2 v[{vPOLL}:{vPOLL+1}], v{vHA}, s[{sWS}:{sWS+3}], 0 offen sc1""")
    a(f"""
    s_add_u32 s{sT0}, s{sE}, 8
    s_addc_u32 s{sT1}, s{sE+1}, 0
    s_mov_b32 s{sSPIN}, 0
    s_waitcnt vmcnt({0 if c.hello_by == "loader" else npre})
    s_and_b32 s{sT2}, s{sT1}, 0x0fffffff
    s_lshl_b32 s{sT3}, s{sXCC}, 28
    s_xor_b32 s{sT3}, s{sT1}, s{sT3}
L_hello:
    v_and_b32 v{vT0}, 0x0fffffff, v{vPOLL+1}
    v_cmp_eq_u32 vcc, s{sT0}, v{vPOLL}
    v_cmp_eq_u32 s[{sMK}:{sMK+1}], s{sT2}, v{vT0}
    s_and_b64 vcc, vcc, s[{sMK}:{sMK+1}]
    s_cmp_eq_u64 vcc, -1
    s_cbranch_scc1 L_hello_ok
    s_add_u32 s{sSPIN}, s{sSPIN}, 1
    s_cmp_gt_u32 s{sSPIN}, {c.spin_max}
    s_cbranch_scc1 L_end
    buffer_load_dwordx2 v[{vPOLL}:{vPOLL+1}], v{vHA}, s[{sWS}:{sWS+3}], 0 offen sc1
    s_waitcnt vmcnt(0)
    s_branch L_hello
L_hello_ok:
    v_cmp_eq_u32 vcc, s{sT3}, v{vPOLL+1}
    s_cmp_eq_u64 vcc, -1
    s_cselect_b32 s{sMODE}, {0 if c.force_slow else 1}, 0
    s_branch L_tail
""")
    assert sT1 == sT0 + 1 and sT0 % 2 == 0
    a("L_layer2:")
    stamp()
    kloop(False)
    if TS == 4:
        a("    s_memtime s[98:99]")
        a("    s_waitcnt lgkmcnt(0)")
        for k in range(10):
            a(f"    s_mov_b32 m0, s{sTSI}")
            a(f"    s_nop 0")
            a(f"    v_writelane_b32 v{vTS}, s{80+2*k}, m0")
            a(f"    s_add_u32 s{sTSI}, s{sTSI}, 1")
    a("L_tail:")
    if c.amp and c.amp[0] == "l0k":
        a(f"""    s_cmp_eq_u32 s{sL}, 0
    s_cbranch_scc0 L_amp2
    s_memtime s[26:27]
    s_waitcnt lgkmcnt(0)
    s_sub_u32 s25, s26, s100
L_amp2:""")
    if TS in (2, 3):
        a("    s_nop 15")
        stamp()
    a(f"    v_mov_b32 v{vFV}, s{sTA}")
    a(f"    v_mov_b32 v{vFV+1}, s{sTA+1}")
    a("    s_nop 8")
    for q in range(4):
        a(f"    ds_write_b128 v{vRW}, v[{vAS+4*q}:{vAS+4*q+3}] offset:{q*1024}")
    if c.epi2:
        a("    s_nop 0")
        for r in range(0, 16, 2):
            a(f"    v_pk_fma_f32 v[{vAK+r}:{vAK+r+1}], v[{vX0F+r}:{vX0F+r+1}], v[{vAK+r}:{vAK+r+1}], v[{vXR+r}:{vXR+r+1}]")
    a("    s_waitcnt lgkmcnt(0)")
    a("    s_barrier                                 ; B2")
    stamp(3)
    for q in range(4):
        a(f"    ds_read_b128 v[{vPART+4*q}:{vPART+4*q+3}], v{vRR} offset:{q*1024}")
    def epi(q):
        a(f"    s_waitcnt lgkmcnt({3-q})")
        if c.epi2:
            for p in range(2):
                r = 4 * q + 2 * p
                a(f"    v_pk_fma_f32 v[{vAK+r}:{vAK+r+1}], v[{vX0F+r}:{vX0F+r+1}], v[{vPART+r}:{vPART+r+1}], v[{vAK+r}:{vAK+r+1}]")
        else:
            for p in range(2):
                r = 4 * q + 2 * p
                a(f"    v_pk_add_f32 v[{vAK+r}:{vAK+r+1}], v[{vAK+r}:{vAK+r+1}], v[{vPART+r}:{vPART+r+1}]")
            for p in range(2):
                r = 4 * q + 2 * p
                a(f"    v_pk_fma_f32 v[{vAK+r}:{vAK+r+1}], v[{vX0F+r}:{vX0F+r+1}], v[{vAK+r}:{vAK+r+1}], v[{vXR+r}:{vXR+r+1}]")
        for p in range(2):
            r = 4 * q + 2 * p
            a(f"    v_cvt_pk_bf16_f32 v{vP+2*q+p}, v{vAK+r}, v{vAK+r+1}")
    a(f"""
    s_cmp_eq_u32 s{sL}, 5
    s_cbranch_scc1 L_final
    s_cmp_eq_u32 s{sMODE}, 0
    s_cbranch_scc1 L_st_slow
""")
    epi(0); epi(1)
    a(f"    buffer_store_dwordx4 v[{vP}:{vP+3}], v{vXO}, s[{sWS}:{sWS+3}], s{sXST} offen")
    epi(2); epi(3)
    a(f"    buffer_store_dwordx4 v[{vP+4}:{vP+7}], v{vXO}, s[{sWS}:{sWS+3}], s{sXST} offen offset:1024")
    if c.phased: a("    s_barrier                                 ; B_s")
    stamp(3)
    def unpack_res():
        for d in range(8):
            a(f"    v_lshlrev_b32 v{vXR+2*d}, 16, v{vP+d}")
            a(f"    v_and_b32 v{vXR+2*d+1}, 0xffff0000, v{vP+d}")
    bias_load()
    unpack_res()
    a(f"""
    s_waitcnt vmcnt(0)
    buffer_store_dwordx2 v[{vFV}:{vFV+1}], off, s[{sWS}:{sWS+3}], s{sOWNF}
    s_branch L_st_done
L_st_slow:
""")
    epi(0); epi(1); epi(2); epi(3)
    a(f"""
    buffer_store_dwordx4 v[{vP}:{vP+3}], v{vXO}, s[{sWS}:{sWS+3}], s{sXST} offen sc1
    buffer_store_dwordx4 v[{vP+4}:{vP+7}], v{vXO}, s[{sWS}:{sWS+3}], s{sXST} offen offset:1024 sc1
""")
    if c.phased: a("    s_barrier                                 ; B_s")
    stamp(3)
    bias_load()
    unpack_res()
    a(f"""
    s_waitcnt vmcnt(0)
    buffer_store_dwordx2 v[{vFV}:{vFV+1}], off, s[{sWS}:{sWS+3}], s{sOWNF} sc1
L_st_done:
""")
    stamp()
    if c.onepoll:
        a(f"""
    s_cmp_eq_u32 s{sWV}, 0
    s_cbranch_scc0 L_nopoll1""")
    a(f"""
    buffer_load_dwordx2 v[{vPOLL}:{vPOLL+1}], v{vFA}, s[{sWS}:{sWS+3}], 0 offen sc1
L_nopoll1:
    {"s_barrier                                 ; B_f" if c.phased else ""}
""")
    def progress(lab):
        a(f"""    s_or_b32 s{sT0}, s{sJ}, s{sWV}
    s_cmp_eq_u32 s{sT0}, 0
    s_cbranch_scc0 {lab}
    s_add_u32 s{sT0}, s{sCB}, 3072
    buffer_store_dwordx2 v[{vFV}:{vFV+1}], off, s[{sWS}:{sWS+3}], s{sT0}
{lab}:""")
    if c.prog_at == "end": progress("L_noprog")
    a(f"""
    s_add_u32 s{sL}, s{sL}, 1
    s_cmp_eq_u32 s{sL}, 1
    s_cbranch_scc1 L_keep_xa
    s_add_u32 s{sXA}, s{sXA}, s{sXD}
    s_add_u32 s{sXB}, s{sXB}, s{sXD}
    s_sub_u32 s{sXD}, 0, s{sXD}
L_keep_xa:
    s_add_u32 s{sXST}, s{sXST}, s{sXD2}
    s_sub_u32 s{sXD2}, 0, s{sXD2}
    s_add_u32 s{sWP}, s{sWP}, {c.wstride}
    s_sub_u32 s{sMP}, s{sMP}, s{sPD}
    v_add_u32 v{vAPK}, s{sPD}, v{vAPK}
    v_add_u32 v{vAPS}, s{sPD}, v{vAPS}
    s_sub_u32 s{sPD}, 0, s{sPD}
    s_mov_b32 s{sSPIN}, 0
""")
    a("    s_waitcnt lgkmcnt(0)")
    bias_spread()
    if c.onepoll:
        a(f"""
    s_cmp_eq_u32 s{sWV}, 0
    s_cbranch_scc0 L_ready""")
    if c.poll2:
        a(f"""L_poll:
    buffer_load_dwordx2 v[{vPOL2}:{vPOL2+1}], v{vFA}, s[{sWS}:{sWS+3}], 0 offen sc1
    s_waitcnt vmcnt(1)
    v_cmp_eq_u64 vcc, s[{sTA}:{sTA+1}], v[{vPOLL}:{vPOLL+1}]
    v_cmp_eq_u64 s[{sMK}:{sMK+1}], s[{sTB}:{sTB+1}], v[{vPOLL}:{vPOLL+1}]
    s_or_b64 vcc, vcc, s[{sMK}:{sMK+1}]
    s_cmp_eq_u64 vcc, -1
    s_cbranch_scc1 L_ready
    buffer_load_dwordx2 v[{vPOLL}:{vPOLL+1}], v{vFA}, s[{sWS}:{sWS+3}], 0 offen sc1
    s_waitcnt vmcnt(1)
    v_cmp_eq_u64 vcc, s[{sTA}:{sTA+1}], v[{vPOL2}:{vPOL2+1}]
    v_cmp_eq_u64 s[{sMK}:{sMK+1}], s[{sTB}:{sTB+1}], v[{vPOL2}:{vPOL2+1}]
    s_or_b64 vcc, vcc, s[{sMK}:{sMK+1}]
    s_cmp_eq_u64 vcc, -1
    s_cbranch_scc1 L_ready
    s_add_u32 s{sSPIN}, s{sSPIN}, 1
    s_cmp_gt_u32 s{sSPIN}, {c.spin_max}
    s_cbranch_scc0 L_poll
    s_endpgm
""")
    else:
        a(f"""L_poll:
    s_waitcnt vmcnt(0)
    v_cmp_eq_u64 vcc, s[{sTA}:{sTA+1}], v[{vPOLL}:{vPOLL+1}]
    v_cmp_eq_u64 s[{sMK}:{sMK+1}], s[{sTB}:{sTB+1}], v[{vPOLL}:{vPOLL+1}]
    s_or_b64 vcc, vcc, s[{sMK}:{sMK+1}]
    s_cmp_eq_u64 vcc, -1
    s_cbranch_scc1 L_ready
    buffer_load_dwordx2 v[{vPOLL}:{vPOLL+1}], v{vFA}, s[{sWS}:{sWS+3}], 0 offen sc1
    s_add_u32 s{sSPIN}, s{sSPIN}, 1
    s_cmp_gt_u32 s{sSPIN}, {c.spin_max}
    s_cbranch_scc0 L_poll
    s_endpgm
""")
    a(f"""L_ready:
""")
    if c.amp and c.amp[0] == "start":
        a(f"""    s_cmp_eq_u32 s{sL}, 1
    s_cbranch_scc0 L_amp1
    s_memtime s[26:27]
    s_waitcnt lgkmcnt(0)
    s_sub_u32 s25, s26, s100
L_amp1:""")
    stamp(1)
    a(f"""
    s_barrier                                 ; B_a
    s_branch L_layer2
L_final:
""")
    epi(0); epi(1); epi(2); epi(3)
    a(f"""
    s_nop 1
    v_permlane32_swap_b32 v{vP}, v{vP+2}
    v_permlane32_swap_b32 v{vP+1}, v{vP+3}
    v_permlane32_swap_b32 v{vP+4}, v{vP+6}
    v_permlane32_swap_b32 v{vP+5}, v{vP+7}
""")
    if c.amp and c.amp[0] == "fin":
        a("    s_memtime s[100:101]\n    s_waitcnt lgkmcnt(0)")
    a(f"""
    buffer_store_dwordx4 v[{vP}:{vP+3}], v{vOUT}, s[{sOUT}:{sOUT+3}], 0 offen
    buffer_store_dwordx4 v[{vP+4}:{vP+7}], v{vOUT}, s[{sOUT}:{sOUT+3}], 0 offen offset:32
""")
    if c.amp and c.amp[0] == "fin":
        a("    s_waitcnt vmcnt(0)\n    s_memtime s[26:27]\n    s_waitcnt lgkmcnt(0)\n    s_sub_u32 s25, s26, s100")
    a(f"""
    s_or_b32 s{sT0}, s{sJ}, s{sWV}
    s_cmp_eq_u32 s{sT0}, 0
    s_cbranch_scc0 L_noepoch
    s_add_u32 s{sT0}, s{sE}, 16
    s_addc_u32 s{sT1}, s{sE+1}, 0
    v_mov_b32 v{vFV}, s{sT0}
    v_mov_b32 v{vFV+1}, s{sT1}
    s_mov_b64 exec, 1
    buffer_store_dwordx2 v[{vFV}:{vFV+1}], off, s[{sWS}:{sWS+3}], s{sCB} sc1
    s_mov_b64 exec, -1
L_noepoch:
""")
    if c.amp:
        if c.amp[0] in ("total", "totalrt"):
            a(("    s_memtime s[26:27]" if c.amp[0] == "total" else "    s_memrealtime s[26:27]") + """
    s_waitcnt lgkmcnt(0)
    s_sub_u32 s25, s26, s100""")
        tm = "s_memrealtime" if c.amp[0] == "totalrt" else "s_memtime"
        a(f"""    s_cmp_eq_u32 s2, 0
    s_cbranch_scc0 L_amp9
    s_mul_i32 s25, s25, {c.amp[1]}
    {tm} s[80:81]
    s_waitcnt lgkmcnt(0)
L_ampspin:
    {tm} s[82:83]
    s_waitcnt lgkmcnt(0)
    s_sub_u32 s82, s82, s80
    s_cmp_lt_u32 s82, s25
    s_cbranch_scc1 L_ampspin
L_amp9:""")
    if c.exp_delay or c.exp_rt:
        ins = "s_memtime" if c.exp_delay else "s_memrealtime"
        a(f"""
    {ins} s[80:81]
    s_waitcnt lgkmcnt(0)
L_expd:
    {ins} s[82:83]
    s_waitcnt lgkmcnt(0)
    s_sub_u32 s82, s82, s80
    s_cmp_lt_u32 s82, {c.exp_delay or c.exp_rt}
    s_cbranch_scc1 L_expd
""")
    stamp(1); dump_ts()
    a("    s_endpgm")

    if c.helpers:
        HPR = (c.SV * 16 + (2 * NSR if c.sp else 0)) if c.hp is None else c.hp * 16
        HP = HPR // 16
        nrow = 208 - HPR
        nline = nrow * 13
        tot = 4 * nline
        nins = (tot + 63) // 64
        cdelta = HPR * ROWB
        NK = -(-nins // 48)
        HF = 1 if ((c.h0 == 'prefix' or c.w0assist or c.w0scal) and c.hfirst == 0) else c.hfirst
        a(f"""
L_helper:
""")
        if c.probe:
            a(f"""
    s_cmp_eq_u32 s2, 208
    s_cbranch_scc0 L_noprobe
    s_cmp_eq_u32 s{sWV}, 0
    s_cbranch_scc0 L_noprobe
    s_mov_b32 s20, {c.probe_off + 16384}
    buffer_load_dword v30, off, s[{sW}:{sW+3}], s20
    s_waitcnt vmcnt(0)
    s_mov_b32 s20, {c.probe_off}
    s_memtime s[22:23]
    s_waitcnt lgkmcnt(0)
    buffer_load_dword v30, off, s[{sW}:{sW+3}], s20
    s_waitcnt vmcnt(0)
    s_memtime s[24:25]
    s_waitcnt lgkmcnt(0)
    s_sub_u32 s24, s24, s22
    s_mul_i32 s24, s24, {c.probe}
L_pspin:
    s_memtime s[26:27]
    s_waitcnt lgkmcnt(0)
    s_sub_u32 s26, s26, s22
    s_cmp_lt_u32 s26, s24
    s_cbranch_scc1 L_pspin
    s_endpgm
L_noprobe:""")
        a(f"""
    ; L2 prefetch for the workers of this die (placement assumed for speed only): one dword per 128-byte line
    s_sub_u32 s{sT0}, s2, 208
    s_and_b32 s{sT1}, s{sT0}, 7
    s_lshr_b32 s{sT0}, s{sT0}, 3
    s_lshl_b32 s{sT0}, s{sT0}, 3
    s_add_u32 s{sT0}, s{sT0}, s{sWV}          ; g = 0..47
    s_lshl_b32 s{sCB}, s{sT1}, 13
    s_add_u32 s{sCB}, s{sCB}, {CTRL}
    s_load_dwordx2 s[{sE}:{sE+1}], s[50:51], s{sCB}
    s_add_u32 s{sOWNF}, s{sCB}, 3072
""")
        if c.tlbwarm:
            a(f"""
    s_cmp_eq_u32 s{sWV}, 7
    s_cbranch_scc0 L_notlb
""")
            k_ = 0
            for base, offs in ((46, [0, XLAYER - 64]), (50, [0, XBUF - 64, XBUF + (1 << 20), 2 * XBUF - 64, 2 * XBUF + 65536 - 64]),
                               (42, [1 << 21, 2 << 21, 3 << 21, L_ * WLAYER - 64])):
                for off in offs:
                    a(f"""    s_add_u32 s24, s{base}, {off}
    s_addc_u32 s25, s{base+1}, 0
    s_load_dword s{76+k_}, s[24:25], 0""")
                    k_ += 1
            a("L_notlb:")
        a(f"""
    ; exchange-buffer lines of the die's two row blocks: {2*XRB//128} lines
    s_mul_i32 s{sG}, s{sT1}, {2*XRB}
    s_lshl_b32 s{sI}, s{sT0}, 13
    s_add_u32 s{sG}, s{sG}, s{sI}
    v_lshlrev_b32 v19, 7, v{vL}
    v_add_u32 v19, s{sG}, v19
    s_cmp_lt_u32 s{sT0}, {-(-2*XRB // 8192)}
    s_cselect_b32 s{sM}, 1, 0
""")
        def lane_addr(vdst, nline_, base0, delta):
            tot_ = 4 * nline_
            a(f"""
    s_lshl_b32 s{sI}, s{sI}, 6
    v_add_u32 v{vT0}, s{sI}, v{vL}
    v_mov_b32 v{vT1}, {base0}
    v_cmp_le_u32 vcc, {nline_}, v{vT0}
    v_mov_b32 v{vT2}, 0
    v_mov_b32 v{vT3}, {delta}
    v_cndmask_b32 v{vT2}, v{vT2}, v{vT3}, vcc
    v_add_u32 v{vT1}, v{vT1}, v{vT2}
    v_cmp_le_u32 vcc, {2*nline_}, v{vT0}
    v_mov_b32 v{vT2}, 0
    s_nop 0
    v_cndmask_b32 v{vT2}, v{vT2}, v{vT3}, vcc
    v_add_u32 v{vT1}, v{vT1}, v{vT2}
    v_cmp_le_u32 vcc, {3*nline_}, v{vT0}
    v_mov_b32 v{vT2}, 0
    s_nop 0
    v_cndmask_b32 v{vT2}, v{vT2}, v{vT3}, vcc
    v_add_u32 v{vT1}, v{vT1}, v{vT2}
    v_lshl_add_u32 v{vdst}, v{vT0}, 7, v{vT1}
    v_cmp_le_u32 vcc, {tot_}, v{vT0}
    v_mov_b32 v{vT2}, 0x7ffffff0
    s_nop 0
    v_cndmask_b32 v{vdst}, v{vdst}, v{vT2}, vcc""")
        def need_set(vbase, skip_rows, nrows):
            tot_ = nrows * 52
            nins_ = (tot_ + 63) // 64
            nk = -(-nins_ // 48)
            for k in range(nk):
                a(f"""
    s_add_u32 s{sI}, s{sT0}, {48*k}
    s_lshl_b32 s{sI}, s{sI}, 6
    v_add_u32 v{vT0}, s{sI}, v{vL}
    v_mul_u32_u24 v{vT1}, 80660, v{vT0}
    v_lshrrev_b32 v{vT1}, 22, v{vT1}
    v_mul_u32_u24 v{vT2}, 52, v{vT1}
    v_sub_u32 v{vT2}, v{vT0}, v{vT2}          ; rem
    v_mul_u32_u24 v{vT3}, 5042, v{vT2}
    v_lshrrev_b32 v{vT3}, 16, v{vT3}
    v_mul_u32_u24 v{vbase+k}, 13, v{vT3}
    v_sub_u32 v{vT2}, v{vT2}, v{vbase+k}
    v_mul_u32_u24 v{vT3}, 208, v{vT3}
    v_add_u32 v{vT1}, v{vT1}, v{vT3}
    v_add_u32 v{vT1}, {skip_rows}, v{vT1}     ; row
    v_mul_u32_u24 v{vT1}, {ROWB}, v{vT1}
    v_lshl_add_u32 v{vbase+k}, v{vT2}, 7, v{vT1}
    v_cmp_le_u32 vcc, {tot_}, v{vT0}
    v_mov_b32 v{vT2}, 0x7ffffff0
    s_nop 0
    v_cndmask_b32 v{vbase+k}, v{vbase+k}, v{vT2}, vcc""")
            return nk
        def addr_set(vbase, nline_, base0, delta, tag):
            tot_ = 4 * nline_
            nins_ = (tot_ + 63) // 64
            nk = -(-nins_ // 48)
            a(f"    s_mul_i32 s{sT2}, s{sT1}, {nins_ // 8}")
            for k in range(nk):
                a(f"""
    s_add_u32 s{sT3}, s{sT0}, {48*k}
    s_add_u32 s{sI}, s{sT3}, s{sT2}
    s_cmp_ge_u32 s{sI}, {nins_}
    s_cselect_b32 s{sG}, {nins_}, 0
    s_sub_u32 s{sI}, s{sI}, s{sG}
    s_cmp_ge_u32 s{sT3}, {nins_}
    s_cselect_b32 s{sI}, {nins_ + 8}, s{sI}   ; no k-th instruction -> past the end""")
                lane_addr(vbase + k, nline_, base0, delta)
            return nk
        if c.hx0:
            a(f"""
    s_cmp_eq_u32 s{sM}, 1
    s_cbranch_scc0 L_nohx0
    buffer_load_dword v28, v19, s[{sX0}:{sX0+3}], 0 offen
L_nohx0:""")
        NK0 = 0
        if (c.w0assist or c.w0scal) and c.hfirst == 0:
            skip0 = P * 16 + (60 if c.w0assist else 28)
            NK0 = addr_set(40, (208 - skip0) * 13, skip0 * ROWB, skip0 * ROWB, "p")
            for k in range(NK0):
                a(f"    buffer_load_dword v{50+k}, v{40+k}, s[{sW}:{sW+3}], 0 offen")
        elif c.h0 == "prefix" and c.hfirst == 0:
            NK0 = addr_set(40, HP * 16 * 13, 0, (13 - HP) * 26624, "p")
            for k in range(NK0):
                a(f"    buffer_load_dword v{50+k}, v{40+k}, s[{sW}:{sW+3}], 0 offen")
        if c.horder == "need": need_set(10, HPR, nrow)
        else: addr_set(10, nline, cdelta, cdelta, "h")
        nshare_l = tot // 8
        NW_ = 14
        if c.hwarm:
            a(f"""
    s_mul_i32 s{sI}, s{sT1}, {nshare_l}
    s_mul_i32 s{sG}, s{sT0}, {NW_}
    s_add_u32 s{sI}, s{sI}, s{sG}
    s_mov_b32 s{sG}, {cdelta}
    s_cmp_ge_u32 s{sI}, {nline}
    s_cselect_b32 s{sT3}, {cdelta}, 0
    s_add_u32 s{sG}, s{sG}, s{sT3}
    s_cmp_ge_u32 s{sI}, {2*nline}
    s_cselect_b32 s{sT3}, {cdelta}, 0
    s_add_u32 s{sG}, s{sG}, s{sT3}
    s_cmp_ge_u32 s{sI}, {3*nline}
    s_cselect_b32 s{sT3}, {cdelta}, 0
    s_add_u32 s{sG}, s{sG}, s{sT3}
    s_lshl_b32 s{sI}, s{sI}, 7
    s_add_u32 s{sI}, s{sI}, s{sG}
    s_add_u32 s{sI}, s{sI}, {c.wstride}
    s_add_u32 s44, s42, s{sI}                 ; layer 1
    s_addc_u32 s45, s43, 0""")
        if c.hvec_warm:
            a(f"""
    ; memory-side cache warm-up: lines [die*1352, +1352) of a later layer, one line per lane; waves g < 22 (and g - 22 < 22 at the start)
    s_cmp_ge_u32 s{sT0}, 22
    s_cselect_b32 s{sG}, 22, 0
    s_cselect_b32 s{sWG}, 1, 0
    s_sub_u32 s{sG}, s{sT0}, s{sG}
    s_lshl_b32 s{sG}, s{sG}, 6
    s_mul_i32 s{sI}, s{sT1}, 1352
    s_add_u32 s{sI}, s{sI}, s{sG}
    v_add_u32 v{vT0}, s{sI}, v{vL}
    v_lshlrev_b32 v18, 7, v{vT0}
    v_add_u32 v{vT1}, s{sG}, v{vL}
    v_cmp_le_u32 vcc, 1352, v{vT1}
    v_mov_b32 v{vT2}, 0x7ffffff0
    s_nop 0
    v_cndmask_b32 v18, v18, v{vT2}, vcc""")
        nv_l = c.SV * 16 * 52 // 8
        if c.hvwarm:
            a(f"""
    s_mul_i32 s{sI}, s{sT1}, {nv_l}
    s_mul_i32 s{sG}, s{sT0}, 7
    s_min_u32 s{sG}, s{sG}, {nv_l - 7}
    s_add_u32 s{sI}, s{sI}, s{sG}
    s_mov_b32 s{sG}, 0
    s_cmp_ge_u32 s{sI}, {c.SV * 16 * 13}
    s_cselect_b32 s{sT3}, {(208 - c.SV * 16) * ROWB}, 0
    s_add_u32 s{sG}, s{sG}, s{sT3}
    s_cmp_ge_u32 s{sI}, {2 * c.SV * 16 * 13}
    s_cselect_b32 s{sT3}, {(208 - c.SV * 16) * ROWB}, 0
    s_add_u32 s{sG}, s{sG}, s{sT3}
    s_cmp_ge_u32 s{sI}, {3 * c.SV * 16 * 13}
    s_cselect_b32 s{sT3}, {(208 - c.SV * 16) * ROWB}, 0
    s_add_u32 s{sG}, s{sG}, s{sT3}
    s_lshl_b32 s{sI}, s{sI}, 7
    s_add_u32 s{sI}, s{sI}, s{sG}
    s_add_u32 s{sI}, s{sI}, {c.wstride}
    s_add_u32 s46, s42, s{sI}                 ; layer 1
    s_addc_u32 s47, s43, 0""")
        if NK0 and c.hwarm:
            a("    s_waitcnt lgkmcnt(0)")
            for half in range(2):
                if half: a("    s_waitcnt lgkmcnt(0)")
                for n_ in range(7 * half, 7 * half + 7):
                    a(f"    s_load_dwordx2 s[{76+2*(n_%7)}:{77+2*(n_%7)}], s[44:45], {n_*128 + 60}")
            a(f"    s_add_u32 s44, s44, {c.wstride}")
            a(f"    s_addc_u32 s45, s45, 0")
        if NK0:
            a(f"""
    s_waitcnt vmcnt(0)
    s_barrier
    s_cmp_eq_u32 s{sM}, 1
    s_cbranch_scc0 L_hx1
    s_mov_b32 s{sI}, {XBUF}
    buffer_load_dword v30, v19, s[{sWS}:{sWS+3}], s{sI} offen sc1
L_hx1:
""")
        a(f"""
    v_mov_b32 v20, 0
    s_mov_b32 s{sL}, {HF}
    s_mov_b32 s{sT3}, {HF * c.wstride}
    s_waitcnt lgkmcnt(0)
L_h_layer:
""")
        if c.hpace:
            a(f"""
    ; before layer m wait (bounded) until the workers have finished layer m-{c.hlook}
    s_cmp_lt_u32 s{sL}, {c.hlook}
    s_cbranch_scc1 L_h_go
    s_cmp_eq_u32 s{sWV}, 0
    s_cbranch_scc0 L_h_bar
    s_mov_b32 s{sSPIN}, 0
L_h_poll:
    buffer_load_dwordx2 v[16:17], v20, s[{sWS}:{sWS+3}], s{sOWNF} offen sc1
    s_waitcnt vmcnt(0)
    v_readfirstlane_b32 s{sTA}, v16
    v_readfirstlane_b32 s{sTA+1}, v17
    s_sub_u32 s{sTA}, s{sTA}, s{sE}
    s_subb_u32 s{sTA+1}, s{sTA+1}, s{sE+1}
    s_cmp_eq_u32 s{sTA+1}, 0
    s_cselect_b32 s{sTA}, s{sTA}, 0
    s_cmp_gt_u32 s{sTA}, 6
    s_cselect_b32 s{sTA}, 0, s{sTA}           ; layers finished so far
    s_add_u32 s{sTA}, s{sTA}, {c.hlook - 1}
    s_cmp_ge_u32 s{sTA}, s{sL}
    s_cbranch_scc1 L_h_bar
    s_add_u32 s{sSPIN}, s{sSPIN}, 1
    s_cmp_lt_u32 s{sSPIN}, 32
    s_cbranch_scc1 L_h_poll
L_h_bar:
    s_barrier
L_h_go:
""")
        def hw_batch(k, lab):
            if not c.hwarm: return
            a(f"    s_cmp_lt_u32 s{sL}, 5")
            a(f"    s_cbranch_scc0 {lab}")
            if not c.hw0:
                a(f"    s_cmp_eq_u32 s{sL}, 0")
                a(f"    s_cbranch_scc1 {lab}")
            a("    s_waitcnt lgkmcnt(0)")
            for n_ in range(7 * k, 7 * k + 7):
                a(f"    s_load_dwordx2 s[{76+2*(n_%7)}:{77+2*(n_%7)}], s[44:45], {n_*128 + 60}")
            a(f"{lab}:")
        def vec_warm(lab):
            A_ = c.hvw_ahead
            a(f"    s_cmp_eq_u32 s{sWG}, 1")
            a(f"    s_cbranch_scc1 {lab}_b")
            a(f"    s_add_u32 s{sI}, s{sL}, {A_}")
            a(f"    s_cmp_le_u32 s{sI}, 5")
            a(f"    s_cbranch_scc0 {lab}")
            if c.wwarm:
                a(f"    s_cmp_gt_u32 s{sI}, {c.wwarm}")
                a(f"    s_cbranch_scc0 {lab}")
            a(f"    s_add_u32 s{sI}, s{sT3}, {A_ * c.wstride}")
            a(f"    buffer_load_dword v29, v18, s[{sW}:{sW+3}], s{sI} offen")
            a(f"    s_branch {lab}")
            a(f"{lab}_b:")
            if A_ == 2 and c.wwarm < 1:
                a(f"    s_cmp_eq_u32 s{sL}, {HF}")
                a(f"    s_cbranch_scc0 {lab}")
                a(f"    s_add_u32 s{sI}, s{sT3}, {c.wstride}")
                a(f"    buffer_load_dword v29, v18, s[{sW}:{sW+3}], s{sI} offen")
            a(f"{lab}:")
        if c.hvec_warm and c.hvw_pos == "before": vec_warm("L_hvw")
        for k in range(NK):
            a(f"    buffer_load_dword v{31+k}, v{10+k}, s[{sW}:{sW+3}], s{sT3} offen")
            if k < 2: hw_batch(k, f"L_hw{k}")
            a(f"    s_waitcnt vmcnt({c.hdepth})")
            a(f"    s_barrier")
        if c.hvec_warm and c.hvw_pos == "after": vec_warm("L_hvw")
        if c.hvwarm:
            a(f"    s_cmp_lt_u32 s{sL}, 5")
            a(f"    s_cbranch_scc0 L_hnv")
            a("    s_waitcnt lgkmcnt(0)")
            for n_ in range(7):
                a(f"    s_load_dwordx2 s[{76+2*n_}:{77+2*n_}], s[46:47], {n_*128 + 60}")
            a(f"    s_add_u32 s46, s46, {c.wstride}")
            a(f"    s_addc_u32 s47, s47, 0")
            a("L_hnv:")
        if c.hwarm:
            a(f"    s_add_u32 s44, s44, {c.wstride}")
            a(f"    s_addc_u32 s45, s45, 0")
        if c.xt_by in ('helper', 'mixed'):
            nbuf = 1 if c.xt_by == "mixed" else 2
            a(f"""
    s_sub_u32 s{sI}, s{sL}, {HF}
    s_add_u32 s{sI}, s{sI}, {1 if HF != c.hfirst else 0}
    s_cmp_lt_u32 s{sI}, {nbuf}
    s_cbranch_scc0 L_hx0
    s_cmp_eq_u32 s{sM}, 1
    s_cbranch_scc0 L_hx0
    s_cmp_eq_u32 s{sI}, 0
    s_cselect_b32 s{sI}, {XBUF}, 0
    buffer_load_dword v30, v19, s[{sWS}:{sWS+3}], s{sI} offen sc1
L_hx0:""")
        stamp(1)
        a(f"""
    s_add_u32 s{sL}, s{sL}, 1
    s_add_u32 s{sT3}, s{sT3}, {c.wstride}
    s_cmp_lt_u32 s{sL}, 6
    s_cbranch_scc1 L_h_layer
""")
        if c.outtouch:
            srd(sOUT, 46, XLAYER)
            a(f"""
    ; output lines of the die's 128 rows: the final stores then stay in L2
    s_cmp_eq_u32 s{sM}, 1
    s_cbranch_scc0 L_noot
    buffer_load_dword v30, v19, s[{sOUT}:{sOUT+3}], 0 offen
L_noot:""")
        if c.hwb:
            a(f"""
    ; first helper workgroup of the die, wave 0: once layer 4 is finished, start writing the exchanged activations back
    s_cmp_lt_u32 s2, 216
    s_cbranch_scc0 L_nowb
    s_cmp_eq_u32 s{sWV}, 0
    s_cbranch_scc0 L_nowb
    s_mov_b32 s{sSPIN}, 0
L_wbpoll:
    buffer_load_dwordx2 v[16:17], v20, s[{sWS}:{sWS+3}], s{sOWNF} offen sc1
    s_waitcnt vmcnt(0)
    v_readfirstlane_b32 s{sTA}, v16
    v_readfirstlane_b32 s{sTA+1}, v17
    s_sub_u32 s{sTA}, s{sTA}, s{sE}
    s_subb_u32 s{sTA+1}, s{sTA+1}, s{sE+1}
    s_cmp_eq_u32 s{sTA+1}, 0
    s_cselect_b32 s{sTA}, s{sTA}, 0
    s_cmp_eq_u32 s{sTA}, 5
    s_cbranch_scc1 L_wbgo
    s_add_u32 s{sSPIN}, s{sSPIN}, 1
    s_cmp_lt_u32 s{sSPIN}, 64
    s_cbranch_scc1 L_wbpoll
L_wbgo:
    buffer_wbl2 sc1
L_nowb:""")
        a("    s_waitcnt vmcnt(0)")
        stamp(1)
        dump_ts()
    a("L_end:")
    a("    s_endpgm")
    kernel_desc(a, KNAME, NV, sgpr=102, accum=NV)
    txt = a.text().rstrip()
    if txt.endswith(".text"):
        txt = txt[:-5]
    return txt

if __name__ == "__main__":
    import json
    kw = json.loads(sys.argv[2]) if len(sys.argv) > 2 else {}
    open(sys.argv[1], "w").write(gen(**kw))
```

```python
import sys, os
from asmlib import *

KNAME = "standalone__dcn_v2_cross__recsys_kernel"
B_, DIN, L_ = 1024, 832, 6
ROWB = DIN * 2
WLAYER = DIN * DIN * 2
XLAYER = B_ * DIN * 2
XMH = 32 * ROWB
XRB = 2 * XMH
XBUF = 16 * XRB
CTRL = 2 * XBUF
TSOFF = CTRL + 16 * 4096
WS_BYTES = TSOFF + 256 * 8 * 256

class Cfg:
    def __init__(self, **kw):
        self.P = 6
        self.D = 5
        self.PF = 2
        self.SV = 3
        self.SB = 7
        self.ssched = 'three'
        self.NS = 3
        self.sp = True
        self.hp = None
        self.helpers = True
        self.hfirst = 0
        self.hlook = 2
        self.hpace = True
        self.hdepth = 1
        self.lthr = 0
        self.lthr_all = True
        self.sD_late = True
        self.ts = 0
        self.force_slow = False
        self.scramble = False
        self.spin_max = 1 << 20
        self.wstride = WLAYER
        self.prio = 0
        self.hello_step = 19
        self.w0t = False
        self.hx0 = False
        self.no_mfma = False
        self.fake16 = False
        self.r1touch = False
        self.w0scal = False
        self.epi2 = True
        self.outtouch = False
        self.vw1 = 'before_bx'
        self.vw2 = 'after_by'
        self.nt_last = False
        self.hfirstid = False
        self.chunks0 = [13, 17, 20, 23]
        self.amp = None
        self.hwb = False
        self.probe = 0
        self.probe_off = 5 * WLAYER + 700 * ROWB
        self.codepf = True
        self.wwarm = 0
        self.xt_by = 'helper'
        self.hvec_warm = False
        self.hvw_ahead = 2
        self.hvw_pos = 'after'
        self.tlbwarm = False
        self.l0b1 = True
        self.hvwarm = False
        self.hw0 = True
        self.hello_by = 'compute'
        self.pre_first = False
        self.swarm = False
        self.horder = 'linear'
        self.hwarm = True
        self.prog_step = 22
        self.prog_at = 'end'
        self.vwarm = True
        self.pre_by = 'loader'
        self.mid_step = 21
        self.presched = 'pack'
        self.h0 = 'middle'
        self.xtouch = False
        self.w0assist = False
        self.bias_by = 'loader'
        self.exp_delay = 0
        self.exp_rt = 0
        self.poll2 = False
        self.phased = True
        self.n1 = 0
        self.n2 = 4
        self.onepoll = True
        self.no_suf = self.no_pre = self.no_x = self.no_w = False
        self.__dict__.update(kw)

def gen(cfg=None, **kw):
    c = cfg or Cfg(**kw)
    P, D, PF = c.P, c.D, c.PF
    TS = int(c.ts)
    assert P <= 12 and PF <= P and D >= PF + 1
    KHS = (26 - P) * 2048
    PRE0 = 0
    SUF = 2 * P * 2048
    PRE1 = SUF + 2 * KHS
    PREPAR = PRE1 - PRE0
    RED = PRE1 + 2 * P * 2048
    BIAS = RED + 16384
    MODEW = BIAS
    LDS_BYTES = BIAS + 64
    XS = SUF
    assert XS + 4 * 28672 <= BIAS and LDS_BYTES <= 163840
    sW, sWS, sX0, sOUT, sBS = 4, 8, 12, 16, 24
    sRB, sJ, sG2, sWV, sMH, sKH, sL, sXCC, sMODE = 28, 29, 30, 31, 32, 33, 34, 35, 36
    sXA, sXB, sXST = 37, 38, 39
    sWP, sMP, sPD = 52, 53, 54
    sU, sOWNF, sXD2 = 55, 56, 57
    sT0, sT1, sT2, sT3 = 58, 59, 60, 61
    sSPIN, sROT = 62, 63
    sG, sM, sI = 64, 65, 66
    sTSI, sTM = 67, 68
    sXD, sCB = 70, 71
    sE, sTA, sTB, sMK = 72, 74, 76, 78
    sBP_ = 48
    sWG = 30
    vL = 0
    vT0, vT1, vT2, vT3 = 1, 2, 3, 4
    vDUM = 5
    vXO = 6
    vAPK, vAPS, vASK, vASS = 10, 11, 12, 13
    vDMA, vFA = 14, 15
    vPOLL = 16
    vRW, vRR, vBA, vTS = 20, 21, 22, 23
    vP = 24
    vAK, vAS, vPART, vX0F, vXR = 32, 48, 64, 80, 96
    vWF = 112
    vXF = 136
    vBP = 240
    vOUT, vHA, vFV, vDMA0 = 248, 249, 250, 252
    vPOL2 = 254
    NV = 256
    nsets = PF + 1
    assert nsets * 8 <= 24

    a = Asm()
    for ln in """Fused DCN-v2 cross network: 6 layers of x = x0 * (x @ W[l] + b[l]) + x, 1024 x 832, bf16 in/out, f32 accumulate.
Kernarg (s[0:1]): +0 x0, +8 ws, +16 bs, +24 out, +32 debug (unused), +40 workspace.

Work split: 208 worker workgroups = 16 row blocks (64 rows) x 13 column slices (64 columns), one 64x64 output tile each.
  waves 0-3: MFMA 32x32x16 (A = W^T through LDS transposed reads, B = x fragments), split (row half, K half),
             partial sums exchanged through LDS, epilogue in f32, one rounding to bf16 per layer;
  waves 4-7: move W (and, for layer 0, the x0 rows) into LDS with LDS-DMA.
  48 helper workgroups only prefetch W / exchange-buffer lines into L2 (die = id mod 8 is assumed for speed only).
Layer outputs are exchanged inside a row block through two ping-pong buffers in the workspace, stored in MFMA B-fragment order.
Hand-off: data stores -> s_waitcnt vmcnt(0) -> per-wave 64-bit flag; one wave polls the 52 flags, barrier, then sc1 loads.
  Flags carry launch-unique tags: tag = E + layer + 1, where E is a per-row-block epoch word read at entry (any value) and
  advanced by 16 at the end of the launch, so words left by an earlier launch or by the harness never match.
  Every member publishes its XCC id (write-through); if all 13 members share a die the hand-off stores stay in that die's L2,
  otherwise data and flags are written through (sc1).  Correct under any placement; all spins are bounded.""".split("\n"):
        a(("; " + ln).rstrip())
    a(f"; @launch grid=({256 if c.helpers else 208},1,1) block=(512,1,1) lds={LDS_BYTES}")
    a('.amdgcn_target "amdgcn-amd-amdhsa--gfx950"')
    a(".text")
    kernel_begin(a, KNAME)
    if c.amp:
        a("    s_memrealtime s[100:101]" if c.amp[0] == "totalrt" else "    s_memtime s[100:101]")
    if TS == 5:
        a("    s_memrealtime s[26:27]")
        a("    s_memtime s[100:101]")

    def stamp(level=2):
        if not TS or TS < level or (TS == 4 and level > 1) or TS == 5: return
        a(f"    s_memtime s[{sTM}:{sTM+1}]")
        a(f"    s_waitcnt lgkmcnt(0)")
        a(f"    s_mov_b32 m0, s{sTSI}")
        a(f"    s_nop 0")
        a(f"    v_writelane_b32 v{vTS}, s{sTM}, m0")
        a(f"    s_add_u32 s{sTSI}, s{sTSI}, 1")
    def dump_ts():
        if not TS: return
        if TS == 5:
            a("    s_memrealtime s[80:81]")
            a("    s_memtime s[82:83]")
            a("    s_waitcnt lgkmcnt(0)")
            a(f"    v_writelane_b32 v{vTS}, s26, 0")
            a(f"    v_writelane_b32 v{vTS}, s80, 1")
            a(f"    v_writelane_b32 v{vTS}, s100, 2")
            a(f"    v_writelane_b32 v{vTS}, s82, 3")
        a(f"""
    s_lshl_b32 s{sT0}, s2, 3
    s_add_u32 s{sT0}, s{sT0}, s{sWV}
    s_lshl_b32 s{sT0}, s{sT0}, 8
    s_add_u32 s{sT0}, s{sT0}, {TSOFF}
    v_lshlrev_b32 v{vT0}, 2, v{vL}
    buffer_store_dword v{vTS}, v{vT0}, s[{sWS}:{sWS+3}], s{sT0} offen
""")
    def srd(dst, src, nbytes):
        a(f"    s_mov_b32 s{dst}, s{src}")
        a(f"    s_and_b32 s{dst+1}, s{src+1}, 0xffff")
        a(f"    s_mov_b32 s{dst+2}, {nbytes}")
        a(f"    s_mov_b32 s{dst+3}, 0x20000")

    a(f"""
    s_cmp_ge_u32 s2, {256 if c.helpers else 208}
    s_cbranch_scc1 L_end
    s_load_dwordx4 s[40:43], s[0:1], 0
    s_load_dwordx4 s[44:47], s[0:1], 16
    s_load_dwordx2 s[50:51], s[0:1], 40
    s_getreg_b32 s{sXCC}, hwreg(HW_REG_XCC_ID, 0, 4)
""")
    if c.hfirstid and c.helpers:
        a("""    s_cmp_lt_u32 s2, 48
    s_cselect_b32 s3, 256, 0
    s_add_u32 s2, s2, s3
    s_sub_u32 s2, s2, 48""")
    if c.scramble:
        a(f"""
    s_mul_hi_u32 s{sRB}, s2, 0x13B13B14
    s_mul_i32 s{sT0}, s{sRB}, 13
    s_sub_u32 s{sJ}, s2, s{sT0}
    s_and_b32 s{sG2}, s{sRB}, 1
    s_mul_i32 s{sROT}, s{sG2}, 13""")
    else:
        a(f"""
    s_and_b32 s{sT0}, s2, 7
    s_lshr_b32 s{sT1}, s2, 3
    s_cmp_ge_u32 s{sT1}, 13
    s_cselect_b32 s{sG2}, 1, 0
    s_mul_i32 s{sROT}, s{sG2}, 13
    s_sub_u32 s{sJ}, s{sT1}, s{sROT}
    s_lshl_b32 s{sRB}, s{sT0}, 1
    s_add_u32 s{sRB}, s{sRB}, s{sG2}""")
    a(f"""
    v_lshrrev_b32 v{vT0}, 6, v0
    v_and_b32 v{vL}, 63, v0
    v_readfirstlane_b32 s{sWV}, v{vT0}
    s_mov_b32 s{sTSI}, 0
    v_mov_b32 v{vTS}, 0
    s_lshl_b32 s{sCB}, s{sRB}, 12
    s_add_u32 s{sCB}, s{sCB}, {CTRL}
    s_and_b32 s{sMH}, s{sWV}, 1
    s_bfe_u32 s{sKH}, s{sWV}, 0x10001
    ; ---- x0 staging addresses (used by the loader waves; computed while the kernel arguments are on their way)
    s_sub_u32 s{sU}, s{sWV}, 4                ; u = 0..3: (kh, a) for W, compute wave u for the x0 staging
    v_lshrrev_b32 v{vT0}, 3, v{vL}            ; row8
    v_and_b32 v{vT1}, 7, v{vL}
    v_lshrrev_b32 v{vT2}, 1, v{vT0}
    v_xor_b32 v{vT1}, v{vT1}, v{vT2}          ; c' ^ (row8>>1)
    v_xor_b32 v{vT2}, 4, v{vT1}
    v_mul_u32_u24 v{vT0}, {ROWB}, v{vT0}
    v_lshl_add_u32 v{vXO}, v{vT1}, 4, v{vT0}
    v_lshl_add_u32 v{vXO+1}, v{vT2}, 4, v{vT0}
    s_lshl_b32 s{sT0}, s{sRB}, 6
    s_lshl_b32 s{sT1}, s{sMH}, 5
    s_add_u32 s{sT0}, s{sT0}, s{sT1}
    s_mul_i32 s{sG}, s{sT0}, {ROWB}
    s_mul_i32 s{sT1}, s{sKH}, {6*128}
    s_add_u32 s{sG}, s{sG}, s{sT1}
    s_mul_i32 s{sM}, s{sU}, 28672
    s_add_u32 s{sM}, s{sM}, {XS}
    s_cmp_ge_u32 s{sJ}, 7
    s_cselect_b32 s{sT3}, 7, 0
    s_sub_u32 s{sT3}, s{sJ}, s{sT3}
    s_mov_b32 s{sI}, 0
    s_waitcnt lgkmcnt(0)
""")
    if c.amp and c.amp[0] == "karg":
        a("    s_memtime s[26:27]\n    s_waitcnt lgkmcnt(0)\n    s_sub_u32 s25, s26, s100")
    srd(sX0, 40, XLAYER)
    stamp(1)
    def common_srds():
        srd(sW, 42, L_ * WLAYER)
        srd(sWS, 50, WS_BYTES)
        if c.codepf:
            n_ = common_srds.n = getattr(common_srds, "n", 0) + 1
            a(f"""    ; instruction prefetch into L2: wave (id/8)*8 + w reads line number (that index) of this kernel's code
    s_getpc_b64 s[20:21]
L_pc{n_}:
    s_lshr_b32 s22, s2, 3
    s_lshl_b32 s22, s22, 3
    s_add_u32 s22, s22, s{sWV}
    s_lshl_b32 s22, s22, 6
    s_sub_u32 s20, s20, L_pc{n_} - {KNAME}
    s_subb_u32 s21, s21, 0
    s_min_u32 s22, s22, L_end - {KNAME}
    s_load_dword s3, s[20:21], s22""")
    def vdma():
        a(f"""    ; W DMA lane offsets: swizzled 16-byte chunk + j*128; rows in layer-0 order (vDMA0) and in normal order (vDMA)
    v_lshrrev_b32 v{vT0}, 3, v{vL}            ; row8
    v_and_b32 v{vT1}, 7, v{vL}
    v_bfe_u32 v{vT2}, v{vL}, 4, 1
    v_lshlrev_b32 v{vT2}, 2, v{vT2}
    v_xor_b32 v{vT1}, v{vT1}, v{vT2}
    v_lshlrev_b32 v{vT1}, 4, v{vT1}
    s_lshl_b32 s{sT0}, s{sJ}, 7
    v_add_u32 v{vT1}, s{sT0}, v{vT1}
    v_mul_u32_u24 v{vT2}, {ROWB}, v{vT0}
    v_add_u32 v{vDMA}, v{vT2}, v{vT1}
    v_and_b32 v{vT2}, 3, v{vT0}
    v_lshrrev_b32 v{vT0}, 2, v{vT0}
    v_lshl_add_u32 v{vT0}, v{vT0}, 3, v{vT2}
    v_mul_u32_u24 v{vT0}, {ROWB}, v{vT0}
    v_add_u32 v{vDMA0}, v{vT0}, v{vT1}
""")
    if c.r1touch:
        srd(sW, 42, L_ * WLAYER)
        a(f"""
    s_cmp_ge_u32 s2, 208
    s_cbranch_scc1 L_nonloader
    s_cmp_lt_u32 s{sWV}, 4
    s_cbranch_scc0 L_r1done
    ; first touches: wave 0 -> line j of the 64 x0 rows, waves 1..3 -> the 192 prefix lines of W[0]
    s_cmp_eq_u32 s{sWV}, 0
    s_cbranch_scc0 L_r1w
    s_lshl_b32 s20, s{sRB}, 6
    s_mul_i32 s20, s20, {ROWB}
    s_lshl_b32 s21, s{sJ}, 7
    s_add_u32 s20, s20, s21
    v_mul_u32_u24 v20, {ROWB}, v{vL}
    buffer_load_dword v{vDUM}, v20, s[{sX0}:{sX0+3}], s20 offen
    s_branch L_r1done
L_r1w:
    s_sub_u32 s20, s{sWV}, 1
    s_lshl_b32 s20, s20, 6
    v_add_u32 v20, s20, v{vL}                 ; n = 0..191
    v_cmp_le_u32 vcc, {P * 16}, v20
    v_mov_b32 v21, {416 - P * 16}
    s_lshl_b32 s20, s{sROT}, 4
    v_cndmask_b32 v21, 0, v21, vcc
    v_add_u32 v20, v20, v21                   ; row = n + (n >= 96 ? 416 - 96 : 0)
    v_mul_u32_u24 v20, {ROWB}, v20
    s_mul_i32 s20, s20, {ROWB}
    s_lshl_b32 s21, s{sJ}, 7
    s_add_u32 s20, s20, s21
    buffer_load_dword v{vDUM}, v20, s[{sW}:{sW+3}], s20 offen
L_r1done:
    s_barrier                                 ; B_0
    s_cmp_lt_u32 s{sWV}, 4
    s_cbranch_scc1 L_nonloader
""")
    else:
        a(f"""
    s_cmp_ge_u32 s2, 208
    s_cbranch_scc1 L_nonloader
    s_cmp_lt_u32 s{sWV}, 4
    s_cbranch_scc1 L_nonloader
""")
    def bias_dma(sreg, val, lab):
        a(f"    s_cmp_eq_u32 s{sreg}, {val}")
        a(f"    s_cbranch_scc0 {lab}")
        srd(sBS, 44, L_ * ROWB)
        a(f"""    v_lshrrev_b32 v{vT0}, 5, v{vL}
    v_mul_u32_u24 v{vT0}, {ROWB}, v{vT0}
    v_and_b32 v{vT1}, 31, v{vL}
    v_lshlrev_b32 v{vT1}, 2, v{vT1}
    v_add_u32 v{vT0}, v{vT0}, v{vT1}
    s_lshl_b32 s{sT0}, s{sJ}, 7
    v_add_u32 v{vT0}, s{sT0}, v{vT0}""")
        for t in range(3):
            a(f"    s_mov_b32 m0, {BIAS + 256*t}")
            a(f"    s_mov_b32 s{sT1}, {2*t*ROWB}")
            a(f"    buffer_load_dword v{vT0}, s[{sBS}:{sBS+3}], s{sT1} offen lds")
        a(f"{lab}:")
    vS0, vS1 = vXO, vXO + 1
    sSB = 40
    sWP0 = 98
    SB = c.SB
    NSR = (2 if c.ssched == 'two' else 3) * SB
    def sbatch(k, nextlayer=False):
        if not c.sp: return
        b = sSB + 2 if nextlayer else sSB
        for n_ in range(SB):
            a(f"    s_load_dwordx2 s[{76+2*n_}:{77+2*n_}], s[{b}:{b+1}], {(k * SB + n_) * ROWB + 60}")
    def w0_prefix():
        common_srds()
        vdma()
        a(f"""
    s_mul_i32 s{sT0}, s{sKH}, 416
    s_lshl_b32 s{sT1}, s{sMH}, 2
    s_add_u32 s{sT1}, s{sT1}, s{sT0}
    s_mul_i32 s{sT1}, s{sT1}, {ROWB}
    v_add_u32 v{vDMA0}, s{sT1}, v{vDMA0}
    s_lshl_b32 s{sT1}, s{sMH}, 3
    s_add_u32 s{sT1}, s{sT1}, s{sT0}
    s_mul_i32 s{sT1}, s{sT1}, {ROWB}
    v_add_u32 v{vDMA}, s{sT1}, v{vDMA}
    ; ---- W prefix of layer 0
    s_mul_i32 s20, s{sROT}, 26624
    s_mul_i32 s21, s{sKH}, {P*2048}
    s_lshl_b32 s{sT1}, s{sMH}, 10
    s_add_u32 s21, s21, s{sT1}
""")
        for i in range(P):
            a(f"    s_add_u32 m0, s21, {PRE0 + i*2048}")
            a(f"    s_add_u32 s{sT0}, s20, {i*26624}")
            a(f"    buffer_load_dwordx4 v{vDMA0}, s[{sW}:{sW+3}], s{sT0} offen lds")
    if c.pre_first: w0_prefix()
    a(f"""
L_xs:
    s_lshl_b32 s{sT0}, s{sT3}, 12
    s_add_u32 s{sT0}, s{sT0}, s{sM}
    s_lshl_b32 s{sT1}, s{sT3}, 7
    s_add_u32 s{sT1}, s{sT1}, s{sG}
""")
    for rg in range(4):
        a(f"    s_add_u32 m0, s{sT0}, {rg*1024}")
        a(f"    s_add_u32 s{sT2}, s{sT1}, {rg*8*ROWB}")
        a(f"    buffer_load_dwordx4 v{vS0 if rg % 2 == 0 else vS1}, s[{sX0}:{sX0+3}], s{sT2} offen lds")
    a(f"""
    s_add_u32 s{sT3}, s{sT3}, 1
    s_cmp_eq_u32 s{sT3}, 7
    s_cselect_b32 s{sT3}, 0, s{sT3}
    s_add_u32 s{sI}, s{sI}, 1
    s_cmp_lt_u32 s{sI}, 7
    s_cbranch_scc1 L_xs
""")
    if not c.pre_first: w0_prefix()
    if c.w0assist or c.w0t:
        a(f"""
    s_cmp_eq_u32 s{sU}, 3
    s_cbranch_scc0 L_now0t
    v_lshrrev_b32 v21, 5, v{vL}               ; K half
    v_mul_u32_u24 v21, 416, v21
    v_and_b32 v22, 31, v{vL}
    v_add_u32 v21, v21, v22
    v_mul_u32_u24 v21, {ROWB}, v21
    s_lshl_b32 s20, s{sROT}, 4
    s_add_u32 s20, s20, {P * 16 + (28 if c.w0assist else 0)}
    s_mul_i32 s20, s20, {ROWB}
    s_lshl_b32 s21, s{sJ}, 7
    s_add_u32 s20, s20, s21
    buffer_load_dword v{vDUM}, v21, s[{sW}:{sW+3}], s20 offen
L_now0t:""")
    a(f"""
""")
    if c.xt_by in ("worker", "mixed", "front1"):
        a(f"""
    v_lshrrev_b32 v21, 5, v{vL}
    v_mul_u32_u24 v21, {XMH}, v21
    v_and_b32 v22, 31, v{vL}
    v_lshl_add_u32 v21, v22, 7, v21
    s_mul_i32 s22, s{sRB}, {XRB}
    s_lshl_b32 s23, s{sJ}, 12
    s_add_u32 s22, s22, s23                   ; buffer 0
    s_add_u32 s23, s22, {XBUF}                ; buffer 1""")
    if c.xt_by == "worker":
        a(f"""    s_cmp_eq_u32 s{sU}, 1
    s_cbranch_scc0 L_noxt1
    buffer_load_dword v{vDUM}, v21, s[{sWS}:{sWS+3}], s23 offen sc1
L_noxt1:""")
    if c.hello_by == "loader":
        a(f"""
    s_load_dwordx2 s[{sE}:{sE+1}], s[50:51], s{sCB}
    s_add_u32 s{sT0}, s{sCB}, 128
    s_add_u32 s46, s50, s{sT0}
    s_addc_u32 s47, s51, 0""")
    a(f"""
    s_mul_i32 s{sT2}, s{sKH}, {KHS}
    s_lshl_b32 s{sT1}, s{sMH}, 10
    s_add_u32 s{sT2}, s{sT2}, s{sT1}
    s_add_u32 s{sMP}, s{sT2}, {SUF}
    s_mul_i32 s70, s{sKH}, {P*2048}
    s_add_u32 s70, s70, s{sT1}
    s_add_u32 s70, s70, {PRE1}                ; prefix of layer 1 goes to parity 1
    s_mov_b32 s71, {PREPAR}
    s_mul_i32 s{sT0}, s{sKH}, 416
    s_lshl_b32 s{sT1}, s{sROT}, 4
    s_add_u32 s{sT0}, s{sT0}, s{sT1}
    s_mul_i32 s{sT1}, s{sMH}, {NSR}
    s_add_u32 s{sT0}, s{sT0}, s{sT1}
    s_add_u32 s{sT0}, s{sT0}, {c.SV * 16}
    s_mul_i32 s{sT0}, s{sT0}, {ROWB}
    s_lshl_b32 s{sT1}, s{sJ}, 7
    s_add_u32 s{sT0}, s{sT0}, s{sT1}
    s_add_u32 s{sT0}, s{sT0}, {c.wstride}
    s_mov_b32 s98, s42
    s_mov_b32 s99, s43
    s_add_u32 s40, s42, s{sT0}
    s_addc_u32 s41, s43, 0
    s_add_u32 s42, s40, {c.wstride}
    s_addc_u32 s43, s41, 0
""")
    def swarm(k):
        if not (c.swarm and c.sp): return
        lst = [(l, r) for l in range(2, 6) for r in range(3)]
        lst = lst[:7] if k == 0 else lst[7:]
        cur = None
        for n_, (l, r) in enumerate(lst):
            if cur != l:
                a(f"    s_add_u32 s46, s44, {l * c.wstride}")
                a(f"    s_addc_u32 s47, s45, 0")
                cur = l
            a(f"    s_load_dwordx2 s[{76+2*n_}:{77+2*n_}], s[46:47], {r*ROWB + 60}")
    if c.swarm and c.sp:
        per_range = 2 * NSR // 3
        a(f"""
    ; share of the S rows for the warm-up: q = rb*4 + u, range = q / {per_range}, rows 3*(q % {per_range}) ...
    s_lshl_b32 s{sT0}, s{sRB}, 2
    s_add_u32 s{sT0}, s{sT0}, s{sWV}
    s_sub_u32 s{sT0}, s{sT0}, 4
    s_min_u32 s{sT0}, s{sT0}, {4 * per_range - 1}
    s_mul_i32 s{sT1}, s{sT0}, {-(-65536 // per_range)}
    s_lshr_b32 s{sT1}, s{sT1}, 16             ; range
    s_mul_i32 s{sT2}, s{sT1}, {per_range}
    s_sub_u32 s{sT0}, s{sT0}, s{sT2}
    s_mul_i32 s{sT0}, s{sT0}, 3
    s_mul_i32 s{sT1}, s{sT1}, 208
    s_add_u32 s{sT0}, s{sT0}, s{sT1}
    s_add_u32 s{sT0}, s{sT0}, {c.SV * 16}
    s_mul_i32 s{sT0}, s{sT0}, {ROWB}
    s_lshl_b32 s{sT1}, s{sJ}, 7
    s_add_u32 s{sT0}, s{sT0}, s{sT1}
    s_add_u32 s44, s{sWP0}, s{sT0}
    s_addc_u32 s45, s{sWP0+1}, 0
""")
        swarm(0)
    if c.w0assist or c.w0t:
        a(f"""    s_cmp_eq_u32 s{sU}, 3
    s_cbranch_scc0 L_bxw
    s_waitcnt vmcnt({P + 1})
    s_branch L_bxw2
L_bxw:
    s_waitcnt vmcnt({P})
L_bxw2:""")
    elif c.xt_by == "worker":
        a(f"""    s_cmp_eq_u32 s{sU}, 1
    s_cbranch_scc0 L_bxw
    s_waitcnt vmcnt({P + 1})
    s_branch L_bxw2
L_bxw:
    s_waitcnt vmcnt({P})
L_bxw2:""")
    else:
        a(f"    s_waitcnt vmcnt({0 if c.pre_first else P})")
    stamp()
    a(f"""
    s_barrier                                 ; B_x
    s_barrier                                 ; B_y
""")
    if c.swarm and c.sp: a("    s_waitcnt lgkmcnt(0)")
    if c.hello_by != "loader" and c.ssched != "two": sbatch(0)
    def suffix(vreg, lay, thr=True, phased=False, bp=None):
        a(f"    s_mul_i32 s{sG}, s{sROT}, 26624")
        a(f"    s_add_u32 s{sG}, s{sG}, {lay}")
        a(f"    s_sub_u32 s{sM}, 13, s{sROT}")
        a(f"    s_mul_i32 s{sM}, s{sM}, 26624")
        a(f"    s_add_u32 s{sM}, s{sM}, {lay}")
        for n_, i in enumerate(range(P, 26)):
            if bp is not None and n_ == bp:
                a(f"    s_waitcnt vmcnt({bp})")
                a("    s_barrier                                 ; B_p: prefix of layer 0 has landed")
                if c.hello_by == "loader":
                    a(f"""    s_cmp_eq_u32 s{sWV}, 6
    s_cbranch_scc0 L_b0
    s_waitcnt lgkmcnt(0)
    s_load_dwordx16 s[76:91], s[46:47], 0 glc
    s_load_dwordx8 s[92:99], s[46:47], 64 glc
    s_load_dwordx2 s[20:21], s[46:47], 96 glc
    s_branch L_b0d
L_b0:""")
                    sbatch(0)
                    a("L_b0d:")
            if phased and n_ == c.n1: a("    s_barrier")
            if phased and n_ == c.n1 + c.n2: a("    s_barrier")
            a(f"    s_add_u32 m0, s{sMP}, {(i-P)*2048}")
            a(f"    s_add_u32 s{sI}, s{sG if i < 13 else sM}, {(i % 13) * 26624}")
            a(f"    buffer_load_dwordx4 v{vreg}, s[{sW}:{sW+3}], s{sI} offen {'nt ' if (c.nt_last and i >= 13) else ''}lds")
            if c.lthr and thr and (c.lthr_all or n_ >= c.n1 + c.n2):
                a(f"    s_waitcnt vmcnt({c.lthr - 1})")
    sPP, sPDL = 70, 71
    def prefix_next(lay_next):
        a(f"    s_mul_i32 s{sG}, s{sROT}, 26624")
        a(f"    s_add_u32 s{sG}, s{sG}, s{lay_next}")
        for t in range(P):
            a(f"    s_add_u32 m0, s{sPP}, {t*2048}")
            a(f"    s_add_u32 s{sI}, s{sG}, {t*26624}")
            a(f"    buffer_load_dwordx4 v{vDMA}, s[{sW}:{sW+3}], s{sI} offen lds")
            if c.lthr and c.lthr_all and t + 1 < P:
                a(f"    s_waitcnt vmcnt({c.lthr - 1})")
        a(f"    s_sub_u32 s{sPP}, s{sPP}, s{sPDL}")
        a(f"    s_sub_u32 s{sPDL}, 0, s{sPDL}")
    def advance_sb():
        a(f"""    s_add_u32 s40, s40, {c.wstride}
    s_addc_u32 s41, s41, 0
    s_add_u32 s42, s42, {c.wstride}
    s_addc_u32 s43, s43, 0""")
    suffix(vDMA0, "0", False, False, bp=13 - P)
    n = 26 - P
    if c.hello_by != "loader":
        if c.sp and c.ssched != "two": a("    s_waitcnt lgkmcnt(0)")
        sbatch(1)
    if c.hello_by == "compute" and not c.swarm:
        B0 = [P] + list(c.chunks0)
        for k_, b_ in enumerate(B0):
            nxt = B0[k_ + 1] if k_ + 1 < len(B0) else 26
            a(f"    s_waitcnt vmcnt({26 - nxt})")
            if k_ == 0 or k_ + 1 == len(B0): stamp()
            a(f"    s_barrier")
    else:
        a(f"    s_waitcnt vmcnt({n - (13 - P)})")
        stamp()
        a("    s_barrier                                 ; chunk [P,13)")
        if c.hello_by == "loader" and c.sp and c.l0b1:
            a(f"    s_cmp_eq_u32 s{sWV}, 6")
            a(f"    s_cbranch_scc1 L_nob1")
            a("    s_waitcnt lgkmcnt(0)"); sbatch(1)
            a("L_nob1:")
        if c.swarm and c.sp:
            a("    s_waitcnt lgkmcnt(0)"); swarm(1)
        a(f"    s_waitcnt vmcnt({26 - 20})")
        a("    s_barrier                                 ; chunk [13,20)")
        if c.hello_by == "loader":
            a(f"""    s_cmp_eq_u32 s{sWV}, 6
        s_cbranch_scc0 L_nohe
        s_add_u32 s{sT0}, s{sE}, 8
        s_addc_u32 s{sT1}, s{sE+1}, 0
        s_and_b32 s{sT2}, s{sT1}, 0x0fffffff
        s_lshl_b32 s22, s{sXCC}, 28
        s_xor_b32 s{sT1}, s{sT1}, s22
        s_mov_b32 s22, 1
        s_mov_b32 s23, 1
        s_waitcnt lgkmcnt(0)""")
            for m_ in range(13):
                lo = 76 + 2 * m_ if m_ < 12 else 20
                a(f"""    s_cmp_eq_u32 s{lo}, s{sT0}
        s_cselect_b32 s23, s23, 0
        s_cmp_eq_u32 s{lo+1}, s{sT1}
        s_cselect_b32 s22, s22, 0
        s_and_b32 s{lo+1}, s{lo+1}, 0x0fffffff
        s_cmp_eq_u32 s{lo+1}, s{sT2}
        s_cselect_b32 s23, s23, 0""")
            a(f"""    s_sub_u32 s22, 2, s22
        s_mul_i32 s22, s22, s23
        v_mov_b32 v25, s22
        v_mov_b32 v26, {MODEW}
        ds_write_b32 v26, v25
        s_waitcnt lgkmcnt(0)
    """)
            sbatch(0)
            a("L_nohe:")
        a("    s_waitcnt vmcnt(0)")
        stamp()
        a("    s_barrier                                 ; chunk [20,26)")
    if c.pre_by == "loader":
        a("    s_barrier                                 ; B_mid")
        a(f"    s_mov_b32 s{sT3}, {c.wstride}")
        if not c.no_pre: prefix_next(sT3)
        if c.xt_by in ("worker", "mixed", "front1"):
            a(f"""    s_cmp_eq_u32 s{sWV}, 5
    s_cbranch_scc0 L_noxt0
    buffer_load_dword v{vDUM}, v21, s[{sWS}:{sWS+3}], s22 offen sc1
L_noxt0:""")
    advance_sb()
    a(f"""
    s_barrier
    s_mov_b32 s{sL}, 1
    s_mov_b32 s{sT3}, {c.wstride}
L_ld_layer:
    s_cmp_lt_u32 s{sL}, 5
    s_cselect_b32 s{sU}, 1, 0
""")
    def guarded(fn, lab):
        if not c.sp: return
        a(f"    s_cmp_eq_u32 s{sU}, 1")
        a(f"    s_cbranch_scc0 {lab}")
        fn()
        a(f"{lab}:")
    if c.ssched != "two":
        guarded(lambda: sbatch(1), "L_sA")
    if not c.no_suf: suffix(vDMA, f"s{sT3}", True, c.phased)
    elif c.phased:
        a("    s_barrier"); a("    s_barrier")
    stamp()
    if c.ssched != "two":
        guarded(lambda: (a("    s_waitcnt lgkmcnt(0)"), sbatch(2)), "L_sB")
    if c.pre_by == "loader": a(f"    s_waitcnt vmcnt({26 - P})                 ; the prefix has landed")
    a("    s_barrier                                 ; B_a")
    if c.ssched == "two":
        guarded(lambda: sbatch(1), "L_sB")
    a("    s_waitcnt vmcnt(0)")
    stamp()
    a("    s_barrier")
    a(f"    s_cmp_lt_u32 s{sL}, 4")
    a(f"    s_cselect_b32 s{sU}, 1, 0")
    guarded(lambda: (a("    s_waitcnt lgkmcnt(0)"), sbatch(0, True)), "L_sC")
    if c.pre_by == "loader":
        a("    s_barrier                                 ; B_mid")
        stamp(3)
        a(f"    s_cmp_lt_u32 s{sL}, 5")
        a(f"    s_cbranch_scc0 L_nopre")
        a(f"    s_add_u32 s{sU}, s{sT3}, {c.wstride}")
        if not c.no_pre: prefix_next(sU)
        a("L_nopre:")
        stamp(3)
    advance_sb()
    a(f"""
    s_barrier                                 ; B2
    s_add_u32 s{sL}, s{sL}, 1
    s_add_u32 s{sT3}, s{sT3}, {c.wstride}
    s_cmp_lt_u32 s{sL}, 6
    s_cbranch_scc1 L_ld_layer
""")
    dump_ts()
    a("    s_endpgm")

    sBI = 84
    sBP = 48
    def bias_load():
        a(f"    s_load_dwordx16 s[{sBI}:{sBI+15}], s[{sBP}:{sBP+1}], 0")
        a(f"    s_add_u32 s{sBP}, s{sBP}, {ROWB}")
        a(f"    s_addc_u32 s{sBP+1}, s{sBP+1}, 0")
    def bias_spread():
        a("    s_mov_b32 exec_hi, 0")
        for q in range(4):
            for d in range(2):
                a(f"    v_mov_b32 v{vBP+2*q+d}, s{sBI+4*q+d}")
        a("    s_mov_b32 exec_lo, 0")
        a("    s_mov_b32 exec_hi, -1")
        for q in range(4):
            for d in range(2):
                a(f"    v_mov_b32 v{vBP+2*q+d}, s{sBI+4*q+2+d}")
        a("    s_mov_b64 exec, -1")
    def bias_unpack(lo=0, hi=8):
        for d in range(lo, hi):
            a(f"    v_lshlrev_b32 v{vAK+2*d}, 16, v{vBP+d}")
            a(f"    v_and_b32 v{vAK+2*d+1}, 0xffff0000, v{vBP+d}")
    a("L_nonloader:")
    common_srds()
    if c.helpers:
        a(f"""
    s_cmp_ge_u32 s2, 208
    s_cbranch_scc1 L_helper
""")
    if c.pre_by == "compute": vdma()
    a(f"""
L_compute:
    s_load_dwordx2 s[{sE}:{sE+1}], s[50:51], s{sCB}
    s_lshl_b32 s{sT0}, s{sJ}, 7
    s_lshl_b32 s{sT1}, s{sKH}, 6
    s_add_u32 s{sT0}, s{sT0}, s{sT1}
    s_add_u32 s{sBP_}, s44, s{sT0}
    s_addc_u32 s{sBP_+1}, s45, 0
    s_load_dwordx16 s[84:99], s[{sBP_}:{sBP_+1}], 0
    s_load_dword s20, s[{sBP_}:{sBP_+1}], {ROWB}
    s_load_dword s21, s[{sBP_}:{sBP_+1}], {2*ROWB}
    s_load_dword s22, s[{sBP_}:{sBP_+1}], {3*ROWB}
    s_load_dword s23, s[{sBP_}:{sBP_+1}], {4*ROWB}
    s_load_dword s24, s[{sBP_}:{sBP_+1}], {5*ROWB}
    s_add_u32 s{sBP_}, s{sBP_}, {ROWB}
    s_addc_u32 s{sBP_+1}, s{sBP_+1}, 0
    {('s_setprio %d' % c.prio) if c.prio else ''}
""")
    if c.xt_by in ("front", "front1"):
        a(f"""
    v_lshrrev_b32 v21, 5, v{vL}
    v_mul_u32_u24 v21, {XMH}, v21
    v_and_b32 v22, 31, v{vL}
    v_lshl_add_u32 v21, v22, 7, v21
    s_mul_i32 s22, s{sRB}, {XRB}
    s_lshl_b32 s23, s{sJ}, 12
    s_add_u32 s22, s22, s23                   ; buffer 0
    s_add_u32 s23, s22, {XBUF}                ; buffer 1
    s_cmp_eq_u32 s{sWV}, 3
    s_cbranch_scc0 L_noxf1
    buffer_load_dword v{vDUM}, v21, s[{sWS}:{sWS+3}], s23 offen sc1
L_noxf1:""")
        if c.xt_by == "front":
            a(f"""    s_cmp_eq_u32 s{sWV}, 2
    s_cbranch_scc0 L_noxf0
    buffer_load_dword v{vDUM}, v21, s[{sWS}:{sWS+3}], s22 offen sc1
L_noxf0:""")
    if c.wwarm:
        a(f"""
    s_sub_u32 s{sT0}, s{sWV}, 1
    s_cmp_lt_u32 s{sT0}, {c.wwarm}
    s_cbranch_scc0 L_noww
    s_mul_i32 s{sT0}, s{sRB}, 13
    s_add_u32 s{sT0}, s{sT0}, s{sJ}
    s_mul_i32 s{sT0}, s{sT0}, {52 * 128}
    s_mul_i32 s{sT1}, s{sWV}, {c.wstride}
    s_add_u32 s20, s{sT0}, s{sT1}
    v_min_u32 v20, 51, v{vL}
    v_lshlrev_b32 v20, 7, v20
    buffer_load_dword v{vDUM}, v20, s[{sW}:{sW+3}], s20 offen
L_noww:""")
    a(f"""
    v_min_u32 v{vT0}, 51, v{vL}
    v_lshlrev_b32 v{vT0}, 3, v{vT0}
    s_add_u32 s{sT0}, s{sCB}, 2048
    v_add_u32 v{vFA}, s{sT0}, v{vT0}
    s_cmp_eq_u32 s{sWV}, 0
    s_cbranch_scc0 L_noft
    buffer_load_dword v{vDUM}, v{vFA}, s[{sWS}:{sWS+3}], 0 offen sc1
L_noft:
    s_lshl_b32 s{sT1}, s{sJ}, 2
    s_add_u32 s{sT1}, s{sT1}, s{sWV}
    s_lshl_b32 s{sT1}, s{sT1}, 3
    s_add_u32 s{sOWNF}, s{sT0}, s{sT1}
    v_min_u32 v{vT0}, 12, v{vL}
    v_lshlrev_b32 v{vT0}, 3, v{vT0}
    s_add_u32 s{sT0}, s{sCB}, 128
    v_add_u32 v{vHA}, s{sT0}, v{vT0}
""")
    srd(sOUT, 46, XLAYER)
    a(f"""
    ; ---- output address (final stores): row*1664 + j*128 + nh*64 + h*16
    s_lshl_b32 s{sT0}, s{sRB}, 6
    s_lshl_b32 s{sT1}, s{sMH}, 5
    s_add_u32 s{sT0}, s{sT0}, s{sT1}
    s_mul_i32 s{sT0}, s{sT0}, {ROWB}
    s_lshl_b32 s{sT1}, s{sJ}, 7
    s_add_u32 s{sT0}, s{sT0}, s{sT1}
    s_lshl_b32 s{sT1}, s{sKH}, 6
    s_add_u32 s{sT0}, s{sT0}, s{sT1}
    v_and_b32 v{vT0}, 31, v{vL}
    v_mul_u32_u24 v{vT0}, {ROWB}, v{vT0}
    v_lshrrev_b32 v{vT1}, 5, v{vL}
    v_lshl_add_u32 v{vT0}, v{vT1}, 4, v{vT0}
    v_add_u32 v{vOUT}, s{sT0}, v{vT0}
    v_lshlrev_b32 v{vXO}, 4, v{vL}
    v_add_u32 v{vXO+1}, 0x1000, v{vXO}
    v_add_u32 v{vXO+2}, 0x2000, v{vXO}
    v_add_u32 v{vXO+3}, 0x3000, v{vXO}
    s_mul_i32 s{sT0}, s{sRB}, {XRB}
    s_mul_i32 s{sT1}, s{sMH}, {XMH}
    s_add_u32 s{sT0}, s{sT0}, s{sT1}
    s_add_u32 s{sT0}, s{sT0}, {XBUF}
    s_lshl_b32 s{sT1}, s{sJ}, 2
    s_lshl_b32 s{sT2}, s{sKH}, 1
    s_add_u32 s{sT1}, s{sT1}, s{sT2}
    s_lshl_b32 s{sT1}, s{sT1}, 10
    s_add_u32 s{sXST}, s{sT0}, s{sT1}
""")
    if not c.helpers:
        a(f"""
    v_and_b32 v{vT1}, 15, v{vL}
    v_lshlrev_b32 v{vT1}, 7, v{vT1}
    v_bfe_u32 v{vT2}, v{vL}, 4, 1
    v_mul_u32_u24 v{vT2}, {XBUF >> 8}, v{vT2}
    v_lshl_add_u32 v{vT1}, v{vT2}, 8, v{vT1}
    s_sub_u32 s{sT3}, s{sXST}, {XBUF}
    buffer_load_dword v{vDUM}, v{vT1}, s[{sWS}:{sWS+3}], s{sT3} offen sc1
""")
    a(f"""
    s_mul_i32 s{sT1}, s{sKH}, 26
    s_add_u32 s{sT2}, s{sT1}, s{sROT}
    s_lshl_b32 s{sT2}, s{sT2}, 10
    s_add_u32 s{sXA}, s{sT0}, s{sT2}
    s_add_u32 s{sT2}, s{sT1}, 13
    s_sub_u32 s{sT2}, s{sT2}, s{sROT}
    s_lshl_b32 s{sT2}, s{sT2}, 10
    s_add_u32 s{sXB}, s{sT0}, s{sT2}
    s_mov_b32 s{sXD}, {-XBUF & 0xffffffff}
    s_mov_b32 s{sXD2}, {-XBUF & 0xffffffff}
    ; ---- W prefix bookkeeping for layer 1 (loaded at the end of layer 0)
    s_mul_i32 s{sT0}, s{sKH}, 416
    s_lshl_b32 s{sT1}, s{sROT}, 4
    s_add_u32 s{sT0}, s{sT0}, s{sT1}
    s_lshl_b32 s{sT1}, s{sMH}, 3
    s_add_u32 s{sT0}, s{sT0}, s{sT1}
    s_mul_i32 s{sWP}, s{sT0}, {ROWB}
    s_add_u32 s{sWP}, s{sWP}, {c.wstride}
    s_mul_i32 s{sMP}, s{sKH}, {P*2048}
    s_lshl_b32 s{sT1}, s{sMH}, 10
    s_add_u32 s{sMP}, s{sMP}, s{sT1}
    s_add_u32 s{sMP}, s{sMP}, {PRE1}
    s_mov_b32 s{sPD}, {PREPAR}
    v_lshrrev_b32 v{vT0}, 5, v{vL}            ; h
    v_lshlrev_b32 v{vT0}, 2, v{vT0}
    v_bfe_u32 v{vT1}, v{vL}, 2, 2             ; r
    v_add_u32 v{vT0}, v{vT0}, v{vT1}
    v_lshlrev_b32 v{vT0}, 7, v{vT0}           ; row*128
    v_bfe_u32 v{vT1}, v{vL}, 4, 1             ; nb
    v_lshlrev_b32 v{vT1}, 1, v{vT1}
    v_bfe_u32 v{vT2}, v{vL}, 1, 1             ; c>>1
    v_add_u32 v{vT1}, v{vT1}, v{vT2}
    v_bfe_u32 v{vT2}, v{vL}, 3, 1             ; (r>>1)&1
    v_lshlrev_b32 v{vT2}, 2, v{vT2}
    v_xor_b32 v{vT1}, v{vT1}, v{vT2}
    v_lshlrev_b32 v{vT1}, 4, v{vT1}
    v_add_u32 v{vT0}, v{vT0}, v{vT1}
    v_and_b32 v{vT1}, 1, v{vL}
    v_lshlrev_b32 v{vT1}, 3, v{vT1}
    v_add_u32 v{vT0}, v{vT0}, v{vT1}
    s_lshl_b32 s{sT0}, s{sKH}, 6
    v_xor_b32 v{vT1}, s{sT0}, v{vT0}          ; keep
    v_xor_b32 v{vT2}, 64, v{vT1}              ; send
    s_mul_i32 s{sT0}, s{sKH}, {P*2048}
    v_add_u32 v{vAPK}, s{sT0}, v{vT1}
    v_add_u32 v{vAPS}, s{sT0}, v{vT2}
    s_mul_i32 s{sT0}, s{sKH}, {KHS}
    s_add_u32 s{sT0}, s{sT0}, {SUF}
    v_add_u32 v{vASK}, s{sT0}, v{vT1}
    v_add_u32 v{vASS}, s{sT0}, v{vT2}
    s_lshl_b32 s{sT0}, s{sWV}, 12
    s_add_u32 s{sT0}, s{sT0}, {RED}
    v_add_u32 v{vRW}, s{sT0}, v{vXO}
    s_xor_b32 s{sT1}, s{sWV}, 2
    s_lshl_b32 s{sT1}, s{sT1}, 12
    s_add_u32 s{sT1}, s{sT1}, {RED}
    v_add_u32 v{vRR}, s{sT1}, v{vXO}
    v_lshrrev_b32 v{vT0}, 5, v{vL}
    v_lshlrev_b32 v{vT3}, 3, v{vT0}           ; h*8
    v_and_b32 v{vT0}, 31, v{vL}               ; m
    v_lshrrev_b32 v{vT1}, 3, v{vT0}
    v_lshlrev_b32 v{vT1}, 10, v{vT1}          ; rg*1024
    v_and_b32 v{vT2}, 7, v{vT0}
    v_lshl_add_u32 v{vT1}, v{vT2}, 7, v{vT1}  ; + row8*128
    v_bfe_u32 v{vT2}, v{vT0}, 1, 3            ; f(m)
    s_cmp_ge_u32 s{sJ}, 7
    s_cselect_b32 s{sT0}, 1, 0
    s_mul_i32 s{sT1}, s{sT0}, 6
    s_sub_u32 s{sT1}, s{sJ}, s{sT1}
    s_lshl_b32 s{sT1}, s{sT1}, 12
    s_lshl_b32 s{sT0}, s{sT0}, 1
    s_add_u32 s{sT0}, s{sT0}, s{sMH}
    s_mul_i32 s{sT0}, s{sT0}, 28672
    s_add_u32 s{sT0}, s{sT0}, s{sT1}
    s_add_u32 s{sT0}, s{sT0}, {XS}
    s_lshl_b32 s{sT1}, s{sKH}, 2
    v_add3_u32 v{vT3}, v{vT3}, v{vT1}, s{sT0}
    v_xor_b32 v{vT0}, s{sT1}, v{vT2}          ; (4*nh) ^ f(m)
""")
    for q in range(4):
        a(f"    v_xor_b32 v{vPART+8+q}, {q}, v{vT0}")
        a(f"    v_lshl_add_u32 v{vPART+8+q}, v{vPART+8+q}, 4, v{vT3}")
    a(f"""
    v_lshrrev_b32 v{vT0}, 5, v{vL}
    v_xor_b32 v{vT2}, v{vT2}, v{vT0}          ; f(m) ^ h
    s_mul_i32 s{sT3}, s{sWV}, 28672
    s_add_u32 s{sT3}, s{sT3}, {XS}
    s_mul_i32 s{sI}, s{sKH}, 26
    s_mul_i32 s{sM}, s{sKH}, 6
""")
    for seg in range(2):
        if seg == 0:
            a(f"    s_add_u32 s{sG}, s{sI}, s{sROT}")
        else:
            a(f"    s_add_u32 s{sG}, s{sI}, 13")
            a(f"    s_sub_u32 s{sG}, s{sG}, s{sROT}")
        for x in range(4):
            r = vPART + seg * 4 + x
            a(f"    s_add_u32 s{sT0}, s{sG}, {x}")
            a(f"    s_and_b32 s{sT1}, s{sT0}, 3")
            a(f"    s_lshl_b32 s{sT1}, s{sT1}, 1")
            a(f"    s_lshr_b32 s{sT0}, s{sT0}, 2")
            a(f"    s_sub_u32 s{sT0}, s{sT0}, s{sM}")
            a(f"    s_lshl_b32 s{sT0}, s{sT0}, 12")
            a(f"    s_add_u32 s{sT0}, s{sT0}, s{sT3}")
            a(f"    v_xor_b32 v{r}, s{sT1}, v{vT2}")
            a(f"    v_lshl_add_u32 v{r}, v{r}, 4, v{vT1}")
            a(f"    v_add_u32 v{r}, s{sT0}, v{r}")
    a(f"""
    s_waitcnt lgkmcnt(0)
    s_add_u32 s{sTA}, s{sE}, 1
    s_addc_u32 s{sTA+1}, s{sE+1}, 0
    s_add_u32 s{sTB}, s{sE}, 2
    s_addc_u32 s{sTB+1}, s{sE+1}, 0
    s_cmp_eq_u32 s{sWV}, 0
    s_cbranch_scc0 L_nohello
    s_add_u32 s{sT0}, s{sE}, 8
    s_addc_u32 s{sT1}, s{sE+1}, 0
    s_lshl_b32 s{sT2}, s{sXCC}, 28
    s_xor_b32 s{sT1}, s{sT1}, s{sT2}
    v_mov_b32 v{vPOLL}, s{sT0}
    v_mov_b32 v{vPOLL+1}, s{sT1}
    s_lshl_b32 s{sT2}, s{sJ}, 3
    s_add_u32 s{sT2}, s{sT2}, s{sCB}
    s_add_u32 s{sT2}, s{sT2}, 128
    s_mov_b64 exec, 1
    buffer_store_dwordx2 v[{vPOLL}:{vPOLL+1}], off, s[{sWS}:{sWS+3}], s{sT2} sc1
    s_mov_b64 exec, -1
L_nohello:
""")
    if c.w0assist or c.w0scal:
        a(f"""
    s_mul_i32 s{sT0}, s{sKH}, 416
    s_lshl_b32 s{sT1}, s{sROT}, 4
    s_add_u32 s{sT0}, s{sT0}, s{sT1}
    s_mul_i32 s{sT1}, s{sMH}, 14
    s_add_u32 s{sT0}, s{sT0}, s{sT1}
    s_add_u32 s{sT0}, s{sT0}, {P * 16}
    s_mul_i32 s{sT0}, s{sT0}, {ROWB}
    s_lshl_b32 s{sT1}, s{sJ}, 7
    s_add_u32 s{sT0}, s{sT0}, s{sT1}
    s_add_u32 s44, s42, s{sT0}
    s_addc_u32 s45, s43, 0
""")
        for n_ in range(14):
            if n_ == 7: a("    s_waitcnt lgkmcnt(0)")
            a(f"    s_load_dwordx2 s[{20+2*(n_%2)}:{21+2*(n_%2)}], s[44:45], {n_*ROWB + 60}")
    elif c.vwarm:
        nrows = c.SV * 16
        per_rb = nrows // 4
        a(f"""
    s_lshr_b32 s{sT0}, s{sRB}, 2
    s_mul_i32 s{sT0}, s{sT0}, 208             ; range start row: 0, 208, 416, 624
    s_and_b32 s{sT1}, s{sRB}, 3
    s_mul_i32 s{sT1}, s{sT1}, {per_rb}
    s_add_u32 s{sT0}, s{sT0}, s{sT1}
    s_mul_i32 s{sT1}, s{sWV}, {per_rb // 4}
    s_add_u32 s{sT0}, s{sT0}, s{sT1}
    s_mul_i32 s{sT0}, s{sT0}, {ROWB}
    s_lshl_b32 s{sT1}, s{sJ}, 7
    s_add_u32 s{sT0}, s{sT0}, s{sT1}
    s_add_u32 s{sT0}, s{sT0}, {c.wstride}
    s_add_u32 s44, s42, s{sT0}
    s_addc_u32 s45, s43, 0
""")
        nper = per_rb // 4
        vw = [(l, r) for l in range(1, 6) for r in range(nper)][:14]
        def vwarm_batch(k):
            cur = None
            for n_, (l, r) in enumerate(vw[7*k:7*k+7]):
                if cur != l:
                    a(f"    s_add_u32 s46, s44, {(l-1) * c.wstride}")
                    a(f"    s_addc_u32 s47, s45, 0")
                    cur = l
                a(f"    s_load_dwordx2 s[{20+2*(n_%2)}:{21+2*(n_%2)}], s[46:47], {r*ROWB + 60}")
        if c.vw1 == 'before_bx': vwarm_batch(0)
        if c.vw2 == 'wait':
            a("    s_waitcnt lgkmcnt(0)")
            vwarm_batch(1)
    stamp()
    a("    s_barrier                                 ; B_x: staged x0, prefix(0) and biases have landed")
    if c.amp and c.amp[0] == "bx":
        a("    s_memtime s[26:27]\n    s_waitcnt lgkmcnt(0)\n    s_sub_u32 s25, s26, s100")
    stamp()
    for q in range(4):
        a(f"    ds_read_b64 v[{vP+2*q}:{vP+2*q+1}], v{vPART+8+q}")
    for i in range(26):
        seg, ii = (0, i) if i < 13 else (1, i - 13)
        a(f"    ds_read_b128 v[{vXF+4*i}:{vXF+4*i+3}], v{vPART + seg*4 + (ii & 3)} offset:{(ii >> 2) * 4096}")
        if i in (9, 17):
            a("    s_waitcnt lgkmcnt(6)")
    a("    s_waitcnt lgkmcnt(0)")
    a("    s_barrier")
    if c.vwarm and not c.w0assist and not c.w0scal and c.vw1 == 'after_by': vwarm_batch(0)
    if c.vwarm and not c.w0assist and not c.w0scal and c.vw2 == 'after_by': vwarm_batch(1)
    if c.vwarm and c.vw2 == 'l0end_marker': pass
    stamp()
    for d in range(8):
        a(f"    v_lshlrev_b32 v{vX0F+2*d}, 16, v{vP+d}")
        a(f"    v_and_b32 v{vX0F+2*d+1}, 0xffff0000, v{vP+d}")
    bias_spread()
    bias_unpack()
    for r in range(16):
        a(f"    v_mov_b32 v{vXR+r}, v{vX0F+r}")
    a(f"    s_mov_b32 s{sL}, 0")
    a("    s_barrier                                 ; B_p: prefix of layer 0 has landed")
    if c.amp and c.amp[0] == "bp":
        a("    s_memtime s[26:27]\n    s_waitcnt lgkmcnt(0)\n    s_sub_u32 s25, s26, s100")
    stamp()

    def xload(i):
        if c.no_x:
            a("    s_nop 0"); return
        seg = sXA if i < 13 else sXB
        ii = i % 13
        a(f"    buffer_load_dwordx4 v[{vXF+4*i}:{vXF+4*i+3}], v{vXO+(ii>>2)}, s[{sWS}:{sWS+3}], s{seg} offen offset:{(ii&3)*1024} sc1")
    def rd(i, which):
        if c.no_w: return
        st = vWF + 8 * (i % nsets)
        if i < P: k, s_, off = vAPK, vAPS, i * 2048
        else: k, s_, off = vASK, vASS, (i - P) * 2048
        if which == "s":
            a(f"    ds_read_b64_tr_b16 v[{st}:{st+1}], v{s_} offset:{off}")
            a(f"    ds_read_b64_tr_b16 v[{st+2}:{st+3}], v{s_} offset:{off+1024}")
        else:
            a(f"    ds_read_b64_tr_b16 v[{st+4}:{st+5}], v{k} offset:{off}")
            a(f"    ds_read_b64_tr_b16 v[{st+6}:{st+7}], v{k} offset:{off+1024}")
    def pref_sched(i):
        if c.presched == "spread":
            t = i - (26 - P)
            return [t] if 0 <= t < P else []
        k = i - (26 - D)
        if k < 0: return []
        per_ = -(-P // D)
        return [t for t in range(k * per_, min(P, (k + 1) * per_))]
    def kloop(first):
        ops = []
        if first:
            for i in range(PF):
                rd(i, "s"); rd(i, "k")
        else:
            xload(0); ops.append(("x", 0))
            rd(0, "s"); rd(0, "k")
            xload(1); ops.append(("x", 1))
            rd(1, "s"); rd(1, "k")
            nrest = D - 2
            cuts = [8 * k // nrest for k in range(nrest + 1)]
            for k in range(nrest):
                bias_unpack(cuts[k], cuts[k + 1])
                xload(2 + k); ops.append(("x", 2 + k))
        bars = (([P] + list(c.chunks0)) if (c.hello_by == 'compute' and not c.swarm) else [P, 13, 20]) if first else [P]
        assert P < 13
        marks = [0, 1, 2, 4, 8, 12, 16, 20, 25]
        for i in range(26):
            a(f"    ; ---- step {i}")
            if TS == 4 and not first and i in marks:
                a(f"    s_memtime s[{80 + 2*marks.index(i)}:{81 + 2*marks.index(i)}]")
            young = sum(4 for t in range(i + 1, min(i + PF - 1, 25) + 1))
            if first:
                a(f"    s_waitcnt lgkmcnt({young})")
            else:
                nv = len(ops) - 1 - ops.index(("x", i))
                a(f"    s_waitcnt vmcnt({nv}) lgkmcnt({young})")
            st = vWF + 8 * (i % nsets)
            xf = vXF + 4 * i
            cs = "0" if i == 0 else f"v[{vAS}:{vAS+15}]"
            if c.fake16:
                q_ = (i % 2) * 8
                a(f"    v_mfma_f32_16x16x32_bf16 v[{vAS+q_}:{vAS+q_+3}], v[{st}:{st+3}], v[{xf}:{xf+3}], v[{vAS+q_}:{vAS+q_+3}]")
                a(f"    v_mfma_f32_16x16x32_bf16 v[{vAS+q_+4}:{vAS+q_+7}], v[{st}:{st+3}], v[{xf}:{xf+3}], v[{vAS+q_+4}:{vAS+q_+7}]")
            else:
                a(f"    v_mfma_f32_32x32x16_bf16 v[{vAS}:{vAS+15}], v[{st}:{st+3}], v[{xf}:{xf+3}], {cs}" if not c.no_mfma else "    s_nop 7")
            if not first and i == 1:
                a(f"""    s_add_u32 s{sTA}, s{sTA}, 1
    s_addc_u32 s{sTA+1}, s{sTA+1}, 0""")
            if not first and i == 2:
                a(f"""    s_add_u32 s{sTB}, s{sTB}, 1
    s_addc_u32 s{sTB+1}, s{sTB+1}, 0""")
            if i + PF in bars:
                a("    s_barrier")
            if first and i == c.hello_step and c.hello_by != 'loader':
                a(f"    buffer_load_dwordx2 v[{vPOLL}:{vPOLL+1}], v{vHA}, s[{sWS}:{sWS+3}], 0 offen sc1")
            if not first and i + D < 26:
                xload(i + D); ops.append(("x", i + D))
            if c.pre_by == "loader":
                if i == c.mid_step: a("    s_barrier                                 ; B_mid: the x loads are all issued")
                if i == c.prog_step and c.prog_at == "mid":
                    lab = "L_noprogA" if first else "L_noprogB"
                    a(f"""    s_or_b32 s{sT0}, s{sJ}, s{sWV}
    s_cmp_eq_u32 s{sT0}, 0
    s_cbranch_scc0 {lab}
    v_mov_b32 v{vPOL2}, s{sTA}
    v_mov_b32 v{vPOL2+1}, s{sTA+1}
    s_add_u32 s{sT0}, s{sCB}, 3072
    buffer_store_dwordx2 v[{vPOL2}:{vPOL2+1}], off, s[{sWS}:{sWS+3}], s{sT0}
{lab}:""")
            else:
                for t in ([] if c.no_pre else pref_sched(i)):
                    a(f"    s_add_u32 m0, s{sMP}, {t*2048}")
                    a(f"    s_add_u32 s{sT0}, s{sWP}, {t*26624}")
                    a(f"    buffer_load_dwordx4 v{vDMA}, s[{sW}:{sW+3}], s{sT0} offen lds")
                    ops.append(("w", t))
            if i + PF < 26: rd(i + PF, "s")
            if c.fake16:
                q_ = (i % 2) * 8
                a(f"    v_mfma_f32_16x16x32_bf16 v[{vAK+q_}:{vAK+q_+3}], v[{st+4}:{st+7}], v[{xf}:{xf+3}], v[{vAK+q_}:{vAK+q_+3}]")
                a(f"    v_mfma_f32_16x16x32_bf16 v[{vAK+q_+4}:{vAK+q_+7}], v[{st+4}:{st+7}], v[{xf}:{xf+3}], v[{vAK+q_+4}:{vAK+q_+7}]")
            else:
                a(f"    v_mfma_f32_32x32x16_bf16 v[{vAK}:{vAK+15}], v[{st+4}:{st+7}], v[{xf}:{xf+3}], v[{vAK}:{vAK+15}]" if not c.no_mfma else "    s_nop 7")
            if i + PF < 26: rd(i + PF, "k")
        return len([o for o in ops if o[0] == "w"])
    npre = kloop(True)
    if c.hello_by == "loader":
        a(f"""    v_mov_b32 v{vT0}, {MODEW}
    ds_read_b32 v{vT1}, v{vT0}
    s_waitcnt lgkmcnt(0)
    v_readfirstlane_b32 s{sMODE}, v{vT1}""")
        a(f"""
    s_cmp_eq_u32 s{sMODE}, 0
    s_cbranch_scc1 L_hello_slow
    s_and_b32 s{sMODE}, s{sMODE}, {0 if c.force_slow else 1}
    s_branch L_tail
L_hello_slow:
    buffer_load_dwordx2 v[{vPOLL}:{vPOLL+1}], v{vHA}, s[{sWS}:{sWS+3}], 0 offen sc1""")
    a(f"""
    s_add_u32 s{sT0}, s{sE}, 8
    s_addc_u32 s{sT1}, s{sE+1}, 0
    s_mov_b32 s{sSPIN}, 0
    s_waitcnt vmcnt({0 if c.hello_by == "loader" else npre})
    s_and_b32 s{sT2}, s{sT1}, 0x0fffffff
    s_lshl_b32 s{sT3}, s{sXCC}, 28
    s_xor_b32 s{sT3}, s{sT1}, s{sT3}
L_hello:
    v_and_b32 v{vT0}, 0x0fffffff, v{vPOLL+1}
    v_cmp_eq_u32 vcc, s{sT0}, v{vPOLL}
    v_cmp_eq_u32 s[{sMK}:{sMK+1}], s{sT2}, v{vT0}
    s_and_b64 vcc, vcc, s[{sMK}:{sMK+1}]
    s_cmp_eq_u64 vcc, -1
    s_cbranch_scc1 L_hello_ok
    s_add_u32 s{sSPIN}, s{sSPIN}, 1
    s_cmp_gt_u32 s{sSPIN}, {c.spin_max}
    s_cbranch_scc1 L_end
    buffer_load_dwordx2 v[{vPOLL}:{vPOLL+1}], v{vHA}, s[{sWS}:{sWS+3}], 0 offen sc1
    s_waitcnt vmcnt(0)
    s_branch L_hello
L_hello_ok:
    v_cmp_eq_u32 vcc, s{sT3}, v{vPOLL+1}
    s_cmp_eq_u64 vcc, -1
    s_cselect_b32 s{sMODE}, {0 if c.force_slow else 1}, 0
    s_branch L_tail
""")
    assert sT1 == sT0 + 1 and sT0 % 2 == 0
    a("L_layer2:")
    stamp()
    kloop(False)
    if TS == 4:
        a("    s_memtime s[98:99]")
        a("    s_waitcnt lgkmcnt(0)")
        for k in range(10):
            a(f"    s_mov_b32 m0, s{sTSI}")
            a(f"    s_nop 0")
            a(f"    v_writelane_b32 v{vTS}, s{80+2*k}, m0")
            a(f"    s_add_u32 s{sTSI}, s{sTSI}, 1")
    a("L_tail:")
    if c.amp and c.amp[0] == "l0k":
        a(f"""    s_cmp_eq_u32 s{sL}, 0
    s_cbranch_scc0 L_amp2
    s_memtime s[26:27]
    s_waitcnt lgkmcnt(0)
    s_sub_u32 s25, s26, s100
L_amp2:""")
    if TS in (2, 3):
        a("    s_nop 15")
        stamp()
    a(f"    v_mov_b32 v{vFV}, s{sTA}")
    a(f"    v_mov_b32 v{vFV+1}, s{sTA+1}")
    a("    s_nop 8")
    for q in range(4):
        a(f"    ds_write_b128 v{vRW}, v[{vAS+4*q}:{vAS+4*q+3}] offset:{q*1024}")
    if c.epi2:
        a("    s_nop 0")
        for r in range(0, 16, 2):
            a(f"    v_pk_fma_f32 v[{vAK+r}:{vAK+r+1}], v[{vX0F+r}:{vX0F+r+1}], v[{vAK+r}:{vAK+r+1}], v[{vXR+r}:{vXR+r+1}]")
    a("    s_waitcnt lgkmcnt(0)")
    a("    s_barrier                                 ; B2")
    stamp(3)
    for q in range(4):
        a(f"    ds_read_b128 v[{vPART+4*q}:{vPART+4*q+3}], v{vRR} offset:{q*1024}")
    def epi(q):
        a(f"    s_waitcnt lgkmcnt({3-q})")
        if c.epi2:
            for p in range(2):
                r = 4 * q + 2 * p
                a(f"    v_pk_fma_f32 v[{vAK+r}:{vAK+r+1}], v[{vX0F+r}:{vX0F+r+1}], v[{vPART+r}:{vPART+r+1}], v[{vAK+r}:{vAK+r+1}]")
        else:
            for p in range(2):
                r = 4 * q + 2 * p
                a(f"    v_pk_add_f32 v[{vAK+r}:{vAK+r+1}], v[{vAK+r}:{vAK+r+1}], v[{vPART+r}:{vPART+r+1}]")
            for p in range(2):
                r = 4 * q + 2 * p
                a(f"    v_pk_fma_f32 v[{vAK+r}:{vAK+r+1}], v[{vX0F+r}:{vX0F+r+1}], v[{vAK+r}:{vAK+r+1}], v[{vXR+r}:{vXR+r+1}]")
        for p in range(2):
            r = 4 * q + 2 * p
            a(f"    v_cvt_pk_bf16_f32 v{vP+2*q+p}, v{vAK+r}, v{vAK+r+1}")
    a(f"""
    s_cmp_eq_u32 s{sL}, 5
    s_cbranch_scc1 L_final
    s_cmp_eq_u32 s{sMODE}, 0
    s_cbranch_scc1 L_st_slow
""")
    epi(0); epi(1)
    a(f"    buffer_store_dwordx4 v[{vP}:{vP+3}], v{vXO}, s[{sWS}:{sWS+3}], s{sXST} offen")
    epi(2); epi(3)
    a(f"    buffer_store_dwordx4 v[{vP+4}:{vP+7}], v{vXO}, s[{sWS}:{sWS+3}], s{sXST} offen offset:1024")
    if c.phased: a("    s_barrier                                 ; B_s")
    stamp(3)
    def unpack_res():
        for d in range(8):
            a(f"    v_lshlrev_b32 v{vXR+2*d}, 16, v{vP+d}")
            a(f"    v_and_b32 v{vXR+2*d+1}, 0xffff0000, v{vP+d}")
    bias_load()
    unpack_res()
    a(f"""
    s_waitcnt vmcnt(0)
    buffer_store_dwordx2 v[{vFV}:{vFV+1}], off, s[{sWS}:{sWS+3}], s{sOWNF}
    s_branch L_st_done
L_st_slow:
""")
    epi(0); epi(1); epi(2); epi(3)
    a(f"""
    buffer_store_dwordx4 v[{vP}:{vP+3}], v{vXO}, s[{sWS}:{sWS+3}], s{sXST} offen sc1
    buffer_store_dwordx4 v[{vP+4}:{vP+7}], v{vXO}, s[{sWS}:{sWS+3}], s{sXST} offen offset:1024 sc1
""")
    if c.phased: a("    s_barrier                                 ; B_s")
    stamp(3)
    bias_load()
    unpack_res()
    a(f"""
    s_waitcnt vmcnt(0)
    buffer_store_dwordx2 v[{vFV}:{vFV+1}], off, s[{sWS}:{sWS+3}], s{sOWNF} sc1
L_st_done:
""")
    stamp()
    if c.onepoll:
        a(f"""
    s_cmp_eq_u32 s{sWV}, 0
    s_cbranch_scc0 L_nopoll1""")
    a(f"""
    buffer_load_dwordx2 v[{vPOLL}:{vPOLL+1}], v{vFA}, s[{sWS}:{sWS+3}], 0 offen sc1
L_nopoll1:
    {"s_barrier                                 ; B_f" if c.phased else ""}
""")
    def progress(lab):
        a(f"""    s_or_b32 s{sT0}, s{sJ}, s{sWV}
    s_cmp_eq_u32 s{sT0}, 0
    s_cbranch_scc0 {lab}
    s_add_u32 s{sT0}, s{sCB}, 3072
    buffer_store_dwordx2 v[{vFV}:{vFV+1}], off, s[{sWS}:{sWS+3}], s{sT0}
{lab}:""")
    if c.prog_at == "end": progress("L_noprog")
    a(f"""
    s_add_u32 s{sL}, s{sL}, 1
    s_cmp_eq_u32 s{sL}, 1
    s_cbranch_scc1 L_keep_xa
    s_add_u32 s{sXA}, s{sXA}, s{sXD}
    s_add_u32 s{sXB}, s{sXB}, s{sXD}
    s_sub_u32 s{sXD}, 0, s{sXD}
L_keep_xa:
    s_add_u32 s{sXST}, s{sXST}, s{sXD2}
    s_sub_u32 s{sXD2}, 0, s{sXD2}
    s_add_u32 s{sWP}, s{sWP}, {c.wstride}
    s_sub_u32 s{sMP}, s{sMP}, s{sPD}
    v_add_u32 v{vAPK}, s{sPD}, v{vAPK}
    v_add_u32 v{vAPS}, s{sPD}, v{vAPS}
    s_sub_u32 s{sPD}, 0, s{sPD}
    s_mov_b32 s{sSPIN}, 0
""")
    a("    s_waitcnt lgkmcnt(0)")
    bias_spread()
    if c.onepoll:
        a(f"""
    s_cmp_eq_u32 s{sWV}, 0
    s_cbranch_scc0 L_ready""")
    if c.poll2:
        a(f"""L_poll:
    buffer_load_dwordx2 v[{vPOL2}:{vPOL2+1}], v{vFA}, s[{sWS}:{sWS+3}], 0 offen sc1
    s_waitcnt vmcnt(1)
    v_cmp_eq_u64 vcc, s[{sTA}:{sTA+1}], v[{vPOLL}:{vPOLL+1}]
    v_cmp_eq_u64 s[{sMK}:{sMK+1}], s[{sTB}:{sTB+1}], v[{vPOLL}:{vPOLL+1}]
    s_or_b64 vcc, vcc, s[{sMK}:{sMK+1}]
    s_cmp_eq_u64 vcc, -1
    s_cbranch_scc1 L_ready
    buffer_load_dwordx2 v[{vPOLL}:{vPOLL+1}], v{vFA}, s[{sWS}:{sWS+3}], 0 offen sc1
    s_waitcnt vmcnt(1)
    v_cmp_eq_u64 vcc, s[{sTA}:{sTA+1}], v[{vPOL2}:{vPOL2+1}]
    v_cmp_eq_u64 s[{sMK}:{sMK+1}], s[{sTB}:{sTB+1}], v[{vPOL2}:{vPOL2+1}]
    s_or_b64 vcc, vcc, s[{sMK}:{sMK+1}]
    s_cmp_eq_u64 vcc, -1
    s_cbranch_scc1 L_ready
    s_add_u32 s{sSPIN}, s{sSPIN}, 1
    s_cmp_gt_u32 s{sSPIN}, {c.spin_max}
    s_cbranch_scc0 L_poll
    s_endpgm
""")
    else:
        a(f"""L_poll:
    s_waitcnt vmcnt(0)
    v_cmp_eq_u64 vcc, s[{sTA}:{sTA+1}], v[{vPOLL}:{vPOLL+1}]
    v_cmp_eq_u64 s[{sMK}:{sMK+1}], s[{sTB}:{sTB+1}], v[{vPOLL}:{vPOLL+1}]
    s_or_b64 vcc, vcc, s[{sMK}:{sMK+1}]
    s_cmp_eq_u64 vcc, -1
    s_cbranch_scc1 L_ready
    buffer_load_dwordx2 v[{vPOLL}:{vPOLL+1}], v{vFA}, s[{sWS}:{sWS+3}], 0 offen sc1
    s_add_u32 s{sSPIN}, s{sSPIN}, 1
    s_cmp_gt_u32 s{sSPIN}, {c.spin_max}
    s_cbranch_scc0 L_poll
    s_endpgm
""")
    a(f"""L_ready:
""")
    if c.amp and c.amp[0] == "start":
        a(f"""    s_cmp_eq_u32 s{sL}, 1
    s_cbranch_scc0 L_amp1
    s_memtime s[26:27]
    s_waitcnt lgkmcnt(0)
    s_sub_u32 s25, s26, s100
L_amp1:""")
    stamp(1)
    a(f"""
    s_barrier                                 ; B_a
    s_branch L_layer2
L_final:
""")
    epi(0); epi(1); epi(2); epi(3)
    a(f"""
    s_nop 1
    v_permlane32_swap_b32 v{vP}, v{vP+2}
    v_permlane32_swap_b32 v{vP+1}, v{vP+3}
    v_permlane32_swap_b32 v{vP+4}, v{vP+6}
    v_permlane32_swap_b32 v{vP+5}, v{vP+7}
""")
    if c.amp and c.amp[0] == "fin":
        a("    s_memtime s[100:101]\n    s_waitcnt lgkmcnt(0)")
    a(f"""
    buffer_store_dwordx4 v[{vP}:{vP+3}], v{vOUT}, s[{sOUT}:{sOUT+3}], 0 offen
    buffer_store_dwordx4 v[{vP+4}:{vP+7}], v{vOUT}, s[{sOUT}:{sOUT+3}], 0 offen offset:32
""")
    if c.amp and c.amp[0] == "fin":
        a("    s_waitcnt vmcnt(0)\n    s_memtime s[26:27]\n    s_waitcnt lgkmcnt(0)\n    s_sub_u32 s25, s26, s100")
    a(f"""
    s_or_b32 s{sT0}, s{sJ}, s{sWV}
    s_cmp_eq_u32 s{sT0}, 0
    s_cbranch_scc0 L_noepoch
    s_add_u32 s{sT0}, s{sE}, 16
    s_addc_u32 s{sT1}, s{sE+1}, 0
    v_mov_b32 v{vFV}, s{sT0}
    v_mov_b32 v{vFV+1}, s{sT1}
    s_mov_b64 exec, 1
    buffer_store_dwordx2 v[{vFV}:{vFV+1}], off, s[{sWS}:{sWS+3}], s{sCB} sc1
    s_mov_b64 exec, -1
L_noepoch:
""")
    if c.amp:
        if c.amp[0] in ("total", "totalrt"):
            a(("    s_memtime s[26:27]" if c.amp[0] == "total" else "    s_memrealtime s[26:27]") + """
    s_waitcnt lgkmcnt(0)
    s_sub_u32 s25, s26, s100""")
        tm = "s_memrealtime" if c.amp[0] == "totalrt" else "s_memtime"
        a(f"""    s_cmp_eq_u32 s2, 0
    s_cbranch_scc0 L_amp9
    s_mul_i32 s25, s25, {c.amp[1]}
    {tm} s[80:81]
    s_waitcnt lgkmcnt(0)
L_ampspin:
    {tm} s[82:83]
    s_waitcnt lgkmcnt(0)
    s_sub_u32 s82, s82, s80
    s_cmp_lt_u32 s82, s25
    s_cbranch_scc1 L_ampspin
L_amp9:""")
    if c.exp_delay or c.exp_rt:
        ins = "s_memtime" if c.exp_delay else "s_memrealtime"
        a(f"""
    {ins} s[80:81]
    s_waitcnt lgkmcnt(0)
L_expd:
    {ins} s[82:83]
    s_waitcnt lgkmcnt(0)
    s_sub_u32 s82, s82, s80
    s_cmp_lt_u32 s82, {c.exp_delay or c.exp_rt}
    s_cbranch_scc1 L_expd
""")
    stamp(1); dump_ts()
    a("    s_endpgm")

    if c.helpers:
        HPR = (c.SV * 16 + (2 * NSR if c.sp else 0)) if c.hp is None else c.hp * 16
        HP = HPR // 16
        nrow = 208 - HPR
        nline = nrow * 13
        tot = 4 * nline
        nins = (tot + 63) // 64
        cdelta = HPR * ROWB
        NK = -(-nins // 48)
        HF = 1 if ((c.h0 == 'prefix' or c.w0assist or c.w0scal or c.w0t) and c.hfirst == 0) else c.hfirst
        a(f"""
L_helper:
""")
        if c.probe:
            a(f"""
    s_cmp_eq_u32 s2, 208
    s_cbranch_scc0 L_noprobe
    s_cmp_eq_u32 s{sWV}, 0
    s_cbranch_scc0 L_noprobe
    s_mov_b32 s20, {c.probe_off + 16384}
    buffer_load_dword v30, off, s[{sW}:{sW+3}], s20
    s_waitcnt vmcnt(0)
    s_mov_b32 s20, {c.probe_off}
    s_memtime s[22:23]
    s_waitcnt lgkmcnt(0)
    buffer_load_dword v30, off, s[{sW}:{sW+3}], s20
    s_waitcnt vmcnt(0)
    s_memtime s[24:25]
    s_waitcnt lgkmcnt(0)
    s_sub_u32 s24, s24, s22
    s_mul_i32 s24, s24, {c.probe}
L_pspin:
    s_memtime s[26:27]
    s_waitcnt lgkmcnt(0)
    s_sub_u32 s26, s26, s22
    s_cmp_lt_u32 s26, s24
    s_cbranch_scc1 L_pspin
    s_endpgm
L_noprobe:""")
        a(f"""
    ; L2 prefetch for the workers of this die (placement assumed for speed only): one dword per 128-byte line
    s_sub_u32 s{sT0}, s2, 208
    s_and_b32 s{sT1}, s{sT0}, 7
    s_lshr_b32 s{sT0}, s{sT0}, 3
    s_lshl_b32 s{sT0}, s{sT0}, 3
    s_add_u32 s{sT0}, s{sT0}, s{sWV}          ; g = 0..47
    s_lshl_b32 s{sCB}, s{sT1}, 13
    s_add_u32 s{sCB}, s{sCB}, {CTRL}
    s_load_dwordx2 s[{sE}:{sE+1}], s[50:51], s{sCB}
    s_add_u32 s{sOWNF}, s{sCB}, 3072
""")
        if c.tlbwarm:
            a(f"""
    s_cmp_eq_u32 s{sWV}, 7
    s_cbranch_scc0 L_notlb
""")
            k_ = 0
            for base, offs in ((46, [0, XLAYER - 64]), (50, [0, XBUF - 64, XBUF + (1 << 20), 2 * XBUF - 64, 2 * XBUF + 65536 - 64]),
                               (42, [1 << 21, 2 << 21, 3 << 21, L_ * WLAYER - 64])):
                for off in offs:
                    a(f"""    s_add_u32 s24, s{base}, {off}
    s_addc_u32 s25, s{base+1}, 0
    s_load_dword s{76+k_}, s[24:25], 0""")
                    k_ += 1
            a("L_notlb:")
        a(f"""
    ; exchange-buffer lines of the die's two row blocks: {2*XRB//128} lines
    s_mul_i32 s{sG}, s{sT1}, {2*XRB}
    s_lshl_b32 s{sI}, s{sT0}, 13
    s_add_u32 s{sG}, s{sG}, s{sI}
    v_lshlrev_b32 v19, 7, v{vL}
    v_add_u32 v19, s{sG}, v19
    s_cmp_lt_u32 s{sT0}, {-(-2*XRB // 8192)}
    s_cselect_b32 s{sM}, 1, 0
""")
        def lane_addr(vdst, nline_, base0, delta):
            tot_ = 4 * nline_
            a(f"""
    s_lshl_b32 s{sI}, s{sI}, 6
    v_add_u32 v{vT0}, s{sI}, v{vL}
    v_mov_b32 v{vT1}, {base0}
    v_cmp_le_u32 vcc, {nline_}, v{vT0}
    v_mov_b32 v{vT2}, 0
    v_mov_b32 v{vT3}, {delta}
    v_cndmask_b32 v{vT2}, v{vT2}, v{vT3}, vcc
    v_add_u32 v{vT1}, v{vT1}, v{vT2}
    v_cmp_le_u32 vcc, {2*nline_}, v{vT0}
    v_mov_b32 v{vT2}, 0
    s_nop 0
    v_cndmask_b32 v{vT2}, v{vT2}, v{vT3}, vcc
    v_add_u32 v{vT1}, v{vT1}, v{vT2}
    v_cmp_le_u32 vcc, {3*nline_}, v{vT0}
    v_mov_b32 v{vT2}, 0
    s_nop 0
    v_cndmask_b32 v{vT2}, v{vT2}, v{vT3}, vcc
    v_add_u32 v{vT1}, v{vT1}, v{vT2}
    v_lshl_add_u32 v{vdst}, v{vT0}, 7, v{vT1}
    v_cmp_le_u32 vcc, {tot_}, v{vT0}
    v_mov_b32 v{vT2}, 0x7ffffff0
    s_nop 0
    v_cndmask_b32 v{vdst}, v{vdst}, v{vT2}, vcc""")
        def need_set(vbase, skip_rows, nrows):
            tot_ = nrows * 52
            nins_ = (tot_ + 63) // 64
            nk = -(-nins_ // 48)
            for k in range(nk):
                a(f"""
    s_add_u32 s{sI}, s{sT0}, {48*k}
    s_lshl_b32 s{sI}, s{sI}, 6
    v_add_u32 v{vT0}, s{sI}, v{vL}
    v_mul_u32_u24 v{vT1}, 80660, v{vT0}
    v_lshrrev_b32 v{vT1}, 22, v{vT1}
    v_mul_u32_u24 v{vT2}, 52, v{vT1}
    v_sub_u32 v{vT2}, v{vT0}, v{vT2}          ; rem
    v_mul_u32_u24 v{vT3}, 5042, v{vT2}
    v_lshrrev_b32 v{vT3}, 16, v{vT3}
    v_mul_u32_u24 v{vbase+k}, 13, v{vT3}
    v_sub_u32 v{vT2}, v{vT2}, v{vbase+k}
    v_mul_u32_u24 v{vT3}, 208, v{vT3}
    v_add_u32 v{vT1}, v{vT1}, v{vT3}
    v_add_u32 v{vT1}, {skip_rows}, v{vT1}     ; row
    v_mul_u32_u24 v{vT1}, {ROWB}, v{vT1}
    v_lshl_add_u32 v{vbase+k}, v{vT2}, 7, v{vT1}
    v_cmp_le_u32 vcc, {tot_}, v{vT0}
    v_mov_b32 v{vT2}, 0x7ffffff0
    s_nop 0
    v_cndmask_b32 v{vbase+k}, v{vbase+k}, v{vT2}, vcc""")
            return nk
        def addr_set(vbase, nline_, base0, delta, tag):
            tot_ = 4 * nline_
            nins_ = (tot_ + 63) // 64
            nk = -(-nins_ // 48)
            a(f"    s_mul_i32 s{sT2}, s{sT1}, {nins_ // 8}")
            for k in range(nk):
                a(f"""
    s_add_u32 s{sT3}, s{sT0}, {48*k}
    s_add_u32 s{sI}, s{sT3}, s{sT2}
    s_cmp_ge_u32 s{sI}, {nins_}
    s_cselect_b32 s{sG}, {nins_}, 0
    s_sub_u32 s{sI}, s{sI}, s{sG}
    s_cmp_ge_u32 s{sT3}, {nins_}
    s_cselect_b32 s{sI}, {nins_ + 8}, s{sI}   ; no k-th instruction -> past the end""")
                lane_addr(vbase + k, nline_, base0, delta)
            return nk
        if c.hx0:
            a(f"""
    s_cmp_eq_u32 s{sM}, 1
    s_cbranch_scc0 L_nohx0
    buffer_load_dword v28, v19, s[{sX0}:{sX0+3}], 0 offen
L_nohx0:""")
        NK0 = 0
        if (c.w0assist or c.w0scal or c.w0t) and c.hfirst == 0:
            skip0 = P * 16 + (60 if c.w0assist else (32 if c.w0t else 28))
            NK0 = addr_set(40, (208 - skip0) * 13, skip0 * ROWB, skip0 * ROWB, "p")
            for k in range(NK0):
                a(f"    buffer_load_dword v{50+k}, v{40+k}, s[{sW}:{sW+3}], 0 offen")
        elif c.h0 == "prefix" and c.hfirst == 0:
            NK0 = addr_set(40, HP * 16 * 13, 0, (13 - HP) * 26624, "p")
            for k in range(NK0):
                a(f"    buffer_load_dword v{50+k}, v{40+k}, s[{sW}:{sW+3}], 0 offen")
        if c.horder == "need": need_set(10, HPR, nrow)
        else: addr_set(10, nline, cdelta, cdelta, "h")
        nshare_l = tot // 8
        NW_ = 14
        if c.hwarm:
            a(f"""
    s_mul_i32 s{sI}, s{sT1}, {nshare_l}
    s_mul_i32 s{sG}, s{sT0}, {NW_}
    s_add_u32 s{sI}, s{sI}, s{sG}
    s_mov_b32 s{sG}, {cdelta}
    s_cmp_ge_u32 s{sI}, {nline}
    s_cselect_b32 s{sT3}, {cdelta}, 0
    s_add_u32 s{sG}, s{sG}, s{sT3}
    s_cmp_ge_u32 s{sI}, {2*nline}
    s_cselect_b32 s{sT3}, {cdelta}, 0
    s_add_u32 s{sG}, s{sG}, s{sT3}
    s_cmp_ge_u32 s{sI}, {3*nline}
    s_cselect_b32 s{sT3}, {cdelta}, 0
    s_add_u32 s{sG}, s{sG}, s{sT3}
    s_lshl_b32 s{sI}, s{sI}, 7
    s_add_u32 s{sI}, s{sI}, s{sG}
    s_add_u32 s{sI}, s{sI}, {c.wstride}
    s_add_u32 s44, s42, s{sI}                 ; layer 1
    s_addc_u32 s45, s43, 0""")
        if c.hvec_warm:
            a(f"""
    ; memory-side cache warm-up: lines [die*1352, +1352) of a later layer, one line per lane; waves g < 22 (and g - 22 < 22 at the start)
    s_cmp_ge_u32 s{sT0}, 22
    s_cselect_b32 s{sG}, 22, 0
    s_cselect_b32 s{sWG}, 1, 0
    s_sub_u32 s{sG}, s{sT0}, s{sG}
    s_lshl_b32 s{sG}, s{sG}, 6
    s_mul_i32 s{sI}, s{sT1}, 1352
    s_add_u32 s{sI}, s{sI}, s{sG}
    v_add_u32 v{vT0}, s{sI}, v{vL}
    v_lshlrev_b32 v18, 7, v{vT0}
    v_add_u32 v{vT1}, s{sG}, v{vL}
    v_cmp_le_u32 vcc, 1352, v{vT1}
    v_mov_b32 v{vT2}, 0x7ffffff0
    s_nop 0
    v_cndmask_b32 v18, v18, v{vT2}, vcc""")
        nv_l = c.SV * 16 * 52 // 8
        if c.hvwarm:
            a(f"""
    s_mul_i32 s{sI}, s{sT1}, {nv_l}
    s_mul_i32 s{sG}, s{sT0}, 7
    s_min_u32 s{sG}, s{sG}, {nv_l - 7}
    s_add_u32 s{sI}, s{sI}, s{sG}
    s_mov_b32 s{sG}, 0
    s_cmp_ge_u32 s{sI}, {c.SV * 16 * 13}
    s_cselect_b32 s{sT3}, {(208 - c.SV * 16) * ROWB}, 0
    s_add_u32 s{sG}, s{sG}, s{sT3}
    s_cmp_ge_u32 s{sI}, {2 * c.SV * 16 * 13}
    s_cselect_b32 s{sT3}, {(208 - c.SV * 16) * ROWB}, 0
    s_add_u32 s{sG}, s{sG}, s{sT3}
    s_cmp_ge_u32 s{sI}, {3 * c.SV * 16 * 13}
    s_cselect_b32 s{sT3}, {(208 - c.SV * 16) * ROWB}, 0
    s_add_u32 s{sG}, s{sG}, s{sT3}
    s_lshl_b32 s{sI}, s{sI}, 7
    s_add_u32 s{sI}, s{sI}, s{sG}
    s_add_u32 s{sI}, s{sI}, {c.wstride}
    s_add_u32 s46, s42, s{sI}                 ; layer 1
    s_addc_u32 s47, s43, 0""")
        if NK0 and c.hwarm:
            a("    s_waitcnt lgkmcnt(0)")
            for half in range(2):
                if half: a("    s_waitcnt lgkmcnt(0)")
                for n_ in range(7 * half, 7 * half + 7):
                    a(f"    s_load_dwordx2 s[{76+2*(n_%7)}:{77+2*(n_%7)}], s[44:45], {n_*128 + 60}")
            a(f"    s_add_u32 s44, s44, {c.wstride}")
            a(f"    s_addc_u32 s45, s45, 0")
        if NK0:
            a(f"""
    s_waitcnt vmcnt(0)
    s_barrier
    s_cmp_eq_u32 s{sM}, 1
    s_cbranch_scc0 L_hx1
    s_mov_b32 s{sI}, {XBUF}
    buffer_load_dword v30, v19, s[{sWS}:{sWS+3}], s{sI} offen sc1
L_hx1:
""")
        a(f"""
    v_mov_b32 v20, 0
    s_mov_b32 s{sL}, {HF}
    s_mov_b32 s{sT3}, {HF * c.wstride}
    s_waitcnt lgkmcnt(0)
L_h_layer:
""")
        if c.hpace:
            a(f"""
    ; before layer m wait (bounded) until the workers have finished layer m-{c.hlook}
    s_cmp_lt_u32 s{sL}, {c.hlook}
    s_cbranch_scc1 L_h_go
    s_cmp_eq_u32 s{sWV}, 0
    s_cbranch_scc0 L_h_bar
    s_mov_b32 s{sSPIN}, 0
L_h_poll:
    buffer_load_dwordx2 v[16:17], v20, s[{sWS}:{sWS+3}], s{sOWNF} offen sc1
    s_waitcnt vmcnt(0)
    v_readfirstlane_b32 s{sTA}, v16
    v_readfirstlane_b32 s{sTA+1}, v17
    s_sub_u32 s{sTA}, s{sTA}, s{sE}
    s_subb_u32 s{sTA+1}, s{sTA+1}, s{sE+1}
    s_cmp_eq_u32 s{sTA+1}, 0
    s_cselect_b32 s{sTA}, s{sTA}, 0
    s_cmp_gt_u32 s{sTA}, 6
    s_cselect_b32 s{sTA}, 0, s{sTA}           ; layers finished so far
    s_add_u32 s{sTA}, s{sTA}, {c.hlook - 1}
    s_cmp_ge_u32 s{sTA}, s{sL}
    s_cbranch_scc1 L_h_bar
    s_add_u32 s{sSPIN}, s{sSPIN}, 1
    s_cmp_lt_u32 s{sSPIN}, 32
    s_cbranch_scc1 L_h_poll
L_h_bar:
    s_barrier
L_h_go:
""")
        def hw_batch(k, lab):
            if not c.hwarm: return
            a(f"    s_cmp_lt_u32 s{sL}, 5")
            a(f"    s_cbranch_scc0 {lab}")
            if not c.hw0:
                a(f"    s_cmp_eq_u32 s{sL}, 0")
                a(f"    s_cbranch_scc1 {lab}")
            a("    s_waitcnt lgkmcnt(0)")
            for n_ in range(7 * k, 7 * k + 7):
                a(f"    s_load_dwordx2 s[{76+2*(n_%7)}:{77+2*(n_%7)}], s[44:45], {n_*128 + 60}")
            a(f"{lab}:")
        def vec_warm(lab):
            A_ = c.hvw_ahead
            a(f"    s_cmp_eq_u32 s{sWG}, 1")
            a(f"    s_cbranch_scc1 {lab}_b")
            a(f"    s_add_u32 s{sI}, s{sL}, {A_}")
            a(f"    s_cmp_le_u32 s{sI}, 5")
            a(f"    s_cbranch_scc0 {lab}")
            if c.wwarm:
                a(f"    s_cmp_gt_u32 s{sI}, {c.wwarm}")
                a(f"    s_cbranch_scc0 {lab}")
            a(f"    s_add_u32 s{sI}, s{sT3}, {A_ * c.wstride}")
            a(f"    buffer_load_dword v29, v18, s[{sW}:{sW+3}], s{sI} offen")
            a(f"    s_branch {lab}")
            a(f"{lab}_b:")
            if A_ == 2 and c.wwarm < 1:
                a(f"    s_cmp_eq_u32 s{sL}, {HF}")
                a(f"    s_cbranch_scc0 {lab}")
                a(f"    s_add_u32 s{sI}, s{sT3}, {c.wstride}")
                a(f"    buffer_load_dword v29, v18, s[{sW}:{sW+3}], s{sI} offen")
            a(f"{lab}:")
        if c.hvec_warm and c.hvw_pos == "before": vec_warm("L_hvw")
        for k in range(NK):
            a(f"    buffer_load_dword v{31+k}, v{10+k}, s[{sW}:{sW+3}], s{sT3} offen")
            if k < 2: hw_batch(k, f"L_hw{k}")
            a(f"    s_waitcnt vmcnt({c.hdepth})")
            a(f"    s_barrier")
        if c.hvec_warm and c.hvw_pos == "after": vec_warm("L_hvw")
        if c.hvwarm:
            a(f"    s_cmp_lt_u32 s{sL}, 5")
            a(f"    s_cbranch_scc0 L_hnv")
            a("    s_waitcnt lgkmcnt(0)")
            for n_ in range(7):
                a(f"    s_load_dwordx2 s[{76+2*n_}:{77+2*n_}], s[46:47], {n_*128 + 60}")
            a(f"    s_add_u32 s46, s46, {c.wstride}")
            a(f"    s_addc_u32 s47, s47, 0")
            a("L_hnv:")
        if c.hwarm:
            a(f"    s_add_u32 s44, s44, {c.wstride}")
            a(f"    s_addc_u32 s45, s45, 0")
        if c.xt_by in ('helper', 'mixed'):
            nbuf = 1 if c.xt_by == "mixed" else 2
            a(f"""
    s_sub_u32 s{sI}, s{sL}, {HF}
    s_add_u32 s{sI}, s{sI}, {1 if HF != c.hfirst else 0}
    s_cmp_lt_u32 s{sI}, {nbuf}
    s_cbranch_scc0 L_hx0
    s_cmp_eq_u32 s{sM}, 1
    s_cbranch_scc0 L_hx0
    s_cmp_eq_u32 s{sI}, 0
    s_cselect_b32 s{sI}, {XBUF}, 0
    buffer_load_dword v30, v19, s[{sWS}:{sWS+3}], s{sI} offen sc1
L_hx0:""")
        stamp(1)
        a(f"""
    s_add_u32 s{sL}, s{sL}, 1
    s_add_u32 s{sT3}, s{sT3}, {c.wstride}
    s_cmp_lt_u32 s{sL}, 6
    s_cbranch_scc1 L_h_layer
""")
        if c.outtouch:
            srd(sOUT, 46, XLAYER)
            a(f"""
    ; output lines of the die's 128 rows: the final stores then stay in L2
    s_cmp_eq_u32 s{sM}, 1
    s_cbranch_scc0 L_noot
    buffer_load_dword v30, v19, s[{sOUT}:{sOUT+3}], 0 offen
L_noot:""")
        if c.hwb:
            a(f"""
    ; first helper workgroup of the die, wave 0: once layer 4 is finished, start writing the exchanged activations back
    s_cmp_lt_u32 s2, 216
    s_cbranch_scc0 L_nowb
    s_cmp_eq_u32 s{sWV}, 0
    s_cbranch_scc0 L_nowb
    s_mov_b32 s{sSPIN}, 0
L_wbpoll:
    buffer_load_dwordx2 v[16:17], v20, s[{sWS}:{sWS+3}], s{sOWNF} offen sc1
    s_waitcnt vmcnt(0)
    v_readfirstlane_b32 s{sTA}, v16
    v_readfirstlane_b32 s{sTA+1}, v17
    s_sub_u32 s{sTA}, s{sTA}, s{sE}
    s_subb_u32 s{sTA+1}, s{sTA+1}, s{sE+1}
    s_cmp_eq_u32 s{sTA+1}, 0
    s_cselect_b32 s{sTA}, s{sTA}, 0
    s_cmp_eq_u32 s{sTA}, 5
    s_cbranch_scc1 L_wbgo
    s_add_u32 s{sSPIN}, s{sSPIN}, 1
    s_cmp_lt_u32 s{sSPIN}, 64
    s_cbranch_scc1 L_wbpoll
L_wbgo:
    buffer_wbl2 sc1
L_nowb:""")
        a("    s_waitcnt vmcnt(0)")
        stamp(1)
        dump_ts()
    a("L_end:")
    a("    s_endpgm")
    kernel_desc(a, KNAME, NV, sgpr=102, accum=NV)
    txt = a.text().rstrip()
    if txt.endswith(".text"):
        txt = txt[:-5]
    return txt

if __name__ == "__main__":
    import json
    kw = json.loads(sys.argv[2]) if len(sys.argv) > 2 else {}
    open(sys.argv[1], "w").write(gen(**kw))
```
